```python
import torch

def _softmax(x, axis=-1):
    return torch.softmax(x, dim=axis)
def _gelu(x):
    return torch.nn.functional.gelu(x, approximate="tanh")
def _silu(x):
    return torch.nn.functional.silu(x)
def _sigmoid(x):
    return torch.sigmoid(x)
def _layernorm(x, axis=-1, eps=1e-5):
    m = x.mean(dim=axis, keepdim=True)
    v = x.var(dim=axis, keepdim=True, unbiased=False)
    return (x - m) / torch.sqrt(v + eps)
def _scatter_add(tgt, idx, src, axis=0):
    return tgt.clone().index_add_(axis, idx, src)
def _segment_sum(src, seg, n):
    out = torch.zeros((n,) + src.shape[1:], dtype=src.dtype)
    return out.index_add_(0, seg, src)
def _pad(x, pw):
    flat = tuple(v for pair in reversed(pw) for v in pair)
    return torch.nn.functional.pad(x, flat)

kernel_name = 'recurrent_scan__sliding_local_dilated__glu_gated_bilinear__prompt'

def setup_inputs():

    _w = (lambda a: (lambda t: t.to(torch.bfloat16) if t.is_floating_point() else t)(torch.as_tensor(a)))
    def _A_setup():
        B, S, D = 1, 2048, 512
        return {
            "x": _w((lambda *s: torch.randn(*s, dtype=torch.bfloat16) * 0.05)(B, S, D)),
            "wqkv": _w((lambda *s: torch.randn(*s, dtype=torch.bfloat16) * 0.2)(D, 3 * D)),
            "wo": _w((lambda *s: torch.randn(*s, dtype=torch.bfloat16) * 0.2)(D, D)),
        }
    _A_in = _A_setup()

    def _B_setup():
        B, S, D, F = 1, 2048, 512, 1792
        return {
            "x": _w((lambda *s: torch.randn(*s, dtype=torch.bfloat16) * 0.05)(B, S, D)),
            "w_gate": _w((lambda *s: torch.randn(*s, dtype=torch.bfloat16) * 0.1)(D, F) * (D ** -0.5)),
            "w_up": _w((lambda *s: torch.randn(*s, dtype=torch.bfloat16) * 0.1)(D, F) * (D ** -0.5)),
            "w_down": _w((lambda *s: torch.randn(*s, dtype=torch.bfloat16) * 0.1)(F, D) * (F ** -0.5)),
        }
    _B_in = _B_setup()

    return {
        "A_x": _A_in["x"],
        "A_wqkv": _A_in["wqkv"],
        "A_wo": _A_in["wo"],
        "B_x": _B_in["x"],
        "B_w_gate": _B_in["w_gate"],
        "B_w_up": _B_in["w_up"],
        "B_w_down": _B_in["w_down"],
    }

def reference(A_x, A_wqkv, A_wo, B_x, B_w_gate, B_w_up, B_w_down):
    def _A_ref(x, wqkv, wo):
        B, S, D = x.shape
        H = 32; Dh = D // H
        W, dil = 8, 2
        qkv = (lambda x, *d: x.permute(*d))((x @ wqkv).reshape(B, S, 3, H, Dh), 2, 0, 3, 1, 4)
        q, k, v = qkv[0], qkv[1], qkv[2]
        scale = Dh ** -0.5
        pos = torch.arange(S)
        off = torch.arange(W) * dil
        idx = pos[:, None] - off[None, :]
        mask = idx >= 0
        idx_c = torch.where(mask, idx, 0).reshape(-1)
        kg = k[:, :, idx_c, :].reshape(B, H, S, W, Dh)
        vg = v[:, :, idx_c, :].reshape(B, H, S, W, Dh)
        logits = torch.einsum("bhsd,bhswd->bhsw", q, kg) * scale
        logits = torch.where(mask[None, None, :, :], logits, -1e9)
        attn = _softmax(logits, axis=-1)
        o = torch.einsum("bhsw,bhswd->bhsd", attn, vg)
        return (lambda x, *d: x.permute(*d))(o, 0, 2, 1, 3).reshape(B, S, D) @ wo

    def _B_ref(x, w_gate, w_up, w_down):
        g = torch.einsum("bsd,df->bsf", x, w_gate)
        u = torch.einsum("bsd,df->bsf", x, w_up)
        h = g * u
        return torch.einsum("bsf,fd->bsd", h, w_down)

    x = A_x
    xn = _layernorm(x, axis=-1)
    s = _A_ref(xn, A_wqkv, A_wo)
    g = _silu(_B_ref(xn, B_w_gate, B_w_up, B_w_down))
    return x + s * g
```

```python
A0 = 256
S0 = 1000
VCC, EXEC, M0, SCC = 1200, 1201, 1202, 1203


class R:
    __slots__ = ("f", "lo", "n")

    def __init__(self, f, lo, n=1):
        self.f, self.lo, self.n = f, lo, n

    def __str__(self):
        if self.n == 1:
            return f"{self.f}{self.lo}"
        return f"{self.f}[{self.lo}:{self.lo + self.n - 1}]"

    def ids(self):
        base = {"v": 0, "a": A0, "s": S0}[self.f]
        return set(range(base + self.lo, base + self.lo + self.n))

    def sub(self, off, n=1):
        assert off + n <= self.n, (str(self), off, n)
        return R(self.f, self.lo + off, n)

    def __getitem__(self, i):
        return self.sub(i, 1)


def v(lo, n=1): return R("v", lo, n)
def a(lo, n=1): return R("a", lo, n)
def s(lo, n=1): return R("s", lo, n)


def ids(x):
    if isinstance(x, R):
        return x.ids()
    if x == "vcc": return {VCC}
    if x == "exec": return {EXEC}
    if x == "m0": return {M0}
    return set()


def fmt(x):
    if isinstance(x, R): return str(x)
    if isinstance(x, float): return repr(x)
    if isinstance(x, int):
        if -16 <= x <= 64: return str(x)
        return hex(x & 0xffffffff)
    return str(x)


TRANS = ("v_exp_f32", "v_log_f32", "v_rcp_f32", "v_rsq_f32", "v_sqrt_f32")


class I:
    __slots__ = ("t", "k", "r", "w", "tag", "c", "d", "na", "counted", "passes", "cost")

    def __init__(self, t, k, r=(), w=(), tag=None):
        self.t, self.k = t, k
        self.r, self.w = set(r), set(w)
        self.tag = tag
        self.c = set()
        self.d = set()
        self.na = set()
        self.counted = True
        self.passes = 8
        self.cost = 1


def valu(op, d, *src, rd=False, mods=""):
    r = set()
    for x in src: r |= ids(x)
    w = ids(d)
    if rd: r |= w
    k = "trans" if op in TRANS else ("dot" if op.startswith("v_dot") else "valu")
    i = I(f"{op} {fmt(d)}, " + ", ".join(fmt(x) for x in src) + (" " + mods if mods else ""), k, r, w)
    if k == "trans": i.cost = 2
    return i


def vcmp(op, d, x, y):
    return I(f"{op} {fmt(d)}, {fmt(x)}, {fmt(y)}", "valu", ids(x) | ids(y), ids(d))


def cndmask(d, f, t, m):
    return I(f"v_cndmask_b32 {d}, {fmt(f)}, {fmt(t)}, {fmt(m)}", "valu", ids(f) | ids(t) | ids(m), ids(d))


def swap32(x, y):
    return I(f"v_permlane32_swap_b32 {x}, {y}", "perm", ids(x) | ids(y), ids(x) | ids(y))


def swap16(x, y):
    return I(f"v_permlane16_swap_b32 {x}, {y}", "perm", ids(x) | ids(y), ids(x) | ids(y))


def rfl(d, x):
    return I(f"v_readfirstlane_b32 {d}, {x}", "rfl", ids(x), ids(d))


def accr(d, x): return I(f"v_accvgpr_read_b32 {d}, {x}", "valu", ids(x), ids(d))
def accw(d, x): return I(f"v_accvgpr_write_b32 {d}, {fmt(x)}", "valu", ids(x), ids(d))


def salu(op, d, *src, scc_w=True, scc_r=False):
    r = set()
    for x in src: r |= ids(x)
    if scc_r: r.add(SCC)
    w = ids(d)
    if scc_w: w = w | {SCC}
    return I(f"{op} {fmt(d)}, " + ", ".join(fmt(x) for x in src), "salu", r, w)


def smov(d, x): return salu("s_mov_b32", d, x, scc_w=False)


def scmp(op, x, y):
    return I(f"{op} {fmt(x)}, {fmt(y)}", "salu", ids(x) | ids(y), {SCC})


def mfma(D, A, B, C, shape="32x32x16"):
    i = I(f"v_mfma_f32_{shape}_bf16 {D}, {A}, {B}, {fmt(C)}", "mfma", ids(A) | ids(B) | ids(C), ids(D))
    i.c = ids(C); i.na = ids(A) | ids(B)
    i.passes = 8 if shape == "32x32x16" else 4
    return i


def ds_tr(d, addr, off, tag=None):
    assert 0 <= off < 65536, off
    return I(f"ds_read_b64_tr_b16 {d}, {addr} offset:{off}", "dsr", ids(addr), ids(d), tag)


def ds_rd(d, addr, off, tag=None):
    assert 0 <= off < 65536, off
    op = {1: "ds_read_b32", 2: "ds_read_b64", 4: "ds_read_b128"}[d.n]
    return I(f"{op} {d}, {addr} offset:{off}", "dsr", ids(addr), ids(d), tag)


def ds_wr(addr, x, off, tag=None):
    assert 0 <= off < 65536, off
    op = {1: "ds_write_b32", 2: "ds_write_b64", 4: "ds_write_b128"}[x.n]
    return I(f"{op} {addr}, {x} offset:{off}", "dsw", ids(addr) | ids(x), (), tag)


def _vo(voff):
    return ("off", "") if voff is None else (str(voff), " offen")


def dma(voff, srd, soff, imm=0, tag=None, fl=""):
    assert 0 <= imm < 4096
    t = f"buffer_load_dwordx4 {voff}, {srd}, {fmt(soff)} offen" + (f" offset:{imm}" if imm else "") + (" " + fl if fl else "") + " lds"
    return I(t, "dma", ids(voff) | ids(srd) | ids(soff) | {M0}, (), tag)


def vload(d, voff, srd, soff, imm=0, tag=None, fl=""):
    assert 0 <= imm < 4096
    op = {1: "buffer_load_dword", 2: "buffer_load_dwordx2", 4: "buffer_load_dwordx4"}[d.n]
    vo, en = _vo(voff)
    t = f"{op} {d}, {vo}, {srd}, {fmt(soff)}{en}" + (f" offset:{imm}" if imm else "") + (" " + fl if fl else "")
    return I(t, "vml", ids(voff) | ids(srd) | ids(soff), ids(d), tag)


def vstore(x, voff, srd, soff, imm=0, tag=None, fl=""):
    assert 0 <= imm < 4096
    op = {1: "buffer_store_dword", 2: "buffer_store_dwordx2", 4: "buffer_store_dwordx4"}[x.n]
    vo, en = _vo(voff)
    t = f"{op} {x}, {vo}, {srd}, {fmt(soff)}{en}" + (f" offset:{imm}" if imm else "") + (" " + fl if fl else "")
    i = I(t, "vms", ids(voff) | ids(srd) | ids(soff) | ids(x), (), tag)
    if x.n >= 3: i.d = ids(x)
    return i


def raw(t, k="other", r=(), w=()):
    return I(t, k, r, w)


class Emitter:
    LG_OLD = 10

    def __init__(self):
        self.out = []
        self.pos = 0
        self.reset_state()
        self.ninst = 0

    def reset_state(self):
        self.w_valu = {}; self.w_trans = {}; self.w_dot = {}; self.w_mfma = {}
        self.c_mfma = {}; self.w_vsgpr = {}; self.st_data = {}
        self.m0_pos = -100
        self.lq = []
        self.vq = []

    def snapshot(self):
        import copy
        return copy.deepcopy((self.pos, self.w_valu, self.w_trans, self.w_dot, self.w_mfma, self.c_mfma,
                              self.w_vsgpr, self.st_data, self.m0_pos, self.lq, self.vq))

    def restore(self, snap):
        import copy
        (self.pos, self.w_valu, self.w_trans, self.w_dot, self.w_mfma, self.c_mfma,
         self.w_vsgpr, self.st_data, self.m0_pos, self.lq, self.vq) = copy.deepcopy(snap)

    def nops(self, i):
        need = 0
        p = self.pos
        isv = i.k in ("valu", "trans", "dot", "perm", "rfl")
        mem = i.k in ("dsr", "dsw", "dma", "vml", "vms")

        def req(q, n):
            nonlocal need
            need = max(need, q + n + 1 - p)

        tab_valu = {8: 12, 4: 8}
        tab_part = {8: 10, 4: 6}
        tab_war = {8: 7, 4: 3}
        if i.k == "mfma":
            for x in i.r:
                if x in self.w_valu: req(self.w_valu[x], 2)
                if x in self.w_dot: req(self.w_dot[x][0], 3)
            for x in i.na:
                if x in self.w_mfma: req(self.w_mfma[x][0], tab_valu[self.w_mfma[x][2]])
            for x in i.c:
                if x in self.w_mfma:
                    q, dset, ps = self.w_mfma[x]
                    if not (dset == i.c and ps == i.passes): req(q, tab_part[ps])
            for x in i.w - i.c:
                if x in self.w_mfma: req(self.w_mfma[x][0], tab_valu[self.w_mfma[x][2]])
        if isv or mem:
            for x in (i.r | i.w):
                if x in self.w_mfma: req(self.w_mfma[x][0], tab_valu[self.w_mfma[x][2]])
        if isv:
            for x in i.w:
                if x in self.c_mfma: req(self.c_mfma[x][0], tab_war[self.c_mfma[x][1]])
                if x in self.st_data: req(self.st_data[x], 2)
            for x in i.r:
                if x in self.w_trans and i.k != "trans": req(self.w_trans[x], 1)
                if x in self.w_vsgpr: req(self.w_vsgpr[x], 2)
            op = i.t.split()[0]
            for x in (i.r | i.w):
                if x in self.w_dot:
                    q, o = self.w_dot[x]
                    if not (i.k == "dot" and o == op and x in i.w): req(q, 3)
            if i.k == "perm":
                for x in i.r:
                    if x in self.w_valu: req(self.w_valu[x], 2)
            if i.k == "rfl":
                for x in i.r:
                    if x in self.w_valu: req(self.w_valu[x], 1)
        if mem:
            for x in i.r:
                if x in self.w_vsgpr: req(self.w_vsgpr[x], 5)
                if x in self.w_dot: req(self.w_dot[x][0], 3)
                if x in self.w_trans: req(self.w_trans[x], 1)
            for x in i.w:
                if x in self.st_data: req(self.st_data[x], 1)
                if x in self.c_mfma: req(self.c_mfma[x][0], tab_war[self.c_mfma[x][1]])
        if i.k == "dma": req(self.m0_pos, 1)
        if i.k == "salu":
            for x in i.r:
                if x in self.w_vsgpr: req(self.w_vsgpr[x], 3)
        return max(0, need)

    def _pending(self, q, i):
        touch = i.r | i.w
        last = -1
        for n, e in enumerate(q):
            if e[1] & touch: last = n
        return last

    def dep_age(self, i):
        n = self._pending(self.lq, i); m = self._pending(self.vq, i)
        return (self.pos - self.lq[n][0] if n >= 0 else 10 ** 6, self.pos - self.vq[m][0] if m >= 0 else 10 ** 6)

    def line(self, t, states=1):
        self.out.append("    " + t)
        self.pos += states
        self.ninst += 1

    def label(self, name):
        self.out.append(name + ":")

    def comment(self, t):
        self.out.append("    ; " + t)

    def _wait(self, ln, vn):
        parts = []
        if vn >= 0:
            n = sum(1 for e in self.vq[vn + 1:] if e[3])
            if n < 63: parts.append(f"vmcnt({n})")
            else: parts.append("vmcnt(62)")
            self.vq = self.vq[vn + 1:]
        if ln >= 0:
            while ln + 1 < len(self.lq) and self.pos - self.lq[ln + 1][0] >= self.LG_OLD: ln += 1
            n = len(self.lq) - 1 - ln
            parts.append(f"lgkmcnt({min(n, 15)})")
            self.lq = self.lq[ln + 1:]
        if parts: self.line("s_waitcnt " + " ".join(parts))

    def wait_tags(self, lds=(), vm=()):
        ln = max([n for n, e in enumerate(self.lq) if e[2] in lds], default=-1)
        vn = max([n for n, e in enumerate(self.vq) if e[2] in vm], default=-1)
        self._wait(ln, vn)

    def wait_all_lds(self):
        if self.lq: self._wait(len(self.lq) - 1, -1)

    def wait_all_vm(self):
        self.line("s_waitcnt vmcnt(0)"); self.vq = []

    def emit(self, i):
        self._wait(self._pending(self.lq, i), self._pending(self.vq, i))
        n = self.nops(i)
        while n > 0:
            k = min(n, 16)
            self.line(f"s_nop {k - 1}", k); n -= k
        p = self.pos
        self.line(i.t)
        isv = i.k in ("valu", "trans", "dot", "perm", "rfl")
        for x in i.w:
            for dct in (self.w_valu, self.w_trans, self.w_dot, self.w_mfma, self.w_vsgpr):
                dct.pop(x, None)
        if isv:
            for x in i.w:
                if x >= S0: self.w_vsgpr[x] = p
                else: self.w_valu[x] = p
                if i.k == "trans": self.w_trans[x] = p
                if i.k == "dot": self.w_dot[x] = (p, i.t.split()[0])
        if i.k == "mfma":
            for x in i.w: self.w_mfma[x] = (p, frozenset(i.w), i.passes)
            for x in i.c: self.c_mfma[x] = (p, i.passes)
        if i.k == "salu" and M0 in i.w: self.m0_pos = p
        for x in i.d: self.st_data[x] = p
        if i.k in ("dsr", "dsw"): self.lq.append([p, set(i.w), i.tag])
        if i.k in ("dma", "vml", "vms"): self.vq.append([p, set(i.w), i.tag, i.counted])

    def emits(self, lst):
        for i in lst: self.emit(i)

    def barrier(self):
        self.line("s_barrier")

    def text(self):
        return "\n".join(self.out) + "\n"


class Q:
    def __init__(self, name, lds_age=14, vm_age=200):
        self.name = name; self.items = []; self.n = 0
        self.lds_age = lds_age; self.vm_age = vm_age

    def add(self, i, earliest=0, deadline=10 ** 9):
        self.items.append((i, earliest, deadline))

    def adds(self, lst, earliest=0, deadline=10 ** 9):
        for i in lst: self.add(i, earliest, deadline)

    def empty(self): return self.n >= len(self.items)
    def head(self): return self.items[self.n]


def run_item(E, it):
    if callable(it): it(E)
    else: E.emit(it)


def schedule(E, mains, queues, cap, g0=0, flush=True):
    for n, mn in enumerate(mains):
        g = g0 + n
        for q in queues:
            last = -1
            for k in range(q.n, len(q.items)):
                if q.items[k][2] <= g: last = k
            while q.n <= last:
                run_item(E, q.items[q.n][0]); q.n += 1
        for it in mn.get("pre", ()): run_item(E, it)
        E.emit(mn["m"])
        start = E.pos; extra = 0
        for it in mn.get("fix", ()): run_item(E, it)
        c = cap(g) if callable(cap) else cap
        progress = True
        while progress:
            progress = False
            for q in queues:
                if q.empty(): continue
                it, ear, dl = q.head()
                if ear > g: continue
                must = False
                if dl < 10 ** 9:
                    cnt = sum(1 for k in range(q.n, len(q.items)) if q.items[k][2] <= dl)
                    left = max(1, dl - g)
                    must = cnt > (left - 1) * c
                used = E.pos - start + extra
                if used >= c and not must: continue
                if not callable(it):
                    if E.nops(it) > 0: continue
                    la, va = E.dep_age(it)
                    if la < q.lds_age or va < q.vm_age: continue
                    if it.k == "mfma":
                        E.emit(it); q.n += 1; progress = True
                        start = E.pos; extra = 0
                        break
                    extra += it.cost - 1
                run_item(E, it); q.n += 1; progress = True
                break
    if flush:
        for q in queues:
            while not q.empty():
                run_item(E, q.head()[0]); q.n += 1
```

```python
import sys, os
sys.path.insert(0, os.path.dirname(os.path.abspath(__file__)))
from emit import *

NAME = "recurrent_scan__sliding_local_dilated__glu_gated_bilinear__prompt_kernel"

class Cfg:
    stamps = False
    D = 6
    cap1 = 6; cap2 = 6; cap3 = 5
    look = 14
    touch_w1 = True
    touch_code = True
    touch_b2 = True
    x_fl = ""; w_fl = ""; b2_fl = ""; out_fl = ""
    spin_max = 1 << 16

C = Cfg()
for arg in sys.argv[2:]:
    k, val = arg.split("=")
    old = getattr(C, k)
    setattr(C, k, (val not in ("0", "False")) if isinstance(old, bool) else type(old)(val))

WS_FLAG = 0x900000
WS_EPOCH = 0xA00000
WS_STAMP = 0xB00000
WS_SIZE = 0xC00000
TB = 131072

sWG = s(2); sW = s(3); sRB = s(4); sIDX = s(5); sJ = s(6); sXCD = s(7)
SX, SQKV, SWG_, SWU, SWH, SWD, SWO, SOUT, SWS, SDBG = [s(28 + 4 * i, 4) for i in range(10)]
sM0B = s(68); sT0 = s(69); sT1 = s(70); sS1 = s(71); sS2 = s(72); sS2b = s(73)
sTAG = s(74); sFLW = s(75); sFLR = s(76); sA2L = s(77)
sStF = s(78); sStH = s(79); sSt2 = s(80); sHI = s(81); sONE = s(82); sSPIN = s(83)
sT2 = s(8); sT3 = s(9); sT4 = s(10); sT5 = s(11); sRT = s(12); sCT = s(13); sKH = s(14); sA2s = s(15)
sB2s = s(16); sCSC = s(17); sXs = s(18)
STAMP0 = 84

def X(ks): return v(4 * ks, 4)
def ACC1(t): return v(128 + 16 * t, 16)
NT = [v(224 + i) for i in range(8)]
vTR = [v(232 + i) for i in range(6)]
vG = v(238); vU = v(239); vH = v(240)
vB2 = [v(241), v(242)]
vL16 = v(243); vRINV = v(244); vNB = v(245); vW16 = v(246); vHX = v(247)
vTAG = v(248); vPOLL = v(249); vP4 = v(250)
vEX = v(251); vHW = v(252); vPM = v(253); vMHC = v(254); vMHP = v(255)
vTR2 = [v(44), v(45)]; vA2 = [v(46), v(47)]
E2T = v(48, 16)
ACCD = [v(64, 16), v(80, 16)]; ACCS = [v(96, 16), v(112, 16)]
def WF(m): return a(4 * (m % 12), 4)
def ACC2(t): return a(48 + 16 * t, 16)
aMASK = a(112, 24); aKP = [a(136 + 4 * i, 4) for i in range(4)]; aVP = [a(152 + 4 * i, 4) for i in range(2)]
aHACC = [a(160, 4), a(164, 4)]; aXH = [a(168, 4), a(172, 4)]
aW16 = [[a(176, 4), a(180, 4)], [a(184, 4), a(188, 4)]]
aPARK = 192
NRING = 24
def A2(n): return a(160 + 4 * (n % NRING), 4)

M1, M2, M3 = 0, 192, 320
NEG = 0xf149f2ca


def srd(E, d, lo, hi, size, shift=0):
    if shift:
        E.emit(salu("s_sub_u32", d[0], lo, shift)); E.emit(salu("s_subb_u32", d[1], hi, 0, scc_r=True))
    else:
        E.emit(smov(d[0], lo)); E.emit(smov(d[1], hi))
    E.emit(smov(d[2], size + shift)); E.emit(smov(d[3], 0x20000))


class LDSMap:
    def __init__(self):
        self.own = {c: ("x", c // 4) for c in range(32)}
        self.last_use = {}
        self.visible = set()
        self.bar_m = -1
        self.xread = set()
    def alloc(self, obj, chunks):
        for c in chunks:
            o = self.own[c]
            if o[0] == "x": assert o[1] in self.xread, (obj, c, o)
            else: assert self.last_use[o] <= self.bar_m, (obj, c, o, self.last_use[o], self.bar_m)
            self.own[c] = obj
    def check_read(self, obj, chunks):
        assert obj in self.visible, ("not visible", obj)
        for c in chunks: assert self.own[c] == obj, (obj, c, self.own[c])


def s1_chunk(j): return 3 * (j % 7)
S2_CH = [6, 10, 14, 18, 0, 6, 10, 14]
B2_CH0 = list(range(22, 32)) + [4, 5] + [18, 19, 20, 21] + [0, 1, 2, 3] + [6, 7, 8, 9] + list(range(10, 18))
def b2_chunk(n): return B2_CH0[n % 32]


def step_info(n):
    if n < 24:
        idx, r = divmod(n, 6); base = 32 + 10 * idx
        return (base + 4 + r if idx % 2 == 0 else base + r), 0, False, 0
    if n < 40:
        idx, r = divmod(n - 24, 4); base = 32 + 10 * idx
        return (base + r if idx % 2 == 0 else base + 6 + r), 0, False, 1
    if n < 56: return n - 40, 1, False, 2
    return 112 + n - 56, 1, True, 2


class Gen:
    def __init__(self):
        self.E = Emitter()
        self.nlabel = 0
        self.nstamp = 0

    def lab(self, base):
        self.nlabel += 1
        return f"L_{base}_{self.nlabel}"

    def stamp(self, k):
        if C.stamps:
            self.E.line(f"s_memtime s[{STAMP0 + 2 * k}:{STAMP0 + 2 * k + 1}]")

    def prologue(self):
        E = self.E
        E.emit(scmp("s_cmp_ge_u32", sWG, 256))
        E.line("s_cbranch_scc1 L_end")
        E.line("s_load_dwordx16 s[8:23], s[0:1], 0")
        E.line("s_load_dwordx4 s[24:27], s[0:1], 64")
        self.stamp(0)
        lane = v(200); t0 = v(201); t1 = v(202); t2 = v(203)
        self.lane = lane
        E.emit(valu("v_and_b32", lane, 63, v(0)))
        E.emit(valu("v_lshrrev_b32", t0, 6, v(0)))
        E.emit(rfl(sW, t0))
        vx = [v(204 + g) for g in range(4)]
        self.vx = vx
        E.emit(valu("v_and_b32", t0, 7, lane))
        E.emit(valu("v_lshrrev_b32", t1, 4, lane))
        E.emit(valu("v_xor_b32", t0, t0, t1))
        E.emit(valu("v_lshlrev_b32", t0, 4, t0))
        E.emit(valu("v_lshrrev_b32", t1, 3, lane))
        E.emit(valu("v_lshlrev_b32", t1, 10, t1))
        E.emit(valu("v_or_b32", vx[0], t0, t1))
        E.emit(valu("v_xor_b32", t2, 64, vx[0]))
        E.emit(valu("v_add_u32", vx[1], 7168, t2))
        E.emit(valu("v_add_u32", vx[2], 2 * 7168, vx[0]))
        E.emit(valu("v_add_u32", vx[3], 3 * 7168, t2))
        E.emit(salu("s_and_b32", sXCD, sWG, 7))
        E.emit(salu("s_lshr_b32", sJ, sWG, 3))
        E.emit(salu("s_and_b32", sRB, sXCD, 1))
        E.emit(salu("s_lshl_b32", sRB, sRB, 3))
        E.emit(salu("s_and_b32", sT0, sJ, 7))
        E.emit(salu("s_add_u32", sRB, sRB, sT0))
        E.emit(salu("s_and_b32", sIDX, sXCD, 6))
        E.emit(salu("s_lshr_b32", sT0, sJ, 4))
        E.emit(salu("s_add_u32", sIDX, sIDX, sT0))
        E.emit(salu("s_lshl_b32", sM0B, sW, 15))
        E.emit(salu("s_lshl_b32", sT0, sRB, 17))
        E.emit(salu("s_add_u32", sT0, sT0, sM0B))
        E.emit(smov(sHI, 0xffff0000)); E.emit(smov(sONE, 0x3f803f80))
        E.line("s_waitcnt lgkmcnt(0)")
        srd(E, SX, s(8), s(9), 0x200000)
        srd(E, SWS, s(26), s(27), WS_SIZE)
        E.emit(I("s_bitcmp1_b32 s6, 3", "salu", sJ.ids(), {SCC}))
        E.line("s_cbranch_scc1 L_typeB")

    def issue_x(self):
        E = self.E
        lskip = self.lab("noep")
        E.emit(salu("s_or_b32", sT1, sWG, sW))
        E.line(f"s_cbranch_scc1 {lskip}")
        E.emit(smov(sT1, WS_EPOCH))
        ld = vload(vPOLL, None, SWS, sT1, fl="sc1"); ld.counted = False; ld.w = set()
        E.emit(ld); E.vq.pop()
        E.label(lskip)
        for sl in range(8):
            E.emit(salu("s_add_u32", "m0", sM0B, 4096 * sl))
            for g in range(4):
                E.emit(dma(self.vx[g], SX, sT0, 1024 * g, tag=("x", sl), fl=C.x_fl))
            if sl < 7: E.emit(salu("s_add_u32", sT0, sT0, 128))

    def rest_srds(self, typ):
        E = self.E
        srd(E, SWG_, s(16), s(17), 512 * 3584)
        srd(E, SWU, s(18), s(19), 512 * 3584, 1024)
        if typ == "A":
            srd(E, SQKV, s(10), s(11), 512 * 3072)
        else:
            E.emit(scmp("s_cmp_ge_u32", sW, 2))
            E.emit(salu("s_cselect_b32", sT1, s(18), s(16), scc_w=False, scc_r=True))
            E.emit(salu("s_cselect_b32", sT0, s(19), s(17), scc_w=False, scc_r=True))
            srd(E, SWH, sT1, sT0, 512 * 3584, 2048 + 64)
        srd(E, SWD, s(20), s(21), 1792 * 1024)
        srd(E, SWO, s(12), s(13), 512 * 1024)
        srd(E, SOUT, s(22), s(23), 0x200000)
        srd(E, SDBG, s(24), s(25), 256)

    def consts(self, typ):
        E = self.E; lane = self.lane
        t = [v(208 + i) for i in range(8)]
        e = E.emit
        li, g4, r2, hh, ub = v(190), v(191), v(192), v(193), v(194)
        e(valu("v_and_b32", li, 15, lane))
        e(valu("v_lshrrev_b32", g4, 4, lane))
        e(valu("v_lshrrev_b32", hh, 5, lane))
        e(valu("v_and_b32", ub, 1, g4))
        e(valu("v_lshrrev_b32", r2, 2, li))
        e(valu("v_lshlrev_b32", vL16, 4, lane))
        e(valu("v_and_b32", vP4, 3, lane)); e(valu("v_lshlrev_b32", vP4, 2, vP4))
        if typ == "A":
            e(salu("s_lshl_b32", sT2, sIDX, 2))
        else:
            e(salu("s_mul_i32", sT3, sIDX, 10, scc_w=False)); e(salu("s_add_u32", sT3, sT3, 32))
            e(I("s_bitcmp1_b32 s5, 0", "salu", sIDX.ids(), {SCC}))
            e(salu("s_cselect_b32", sT2, 6, 0, scc_w=False, scc_r=True))
            e(salu("s_cselect_b32", sT4, 2, 4, scc_w=False, scc_r=True))
            e(salu("s_cselect_b32", sT5, 0, 8, scc_w=False, scc_r=True))
            e(salu("s_add_u32", sT2, sT2, sT3))
            e(salu("s_add_u32", sT4, sT4, sT3))
            e(salu("s_add_u32", sT5, sT5, sT3))
        e(salu("s_lshl_b32", sT0, sRB, 2)); e(salu("s_add_u32", sT0, sT0, sW))
        e(salu("s_mul_i32", sT1, sT0, 144, scc_w=False))
        e(salu("s_add_u32", sSt2, sT1, sT2)); e(salu("s_lshl_b32", sSt2, sSt2, 10))
        if typ == "A":
            e(salu("s_add_u32", sStF, sSt2, 112 * 1024))
        else:
            e(salu("s_add_u32", sStF, sT1, sT4)); e(salu("s_lshl_b32", sStF, sStF, 10))
            e(salu("s_add_u32", sStH, sT1, sT5)); e(salu("s_lshl_b32", sStH, sStH, 10))
        e(salu("s_lshl_b32", sT0, sT0, 1)); e(salu("s_lshr_b32", sT1, sIDX, 2)); e(salu("s_add_u32", sT0, sT0, sT1))
        e(salu("s_mul_i32", sT0, sT0, 384, scc_w=False))
        e(salu("s_and_b32", sT1, sIDX, 3)); e(salu("s_lshl_b32", sT1, sT1, 2))
        e(salu("s_add_u32", sT0, sT0, sT1)); e(salu("s_add_u32", sFLW, sT0, WS_FLAG))
        e(salu("s_and_b32", sT0, sW, 1)); e(salu("s_lshl_b32", sT0, sT0, 4))
        e(salu("s_lshr_b32", sT1, sW, 1)); e(salu("s_lshl_b32", sT1, sT1, 3))
        e(salu("s_add_u32", sT1, sT1, sT0))
        e(valu("v_lshrrev_b32", t[0], 3, lane))
        e(valu("v_and_b32", t[1], 2, t[0]))
        e(valu("v_lshlrev_b32", t[1], 5, t[1]))
        e(valu("v_and_b32", t[2], 7, lane)); e(valu("v_lshlrev_b32", t[2], 4, t[2]))
        e(valu("v_xor_b32", t[2], t[2], t[1]))
        e(valu("v_add_u32", t[3], sT1, t[0]))
        e(valu("v_mul_u32_u24", t[4], 3584, t[3]))
        e(valu("v_add_u32", vG, t[4], t[2]))
        e(valu("v_xor_b32", t[5], 32, t[2]))
        e(valu("v_add_u32", vU, t[4], t[5]))
        if typ == "A":
            e(valu("v_mul_u32_u24", t[4], 3072, t[3]))
            e(valu("v_add_u32", vH, t[4], t[2]))
            e(salu("s_lshl_b32", sS1, sIDX, 7))
        else:
            e(valu("v_lshrrev_b32", t[4], 2, lane)); e(valu("v_add_u32", t[4], sT0, t[4]))
            e(valu("v_mul_u32_u24", t[4], 3584, t[4]))
            e(valu("v_and_b32", t[5], 3, lane)); e(valu("v_lshlrev_b32", t[5], 4, t[5]))
            e(salu("s_lshr_b32", sT1, sW, 1)); e(salu("s_lshl_b32", sT1, sT1, 5))
            e(valu("v_xor_b32", t[5], sT1, t[5]))
            e(salu("s_sub_u32", sT1, sT5, sT4)); e(salu("s_lshl_b32", sT1, sT1, 5)); e(salu("s_add_u32", sT1, sT1, 64))
            e(valu("v_add3_u32", vH, t[4], t[5], sT1))
            e(salu("s_lshl_b32", sS1, sT4, 5))
        e(salu("s_mul_i32", sT0, sT0, 3584, scc_w=False))
        e(salu("s_lshl_b32", sS2, sT2, 5)); e(salu("s_add_u32", sS2, sS2, sT0))
        if C.touch_w1:
            e(salu("s_and_b32", sT0, sJ, 7)); e(salu("s_lshl_b32", sT0, sT0, 2)); e(salu("s_add_u32", sT0, sT0, sW))
            e(salu("s_lshl_b32", sT0, sT0, 4))
            e(valu("v_add_u32", t[6], sT0, li))
            if typ == "A":
                e(valu("v_min_u32", t[7], 2, g4)); e(valu("v_lshlrev_b32", t[7], 10, t[7]))
                e(valu("v_mul_u32_u24", t[5], 3072, t[6])); e(valu("v_add_u32", t[7], t[5], t[7]))
                e(vload(v(220), t[7], SQKV, sS1, fl=C.w_fl))
                e(valu("v_mul_u32_u24", t[6], 3584, t[6]))
                e(salu("s_lshl_b32", sT0, sT2, 5))
                e(vload(v(221), t[6], SWG_, sT0, fl=C.w_fl))
                e(vload(v(222), t[6], SWU, sT0, 1024, fl=C.w_fl))
            else:
                e(valu("v_min_u32", t[7], 2, g4)); e(valu("v_lshlrev_b32", t[7], 7, t[7]))
                e(valu("v_mul_u32_u24", t[6], 3584, t[6])); e(valu("v_add_u32", t[6], t[6], t[7]))
                e(salu("s_lshl_b32", sT0, sT3, 5)); e(salu("s_and_b32", sT0, sT0, 0xffffff80))
                e(vload(v(221), t[6], SWG_, sT0, fl=C.w_fl))
                e(vload(v(222), t[6], SWU, sT0, 1024, fl=C.w_fl))
        if C.touch_code:
            E.line("s_getpc_b64 s[20:21]")
            E.label(self.lab("pc")); pcl = f"L_pc_{self.nlabel}"
            E.line(f"s_add_u32 s20, s20, {NAME}-{pcl}")
            E.line("s_addc_u32 s21, s21, -1")
            e(salu("s_and_b32", sT0, sJ, 1)); e(salu("s_lshl_b32", sT0, sT0, 2)); e(salu("s_add_u32", sT0, sT0, sW))
            e(salu("s_lshl_b32", sT0, sT0, 13))
            e(valu("v_lshlrev_b32", t[6], 7, lane)); e(valu("v_add_u32", t[6], sT0, t[6]))
            E.line(f"s_mov_b32 s69, L_code_end-{NAME}-4")
            e(valu("v_min_u32", t[6], sT0, t[6]))
            i = I(f"global_load_dword v223, {t[6]}, s[20:21]", "vml", t[6].ids(), v(223).ids()); e(i)
        e(salu("s_and_b32", sRT, sJ, 3)); e(salu("s_lshr_b32", sCT, sJ, 2)); e(salu("s_lshr_b32", sKH, sW, 1))
        e(salu("s_lshl_b32", sT0, sXCD, 3)); e(salu("s_lshl_b32", sT1, sRT, 1)); e(salu("s_add_u32", sT0, sT0, sT1))
        e(salu("s_and_b32", sT1, sW, 1)); e(salu("s_add_u32", sT0, sT0, sT1))
        e(salu("s_mul_i32", sA2L, sT0, 144 * 1024, scc_w=False))
        e(salu("s_lshl_b32", sXs, sT0, 15))
        e(salu("s_lshl_b32", sFLR, sT0, 1)); e(salu("s_add_u32", sFLR, sFLR, sKH))
        e(salu("s_mul_i32", sFLR, sFLR, 384, scc_w=False)); e(salu("s_add_u32", sFLR, sFLR, WS_FLAG))
        e(salu("s_lshl_b32", sT1, sT1, 13)); e(salu("s_lshl_b32", sT0, sCT, 7)); e(salu("s_add_u32", sT1, sT1, sT0))
        e(valu("v_lshlrev_b32", t[4], 10, t[0])); e(valu("v_add3_u32", t[4], t[4], t[2], sT1))
        e(salu("s_mul_i32", sT0, sKH, 40 * 16384, scc_w=False)); e(valu("v_add_u32", vB2[0], sT0, t[4]))
        e(salu("s_mul_i32", sT0, sKH, 16 * 16384, scc_w=False)); e(valu("v_add_u32", vB2[1], sT0, t[4]))
        e(valu("v_lshlrev_b32", t[0], 7, r2))
        e(valu("v_and_b32", t[1], 3, lane)); e(valu("v_lshlrev_b32", t[1], 3, t[1]))
        e(valu("v_add_u32", t[0], t[0], t[1]))
        e(valu("v_and_b32", t[2], 2, r2))
        e(valu("v_or_b32", t[3], t[2], ub)); e(valu("v_lshlrev_b32", t[3], 5, t[3]))
        e(valu("v_lshlrev_b32", t[4], 16, hh)); e(valu("v_add_u32", t[4], t[4], t[0]))
        e(valu("v_lshlrev_b32", t[5], 10, ub)); e(valu("v_add_u32", t[5], t[5], t[4]))
        for tt in range(4):
            e(valu("v_xor_b32", t[6], 32 * tt, t[3])); e(valu("v_add_u32", vTR[tt], t[6], t[5]))
        if typ == "A":
            for j in range(2):
                e(valu("v_xor_b32", t[6], 64 * j, t[3])); e(valu("v_add_u32", vTR[4 + j], t[6], t[4]))
        else:
            e(valu("v_lshlrev_b32", t[6], 3, hh)); e(valu("v_add_u32", t[6], t[6], r2)); e(valu("v_lshlrev_b32", t[6], 6, t[6]))
            e(valu("v_lshlrev_b32", t[7], 16, ub)); e(valu("v_add3_u32", t[6], t[6], t[7], t[1]))
            e(valu("v_lshlrev_b32", t[7], 5, ub))
            e(valu("v_add_u32", vTR[4], t[6], t[7]))
            e(valu("v_xor_b32", t[7], 32, t[7])); e(valu("v_add_u32", vTR[5], t[6], t[7]))
        pk = lambda n: a(aPARK + n)
        e(valu("v_lshlrev_b32", t[4], 9, hh)); e(valu("v_add_u32", t[4], t[4], t[0]))
        e(salu("s_lshl_b32", sT0, sKH, 16)); e(valu("v_add_u32", t[4], sT0, t[4]))
        e(salu("s_lshl_b32", sT0, sKH, 6))
        e(valu("v_xor_b32", t[6], sT0, t[3])); e(valu("v_add_u32", t[7], t[6], t[4])); e(accw(pk(0), t[7]))
        e(valu("v_xor_b32", t[6], 64, t[6])); e(valu("v_add_u32", t[7], t[6], t[4])); e(accw(pk(1), t[7]))
        e(salu("s_mul_i32", sT0, sKH, 40 * 1024, scc_w=False)); e(valu("v_add_u32", t[7], sT0, vL16)); e(accw(pk(2), t[7]))
        e(salu("s_lshl_b32", sT0, sKH, 14)); e(valu("v_add_u32", t[7], sT0, vL16)); e(accw(pk(3), t[7]))
        E.emit(smov(sCSC, 0x3eb8aa3b))
        if typ == "A":
            e(valu("v_lshlrev_b32", t[4], 16, ub)); e(valu("v_lshlrev_b32", t[5], 15, hh))
            e(valu("v_add3_u32", t[4], t[4], t[5], t[0]))
            e(valu("v_xor_b32", t[6], sW, t[2])); e(valu("v_lshlrev_b32", t[6], 5, t[6]))
            e(valu("v_add_u32", vW16, t[4], t[6]))
            e(valu("v_add_u32", vHX, TB + 16384, vL16))
            e(salu("s_mul_i32", sT0, sW, 6144, scc_w=False)); e(salu("s_add_u32", sT0, sT0, TB))
            e(valu("v_add_u32", vEX, sT0, vL16))
            e(valu("v_lshlrev_b32", t[4], 5, ub)); e(valu("v_add_u32", t[4], t[4], li)); e(valu("v_lshlrev_b32", t[4], 4, t[4]))
            e(valu("v_lshlrev_b32", t[5], 3, hh)); e(smov(sT0, TB)); e(valu("v_add3_u32", vHW, t[4], t[5], sT0))
            q = t[0]; d = t[1]
            e(valu("v_and_b32", q, 31, lane))
            e(valu("v_lshlrev_b32", t[2], 2, hh)); e(valu("v_sub_u32", t[2], q, t[2]))
            e(valu("v_mov_b32", t[5], NEG))
            e(salu("s_or_b32", sT1, sRB, sW))
            e(salu("s_cselect_b32", sT1, 0, 64, scc_w=False, scc_r=True))
            for r in range(24):
                if r < 16: k = 8 * (r >> 2) + (r & 3); e(valu("v_subrev_u32", d, k, t[2]))
                else:
                    rr = r - 8; k = 8 * (rr >> 2) + (rr & 3)
                    e(valu("v_add_u32", d, 32 - k, t[2])); e(valu("v_add_u32", d, sT1, d))
                e(valu("v_and_b32", d, 0xfffffff1, d))
                e(vcmp("v_cmp_eq_u32", "vcc", 0, d))
                e(I(f"v_cndmask_b32_e64 {t[3]}, {t[5]}, 0, vcc", "valu", t[5].ids() | {VCC}, t[3].ids()))
                e(accw(aMASK[r], t[3]))
            e(valu("v_and_b32", t[2], 1, q)); e(valu("v_lshlrev_b32", t[2], 4, t[2]))
            e(valu("v_mov_b32", t[3], 0xffff)); e(valu("v_lshlrev_b32", vPM, t[2], t[3]))
            e(vcmp("v_cmp_gt_u32", "vcc", 16, q))
            e(I(f"v_cndmask_b32_e64 {vMHP}, 0, {vPM}, vcc", "valu", vPM.ids() | {VCC}, vMHP.ids()))
            e(valu("v_xor_b32", vMHC, vMHP, vPM))

    def finish_stats(self, sm, sq, rinv, nb, t0, t1):
        e = self.E.emit
        e(valu("v_mul_f32", sm, 0x3b000000, sm))
        e(valu("v_mul_f32", t0, sm, sm))
        e(I(f"v_fma_f32 {sq}, {sq}, {sT1}, -{t0}", "valu", sq.ids() | t0.ids() | sT1.ids(), sq.ids()))
        e(valu("v_max_f32", sq, 0, sq))
        e(valu("v_cvt_pk_bf16_f32", t0, sm, sq))
        e(valu("v_and_b32", t1, sHI, t0))
        e(valu("v_add_f32", t1, 0x3727c5ac, t1))
        e(valu("v_cvt_pk_bf16_f32", t1, t1, t1)); e(valu("v_and_b32", t1, sHI, t1))
        e(valu("v_sqrt_f32", t1, t1))
        e(valu("v_cvt_pk_bf16_f32", t1, t1, t1)); e(valu("v_and_b32", t1, sHI, t1))
        e(valu("v_rcp_f32", rinv, t1))
        e(valu("v_lshlrev_b32", t0, 16, t0))
        e(I(f"v_mul_f32 {nb}, -{t0}, {rinv}", "valu", t0.ids() | rinv.ids(), nb.ids()))

    def norm_ops(self, reg, rinv, nb, k0=0):
        ops = []
        for d in range(4):
            lo = NT[(2 * (k0 + d)) % 8]; hi = NT[(2 * (k0 + d) + 1) % 8]; x = reg[d]
            ops += [valu("v_lshlrev_b32", lo, 16, x), valu("v_and_b32", hi, sHI, x),
                    valu("v_fma_f32", lo, lo, rinv, nb), valu("v_fma_f32", hi, hi, rinv, nb),
                    valu("v_cvt_pk_bf16_f32", x, lo, hi)]
        return ops

    def dots(self, reg, acc):
        ops = []
        for d in range(reg.n):
            ops.append(valu("v_dot2_f32_bf16", acc[d & 1], reg[d], sONE, acc[d & 1]))
            ops.append(valu("v_dot2_f32_bf16", acc[2 + (d & 1)], reg[d], reg[d], acc[2 + (d & 1)]))
        return ops

    def s1_dma(self, typ, j):
        L = self.L
        def f(E): L.alloc(("s1", j), range(s1_chunk(j), s1_chunk(j) + 3))
        tag = ("s1", j); ops = [salu("s_add_u32", "m0", sM0B, 1024 * s1_chunk(j))]
        if typ == "A":
            ops += [dma(vH, SQKV, sS1, 1024 * u, tag, C.w_fl) for u in range(3)]
            ops.append(salu("s_add_u32", sS1, sS1, 32 * 3072))
        else:
            ops += [dma(vG, SWG_, sS1, 0, tag, C.w_fl), dma(vU, SWU, sS1, 1024, tag, C.w_fl), dma(vH, SWH, sS1, 2048, tag, C.w_fl)]
            ops.append(salu("s_add_u32", sS1, sS1, 32 * 3584))
        return [f] + ops

    def s2_dma(self, j):
        L = self.L
        def f(E): L.alloc(("s2", j), range(S2_CH[j], S2_CH[j] + 4))
        tag = ("s2", j)
        return [f, salu("s_add_u32", "m0", sM0B, 1024 * S2_CH[j]), salu("s_add_u32", sS2b, sS2, 16 * 3584 - 2048),
                dma(vG, SWG_, sS2, 0, tag, C.w_fl), dma(vU, SWU, sS2, 1024, tag, C.w_fl),
                dma(vG, SWG_, sS2b, 2048, tag, C.w_fl), dma(vU, SWU, sS2b, 3072, tag, C.w_fl),
                salu("s_add_u32", sS2, sS2, 64 * 3584)]

    def b2_dma(self, n):
        L = self.L
        ks, cls, iso, _ = step_info(n)
        def f(E): L.alloc(("b2", n), [b2_chunk(n)])
        return [f, salu("s_add_u32", "m0", sM0B, 1024 * b2_chunk(n)),
                smov(sB2s, (ks - 112 if iso else ks) * 16384),
                dma(vB2[cls], SWO if iso else SWD, sB2s, 0, ("b2", n), C.b2_fl)]

    def bar(self, cover, m_done, lds_all=False, lds_tags=()):
        L = self.L
        def f(E):
            E.wait_tags(lds=lds_tags, vm=cover)
            if lds_all: E.wait_all_lds()
            E.barrier()
            L.visible |= set(cover); L.bar_m = m_done
        return f

    def seq(self, typ):
        out = []
        for ks in range(32):
            j = ks // 2; ch = s1_chunk(j); base = (ks & 1) * 32768 + ch * 1024
            order = [2, 3, 4, 5, 0, 1] if typ == "A" else range(6)
            for t in order:
                if typ == "A":
                    out.append(dict(acc=ACC1(t), x=X(ks), sw=(t >= 4), obj=("s1", j), addr=vTR[4 + (t & 1)],
                                    imm=base + (t >> 1) * 1024, st=512, first=(ks == 0)))
                elif t < 4:
                    out.append(dict(acc=ACC1(t), x=X(ks), sw=False, obj=("s1", j), addr=vTR[t], imm=base, st=512, first=(ks == 0)))
                else:
                    out.append(dict(acc=ACC1(t), x=X(ks), sw=False, obj=("s1", j), addr=vTR[t], imm=base + 2048, st=256, first=(ks == 0)))
        s2 = [(ks, t) for ks in range(24) for t in range(4)] + [(ks, t) for t in range(4) for ks in range(24, 32)]
        for ks, t in s2:
            j = ks // 4; k = ks & 3
            out.append(dict(acc=ACC2(t), x=X(ks), sw=False, obj=("s2", j), addr=vTR[t],
                            imm=(k >> 1) * 32768 + S2_CH[j] * 1024 + (k & 1) * 2048, st=512, first=(ks == 0)))
        for n in range(72):
            iso = step_info(n)[2]
            for j in range(2):
                out.append(dict(acc=(ACCS if iso else ACCD)[j], x=A2(n), sw=False, obj=("b2", n), addr=vTR2[j],
                                imm=b2_chunk(n) * 1024, st=32768, first=(n in (0, 56))))
        for m, o in enumerate(out): self.L.last_use[o["obj"]] = m
        return out

    def wreads(self, m):
        o = self.SEQ[m]; L = self.L
        def f(E): assert o["obj"] in L.visible, ("read of invisible", m, o["obj"])
        return [f, ds_tr(WF(m).sub(0, 2), o["addr"], o["imm"]), ds_tr(WF(m).sub(2, 2), o["addr"], o["imm"] + o["st"])]

    def main(self, m):
        o = self.SEQ[m]
        A_, B_ = (o["x"], WF(m)) if o["sw"] else (WF(m), o["x"])
        mn = dict(pre=[], m=mfma(o["acc"], A_, B_, 0 if o["first"] else o["acc"]), fix=[])
        if m + C.D < len(self.SEQ): mn["fix"] += self.wreads(m + C.D)
        return mn

    def spin_check_tag(self):
        def f(E):
            ok = self.lab("tagok"); sp = self.lab("tagspin")
            E.emit(rfl(sTAG, vTAG))
            E.emit(scmp("s_cmp_lg_u32", sTAG, 0))
            E.line(f"s_cbranch_scc1 {ok}")
            E.line(f"s_mov_b32 {sSPIN}, 0")
            E.label(sp)
            E.line(f"buffer_load_dword {vTAG}, off, {SDBG}, 0 sc1")
            E.line(f"s_add_u32 {sSPIN}, {sSPIN}, 1")
            E.line("s_waitcnt vmcnt(0)")
            E.line(f"v_readfirstlane_b32 {sTAG}, {vTAG}")
            E.line(f"s_cmp_ge_u32 {sSPIN}, {C.spin_max}")
            E.line(f"s_cbranch_scc1 {ok}")
            E.line(f"s_cmp_eq_u32 {sTAG}, 0")
            E.line(f"s_cbranch_scc1 {sp}")
            E.label(ok)
        return f

    def poll_load(self, stage):
        return vload(vPOLL, vP4, SWS, sFLR, 128 * stage, fl="sc1")

    def gate(self, stage):
        def f(E):
            ok = self.lab("gateok"); sp = self.lab("gatespin")
            E.emit(vcmp("v_cmp_ne_u32", "vcc", sTAG, vPOLL))
            E.line("s_nop 0")
            E.line(f"s_cbranch_vccz {ok}")
            E.line(f"s_mov_b32 {sSPIN}, 0")
            E.label(sp)
            E.line(f"buffer_load_dword {vPOLL}, {vP4}, {SWS}, {sFLR} offen offset:{128 * stage} sc1")
            E.line(f"s_add_u32 {sSPIN}, {sSPIN}, 1")
            E.line(f"s_cmp_ge_u32 {sSPIN}, {C.spin_max}")
            E.line(f"s_cbranch_scc1 {ok}")
            E.line("s_waitcnt vmcnt(0)")
            E.line(f"v_cmp_ne_u32 vcc, {sTAG}, {vPOLL}")
            E.line("s_nop 0")
            E.line(f"s_cbranch_vccnz {sp}")
            E.label(ok)
        return f

    def flag_store(self, stage, tags):
        def f(E):
            E.wait_tags(vm=tags)
            E.emit(vstore(vTAG, None, SWS, sFLW, 128 * stage, fl="sc1"))
        return f

    def a2_load(self, n):
        ks, cls, iso, _ = step_info(n)
        return [salu("s_add_u32", sA2s, sA2L, ks * 1024), vload(A2(n), vA2[cls], SWS, sA2s, 0, fl="sc1")]

    def h_epilogue(self, T, sbase, imm, tag):
        ops = [valu("v_mul_f32", T[r], T[r], T[r + 8]) for r in range(8)]
        ops += [valu("v_cvt_pk_bf16_f32", T[r], T[2 * r], T[2 * r + 1]) for r in range(4)]
        ops.append(vstore(T.sub(0, 4), vL16, SWS, sbase, imm, tag, "sc1"))
        return ops

    def body(self, typ):
        E = self.E; e = E.emit
        self.L = L = LDSMap()
        self.SEQ = self.seq(typ)
        lane = self.lane
        hs = [v(196), v(197), v(198), v(199)]
        if typ == "A":
            e(salu("s_lshl_b32", sT1, sRB, 17)); e(salu("s_sub_u32", sT1, sT1, 16 * 1024))
            e(valu("v_add_u32", hs[0], sT1, self.vx[0]))
            e(valu("v_add_u32", hs[1], sT1, self.vx[1])); e(valu("v_add_u32", hs[1], 1024, hs[1]))
            e(salu("s_lshl_b32", sT1, sW, 8))
            e(salu("s_lshr_b32", sS2b, sM0B, 3))
            for ee in range(2):
                for g in range(2):
                    e(salu("s_add_u32", "m0", sS2b, TB + 2048 * ee + 1024 * g))
                    e(dma(hs[g], SX, sT1, 0, tag="halo", fl=C.x_fl))
                if ee == 0: e(salu("s_add_u32", sT1, sT1, 128))
        self.issue_x()
        self.rest_srds(typ)
        self.stamp(1)
        self.consts(typ)
        xa = [v(208 + q) for q in range(4)]
        t0, t1, t2 = v(212), v(213), v(214)
        e(valu("v_and_b32", t0, 31, lane)); e(valu("v_lshlrev_b32", t1, 7, t0))
        e(valu("v_lshrrev_b32", t0, 1, t0)); e(valu("v_and_b32", t0, 7, t0))
        e(valu("v_lshrrev_b32", t2, 5, lane)); e(valu("v_xor_b32", t0, t0, t2)); e(valu("v_lshlrev_b32", t0, 4, t0))
        e(valu("v_add_u32", t1, sM0B, t1))
        for q in range(4):
            e(valu("v_xor_b32", t2, 32 * q, t0)); e(valu("v_add_u32", xa[q], t1, t2))
        acc = [v(215), v(216), v(217), v(218)]
        E.emit(smov(sT1, 0x3b000000))
        if typ == "A":
            hx = v(128, 16); ha = [v(144), v(145)]; hacc = [v(146 + i) for i in range(4)]
            e(valu("v_and_b32", t0, 15, lane)); e(valu("v_lshlrev_b32", t1, 7, t0))
            e(valu("v_lshrrev_b32", t0, 1, t0)); e(valu("v_lshrrev_b32", t2, 4, lane)); e(valu("v_xor_b32", t0, t0, t2))
            e(valu("v_lshlrev_b32", t0, 4, t0))
            e(salu("s_add_u32", sT0, sS2b, TB)); e(valu("v_add_u32", t1, sT0, t1))
            e(valu("v_add_u32", ha[0], t1, t0)); e(valu("v_xor_b32", t0, 64, t0)); e(valu("v_add_u32", ha[1], t1, t0))
            for i in range(4): e(valu("v_mov_b32", hacc[i], 0))
            E.wait_tags(vm=["halo"])
            self.epoch_publish()
            for ee in range(2):
                for b in range(2): e(ds_rd(hx.sub(4 * (2 * ee + b), 4), ha[b], 2048 * ee))
            E.emits(self.dots(hx, hacc))
            pr = v(150, 2); tp = v(152, 2)
            e(valu("v_add_f32", pr[0], hacc[0], hacc[1])); e(valu("v_add_f32", pr[1], hacc[2], hacc[3]))
            for sw in (swap16, swap32):
                e(valu("v_mov_b32", tp[0], pr[0])); e(valu("v_mov_b32", tp[1], pr[1]))
                e(sw(pr[0], tp[0])); e(sw(pr[1], tp[1]))
                e(valu("v_add_f32", pr[0], pr[0], tp[0])); e(valu("v_add_f32", pr[1], pr[1], tp[1]))
            e(valu("v_lshrrev_b32", t0, 1, vL16)); e(valu("v_add_u32", t0, TB, t0))
            e(valu("v_add_u32", t1, sS2b, t0))
            e(ds_wr(t1, pr, 0))
            E.wait_all_lds(); E.barrier()
            pp = v(154, 8)
            for w_ in range(4): e(ds_rd(pp.sub(2 * w_, 2), t0, 4096 * w_))
            e(valu("v_add_f32", pr[0], pp[0], pp[2])); e(valu("v_add_f32", pr[1], pp[1], pp[3]))
            e(valu("v_add_f32", tp[0], pp[4], pp[6])); e(valu("v_add_f32", tp[1], pp[5], pp[7]))
            e(valu("v_add_f32", pr[0], pr[0], tp[0])); e(valu("v_add_f32", pr[1], pr[1], tp[1]))
            self.finish_stats(pr[0], pr[1], vRINV, vNB, tp[0], tp[1])
            e(valu("v_add_u32", t1, sS2b, vHX))
            for f_ in range(4):
                E.emits(self.norm_ops(hx.sub(4 * f_, 4), vRINV, vNB))
                e(ds_wr(t1, hx.sub(4 * f_, 4), 1024 * f_, tag="hxw"))
        for i in range(4): e(valu("v_mov_b32", acc[i], 0))
        need = {0: [0], 1: [1], 2: [2, 3], 3: [4], 4: [5], 5: [6]}
        for sl in range(9):
            if sl < 8:
                E.wait_tags(vm=[("x", sl)])
                if sl == 0:
                    self.stamp(2)
                    if typ == "B": self.epoch_publish()
                for q in range(4): e(ds_rd(X(4 * sl + q), xa[q], 4096 * sl))
            if sl > 0:
                E.emits(self.dots(v(16 * (sl - 1), 16), acc))
                L.xread.add(sl - 1)
                for j in need.get(sl - 1, ()):
                    for it in self.s1_dma(typ, j): run_item(E, it)
        self.stamp(3)
        e(valu("v_add_f32", acc[0], acc[0], acc[1])); e(valu("v_add_f32", acc[2], acc[2], acc[3]))
        e(valu("v_mov_b32", acc[1], acc[0])); e(valu("v_mov_b32", acc[3], acc[2]))
        e(swap32(acc[0], acc[1])); e(swap32(acc[2], acc[3]))
        e(valu("v_add_f32", acc[0], acc[0], acc[1])); e(valu("v_add_f32", acc[2], acc[2], acc[3]))
        self.bar([("s1", 0), ("s1", 1)], -1, lds_tags=["hxw"])(E)
        for m in range(C.D):
            for it in self.wreads(m): run_item(E, it)
        self.finish_stats(acc[0], acc[2], vRINV, vNB, acc[1], acc[3])
        E.emits(self.norm_ops(X(0), vRINV, vNB))
        self.stamp(4)

        mains = [self.main(m) for m in range(464)]
        D = C.D
        qN = Q("norm"); qD = Q("dma"); qX = Q("misc", vm_age=120); qH = Q("halo")
        for ks in range(1, 32):
            qN.adds(self.norm_ops(X(ks), vRINV, vNB, ks * 4), earliest=6 * (ks - 1) - 1, deadline=6 * ks)
        b2n = 0
        for g in range(1, 9):
            gap = 24 * g - D
            cover = [("s1", 2 * g), ("s1", 2 * g + 1)] if g < 8 else [("s2", 0)]
            mains[gap]["pre"].append(self.bar(cover, gap - 1))
            its = []
            for j in (2 * g + 4, 2 * g + 5):
                if 7 <= j < 16: its += self.s1_dma(typ, j)
            if g == 6: its += self.s2_dma(0)
            if g == 7: its += self.s2_dma(1) + self.s2_dma(2)
            if g == 8: its += self.s2_dma(3)
            if g <= 5:
                for _ in range(2): its += self.b2_dma(b2n); b2n += 1
            qD.adds(its, earliest=gap, deadline=gap + 22)
        qX.add(vload(vTAG, None, SDBG, 0, fl="sc1"), earliest=100)
        qX.add(lambda E: None, earliest=165); qX.add(self.spin_check_tag(), earliest=165, deadline=180)
        if typ == "A":
            for j in range(16):
                g0 = max(0, 12 * j - D + 1)
                b = j & 1; ch = s1_chunk(j) * 1024
                its = [ds_rd(aXH[b], vHX, 1024 * j)]
                for u in range(2):
                    its += [ds_tr(aW16[b][u].sub(0, 2), vW16, ch + 1024 * (1 + u)), ds_tr(aW16[b][u].sub(2, 2), vW16, ch + 1024 * (1 + u) + 512)]
                qH.adds(its, earliest=g0, deadline=12 * j + 8)
                qH.add(mfma(aHACC[0], aW16[b][0], aXH[b], 0 if j == 0 else aHACC[0], "16x16x32"), earliest=g0, deadline=12 * j + 11)
                qH.add(mfma(aHACC[1], aXH[b], aW16[b][1], 0 if j == 0 else aHACC[1], "16x16x32"), earliest=g0, deadline=12 * j + 11)
        schedule(E, mains[M1:M2], [qN, qD, qH, qX], C.cap1, M1, flush=False)
        assert qN.empty() and qH.empty() and qX.empty()
        self.stamp(5)

        qE = Q("epi"); qE2 = Q("epi2"); qR = Q("restore")
        def xfree(reg): return M2 + 4 * ((reg.lo + reg.n - 1) // 4) + 3
        for j in range(1, 8):
            gap = M2 + 16 * j - D
            if j < 6: cover = [("s2", j)]
            elif j == 6: cover = [("s2", 6), ("s2", 7)]
            else: cover = [("b2", n) for n in range(8)]
            mains[gap]["pre"].append(self.bar(cover, gap - 1, lds_tags=["exw"] if j == 2 else ()))
            its = []
            if j <= 4: its += self.s2_dma(j + 3)
            nb = {1: 2, 5: 4, 6: 4, 7: 4}.get(j, 0)
            for _ in range(nb): its += self.b2_dma(b2n); b2n += 1
            qD.adds(its, earliest=gap, deadline=gap + 14)
        for n_, dst in enumerate(vTR2 + vA2):
            qR.add(accr(dst, a(aPARK + n_)), earliest=xfree(dst), deadline=M3 - D - 2)
        late = []
        if typ == "B":
            for t in range(6):
                qE.adds(self.h_epilogue(ACC1(t), sStF if t < 4 else sStH, 1024 * (t if t < 4 else t - 4), "h1"), earliest=M2)
            qE.add(self.flag_store(0, ["h1"]), earliest=M2 + 64 - D)
        else:
            self.attention(qE, xfree)
            late.append("o")
        for t in range(4):
            ear = M2 + 96 + 8 * t + 7
            its = [accr(E2T[r], ACC2(t)[r]) for r in range(16)] + self.h_epilogue(E2T, sSt2, 1024 * t, "h2")
            qE2.adds(its, earliest=ear)
        late.append("h2")
        qX.add(self.poll_load(0), earliest=M3 - 20)
        schedule(E, mains[M2:M3], [qD, qE2, qE, qR, qX], C.cap2, M2, flush=True)
        self.stamp(6)

        look = C.look
        self.gate(0)(E)
        for n in range(NRING):
            for it in self.a2_load(n): E.emit(it)
        self.bar([], M3 - 1)(E)
        for _ in range(8):
            for it in self.b2_dma(b2n): run_item(E, it)
            b2n += 1
        assert b2n == 32
        self.flag_store(2 if typ == "A" else 1, late)(E)
        self.stamp(7)
        qL = Q("a2"); qF = Q("fin", vm_age=60); qP = Q("poll")
        for n in range(NRING, 72):
            ear = M3 + 2 * max(n - look, n - NRING + 1) - 1
            if n in (24, 40):
                st = step_info(n)[3]
                qP.add(self.poll_load(st), earliest=max(M3, ear - 12), deadline=ear - 2)
                qL.add(self.gate(st), earliest=ear)
            qL.adds(self.a2_load(n), earliest=ear, deadline=M3 + 2 * n - 8)
        for c in range(1, 9):
            gap = M3 + 16 * c - D
            mains[gap]["pre"].append(self.bar([("b2", n) for n in range(8 * c, 8 * c + 8)], gap - 1,
                                              lds_tags=["dw"] if c == 8 else ()))
            its = []
            while b2n < 72 and L.last_use[("b2", b2n - 32)] <= gap - 1:
                its += self.b2_dma(b2n); b2n += 1
            qD.adds(its, earliest=gap, deadline=gap + 15)
        assert b2n == 72
        vXO = v(128); vRW = v(129); vRR = v(130); XR = v(132, 8); XF = v(140, 16); RD = v(156, 16); G = v(172, 16); tt = v(188, 4)
        its = [valu("v_lshrrev_b32", tt[0], 4, vL16), valu("v_and_b32", tt[1], 31, tt[0]), valu("v_lshlrev_b32", tt[1], 10, tt[1]),
               valu("v_lshrrev_b32", tt[0], 5, tt[0]), valu("v_lshlrev_b32", tt[2], 3, tt[0]),
               salu("s_lshl_b32", sT0, sCT, 7), salu("s_lshl_b32", sT1, sKH, 6), salu("s_add_u32", sT0, sT0, sT1),
               salu("s_add_u32", sXs, sXs, sT0),
               valu("v_add_u32", vXO, tt[1], tt[2])]
        its += [vload(XR.sub(2 * a_, 2), vXO, SX, sXs, 16 * a_) for a_ in range(4)]
        its += [valu("v_add_u32", vXO, vXO, tt[2]),
                salu("s_lshr_b32", sT0, sM0B, 3), salu("s_add_u32", sT0, sT0, TB), valu("v_add_u32", vRW, sT0, vL16),
                valu("v_xor_b32", vRR, 8192, vRW)]
        for r in range(8):
            its += [valu("v_lshlrev_b32", XF[2 * r], 16, XR[r]), valu("v_and_b32", XF[2 * r + 1], sHI, XR[r])]
        qF.adds(its, earliest=M3 + 40)
        gd = M3 + 111
        qF.adds([ds_wr(vRW, ACCD[1].sub(4 * i, 4), 1024 * i, tag="dw") for i in range(4)], earliest=gd, deadline=M3 + 128 - D)
        its = [ds_rd(RD.sub(4 * i, 4), vRR, 1024 * i) for i in range(4)]
        its += [valu("v_add_f32", RD[r], RD[r], ACCD[0][r]) for r in range(16)]
        for r0 in range(0, 16, 4):
            rr = range(r0, r0 + 4)
            its += [valu("v_mul_f32", G[r], 0xbfb8aa3b, RD[r]) for r in rr]
            its += [valu("v_exp_f32", G[r], G[r]) for r in rr]
            its += [valu("v_add_f32", G[r], 1.0, G[r]) for r in rr]
            its += [valu("v_rcp_f32", G[r], G[r]) for r in rr]
            its += [valu("v_mul_f32", G[r], G[r], RD[r]) for r in rr]
        qF.adds(its, earliest=M3 + 128 - D)
        schedule(E, mains[M3:], [qP, qL, qD, qF], C.cap3, M3, flush=False)
        assert qL.empty() and qD.empty()
        for i in range(4): e(ds_wr(vRW, ACCS[1].sub(4 * i, 4), 16384 + 1024 * i, tag="sw"))
        while not qF.empty():
            run_item(E, qF.head()[0]); qF.n += 1
        E.wait_tags(lds=["sw"]); E.barrier()
        for i in range(4): e(ds_rd(RD.sub(4 * i, 4), vRR, 16384 + 1024 * i))
        for r in range(16): e(valu("v_add_f32", RD[r], RD[r], ACCS[0][r]))
        for r in range(16): e(valu("v_fma_f32", RD[r], RD[r], G[r], XF[r]))
        for r in range(8): e(valu("v_cvt_pk_bf16_f32", G[r], RD[2 * r], RD[2 * r + 1]))
        for p in range(2):
            e(swap32(G[4 * p], G[4 * p + 2])); e(swap32(G[4 * p + 1], G[4 * p + 3]))
        for p in range(2): e(vstore(G.sub(4 * p, 4), vXO, SOUT, sXs, 32 * p, fl=C.out_fl))
        self.stamp(8)
        if C.stamps:
            E.line("s_waitcnt lgkmcnt(0)")
            e(salu("s_lshl_b32", sT0, sWG, 2)); e(salu("s_add_u32", sT0, sT0, sW)); e(salu("s_lshl_b32", sT0, sT0, 7))
            e(salu("s_add_u32", sT0, sT0, WS_STAMP))
            for k in range(9):
                e(valu("v_mov_b32", v(0), s(STAMP0 + 2 * k))); e(vstore(v(0), None, SWS, sT0, 4 * k))
            E.line("s_memrealtime s[84:85]"); E.line("s_getreg_b32 s86, hwreg(HW_REG_XCC_ID)"); E.line("s_waitcnt lgkmcnt(0)")
            e(valu("v_mov_b32", v(0), s(84))); e(vstore(v(0), None, SWS, sT0, 36))
            e(valu("v_mov_b32", v(0), s(86))); e(vstore(v(0), None, SWS, sT0, 40))
        E.line("s_endpgm")

    def epoch_publish(self):
        E = self.E
        l = self.lab("nopub")
        E.emit(salu("s_or_b32", sT0, sWG, sW))
        E.line(f"s_cbranch_scc1 {l}")
        E.line(f"s_mov_b32 {sT0}, 0x9e3779b1")
        E.line(f"v_mul_lo_u32 {vPOLL}, {vPOLL}, {sT0}")
        E.line(f"v_add_u32 {vPOLL}, 0x7f4a7c15, {vPOLL}")
        E.line(f"v_max_u32 {vPOLL}, 1, {vPOLL}")
        E.line(f"s_mov_b32 {sT0}, {WS_EPOCH}")
        E.line(f"buffer_store_dword {vPOLL}, off, {SWS}, {sT0} sc1")
        E.line(f"buffer_store_dword {vPOLL}, off, {SDBG}, 0 sc1")
        E.label(l)

    def attention(self, q, xfree):
        Q0, Q1, K0, K1, V0, V1 = [ACC1(t) for t in range(6)]
        cvt = lambda d, x, y: valu("v_cvt_pk_bf16_f32", d, x, y)
        def pack(dst, src, n=8): return [cvt(dst[i], src[2 * i], src[2 * i + 1]) for i in range(n)]
        its = pack(K0, K0) + pack(K0.sub(8, 8), K1)
        its += [ds_wr(vEX, K0.sub(4 * h, 4), 6144 + 1024 * h, tag="exw") for h in range(4)]
        its += pack(V0, V0) + pack(V0.sub(8, 8), V1)
        its += [ds_wr(vEX, V0.sub(4 + 8 * j, 4), 6144 + 4096 + 1024 * j, tag="exw") for j in range(2)]
        its += [accr(NT[i], aHACC[0][i]) for i in range(4)] + [accr(NT[4 + i], aHACC[1][i]) for i in range(4)]
        hk = v(NT[0].lo, 2); hv = v(NT[4].lo, 2)
        its += [cvt(NT[0], NT[0], NT[1]), cvt(NT[1], NT[2], NT[3]), cvt(NT[4], NT[4], NT[5]), cvt(NT[5], NT[6], NT[7])]
        its += [salu("s_lshl_b32", sT0, sW, 10), salu("s_add_u32", sT0, sT0, 256), valu("v_add_u32", NT[2], sT0, vHW),
                salu("s_lshr_b32", sT0, sW, 1), salu("s_lshl_b32", sT0, sT0, 10), salu("s_and_b32", sT1, sW, 1),
                salu("s_lshl_b32", sT1, sT1, 8), salu("s_add_u32", sT0, sT0, sT1), valu("v_add_u32", NT[3], sT0, vHW),
                ds_wr(NT[2], hk, 0, tag="exw"), ds_wr(NT[3], hv, 4096, tag="exw")]
        bar2 = M2 + 32 - C.D
        q.adds(its, earliest=M2 - 2, deadline=bar2)
        q.adds(pack(Q0, Q0) + pack(Q0.sub(8, 8), Q1), earliest=M2)
        MASK = v(208, 24)
        q.adds([accr(MASK[r], aMASK[r]) for r in range(24)], earliest=M2)
        q.adds([ds_rd(aKP[h], vEX, 1024 * h) for h in range(4)] + [ds_rd(aVP[j], vEX, 4096 + 1024 * j) for j in range(2)], earliest=bar2)
        SC = K1; SP = v(0, 16); U = v(16, 8); P = v(24, 12); O = Q1
        mx, tm, mc = vRINV, vNB, vW16
        sums = [vHX, vH]; t2 = vTR[4]
        def add(i, ear=0):
            w = [x for x in i.w if x < 128]
            e_ = max([M2 + 4 * (x // 4) + 3 for x in w], default=0)
            q.add(i, earliest=max(e_, ear))
        def qk(h):
            add(mfma(SC, K0.sub(4 * h, 4), Q0.sub(4 * h, 4), MASK.sub(0, 16)))
            add(mfma(SP, aKP[h], Q0.sub(4 * h, 4), MASK.sub(8, 16)))
        def fin(h):
            o = 8 * (h & 1); sm = sums[h & 1]
            add(valu("v_rcp_f32", sm, sm))
            for r in range(8): add(valu("v_mul_f32", O[o + r], O[o + r], sm))
            for r in range(4): add(cvt(O[o + r], O[o + 2 * r], O[o + 2 * r + 1]))
            add(vstore(O.sub(o, 4), vL16, SWS, sStF, 1024 * h, "o", "sc1"))
        qk(0)
        for h in range(4):
            for i in range(4): add(valu("v_max_f32", U[i], SC[2 * i], SC[2 * i + 1]))
            for i in range(4, 8): add(valu("v_max3_f32", U[i], SC[2 * i], SC[2 * i + 1], SP[2 * i]))
            for i in range(4, 8): add(valu("v_max_f32", U[i], U[i], SP[2 * i + 1]))
            if h < 3: qk(h + 1)
            if h > 0: fin(h - 1)
            add(valu("v_max3_f32", mx, U[0], U[1], U[2])); add(valu("v_max3_f32", tm, U[3], U[4], U[5]))
            add(valu("v_max3_f32", mx, mx, U[6], U[7])); add(valu("v_max_f32", mx, mx, tm))
            add(valu("v_mov_b32", tm, mx)); add(swap32(mx, tm)); add(valu("v_max_f32", mx, mx, tm))
            add(I(f"v_mul_f32 {mc}, -{mx}, {sCSC}", "valu", mx.ids() | sCSC.ids(), mc.ids()))
            for i in range(8): add(valu("v_fma_f32", U[i], U[i], sCSC, mc))
            for i in range(8): add(valu("v_exp_f32", U[i], U[i]))
            sm = sums[h & 1]
            for i in range(4):
                add(cvt(P[i], U[i], U[i])); add(valu("v_and_b32", P[i], vPM, P[i]))
            for i in range(4):
                add(cvt(P[8 + i], U[4 + i], U[4 + i])); add(valu("v_and_b32", P[4 + i], vMHC, P[8 + i]))
                add(valu("v_and_b32", P[8 + i], vMHP, P[8 + i]))
            j = h >> 1
            add(mfma(O, V0.sub(8 * j, 4), P.sub(0, 4), 0))
            add(mfma(O, V0.sub(8 * j + 4, 4), P.sub(4, 4), O))
            add(mfma(O, aVP[j], P.sub(8, 4), O))
            add(valu("v_add_f32", sm, U[0], U[1])); add(valu("v_add_f32", tm, U[2], U[3]))
            add(valu("v_add_f32", t2, U[4], U[5])); add(valu("v_add_f32", sm, sm, tm))
            add(valu("v_add_f32", tm, U[6], U[7])); add(valu("v_add_f32", t2, t2, tm))
            add(valu("v_add_f32", sm, sm, t2))
            add(valu("v_mov_b32", tm, sm)); add(swap32(sm, tm)); add(valu("v_add_f32", sm, sm, tm))
        fin(3)

    def build(self):
        E = self.E
        self.prologue()
        snap = E.snapshot()
        self.body("A")
        E.label("L_typeB")
        E.restore(snap)
        self.body("B")
        E.label("L_end")
        E.line("s_endpgm")
        E.label("L_code_end")
        head = open(os.path.join(os.path.dirname(os.path.abspath(__file__)), "head.txt")).read()
        txt = head + f"""; @launch grid=(256,1,1) block=(256,1,1) lds=163840
.amdgcn_target "amdgcn-amd-amdhsa--gfx950"
.text
.globl {NAME}
.p2align 8
.type {NAME},@function
{NAME}:
""" + E.text() + f""".section .rodata,"a"
.p2align 6
.amdhsa_kernel {NAME}
  .amdhsa_next_free_vgpr 512
  .amdhsa_next_free_sgpr 102
  .amdhsa_accum_offset 256
  .amdhsa_group_segment_fixed_size 0
  .amdhsa_kernarg_size 80
  .amdhsa_user_sgpr_count 2
  .amdhsa_user_sgpr_kernarg_segment_ptr 1
  .amdhsa_system_sgpr_workgroup_id_x 1
.end_amdhsa_kernel
"""
        return txt


if __name__ == "__main__":
    g = Gen()
    txt = g.build()
    open(sys.argv[1], "w").write(txt)
    print("instructions:", g.E.ninst)
```

```python
A0 = 256
S0 = 1000
VCC, EXEC, M0, SCC = 1200, 1201, 1202, 1203


class R:
    __slots__ = ("f", "lo", "n")

    def __init__(self, f, lo, n=1):
        self.f, self.lo, self.n = f, lo, n

    def __str__(self):
        if self.n == 1:
            return f"{self.f}{self.lo}"
        return f"{self.f}[{self.lo}:{self.lo + self.n - 1}]"

    def ids(self):
        base = {"v": 0, "a": A0, "s": S0}[self.f]
        return set(range(base + self.lo, base + self.lo + self.n))

    def sub(self, off, n=1):
        assert off + n <= self.n, (str(self), off, n)
        return R(self.f, self.lo + off, n)

    def __getitem__(self, i):
        return self.sub(i, 1)


def v(lo, n=1): return R("v", lo, n)
def a(lo, n=1): return R("a", lo, n)
def s(lo, n=1): return R("s", lo, n)


def ids(x):
    if isinstance(x, R):
        return x.ids()
    if x == "vcc": return {VCC}
    if x == "exec": return {EXEC}
    if x == "m0": return {M0}
    return set()


def fmt(x):
    if isinstance(x, R): return str(x)
    if isinstance(x, float): return repr(x)
    if isinstance(x, int):
        if -16 <= x <= 64: return str(x)
        return hex(x & 0xffffffff)
    return str(x)


VMCOST = 2
TRANS = ("v_exp_f32", "v_log_f32", "v_rcp_f32", "v_rsq_f32", "v_sqrt_f32")


class I:
    __slots__ = ("t", "k", "r", "w", "tag", "c", "d", "na", "counted", "passes", "cost")

    def __init__(self, t, k, r=(), w=(), tag=None):
        self.t, self.k = t, k
        self.r, self.w = set(r), set(w)
        self.tag = tag
        self.c = set()
        self.d = set()
        self.na = set()
        self.counted = True
        self.passes = 8
        self.cost = 1


def valu(op, d, *src, rd=False, mods=""):
    r = set()
    for x in src: r |= ids(x)
    w = ids(d)
    if rd: r |= w
    k = "trans" if op in TRANS else ("dot" if op.startswith("v_dot") else "valu")
    i = I(f"{op} {fmt(d)}, " + ", ".join(fmt(x) for x in src) + (" " + mods if mods else ""), k, r, w)
    if k == "trans": i.cost = 2
    return i


def vcmp(op, d, x, y):
    return I(f"{op} {fmt(d)}, {fmt(x)}, {fmt(y)}", "valu", ids(x) | ids(y), ids(d))


def cndmask(d, f, t, m):
    return I(f"v_cndmask_b32 {d}, {fmt(f)}, {fmt(t)}, {fmt(m)}", "valu", ids(f) | ids(t) | ids(m), ids(d))


def swap32(x, y):
    return I(f"v_permlane32_swap_b32 {x}, {y}", "perm", ids(x) | ids(y), ids(x) | ids(y))


def swap16(x, y):
    return I(f"v_permlane16_swap_b32 {x}, {y}", "perm", ids(x) | ids(y), ids(x) | ids(y))


def rfl(d, x):
    return I(f"v_readfirstlane_b32 {d}, {x}", "rfl", ids(x), ids(d))


def accr(d, x): return I(f"v_accvgpr_read_b32 {d}, {x}", "valu", ids(x), ids(d))
def accw(d, x): return I(f"v_accvgpr_write_b32 {d}, {fmt(x)}", "valu", ids(x), ids(d))


def salu(op, d, *src, scc_w=True, scc_r=False):
    r = set()
    for x in src: r |= ids(x)
    if scc_r: r.add(SCC)
    w = ids(d)
    if scc_w: w = w | {SCC}
    return I(f"{op} {fmt(d)}, " + ", ".join(fmt(x) for x in src), "salu", r, w)


def smov(d, x): return salu("s_mov_b32", d, x, scc_w=False)


def scmp(op, x, y):
    return I(f"{op} {fmt(x)}, {fmt(y)}", "salu", ids(x) | ids(y), {SCC})


def mfma(D, A, B, C, shape="32x32x16"):
    i = I(f"v_mfma_f32_{shape}_bf16 {D}, {A}, {B}, {fmt(C)}", "mfma", ids(A) | ids(B) | ids(C), ids(D))
    i.c = ids(C); i.na = ids(A) | ids(B)
    i.passes = 8 if shape == "32x32x16" else 4
    return i


def ds_tr(d, addr, off, tag=None):
    assert 0 <= off < 65536, off
    return I(f"ds_read_b64_tr_b16 {d}, {addr} offset:{off}", "dsr", ids(addr), ids(d), tag)


def ds_rd(d, addr, off, tag=None):
    assert 0 <= off < 65536, off
    op = {1: "ds_read_b32", 2: "ds_read_b64", 4: "ds_read_b128"}[d.n]
    return I(f"{op} {d}, {addr} offset:{off}", "dsr", ids(addr), ids(d), tag)


def ds_wr(addr, x, off, tag=None):
    assert 0 <= off < 65536, off
    op = {1: "ds_write_b32", 2: "ds_write_b64", 4: "ds_write_b128"}[x.n]
    return I(f"{op} {addr}, {x} offset:{off}", "dsw", ids(addr) | ids(x), (), tag)


def _vo(voff):
    return ("off", "") if voff is None else (str(voff), " offen")


def dma(voff, srd, soff, imm=0, tag=None, fl=""):
    assert 0 <= imm < 4096
    t = f"buffer_load_dwordx4 {voff}, {srd}, {fmt(soff)} offen" + (f" offset:{imm}" if imm else "") + (" " + fl if fl else "") + " lds"
    i = I(t, "dma", ids(voff) | ids(srd) | ids(soff) | {M0}, (), tag); i.cost = VMCOST
    return i


def vload(d, voff, srd, soff, imm=0, tag=None, fl=""):
    assert 0 <= imm < 4096
    op = {1: "buffer_load_dword", 2: "buffer_load_dwordx2", 4: "buffer_load_dwordx4"}[d.n]
    vo, en = _vo(voff)
    t = f"{op} {d}, {vo}, {srd}, {fmt(soff)}{en}" + (f" offset:{imm}" if imm else "") + (" " + fl if fl else "")
    i = I(t, "vml", ids(voff) | ids(srd) | ids(soff), ids(d), tag); i.cost = VMCOST
    return i


def vstore(x, voff, srd, soff, imm=0, tag=None, fl=""):
    assert 0 <= imm < 4096
    op = {1: "buffer_store_dword", 2: "buffer_store_dwordx2", 4: "buffer_store_dwordx4"}[x.n]
    vo, en = _vo(voff)
    t = f"{op} {x}, {vo}, {srd}, {fmt(soff)}{en}" + (f" offset:{imm}" if imm else "") + (" " + fl if fl else "")
    i = I(t, "vms", ids(voff) | ids(srd) | ids(soff) | ids(x), (), tag)
    i.cost = VMCOST
    if x.n >= 3: i.d = ids(x)
    return i


def raw(t, k="other", r=(), w=()):
    return I(t, k, r, w)


class Emitter:
    LG_OLD = 10

    def __init__(self):
        self.out = []
        self.pos = 0
        self.reset_state()
        self.ninst = 0

    def reset_state(self):
        self.w_valu = {}; self.w_trans = {}; self.w_dot = {}; self.w_mfma = {}
        self.c_mfma = {}; self.w_vsgpr = {}; self.st_data = {}
        self.m0_pos = -100
        self.lq = []
        self.vq = []

    def snapshot(self):
        import copy
        return copy.deepcopy((self.pos, self.w_valu, self.w_trans, self.w_dot, self.w_mfma, self.c_mfma,
                              self.w_vsgpr, self.st_data, self.m0_pos, self.lq, self.vq))

    def restore(self, snap):
        import copy
        (self.pos, self.w_valu, self.w_trans, self.w_dot, self.w_mfma, self.c_mfma,
         self.w_vsgpr, self.st_data, self.m0_pos, self.lq, self.vq) = copy.deepcopy(snap)

    def nops(self, i):
        need = 0
        p = self.pos
        isv = i.k in ("valu", "trans", "dot", "perm", "rfl")
        mem = i.k in ("dsr", "dsw", "dma", "vml", "vms")

        def req(q, n):
            nonlocal need
            need = max(need, q + n + 1 - p)

        tab_valu = {8: 12, 4: 8}
        tab_part = {8: 10, 4: 6}
        tab_war = {8: 7, 4: 3}
        if i.k == "mfma":
            for x in i.r:
                if x in self.w_valu: req(self.w_valu[x], 2)
                if x in self.w_dot: req(self.w_dot[x][0], 3)
            for x in i.na:
                if x in self.w_mfma: req(self.w_mfma[x][0], tab_valu[self.w_mfma[x][2]])
            for x in i.c:
                if x in self.w_mfma:
                    q, dset, ps = self.w_mfma[x]
                    if not (dset == i.c and ps == i.passes): req(q, tab_part[ps])
            for x in i.w - i.c:
                if x in self.w_mfma: req(self.w_mfma[x][0], tab_valu[self.w_mfma[x][2]])
        if isv or mem:
            for x in (i.r | i.w):
                if x in self.w_mfma: req(self.w_mfma[x][0], tab_valu[self.w_mfma[x][2]])
        if isv:
            for x in i.w:
                if x in self.c_mfma: req(self.c_mfma[x][0], tab_war[self.c_mfma[x][1]])
                if x in self.st_data: req(self.st_data[x], 2)
            for x in i.r:
                if x in self.w_trans and i.k != "trans": req(self.w_trans[x], 1)
                if x in self.w_vsgpr: req(self.w_vsgpr[x], 2)
            op = i.t.split()[0]
            for x in (i.r | i.w):
                if x in self.w_dot:
                    q, o = self.w_dot[x]
                    if not (i.k == "dot" and o == op and x in i.w): req(q, 3)
            if i.k == "perm":
                for x in i.r:
                    if x in self.w_valu: req(self.w_valu[x], 2)
            if i.k == "rfl":
                for x in i.r:
                    if x in self.w_valu: req(self.w_valu[x], 1)
        if mem:
            for x in i.r:
                if x in self.w_vsgpr: req(self.w_vsgpr[x], 5)
                if x in self.w_dot: req(self.w_dot[x][0], 3)
                if x in self.w_trans: req(self.w_trans[x], 1)
            for x in i.w:
                if x in self.st_data: req(self.st_data[x], 1)
                if x in self.c_mfma: req(self.c_mfma[x][0], tab_war[self.c_mfma[x][1]])
        if i.k == "dma": req(self.m0_pos, 1)
        if i.k == "salu":
            for x in i.r:
                if x in self.w_vsgpr: req(self.w_vsgpr[x], 3)
        return max(0, need)

    def _pending(self, q, i):
        touch = i.r | i.w
        last = -1
        for n, e in enumerate(q):
            if e[1] & touch: last = n
        return last

    def dep_age(self, i):
        n = self._pending(self.lq, i); m = self._pending(self.vq, i)
        return (self.pos - self.lq[n][0] if n >= 0 else 10 ** 6, self.pos - self.vq[m][0] if m >= 0 else 10 ** 6)

    def line(self, t, states=1):
        self.out.append("    " + t)
        self.pos += states
        self.ninst += 1

    def label(self, name):
        self.out.append(name + ":")

    def comment(self, t):
        self.out.append("    ; " + t)

    def _wait(self, ln, vn):
        parts = []
        if vn >= 0:
            n = sum(1 for e in self.vq[vn + 1:] if e[3])
            if n < 63: parts.append(f"vmcnt({n})")
            else: parts.append("vmcnt(62)")
            self.vq = self.vq[vn + 1:]
        if ln >= 0:
            while ln + 1 < len(self.lq) and self.pos - self.lq[ln + 1][0] >= self.LG_OLD: ln += 1
            n = len(self.lq) - 1 - ln
            parts.append(f"lgkmcnt({min(n, 15)})")
            self.lq = self.lq[ln + 1:]
        if parts: self.line("s_waitcnt " + " ".join(parts))

    def wait_tags(self, lds=(), vm=()):
        ln = max([n for n, e in enumerate(self.lq) if e[2] in lds], default=-1)
        vn = max([n for n, e in enumerate(self.vq) if e[2] in vm], default=-1)
        self._wait(ln, vn)

    def wait_all_lds(self):
        if self.lq: self._wait(len(self.lq) - 1, -1)

    def wait_all_vm(self):
        self.line("s_waitcnt vmcnt(0)"); self.vq = []

    def emit(self, i):
        self._wait(self._pending(self.lq, i), self._pending(self.vq, i))
        n = self.nops(i)
        while n > 0:
            k = min(n, 16)
            self.line(f"s_nop {k - 1}", k); n -= k
        p = self.pos
        self.line(i.t)
        isv = i.k in ("valu", "trans", "dot", "perm", "rfl")
        for x in i.w:
            for dct in (self.w_valu, self.w_trans, self.w_dot, self.w_mfma, self.w_vsgpr):
                dct.pop(x, None)
        if isv:
            for x in i.w:
                if x >= S0: self.w_vsgpr[x] = p
                else: self.w_valu[x] = p
                if i.k == "trans": self.w_trans[x] = p
                if i.k == "dot": self.w_dot[x] = (p, i.t.split()[0])
        if i.k == "mfma":
            for x in i.w: self.w_mfma[x] = (p, frozenset(i.w), i.passes)
            for x in i.c: self.c_mfma[x] = (p, i.passes)
        if i.k == "salu" and M0 in i.w: self.m0_pos = p
        for x in i.d: self.st_data[x] = p
        if i.k in ("dsr", "dsw"): self.lq.append([p, set(i.w), i.tag])
        if i.k in ("dma", "vml", "vms"): self.vq.append([p, set(i.w), i.tag, i.counted])

    def emits(self, lst):
        for i in lst: self.emit(i)

    def barrier(self):
        self.line("s_barrier")

    def text(self):
        return "\n".join(self.out) + "\n"


class Q:
    def __init__(self, name, lds_age=14, vm_age=200, hard=True, top=False):
        self.name = name; self.items = []; self.n = 0; self.hard = hard; self.top = top
        self.lds_age = lds_age; self.vm_age = vm_age

    def add(self, i, earliest=0, deadline=10 ** 9, hard=None):
        self.items.append((i, earliest, deadline, self.hard if hard is None else hard))

    def adds(self, lst, earliest=0, deadline=10 ** 9, hard=None):
        for i in lst: self.add(i, earliest, deadline, hard)

    def empty(self): return self.n >= len(self.items)
    def head(self): return self.items[self.n]


def run_item(E, it):
    if callable(it): it(E)
    else: E.emit(it)


def glue(lst):
    def f(E): E.emits(lst)
    return f


def m0_busy(q):
    for x in q.items[q.n:q.n + 12]:
        it = x[0]
        if callable(it): continue
        if it.k == "dma": return True
        if M0 in it.w: return False
    return False


def step(E, q, queues):
    it = q.head()[0]
    if not callable(it) and M0 in it.w:
        own = getattr(E, "m0_owner", None)
        if own is not None and own is not q:
            while m0_busy(own): step(E, own, queues)
        E.m0_owner = q
    q.n += 1
    run_item(E, it)


def schedule(E, mains, queues, cap, g0=0, flush=True, vm_gap=1):
    def blocked(q):
        own = getattr(E, "m0_owner", None)
        if own is None or own is q or not m0_busy(own): return False
        nx = next((x[0] for x in q.items[q.n:q.n + 2] if not callable(x[0])), None)
        return nx is not None and M0 in nx.w

    budget = 0.0
    reserved = 0
    last_vm = -100
    INF = 10 ** 9
    for n, mn in enumerate(mains):
        g = g0 + n
        E.gap = g
        if getattr(E, "trace", False): print(g, {q.name: (q.n, len(q.items)) for q in queues}, round(budget, 1))
        p0 = E.pos
        for q in queues:
            last = -1
            for k in range(q.n, len(q.items)):
                if q.items[k][3] and q.items[k][2] <= g: last = k
            while q.n <= last: step(E, q, queues)
        for it in mn.get("pre", ()): run_item(E, it)
        E.emit(mn["m"])
        c = cap(g) if callable(cap) else cap
        budget = max(min(budget + reserved - (E.pos - p0 - 1), 0.99), -1.5) + c
        p0 = E.pos
        for it in mn.get("fix", ()): run_item(E, it)
        budget -= E.pos - p0
        reserved = 0
        if n + 1 < len(mains):
            nm = mains[n + 1]
            if E._pending(E.lq, nm["m"]) >= 0 or E._pending(E.vq, nm["m"]) >= 0: reserved += 1
            reserved += nm.get("npre", 0)
        budget -= reserved
        while True:
            best = None
            for q in queues:
                if q.empty(): continue
                it, ear, dl, _h = q.head()
                if ear > g: continue
                if callable(it) and hasattr(it, "ready") and not it.ready(E): continue
                if blocked(q): continue
                nxt = next((x[0] for x in q.items[q.n:q.n + 4] if not callable(x[0]) and x[0].k != "salu"), None)
                if nxt is not None and nxt.k in ("dma", "vml") and g - last_vm < (vm_gap(g) if callable(vm_gap) else vm_gap): continue
                if not callable(it):
                    if E.nops(it) > 0: continue
                    la, va = E.dep_age(it)
                    if la < q.lds_age or va < q.vm_age: continue
                dl = min(x[2] for x in q.items[q.n:q.n + 40])
                isvm = nxt is not None and nxt.k in ("dma", "vml", "vms")
                key = (0 if q.top else (1 if isvm else 2), dl)
                if best is None or key < best[0]: best = (key, q)
            if best is None: break
            key, q = best
            it = q.head()[0]
            forced = False
            hd = [k for k in range(q.n, min(len(q.items), q.n + 60)) if q.items[k][3] and q.items[k][2] < INF]
            if hd:
                d0 = min(q.items[k][2] for k in hd)
                last = max(k for k in hd if q.items[k][2] <= d0)
                forced = (last - q.n + 1) > (d0 - g - 1) * 5
            if budget < 1.0 and not forced and not callable(it):
                cand = None
                for q2 in queues:
                    if q2.empty() or q2.head()[1] > g or blocked(q2): continue
                    nxt = next((x[0] for x in q2.items[q2.n:q2.n + 4] if not callable(x[0]) and x[0].k != "salu"), None)
                    if nxt is None or nxt.k not in ("dma", "vml") or g - last_vm < (vm_gap(g) if callable(vm_gap) else vm_gap): continue
                    dl = min(x[2] for x in q2.items[q2.n:q2.n + 40])
                    if dl - g <= 24 and budget >= -1.0 and (cand is None or dl < cand[0]): cand = (dl, q2)
                if cand is None: break
                q = cand[1]; it = q.head()[0]
                if not callable(it) and E.nops(it) > 0: break
            p0 = E.pos
            step(E, q, queues)
            budget -= E.pos - p0
            if not callable(it):
                budget -= it.cost - 1
                if it.k in ("dma", "vml"): last_vm = g
                if it.k == "mfma": budget += (c + 1) if it.passes == 8 else 3
    if flush:
        for q in queues:
            while not q.empty(): step(E, q, queues)
```

```python
import sys, os
sys.path.insert(0, os.path.dirname(os.path.abspath(__file__)))
from emit import *

NAME = "recurrent_scan__sliding_local_dilated__glu_gated_bilinear__prompt_kernel"

class Cfg:
    stamps = False
    stset = "a"
    D = 6
    nahead = 4; cap1A = 7.0; cap1B = 7.0; cap2A = 7.0; cap2B = 7.0; cap3 = 7.0; cap2t = 7.5; cap3x = 12.0
    npre = 120
    gate0A = 90; gate0B = 108
    rot = True
    pads = True
    la1 = 7; la2 = 7; la3 = 8
    polld = 10
    flagd = 850
    touch_x = True
    b2lead = 22; a2lead = 24; att_end = 20
    touch_a2 = True
    touch_w1 = True
    touch_code = True
    touch_b2 = True
    x_fl = ""; w_fl = ""; b2_fl = ""; out_fl = ""
    spin_max = 1 << 16

C = Cfg()
for arg in sys.argv[2:]:
    k, val = arg.split("=")
    old = getattr(C, k)
    setattr(C, k, (val not in ("0", "False")) if isinstance(old, bool) else type(old)(val))

WS_FLAG = 0x900000
WS_EPOCH = 0xA00000
WS_STAMP = 0xB00000
WS_SIZE = 0xC00000
TB = 131072

sWG = s(2); sW = s(3); sRB = s(4); sIDX = s(5); sJ = s(6); sXCD = s(7)
SX, SWO, SWG_, SWD, SDBG, SQKV, SWU, SOUT, SWS, SWH = [s(8 + 4 * i, 4) for i in range(10)]
(sM0B, sT0, sT1, sS1, sS2, sS2b, sTAG, sFLW, sFLR, sA2L, sStF, sStH, sSt2, sHI, sONE, sSPIN, sT2, sT3, sT4, sT5,
 sRT, sCT, sKH, sA2s, sB2s, sCSC, sXs, sM0T, sXo, sXk, sROT, sC512, sHo, sE1) = [s(48 + i) for i in range(34)]
sPC = s(82, 2)
STAMP0 = 84

def X(ks): return v(4 * ks, 4)
def ACC1(t): return v(128 + 16 * t, 16)
NT = [v(224 + i) for i in range(8)]
vTR = [v(232 + i) for i in range(6)]
vG = v(238); vU = v(239); vH = v(240)
vB2 = [v(241), v(242)]
vL16 = v(243); vRINV = v(244); vNB = v(245); vW16 = v(246); vHX = v(247)
vTAG = v(248); vPOLL = v(249); vP4 = v(250); vTB = vTAG
vEX = v(251); vHW = v(252); vPM = v(253); vMHC = v(254); vMHP = v(255)
vTA2 = [v(38), v(39), v(40), v(41)]
vTR2T = [v(42), v(43)]; vTR2 = [v(44), v(45)]; vA2 = [v(46), v(47)]
PARKED = vTA2 + vTR2T + vTR2 + vA2
E2T = v(48, 16)
ACCD = [v(64, 16), v(80, 16)]; ACCS = [v(96, 16), v(112, 16)]
def WF(m): return a(4 * (m % 12), 4)
def ACC2(t): return a(48 + 16 * t, 16)
aMASK = a(112, 24); aKP = [a(136 + 4 * i, 4) for i in range(4)]; aVP = [a(152 + 4 * i, 4) for i in range(2)]
aHACC = [a(160, 4), a(164, 4)]; aXH = [a(168, 4), a(172, 4)]
aW16 = [[a(176, 4), a(180, 4)], [a(184, 4), a(188, 4)]]
aPARK = 192
def A2(n):
    if n < 24: return a(160 + 4 * n, 4)
    if n < 52: return a(48 + 4 * (n - 24), 4)
    return a(160 + 4 * (n - 52), 4)
aDUM0 = a(255); aDUM1 = a(112)

M1, M2, M3 = 0, 192, 320
NEG = 0xf149f2ca


class LDSMap:
    def __init__(self):
        self.own = {c: ("x", c // 4) for c in range(32)}
        for c in range(32, 40): self.own[c] = ("T",)
        self.last_use = {}
        self.visible = set()
        self.bar_m = -1
        self.xread = set()
    def alloc(self, obj, chunks):
        for c in chunks:
            o = self.own[c]
            if o[0] == "x": assert o[1] in self.xread, (obj, c, o)
            else: assert self.last_use[o] <= self.bar_m, (obj, c, o, self.last_use[o], self.bar_m)
            self.own[c] = obj
    def check_read(self, obj, chunks):
        assert obj in self.visible, ("not visible", obj)
        for c in chunks: assert self.own[c] == obj, (obj, c, self.own[c])


def s1_chunk(j): return 3 * (j % 7)
S2_CH = [6, 10, 14, 18, 0, 6, 10, 14]
B2_CH0 = list(range(32, 40)) + list(range(22, 32)) + [4, 5] + [18, 19, 20, 21] + [0, 1, 2, 3] + [6, 7, 8, 9] + list(range(10, 18))
def b2_chunk(n): return B2_CH0[n % 40]


def step_info(n):
    if n < 24:
        idx, r = divmod(n, 6); base = 32 + 10 * idx
        return (base + 4 + r if idx % 2 == 0 else base + r), 0, False, 0
    if n < 40:
        idx, r = divmod(n - 24, 4); base = 32 + 10 * idx
        return (base + r if idx % 2 == 0 else base + 6 + r), 0, False, 1
    if n < 56: return n - 40, 1, False, 2
    return 112 + n - 56, 1, True, 3


class Gen:
    def __init__(self):
        self.E = Emitter()
        self.E.trace = bool(os.environ.get("TRACE"))
        self.nlabel = 0
        self.nstamp = 0

    def lab(self, base):
        self.nlabel += 1
        return f"L_{base}_{self.nlabel}"

    STS = {"a": ["t0", "issued", "x0", "xdone", "s1", "s2", "p2", "lastm", "end"],
           "b": ["t0", "g0a", "g0b", "p2", "g1a", "g1b", "g2a", "g2b", "end"],
           "e": ["t0", "karg", "issued", "rest", "pads", "x0", "x1", "x3", "end"],
           "f": ["t0", "x4", "x5", "x6", "x7", "xdone", "s1", "b1", "end"],
           "g": ["t0", "s1", "b1a", "b1", "b2a", "b2", "b3a", "b3", "end"],
           "h": ["t0", "b3", "b4", "b5", "b6", "b7", "b8", "s2", "end"],
           "d": ["t0", "p2", "g1b", "g2a", "g2b", "g3a", "g3b", "lastm", "end"],
           "c": ["t0", "p2", "c1", "c3", "c5", "c7", "lastm", "sbar", "end"]}

    def stamp(self, name):
        if C.stamps and name in self.STS[C.stset]:
            k = self.STS[C.stset].index(name)
            self.E.line(f"s_memtime s[{STAMP0 + 2 * k}:{STAMP0 + 2 * k + 1}]")

    def setup_first(self, typ):
        o = []; e = o.append
        lane = self.lane; vx = self.vx; t0, t1, t2 = v(201), v(202), v(203)
        e(valu("v_and_b32", lane, 63, v(0)))
        e(valu("v_lshrrev_b32", t0, 6, v(0)))
        e(salu("s_and_b32", sXCD, sWG, 7))
        e(rfl(sW, t0))
        e(salu("s_and_b32", sRB, sXCD, 1)); e(salu("s_lshl_b32", sRB, sRB, 3))
        e(salu("s_and_b32", sT0, sJ, 7)); e(salu("s_add_u32", sRB, sRB, sT0))
        e(salu("s_and_b32", sIDX, sXCD, 6)); e(salu("s_lshr_b32", sT0, sJ, 4)); e(salu("s_add_u32", sIDX, sIDX, sT0))
        e(valu("v_and_b32", t0, 7, lane)); e(valu("v_lshrrev_b32", t1, 4, lane)); e(valu("v_xor_b32", t0, t0, t1))
        e(valu("v_lshlrev_b32", t0, 4, t0))
        e(valu("v_lshrrev_b32", t1, 3, lane)); e(valu("v_lshlrev_b32", t1, 10, t1))
        e(valu("v_or_b32", vx[0], t0, t1)); e(valu("v_xor_b32", t2, 64, vx[0]))
        e(valu("v_add_u32", vx[1], 7168, t2)); e(valu("v_add_u32", vx[2], 2 * 7168, vx[0])); e(valu("v_add_u32", vx[3], 3 * 7168, t2))
        e(salu("s_lshl_b32", sM0B, sW, 15))
        e(salu("s_lshl_b32", sT0, sRB, 17)); e(salu("s_add_u32", sXo, sT0, sM0B))
        e(salu("s_lshr_b32", sT1, sJ, 3)); e(salu("s_add_u32", sT1, sT1, sJ)); e(salu("s_and_b32", sROT, sT1, 3 if C.rot else 0))
        e(salu("s_lshl_b32", sXk, sROT, 8))
        for d, size in ((SWS, WS_SIZE), (SWU, 512 * 3584 + 1024)):
            e(smov(d[2], size)); e(smov(d[3], 0x20000))
        if typ == "A":
            e(smov(SQKV[2], 512 * 3072)); e(smov(SQKV[3], 0x20000))
            hs = self.hs
            e(salu("s_sub_u32", sT1, sT0, 16 * 1024))
            e(valu("v_add_u32", hs[0], sT1, vx[0])); e(salu("s_add_u32", sT1, sT1, 1024)); e(valu("v_add_u32", hs[1], sT1, vx[1]))
            e(salu("s_add_u32", sHo, sW, sROT)); e(salu("s_and_b32", sHo, sHo, 3)); e(salu("s_lshl_b32", sHo, sHo, 8))
            e(salu("s_lshr_b32", sS2b, sM0B, 3))
            e(salu("s_lshl_b32", sT2, sIDX, 2))
            e(salu("s_lshl_b32", sS1, sIDX, 7))
        else:
            e(salu("s_mul_i32", sT3, sIDX, 10, scc_w=False)); e(salu("s_add_u32", sT3, sT3, 32))
            e(I("s_bitcmp1_b32 s5, 0", "salu", sIDX.ids(), {SCC}))
            e(salu("s_cselect_b32", sT2, 6, 0, scc_w=False, scc_r=True))
            e(salu("s_cselect_b32", sT4, 2, 4, scc_w=False, scc_r=True))
            e(salu("s_cselect_b32", sHo, 0, 8, scc_w=False, scc_r=True))
            e(salu("s_add_u32", sT2, sT2, sT3)); e(salu("s_add_u32", sT4, sT4, sT3)); e(salu("s_add_u32", sHo, sHo, sT3))
            e(salu("s_lshl_b32", sS1, sT4, 5))
        return o

    def touch(self, voff, srd_, soff, imm=0, dst=None, fl=""):
        i = vload(dst or aDUM0, voff, srd_, soff, imm, fl=fl); i.w = set(); return i

    def consts(self, typ):
        o = []; e = o.append
        lane = self.lane
        t = [v(208 + i) for i in range(8)]
        li, g4, r2, hh, ub = v(190), v(191), v(192), v(193), v(194)
        e(valu("v_and_b32", li, 15, lane)); e(valu("v_lshrrev_b32", g4, 4, lane)); e(valu("v_lshrrev_b32", hh, 5, lane))
        e(valu("v_and_b32", ub, 1, g4)); e(valu("v_lshrrev_b32", r2, 2, li))
        e(valu("v_lshlrev_b32", vL16, 4, lane))
        e(smov(sHI, 0xffff0000)); e(smov(sONE, 0x3f803f80)); e(smov(sC512, 0x3b000000)); e(smov(sCSC, 0x3eb8aa3b))
        xa = self.xa
        e(valu("v_and_b32", t[0], 31, lane)); e(valu("v_lshlrev_b32", t[1], 7, t[0]))
        e(valu("v_bfe_u32", t[0], lane, 1, 3)); e(valu("v_xor_b32", t[0], t[0], hh)); e(valu("v_lshlrev_b32", t[0], 4, t[0]))
        e(valu("v_add_u32", t[1], sM0B, t[1]))
        for q in range(4):
            e(valu("v_xor_b32", t[2], 32 * q, t[0])); e(valu("v_add_u32", xa[q], t[1], t[2]))
        for r_ in self.acc: e(valu("v_mov_b32", r_, 0))
        if typ == "A":
            ha = self.ha
            e(valu("v_lshlrev_b32", t[1], 7, li)); e(valu("v_lshrrev_b32", t[0], 1, li)); e(valu("v_xor_b32", t[0], t[0], g4))
            e(valu("v_lshlrev_b32", t[0], 4, t[0]))
            e(salu("s_add_u32", sT0, sS2b, TB)); e(valu("v_add_u32", t[1], sT0, t[1]))
            e(valu("v_add_u32", ha[0], t[1], t[0])); e(valu("v_xor_b32", t[0], 64, t[0])); e(valu("v_add_u32", ha[1], t[1], t[0]))
            for r_ in self.hacc: e(valu("v_mov_b32", r_, 0))
            e(valu("v_add_u32", vHX, TB + 16384, vL16))
            e(valu("v_lshlrev_b32", ha[2], 3, lane)); e(valu("v_add_u32", ha[2], TB, ha[2])); e(valu("v_add_u32", ha[3], sS2b, ha[2]))
            e(valu("v_add_u32", ha[4], sS2b, vHX))
        e(salu("s_and_b32", sT0, sW, 1)); e(salu("s_lshl_b32", sT0, sT0, 4))
        e(salu("s_lshr_b32", sKH, sW, 1)); e(salu("s_lshl_b32", sT1, sKH, 3)); e(salu("s_add_u32", sT1, sT1, sT0))
        e(valu("v_lshrrev_b32", t[0], 3, lane)); e(valu("v_and_b32", t[1], 2, t[0])); e(valu("v_lshlrev_b32", t[1], 5, t[1]))
        e(valu("v_and_b32", t[2], 7, lane)); e(valu("v_lshlrev_b32", t[2], 4, t[2])); e(valu("v_xor_b32", t[2], t[2], t[1]))
        e(valu("v_add_u32", t[3], sT1, t[0]))
        e(valu("v_mul_u32_u24", t[4], 3584, t[3])); e(valu("v_add_u32", vG, t[4], t[2]))
        e(valu("v_xor_b32", t[5], 32, t[2])); e(valu("v_add_u32", vU, t[4], t[5]))
        if typ == "A":
            e(valu("v_mul_u32_u24", t[4], 3072, t[3])); e(valu("v_add_u32", vH, t[4], t[2]))
        else:
            e(valu("v_lshrrev_b32", t[4], 2, lane)); e(valu("v_add_u32", t[4], sT0, t[4])); e(valu("v_mul_u32_u24", t[4], 3584, t[4]))
            e(valu("v_and_b32", t[5], 3, lane)); e(valu("v_lshlrev_b32", t[5], 4, t[5]))
            e(salu("s_lshl_b32", sT1, sKH, 5)); e(valu("v_xor_b32", t[5], sT1, t[5]))
            e(salu("s_sub_u32", sT1, sHo, sT4)); e(salu("s_lshl_b32", sT1, sT1, 5)); e(salu("s_add_u32", sT1, sT1, 64))
            e(valu("v_add3_u32", vH, t[4], t[5], sT1))
        e(salu("s_mul_i32", sT0, sT0, 3584, scc_w=False))
        e(salu("s_lshl_b32", sS2, sT2, 5)); e(salu("s_add_u32", sS2, sS2, sT0))
        st1 = 3072 if typ == "A" else 3584
        e(salu("s_add_u32", sE1, sS1, 512 * st1)); e(salu("s_add_u32", sT3, sS2, 512 * 3584))
        e(salu("s_mul_i32", sT0, sROT, 128 * st1, scc_w=False)); e(salu("s_add_u32", sS1, sS1, sT0))
        e(salu("s_mul_i32", sT0, sROT, 128 * 3584, scc_w=False)); e(salu("s_add_u32", sS2, sS2, sT0))
        e(salu("s_lshl_b32", sT0, sRB, 2)); e(salu("s_add_u32", sT0, sT0, sW))
        e(salu("s_mul_i32", sT1, sT0, 144, scc_w=False))
        e(salu("s_add_u32", sSt2, sT1, sT2)); e(salu("s_lshl_b32", sSt2, sSt2, 10))
        if typ == "A":
            e(salu("s_add_u32", sStF, sSt2, 112 * 1024))
        else:
            e(salu("s_add_u32", sStF, sT1, sT4)); e(salu("s_lshl_b32", sStF, sStF, 10))
            e(salu("s_add_u32", sStH, sT1, sHo)); e(salu("s_lshl_b32", sStH, sStH, 10))
        e(salu("s_lshl_b32", sT0, sT0, 1)); e(salu("s_lshr_b32", sT1, sIDX, 2)); e(salu("s_add_u32", sT0, sT0, sT1))
        e(salu("s_lshl_b32", sT0, sT0, 9))
        e(salu("s_and_b32", sT1, sIDX, 3)); e(salu("s_lshl_b32", sT1, sT1, 2))
        e(salu("s_add_u32", sT0, sT0, sT1)); e(salu("s_add_u32", sFLW, sT0, WS_FLAG))
        e(valu("v_and_b32", vP4, 3, lane)); e(valu("v_lshlrev_b32", vP4, 2, vP4))
        for d, size in ((SOUT, 0x200000), (SWH, 512 * 3584 + 2048 + 64)):
            e(smov(d[2], size)); e(smov(d[3], 0x20000))
        e(salu("s_and_b32", sRT, sJ, 3)); e(salu("s_lshr_b32", sCT, sJ, 2))
        e(salu("s_lshl_b32", sT0, sXCD, 3)); e(salu("s_lshl_b32", sT1, sRT, 1)); e(salu("s_add_u32", sT0, sT0, sT1))
        e(salu("s_and_b32", sT1, sW, 1)); e(salu("s_add_u32", sT0, sT0, sT1))
        e(salu("s_mul_i32", sA2L, sT0, 144 * 1024, scc_w=False))
        e(salu("s_lshl_b32", sXs, sT0, 15))
        e(salu("s_lshl_b32", sFLR, sT0, 1)); e(salu("s_add_u32", sFLR, sFLR, sKH))
        e(salu("s_lshl_b32", sFLR, sFLR, 9)); e(salu("s_add_u32", sFLR, sFLR, WS_FLAG))
        e(salu("s_lshl_b32", sM0T, sW, 10)); e(salu("s_add_u32", sM0T, sM0T, TB))
        e(salu("s_lshl_b32", sT1, sT1, 13)); e(salu("s_lshl_b32", sCT, sCT, 7)); e(salu("s_add_u32", sT1, sT1, sCT))
        e(valu("v_lshlrev_b32", t[4], 10, t[0])); e(valu("v_add3_u32", t[4], t[4], t[2], sT1))
        e(salu("s_mul_i32", sT0, sKH, 40 * 16384, scc_w=False)); e(valu("v_add_u32", vB2[0], sT0, t[4]))
        e(salu("s_lshl_b32", sT0, sKH, 18)); e(valu("v_add_u32", vB2[1], sT0, t[4]))
        e(salu("s_lshl_b32", sT0, sKH, 6)); e(salu("s_add_u32", sXs, sXs, sT0)); e(salu("s_add_u32", sXs, sXs, sCT))
        e(salu("s_lshl_b32", sRT, sRT, 2)); e(salu("s_add_u32", sRT, sRT, sW))
        e(salu("s_lshl_b32", sRT, sRT, 14)); e(salu("s_add_u32", sRT, sRT, sCT))
        e(valu("v_lshlrev_b32", vTB, 10, li))
        e(valu("v_lshlrev_b32", t[0], 7, r2))
        e(valu("v_and_b32", t[1], 3, lane)); e(valu("v_lshlrev_b32", t[1], 3, t[1])); e(valu("v_add_u32", t[0], t[0], t[1]))
        e(valu("v_and_b32", t[2], 2, r2))
        e(valu("v_or_b32", t[3], t[2], ub)); e(valu("v_lshlrev_b32", t[3], 5, t[3]))
        e(valu("v_lshlrev_b32", t[4], 16, hh)); e(valu("v_add_u32", t[4], t[4], t[0]))
        e(valu("v_lshlrev_b32", t[5], 10, ub)); e(valu("v_add_u32", t[5], t[5], t[4]))
        for tt in range(4):
            e(valu("v_xor_b32", t[6], 32 * tt, t[3])); e(valu("v_add_u32", vTR[tt], t[6], t[5]))
        if typ == "A":
            for j in range(2):
                e(valu("v_xor_b32", t[6], 64 * j, t[3])); e(valu("v_add_u32", vTR[4 + j], t[6], t[4]))
        else:
            e(valu("v_lshlrev_b32", t[6], 3, hh)); e(valu("v_add_u32", t[6], t[6], r2)); e(valu("v_lshlrev_b32", t[6], 6, t[6]))
            e(valu("v_lshlrev_b32", t[7], 16, ub)); e(valu("v_add3_u32", t[6], t[6], t[7], t[1]))
            e(valu("v_lshlrev_b32", t[7], 5, ub)); e(valu("v_add_u32", vTR[4], t[6], t[7]))
            e(valu("v_xor_b32", t[7], 32, t[7])); e(valu("v_add_u32", vTR[5], t[6], t[7]))
        def park(reg, src): e(accw(a(aPARK + [str(x) for x in PARKED].index(str(reg))), src))
        e(valu("v_lshlrev_b32", t[4], 9, hh)); e(valu("v_add_u32", t[4], t[4], t[0]))
        e(salu("s_lshl_b32", sT0, sKH, 6)); e(valu("v_xor_b32", t[6], sT0, t[3]))
        e(valu("v_add_u32", t[5], t[6], t[4])); e(valu("v_xor_b32", t[6], 64, t[5]))
        e(salu("s_lshl_b32", sT0, sKH, 16)); e(salu("s_lshl_b32", sT1, sKH, 11)); e(salu("s_add_u32", sT1, sT1, TB))
        for j in range(2):
            e(valu("v_add_u32", t[7], sT0, t[5 + j])); park(vTR2[j], t[7])
            e(valu("v_add_u32", t[7], sT1, t[5 + j])); park(vTR2T[j], t[7])
        e(salu("s_mul_i32", sT0, sKH, 40 * 1024, scc_w=False)); e(valu("v_add_u32", t[7], sT0, vL16)); park(vA2[0], t[7])
        e(salu("s_lshl_b32", sT1, sKH, 14)); e(valu("v_add_u32", t[7], sT1, vL16)); park(vA2[1], t[7])
        if C.touch_a2:
            e(salu("s_add_u32", sT0, sT0, sCT)); e(salu("s_add_u32", sT1, sT1, sCT))
            e(valu("v_min_u32", t[4], 23, lane)); e(valu("v_mul_u32_u24", t[5], 43, t[4])); e(valu("v_lshrrev_b32", t[5], 8, t[5]))
            e(valu("v_and_b32", t[5], 2, t[5])); e(valu("v_lshlrev_b32", t[5], 2, t[5]))
            e(valu("v_add3_u32", t[5], t[5], t[4], 36)); e(valu("v_lshlrev_b32", t[5], 10, t[5]))
            e(valu("v_add_u32", t[5], sT0, t[5])); park(vTA2[0], t[5])
            e(valu("v_lshrrev_b32", t[4], 2, li)); e(valu("v_mul_u32_u24", t[5], 6, t[4])); e(valu("v_and_b32", t[4], 1, t[4]))
            e(valu("v_mul_u32_u24", t[4], 6, t[4])); e(valu("v_add3_u32", t[5], t[5], t[4], li))
            e(valu("v_add_u32", t[5], 32, t[5])); e(valu("v_lshlrev_b32", t[5], 10, t[5]))
            e(valu("v_add_u32", t[5], sT0, t[5])); park(vTA2[1], t[5])
            e(valu("v_lshlrev_b32", t[5], 10, li)); e(valu("v_add_u32", t[5], sT1, t[5])); park(vTA2[2], t[5])
            e(valu("v_add_u32", t[5], 112 * 1024, t[5])); park(vTA2[3], t[5])
        if typ == "A":
            e(valu("v_lshlrev_b32", t[4], 16, ub)); e(valu("v_lshlrev_b32", t[5], 15, hh)); e(valu("v_add3_u32", t[4], t[4], t[5], t[0]))
            e(valu("v_xor_b32", t[6], sW, t[2])); e(valu("v_lshlrev_b32", t[6], 5, t[6])); e(valu("v_add_u32", vW16, t[4], t[6]))
            e(salu("s_mul_i32", sT0, sW, 6144, scc_w=False)); e(salu("s_add_u32", sT0, sT0, TB)); e(valu("v_add_u32", vEX, sT0, vL16))
            e(valu("v_lshlrev_b32", t[4], 5, ub)); e(valu("v_add_u32", t[4], t[4], li)); e(valu("v_lshlrev_b32", t[4], 4, t[4]))
            e(valu("v_lshlrev_b32", t[5], 3, hh)); e(smov(sT0, TB)); e(valu("v_add3_u32", vHW, t[4], t[5], sT0))
            q = t[0]; bb = v(t[2].lo, 2)
            e(valu("v_and_b32", q, 31, lane)); e(valu("v_add_u32", t[1], 18, q))
            e(valu("v_mov_b32", t[4], 0x5555)); e(valu("v_mov_b32", t[5], 0))
            e(valu("v_lshlrev_b64", bb, t[1], v(t[4].lo, 2)))
            e(salu("s_or_b32", sT1, sRB, sW)); e(salu("s_cselect_b32", sT1, -1, 0, scc_w=False, scc_r=True))
            e(valu("v_and_b32", bb[0], sT1, bb[0]))
            e(valu("v_lshlrev_b32", t[1], 2, hh))
            e(valu("v_lshrrev_b32", bb[0], t[1], bb[0])); e(valu("v_lshrrev_b32", bb[1], t[1], bb[1]))
            e(valu("v_not_b32", bb[0], bb[0])); e(valu("v_not_b32", bb[1], bb[1]))
            e(smov(sT0, NEG))
            for r in range(24):
                rr = r if r < 16 else r - 8
                tmp = t[6 + (r & 1)]
                e(valu("v_bfe_i32", tmp, bb[1] if r < 16 else bb[0], 8 * (rr >> 2) + (rr & 3), 1))
                e(valu("v_and_b32", tmp, sT0, tmp)); e(accw(aMASK[r], tmp))
            e(valu("v_and_b32", t[2], 1, q)); e(valu("v_lshlrev_b32", t[2], 4, t[2]))
            e(valu("v_mov_b32", t[3], 0xffff)); e(valu("v_lshlrev_b32", vPM, t[2], t[3]))
            e(valu("v_bfe_i32", t[2], q, 4, 1)); e(valu("v_and_b32", vMHC, t[2], vPM)); e(valu("v_xor_b32", vMHP, vMHC, vPM))
        return o

    def code_touch(self):
        E = self.E
        if not C.touch_code: return
        t = v(201)
        E.line(f"s_getpc_b64 {sPC}")
        pcl = self.lab("pc"); E.label(pcl)
        E.emit(salu("s_and_b32", sT0, sJ, 1)); E.emit(salu("s_lshl_b32", sT0, sT0, 15))
        E.emit(valu("v_lshlrev_b32", t, 7, v(0))); E.emit(valu("v_add_u32", t, sT0, t))
        E.line(f"s_mov_b32 {sT0}, L_code_end-{pcl}-4")
        E.emit(valu("v_min_u32", t, sT0, t))
        E.emit(I(f"global_load_dword {aDUM0}, {t}, {sPC}", "vml", t.ids(), ()))

    def finish_stats(self, sm, sq, rinv, nb, t0, t1):
        e = self.E.emit
        e(valu("v_mul_f32", sm, sC512, sm))
        e(valu("v_mul_f32", t0, sm, sm))
        e(I(f"v_fma_f32 {sq}, {sq}, {sC512}, -{t0}", "valu", sq.ids() | t0.ids() | sC512.ids(), sq.ids()))
        e(valu("v_max_f32", sq, 0, sq))
        e(valu("v_cvt_pk_bf16_f32", t0, sm, sq))
        e(valu("v_and_b32", t1, sHI, t0))
        e(valu("v_add_f32", t1, 0x3727c5ac, t1))
        e(valu("v_cvt_pk_bf16_f32", t1, t1, t1)); e(valu("v_and_b32", t1, sHI, t1))
        e(valu("v_sqrt_f32", t1, t1))
        e(valu("v_cvt_pk_bf16_f32", t1, t1, t1)); e(valu("v_and_b32", t1, sHI, t1))
        e(valu("v_rcp_f32", rinv, t1))
        e(valu("v_lshlrev_b32", t0, 16, t0))
        e(I(f"v_mul_f32 {nb}, -{t0}, {rinv}", "valu", t0.ids() | rinv.ids(), nb.ids()))

    def norm_ops(self, reg, rinv, nb, k0=0):
        ops = []
        for d in range(4):
            lo = NT[(2 * (k0 + d)) % 8]; hi = NT[(2 * (k0 + d) + 1) % 8]; x = reg[d]
            ops += [valu("v_lshlrev_b32", lo, 16, x), valu("v_and_b32", hi, sHI, x),
                    valu("v_fma_f32", lo, lo, rinv, nb), valu("v_fma_f32", hi, hi, rinv, nb),
                    valu("v_cvt_pk_bf16_f32", x, lo, hi)]
        return ops

    def dots(self, reg, acc):
        ops = []
        for d in range(reg.n):
            ops.append(valu("v_dot2_f32_bf16", acc[d & 1], reg[d], sONE, acc[d & 1]))
            ops.append(valu("v_dot2_f32_bf16", acc[2 + (d & 1)], reg[d], reg[d], acc[2 + (d & 1)]))
        return ops

    def s1_dma(self, typ, j):
        L = self.L
        def f(E): L.alloc(("s1", j), range(s1_chunk(j), s1_chunk(j) + 3))
        tag = ("s1", j); ops = [salu("s_add_u32", "m0", sM0B, 1024 * s1_chunk(j))]
        if typ == "A":
            ops += [dma(vH, SQKV, sS1, 1024 * u, tag, C.w_fl) for u in range(3)]
        else:
            ops += [dma(vG, SWG_, sS1, 0, tag, C.w_fl), dma(vU, SWU, sS1, 1024, tag, C.w_fl), dma(vH, SWH, sS1, 2048, tag, C.w_fl)]
        st = 3072 if typ == "A" else 3584
        if j < 15: ops.append(salu("s_add_u32", sS1, sS1, 32 * st))
        if j % 4 == 3 and j < 15 and C.rot:
            ops.append(glue([scmp("s_cmp_eq_u32", sS1, sE1), salu("s_cselect_b32", sS2b, 512 * st, 0, scc_w=False, scc_r=True),
                             salu("s_sub_u32", sS1, sS1, sS2b)]))
        return [f] + ops

    def s2_dma(self, j):
        L = self.L
        def f(E): L.alloc(("s2", j), range(S2_CH[j], S2_CH[j] + 4))
        tag = ("s2", j)
        return [f, salu("s_add_u32", "m0", sM0B, 1024 * S2_CH[j]), salu("s_add_u32", sS2b, sS2, 16 * 3584 - 2048),
                dma(vG, SWG_, sS2, 0, tag, C.w_fl), dma(vU, SWU, sS2, 1024, tag, C.w_fl),
                dma(vG, SWG_, sS2b, 2048, tag, C.w_fl), dma(vU, SWU, sS2b, 3072, tag, C.w_fl),
                salu("s_add_u32", sS2, sS2, 64 * 3584)] + ([glue([
                scmp("s_cmp_eq_u32", sS2, sT3), salu("s_cselect_b32", sS2b, 512 * 3584, 0, scc_w=False, scc_r=True),
                salu("s_sub_u32", sS2, sS2, sS2b)])] if (j % 2 == 1 and j < 7 and C.rot) else [])

    def b2_dma(self, n):
        L = self.L
        ks, cls, iso, _ = step_info(n)
        def f(E): L.alloc(("b2", n), [b2_chunk(n)])
        ch = b2_chunk(n)
        return [f, salu("s_add_u32", "m0", sM0B, 1024 * ch) if ch < 32 else salu("s_add_u32", "m0", sM0T, 4096 * (ch - 32)),
                smov(sB2s, (ks - 112 if iso else ks) * 16384),
                dma(vB2[cls], SWO if iso else SWD, sB2s, 0, ("b2", n), C.b2_fl)]

    def bar(self, cover, m_done, lds_all=False, lds_tags=()):
        L = self.L
        def f(E):
            E.wait_tags(lds=lds_tags, vm=cover)
            if lds_all: E.wait_all_lds()
            E.barrier()
            L.visible |= set(cover); L.bar_m = m_done
        return f

    def seq(self, typ):
        out = []
        for ks in range(32):
            j = ks // 2; ch = s1_chunk(j); base = (ks & 1) * 32768 + ch * 1024
            order = [2, 3, 4, 5, 0, 1] if typ == "A" else range(6)
            for t in order:
                if typ == "A":
                    out.append(dict(acc=ACC1(t), x=X(ks), sw=(t >= 4), obj=("s1", j), addr=vTR[4 + (t & 1)],
                                    imm=base + (t >> 1) * 1024, st=512, first=(ks == 0)))
                elif t < 4:
                    out.append(dict(acc=ACC1(t), x=X(ks), sw=False, obj=("s1", j), addr=vTR[t], imm=base, st=512, first=(ks == 0)))
                else:
                    out.append(dict(acc=ACC1(t), x=X(ks), sw=False, obj=("s1", j), addr=vTR[t], imm=base + 2048, st=256, first=(ks == 0)))
        s2 = [(ks, t) for ks in range(24) for t in range(4)] + [(ks, t) for t in range(4) for ks in range(24, 32)]
        for ks, t in s2:
            j = ks // 4; k = ks & 3
            out.append(dict(acc=ACC2(t), x=X(ks), sw=False, obj=("s2", j), addr=vTR[t],
                            imm=(k >> 1) * 32768 + S2_CH[j] * 1024 + (k & 1) * 2048, st=512, first=(ks == 0)))
        for n in range(72):
            iso = step_info(n)[2]
            for j in range(2):
                ch = b2_chunk(n)
                out.append(dict(acc=(ACCS if iso else ACCD)[j], x=A2(n), sw=False, obj=("b2", n),
                                addr=vTR2[j] if ch < 32 else vTR2T[j], imm=ch * 1024 if ch < 32 else (ch - 32) * 4096,
                                st=32768 if ch < 32 else 1024, first=(n in (0, 56))))
        for m, o in enumerate(out): self.L.last_use[o["obj"]] = m
        return out

    def wreads(self, m):
        o = self.SEQ[m]; L = self.L
        def f(E): assert o["obj"] in L.visible, ("read of invisible", m, o["obj"])
        return [f, ds_tr(WF(m).sub(0, 2), o["addr"], o["imm"]), ds_tr(WF(m).sub(2, 2), o["addr"], o["imm"] + o["st"])]

    def main(self, m):
        o = self.SEQ[m]
        A_, B_ = (o["x"], WF(m)) if o["sw"] else (WF(m), o["x"])
        mn = dict(pre=[], m=mfma(o["acc"], A_, B_, 0 if o["first"] else o["acc"]), fix=[])
        if m + C.D < len(self.SEQ): mn["fix"] += self.wreads(m + C.D)
        return mn

    def spin_check_tag(self):
        def f(E):
            ok = self.lab("tagok"); sp = self.lab("tagspin")
            E.emit(rfl(sTAG, vTAG))
            E.emit(scmp("s_cmp_lg_u32", sTAG, 0))
            E.line(f"s_cbranch_scc1 {ok}")
            E.line(f"s_mov_b32 {sSPIN}, 0")
            E.label(sp)
            E.line(f"buffer_load_dword {vTAG}, off, {SDBG}, 0 sc1")
            E.line(f"s_add_u32 {sSPIN}, {sSPIN}, 1")
            E.line("s_waitcnt vmcnt(0)")
            E.line(f"v_readfirstlane_b32 {sTAG}, {vTAG}")
            E.line(f"s_cmp_ge_u32 {sSPIN}, {C.spin_max}")
            E.line(f"s_cbranch_scc1 {ok}")
            E.line(f"s_cmp_eq_u32 {sTAG}, 0")
            E.line(f"s_cbranch_scc1 {sp}")
            E.label(ok)
        return f

    def poll_load(self, stage):
        return vload(vPOLL, vP4, SWS, sFLR, 128 * stage, fl="sc1")

    def gate(self, stage):
        def f(E):
            ok = self.lab("gateok"); sp = self.lab("gatespin")
            self.stamp(f"g{stage}a")
            E.emit(vcmp("v_cmp_ne_u32", "vcc", sTAG, vPOLL))
            E.line("s_nop 0")
            E.line(f"s_cbranch_vccz {ok}")
            E.line(f"s_mov_b32 {sSPIN}, 0")
            E.label(sp)
            E.line(f"buffer_load_dword {vPOLL}, {vP4}, {SWS}, {sFLR} offen offset:{128 * stage} sc1")
            E.line(f"s_add_u32 {sSPIN}, {sSPIN}, 1")
            E.line(f"s_cmp_ge_u32 {sSPIN}, {C.spin_max}")
            E.line(f"s_cbranch_scc1 {ok}")
            E.line("s_waitcnt vmcnt(0)")
            E.line(f"v_cmp_ne_u32 vcc, {sTAG}, {vPOLL}")
            E.line("s_nop 0")
            E.line(f"s_cbranch_vccnz {sp}")
            E.label(ok)
            self.stamp(f"g{stage}b")
            if C.touch_a2: E.emit(self.touch(vTA2[stage], SWS, sA2L, dst=aDUM1))
        return f

    def flag_store(self, stage, tags):
        def f(E):
            E.wait_tags(vm=tags)
            E.emit(vstore(vTAG, None, SWS, sFLW, 128 * stage, fl="sc1"))
        return f

    def a2_load(self, n):
        ks, cls, iso, _ = step_info(n)
        o = []
        if self.a2base is None or not (0 <= ks - self.a2base < 4):
            self.a2base = ks; o.append(salu("s_add_u32", sA2s, sA2L, ks * 1024))
        return o + [vload(A2(n), vA2[cls], SWS, sA2s, (ks - self.a2base) * 1024, fl="sc1")]

    def h_epilogue(self, T, sbase, imm, tag):
        ops = [valu("v_mul_f32", T[r], T[r], T[r + 8]) for r in range(8)]
        ops += [valu("v_cvt_pk_bf16_f32", T[r], T[2 * r], T[2 * r + 1]) for r in range(4)]
        ops.append(vstore(T.sub(0, 4), vL16, SWS, sbase, imm, tag, "sc1"))
        return ops

    def body(self, typ):
        E = self.E; e = E.emit
        self.L = L = LDSMap()
        E.m0_owner = None
        self.SEQ = self.seq(typ)
        self.a2base = None
        isA = typ == "A"
        self.lane = v(200); self.vx = [v(204 + g) for g in range(4)]; self.hs = [v(196), v(197)]
        self.xa = xa = [v(216 + q) for q in range(4)]; self.acc = acc = [v(220 + q) for q in range(4)]
        self.ha = ha = [v(144 + i) for i in range(5)]; self.hacc = hacc = [v(149 + i) for i in range(4)]
        self.stamp("t0")
        first = self.setup_first(typ)
        rest = self.consts(typ)
        E.emits(first)
        k = max(0, C.npre - len(first))
        while SCC in rest[k].r: k += 1
        E.emits(rest[:k]); rest = rest[k:]
        E.line("s_waitcnt lgkmcnt(0)")
        self.stamp("karg")
        def inplace(d, size, other, shift=0):
            o = []
            if other is not None and shift: o += [salu("s_sub_u32", other[0], d[2], shift), salu("s_subb_u32", other[1], d[3], 0, scc_r=True)]
            elif other is not None: o += [smov(other[0], d[2]), smov(other[1], d[3])]
            return o + [smov(d[2], size), smov(d[3], 0x20000)]
        E.emits(inplace(SX, 0x200000, SQKV if isA else None))
        if isA: E.emits(inplace(SDBG, 256, SWS))
        def xd(sl):
            o = [salu("s_add_u32", "m0", sM0B, 4096 * sl), salu("s_add_u32", sA2s, sXo, sXk)]
            o += [dma(self.vx[g], SX, sA2s, 1024 * g, tag=("x", sl), fl=C.x_fl) for g in range(4)]
            if sl < 7: o += [salu("s_add_u32", sXk, sXk, 128), salu("s_and_b32", sXk, sXk, 1023)]
            return o
        if isA:
            for ee in range(2):
                for g in range(2):
                    e(salu("s_add_u32", "m0", sS2b, TB + 2048 * ee + 1024 * g))
                    e(dma(self.hs[g], SX, sHo, 0, tag="halo", fl=C.x_fl))
                if ee == 0: e(salu("s_add_u32", sHo, sHo, 128))
            lskip = self.lab("noep")
            e(salu("s_or_b32", sSPIN, sWG, sW))
            E.line(f"s_cbranch_scc1 {lskip}")
            E.line(f"s_mov_b32 {sSPIN}, {WS_EPOCH}")
            E.line(f"buffer_load_dword {vPOLL}, off, {SWS}, {sSPIN} sc1")
            E.label(lskip)
        E.emits(xd(0))
        E.emits(xd(1))
        nx = 2
        if not isA: E.emits(xd(2)); nx = 3
        self.stamp("issued")
        if not isA: E.emits(inplace(SDBG, 256, SWS))
        E.emits(inplace(SWG_, 512 * 3584, SWU, 1024) + inplace(SWD, 1792 * 1024, SOUT) + inplace(SWO, 512 * 1024, None))
        if not isA:
            e(scmp("s_cmp_ge_u32", sW, 2))
            e(salu("s_cselect_b32", SWH[0], SWU[0], SWG_[0], scc_w=False, scc_r=True))
            e(salu("s_cselect_b32", SWH[1], SWU[1], SWG_[1], scc_w=False, scc_r=True))
            e(salu("s_cselect_b32", sT5, 0, 1024, scc_w=False, scc_r=True)); e(salu("s_add_u32", sT5, sT5, 1024 + 64))
            e(salu("s_sub_u32", SWH[0], SWH[0], sT5)); e(salu("s_subb_u32", SWH[1], SWH[1], 0, scc_r=True))
        E.emits(rest)
        self.stamp("rest")
        if C.pads:
            E.line("s_mov_b64 exec, 0")
            for w_ in (1, 2, 3):
                E.line(f"s_cmp_eq_u32 {sW}, {w_}"); E.line(f"s_cbranch_scc1 L_pad{typ}_{w_}")
            E.line(f"s_branch L_pad{typ}_0")
            E.label(f"L_back{typ}")
            E.line("s_mov_b64 exec, -1")
            E.out.append(f";PADS_FROM {typ}")
        self.stamp("pads")
        if isA:
            hx = v(128, 16); pr = v(154, 2); tp = v(156, 2); pp = v(158, 8)
            E.wait_tags(vm=["halo"])
            self.epoch_publish()
            for ee in range(2):
                for b in range(2): e(ds_rd(hx.sub(4 * (2 * ee + b), 4), ha[b], 2048 * ee))
            E.emits(xd(2)); nx = 3
            E.emits(self.dots(hx, hacc))
            e(valu("v_add_f32", pr[0], hacc[0], hacc[1])); e(valu("v_add_f32", pr[1], hacc[2], hacc[3]))
            for sw in (swap16, swap32):
                e(valu("v_mov_b32", tp[0], pr[0])); e(valu("v_mov_b32", tp[1], pr[1]))
                e(sw(pr[0], tp[0])); e(sw(pr[1], tp[1]))
                e(valu("v_add_f32", pr[0], pr[0], tp[0])); e(valu("v_add_f32", pr[1], pr[1], tp[1]))
            e(ds_wr(ha[3], pr, 0, tag="hp"))
        need = {0: [0], 1: [1], 2: [2, 3], 3: [4], 4: [5], 5: [6]}
        pend = []
        for sl in range(9):
            if sl < 8:
                E.wait_tags(vm=[("x", sl)])
                self.stamp(f"x{sl}")
                for q in range(4): e(ds_rd(X(4 * sl + q), xa[q], 4096 * sl))
                if nx < 8: E.emits(xd(nx)); nx += 1
            if isA and sl == 0:
                E.wait_tags(lds=["hp"]); E.barrier()
                for w_ in range(4): e(ds_rd(pp.sub(2 * w_, 2), ha[2], 4096 * w_))
            if isA and sl == 1:
                e(valu("v_add_f32", pr[0], pp[0], pp[2])); e(valu("v_add_f32", pr[1], pp[1], pp[3]))
                e(valu("v_add_f32", tp[0], pp[4], pp[6])); e(valu("v_add_f32", tp[1], pp[5], pp[7]))
                e(valu("v_add_f32", pr[0], pr[0], tp[0])); e(valu("v_add_f32", pr[1], pr[1], tp[1]))
                self.finish_stats(pr[0], pr[1], vRINV, vNB, tp[0], tp[1])
            if isA and 1 <= sl <= 4:
                E.emits(self.norm_ops(hx.sub(4 * (sl - 1), 4), vRINV, vNB))
                e(ds_wr(ha[4], hx.sub(4 * (sl - 1), 4), 1024 * (sl - 1), tag="hxw"))
            if sl > 0:
                E.emits(self.dots(v(16 * (sl - 1), 16), acc))
                L.xread.add(sl - 1)
                pend += need.get(sl - 1, [])
                if sl >= 5:
                    for _ in range(2 if sl == 5 else 1):
                        if pend and pend[0] <= 3:
                            for it in self.s1_dma(typ, pend.pop(0)): run_item(E, it)
        self.stamp("xdone")
        e(valu("v_add_f32", acc[0], acc[0], acc[1])); e(valu("v_add_f32", acc[2], acc[2], acc[3]))
        e(valu("v_mov_b32", acc[1], acc[0])); e(valu("v_mov_b32", acc[3], acc[2]))
        e(swap32(acc[0], acc[1])); e(swap32(acc[2], acc[3]))
        e(valu("v_add_f32", acc[0], acc[0], acc[1])); e(valu("v_add_f32", acc[2], acc[2], acc[3]))
        self.bar([("s1", 0), ("s1", 1)], -1, lds_tags=["hxw"])(E)
        for m in range(C.D):
            for it in self.wreads(m): run_item(E, it)
        self.finish_stats(acc[0], acc[2], vRINV, vNB, acc[1], acc[3])
        E.emits(self.norm_ops(X(0), vRINV, vNB))
        self.stamp("s1")

        mains = [self.main(m) for m in range(464)]
        for gp in [24 * g - C.D for g in range(1, 9)] + [M2 + 16 * j - C.D for j in range(1, 8)] + [M3] + [M3 + 16 * c - C.D for c in range(1, 9)]:
            mains[gp]["npre"] = 2
        D = C.D
        qN = Q("norm"); qD = Q("dma"); qX = Q("misc", vm_age=120); qH = Q("halo"); qB = Q("b2")
        def b2_add(n, gap):
            need = (M2 + 112 - D) if n < 8 else (M3 + 16 * (n // 8) - D)
            qB.adds(self.b2_dma(n), earliest=gap, deadline=max(need - C.b2lead, gap + 2))
        for ks in range(1, 32):
            qN.adds(self.norm_ops(X(ks), vRINV, vNB, ks * 4), earliest=max(0, 6 * (ks - C.nahead) - 1), deadline=6 * ks)
        for j in pend: qD.adds(self.s1_dma(typ, j), earliest=0, deadline=17)
        L.last_use[("T",)] = -1 if not isA else M2 + 32
        b2q = (list(range(8, 18)) if isA else list(range(18)))
        for g in range(1, 9):
            gap = 24 * g - D
            cover = [("s1", 2 * g), ("s1", 2 * g + 1)] if g < 8 else [("s2", 0)]
            mains[gap]["pre"].append(lambda E, g=g: self.stamp(f"b{g}a"))
            mains[gap]["pre"].append(self.bar(cover, gap - 1))
            mains[gap]["pre"].append(lambda E, g=g: self.stamp(f"b{g}"))
            its = []
            for j in (2 * g + 4, 2 * g + 5):
                if 7 <= j < 16: its += self.s1_dma(typ, j)
            if C.touch_b2 and 4 <= g <= 7:
                b = g - 4
                its += [salu("s_add_u32", sT5, sRT, (b & 1) * 256 * 1024), self.touch(vTB, SWO if b >= 2 else SWD, sT5, fl=C.b2_fl)]
            if g == 6: its += self.s2_dma(0)
            if g == 7: its += self.s2_dma(1) + self.s2_dma(2)
            if g == 8: its += self.s2_dma(3)
            nb = {3: 3, 4: 3, 5: 3, 6: 1}.get(g, 0) if isA else {2: 2, 3: 4, 4: 4, 5: 4, 6: 4}.get(g, 0)
            for _ in range(nb): b2_add(b2q.pop(0), gap + 8)
            qD.adds(its, earliest=gap, deadline=gap + 23)
        assert not b2q
        qD.add(vload(vTAG, None, SDBG, 0, fl="sc1"), earliest=24 * 7 + 10, deadline=191)
        if isA:
            for j in range(16):
                g0 = max(0, 12 * j - D + 1)
                b = j & 1; ch = s1_chunk(j) * 1024
                its = [ds_rd(aXH[b], vHX, 1024 * j)]
                for u in range(2):
                    its += [ds_tr(aW16[b][u].sub(0, 2), vW16, ch + 1024 * (1 + u)), ds_tr(aW16[b][u].sub(2, 2), vW16, ch + 1024 * (1 + u) + 512)]
                qH.adds(its, earliest=g0, deadline=12 * j + 4)
                qH.add(mfma(aHACC[0], aW16[b][0], aXH[b], 0 if j == 0 else aHACC[0], "16x16x32"), earliest=g0, deadline=12 * j + 8)
                qH.add(mfma(aHACC[1], aXH[b], aW16[b][1], 0 if j == 0 else aHACC[1], "16x16x32"), earliest=12 * j + 7, deadline=12 * j + 10)
        schedule(E, mains[M1:M2], [qN, qD, qH, qX, qB], C.cap1A if isA else C.cap1B, M1, flush=False, vm_gap=2)
        assert qN.empty() and qH.empty() and qX.empty()
        self.stamp("s2")

        qE = Q("epi"); qE2 = Q("epi2", hard=False, top=True); qR = Q("restore"); qFl = Q("flag", top=True)
        qL = Q("a2"); qF = Q("fin", vm_age=60); qP = Q("poll", top=True)
        def xfree(reg): return M2 + 4 * ((reg.lo + reg.n - 1) // 4) + 3
        b2q = (list(range(8)) if isA else []) + list(range(18, 72))
        b2q = [18, 19] + [n for n in b2q if n not in (18, 19)]
        for j in range(1, 8):
            gap = M2 + 16 * j - D
            if j < 6: cover = [("s2", j)]
            elif j == 6: cover = [("s2", 6), ("s2", 7)]
            else: cover = [("b2", n) for n in range(8)]
            mains[gap]["pre"].append(self.bar(cover, gap - 1, lds_tags=["exw"] if j == 2 else ()))
            its = []
            if j <= 4: its += self.s2_dma(j + 3)
            nb = {1: 2, 3: 4 * isA, 4: 4 * isA, 5: 4, 6: 4, 7: 4}.get(j, 0)
            for _ in range(nb): b2_add(b2q.pop(0), gap)
            qD.adds(its, earliest=gap, deadline=gap + 15)
        g0 = M2 + (C.gate0A if isA else C.gate0B)
        qFl.add(self.spin_check_tag(), earliest=M2 + 30, deadline=M2 + 34)
        for n_, dst in enumerate(PARKED):
            qR.add(accr(dst, a(aPARK + n_)), earliest=xfree(dst), deadline=g0 - 2)
        def after(q, stage, tags):
            def arm(E):
                f = self.flag_store(stage, tags); p0 = E.pos; g0_ = E.gap
                f.ready = lambda E: (E.pos - p0) * 4 + (E.gap - g0_) * 8 >= C.flagd or (E.gap - g0_) * 33 >= C.flagd
                qFl.add(f, earliest=E.gap)
            q.add(arm)
        if not isA:
            for t in range(6):
                qE.adds(self.h_epilogue(ACC1(t), sStF if t < 4 else sStH, 1024 * (t if t < 4 else t - 4), "h1"), earliest=M2, deadline=M2 + 6 + 5 * t, hard=False)
            after(qE, 0, ["h1"])
        else:
            self.attention(qE, xfree)
            n0 = self.exw_check[1]; nn = len(qE.items)
            for k in range(n0, nn):
                it, ear, dl, hd = qE.items[k]
                qE.items[k] = (it, ear, int(M2 + 20 + (M3 + C.att_end - M2 - 20) * (k - n0) / (nn - n0)), False)
            after(qE, 3, ["o"])
        e2done = {}
        for t in range(4):
            ear = M2 + 96 + 8 * t + 7
            its = [accr(E2T[r], ACC2(t)[r]) for r in range(16)] + self.h_epilogue(E2T, sSt2, 1024 * t, "h2")
            qE2.adds(its, earliest=ear, deadline=ear + 9)
        after(qE2, 2 if isA else 1, ["h2"])
        mains[M3]["pre"].append(lambda E: self.stamp("p2"))
        gates = {0: g0, 24: M3 + 2 * (24 - C.la1), 40: M3 + 2 * (40 - C.la2), 56: M3 + 2 * (56 - C.la3)}
        def chk_free(n):
            def f(E):
                busy = (qE2 if n < 40 else qE)
                assert busy.empty(), ("A2 slot still in use", n, E.gap)
            return f
        cur = 0
        for n in range(72):
            if n in gates:
                cur = gates[n]; st = step_info(n)[3]
                qP.add(self.poll_load(st), earliest=cur - C.polld, deadline=cur - C.polld + 2)
            if n in (24, 46): qL.add(chk_free(n), earliest=cur)
            if n in gates:
                qL.add(self.gate(st), earliest=cur, deadline=cur + 1)
            ear = cur if n < 52 else max(cur, M3 + 2 * (n - 52) + 1)
            qL.adds(self.a2_load(n), earliest=ear, deadline=max(M3 + 2 * n - C.a2lead, cur + 2 + (n - max(k for k in gates if k <= n))))
        mains[M3]["pre"].append(self.bar([], M3 - 1))
        for _ in range(8): b2_add(b2q.pop(0), M3)
        for c in range(1, 9):
            gap = M3 + 16 * c - D
            mains[gap]["pre"].append(self.bar([("b2", n) for n in range(8 * c, 8 * c + 8)], gap - 1,
                                              lds_tags=["dw"] if c == 8 else ()))
            mains[gap]["pre"].append(lambda E, c=c: self.stamp(f"c{c}"))
            while b2q and L.last_use[("b2", b2q[0] - 40)] <= gap - 1: b2_add(b2q.pop(0), gap)
        assert not b2q
        vXO = v(128); vRW = v(129); vRR = v(130); XR = v(132, 8); XF = v(140, 16); RD = v(156, 16); G = v(172, 16); tt = v(188, 4)
        qF.add(lambda E: (_ for _ in ()).throw(AssertionError("attention still running")) if not qE.empty() else None, earliest=M3 + 60)
        its = [valu("v_lshrrev_b32", tt[0], 4, vL16), valu("v_and_b32", tt[1], 31, tt[0]), valu("v_lshlrev_b32", tt[1], 10, tt[1]),
               valu("v_lshrrev_b32", tt[0], 5, tt[0]), valu("v_lshlrev_b32", tt[2], 3, tt[0]),
               valu("v_add_u32", vXO, tt[1], tt[2])]
        its += [vload(XR.sub(2 * a_, 2), vXO, SX, sXs, 16 * a_) for a_ in range(4)]
        its += [valu("v_add_u32", vXO, vXO, tt[2]),
                salu("s_lshr_b32", sT0, sM0B, 3), salu("s_add_u32", sT0, sT0, TB), valu("v_add_u32", vRW, sT0, vL16),
                valu("v_xor_b32", vRR, 8192, vRW)]
        for r in range(8):
            its += [valu("v_lshlrev_b32", XF[2 * r], 16, XR[r]), valu("v_and_b32", XF[2 * r + 1], sHI, XR[r])]
        qF.adds(its, earliest=M3 + 60)
        gd = M3 + 111
        qF.adds([ds_wr(vRW, ACCD[1].sub(4 * i, 4), 1024 * i, tag="dw") for i in range(4)], earliest=gd, deadline=M3 + 128 - D)
        its = [ds_rd(RD.sub(4 * i, 4), vRR, 1024 * i) for i in range(4)]
        its += [valu("v_add_f32", RD[r], RD[r], ACCD[0][r]) for r in range(16)]
        for r0 in range(0, 16, 4):
            rr = range(r0, r0 + 4)
            its += [valu("v_mul_f32", G[r], 0xbfb8aa3b, RD[r]) for r in rr]
            its += [valu("v_exp_f32", G[r], G[r]) for r in rr]
            its += [valu("v_add_f32", G[r], 1.0, G[r]) for r in rr]
            its += [valu("v_rcp_f32", G[r], G[r]) for r in rr]
            its += [valu("v_mul_f32", G[r], G[r], RD[r]) for r in rr]
        qF.adds(its, earliest=M3 + 128 - D)
        cap2 = C.cap2A if isA else C.cap2B
        def capf(g):
            if g < M2 + 103: return cap2
            if g < M3: return C.cap2t
            if not qE2.empty(): return 40
            return C.cap3 if qE.empty() else C.cap3x
        schedule(E, mains[M2:], [qFl, qP, qD, qL, qB, qR, qE2, qE, qF], capf, M2, flush=False,
                 vm_gap=lambda g: 2 if g < M3 else 1)
        assert qL.empty() and qD.empty() and qB.empty() and qE.empty() and qE2.empty() and qFl.empty()
        self.stamp("lastm")
        for i in range(4): e(ds_wr(vRW, ACCS[1].sub(4 * i, 4), 16384 + 1024 * i, tag="sw"))
        while not qF.empty():
            it = qF.head()[0]; qF.n += 1; run_item(E, it)
        E.wait_tags(lds=["sw"]); E.barrier()
        self.stamp("sbar")
        for i in range(4): e(ds_rd(RD.sub(4 * i, 4), vRR, 16384 + 1024 * i))
        for r in range(16): e(valu("v_add_f32", RD[r], RD[r], ACCS[0][r]))
        for r in range(16): e(valu("v_fma_f32", RD[r], RD[r], G[r], XF[r]))
        for r in range(8): e(valu("v_cvt_pk_bf16_f32", G[r], RD[2 * r], RD[2 * r + 1]))
        for p in range(2):
            e(swap32(G[4 * p], G[4 * p + 2])); e(swap32(G[4 * p + 1], G[4 * p + 3]))
        for p in range(2): e(vstore(G.sub(4 * p, 4), vXO, SOUT, sXs, 32 * p, fl=C.out_fl))
        self.stamp("end")
        if C.stamps:
            E.line("s_waitcnt lgkmcnt(0)")
            e(salu("s_lshl_b32", sT0, sWG, 2)); e(salu("s_add_u32", sT0, sT0, sW)); e(salu("s_lshl_b32", sT0, sT0, 7))
            e(salu("s_add_u32", sT0, sT0, WS_STAMP))
            for k in range(9):
                e(valu("v_mov_b32", v(0), s(STAMP0 + 2 * k))); e(vstore(v(0), None, SWS, sT0, 4 * k))
            E.line("s_memrealtime s[84:85]"); E.line("s_getreg_b32 s86, hwreg(HW_REG_XCC_ID)"); E.line("s_waitcnt lgkmcnt(0)")
            e(valu("v_mov_b32", v(0), s(84))); e(vstore(v(0), None, SWS, sT0, 36))
            e(valu("v_mov_b32", v(0), s(86))); e(vstore(v(0), None, SWS, sT0, 40))
        E.line("s_endpgm")

    def epoch_publish(self):
        E = self.E
        l = self.lab("nopub")
        E.emit(salu("s_or_b32", sT0, sWG, sW))
        E.line(f"s_cbranch_scc1 {l}")
        E.line(f"s_mov_b32 {sT0}, 0x9e3779b1")
        E.line(f"v_mul_lo_u32 {vPOLL}, {vPOLL}, {sT0}")
        E.line(f"v_add_u32 {vPOLL}, 0x7f4a7c15, {vPOLL}")
        E.line(f"v_max_u32 {vPOLL}, 1, {vPOLL}")
        E.line(f"s_mov_b32 {sT0}, {WS_EPOCH}")
        E.line(f"buffer_store_dword {vPOLL}, off, {SWS}, {sT0} sc1")
        E.line(f"buffer_store_dword {vPOLL}, off, {SDBG}, 0 sc1")
        E.label(l)

    def attention(self, q, xfree):
        Q0, Q1, K0, K1, V0, V1 = [ACC1(t) for t in range(6)]
        cvt = lambda d, x, y: valu("v_cvt_pk_bf16_f32", d, x, y)
        def pack(dst, src, n=8): return [cvt(dst[i], src[2 * i], src[2 * i + 1]) for i in range(n)]
        its = pack(K0, K0) + pack(K0.sub(8, 8), K1)
        its += [ds_wr(vEX, K0.sub(4 * h, 4), 6144 + 1024 * h, tag="exw") for h in range(4)]
        its += pack(V0, V0) + pack(V0.sub(8, 8), V1)
        its += [ds_wr(vEX, V0.sub(4 + 8 * j, 4), 6144 + 4096 + 1024 * j, tag="exw") for j in range(2)]
        its += [accr(NT[i], aHACC[0][i]) for i in range(4)] + [accr(NT[4 + i], aHACC[1][i]) for i in range(4)]
        hk = v(NT[0].lo, 2); hv = v(NT[4].lo, 2)
        its += [cvt(NT[0], NT[0], NT[1]), cvt(NT[1], NT[2], NT[3]), cvt(NT[4], NT[4], NT[5]), cvt(NT[5], NT[6], NT[7])]
        its += [salu("s_lshl_b32", sT0, sW, 10), salu("s_add_u32", sT0, sT0, 256), valu("v_add_u32", NT[2], sT0, vHW),
                salu("s_lshr_b32", sT0, sW, 1), salu("s_lshl_b32", sT0, sT0, 10), salu("s_and_b32", sT1, sW, 1),
                salu("s_lshl_b32", sT1, sT1, 8), salu("s_add_u32", sT0, sT0, sT1), valu("v_add_u32", NT[3], sT0, vHW),
                ds_wr(NT[2], hk, 0, tag="exw"), ds_wr(NT[3], hv, 4096, tag="exw")]
        bar2 = M2 + 32 - C.D
        q.adds(its, earliest=M2 - 2, deadline=bar2 - 2)
        self.exw_check = (q, len(q.items))
        q.adds(pack(Q0, Q0) + pack(Q0.sub(8, 8), Q1), earliest=M2)
        MASK = v(208, 24)
        q.adds([accr(MASK[r], aMASK[r]) for r in range(24)], earliest=M2)
        SC = K1; SP = v(0, 16); U = v(16, 8); P = v(24, 12); O = Q1
        mx, tm, mc = vRINV, vNB, vW16
        sums = [vHX, vH]; t2 = vTR[4]
        def add(i, ear=0):
            w = [x for x in i.w if x < 128]
            e_ = max([M2 + 4 * (x // 4) + 3 for x in w], default=0)
            q.add(i, earliest=max(e_, ear))
        def qk(h, which):
            if which == 0: add(mfma(SC, K0.sub(4 * h, 4), Q0.sub(4 * h, 4), MASK.sub(0, 16)))
            else: add(mfma(SP, aKP[h], Q0.sub(4 * h, 4), MASK.sub(8, 16)))
        def fin(h):
            o = 8 * (h & 1); sm = sums[h & 1]
            l = [valu("v_rcp_f32", sm, sm)]
            l += [valu("v_mul_f32", O[o + r], O[o + r], sm) for r in range(8)]
            l += [cvt(O[o + r], O[o + 2 * r], O[o + 2 * r + 1]) for r in range(4)]
            l.append(vstore(O.sub(o, 4), vL16, SWS, sStF, 1024 * h, "o", "sc1"))
            return l
        qk(0, 0)
        q.adds([ds_rd(aKP[h], vEX, 1024 * h) for h in range(4)] + [ds_rd(aVP[j], vEX, 4096 + 1024 * j) for j in range(2)], earliest=bar2)
        qk(0, 1)
        for h in range(4):
            for i in range(4): add(valu("v_max_f32", U[i], SC[2 * i], SC[2 * i + 1]))
            for i in range(4, 8): add(valu("v_max3_f32", U[i], SC[2 * i], SC[2 * i + 1], SP[2 * i]))
            if h < 3: qk(h + 1, 0)
            for i in range(4, 8): add(valu("v_max_f32", U[i], U[i], SP[2 * i + 1]))
            add(valu("v_max3_f32", mx, U[0], U[1], U[2])); add(valu("v_max3_f32", tm, U[3], U[4], U[5]))
            if h < 3: qk(h + 1, 1)
            add(valu("v_max3_f32", mx, mx, U[6], U[7])); add(valu("v_max_f32", mx, mx, tm))
            add(valu("v_mov_b32", tm, mx))
            fl = fin(h - 1) if h > 0 else []
            for x in fl[:3]: add(x)
            add(swap32(mx, tm)); add(valu("v_max_f32", mx, mx, tm))
            add(I(f"v_mul_f32 {mc}, -{mx}, {sCSC}", "valu", mx.ids() | sCSC.ids(), mc.ids()))
            for x in fl[3:]: add(x)
            for i in range(8): add(valu("v_fma_f32", U[i], U[i], sCSC, mc))
            for i in range(8): add(valu("v_exp_f32", U[i], U[i]))
            sm = sums[h & 1]; j = h >> 1
            for i in range(4):
                add(cvt(P[i], U[i], U[i])); add(valu("v_and_b32", P[i], vPM, P[i]))
            add(valu("v_add_f32", sm, U[0], U[1])); add(valu("v_add_f32", tm, U[2], U[3]))
            add(mfma(O, V0.sub(8 * j, 4), P.sub(0, 4), 0))
            for i in range(4):
                add(cvt(P[8 + i], U[4 + i], U[4 + i])); add(valu("v_and_b32", P[4 + i], vMHC, P[8 + i]))
            add(valu("v_add_f32", t2, U[4], U[5])); add(valu("v_add_f32", sm, sm, tm))
            add(mfma(O, V0.sub(8 * j + 4, 4), P.sub(4, 4), O))
            for i in range(4): add(valu("v_and_b32", P[8 + i], vMHP, P[8 + i]))
            add(valu("v_add_f32", tm, U[6], U[7])); add(valu("v_add_f32", t2, t2, tm))
            add(mfma(O, aVP[j], P.sub(8, 4), O))
            add(valu("v_add_f32", sm, sm, t2))
            add(valu("v_mov_b32", tm, sm))
            add(swap32(sm, tm)); add(valu("v_add_f32", sm, sm, tm))
        for x in fin(3): add(x)

    def build(self):
        E = self.E
        E.emit(scmp("s_cmp_ge_u32", sWG, 256))
        E.line("s_cbranch_scc1 L_end")
        E.line("s_load_dwordx16 s[8:23], s[0:1], 0")
        E.line("s_load_dwordx4 s[24:27], s[0:1], 64")
        E.emit(salu("s_lshr_b32", sJ, sWG, 3))
        self.code_touch()
        E.emit(I("s_bitcmp1_b32 s6, 3", "salu", sJ.ids(), {SCC}))
        E.line("s_cbranch_scc1 L_typeB")
        snap = E.snapshot()
        self.body("A")
        E.label("L_typeB")
        E.restore(snap)
        self.body("B")
        E.label("L_end")
        E.line("s_endpgm")
        E.label("L_code_end")
        E.out.append(".p2align 12")
        head = open(os.path.join(os.path.dirname(os.path.abspath(__file__)), "head.txt")).read()
        txt = head + f"""; @launch grid=(256,1,1) block=(256,1,1) lds=163840
.amdgcn_target "amdgcn-amd-amdhsa--gfx950"
.text
.globl {NAME}
.p2align 8
.type {NAME},@function
{NAME}:
""" + E.text() + f""".section .rodata,"a"
.p2align 6
.amdhsa_kernel {NAME}
  .amdhsa_next_free_vgpr 512
  .amdhsa_next_free_sgpr 102
  .amdhsa_accum_offset 256
  .amdhsa_group_segment_fixed_size 0
  .amdhsa_kernarg_size 80
  .amdhsa_user_sgpr_count 2
  .amdhsa_user_sgpr_kernarg_segment_ptr 1
  .amdhsa_system_sgpr_workgroup_id_x 1
.end_amdhsa_kernel
"""
        return txt


def place_pads(txt):
    import subprocess, re, tempfile
    sys.path.insert(0, "cdna_kernels")
    from cdna_launch import with_harness_metadata
    lines = txt.split("\n")
    probe = []
    for n, l in enumerate(lines):
        if l.startswith("    ") and not l.strip().startswith(";") and not l.strip().startswith("."): probe.append(f"LP_{n}:")
        probe.append(re.sub(r"L_pad[AB]_\d+", "L_end", l))
    d = tempfile.mkdtemp()
    open(d + "/p.s", "w").write(with_harness_metadata("\n".join(probe), NAME, 10, launch_lists=True))
    subprocess.run(["clang", "-x", "assembler", "-target", "amdgcn-amd-amdhsa", "-mcpu=gfx950", d + "/p.s", "-o", d + "/p.co"], check=True)
    sym = subprocess.run(["llvm-objdump", "-t", d + "/p.co"], capture_output=True, text=True).stdout
    addr = {int(m.group(2)): int(m.group(1), 16) for m in re.finditer(r"([0-9a-f]{16}) .* LP_(\d+)", sym)}
    shift = 0; typ = None; pads = {"A": [], "B": []}; prev = None
    for n, l in enumerate(lines):
        if l.startswith(";PADS_FROM"): typ = l.split()[1]
        if l.startswith("L_typeB:") or l.startswith("L_end:"): typ = None
        if n in addr:
            a_ = addr[n] + shift
            if typ and prev is not None and prev // 4096 != a_ // 4096:
                pads[typ].append(n); shift += 4
            prev = a_
    out = []
    for n, l in enumerate(lines):
        for t in "AB":
            if n in pads[t]:
                k = pads[t].index(n)
                out.append(f"L_pad{t}_{k}:")
                out.append(f"    s_cbranch_execz " + (f"L_pad{t}_{k + 4}" if k + 4 < len(pads[t]) else f"L_back{t}"))
        out.append(l)
    print("pads", {t: len(pads[t]) for t in pads}, "kernel at", hex(min(addr.values())))
    assert min(len(pads[t]) for t in pads) >= 4
    return "\n".join(out)


if __name__ == "__main__":
    g = Gen()
    txt = g.build()
    if C.pads: txt = place_pads(txt)
    open(sys.argv[1], "w").write(txt)
    print("instructions:", g.E.ninst)
```

```python
A0 = 256
S0 = 1000
VCC, EXEC, M0, SCC = 1200, 1201, 1202, 1203


class R:
    __slots__ = ("f", "lo", "n")

    def __init__(self, f, lo, n=1):
        self.f, self.lo, self.n = f, lo, n

    def __str__(self):
        if self.n == 1:
            return f"{self.f}{self.lo}"
        return f"{self.f}[{self.lo}:{self.lo + self.n - 1}]"

    def ids(self):
        base = {"v": 0, "a": A0, "s": S0}[self.f]
        return set(range(base + self.lo, base + self.lo + self.n))

    def sub(self, off, n=1):
        assert off + n <= self.n, (str(self), off, n)
        return R(self.f, self.lo + off, n)

    def __getitem__(self, i):
        return self.sub(i, 1)


def v(lo, n=1): return R("v", lo, n)
def a(lo, n=1): return R("a", lo, n)
def s(lo, n=1): return R("s", lo, n)


def ids(x):
    if isinstance(x, R):
        return x.ids()
    if x == "vcc": return {VCC}
    if x == "exec": return {EXEC}
    if x == "m0": return {M0}
    return set()


def fmt(x):
    if isinstance(x, R): return str(x)
    if isinstance(x, float): return repr(x)
    if isinstance(x, int):
        if -16 <= x <= 64: return str(x)
        return hex(x & 0xffffffff)
    return str(x)


VMCOST = 2
TRANS = ("v_exp_f32", "v_log_f32", "v_rcp_f32", "v_rsq_f32", "v_sqrt_f32")


class I:
    __slots__ = ("t", "k", "r", "w", "tag", "c", "d", "na", "counted", "passes", "cost", "dead")

    def __init__(self, t, k, r=(), w=(), tag=None):
        self.t, self.k = t, k
        self.r, self.w = set(r), set(w)
        self.tag = tag
        self.c = set()
        self.d = set()
        self.na = set()
        self.counted = True
        self.passes = 8
        self.cost = 1
        self.dead = False


def valu(op, d, *src, rd=False, mods=""):
    r = set()
    for x in src: r |= ids(x)
    w = ids(d)
    if rd: r |= w
    k = "trans" if op in TRANS else ("dot" if op.startswith("v_dot") else "valu")
    i = I(f"{op} {fmt(d)}, " + ", ".join(fmt(x) for x in src) + (" " + mods if mods else ""), k, r, w)
    if k == "trans": i.cost = 2
    return i


def vcmp(op, d, x, y):
    return I(f"{op} {fmt(d)}, {fmt(x)}, {fmt(y)}", "valu", ids(x) | ids(y), ids(d))


def cndmask(d, f, t, m):
    return I(f"v_cndmask_b32 {d}, {fmt(f)}, {fmt(t)}, {fmt(m)}", "valu", ids(f) | ids(t) | ids(m), ids(d))


def swap32(x, y):
    return I(f"v_permlane32_swap_b32 {x}, {y}", "perm", ids(x) | ids(y), ids(x) | ids(y))


def swap16(x, y):
    return I(f"v_permlane16_swap_b32 {x}, {y}", "perm", ids(x) | ids(y), ids(x) | ids(y))


def rfl(d, x):
    return I(f"v_readfirstlane_b32 {d}, {x}", "rfl", ids(x), ids(d))


def accr(d, x): return I(f"v_accvgpr_read_b32 {d}, {x}", "valu", ids(x), ids(d))
def accw(d, x): return I(f"v_accvgpr_write_b32 {d}, {fmt(x)}", "valu", ids(x), ids(d))


def salu(op, d, *src, scc_w=True, scc_r=False):
    r = set()
    for x in src: r |= ids(x)
    if scc_r: r.add(SCC)
    w = ids(d)
    if scc_w: w = w | {SCC}
    return I(f"{op} {fmt(d)}, " + ", ".join(fmt(x) for x in src), "salu", r, w)


def smov(d, x): return salu("s_mov_b32", d, x, scc_w=False)


def scmp(op, x, y):
    return I(f"{op} {fmt(x)}, {fmt(y)}", "salu", ids(x) | ids(y), {SCC})


def mfma(D, A, B, C, shape="32x32x16"):
    i = I(f"v_mfma_f32_{shape}_bf16 {D}, {A}, {B}, {fmt(C)}", "mfma", ids(A) | ids(B) | ids(C), ids(D))
    i.c = ids(C); i.na = ids(A) | ids(B)
    i.passes = 8 if shape == "32x32x16" else 4
    return i


def ds_tr(d, addr, off, tag=None):
    assert 0 <= off < 65536, off
    return I(f"ds_read_b64_tr_b16 {d}, {addr} offset:{off}", "dsr", ids(addr), ids(d), tag)


def ds_rd(d, addr, off, tag=None):
    assert 0 <= off < 65536, off
    op = {1: "ds_read_b32", 2: "ds_read_b64", 4: "ds_read_b128"}[d.n]
    return I(f"{op} {d}, {addr} offset:{off}", "dsr", ids(addr), ids(d), tag)


def ds_wr(addr, x, off, tag=None):
    assert 0 <= off < 65536, off
    op = {1: "ds_write_b32", 2: "ds_write_b64", 4: "ds_write_b128"}[x.n]
    return I(f"{op} {addr}, {x} offset:{off}", "dsw", ids(addr) | ids(x), (), tag)


def _vo(voff):
    return ("off", "") if voff is None else (str(voff), " offen")


def dma(voff, srd, soff, imm=0, tag=None, fl=""):
    assert 0 <= imm < 4096
    t = f"buffer_load_dwordx4 {voff}, {srd}, {fmt(soff)} offen" + (f" offset:{imm}" if imm else "") + (" " + fl if fl else "") + " lds"
    i = I(t, "dma", ids(voff) | ids(srd) | ids(soff) | {M0}, (), tag); i.cost = VMCOST
    return i


def vload(d, voff, srd, soff, imm=0, tag=None, fl=""):
    assert 0 <= imm < 4096
    op = {1: "buffer_load_dword", 2: "buffer_load_dwordx2", 4: "buffer_load_dwordx4"}[d.n]
    vo, en = _vo(voff)
    t = f"{op} {d}, {vo}, {srd}, {fmt(soff)}{en}" + (f" offset:{imm}" if imm else "") + (" " + fl if fl else "")
    i = I(t, "vml", ids(voff) | ids(srd) | ids(soff), ids(d), tag); i.cost = VMCOST
    return i


def vstore(x, voff, srd, soff, imm=0, tag=None, fl=""):
    assert 0 <= imm < 4096
    op = {1: "buffer_store_dword", 2: "buffer_store_dwordx2", 4: "buffer_store_dwordx4"}[x.n]
    vo, en = _vo(voff)
    t = f"{op} {x}, {vo}, {srd}, {fmt(soff)}{en}" + (f" offset:{imm}" if imm else "") + (" " + fl if fl else "")
    i = I(t, "vms", ids(voff) | ids(srd) | ids(soff) | ids(x), (), tag)
    i.cost = VMCOST
    if x.n >= 3: i.d = ids(x)
    return i


def raw(t, k="other", r=(), w=()):
    return I(t, k, r, w)


class Emitter:
    LG_OLD = 10

    def __init__(self):
        self.out = []
        self.pos = 0
        self.reset_state()
        self.ninst = 0

    def reset_state(self):
        self.w_valu = {}; self.w_trans = {}; self.w_dot = {}; self.w_mfma = {}
        self.c_mfma = {}; self.w_vsgpr = {}; self.st_data = {}
        self.m0_pos = -100
        self.lq = []
        self.vq = []

    def snapshot(self):
        import copy
        return copy.deepcopy((self.pos, self.w_valu, self.w_trans, self.w_dot, self.w_mfma, self.c_mfma,
                              self.w_vsgpr, self.st_data, self.m0_pos, self.lq, self.vq))

    def restore(self, snap):
        import copy
        (self.pos, self.w_valu, self.w_trans, self.w_dot, self.w_mfma, self.c_mfma,
         self.w_vsgpr, self.st_data, self.m0_pos, self.lq, self.vq) = copy.deepcopy(snap)

    def nops(self, i):
        need = 0
        p = self.pos
        isv = i.k in ("valu", "trans", "dot", "perm", "rfl")
        mem = i.k in ("dsr", "dsw", "dma", "vml", "vms")

        def req(q, n):
            nonlocal need
            need = max(need, q + n + 1 - p)

        tab_valu = {8: 12, 4: 8}
        tab_part = {8: 10, 4: 6}
        tab_war = {8: 7, 4: 3}
        if i.k == "mfma":
            for x in i.r:
                if x in self.w_valu: req(self.w_valu[x], 2)
                if x in self.w_dot: req(self.w_dot[x][0], 3)
            for x in i.na:
                if x in self.w_mfma: req(self.w_mfma[x][0], tab_valu[self.w_mfma[x][2]])
            for x in i.c:
                if x in self.w_mfma:
                    q, dset, ps = self.w_mfma[x]
                    if not (dset == i.c and ps == i.passes): req(q, tab_part[ps])
            for x in i.w - i.c:
                if x in self.w_mfma: req(self.w_mfma[x][0], tab_valu[self.w_mfma[x][2]])
        if isv or mem:
            for x in (i.r | i.w):
                if x in self.w_mfma: req(self.w_mfma[x][0], tab_valu[self.w_mfma[x][2]])
        if isv:
            for x in i.w:
                if x in self.c_mfma: req(self.c_mfma[x][0], tab_war[self.c_mfma[x][1]])
                if x in self.st_data: req(self.st_data[x], 2)
            for x in i.r:
                if x in self.w_trans and i.k != "trans": req(self.w_trans[x], 1)
                if x in self.w_vsgpr: req(self.w_vsgpr[x], 2)
            op = i.t.split()[0]
            for x in (i.r | i.w):
                if x in self.w_dot:
                    q, o = self.w_dot[x]
                    if not (i.k == "dot" and o == op and x in i.w): req(q, 3)
            if i.k == "perm":
                for x in i.r:
                    if x in self.w_valu: req(self.w_valu[x], 2)
            if i.k == "rfl":
                for x in i.r:
                    if x in self.w_valu: req(self.w_valu[x], 1)
        if mem:
            for x in i.r:
                if x in self.w_vsgpr: req(self.w_vsgpr[x], 5)
                if x in self.w_dot: req(self.w_dot[x][0], 3)
                if x in self.w_trans: req(self.w_trans[x], 1)
            for x in i.w:
                if x in self.st_data: req(self.st_data[x], 1)
                if x in self.c_mfma: req(self.c_mfma[x][0], tab_war[self.c_mfma[x][1]])
        if i.k == "dma": req(self.m0_pos, 1)
        if i.k == "salu":
            for x in i.r:
                if x in self.w_vsgpr: req(self.w_vsgpr[x], 3)
        return max(0, need)

    def _pending(self, q, i):
        touch = i.r | i.w
        last = -1
        for n, e in enumerate(q):
            if e[1] & touch: last = n
        return last

    def dep_age(self, i):
        n = self._pending(self.lq, i); m = self._pending(self.vq, i)
        return (self.pos - self.lq[n][0] if n >= 0 else 10 ** 6, self.pos - self.vq[m][0] if m >= 0 else 10 ** 6)

    def line(self, t, states=1):
        self.out.append("    " + t)
        self.pos += states
        self.ninst += 1

    def label(self, name):
        self.out.append(name + ":")

    def comment(self, t):
        self.out.append("    ; " + t)

    def _wait(self, ln, vn):
        parts = []
        if vn >= 0:
            n = sum(1 for e in self.vq[vn + 1:] if e[3])
            if n < 63: parts.append(f"vmcnt({n})")
            else: parts.append("vmcnt(62)")
            self.vq = self.vq[vn + 1:]
        if ln >= 0:
            while ln + 1 < len(self.lq) and self.pos - self.lq[ln + 1][0] >= self.LG_OLD: ln += 1
            n = len(self.lq) - 1 - ln
            parts.append(f"lgkmcnt({min(n, 15)})")
            self.lq = self.lq[ln + 1:]
        if parts: self.line("s_waitcnt " + " ".join(parts))

    def wait_tags(self, lds=(), vm=()):
        ln = max([n for n, e in enumerate(self.lq) if e[2] in lds], default=-1)
        vn = max([n for n, e in enumerate(self.vq) if e[2] in vm], default=-1)
        self._wait(ln, vn)

    def wait_all_lds(self):
        if self.lq: self._wait(len(self.lq) - 1, -1)

    def wait_all_vm(self):
        self.line("s_waitcnt vmcnt(0)"); self.vq = []

    def emit(self, i):
        self._wait(self._pending(self.lq, i), self._pending(self.vq, i))
        n = self.nops(i)
        while n > 0:
            k = min(n, 16)
            self.line(f"s_nop {k - 1}", k); n -= k
        p = self.pos
        self.line(i.t)
        isv = i.k in ("valu", "trans", "dot", "perm", "rfl")
        for x in i.w:
            for dct in (self.w_valu, self.w_trans, self.w_dot, self.w_mfma, self.w_vsgpr):
                dct.pop(x, None)
        if isv:
            for x in i.w:
                if x >= S0: self.w_vsgpr[x] = p
                else: self.w_valu[x] = p
                if i.k == "trans": self.w_trans[x] = p
                if i.k == "dot": self.w_dot[x] = (p, i.t.split()[0])
        if i.k == "mfma":
            for x in i.w: self.w_mfma[x] = (p, frozenset(i.w), i.passes)
            for x in i.c: self.c_mfma[x] = (p, i.passes)
        if i.k == "salu" and M0 in i.w: self.m0_pos = p
        for x in i.d: self.st_data[x] = p
        if i.k in ("dsr", "dsw"): self.lq.append([p, set(i.w), i.tag])
        if i.k in ("dma", "vml", "vms"): self.vq.append([p, set(i.w), i.tag, i.counted])

    def emits(self, lst):
        for i in lst: self.emit(i)

    def barrier(self):
        self.line("s_barrier")

    def text(self):
        return "\n".join(self.out) + "\n"


class Q:
    def __init__(self, name, lds_age=14, vm_age=200, hard=True, top=False):
        self.name = name; self.items = []; self.n = 0; self.hard = hard; self.top = top
        self.lds_age = lds_age; self.vm_age = vm_age

    def add(self, i, earliest=0, deadline=10 ** 9, hard=None):
        self.items.append((i, earliest, deadline, self.hard if hard is None else hard))

    def adds(self, lst, earliest=0, deadline=10 ** 9, hard=None):
        for i in lst: self.add(i, earliest, deadline, hard)

    def empty(self): return self.n >= len(self.items)
    def head(self): return self.items[self.n]


def run_item(E, it):
    if getattr(it, "dead", False): return
    if callable(it): it(E)
    else: E.emit(it)


def glue(lst):
    def f(E): E.emits(lst)
    return f


def m0_busy(q):
    for x in q.items[q.n:q.n + 12]:
        it = x[0]
        if callable(it): continue
        if it.k == "dma": return True
        if M0 in it.w: return False
    return False


def step(E, q, queues):
    it = q.head()[0]
    if not callable(it) and M0 in it.w:
        own = getattr(E, "m0_owner", None)
        if own is not None and own is not q:
            while m0_busy(own): step(E, own, queues)
        E.m0_owner = q
    q.n += 1
    run_item(E, it)


def is_vm(it):
    return getattr(it, "vm", False) if callable(it) else it.k in ("dma", "vml")


def lead(q):
    for x in q.items[q.n:q.n + 6]:
        it = x[0]
        if callable(it):
            if getattr(it, "vm", False): return it
            continue
        if it.k != "salu": return it
    return None


class Pool:
    def __init__(self): self.slots = []
    def add(self, reg, kinds, avail=None):
        for k in range(reg.n // 4): self.slots.append(dict(r=reg.sub(4 * k, 4), kinds=kinds, avail=avail, busy=False, pos=-100))
    def find(self, E, kind):
        c = [x for x in self.slots if kind in x["kinds"] and not x["busy"] and E.pos - x["pos"] >= 8 and (x["avail"] is None or x["avail"]())]
        c.sort(key=lambda x: len(x["kinds"]))
        return c[0] if c else None
    def take(self, E, kind):
        x = self.find(E, kind); assert x is not None, ("no free slot", kind, E.gap)
        x["busy"] = True; return x
    def give(self, E, x): x["busy"] = False; x["pos"] = E.pos


def schedule(E, mains, queues, cap, g0=0, flush=True, vm_gap=1):
    def blocked(q):
        own = getattr(E, "m0_owner", None)
        if own is None or own is q or not m0_busy(own): return False
        nx = next((x[0] for x in q.items[q.n:q.n + 2] if not callable(x[0])), None)
        return nx is not None and M0 in nx.w

    def getm(mn, peek=False):
        return mn["m"](peek) if callable(mn["m"]) else mn["m"]

    budget = 0.0
    reserved = 0
    last_vm = -100
    INF = 10 ** 9
    for n, mn in enumerate(mains):
        g = g0 + n
        E.gap = g
        if getattr(E, "trace", False): print(g, {q.name: (q.n, len(q.items)) for q in queues}, round(budget, 1))
        vg = vm_gap(g) if callable(vm_gap) else vm_gap
        p0 = E.pos
        for q in queues:
            last = -1
            for k in range(q.n, len(q.items)):
                if q.items[k][3] and q.items[k][2] <= g: last = k
            while q.n <= last: step(E, q, queues)
        for it in mn.get("pre", ()): run_item(E, it)
        E.emit(getm(mn))
        c = cap(g) if callable(cap) else cap
        budget = max(min(budget + reserved - (E.pos - p0 - 1), 0.99), -1.5) + c
        p0 = E.pos
        for it in mn.get("fix", ()): run_item(E, it)
        budget -= E.pos - p0
        reserved = 0
        if n + 1 < len(mains):
            nm = getm(mains[n + 1], True)
            if nm is not None and (E._pending(E.lq, nm) >= 0 or E._pending(E.vq, nm) >= 0): reserved += 1
            reserved += mains[n + 1].get("npre", 0)
        budget -= reserved
        while True:
            cands = []
            for q in queues:
                while not q.empty() and getattr(q.head()[0], "dead", False): q.n += 1
                if q.empty(): continue
                it, ear, dl, _h = q.head()
                if ear > g or blocked(q): continue
                if callable(it) and hasattr(it, "ready") and not it.ready(E): continue
                nxt = lead(q)
                vm = nxt is not None and is_vm(nxt)
                if vm and (g - last_vm < vg or (hasattr(nxt, "ready") and not nxt.ready(E))): continue
                if not callable(it):
                    if E.nops(it) > 0: continue
                    la, va = E.dep_age(it)
                    if la < q.lds_age or va < q.vm_age: continue
                dl = min(x[2] for x in q.items[q.n:q.n + 40])
                st = nxt is not None and not callable(nxt) and nxt.k == "vms"
                cands.append(((0 if q.top else (1 if (vm or st) else 2), dl), q, vm))
            if not cands: break
            cands.sort(key=lambda x: x[0])
            pick = None
            for key, q, vm in cands:
                it = q.head()[0]
                forced = False
                hd = [k for k in range(q.n, min(len(q.items), q.n + 60)) if q.items[k][3] and q.items[k][2] < INF]
                if hd:
                    d0 = min(q.items[k][2] for k in hd)
                    last = max(k for k in hd if q.items[k][2] <= d0)
                    forced = (last - q.n + 1) > (d0 - g - 1) * 5
                free = callable(it) and not is_vm(it)
                if budget >= 1.0 or forced or free or (vm and key[1] - g <= 24 and budget >= -1.0):
                    pick = q; break
            if pick is None: break
            it = pick.head()[0]
            p0 = E.pos
            step(E, pick, queues)
            budget -= E.pos - p0
            if is_vm(it): last_vm = g; budget -= VMCOST - 1
            elif not callable(it):
                budget -= it.cost - 1
                if it.k == "mfma": budget += (c + 1) if it.passes == 8 else 3
    if flush:
        for q in queues:
            while not q.empty(): step(E, q, queues)
```

```python
import sys, os
sys.path.insert(0, os.path.dirname(os.path.abspath(__file__)))
from emit import *

NAME = "recurrent_scan__sliding_local_dilated__glu_gated_bilinear__prompt_kernel"

class Cfg:
    stamps = False
    stset = "a"
    rt = False
    D = 6
    nahead = 4; cap1A = 7.0; cap1B = 6.5; cap1t = 8.0; cap2h = 9.0; cap2A = 6.0; cap2B = 7.0; cap3 = 7.0; cap2t = 7.5; cap3x = 20.0
    npre = 120
    gate0A = -8; gate0B = -30
    rot = True
    pads = True
    la1 = 12; la2 = 12; la3 = 12
    polld = 10
    flagd = 450
    b2lead = 22; a2lead = 24; att_end = 30
    rot2 = True; flagl = 160
    raw = True; raw0 = 40
    touch_w0 = True
    touch_code = True
    touch_b2 = True
    a2_fl = "sc1"; st_fl = "sc1"; pre_a2 = 0; x_fl = ""; w_fl = ""; b2_fl = ""; out_fl = ""
    spin_max = 1 << 16

C = Cfg()
for arg in sys.argv[2:]:
    k, val = arg.split("=")
    old = getattr(C, k)
    setattr(C, k, (val not in ("0", "False")) if isinstance(old, bool) else type(old)(val.replace("+", " ")))

WS_FLAG = 0x900000
WS_EPOCH = 0xA00000
WS_STAMP = 0xB00000
WS_SIZE = 0xC00000
TB = 131072

sWG = s(2); sW = s(3); sRB = s(4); sIDX = s(5); sJ = s(6); sXCD = s(7)
SX, SWO, SWG_, SWD, SDBG, SP5, SWU, SOUT, SWS, SP9 = [s(8 + 4 * i, 4) for i in range(10)]
SQKV = SWG2 = SP5; SWH = SWU2 = SP9
(sA2s, sB2s, sM0B, sT0, sT1, sS1, sS2, sS2b, sTAG, sFLW, sFLR, sStF, sStH, sSt2, sHI, sONE, sSPIN, sT2, sOut, sT5,
 sRT, sCT, sKH, sCSC, sXs, sM0T, sXo, sXk, sROT, sC512, sA2c0, sA2c1, sA2c2, sB2c0, sB2c1, sB2c2) = [s(48 + i) for i in range(36)]
sA2c = [sA2c0, sA2c1, sA2c2]; sB2c = [sB2c0, sB2c1, sB2c2]
sG3 = [sB2c0, s(0), s(1), s(4)]; sG1 = [sB2c2, s(5), s(6), s(7)]
sHo = sB2s
sPC = s(48, 2)
STAMP0 = 84

def X(ks): return v(4 * ks, 4)
def ACC1(t): return v(128 + 16 * t, 16)
NT = [v(224 + i) for i in range(8)]
vTR = [v(232 + i) for i in range(6)]
vG = v(238); vU = v(239); vH = v(240)
vB2 = v(241); vTW = v(242)
vL16 = v(243); vRINV = v(244); vNB = v(245); vW16 = v(246); vHX = v(247)
vTAG = v(248); vPOLL = v(249); vP4 = v(250); vTB = vTAG
vEX = v(251); vHW = v(252); vPM = v(253); vMHC = v(254); vMHP = v(255)
vTR2T = [v(42), v(43)]; vTR2 = [v(44), v(45)]; vWQ = v(46)
PARKED = vTR2T + vTR2
E2T = v(48, 16)
ACCD = [v(64, 16), v(80, 16)]; ACCS = [v(96, 16), v(112, 16)]
def WF(m): return a(4 * (m % 12), 4)
def ACC2(t): return a(48 + 16 * t, 16)
aMASK = a(112, 24); aKP = [a(136 + 4 * i, 4) for i in range(4)]; aVP = [a(152 + 4 * i, 4) for i in range(2)]
aHACC = [a(160, 4), a(164, 4)]; aXH = [a(168, 4), a(172, 4)]
aW16 = [[a(176, 4), a(180, 4)], [a(184, 4), a(188, 4)]]
aPARK = 192
aDUM0 = a(199); vDUM1 = v(37)

NEG = 0xf149f2ca


class LDSMap:
    def __init__(self):
        self.own = {c: ("x", c // 4) for c in range(32)}
        for c in range(32, 40): self.own[c] = ("T",)
        self.last_use = {}
        self.visible = set()
        self.bar_m = -1
        self.xread = set()
    def alloc(self, obj, chunks):
        for c in chunks:
            o = self.own[c]
            if o[0] == "x": assert o[1] in self.xread, (obj, c, o)
            else: assert self.last_use[o] <= self.bar_m, (obj, c, o, self.last_use[o], self.bar_m)
            self.own[c] = obj
    def check_read(self, obj, chunks):
        assert obj in self.visible, ("not visible", obj)
        for c in chunks: assert self.own[c] == obj, (obj, c, self.own[c])


SHIFT = [48, 8, 16]


def step_info(n):
    if n < 32: return 16 + 12 * (n >> 3) + (n & 7), 0, 0
    if n < 40: return n - 32, 1, 1
    if n < 56: return 112 + n - 40, 2, 3
    return 24 + 12 * ((n - 56) >> 2) + ((n - 56) & 3), 0, 2


class Gen:
    def __init__(self):
        self.E = Emitter()
        self.E.trace = bool(os.environ.get("TRACE"))
        self.nlabel = 0
        self.nstamp = 0

    def lab(self, base):
        self.nlabel += 1
        return f"L_{base}_{self.nlabel}"

    STS = {"a": ["t0", "issued", "x0", "xdone", "s1", "s2", "p2", "lastm", "end"],
           "b": ["t0", "g0a", "g0b", "p2", "g1a", "g1b", "g2a", "g2b", "end"],
           "e": ["t0", "karg", "issued", "rest", "pads", "x0", "x1", "x3", "end"],
           "f": ["t0", "x4", "x5", "x6", "x7", "xdone", "s1", "b1", "end"],
           "g": ["t0", "s1", "b1a", "b1", "b2a", "b2", "b3a", "b3", "end"],
           "h": ["t0", "b3", "b4", "b5", "b6", "b7", "b8", "s2", "end"],
           "j": ["t0", "g2b", "n48", "n55", "n56", "n60", "n64", "n71", "end"],
           "k": ["t0", "g0b", "n0", "n4", "n8", "n16", "n24", "n31", "end"],
           "l": ["t0", "g1b", "g3b", "n31", "n32", "n39", "n40", "n47", "end"],
           "m": ["t0", "n0", "n8", "n16", "n24", "n32", "n40", "n56", "end"],
           "n": ["t0", "c0a", "c0", "c1a", "c1", "c2a", "c2", "c3a", "c3"],
           "o": ["t0", "c4a", "c4", "c5a", "c5", "c6a", "c6", "c7a", "c7"],
           "p": ["t0", "g0a", "g0b", "g1a", "g1b", "g3a", "g3b", "g2a", "g2b"],
           "q": ["t0", "s2", "f0a", "f0b", "g0a", "g0b", "f2a", "f2b", "end"],
           "i": ["t0", "s2", "g0a", "g0b", "p2", "c1", "g1a", "g1b", "end"],
           "d": ["t0", "p2", "g1b", "g3a", "g3b", "g2a", "g2b", "lastm", "end"],
           "c": ["t0", "p2", "c1", "c3", "c5", "c7", "lastm", "sbar", "end"]}

    def stamp(self, name):
        if C.stamps and name in self.STS[C.stset]:
            k = self.STS[C.stset].index(name)
            self.E.line(f"{'s_memrealtime' if C.rt else 's_memtime'} s[{STAMP0 + 2 * k}:{STAMP0 + 2 * k + 1}]")

    def setup_first(self, typ):
        o = []; e = o.append
        lane = self.lane; vx = self.vx; t0, t1, t2 = v(201), v(202), v(203)
        e(valu("v_and_b32", lane, 63, v(0)))
        e(valu("v_lshrrev_b32", t0, 6, v(0)))
        e(salu("s_and_b32", sXCD, sWG, 7))
        e(rfl(sW, t0))
        e(salu("s_and_b32", sRB, sXCD, 1)); e(salu("s_lshl_b32", sRB, sRB, 3))
        e(salu("s_and_b32", sT0, sJ, 7)); e(salu("s_add_u32", sRB, sRB, sT0))
        e(salu("s_and_b32", sIDX, sXCD, 6)); e(salu("s_lshr_b32", sT0, sJ, 4)); e(salu("s_add_u32", sIDX, sIDX, sT0))
        e(valu("v_and_b32", t0, 7, lane)); e(valu("v_lshrrev_b32", t1, 4, lane)); e(valu("v_xor_b32", t0, t0, t1))
        e(valu("v_lshlrev_b32", t0, 4, t0))
        e(valu("v_lshrrev_b32", t1, 3, lane)); e(valu("v_lshlrev_b32", t1, 10, t1))
        e(valu("v_or_b32", vx[0], t0, t1)); e(valu("v_xor_b32", t2, 64, vx[0]))
        e(valu("v_add_u32", vx[1], 7168, t2)); e(valu("v_add_u32", vx[2], 2 * 7168, vx[0])); e(valu("v_add_u32", vx[3], 3 * 7168, t2))
        e(salu("s_lshl_b32", sM0B, sW, 15))
        e(salu("s_lshl_b32", sT0, sRB, 17)); e(salu("s_add_u32", sXo, sT0, sM0B))
        e(salu("s_lshr_b32", sT1, sJ, 3)); e(salu("s_add_u32", sT1, sT1, sJ)); e(salu("s_and_b32", sROT, sT1, 3 if C.rot else 0))
        e(salu("s_lshl_b32", sXk, sROT, 8))
        e(smov(SWS[2], WS_SIZE)); e(smov(SWS[3], 0x20000))
        if typ == "A":
            e(smov(SQKV[2], 512 * 3072)); e(smov(SQKV[3], 0x20000))
            hs = self.hs
            e(salu("s_sub_u32", sT1, sT0, 16 * 1024))
            e(valu("v_add_u32", hs[0], sT1, vx[0])); e(salu("s_add_u32", sT1, sT1, 1024)); e(valu("v_add_u32", hs[1], sT1, vx[1]))
            e(salu("s_add_u32", sHo, sW, sROT)); e(salu("s_and_b32", sHo, sHo, 3)); e(salu("s_lshl_b32", sHo, sHo, 8))
            e(salu("s_lshr_b32", sS2b, sM0B, 3))
            e(salu("s_lshl_b32", sT2, sIDX, 1))
            e(salu("s_lshl_b32", sS1, sIDX, 7))
        else:
            e(salu("s_mul_i32", sT2, sIDX, 12, scc_w=False)); e(salu("s_add_u32", sT2, sT2, 24))
            e(salu("s_lshl_b32", sS1, sT2, 5)); e(salu("s_sub_u32", sS1, sS1, 256))
            for d, sh in ((SWU, 1024), (SWG2, 1920), (SWU2, 2944)):
                e(smov(d[2], 512 * 3584 + sh)); e(smov(d[3], 0x20000))
        st1 = 3072 if typ == "A" else 3584
        e(salu("s_mul_i32", sT0, sROT, 128 * st1, scc_w=False)); e(salu("s_add_u32", sS1, sS1, sT0))
        if C.touch_w0:
            e(valu("v_and_b32", t0, 7, lane)); e(valu("v_mul_u32_u24", t0, st1, t0))
            if typ == "A":
                e(valu("v_bfe_u32", t1, lane, 3, 2)); e(valu("v_min_u32", t1, 2, t1)); e(valu("v_lshlrev_b32", t1, 10, t1))
            else:
                e(valu("v_bfe_u32", t1, lane, 3, 1)); e(valu("v_lshlrev_b32", t1, 7, t1))
            e(valu("v_add_u32", vTW, t0, t1))
            e(salu("s_and_b32", sT0, sJ, 4)); e(salu("s_add_u32", sT0, sT0, sW)); e(salu("s_mul_i32", sT0, sT0, 8 * st1, scc_w=False))
            e(salu("s_add_u32", sT5, sT0, sS1))
        return o

    def touch(self, voff, srd_, soff, imm=0, dst=None, fl=""):
        i = vload(dst or aDUM0, voff, srd_, soff, imm, fl=fl); i.w = set(); return i

    def consts(self, typ):
        o = []; e = o.append
        lane = self.lane
        t = [v(208 + i) for i in range(8)]
        li, g4, r2, hh, ub = v(190), v(191), v(192), v(193), v(194)
        e(valu("v_and_b32", li, 15, lane)); e(valu("v_lshrrev_b32", g4, 4, lane)); e(valu("v_lshrrev_b32", hh, 5, lane))
        e(valu("v_and_b32", ub, 1, g4)); e(valu("v_lshrrev_b32", r2, 2, li))
        e(valu("v_lshlrev_b32", vL16, 4, lane))
        e(smov(sHI, 0xffff0000)); e(smov(sONE, 0x3f803f80)); e(smov(sC512, 0x3b000000)); e(smov(sCSC, 0x3eb8aa3b))
        xa = self.xa
        e(valu("v_and_b32", t[0], 31, lane)); e(valu("v_lshlrev_b32", t[1], 7, t[0]))
        e(valu("v_bfe_u32", t[0], lane, 1, 3)); e(valu("v_xor_b32", t[0], t[0], hh)); e(valu("v_lshlrev_b32", t[0], 4, t[0]))
        e(valu("v_add_u32", t[1], sM0B, t[1]))
        for q in range(4):
            e(valu("v_xor_b32", t[2], 32 * q, t[0])); e(valu("v_add_u32", xa[q], t[1], t[2]))
        for r_ in self.acc: e(valu("v_mov_b32", r_, 0))
        if typ == "A":
            ha = self.ha
            e(valu("v_lshlrev_b32", t[1], 7, li)); e(valu("v_lshrrev_b32", t[0], 1, li)); e(valu("v_xor_b32", t[0], t[0], g4))
            e(valu("v_lshlrev_b32", t[0], 4, t[0]))
            e(salu("s_add_u32", sT0, sS2b, TB)); e(valu("v_add_u32", t[1], sT0, t[1]))
            e(valu("v_add_u32", ha[0], t[1], t[0])); e(valu("v_xor_b32", t[0], 64, t[0])); e(valu("v_add_u32", ha[1], t[1], t[0]))
            for r_ in self.hacc: e(valu("v_mov_b32", r_, 0))
            e(valu("v_add_u32", vHX, TB + 16384, vL16))
            e(valu("v_lshlrev_b32", ha[2], 3, lane)); e(valu("v_add_u32", ha[2], TB, ha[2])); e(valu("v_add_u32", ha[3], sS2b, ha[2]))
            e(valu("v_add_u32", ha[4], sS2b, vHX))
        e(salu("s_and_b32", sT0, sW, 1)); e(salu("s_lshl_b32", sT0, sT0, 4))
        e(salu("s_lshr_b32", sKH, sW, 1)); e(salu("s_lshl_b32", sT1, sKH, 3)); e(salu("s_add_u32", sT1, sT1, sT0))
        e(valu("v_lshrrev_b32", t[0], 3, lane)); e(valu("v_and_b32", t[1], 2, t[0])); e(valu("v_lshlrev_b32", t[1], 5, t[1]))
        e(valu("v_and_b32", t[2], 7, lane)); e(valu("v_lshlrev_b32", t[2], 4, t[2])); e(valu("v_xor_b32", t[2], t[2], t[1]))
        e(valu("v_add_u32", t[3], sT1, t[0]))
        if typ == "A":
            e(valu("v_mul_u32_u24", t[4], 3072, t[3])); e(valu("v_add_u32", vH, t[4], t[2]))
            e(salu("s_lshl_b32", sT0, sT0, 1))
            e(valu("v_lshrrev_b32", t[4], 2, lane)); e(valu("v_add_u32", t[4], sT0, t[4])); e(valu("v_mul_u32_u24", t[4], 3584, t[4]))
            e(valu("v_and_b32", t[5], 3, lane)); e(valu("v_lshlrev_b32", t[5], 4, t[5]))
            e(salu("s_lshl_b32", sT1, sKH, 5)); e(valu("v_xor_b32", t[5], sT1, t[5]))
            e(valu("v_add_u32", vG, t[4], t[5]))
            e(salu("s_lshl_b32", sS2, sT2, 5))
            e(smov(SWH[2], 512 * 3584)); e(smov(SWH[3], 0x20000))
        else:
            e(valu("v_mul_u32_u24", t[4], 3584, t[3])); e(valu("v_add_u32", vG, t[4], t[2]))
            e(valu("v_xor_b32", t[5], 32, t[2])); e(valu("v_add_u32", vU, t[4], t[5]))
            e(salu("s_mul_i32", sT0, sT0, 3584, scc_w=False))
            e(salu("s_lshl_b32", sS2, sT2, 5)); e(salu("s_add_u32", sS2, sS2, sT0))
        e(salu("s_mul_i32", sT0, sROT, 128 * 3584, scc_w=False)); e(salu("s_add_u32", sS2, sS2, sT0))
        e(salu("s_lshl_b32", sT0, sRB, 2)); e(salu("s_add_u32", sT0, sT0, sW))
        e(salu("s_mul_i32", sT1, sT0, 144, scc_w=False))
        e(salu("s_add_u32", sSt2, sT1, sT2)); e(salu("s_lshl_b32", sSt2, sSt2, 10))
        if typ == "A":
            e(salu("s_lshl_b32", sStF, sT2, 10)); e(salu("s_add_u32", sStF, sStF, sSt2)); e(salu("s_add_u32", sStF, sStF, 112 * 1024))
        else:
            e(salu("s_sub_u32", sStF, sSt2, 8192)); e(salu("s_sub_u32", sStH, sSt2, 4096))
        e(salu("s_lshl_b32", sT0, sT0, 1)); e(salu("s_lshr_b32", sT1, sIDX, 2)); e(salu("s_add_u32", sT0, sT0, sT1))
        e(salu("s_lshl_b32", sT0, sT0, 9))
        e(salu("s_and_b32", sT1, sIDX, 3)); e(salu("s_lshl_b32", sT1, sT1, 2))
        e(salu("s_add_u32", sT0, sT0, sT1)); e(salu("s_add_u32", sFLW, sT0, WS_FLAG))
        e(valu("v_and_b32", vP4, 3, lane)); e(valu("v_lshlrev_b32", vP4, 2, vP4))
        e(smov(SOUT[2], 0x200000)); e(smov(SOUT[3], 0x20000))
        e(salu("s_and_b32", sRT, sJ, 3)); e(salu("s_lshr_b32", sCT, sJ, 2))
        e(salu("s_lshl_b32", sT0, sXCD, 3)); e(salu("s_lshl_b32", sT1, sRT, 1)); e(salu("s_add_u32", sT0, sT0, sT1))
        e(salu("s_and_b32", sT1, sW, 1)); e(salu("s_add_u32", sT0, sT0, sT1))
        e(salu("s_mul_i32", sTAG, sT0, 144 * 1024, scc_w=False))
        e(smov(sA2c0, sTAG))
        for c_ in range(3): e(salu("s_mul_i32", sB2c[c_], sKH, SHIFT[c_] * 16384, scc_w=False))
        e(salu("s_lshr_b32", sA2c1, sB2c1, 4)); e(salu("s_add_u32", sA2c1, sA2c1, sTAG))
        e(salu("s_lshl_b32", sXs, sT0, 15))
        e(salu("s_lshl_b32", sFLR, sT0, 1)); e(salu("s_add_u32", sFLR, sFLR, sKH))
        e(salu("s_lshl_b32", sFLR, sFLR, 9)); e(salu("s_add_u32", sFLR, sFLR, WS_FLAG))
        e(salu("s_lshl_b32", sM0T, sW, 10)); e(salu("s_add_u32", sM0T, sM0T, TB))
        e(salu("s_lshl_b32", sT1, sT1, 13)); e(salu("s_lshl_b32", sCT, sCT, 7)); e(salu("s_add_u32", sT1, sT1, sCT))
        e(valu("v_lshlrev_b32", t[4], 10, t[0])); e(valu("v_add3_u32", vB2, t[4], t[2], sT1))
        e(salu("s_add_u32", sXs, sXs, sCT))
        e(salu("s_and_b32", sOut, sXs, 0xffff7fff)); e(salu("s_lshr_b32", sT0, sM0B, 1)); e(salu("s_add_u32", sOut, sOut, sT0))
        e(salu("s_lshl_b32", sRT, sRT, 2)); e(salu("s_add_u32", sRT, sRT, sW))
        e(valu("v_and_b32", t[4], 31, lane)); e(valu("v_lshlrev_b32", t[4], 10, t[4])); e(valu("v_add_u32", vTB, sCT, t[4]))
        e(valu("v_lshlrev_b32", t[0], 7, r2))
        e(valu("v_and_b32", t[1], 3, lane)); e(valu("v_lshlrev_b32", t[1], 3, t[1])); e(valu("v_add_u32", t[0], t[0], t[1]))
        e(valu("v_and_b32", t[2], 2, r2))
        e(valu("v_or_b32", t[3], t[2], ub)); e(valu("v_lshlrev_b32", t[3], 5, t[3]))
        e(valu("v_lshlrev_b32", t[4], 16, hh)); e(valu("v_add_u32", t[4], t[4], t[0]))
        if typ == "A":
            for j in range(2):
                e(valu("v_xor_b32", t[6], 64 * j, t[3])); e(valu("v_add_u32", vTR[4 + j], t[6], t[4]))
            e(valu("v_lshlrev_b32", t[6], 3, hh)); e(valu("v_add_u32", t[6], t[6], r2)); e(valu("v_lshlrev_b32", t[6], 6, t[6]))
            e(valu("v_lshlrev_b32", t[7], 16, ub)); e(valu("v_add3_u32", t[6], t[6], t[7], t[1]))
            e(valu("v_lshlrev_b32", t[7], 5, ub)); e(valu("v_add_u32", vTR[0], t[6], t[7]))
            e(valu("v_xor_b32", t[7], 32, t[7])); e(valu("v_add_u32", vTR[1], t[6], t[7]))
        else:
            e(valu("v_lshlrev_b32", t[5], 10, ub)); e(valu("v_add_u32", t[5], t[5], t[4]))
            for tt in range(4):
                e(valu("v_xor_b32", t[6], 32 * tt, t[3])); e(valu("v_add_u32", vTR[tt], t[6], t[5]))
        def park(reg, src): e(accw(a(aPARK + [str(x) for x in PARKED].index(str(reg))), src))
        e(valu("v_lshlrev_b32", t[4], 9, hh)); e(valu("v_add_u32", t[4], t[4], t[0]))
        e(salu("s_lshl_b32", sT0, sKH, 6)); e(valu("v_xor_b32", t[6], sT0, t[3]))
        e(valu("v_add_u32", t[5], t[6], t[4])); e(valu("v_xor_b32", t[6], 64, t[5]))
        e(salu("s_lshl_b32", sT0, sKH, 16)); e(salu("s_lshl_b32", sT1, sKH, 11)); e(salu("s_add_u32", sT1, sT1, TB))
        for j in range(2):
            e(valu("v_add_u32", t[7], sT0, t[5 + j])); park(vTR2[j], t[7])
            e(valu("v_add_u32", t[7], sT1, t[5 + j])); park(vTR2T[j], t[7])
        if typ == "A":
            e(valu("v_lshlrev_b32", t[4], 16, ub)); e(valu("v_lshlrev_b32", t[5], 15, hh)); e(valu("v_add3_u32", t[4], t[4], t[5], t[0]))
            e(valu("v_xor_b32", t[6], sW, t[2])); e(valu("v_lshlrev_b32", t[6], 5, t[6])); e(valu("v_add_u32", vW16, t[4], t[6]))
            e(salu("s_mul_i32", sT0, sW, 6144, scc_w=False)); e(salu("s_add_u32", sT0, sT0, TB)); e(valu("v_add_u32", vEX, sT0, vL16))
            e(valu("v_lshlrev_b32", t[4], 5, ub)); e(valu("v_add_u32", t[4], t[4], li)); e(valu("v_lshlrev_b32", t[4], 4, t[4]))
            e(valu("v_lshlrev_b32", t[5], 3, hh)); e(smov(sT0, TB)); e(valu("v_add3_u32", vHW, t[4], t[5], sT0))
            q = t[0]; bb = v(t[2].lo, 2)
            e(valu("v_and_b32", q, 31, lane)); e(valu("v_add_u32", t[1], 18, q))
            e(valu("v_mov_b32", t[4], 0x5555)); e(valu("v_mov_b32", t[5], 0))
            e(valu("v_lshlrev_b64", bb, t[1], v(t[4].lo, 2)))
            e(salu("s_or_b32", sT1, sRB, sW)); e(salu("s_cselect_b32", sT1, -1, 0, scc_w=False, scc_r=True))
            e(valu("v_and_b32", bb[0], sT1, bb[0]))
            e(valu("v_lshlrev_b32", t[1], 2, hh))
            e(valu("v_lshrrev_b32", bb[0], t[1], bb[0])); e(valu("v_lshrrev_b32", bb[1], t[1], bb[1]))
            e(valu("v_not_b32", bb[0], bb[0])); e(valu("v_not_b32", bb[1], bb[1]))
            e(smov(sT0, NEG))
            for r in range(24):
                rr = r if r < 16 else r - 8
                tmp = t[6 + (r & 1)]
                e(valu("v_bfe_i32", tmp, bb[1] if r < 16 else bb[0], 8 * (rr >> 2) + (rr & 3), 1))
                e(valu("v_and_b32", tmp, sT0, tmp)); e(accw(aMASK[r], tmp))
            e(valu("v_and_b32", t[2], 1, q)); e(valu("v_lshlrev_b32", t[2], 4, t[2]))
            e(valu("v_mov_b32", t[3], 0xffff)); e(valu("v_lshlrev_b32", vPM, t[2], t[3]))
            e(valu("v_bfe_i32", t[2], q, 4, 1)); e(valu("v_and_b32", vMHC, t[2], vPM)); e(valu("v_xor_b32", vMHP, vMHC, vPM))
        return o

    def tables(self):
        o = []; e = o.append
        e(salu("s_lshr_b32", sT1, sCT, 7))
        for g in (3, 2, 1, 0):
            e(salu("s_add_u32", sT0, sT1, g)); e(salu("s_and_b32", sT0, sT0, 3 if C.rot2 else 0))
            if not C.rot2: e(smov(sT0, g))
            e(salu("s_lshl_b32", sT0, sT0, 16))
            e(salu("s_add_u32", sG1[g], sB2c2, sT0))
            e(salu("s_mul_i32", sT0, sT0, 3, scc_w=False)); e(salu("s_add_u32", sG3[g], sB2c0, sT0))
        return o

    def b2_soff(self, n, dst):
        ks, cls, st = step_info(n)
        if cls == 1: return salu("s_add_u32", dst, sB2c1, ks * 16384)
        if cls == 2: g = (ks - 112) >> 2; return salu("s_add_u32", dst, sG1[g], (ks - 112 - 4 * g) * 16384)
        g = (ks - 16) // 12; return salu("s_add_u32", dst, sG3[g], (ks - 12 * g) * 16384)

    def code_touch(self):
        E = self.E
        if not C.touch_code: return
        t = v(201)
        E.line(f"s_getpc_b64 {sPC}")
        pcl = self.lab("pc"); E.label(pcl)
        E.emit(salu("s_and_b32", sT0, sJ, 1)); E.emit(salu("s_lshl_b32", sT0, sT0, 15))
        E.emit(valu("v_lshlrev_b32", t, 7, v(0))); E.emit(valu("v_add_u32", t, sT0, t))
        E.line(f"s_mov_b32 {sT0}, L_code_end-{pcl}-4")
        E.emit(valu("v_min_u32", t, sT0, t))
        E.emit(I(f"global_load_dword {aDUM0}, {t}, {sPC}", "vml", t.ids(), ()))

    def finish_stats(self, sm, sq, rinv, nb, t0, t1):
        e = self.E.emit
        e(valu("v_mul_f32", sm, sC512, sm))
        e(valu("v_mul_f32", t0, sm, sm))
        e(I(f"v_fma_f32 {sq}, {sq}, {sC512}, -{t0}", "valu", sq.ids() | t0.ids() | sC512.ids(), sq.ids()))
        e(valu("v_max_f32", sq, 0, sq))
        e(valu("v_cvt_pk_bf16_f32", t0, sm, sq))
        e(valu("v_and_b32", t1, sHI, t0))
        e(valu("v_add_f32", t1, 0x3727c5ac, t1))
        e(valu("v_cvt_pk_bf16_f32", t1, t1, t1)); e(valu("v_and_b32", t1, sHI, t1))
        e(valu("v_sqrt_f32", t1, t1))
        e(valu("v_cvt_pk_bf16_f32", t1, t1, t1)); e(valu("v_and_b32", t1, sHI, t1))
        e(valu("v_rcp_f32", rinv, t1))
        e(valu("v_lshlrev_b32", t0, 16, t0))
        e(I(f"v_mul_f32 {nb}, -{t0}, {rinv}", "valu", t0.ids() | rinv.ids(), nb.ids()))

    def norm_ops(self, reg, rinv, nb, k0=0):
        ops = []
        for d in range(4):
            lo = NT[(2 * (k0 + d)) % 8]; hi = NT[(2 * (k0 + d) + 1) % 8]; x = reg[d]
            ops += [valu("v_lshlrev_b32", lo, 16, x), valu("v_and_b32", hi, sHI, x),
                    valu("v_fma_f32", lo, lo, rinv, nb), valu("v_fma_f32", hi, hi, rinv, nb),
                    valu("v_cvt_pk_bf16_f32", x, lo, hi)]
        return ops

    def dots(self, reg, acc):
        ops = []
        for d in range(reg.n):
            ops.append(valu("v_dot2_f32_bf16", acc[d & 1], reg[d], sONE, acc[d & 1]))
            ops.append(valu("v_dot2_f32_bf16", acc[2 + (d & 1)], reg[d], reg[d], acc[2 + (d & 1)]))
        return ops

    def wrap(self, reg, q, span):
        return glue([scmp("s_cmp_eq_u32", sROT, 4 - q), salu("s_cselect_b32", sS2b, span, 0, scc_w=False, scc_r=True),
                     salu("s_sub_u32", reg, reg, sS2b)])

    def chunks(self, obj):
        k, j = obj
        if self.typ == "A":
            if k == "s1": return list(range(3 * (j % 7), 3 * (j % 7) + 3))
            return [6 + 2 * j, 7 + 2 * j]
        jj = j if k == "s1" else 16 + j
        return list(range(4 * (jj % 6), 4 * (jj % 6) + 4))

    def slab_dma(self, obj):
        L = self.L; k, j = obj; ch = self.chunks(obj); fl = C.w_fl
        def f(E): L.alloc(obj, ch)
        ops = [f, salu("s_add_u32", "m0", sM0B, 1024 * ch[0])]
        if k == "s1":
            st = 3072 if self.typ == "A" else 3584
            if self.typ == "A": ops += [dma(vH, SQKV, sS1, 1024 * u, obj, fl) for u in range(3)]
            else: ops += [dma(vG, SWG_, sS1, 0, obj, fl), dma(vU, SWU, sS1, 1024, obj, fl), dma(vG, SWG2, sS1, 2048, obj, fl), dma(vU, SWU2, sS1, 3072, obj, fl)]
            if j < 15: ops.append(salu("s_add_u32", sS1, sS1, 32 * st))
            if j % 4 == 3 and j < 15 and C.rot: ops.append(self.wrap(sS1, (j + 1) // 4, 512 * st))
        else:
            if self.typ == "A":
                ops += [salu("s_add_u32", sS2b, sS2, 16 * 3584 - 1024), dma(vG, SWH, sS2, 0, obj, fl), dma(vG, SWH, sS2b, 1024, obj, fl)]
            else:
                ops += [salu("s_add_u32", sS2b, sS2, 16 * 3584 - 2048), dma(vG, SWG_, sS2, 0, obj, fl), dma(vU, SWU, sS2, 1024, obj, fl),
                        dma(vG, SWG_, sS2b, 2048, obj, fl), dma(vU, SWU, sS2b, 3072, obj, fl)]
            if j < 7: ops.append(salu("s_add_u32", sS2, sS2, 64 * 3584))
            if j % 2 == 1 and j < 7 and C.rot: ops.append(self.wrap(sS2, (j + 1) // 2, 512 * 3584))
        return ops

    def b2_chunk(self, n):
        if self.typ == "A": tab = list(range(22, 32)) + list(range(0, 22)) + list(range(32, 40))
        else: tab = list(range(24, 32)) + list(range(0, 24)) + list(range(32, 40))
        return tab[n % 40]

    def b2_dma(self, n):
        L = self.L
        ks, cls, _ = step_info(n)
        ch = self.b2_chunk(n)
        def f(E): L.alloc(("b2", n), [ch])
        return [f, salu("s_add_u32", "m0", sM0B, 1024 * ch) if ch < 32 else salu("s_add_u32", "m0", sM0T, 4096 * (ch - 32)),
                self.b2_soff(n, sB2s),
                dma(vB2, SWO if cls == 2 else SWD, sB2s, 0, ("b2", n), C.b2_fl)]

    def bar(self, cover, m_done, lds_all=False, lds_tags=()):
        L = self.L
        def f(E):
            E.wait_tags(lds=list(lds_tags) + list(cover), vm=cover)
            if lds_all: E.wait_all_lds()
            E.barrier()
            L.visible |= set(cover); L.bar_m = m_done
        return f

    def acc1(self, t): return ACC1(t) if t < 6 else a(112 + 16 * (t - 6), 16)

    def seq(self, typ):
        out = []
        order = [2, 3, 4, 5, 0, 1] if typ == "A" else list(range(8))
        s1 = [(ks, t) for ks in range(28) for t in order] + [(ks, t) for t in order for ks in range(28, 32)]
        for ks, t in s1:
            obj = ("s1", ks // 2); base = (ks & 1) * 32768 + self.chunks(obj)[0] * 1024
            if True:
                if typ == "A":
                    out.append(dict(acc=ACC1(t), x=X(ks), sw=(t >= 4), obj=obj, addr=vTR[4 + (t & 1)],
                                    imm=base + (t >> 1) * 1024, st=512, first=(ks == 0)))
                else:
                    out.append(dict(acc=self.acc1(t), x=X(ks), sw=False, obj=obj, addr=vTR[t & 3], imm=base + (t >> 2) * 2048, st=512, first=(ks == 0)))
        nt = self.nt2
        s2 = [(ks, t) for ks in range(24) for t in range(nt)] + [(ks, t) for t in range(nt) for ks in range(24, 32)]
        for ks, t in s2:
            obj = ("s2", ks // 4); k = ks & 3
            out.append(dict(acc=ACC2(t), x=X(ks), sw=False, obj=obj, addr=vTR[t],
                            imm=(k >> 1) * 32768 + self.chunks(obj)[0] * 1024 + (k & 1) * (1024 if typ == "A" else 2048),
                            st=256 if typ == "A" else 512, first=(ks == 0)))
        for n in range(72):
            iso = step_info(n)[1] == 2
            for j in range(2):
                ch = self.b2_chunk(n)
                out.append(dict(acc=(ACCS if iso else ACCD)[j], x=n, sw=False, obj=("b2", n),
                                addr=vTR2[j] if ch < 32 else vTR2T[j], imm=ch * 1024 if ch < 32 else (ch - 32) * 4096,
                                st=32768 if ch < 32 else 1024, first=(n in (0, 40))))
        for m, o in enumerate(out): self.L.last_use[o["obj"]] = m
        return out

    def wreads(self, m):
        o = self.SEQ[m]; L = self.L
        def f(E): assert o["obj"] in L.visible, ("read of invisible", m, o["obj"])
        return [f, ds_tr(WF(m).sub(0, 2), o["addr"], o["imm"]), ds_tr(WF(m).sub(2, 2), o["addr"], o["imm"] + o["st"])]

    def main(self, m):
        o = self.SEQ[m]
        if isinstance(o["x"], int):
            def mk(peek):
                if peek and o["x"] not in self.a2slot: return None
                return mfma(o["acc"], WF(m), self.a2slot[o["x"]]["r"], 0 if o["first"] else o["acc"])
            mn = dict(pre=[], m=mk, fix=[])
            if m & 1: mn["fix"].append(lambda E: self.pool.give(E, self.a2slot[o["x"]]))
        else:
            A_, B_ = (o["x"], WF(m)) if o["sw"] else (WF(m), o["x"])
            mn = dict(pre=[], m=mfma(o["acc"], A_, B_, 0 if o["first"] else o["acc"]), fix=[])
        if m + C.D < len(self.SEQ): mn["fix"] += self.wreads(m + C.D)
        return mn

    def spin_check_tag(self):
        def f(E):
            ok = self.lab("tagok"); sp = self.lab("tagspin")
            E.emit(rfl(sTAG, vTAG))
            E.emit(scmp("s_cmp_eq_u32", sTAG, 0))
            E.line(f"s_cbranch_scc1 {sp}")
            E.label(ok)
            self.cold += [f"{sp}:", f"    s_mov_b32 {sSPIN}, 0", f"{sp}_l:",
                          f"    buffer_load_dword {vTAG}, off, {SDBG}, 0 sc1", f"    s_add_u32 {sSPIN}, {sSPIN}, 1",
                          "    s_waitcnt vmcnt(0)", f"    v_readfirstlane_b32 {sTAG}, {vTAG}",
                          f"    s_cmp_ge_u32 {sSPIN}, {C.spin_max}", f"    s_cbranch_scc1 {ok}",
                          f"    s_cmp_eq_u32 {sTAG}, 0", f"    s_cbranch_scc1 {sp}_l", f"    s_branch {ok}"]
        return f

    def poll_load(self, stage):
        return vload(vPOLL, vP4, SWS, sFLR, 128 * stage, fl="sc1")

    def gate(self, stage):
        def f(E):
            ok = self.lab("gateok"); sp = self.lab("gatespin")
            self.stamp(f"g{stage}a")
            E.emit(vcmp("v_cmp_ne_u32", "vcc", sTAG, vPOLL))
            E.line(f"s_cbranch_vccnz {sp}")
            E.label(ok)
            self.cold += [f"{sp}:", f"    s_mov_b32 {sSPIN}, 0", f"{sp}_l:",
                          f"    buffer_load_dword {vPOLL}, {vP4}, {SWS}, {sFLR} offen offset:{128 * stage} sc1",
                          f"    s_add_u32 {sSPIN}, {sSPIN}, 1", f"    s_cmp_ge_u32 {sSPIN}, {C.spin_max}", f"    s_cbranch_scc1 {ok}",
                          "    s_waitcnt vmcnt(0)", f"    v_cmp_ne_u32 vcc, {sTAG}, {vPOLL}", f"    s_cbranch_vccnz {sp}_l", f"    s_branch {ok}"]
            self.stamp(f"g{stage}b")
        return f

    def flag_store(self, stage, tags):
        def f(E):
            self.stamp(f"f{stage}a")
            E.wait_tags(vm=tags)
            self.stamp(f"f{stage}b")
            E.emit(vstore(vTAG, None, SWS, sFLW, 128 * stage, fl="sc1"))
        return f

    def a2_load(self, n):
        ks, cls, _ = step_info(n)
        o = []
        if self.a2base is None or self.a2base[0] != cls or not (0 <= ks - self.a2base[1] < 4):
            self.a2base = (cls, ks)
            if cls == 1: o.append(salu("s_add_u32", sA2s, sA2c1, ks * 1024))
            else:
                g = (ks - 112) >> 2 if cls == 2 else (ks - 16) // 12
                o += [salu("s_lshr_b32", sA2s, (sG1 if cls == 2 else sG3)[g], 4),
                      salu("s_add_u32", sA2s, sA2s, sA2c0),
                      salu("s_add_u32", sA2s, sA2s, (ks - 4 * g if cls == 2 else ks - 12 * g) * 1024)]
        imm = (ks - self.a2base[1]) * 1024
        def f(E):
            x = self.a2slot[n] = self.pool.take(E, "A")
            E.emit(vload(x["r"], vL16, SWS, sA2s, imm, fl=C.a2_fl))
        f.vm = True; f.ready = lambda E: self.pool.find(E, "A") is not None
        return o + [f]

    def raw_load(self, n):
        ks, cls, _ = step_info(n)
        def f(E):
            x = self.rawslot[n] = self.pool.take(E, "R")
            E.emit(vload(x["r"], vB2, SWO if cls == 2 else SWD, sXo, 0, fl=C.b2_fl))
        f.vm = True; f.ready = lambda E: self.pool.find(E, "R") is not None
        return [self.b2_soff(n, sXo), f]

    def h_epilogue(self, T, sbase, imm, tag):
        ops = [valu("v_mul_f32", T[r], T[r], T[r + 8]) for r in range(8)]
        ops += [valu("v_cvt_pk_bf16_f32", T[r], T[2 * r], T[2 * r + 1]) for r in range(4)]
        ops.append(vstore(T.sub(0, 4), vL16, SWS, sbase, imm, tag, C.st_fl))
        return ops

    def body(self, typ):
        E = self.E; e = E.emit
        self.L = L = LDSMap()
        E.m0_owner = None
        self.typ = typ
        isA = typ == "A"
        nt1, nt2 = (6, 2) if isA else (8, 4)
        self.nt2 = nt2
        M2 = self.M2 = 32 * nt1; M3 = self.M3 = M2 + 32 * nt2
        self.SEQ = self.seq(typ)
        self.a2base = None
        self.cold = []
        self.lane = v(200); self.vx = [v(204 + g) for g in range(4)]; self.hs = [v(196), v(197)]
        self.xa = xa = [v(216 + q) for q in range(4)]; self.acc = acc = [v(220 + q) for q in range(4)]
        self.ha = ha = [v(144 + i) for i in range(5)]; self.hacc = hacc = [v(149 + i) for i in range(4)]
        self.stamp("t0")
        if C.stamps: E.line("s_memrealtime s[0:1]")
        first = self.setup_first(typ)
        rest = self.consts(typ)
        E.emits(first)
        k = max(0, C.npre - len(first))
        while SCC in rest[k].r: k += 1
        E.emits(rest[:k]); rest = rest[k:]
        E.line("s_waitcnt lgkmcnt(0)")
        self.stamp("karg")
        def inplace(d, size, other, shift=0):
            o = []
            if other is not None and shift: o += [salu("s_sub_u32", other[0], d[2], shift), salu("s_subb_u32", other[1], d[3], 0, scc_r=True)]
            elif other is not None: o += [smov(other[0], d[2]), smov(other[1], d[3])]
            return o + [smov(d[2], size), smov(d[3], 0x20000)]
        E.emits(inplace(SX, 0x200000, SQKV if isA else None))
        if isA: E.emits(inplace(SDBG, 256, SWS))
        def xd(sl):
            o = [salu("s_add_u32", "m0", sM0B, 4096 * sl), salu("s_add_u32", sA2s, sXo, sXk)]
            o += [dma(self.vx[g], SX, sA2s, 1024 * g, tag=("x", sl), fl=C.x_fl) for g in range(4)]
            if sl < 7: o += [salu("s_add_u32", sXk, sXk, 128), salu("s_and_b32", sXk, sXk, 1023)]
            return o
        if isA:
            for ee in range(2):
                for g in range(2):
                    e(salu("s_add_u32", "m0", sS2b, TB + 2048 * ee + 1024 * g))
                    e(dma(self.hs[g], SX, sHo, 0, tag="halo", fl=C.x_fl))
                if ee == 0: e(salu("s_add_u32", sHo, sHo, 128))
            lskip = self.lab("noep")
            e(salu("s_or_b32", sSPIN, sWG, sW))
            E.line(f"s_cbranch_scc1 {lskip}")
            E.line(f"s_mov_b32 {sSPIN}, {WS_EPOCH}")
            E.line(f"buffer_load_dword {vPOLL}, off, {SWS}, {sSPIN} sc1")
            E.label(lskip)
        E.emits(xd(0))
        if isA:
            if C.touch_w0: e(self.touch(vTW, SQKV, sT5, fl=C.w_fl))
        else:
            E.emits([salu("s_sub_u32", SWU2[0], SWG_[2], 2944), salu("s_subb_u32", SWU2[1], SWG_[3], 0, scc_r=True),
                     salu("s_sub_u32", SWG2[0], SWG_[0], 1920), salu("s_subb_u32", SWG2[1], SWG_[1], 0, scc_r=True)])
            E.emits(inplace(SWG_, 512 * 3584, SWU, 1024))
            if C.touch_w0: e(self.touch(vTW, SWG_, sT5, fl=C.w_fl)); e(self.touch(vTW, SWU, sT5, 1024, fl=C.w_fl))
        E.emits(xd(1))
        nx = 2
        if not isA: E.emits(xd(2)); nx = 3
        self.stamp("issued")
        if isA:
            e(scmp("s_cmp_ge_u32", sW, 2))
            e(salu("s_cselect_b32", SWH[0], SWG_[2], SWG_[0], scc_w=False, scc_r=True))
            e(salu("s_cselect_b32", SWH[1], SWG_[3], SWG_[1], scc_w=False, scc_r=True))
        else:
            E.emits(inplace(SDBG, 256, SWS))
        E.emits(inplace(SWD, 1792 * 1024, SOUT) + inplace(SWO, 512 * 1024, None))
        E.emits(rest)
        if C.stamps: E.line("v_accvgpr_write_b32 a198, s0")
        E.emits(self.tables())
        self.stamp("rest")
        if C.pads:
            E.line("s_mov_b64 exec, 0")
            for w_ in (1, 2, 3):
                E.line(f"s_cmp_eq_u32 {sW}, {w_}"); E.line(f"s_cbranch_scc1 L_pad{typ}_{w_}")
            E.line(f"s_branch L_pad{typ}_0")
            E.label(f"L_back{typ}")
            E.line("s_mov_b64 exec, -1")
            E.out.append(f";PADS_FROM {typ}")
        self.stamp("pads")
        if isA:
            hx = v(128, 16); pr = v(154, 2); tp = v(156, 2); pp = v(158, 8)
            E.wait_tags(vm=["halo"])
            self.epoch_publish()
            for ee in range(2):
                for b in range(2): e(ds_rd(hx.sub(4 * (2 * ee + b), 4), ha[b], 2048 * ee))
            E.emits(xd(2)); nx = 3
            E.emits(self.dots(hx, hacc))
            e(valu("v_add_f32", pr[0], hacc[0], hacc[1])); e(valu("v_add_f32", pr[1], hacc[2], hacc[3]))
            for sw in (swap16, swap32):
                e(valu("v_mov_b32", tp[0], pr[0])); e(valu("v_mov_b32", tp[1], pr[1]))
                e(sw(pr[0], tp[0])); e(sw(pr[1], tp[1]))
                e(valu("v_add_f32", pr[0], pr[0], tp[0])); e(valu("v_add_f32", pr[1], pr[1], tp[1]))
            e(ds_wr(ha[3], pr, 0, tag="hp"))
        for sl in range(9):
            if sl < 8:
                E.wait_tags(vm=[("x", sl)])
                self.stamp(f"x{sl}")
                for q in range(4): e(ds_rd(X(4 * sl + q), xa[q], 4096 * sl))
                if nx == 7:
                    for it in self.slab_dma(("s1", 0)): run_item(E, it)
                if nx < 8: E.emits(xd(nx)); nx += 1
            if isA and sl == 0:
                E.wait_tags(lds=["hp"]); E.barrier()
                for w_ in range(4): e(ds_rd(pp.sub(2 * w_, 2), ha[2], 4096 * w_))
            if isA and sl == 1:
                e(valu("v_add_f32", pr[0], pp[0], pp[2])); e(valu("v_add_f32", pr[1], pp[1], pp[3]))
                e(valu("v_add_f32", tp[0], pp[4], pp[6])); e(valu("v_add_f32", tp[1], pp[5], pp[7]))
                e(valu("v_add_f32", pr[0], pr[0], tp[0])); e(valu("v_add_f32", pr[1], pr[1], tp[1]))
                self.finish_stats(pr[0], pr[1], vRINV, vNB, tp[0], tp[1])
            if isA and 1 <= sl <= 4:
                E.emits(self.norm_ops(hx.sub(4 * (sl - 1), 4), vRINV, vNB))
                e(ds_wr(ha[4], hx.sub(4 * (sl - 1), 4), 1024 * (sl - 1), tag="hxw"))
            if sl > 0:
                E.emits(self.dots(v(16 * (sl - 1), 16), acc))
                L.xread.add(sl - 1)
                if 5 <= sl <= (7 if isA else 6):
                    for it in self.slab_dma(("s1", sl - 4)): run_item(E, it)
        self.stamp("xdone")
        e(valu("v_add_f32", acc[0], acc[0], acc[1])); e(valu("v_add_f32", acc[2], acc[2], acc[3]))
        e(valu("v_mov_b32", acc[1], acc[0])); e(valu("v_mov_b32", acc[3], acc[2]))
        e(swap32(acc[0], acc[1])); e(swap32(acc[2], acc[3]))
        e(valu("v_add_f32", acc[0], acc[0], acc[1])); e(valu("v_add_f32", acc[2], acc[2], acc[3]))
        self.bar([("s1", 0), ("s1", 1)], -1, lds_tags=["hxw"])(E)
        for m in range(C.D):
            for it in self.wreads(m): run_item(E, it)
        self.finish_stats(acc[0], acc[2], vRINV, vNB, acc[1], acc[3])
        E.emits(self.norm_ops(X(0), vRINV, vNB))
        self.stamp("s1")

        mains = [self.main(m) for m in range(len(self.SEQ))]
        D = C.D
        qN = Q("norm"); qD = Q("dma"); qH = Q("halo"); qB = Q("b2"); qW = Q("raw", hard=False); qU = Q("dump", vm_age=0)
        qE = Q("epi"); qE2 = Q("epi2", hard=False, top=True); qR = Q("restore"); qFl = Q("flag", top=True)
        self.pool = pool = Pool(); self.a2slot = {}; self.rawslot = {}; self.mark = {}
        started = lambda q: (len(q.items) > 0 and q.empty())
        pool.add(a(200, 56), "AR")
        pool.add(a(192, 4), "A", lambda: started(qR))
        if isA:
            pool.add(a(80, 32), "AR")
            pool.add(a(112, 24), "AR", lambda: self.mark.get("masks"))
            pool.add(a(160, 32), "A", lambda: self.mark.get("masks"))
            pool.add(a(48, 32), "A", lambda: started(qE2))
            pool.add(a(136, 24), "A", lambda: started(qE)); pool.add(v(128, 96), "A", lambda: started(qE))
            rawl = list(range(22, 32)) + list(range(40, 72))
        else:
            pool.add(a(144, 16), "AR"); pool.add(a(160, 32), "A")
            pool.add(a(112, 32), "AR", lambda: started(qE)); pool.add(v(128, 96), "AR", lambda: started(qE))
            pool.add(a(48, 64), "A", lambda: started(qE2))
            rawl = list(range(20, 32)) + list(range(40, 72))
        rawit = {}
        if C.raw:
            for n in rawl:
                rawit[n] = self.raw_load(n)
                qW.adds(rawit[n], earliest=C.raw0, deadline=M3 + 16 * (n // 8) - C.D - 40)
        def place(n):
            def f(E):
                need = M3 + 16 * (n // 8) - C.D
                if n in self.rawslot:
                    ch = self.b2_chunk(n); x = self.rawslot[n]
                    qU.add(lambda E: L.alloc(("b2", n), [ch]), deadline=need - 3)
                    qU.add(ds_wr(vWQ, x["r"], 1024 * ch, tag=("b2", n)), deadline=need - 3)
                    qU.add(lambda E: pool.give(E, x), deadline=need - 3)
                else:
                    for it in rawit.get(n, []): it.dead = True
                    b2_add(n, E.gap)
            return f
        def b2_add(n, gap):
            qB.adds(self.b2_dma(n), earliest=gap, deadline=max(M3 + 16 * (n // 8) - D - C.b2lead, gap + 2))
        def barrier(gap, cover, name, **kw):
            mains[gap]["npre"] = 2
            mains[gap]["pre"] += [lambda E: self.stamp(name + "a"), self.bar(cover, gap - 1, **kw), lambda E: self.stamp(name)]
        for ks in range(1, 32):
            qN.adds(self.norm_ops(X(ks), vRINV, vNB, ks * 4), earliest=max(0, nt1 * (ks - C.nahead) - 1),
                    deadline=nt1 * ks if ks < 28 else nt1 * 28 + ks - 28)
        for j in (range(4, 7) if isA else range(3, 5)): qD.adds(self.slab_dma(("s1", j)), earliest=0, deadline=17 if isA else 20)
        L.last_use[("T",)] = M2 + 40 if isA else -1
        warm = []
        if C.touch_b2:
            warm = [[salu("s_lshl_b32", sT5, sRT, 14), self.touch(vTB, SWD, sT5, fl=C.b2_fl)],
                    [salu("s_lshr_b32", sT5, sRT, 1), salu("s_lshl_b32", sT5, sT5, 2), salu("s_add_u32", sT5, sT5, sRT),
                     salu("s_add_u32", sT5, sT5, 12), salu("s_lshl_b32", sT5, sT5, 15), self.touch(vTB, SWD, sT5, fl=C.b2_fl)],
                    [salu("s_lshl_b32", sT5, sRT, 15), self.touch(vTB, SWO, sT5, fl=C.b2_fl)]]
        tagload = vload(vTAG, None, SDBG, 0, fl="sc1")
        pre = []
        if C.pre_a2:
            pre = [valu("v_lshlrev_b32", vTW, 3, vL16)]
            if isA: pre += [valu("v_min_u32", vTW, 4095, vTW), self.touch(vTW, SWS, sStF), valu("v_min_u32", vTW, 2047, vTW), self.touch(vTW, SWS, sSt2)]
            else: pre += [self.touch(vTW, SWS, sStF), valu("v_min_u32", vTW, 4095, vTW), self.touch(vTW, SWS, sSt2)]
        def slab(jj): return ("s1", jj) if jj < 16 else ("s2", jj - 16)
        if isA:
            b2q = list(range(10))
            for g in range(1, 9):
                gap = 24 * g - D
                barrier(gap, [("s1", 2 * g), ("s1", 2 * g + 1)] if g < 8 else [("s2", j) for j in range(4)], f"b{g}")
                its = []
                for j in (2 * g + 4, 2 * g + 5):
                    if 7 <= j < 16: its += self.slab_dma(("s1", j))
                for j in {6: [0, 1, 2], 7: [3, 4, 5], 8: [6, 7]}.get(g, []): its += self.slab_dma(("s2", j))
                if 3 <= g <= 5 and warm: its += warm[g - 3]
                if g == 6: its.append(tagload)
                if g == C.pre_a2: its += pre
                for _ in range({2: 2, 3: 2, 4: 2, 5: 2, 6: 2}.get(g, 0)): b2_add(b2q.pop(0), gap + 6)
                qD.adds(its, earliest=gap, deadline=gap + (14 if g == 7 else 23))
            for j in range(16):
                g0 = max(0, 12 * j - D + 1)
                b = j & 1; ch = self.chunks(("s1", j))[0] * 1024
                its = [ds_rd(aXH[b], vHX, 1024 * j)]
                for u in range(2):
                    its += [ds_tr(aW16[b][u].sub(0, 2), vW16, ch + 1024 * (1 + u)), ds_tr(aW16[b][u].sub(2, 2), vW16, ch + 1024 * (1 + u) + 512)]
                qH.adds(its, earliest=g0, deadline=12 * j + 4)
                qH.add(mfma(aHACC[0], aW16[b][0], aXH[b], 0 if j == 0 else aHACC[0], "16x16x32"), earliest=g0, deadline=12 * j + 8)
                qH.add(mfma(aHACC[1], aXH[b], aW16[b][1], 0 if j == 0 else aHACC[1], "16x16x32"), earliest=12 * j + 7, deadline=12 * j + 10)
            gap = M2 + 32 - D
            barrier(gap, [("s2", j) for j in range(4, 8)], "mid", lds_tags=["exw"])
            for n in range(10, 22): b2_add(n, gap)
            first_use = {0: list(range(22, 28)) + list(range(32, 40)), 1: list(range(28, 32))}
        else:
            b2q = list(range(8)) + list(range(32, 40)) + list(range(8, 20))
            for g in range(1, 12):
                gap = 32 * g - D
                barrier(gap, [slab(2 * g), slab(2 * g + 1)], f"b{g}")
                its = []
                for jj in {8: (19,), 9: (20, 21, 22)}.get(g, (2 * g + 3, 2 * g + 4)):
                    if jj < 24: its += self.slab_dma(slab(jj))
                if 3 <= g <= 5 and warm: its += warm[g - 3]
                if g == 6: its.append(tagload)
                if g == C.pre_a2: its += pre
                for _ in range({2: 3, 3: 3, 4: 3, 5: 3, 6: 4, 10: 4, 11: 8}.get(g, 0)): b2_add(b2q.pop(0), gap + (10 if g < 10 else 0))
                qD.adds(its, earliest=gap, deadline=gap + (18 if g != 9 else 26))
            first_use = {0: list(range(20, 24)), 1: list(range(24, 32))}
        assert not b2q
        def xfree(reg): return M2 + nt2 * ((reg.lo + reg.n - 1) // 4) + nt2 - 1
        qFl.add(self.spin_check_tag(), earliest=M2 - 8, deadline=M2 - 4)
        def after(q, stage, tags):
            def arm(E):
                f = self.flag_store(stage, tags); p0 = E.pos; g0_ = E.gap
                fd = C.flagd if stage == 0 else C.flagl
                f.ready = lambda E: ((E.pos - p0) * 4 + (E.gap - g0_) * 8 >= fd or (E.gap - g0_) * 33 >= fd
                                     or not any(x[2] in tags for x in E.vq))
                qFl.add(f, earliest=E.gap)
            q.add(arm)
        if not isA:
            for t in range(8):
                T = ACC1(t % 6)
                its = [accr(T[r], self.acc1(t)[r]) for r in range(16)] if t >= 6 else []
                qE.adds(its + self.h_epilogue(T, sStF if t < 4 else sStH, 1024 * (t & 3), "h1"), earliest=nt1 * 28 + 4 * t + 3, deadline=nt1 * 28 + 4 * t + 8, hard=False)
            after(qE, 0, ["h1"])
        else:
            self.attention(qE, xfree)
            n0 = self.exw_check[1]; nn = len(qE.items)
            for k in range(n0, nn):
                it, ear, dl, hd = qE.items[k]
                qE.items[k] = (it, ear, int(M2 + 20 + (M3 + C.att_end - M2 - 20) * (k - n0) / (nn - n0)), False)
            after(qE, 3, ["o"])
        schedule(E, mains[:M2], [qN, qD, qH, qB, qW, qFl, qE], lambda g: (C.cap1A if isA else C.cap1B) if g < nt1 * 28 else C.cap1t,
                 0, flush=False, vm_gap=2)
        assert qN.empty() and qH.empty()
        self.stamp("s2")

        qL = Q("a2"); qF = Q("fin", vm_age=60); qP = Q("poll", top=True)
        g0 = M3 + (C.gate0A if isA else C.gate0B)
        for n_, dst in enumerate(PARKED):
            qR.add(accr(dst, a(aPARK + n_)), earliest=xfree(dst), deadline=min(g0, M3 - D) - 2)
        qR.add(valu("v_add_u32", vWQ, sM0B, vL16), earliest=xfree(vWQ), deadline=min(g0, M3 - D) - 2)
        tail = M2 + 24 * nt2
        for t in range(nt2):
            its = [accr(E2T[r], ACC2(t)[r]) for r in range(16)] + self.h_epilogue(E2T, sSt2, 1024 * t, "h2")
            qE2.adds(its, earliest=tail + 8 * t + 7, deadline=tail + 8 * t + 16)
        after(qE2, 1 if isA else 2, ["h2"])
        mains[M3]["pre"].append(lambda E: self.stamp("p2"))
        for n_ in range(72): mains[M3 + 2 * n_]["fix"].insert(0, lambda E, n_=n_: self.stamp(f"n{n_}"))
        gates = {0: g0, 32: M3 + 2 * (32 - C.la1), 40: M3 + 2 * (40 - C.la2), 56: M3 + 2 * (56 - C.la3)}
        def chk_free(q):
            def f(E): assert q.empty(), ("A2 slot still in use", q.name, E.gap)
            f.ready = lambda E: q.empty()
            return f
        cur = 0
        for n in range(72):
            if n in gates:
                cur = gates[n]; st = step_info(n)[2]; n0 = n
                qP.add(self.poll_load(st), earliest=cur - C.polld, deadline=cur - C.polld + 2)
                qL.add(self.gate(st), earliest=cur, deadline=cur + 1)
            its = self.a2_load(n)
            qL.adds(its, earliest=cur, deadline=max(M3 + 2 * n - C.a2lead, cur + 2 + (n - n0)), hard=False)
            qL.add(lambda E: None, earliest=cur, deadline=M3 + 2 * n - 6)
        b2q = list(range(40, 72))
        for c in range(9):
            gap = M3 + 16 * c - D
            barrier(gap, [("b2", n) for n in range(8 * c, 8 * c + 8)] + (["xt"] if c == 7 else []), f"c{c}",
                    lds_tags=["sw", "xr"] if c == 8 else ())
            for n in first_use.get(c, []): mains[gap]["pre"].append(place(n))
            while b2q and L.last_use[("b2", b2q[0] - 40)] <= gap - 1: mains[gap]["pre"].append(place(b2q.pop(0)))
        assert not b2q
        RD = v(0, 16); SF = v(16, 16); XF = v(48, 16); XR = v(224, 8); tt = v(32, 4)
        vRW = vTR[0]; vRR = vTR[1]; vOW = vTR[2]; vOR = vTR[3]; vOO = vTR[4]; vXD = vTR[5]; vXA = vG
        qF.add(chk_free(qE), earliest=M3 + 40); qF.add(chk_free(qE2), earliest=M3 + 40)
        its = [valu("v_lshrrev_b32", tt[0], 4, vL16), valu("v_and_b32", tt[1], 31, tt[0]),
               valu("v_lshrrev_b32", tt[2], 5, tt[0]), valu("v_lshlrev_b32", tt[2], 3, tt[2]),
               salu("s_lshr_b32", sT0, sM0B, 3), salu("s_add_u32", sT0, sT0, TB), valu("v_add_u32", vRW, sT0, vL16),
               valu("v_xor_b32", vRR, 8192, vRW),
               salu("s_and_b32", sT0, sW, 1), salu("s_lshl_b32", sT1, sT0, 12), salu("s_add_u32", sT1, sT1, TB + 16384),
               valu("v_lshlrev_b32", tt[3], 7, tt[1]), valu("v_add3_u32", vXA, tt[3], tt[2], sT1),
               valu("v_and_b32", tt[3], 7, tt[0]), valu("v_lshlrev_b32", tt[3], 4, tt[3]),
               salu("s_lshl_b32", sT1, sKH, 6), valu("v_xor_b32", tt[3], sT1, tt[3]), valu("v_add_u32", vXA, vXA, tt[3]),
               salu("s_mul_i32", sT0, sT0, 32 * 144, scc_w=False), salu("s_add_u32", sT0, sT0, sT1), salu("s_add_u32", sT0, sT0, TB),
               valu("v_mul_u32_u24", tt[1], 144, tt[1]), valu("v_add3_u32", vOW, tt[1], tt[2], sT0),
               valu("v_lshrrev_b32", tt[1], 3, tt[0]), valu("v_and_b32", tt[2], 0x70, vL16),
               valu("v_lshl_add_u32", vOO, tt[1], 10, tt[2]),
               valu("v_lshlrev_b32", tt[3], 4, tt[1]), valu("v_xor_b32", vXD, vOO, tt[3]),
               salu("s_mul_i32", sT0, sW, 16 * 144, scc_w=False), salu("s_add_u32", sT0, sT0, TB),
               valu("v_mul_u32_u24", tt[1], 144, tt[1]), valu("v_add3_u32", vOR, tt[1], tt[2], sT0),
               salu("s_lshl_b32", sXk, sW, 11), salu("s_add_u32", sXs, sOut, 8192 - 1024)]
        qF.adds(its, earliest=M3 + 40, deadline=M3 + 96 - D - 1)
        qD.adds([salu("s_add_u32", "m0", sXk, TB + 16384), dma(vXD, SX, sOut, 0, "xt"), dma(vXD, SX, sXs, 1024, "xt")],
                earliest=M3 + 96 - D, deadline=M3 + 96 - D + 4)
        its = []
        for a_ in range(4):
            its += [valu("v_xor_b32", tt[a_], 16 * a_, vXA), ds_rd(XR.sub(2 * a_, 2), tt[a_], 0, tag="xr")]
        qF.adds(its, earliest=M3 + 112 - D, deadline=M3 + 128 - D - 1)
        qF.adds([ds_wr(vRW, ACCS[1].sub(4 * i, 4), 1024 * i, tag="sw") for i in range(4)], earliest=M3 + 111, deadline=M3 + 128 - D)
        its = []
        for r in range(8):
            its += [valu("v_lshlrev_b32", XF[2 * r], 16, XR[r]), valu("v_and_b32", XF[2 * r + 1], sHI, XR[r])]
        qF.adds(its, earliest=M3 + 112)
        its = [ds_rd(SF.sub(4 * i, 4), vRR, 1024 * i) for i in range(4)]
        its += [valu("v_add_f32", SF[r], SF[r], ACCS[0][r]) for r in range(16)]
        its.append(salu("s_add_u32", sXs, sOut, 8192))
        qF.adds(its, earliest=M3 + 128 - D)
        cap2 = C.cap2A if isA else C.cap2B
        def capf(g):
            if not isA and not qE.empty(): return C.cap2h
            if g < tail + 7: return cap2
            if g < M3: return C.cap2t
            if not qE2.empty(): return 40
            return C.cap3 if qE.empty() else C.cap3x
        schedule(E, mains[M2:], [qFl, qP, qD, qL, qB, qW, qU, qR, qE2, qE, qF], capf, M2, flush=False,
                 vm_gap=lambda g: 2 if g < M3 else 1)
        assert qL.empty() and qD.empty() and qB.empty() and qE.empty() and qE2.empty() and qFl.empty()
        self.stamp("lastm")
        while not qF.empty():
            it = qF.head()[0]; qF.n += 1; run_item(E, it)
        for i in range(4): e(ds_wr(vRW, ACCD[1].sub(4 * i, 4), 16384 + 1024 * i, tag="dw"))
        E.wait_tags(lds=["dw"]); E.barrier()
        self.stamp("sbar")
        for i in range(4): e(ds_rd(RD.sub(4 * i, 4), vRR, 16384 + 1024 * i))
        G = ACCS[1]
        for a_ in range(4):
            rr = range(4 * a_, 4 * a_ + 4)
            for r in rr: e(valu("v_add_f32", RD[r], RD[r], ACCD[0][r]))
            for r in rr: e(valu("v_mul_f32", G[r], 0xbfb8aa3b, RD[r]))
            for r in rr: e(valu("v_exp_f32", G[r], G[r]))
            for r in rr: e(valu("v_mul_f32", RD[r], RD[r], SF[r]))
            for r in rr: e(valu("v_add_f32", G[r], 1.0, G[r]))
            for r in rr: e(valu("v_rcp_f32", G[r], G[r]))
        for a_ in range(4):
            rr = range(4 * a_, 4 * a_ + 4)
            for r in rr: e(valu("v_fma_f32", RD[r], RD[r], G[r], XF[r]))
            for d in range(2): e(valu("v_cvt_pk_bf16_f32", XR[2 * a_ + d], RD[4 * a_ + 2 * d], RD[4 * a_ + 2 * d + 1]))
            e(ds_wr(vOW, XR.sub(2 * a_, 2), 16 * a_))
        E.wait_all_lds(); E.barrier()
        for p in range(2): e(ds_rd(G.sub(4 * p, 4), vOR, 8 * 144 * p))
        for p in range(2): e(vstore(G.sub(4 * p, 4), vOO, SOUT, sXs if p else sOut, 0, fl=C.out_fl))
        self.stamp("end")
        if C.stamps:
            E.line("s_waitcnt lgkmcnt(0)")
            e(salu("s_lshl_b32", sT0, sWG, 2)); e(salu("s_add_u32", sT0, sT0, sW)); e(salu("s_lshl_b32", sT0, sT0, 7))
            e(salu("s_add_u32", sT0, sT0, WS_STAMP))
            for k in range(9):
                e(valu("v_mov_b32", v(0), s(STAMP0 + 2 * k))); e(vstore(v(0), None, SWS, sT0, 4 * k))
            e(accr(v(0), a(198))); e(vstore(v(0), None, SWS, sT0, 44))
            E.line("s_memrealtime s[84:85]"); E.line("s_getreg_b32 s86, hwreg(HW_REG_XCC_ID)"); E.line("s_waitcnt lgkmcnt(0)")
            e(valu("v_mov_b32", v(0), s(84))); e(vstore(v(0), None, SWS, sT0, 36))
            e(valu("v_mov_b32", v(0), s(86))); e(vstore(v(0), None, SWS, sT0, 40))
        E.line("s_endpgm")
        E.out += self.cold

    def epoch_publish(self):
        E = self.E
        l = self.lab("nopub")
        E.emit(salu("s_or_b32", sT0, sWG, sW))
        E.line(f"s_cbranch_scc1 {l}")
        E.line(f"s_mov_b32 {sT0}, 0x9e3779b1")
        E.line(f"v_mul_lo_u32 {vPOLL}, {vPOLL}, {sT0}")
        E.line(f"v_add_u32 {vPOLL}, 0x7f4a7c15, {vPOLL}")
        E.line(f"v_max_u32 {vPOLL}, 1, {vPOLL}")
        E.line(f"s_mov_b32 {sT0}, {WS_EPOCH}")
        E.line(f"buffer_store_dword {vPOLL}, off, {SWS}, {sT0} sc1")
        E.line(f"buffer_store_dword {vPOLL}, off, {SDBG}, 0 sc1")
        E.label(l)

    def attention(self, q, xfree):
        M2 = self.M2
        Q0, Q1, K0, K1, V0, V1 = [ACC1(t) for t in range(6)]
        cvt = lambda d, x, y: valu("v_cvt_pk_bf16_f32", d, x, y)
        def pack(dst, src, n=8): return [cvt(dst[i], src[2 * i], src[2 * i + 1]) for i in range(n)]
        its = pack(K0, K0) + pack(K0.sub(8, 8), K1)
        its += [ds_wr(vEX, K0.sub(4 * h, 4), 6144 + 1024 * h, tag="exw") for h in range(4)]
        its += pack(V0, V0) + pack(V0.sub(8, 8), V1)
        bar2 = M2 + 32 - C.D
        q.adds(its, earliest=M2 - 21, deadline=bar2 - 2)
        its = [ds_wr(vEX, V0.sub(4 + 8 * j, 4), 6144 + 4096 + 1024 * j, tag="exw") for j in range(2)]
        its += [accr(NT[i], aHACC[0][i]) for i in range(4)] + [accr(NT[4 + i], aHACC[1][i]) for i in range(4)]
        hk = v(NT[0].lo, 2); hv = v(NT[4].lo, 2)
        its += [cvt(NT[0], NT[0], NT[1]), cvt(NT[1], NT[2], NT[3]), cvt(NT[4], NT[4], NT[5]), cvt(NT[5], NT[6], NT[7])]
        its += [salu("s_lshl_b32", sT0, sW, 10), salu("s_add_u32", sT0, sT0, 256), valu("v_add_u32", NT[2], sT0, vHW),
                salu("s_lshr_b32", sT0, sW, 1), salu("s_lshl_b32", sT0, sT0, 10), salu("s_and_b32", sT1, sW, 1),
                salu("s_lshl_b32", sT1, sT1, 8), salu("s_add_u32", sT0, sT0, sT1), valu("v_add_u32", NT[3], sT0, vHW),
                ds_wr(NT[2], hk, 0, tag="exw"), ds_wr(NT[3], hv, 4096, tag="exw")]
        q.adds(its, earliest=M2 - 1, deadline=bar2 - 2)
        self.exw_check = (q, len(q.items))
        q.adds(pack(Q0, Q0) + pack(Q0.sub(8, 8), Q1), earliest=M2)
        MASK = v(208, 24)
        q.adds([accr(MASK[r], aMASK[r]) for r in range(24)], earliest=M2)
        q.add(lambda E: self.mark.update(masks=True), earliest=M2)
        SC = K1; SP = v(0, 16); U = v(16, 8); P = v(24, 12); O = Q1
        mx, tm, mc = vRINV, vNB, vW16
        sums = [vHX, vH]; t2 = vTR[4]
        def add(i, ear=0):
            w = [x for x in i.w if x < 128]
            e_ = max([xfree(v(x)) for x in w], default=0)
            q.add(i, earliest=max(e_, ear))
        def qk(h, which):
            if which == 0: add(mfma(SC, K0.sub(4 * h, 4), Q0.sub(4 * h, 4), MASK.sub(0, 16)))
            else: add(mfma(SP, aKP[h], Q0.sub(4 * h, 4), MASK.sub(8, 16)))
        def fin(h):
            o = 8 * (h & 1); sm = sums[h & 1]
            l = [valu("v_rcp_f32", sm, sm)]
            l += [valu("v_mul_f32", O[o + r], O[o + r], sm) for r in range(8)]
            l += [cvt(O[o + r], O[o + 2 * r], O[o + 2 * r + 1]) for r in range(4)]
            l.append(vstore(O.sub(o, 4), vL16, SWS, sStF, 1024 * h, "o", C.st_fl))
            return l
        qk(0, 0)
        q.adds([ds_rd(aKP[h], vEX, 1024 * h) for h in range(4)] + [ds_rd(aVP[j], vEX, 4096 + 1024 * j) for j in range(2)], earliest=bar2)
        qk(0, 1)
        for h in range(4):
            for i in range(4): add(valu("v_max_f32", U[i], SC[2 * i], SC[2 * i + 1]))
            for i in range(4, 8): add(valu("v_max3_f32", U[i], SC[2 * i], SC[2 * i + 1], SP[2 * i]))
            if h < 3: qk(h + 1, 0)
            for i in range(4, 8): add(valu("v_max_f32", U[i], U[i], SP[2 * i + 1]))
            add(valu("v_max3_f32", mx, U[0], U[1], U[2])); add(valu("v_max3_f32", tm, U[3], U[4], U[5]))
            if h < 3: qk(h + 1, 1)
            add(valu("v_max3_f32", mx, mx, U[6], U[7])); add(valu("v_max_f32", mx, mx, tm))
            add(valu("v_mov_b32", tm, mx))
            fl = fin(h - 1) if h > 0 else []
            for x in fl[:3]: add(x)
            add(swap32(mx, tm)); add(valu("v_max_f32", mx, mx, tm))
            add(I(f"v_mul_f32 {mc}, -{mx}, {sCSC}", "valu", mx.ids() | sCSC.ids(), mc.ids()))
            for x in fl[3:]: add(x)
            for i in range(8): add(valu("v_fma_f32", U[i], U[i], sCSC, mc))
            for i in range(8): add(valu("v_exp_f32", U[i], U[i]))
            sm = sums[h & 1]; j = h >> 1
            for i in range(4):
                add(cvt(P[i], U[i], U[i])); add(valu("v_and_b32", P[i], vPM, P[i]))
            add(valu("v_add_f32", sm, U[0], U[1])); add(valu("v_add_f32", tm, U[2], U[3]))
            add(mfma(O, V0.sub(8 * j, 4), P.sub(0, 4), 0))
            for i in range(4):
                add(cvt(P[8 + i], U[4 + i], U[4 + i])); add(valu("v_and_b32", P[4 + i], vMHC, P[8 + i]))
            add(valu("v_add_f32", t2, U[4], U[5])); add(valu("v_add_f32", sm, sm, tm))
            add(mfma(O, V0.sub(8 * j + 4, 4), P.sub(4, 4), O))
            for i in range(4): add(valu("v_and_b32", P[8 + i], vMHP, P[8 + i]))
            add(valu("v_add_f32", tm, U[6], U[7])); add(valu("v_add_f32", t2, t2, tm))
            add(mfma(O, aVP[j], P.sub(8, 4), O))
            add(valu("v_add_f32", sm, sm, t2))
            add(valu("v_mov_b32", tm, sm))
            add(swap32(sm, tm)); add(valu("v_add_f32", sm, sm, tm))
        for x in fin(3): add(x)

    def build(self):
        E = self.E
        E.emit(scmp("s_cmp_ge_u32", sWG, 256))
        E.line("s_cbranch_scc1 L_end")
        E.line("s_load_dwordx16 s[8:23], s[0:1], 0")
        E.line("s_load_dwordx4 s[24:27], s[0:1], 64")
        E.emit(salu("s_lshr_b32", sJ, sWG, 3))
        self.code_touch()
        E.emit(I("s_bitcmp1_b32 s6, 3", "salu", sJ.ids(), {SCC}))
        E.line("s_cbranch_scc1 L_typeB")
        snap = E.snapshot()
        self.body("A")
        E.label("L_typeB")
        E.restore(snap)
        self.body("B")
        E.label("L_end")
        E.line("s_endpgm")
        E.label("L_code_end")
        E.out.append(".p2align 12")
        head = open(os.path.join(os.path.dirname(os.path.abspath(__file__)), "head.txt")).read()
        txt = head + f"""; @launch grid=(256,1,1) block=(256,1,1) lds=163840
.amdgcn_target "amdgcn-amd-amdhsa--gfx950"
.text
.globl {NAME}
.p2align 8
.type {NAME},@function
{NAME}:
""" + E.text() + f""".section .rodata,"a"
.p2align 6
.amdhsa_kernel {NAME}
  .amdhsa_next_free_vgpr 512
  .amdhsa_next_free_sgpr 102
  .amdhsa_accum_offset 256
  .amdhsa_group_segment_fixed_size 0
  .amdhsa_kernarg_size 80
  .amdhsa_user_sgpr_count 2
  .amdhsa_user_sgpr_kernarg_segment_ptr 1
  .amdhsa_system_sgpr_workgroup_id_x 1
.end_amdhsa_kernel
"""
        return txt


def place_pads(txt):
    import subprocess, re, tempfile
    sys.path.insert(0, "cdna_kernels")
    from cdna_launch import with_harness_metadata
    lines = txt.split("\n")
    probe = []
    for n, l in enumerate(lines):
        if l.startswith("    ") and not l.strip().startswith(";") and not l.strip().startswith("."): probe.append(f"LP_{n}:")
        probe.append(re.sub(r"L_pad[AB]_\d+", "L_end", l))
    d = tempfile.mkdtemp()
    open(d + "/p.s", "w").write(with_harness_metadata("\n".join(probe), NAME, 10, launch_lists=True))
    subprocess.run(["clang", "-x", "assembler", "-target", "amdgcn-amd-amdhsa", "-mcpu=gfx950", d + "/p.s", "-o", d + "/p.co"], check=True)
    sym = subprocess.run(["llvm-objdump", "-t", d + "/p.co"], capture_output=True, text=True).stdout
    addr = {int(m.group(2)): int(m.group(1), 16) for m in re.finditer(r"([0-9a-f]{16}) .* LP_(\d+)", sym)}
    shift = 0; typ = None; pads = {"A": [], "B": []}; prev = None
    for n, l in enumerate(lines):
        if l.startswith(";PADS_FROM"): typ = l.split()[1]
        if l.startswith("L_typeB:") or l.startswith("L_end:"): typ = None
        if n in addr:
            a_ = addr[n] + shift
            if typ and prev is not None and prev // 4096 != a_ // 4096:
                pads[typ].append(n); shift += 4
            prev = a_
    out = []
    for n, l in enumerate(lines):
        for t in "AB":
            if n in pads[t]:
                k = pads[t].index(n)
                out.append(f"L_pad{t}_{k}:")
                out.append(f"    s_cbranch_execz " + (f"L_pad{t}_{k + 4}" if k + 4 < len(pads[t]) else f"L_back{t}"))
        out.append(l)
    print("pads", {t: len(pads[t]) for t in pads}, "kernel at", hex(min(addr.values())))
    assert min(len(pads[t]) for t in pads) >= 4
    return "\n".join(out)


if __name__ == "__main__":
    g = Gen()
    txt = g.build()
    if C.pads: txt = place_pads(txt)
    open(sys.argv[1], "w").write(txt)
    print("instructions:", g.E.ninst)
```

```python
import sys, os
sys.path.insert(0, os.path.dirname(os.path.abspath(__file__)))
from emit import *

NAME = "recurrent_scan__sliding_local_dilated__glu_gated_bilinear__prompt_kernel"

class Cfg:
    stamps = False
    stset = "a"
    rt = False
    D = 6
    nahead = 4; cap1A = 7.0; cap1B = 6.5; cap1t = 8.0; cap2h = 9.0; cap2A = 6.0; cap2B = 7.0; cap3 = 7.0; cap2t = 7.5; cap3x = 20.0
    npre = 120
    gate0A = -8; gate0B = -30
    rot = True
    pads = True
    la1 = 12; la2 = 12; la3 = 12
    polld = 10
    flagd = 450
    b2lead = 22; a2lead = 24; att_end = 30
    dbg_a2 = 0; dbg_dump = False; dbg_bar = False
    amp = ""
    rot2 = True; flagl = 160
    raw = True; raw0 = 40
    touch_w0 = True
    touch_code = True
    touch_b2 = True
    a2_fl = "sc1"; st_fl = "sc1"; pre_a2 = 0; x_fl = ""; w_fl = ""; b2_fl = ""; out_fl = ""
    spin_max = 1 << 16

C = Cfg()
for arg in sys.argv[2:]:
    k, val = arg.split("=")
    old = getattr(C, k)
    setattr(C, k, (val not in ("0", "False")) if isinstance(old, bool) else type(old)(val.replace("+", " ")))

WS_FLAG = 0x900000
WS_EPOCH = 0xA00000
WS_STAMP = 0xB00000
WS_SIZE = 0xC00000
TB = 131072

sWG = s(2); sW = s(3); sRB = s(4); sIDX = s(5); sJ = s(6); sXCD = s(7)
SX, SWO, SWG_, SWD, SDBG, SP5, SWU, SOUT, SWS, SP9 = [s(8 + 4 * i, 4) for i in range(10)]
SQKV = SWG2 = SP5; SWH = SWU2 = SP9
(sA2s, sB2s, sM0B, sT0, sT1, sS1, sS2, sS2b, sTAG, sFLW, sFLR, sStF, sStH, sSt2, sHI, sONE, sSPIN, sT2, sOut, sT5,
 sRT, sCT, sKH, sCSC, sXs, sM0T, sXo, sXk, sROT, sC512, sA2c0, sA2c1, sA2c2, sB2c0, sB2c1, sB2c2) = [s(48 + i) for i in range(36)]
sA2c = [sA2c0, sA2c1, sA2c2]; sB2c = [sB2c0, sB2c1, sB2c2]
sG3 = [sB2c0, s(0), s(1), s(4)]; sG1 = [sB2c2, s(5), s(6), s(7)]
sHo = sB2s
sPC = s(48, 2)
STAMP0 = 84

def X(ks): return v(4 * ks, 4)
def ACC1(t): return v(128 + 16 * t, 16)
NT = [v(224 + i) for i in range(8)]
vTR = [v(232 + i) for i in range(6)]
vG = v(238); vU = v(239); vH = v(240)
vB2 = v(241); vTW = v(242)
vL16 = v(243); vRINV = v(244); vNB = v(245); vW16 = v(246); vHX = v(247)
vTAG = v(248); vPOLL = v(249); vP4 = v(250); vTB = vTAG
vEX = v(251); vHW = v(252); vPM = v(253); vMHC = v(254); vMHP = v(255)
vTR2T = [v(42), v(43)]; vTR2 = [v(44), v(45)]; vWQ = v(46)
PARKED = vTR2T + vTR2
E2T = v(48, 16)
ACCD = [v(64, 16), v(80, 16)]; ACCS = [v(96, 16), v(112, 16)]
def WF(m): return a(4 * (m % 12), 4)
def ACC2(t): return a(48 + 16 * t, 16)
aMASK = a(112, 24); aKP = [a(136 + 4 * i, 4) for i in range(4)]; aVP = [a(152 + 4 * i, 4) for i in range(2)]
aHACC = [a(160, 4), a(164, 4)]; aXH = [a(168, 4), a(172, 4)]
aW16 = [[a(176, 4), a(180, 4)], [a(184, 4), a(188, 4)]]
aPARK = 192
aDUM0 = a(199); vDUM1 = v(37)

NEG = 0xf149f2ca


class LDSMap:
    def __init__(self):
        self.own = {c: ("x", c // 4) for c in range(32)}
        for c in range(32, 40): self.own[c] = ("T",)
        self.last_use = {}
        self.visible = set()
        self.bar_m = -1
        self.xread = set()
    def alloc(self, obj, chunks):
        for c in chunks:
            o = self.own[c]
            if o[0] == "x": assert o[1] in self.xread, (obj, c, o)
            else: assert self.last_use[o] <= self.bar_m, (obj, c, o, self.last_use[o], self.bar_m)
            self.own[c] = obj
    def check_read(self, obj, chunks):
        assert obj in self.visible, ("not visible", obj)
        for c in chunks: assert self.own[c] == obj, (obj, c, self.own[c])


SHIFT = [48, 8, 16]


def step_info(n):
    if n < 32: return 16 + 12 * (n >> 3) + (n & 7), 0, 0
    if n < 40: return n - 32, 1, 1
    if n < 56: return 112 + n - 40, 2, 3
    return 24 + 12 * ((n - 56) >> 2) + ((n - 56) & 3), 0, 2


class Gen:
    def __init__(self):
        self.E = Emitter()
        self.E.trace = bool(os.environ.get("TRACE"))
        self.nlabel = 0
        self.nstamp = 0

    def lab(self, base):
        self.nlabel += 1
        return f"L_{base}_{self.nlabel}"

    STS = {"a": ["t0", "issued", "x0", "xdone", "s1", "s2", "p2", "lastm", "end"],
           "b": ["t0", "g0a", "g0b", "p2", "g1a", "g1b", "g2a", "g2b", "end"],
           "e": ["t0", "karg", "issued", "rest", "pads", "x0", "x1", "x3", "end"],
           "f": ["t0", "x4", "x5", "x6", "x7", "xdone", "s1", "b1", "end"],
           "g": ["t0", "s1", "b1a", "b1", "b2a", "b2", "b3a", "b3", "end"],
           "h": ["t0", "b3", "b4", "b5", "b6", "b7", "b8", "s2", "end"],
           "j": ["t0", "g2b", "n48", "n55", "n56", "n60", "n64", "n71", "end"],
           "k": ["t0", "g0b", "n0", "n4", "n8", "n16", "n24", "n31", "end"],
           "l": ["t0", "g1b", "g3b", "n31", "n32", "n39", "n40", "n47", "end"],
           "m": ["t0", "n0", "n8", "n16", "n24", "n32", "n40", "n56", "end"],
           "n": ["t0", "c0a", "c0", "c1a", "c1", "c2a", "c2", "c3a", "c3"],
           "o": ["t0", "c4a", "c4", "c5a", "c5", "c6a", "c6", "c7a", "c7"],
           "p": ["t0", "g0a", "g0b", "g1a", "g1b", "g3a", "g3b", "g2a", "g2b"],
           "q": ["t0", "s2", "f0a", "f0b", "g0a", "g0b", "f2a", "f2b", "end"],
           "i": ["t0", "s2", "g0a", "g0b", "p2", "c1", "g1a", "g1b", "end"],
           "d": ["t0", "p2", "g1b", "g3a", "g3b", "g2a", "g2b", "lastm", "end"],
           "c": ["t0", "p2", "c1", "c3", "c5", "c7", "lastm", "sbar", "end"]}

    def stamp(self, name):
        if C.stamps and name in self.STS[C.stset]:
            k = self.STS[C.stset].index(name)
            self.E.line(f"{'s_memrealtime' if C.rt else 's_memtime'} s[{STAMP0 + 2 * k}:{STAMP0 + 2 * k + 1}]")

    def setup_first(self, typ):
        o = []; e = o.append
        lane = self.lane; vx = self.vx; t0, t1, t2 = v(201), v(202), v(203)
        e(valu("v_and_b32", lane, 63, v(0)))
        e(valu("v_lshrrev_b32", t0, 6, v(0)))
        e(salu("s_and_b32", sXCD, sWG, 7))
        e(rfl(sW, t0))
        e(salu("s_and_b32", sRB, sXCD, 1)); e(salu("s_lshl_b32", sRB, sRB, 3))
        e(salu("s_and_b32", sT0, sJ, 7)); e(salu("s_add_u32", sRB, sRB, sT0))
        e(salu("s_and_b32", sIDX, sXCD, 6)); e(salu("s_lshr_b32", sT0, sJ, 4)); e(salu("s_add_u32", sIDX, sIDX, sT0))
        e(valu("v_and_b32", t0, 7, lane)); e(valu("v_lshrrev_b32", t1, 4, lane)); e(valu("v_xor_b32", t0, t0, t1))
        e(valu("v_lshlrev_b32", t0, 4, t0))
        e(valu("v_lshrrev_b32", t1, 3, lane)); e(valu("v_lshlrev_b32", t1, 10, t1))
        e(valu("v_or_b32", vx[0], t0, t1)); e(valu("v_xor_b32", t2, 64, vx[0]))
        e(valu("v_add_u32", vx[1], 7168, t2)); e(valu("v_add_u32", vx[2], 2 * 7168, vx[0])); e(valu("v_add_u32", vx[3], 3 * 7168, t2))
        e(salu("s_lshl_b32", sM0B, sW, 15))
        e(salu("s_lshl_b32", sT0, sRB, 17)); e(salu("s_add_u32", sXo, sT0, sM0B))
        e(salu("s_lshr_b32", sT1, sJ, 3)); e(salu("s_add_u32", sT1, sT1, sJ)); e(salu("s_and_b32", sROT, sT1, 3 if C.rot else 0))
        e(salu("s_lshl_b32", sXk, sROT, 8))
        e(smov(SWS[2], WS_SIZE)); e(smov(SWS[3], 0x20000))
        if typ == "A":
            e(smov(SQKV[2], 512 * 3072)); e(smov(SQKV[3], 0x20000))
            hs = self.hs
            e(salu("s_sub_u32", sT1, sT0, 16 * 1024))
            e(valu("v_add_u32", hs[0], sT1, vx[0])); e(salu("s_add_u32", sT1, sT1, 1024)); e(valu("v_add_u32", hs[1], sT1, vx[1]))
            e(salu("s_add_u32", sHo, sW, sROT)); e(salu("s_and_b32", sHo, sHo, 3)); e(salu("s_lshl_b32", sHo, sHo, 8))
            e(salu("s_lshr_b32", sS2b, sM0B, 3))
            e(salu("s_lshl_b32", sT2, sIDX, 1))
            e(salu("s_lshl_b32", sS1, sIDX, 7))
        else:
            e(salu("s_mul_i32", sT2, sIDX, 12, scc_w=False)); e(salu("s_add_u32", sT2, sT2, 24))
            e(salu("s_lshl_b32", sS1, sT2, 5)); e(salu("s_sub_u32", sS1, sS1, 256))
            for d, sh in ((SWU, 1024), (SWG2, 1920), (SWU2, 2944)):
                e(smov(d[2], 512 * 3584 + sh)); e(smov(d[3], 0x20000))
        st1 = 3072 if typ == "A" else 3584
        e(salu("s_mul_i32", sT0, sROT, 128 * st1, scc_w=False)); e(salu("s_add_u32", sS1, sS1, sT0))
        if C.touch_w0:
            e(valu("v_and_b32", t0, 7, lane)); e(valu("v_mul_u32_u24", t0, st1, t0))
            if typ == "A":
                e(valu("v_bfe_u32", t1, lane, 3, 2)); e(valu("v_min_u32", t1, 2, t1)); e(valu("v_lshlrev_b32", t1, 10, t1))
            else:
                e(valu("v_bfe_u32", t1, lane, 3, 1)); e(valu("v_lshlrev_b32", t1, 7, t1))
            e(valu("v_add_u32", vTW, t0, t1))
            e(salu("s_and_b32", sT0, sJ, 4)); e(salu("s_add_u32", sT0, sT0, sW)); e(salu("s_mul_i32", sT0, sT0, 8 * st1, scc_w=False))
            e(salu("s_add_u32", sT5, sT0, sS1))
        return o

    def touch(self, voff, srd_, soff, imm=0, dst=None, fl=""):
        i = vload(dst or aDUM0, voff, srd_, soff, imm, fl=fl); i.w = set(); return i

    def consts(self, typ):
        o = []; e = o.append
        lane = self.lane
        t = [v(208 + i) for i in range(8)]
        li, g4, r2, hh, ub = v(190), v(191), v(192), v(193), v(194)
        e(valu("v_and_b32", li, 15, lane)); e(valu("v_lshrrev_b32", g4, 4, lane)); e(valu("v_lshrrev_b32", hh, 5, lane))
        e(valu("v_and_b32", ub, 1, g4)); e(valu("v_lshrrev_b32", r2, 2, li))
        e(valu("v_lshlrev_b32", vL16, 4, lane))
        e(smov(sHI, 0xffff0000)); e(smov(sONE, 0x3f803f80)); e(smov(sC512, 0x3b000000)); e(smov(sCSC, 0x3eb8aa3b))
        xa = self.xa
        e(valu("v_and_b32", t[0], 31, lane)); e(valu("v_lshlrev_b32", t[1], 7, t[0]))
        e(valu("v_bfe_u32", t[0], lane, 1, 3)); e(valu("v_xor_b32", t[0], t[0], hh)); e(valu("v_lshlrev_b32", t[0], 4, t[0]))
        e(valu("v_add_u32", t[1], sM0B, t[1]))
        for q in range(4):
            e(valu("v_xor_b32", t[2], 32 * q, t[0])); e(valu("v_add_u32", xa[q], t[1], t[2]))
        for r_ in self.acc: e(valu("v_mov_b32", r_, 0))
        if typ == "A":
            ha = self.ha
            e(valu("v_lshlrev_b32", t[1], 7, li)); e(valu("v_lshrrev_b32", t[0], 1, li)); e(valu("v_xor_b32", t[0], t[0], g4))
            e(valu("v_lshlrev_b32", t[0], 4, t[0]))
            e(salu("s_add_u32", sT0, sS2b, TB)); e(valu("v_add_u32", t[1], sT0, t[1]))
            e(valu("v_add_u32", ha[0], t[1], t[0])); e(valu("v_xor_b32", t[0], 64, t[0])); e(valu("v_add_u32", ha[1], t[1], t[0]))
            for r_ in self.hacc: e(valu("v_mov_b32", r_, 0))
            e(valu("v_add_u32", vHX, TB + 16384, vL16))
            e(valu("v_lshlrev_b32", ha[2], 3, lane)); e(valu("v_add_u32", ha[2], TB, ha[2])); e(valu("v_add_u32", ha[3], sS2b, ha[2]))
            e(valu("v_add_u32", ha[4], sS2b, vHX))
        e(salu("s_and_b32", sT0, sW, 1)); e(salu("s_lshl_b32", sT0, sT0, 4))
        e(salu("s_lshr_b32", sKH, sW, 1)); e(salu("s_lshl_b32", sT1, sKH, 3)); e(salu("s_add_u32", sT1, sT1, sT0))
        e(valu("v_lshrrev_b32", t[0], 3, lane)); e(valu("v_and_b32", t[1], 2, t[0])); e(valu("v_lshlrev_b32", t[1], 5, t[1]))
        e(valu("v_and_b32", t[2], 7, lane)); e(valu("v_lshlrev_b32", t[2], 4, t[2])); e(valu("v_xor_b32", t[2], t[2], t[1]))
        e(valu("v_add_u32", t[3], sT1, t[0]))
        if typ == "A":
            e(valu("v_mul_u32_u24", t[4], 3072, t[3])); e(valu("v_add_u32", vH, t[4], t[2]))
            e(salu("s_lshl_b32", sT0, sT0, 1))
            e(valu("v_lshrrev_b32", t[4], 2, lane)); e(valu("v_add_u32", t[4], sT0, t[4])); e(valu("v_mul_u32_u24", t[4], 3584, t[4]))
            e(valu("v_and_b32", t[5], 3, lane)); e(valu("v_lshlrev_b32", t[5], 4, t[5]))
            e(salu("s_lshl_b32", sT1, sKH, 5)); e(valu("v_xor_b32", t[5], sT1, t[5]))
            e(valu("v_add_u32", vG, t[4], t[5]))
            e(salu("s_lshl_b32", sS2, sT2, 5))
            e(smov(SWH[2], 512 * 3584)); e(smov(SWH[3], 0x20000))
        else:
            e(valu("v_mul_u32_u24", t[4], 3584, t[3])); e(valu("v_add_u32", vG, t[4], t[2]))
            e(valu("v_xor_b32", t[5], 32, t[2])); e(valu("v_add_u32", vU, t[4], t[5]))
            e(salu("s_mul_i32", sT0, sT0, 3584, scc_w=False))
            e(salu("s_lshl_b32", sS2, sT2, 5)); e(salu("s_add_u32", sS2, sS2, sT0))
        e(salu("s_mul_i32", sT0, sROT, 128 * 3584, scc_w=False)); e(salu("s_add_u32", sS2, sS2, sT0))
        e(salu("s_lshl_b32", sT0, sRB, 2)); e(salu("s_add_u32", sT0, sT0, sW))
        e(salu("s_mul_i32", sT1, sT0, 144, scc_w=False))
        e(salu("s_add_u32", sSt2, sT1, sT2)); e(salu("s_lshl_b32", sSt2, sSt2, 10))
        if typ == "A":
            e(salu("s_lshl_b32", sStF, sT2, 10)); e(salu("s_add_u32", sStF, sStF, sSt2)); e(salu("s_add_u32", sStF, sStF, 112 * 1024))
        else:
            e(salu("s_sub_u32", sStF, sSt2, 8192)); e(salu("s_sub_u32", sStH, sSt2, 4096))
        e(salu("s_lshl_b32", sT0, sT0, 1)); e(salu("s_lshr_b32", sT1, sIDX, 2)); e(salu("s_add_u32", sT0, sT0, sT1))
        e(salu("s_lshl_b32", sT0, sT0, 9))
        e(salu("s_and_b32", sT1, sIDX, 3)); e(salu("s_lshl_b32", sT1, sT1, 2))
        e(salu("s_add_u32", sT0, sT0, sT1)); e(salu("s_add_u32", sFLW, sT0, WS_FLAG))
        e(valu("v_and_b32", vP4, 3, lane)); e(valu("v_lshlrev_b32", vP4, 2, vP4))
        e(smov(SOUT[2], 0x200000)); e(smov(SOUT[3], 0x20000))
        e(salu("s_and_b32", sRT, sJ, 3)); e(salu("s_lshr_b32", sCT, sJ, 2))
        e(salu("s_lshl_b32", sT0, sXCD, 3)); e(salu("s_lshl_b32", sT1, sRT, 1)); e(salu("s_add_u32", sT0, sT0, sT1))
        e(salu("s_and_b32", sT1, sW, 1)); e(salu("s_add_u32", sT0, sT0, sT1))
        e(salu("s_mul_i32", sTAG, sT0, 144 * 1024, scc_w=False))
        e(smov(sA2c0, sTAG))
        for c_ in range(3): e(salu("s_mul_i32", sB2c[c_], sKH, SHIFT[c_] * 16384, scc_w=False))
        e(salu("s_lshr_b32", sA2c1, sB2c1, 4)); e(salu("s_add_u32", sA2c1, sA2c1, sTAG))
        e(salu("s_lshl_b32", sXs, sT0, 15))
        e(salu("s_lshl_b32", sFLR, sT0, 1)); e(salu("s_add_u32", sFLR, sFLR, sKH))
        e(salu("s_lshl_b32", sFLR, sFLR, 9)); e(salu("s_add_u32", sFLR, sFLR, WS_FLAG))
        e(salu("s_lshl_b32", sM0T, sW, 10)); e(salu("s_add_u32", sM0T, sM0T, TB))
        e(salu("s_lshl_b32", sT1, sT1, 13)); e(salu("s_lshl_b32", sCT, sCT, 7)); e(salu("s_add_u32", sT1, sT1, sCT))
        e(valu("v_lshlrev_b32", t[4], 10, t[0])); e(valu("v_add3_u32", vB2, t[4], t[2], sT1))
        e(salu("s_add_u32", sXs, sXs, sCT))
        e(salu("s_and_b32", sOut, sXs, 0xffff7fff)); e(salu("s_lshr_b32", sT0, sM0B, 1)); e(salu("s_add_u32", sOut, sOut, sT0))
        e(salu("s_lshl_b32", sRT, sRT, 2)); e(salu("s_add_u32", sRT, sRT, sW))
        e(valu("v_and_b32", t[4], 31, lane)); e(valu("v_lshlrev_b32", t[4], 10, t[4])); e(valu("v_add_u32", vTB, sCT, t[4]))
        e(valu("v_lshlrev_b32", t[0], 7, r2))
        e(valu("v_and_b32", t[1], 3, lane)); e(valu("v_lshlrev_b32", t[1], 3, t[1])); e(valu("v_add_u32", t[0], t[0], t[1]))
        e(valu("v_and_b32", t[2], 2, r2))
        e(valu("v_or_b32", t[3], t[2], ub)); e(valu("v_lshlrev_b32", t[3], 5, t[3]))
        e(valu("v_lshlrev_b32", t[4], 16, hh)); e(valu("v_add_u32", t[4], t[4], t[0]))
        if typ == "A":
            for j in range(2):
                e(valu("v_xor_b32", t[6], 64 * j, t[3])); e(valu("v_add_u32", vTR[4 + j], t[6], t[4]))
            e(valu("v_lshlrev_b32", t[6], 3, hh)); e(valu("v_add_u32", t[6], t[6], r2)); e(valu("v_lshlrev_b32", t[6], 6, t[6]))
            e(valu("v_lshlrev_b32", t[7], 16, ub)); e(valu("v_add3_u32", t[6], t[6], t[7], t[1]))
            e(valu("v_lshlrev_b32", t[7], 5, ub)); e(valu("v_add_u32", vTR[0], t[6], t[7]))
            e(valu("v_xor_b32", t[7], 32, t[7])); e(valu("v_add_u32", vTR[1], t[6], t[7]))
        else:
            e(valu("v_lshlrev_b32", t[5], 10, ub)); e(valu("v_add_u32", t[5], t[5], t[4]))
            for tt in range(4):
                e(valu("v_xor_b32", t[6], 32 * tt, t[3])); e(valu("v_add_u32", vTR[tt], t[6], t[5]))
        def park(reg, src): e(accw(a(aPARK + [str(x) for x in PARKED].index(str(reg))), src))
        e(valu("v_lshlrev_b32", t[4], 9, hh)); e(valu("v_add_u32", t[4], t[4], t[0]))
        e(salu("s_lshl_b32", sT0, sKH, 6)); e(valu("v_xor_b32", t[6], sT0, t[3]))
        e(valu("v_add_u32", t[5], t[6], t[4])); e(valu("v_xor_b32", t[6], 64, t[5]))
        e(salu("s_lshl_b32", sT0, sKH, 16)); e(salu("s_lshl_b32", sT1, sKH, 11)); e(salu("s_add_u32", sT1, sT1, TB))
        for j in range(2):
            e(valu("v_add_u32", t[7], sT0, t[5 + j])); park(vTR2[j], t[7])
            e(valu("v_add_u32", t[7], sT1, t[5 + j])); park(vTR2T[j], t[7])
        if typ == "A":
            e(valu("v_lshlrev_b32", t[4], 16, ub)); e(valu("v_lshlrev_b32", t[5], 15, hh)); e(valu("v_add3_u32", t[4], t[4], t[5], t[0]))
            e(valu("v_xor_b32", t[6], sW, t[2])); e(valu("v_lshlrev_b32", t[6], 5, t[6])); e(valu("v_add_u32", vW16, t[4], t[6]))
            e(salu("s_mul_i32", sT0, sW, 6144, scc_w=False)); e(salu("s_add_u32", sT0, sT0, TB)); e(valu("v_add_u32", vEX, sT0, vL16))
            e(valu("v_lshlrev_b32", t[4], 5, ub)); e(valu("v_add_u32", t[4], t[4], li)); e(valu("v_lshlrev_b32", t[4], 4, t[4]))
            e(valu("v_lshlrev_b32", t[5], 3, hh)); e(smov(sT0, TB)); e(valu("v_add3_u32", vHW, t[4], t[5], sT0))
            q = t[0]; bb = v(t[2].lo, 2)
            e(valu("v_and_b32", q, 31, lane)); e(valu("v_add_u32", t[1], 18, q))
            e(valu("v_mov_b32", t[4], 0x5555)); e(valu("v_mov_b32", t[5], 0))
            e(valu("v_lshlrev_b64", bb, t[1], v(t[4].lo, 2)))
            e(salu("s_or_b32", sT1, sRB, sW)); e(salu("s_cselect_b32", sT1, -1, 0, scc_w=False, scc_r=True))
            e(valu("v_and_b32", bb[0], sT1, bb[0]))
            e(valu("v_lshlrev_b32", t[1], 2, hh))
            e(valu("v_lshrrev_b32", bb[0], t[1], bb[0])); e(valu("v_lshrrev_b32", bb[1], t[1], bb[1]))
            e(valu("v_not_b32", bb[0], bb[0])); e(valu("v_not_b32", bb[1], bb[1]))
            e(smov(sT0, NEG))
            for r in range(24):
                rr = r if r < 16 else r - 8
                tmp = t[6 + (r & 1)]
                e(valu("v_bfe_i32", tmp, bb[1] if r < 16 else bb[0], 8 * (rr >> 2) + (rr & 3), 1))
                e(valu("v_and_b32", tmp, sT0, tmp)); e(accw(aMASK[r], tmp))
            e(valu("v_and_b32", t[2], 1, q)); e(valu("v_lshlrev_b32", t[2], 4, t[2]))
            e(valu("v_mov_b32", t[3], 0xffff)); e(valu("v_lshlrev_b32", vPM, t[2], t[3]))
            e(valu("v_bfe_i32", t[2], q, 4, 1)); e(valu("v_and_b32", vMHC, t[2], vPM)); e(valu("v_xor_b32", vMHP, vMHC, vPM))
        return o

    def tables(self):
        o = []; e = o.append
        e(salu("s_lshr_b32", sT1, sCT, 7))
        for g in (3, 2, 1, 0):
            e(salu("s_add_u32", sT0, sT1, g)); e(salu("s_and_b32", sT0, sT0, 3 if C.rot2 else 0))
            if not C.rot2: e(smov(sT0, g))
            e(salu("s_lshl_b32", sT0, sT0, 16))
            e(salu("s_add_u32", sG1[g], sB2c2, sT0))
            e(salu("s_mul_i32", sT0, sT0, 3, scc_w=False)); e(salu("s_add_u32", sG3[g], sB2c0, sT0))
        return o

    def b2_soff(self, n, dst):
        ks, cls, st = step_info(n)
        if cls == 1: return salu("s_add_u32", dst, sB2c1, ks * 16384)
        if cls == 2: g = (ks - 112) >> 2; return salu("s_add_u32", dst, sG1[g], (ks - 112 - 4 * g) * 16384)
        g = (ks - 16) // 12; return salu("s_add_u32", dst, sG3[g], (ks - 12 * g) * 16384)

    def code_touch(self):
        E = self.E
        if not C.touch_code: return
        t = v(201)
        E.line(f"s_getpc_b64 {sPC}")
        pcl = self.lab("pc"); E.label(pcl)
        E.emit(salu("s_and_b32", sT0, sJ, 1)); E.emit(salu("s_lshl_b32", sT0, sT0, 15))
        E.emit(valu("v_lshlrev_b32", t, 7, v(0))); E.emit(valu("v_add_u32", t, sT0, t))
        E.line(f"s_mov_b32 {sT0}, L_code_end-{pcl}-4")
        E.emit(valu("v_min_u32", t, sT0, t))
        E.emit(I(f"global_load_dword {aDUM0}, {t}, {sPC}", "vml", t.ids(), ()))

    def finish_stats(self, sm, sq, rinv, nb, t0, t1):
        e = self.E.emit
        e(valu("v_mul_f32", sm, sC512, sm))
        e(valu("v_mul_f32", t0, sm, sm))
        e(I(f"v_fma_f32 {sq}, {sq}, {sC512}, -{t0}", "valu", sq.ids() | t0.ids() | sC512.ids(), sq.ids()))
        e(valu("v_max_f32", sq, 0, sq))
        e(valu("v_cvt_pk_bf16_f32", t0, sm, sq))
        e(valu("v_and_b32", t1, sHI, t0))
        e(valu("v_add_f32", t1, 0x3727c5ac, t1))
        e(valu("v_cvt_pk_bf16_f32", t1, t1, t1)); e(valu("v_and_b32", t1, sHI, t1))
        e(valu("v_sqrt_f32", t1, t1))
        e(valu("v_cvt_pk_bf16_f32", t1, t1, t1)); e(valu("v_and_b32", t1, sHI, t1))
        e(valu("v_rcp_f32", rinv, t1))
        e(valu("v_lshlrev_b32", t0, 16, t0))
        e(I(f"v_mul_f32 {nb}, -{t0}, {rinv}", "valu", t0.ids() | rinv.ids(), nb.ids()))

    def norm_ops(self, reg, rinv, nb, k0=0):
        ops = []
        for d in range(4):
            lo = NT[(2 * (k0 + d)) % 8]; hi = NT[(2 * (k0 + d) + 1) % 8]; x = reg[d]
            ops += [valu("v_lshlrev_b32", lo, 16, x), valu("v_and_b32", hi, sHI, x),
                    valu("v_fma_f32", lo, lo, rinv, nb), valu("v_fma_f32", hi, hi, rinv, nb),
                    valu("v_cvt_pk_bf16_f32", x, lo, hi)]
        return ops

    def dots(self, reg, acc):
        ops = []
        for d in range(reg.n):
            ops.append(valu("v_dot2_f32_bf16", acc[d & 1], reg[d], sONE, acc[d & 1]))
            ops.append(valu("v_dot2_f32_bf16", acc[2 + (d & 1)], reg[d], reg[d], acc[2 + (d & 1)]))
        return ops

    def wrap(self, reg, q, span):
        return glue([scmp("s_cmp_eq_u32", sROT, 4 - q), salu("s_cselect_b32", sS2b, span, 0, scc_w=False, scc_r=True),
                     salu("s_sub_u32", reg, reg, sS2b)])

    def chunks(self, obj):
        k, j = obj
        if self.typ == "A":
            if k == "s1": return list(range(3 * (j % 7), 3 * (j % 7) + 3))
            return [6 + 2 * j, 7 + 2 * j]
        jj = j if k == "s1" else 16 + j
        return list(range(4 * (jj % 6), 4 * (jj % 6) + 4))

    def slab_dma(self, obj):
        L = self.L; k, j = obj; ch = self.chunks(obj); fl = C.w_fl
        def f(E): L.alloc(obj, ch)
        ops = [f, salu("s_add_u32", "m0", sM0B, 1024 * ch[0])]
        if k == "s1":
            st = 3072 if self.typ == "A" else 3584
            if self.typ == "A": ops += [dma(vH, SQKV, sS1, 1024 * u, obj, fl) for u in range(3)]
            else: ops += [dma(vG, SWG_, sS1, 0, obj, fl), dma(vU, SWU, sS1, 1024, obj, fl), dma(vG, SWG2, sS1, 2048, obj, fl), dma(vU, SWU2, sS1, 3072, obj, fl)]
            if j < 15: ops.append(salu("s_add_u32", sS1, sS1, 32 * st))
            if j % 4 == 3 and j < 15 and C.rot: ops.append(self.wrap(sS1, (j + 1) // 4, 512 * st))
        else:
            if self.typ == "A":
                ops += [salu("s_add_u32", sS2b, sS2, 16 * 3584 - 1024), dma(vG, SWH, sS2, 0, obj, fl), dma(vG, SWH, sS2b, 1024, obj, fl)]
            else:
                ops += [salu("s_add_u32", sS2b, sS2, 16 * 3584 - 2048), dma(vG, SWG_, sS2, 0, obj, fl), dma(vU, SWU, sS2, 1024, obj, fl),
                        dma(vG, SWG_, sS2b, 2048, obj, fl), dma(vU, SWU, sS2b, 3072, obj, fl)]
            if j < 7: ops.append(salu("s_add_u32", sS2, sS2, 64 * 3584))
            if j % 2 == 1 and j < 7 and C.rot: ops.append(self.wrap(sS2, (j + 1) // 2, 512 * 3584))
        return ops

    def b2_chunk(self, n):
        if self.typ == "A": tab = list(range(22, 32)) + list(range(0, 22)) + list(range(32, 40))
        else: tab = list(range(24, 32)) + list(range(0, 24)) + list(range(32, 40))
        return tab[n % 40]

    def b2_dma(self, n):
        L = self.L
        ks, cls, _ = step_info(n)
        ch = self.b2_chunk(n)
        def f(E): L.alloc(("b2", n), [ch])
        return [f, salu("s_add_u32", "m0", sM0B, 1024 * ch) if ch < 32 else salu("s_add_u32", "m0", sM0T, 4096 * (ch - 32)),
                self.b2_soff(n, sB2s),
                dma(vB2, SWO if cls == 2 else SWD, sB2s, 0, ("b2", n), C.b2_fl)]

    def bar(self, cover, m_done, lds_all=False, lds_tags=()):
        L = self.L
        def f(E):
            E.wait_tags(lds=list(lds_tags) + list(cover), vm=cover)
            if lds_all: E.wait_all_lds()
            if not (C.dbg_bar and cover and cover[0][0] == "b2"): E.barrier()
            L.visible |= set(cover); L.bar_m = m_done
        return f

    def acc1(self, t): return ACC1(t) if t < 6 else a(112 + 16 * (t - 6), 16)

    def seq(self, typ):
        out = []
        order = [2, 3, 4, 5, 0, 1] if typ == "A" else list(range(8))
        s1 = [(ks, t) for ks in range(28) for t in order] + [(ks, t) for t in order for ks in range(28, 32)]
        for ks, t in s1:
            obj = ("s1", ks // 2); base = (ks & 1) * 32768 + self.chunks(obj)[0] * 1024
            if True:
                if typ == "A":
                    out.append(dict(acc=ACC1(t), x=X(ks), sw=(t >= 4), obj=obj, addr=vTR[4 + (t & 1)],
                                    imm=base + (t >> 1) * 1024, st=512, first=(ks == 0)))
                else:
                    out.append(dict(acc=self.acc1(t), x=X(ks), sw=False, obj=obj, addr=vTR[t & 3], imm=base + (t >> 2) * 2048, st=512, first=(ks == 0)))
        nt = self.nt2
        s2 = [(ks, t) for ks in range(24) for t in range(nt)] + [(ks, t) for t in range(nt) for ks in range(24, 32)]
        for ks, t in s2:
            obj = ("s2", ks // 4); k = ks & 3
            out.append(dict(acc=ACC2(t), x=X(ks), sw=False, obj=obj, addr=vTR[t],
                            imm=(k >> 1) * 32768 + self.chunks(obj)[0] * 1024 + (k & 1) * (1024 if typ == "A" else 2048),
                            st=256 if typ == "A" else 512, first=(ks == 0)))
        for n in range(72):
            iso = step_info(n)[1] == 2
            for j in range(2):
                ch = self.b2_chunk(n)
                out.append(dict(acc=(ACCS if iso else ACCD)[j], x=n, sw=False, obj=("b2", n),
                                addr=vTR2[j] if ch < 32 else vTR2T[j], imm=ch * 1024 if ch < 32 else (ch - 32) * 4096,
                                st=32768 if ch < 32 else 1024, first=(n in (0, 40))))
        for m, o in enumerate(out): self.L.last_use[o["obj"]] = m
        return out

    def wreads(self, m):
        o = self.SEQ[m]; L = self.L
        def f(E): assert o["obj"] in L.visible, ("read of invisible", m, o["obj"])
        return [f, ds_tr(WF(m).sub(0, 2), o["addr"], o["imm"]), ds_tr(WF(m).sub(2, 2), o["addr"], o["imm"] + o["st"])]

    def main(self, m):
        o = self.SEQ[m]
        if isinstance(o["x"], int):
            def mk(peek):
                if peek and o["x"] not in self.a2slot: return None
                return mfma(o["acc"], WF(m), self.a2slot[o["x"]]["r"], 0 if o["first"] else o["acc"])
            mn = dict(pre=[], m=mk, fix=[])
            if m & 1: mn["fix"].append(lambda E: self.pool.give(E, self.a2slot[o["x"]]))
        else:
            A_, B_ = (o["x"], WF(m)) if o["sw"] else (WF(m), o["x"])
            mn = dict(pre=[], m=mfma(o["acc"], A_, B_, 0 if o["first"] else o["acc"]), fix=[])
        if m + C.D < len(self.SEQ): mn["fix"] += self.wreads(m + C.D)
        return mn

    def spin_check_tag(self):
        def f(E):
            ok = self.lab("tagok"); sp = self.lab("tagspin")
            E.emit(rfl(sTAG, vTAG))
            E.emit(scmp("s_cmp_eq_u32", sTAG, 0))
            E.line(f"s_cbranch_scc1 {sp}")
            E.label(ok)
            self.cold += [f"{sp}:", f"    s_mov_b32 {sSPIN}, 0", f"{sp}_l:",
                          f"    buffer_load_dword {vTAG}, off, {SDBG}, 0 sc1", f"    s_add_u32 {sSPIN}, {sSPIN}, 1",
                          "    s_waitcnt vmcnt(0)", f"    v_readfirstlane_b32 {sTAG}, {vTAG}",
                          f"    s_cmp_ge_u32 {sSPIN}, {C.spin_max}", f"    s_cbranch_scc1 {ok}",
                          f"    s_cmp_eq_u32 {sTAG}, 0", f"    s_cbranch_scc1 {sp}_l", f"    s_branch {ok}"]
        return f

    def poll_load(self, stage):
        return vload(vPOLL, vP4, SWS, sFLR, 128 * stage, fl="sc1")

    def gate(self, stage):
        def f(E):
            ok = self.lab("gateok"); sp = self.lab("gatespin")
            self.stamp(f"g{stage}a")
            E.emit(vcmp("v_cmp_ne_u32", "vcc", sTAG, vPOLL))
            E.line(f"s_cbranch_vccnz {sp}")
            E.label(ok)
            self.cold += [f"{sp}:", f"    s_mov_b32 {sSPIN}, 0", f"{sp}_l:",
                          f"    buffer_load_dword {vPOLL}, {vP4}, {SWS}, {sFLR} offen offset:{128 * stage} sc1",
                          f"    s_add_u32 {sSPIN}, {sSPIN}, 1", f"    s_cmp_ge_u32 {sSPIN}, {C.spin_max}", f"    s_cbranch_scc1 {ok}",
                          "    s_waitcnt vmcnt(0)", f"    v_cmp_ne_u32 vcc, {sTAG}, {vPOLL}", f"    s_cbranch_vccnz {sp}_l", f"    s_branch {ok}"]
            self.stamp(f"g{stage}b")
        return f

    def flag_store(self, stage, tags):
        def f(E):
            self.stamp(f"f{stage}a")
            E.wait_tags(vm=tags)
            self.stamp(f"f{stage}b")
            E.emit(vstore(vTAG, None, SWS, sFLW, 128 * stage, fl="sc1"))
        return f

    def a2_load(self, n):
        ks, cls, _ = step_info(n)
        o = []
        if self.a2base is None or self.a2base[0] != cls or not (0 <= ks - self.a2base[1] < 4):
            self.a2base = (cls, ks)
            if cls == 1: o.append(salu("s_add_u32", sA2s, sA2c1, ks * 1024))
            else:
                g = (ks - 112) >> 2 if cls == 2 else (ks - 16) // 12
                o += [salu("s_lshr_b32", sA2s, (sG1 if cls == 2 else sG3)[g], 4),
                      salu("s_add_u32", sA2s, sA2s, sA2c0),
                      salu("s_add_u32", sA2s, sA2s, (ks - 4 * g if cls == 2 else ks - 12 * g) * 1024)]
        imm = (ks - self.a2base[1]) * 1024
        def f(E):
            x = self.a2slot[n] = self.pool.take(E, "A")
            if not (C.dbg_a2 and n >= C.dbg_a2): E.emit(vload(x["r"], vL16, SWS, sA2s, imm, fl=C.a2_fl))
        f.vm = True; f.ready = lambda E: self.pool.find(E, "A") is not None
        return o + [f]

    def raw_load(self, n):
        ks, cls, _ = step_info(n)
        def f(E):
            x = self.rawslot[n] = self.pool.take(E, "R")
            E.emit(vload(x["r"], vB2, SWO if cls == 2 else SWD, sXo, 0, fl=C.b2_fl))
        f.vm = True; f.ready = lambda E: self.pool.find(E, "R") is not None
        return [self.b2_soff(n, sXo), f]

    def h_epilogue(self, T, sbase, imm, tag):
        ops = [valu("v_mul_f32", T[r], T[r], T[r + 8]) for r in range(8)]
        ops += [valu("v_cvt_pk_bf16_f32", T[r], T[2 * r], T[2 * r + 1]) for r in range(4)]
        ops.append(vstore(T.sub(0, 4), vL16, SWS, sbase, imm, tag, C.st_fl))
        return ops

    def body(self, typ):
        E = self.E; e = E.emit
        self.L = L = LDSMap()
        E.m0_owner = None
        self.typ = typ
        isA = typ == "A"
        nt1, nt2 = (6, 2) if isA else (8, 4)
        self.nt2 = nt2
        M2 = self.M2 = 32 * nt1; M3 = self.M3 = M2 + 32 * nt2
        self.SEQ = self.seq(typ)
        self.a2base = None
        self.cold = []
        self.lane = v(200); self.vx = [v(204 + g) for g in range(4)]; self.hs = [v(196), v(197)]
        self.xa = xa = [v(216 + q) for q in range(4)]; self.acc = acc = [v(220 + q) for q in range(4)]
        self.ha = ha = [v(144 + i) for i in range(5)]; self.hacc = hacc = [v(149 + i) for i in range(4)]
        self.stamp("t0")
        if C.stamps: E.line("s_memrealtime s[0:1]")
        first = self.setup_first(typ)
        rest = self.consts(typ)
        E.emits(first)
        k = max(0, C.npre - len(first))
        while SCC in rest[k].r: k += 1
        E.emits(rest[:k]); rest = rest[k:]
        E.line("s_waitcnt lgkmcnt(0)")
        self.stamp("karg")
        def inplace(d, size, other, shift=0):
            o = []
            if other is not None and shift: o += [salu("s_sub_u32", other[0], d[2], shift), salu("s_subb_u32", other[1], d[3], 0, scc_r=True)]
            elif other is not None: o += [smov(other[0], d[2]), smov(other[1], d[3])]
            return o + [smov(d[2], size), smov(d[3], 0x20000)]
        E.emits(inplace(SX, 0x200000, SQKV if isA else None))
        if isA: E.emits(inplace(SDBG, 256, SWS))
        def xd(sl):
            o = [salu("s_add_u32", "m0", sM0B, 4096 * sl), salu("s_add_u32", sA2s, sXo, sXk)]
            o += [dma(self.vx[g], SX, sA2s, 1024 * g, tag=("x", sl), fl=C.x_fl) for g in range(4)]
            if sl < 7: o += [salu("s_add_u32", sXk, sXk, 128), salu("s_and_b32", sXk, sXk, 1023)]
            return o
        if isA:
            for ee in range(2):
                for g in range(2):
                    e(salu("s_add_u32", "m0", sS2b, TB + 2048 * ee + 1024 * g))
                    e(dma(self.hs[g], SX, sHo, 0, tag="halo", fl=C.x_fl))
                if ee == 0: e(salu("s_add_u32", sHo, sHo, 128))
            lskip = self.lab("noep")
            e(salu("s_or_b32", sSPIN, sWG, sW))
            E.line(f"s_cbranch_scc1 {lskip}")
            E.line(f"s_mov_b32 {sSPIN}, {WS_EPOCH}")
            E.line(f"buffer_load_dword {vPOLL}, off, {SWS}, {sSPIN} sc1")
            E.label(lskip)
        E.emits(xd(0))
        if isA:
            if C.touch_w0: e(self.touch(vTW, SQKV, sT5, fl=C.w_fl))
        else:
            E.emits([salu("s_sub_u32", SWU2[0], SWG_[2], 2944), salu("s_subb_u32", SWU2[1], SWG_[3], 0, scc_r=True),
                     salu("s_sub_u32", SWG2[0], SWG_[0], 1920), salu("s_subb_u32", SWG2[1], SWG_[1], 0, scc_r=True)])
            E.emits(inplace(SWG_, 512 * 3584, SWU, 1024))
            if C.touch_w0: e(self.touch(vTW, SWG_, sT5, fl=C.w_fl)); e(self.touch(vTW, SWU, sT5, 1024, fl=C.w_fl))
        E.emits(xd(1))
        nx = 2
        if not isA: E.emits(xd(2)); nx = 3
        self.stamp("issued")
        if isA:
            e(scmp("s_cmp_ge_u32", sW, 2))
            e(salu("s_cselect_b32", SWH[0], SWG_[2], SWG_[0], scc_w=False, scc_r=True))
            e(salu("s_cselect_b32", SWH[1], SWG_[3], SWG_[1], scc_w=False, scc_r=True))
        else:
            E.emits(inplace(SDBG, 256, SWS))
        E.emits(inplace(SWD, 1792 * 1024, SOUT) + inplace(SWO, 512 * 1024, None))
        E.emits(rest)
        if C.stamps: E.line("v_accvgpr_write_b32 a198, s0")
        E.emits(self.tables())
        self.stamp("rest")
        if C.pads:
            E.line("s_mov_b64 exec, 0")
            for w_ in (1, 2, 3):
                E.line(f"s_cmp_eq_u32 {sW}, {w_}"); E.line(f"s_cbranch_scc1 L_pad{typ}_{w_}")
            E.line(f"s_branch L_pad{typ}_0")
            E.label(f"L_back{typ}")
            E.line("s_mov_b64 exec, -1")
            E.out.append(f";PADS_FROM {typ}")
        self.stamp("pads")
        if isA:
            hx = v(128, 16); pr = v(154, 2); tp = v(156, 2); pp = v(158, 8)
            E.wait_tags(vm=["halo"])
            self.epoch_publish()
            for ee in range(2):
                for b in range(2): e(ds_rd(hx.sub(4 * (2 * ee + b), 4), ha[b], 2048 * ee))
            E.emits(xd(2)); nx = 3
            E.emits(self.dots(hx, hacc))
            e(valu("v_add_f32", pr[0], hacc[0], hacc[1])); e(valu("v_add_f32", pr[1], hacc[2], hacc[3]))
            for sw in (swap16, swap32):
                e(valu("v_mov_b32", tp[0], pr[0])); e(valu("v_mov_b32", tp[1], pr[1]))
                e(sw(pr[0], tp[0])); e(sw(pr[1], tp[1]))
                e(valu("v_add_f32", pr[0], pr[0], tp[0])); e(valu("v_add_f32", pr[1], pr[1], tp[1]))
            e(ds_wr(ha[3], pr, 0, tag="hp"))
        for sl in range(9):
            if sl < 8:
                E.wait_tags(vm=[("x", sl)])
                self.stamp(f"x{sl}")
                for q in range(4): e(ds_rd(X(4 * sl + q), xa[q], 4096 * sl))
                if nx == 7:
                    for it in self.slab_dma(("s1", 0)): run_item(E, it)
                if nx < 8: E.emits(xd(nx)); nx += 1
            if isA and sl == 0:
                E.wait_tags(lds=["hp"]); E.barrier()
                for w_ in range(4): e(ds_rd(pp.sub(2 * w_, 2), ha[2], 4096 * w_))
            if isA and sl == 1:
                e(valu("v_add_f32", pr[0], pp[0], pp[2])); e(valu("v_add_f32", pr[1], pp[1], pp[3]))
                e(valu("v_add_f32", tp[0], pp[4], pp[6])); e(valu("v_add_f32", tp[1], pp[5], pp[7]))
                e(valu("v_add_f32", pr[0], pr[0], tp[0])); e(valu("v_add_f32", pr[1], pr[1], tp[1]))
                self.finish_stats(pr[0], pr[1], vRINV, vNB, tp[0], tp[1])
            if isA and 1 <= sl <= 4:
                E.emits(self.norm_ops(hx.sub(4 * (sl - 1), 4), vRINV, vNB))
                e(ds_wr(ha[4], hx.sub(4 * (sl - 1), 4), 1024 * (sl - 1), tag="hxw"))
            if sl > 0:
                E.emits(self.dots(v(16 * (sl - 1), 16), acc))
                L.xread.add(sl - 1)
                if 5 <= sl <= (7 if isA else 6):
                    for it in self.slab_dma(("s1", sl - 4)): run_item(E, it)
        self.stamp("xdone")
        e(valu("v_add_f32", acc[0], acc[0], acc[1])); e(valu("v_add_f32", acc[2], acc[2], acc[3]))
        e(valu("v_mov_b32", acc[1], acc[0])); e(valu("v_mov_b32", acc[3], acc[2]))
        e(swap32(acc[0], acc[1])); e(swap32(acc[2], acc[3]))
        e(valu("v_add_f32", acc[0], acc[0], acc[1])); e(valu("v_add_f32", acc[2], acc[2], acc[3]))
        self.bar([("s1", 0), ("s1", 1)], -1, lds_tags=["hxw"])(E)
        for m in range(C.D):
            for it in self.wreads(m): run_item(E, it)
        self.finish_stats(acc[0], acc[2], vRINV, vNB, acc[1], acc[3])
        E.emits(self.norm_ops(X(0), vRINV, vNB))
        self.stamp("s1")

        mains = [self.main(m) for m in range(len(self.SEQ))]
        D = C.D
        qN = Q("norm"); qD = Q("dma"); qH = Q("halo"); qB = Q("b2"); qW = Q("raw", hard=False); qU = Q("dump", vm_age=0)
        qE = Q("epi"); qE2 = Q("epi2", hard=False, top=True); qR = Q("restore"); qFl = Q("flag", top=True)
        self.pool = pool = Pool(); self.a2slot = {}; self.rawslot = {}; self.mark = {}
        started = lambda q: (len(q.items) > 0 and q.empty())
        pool.add(a(200, 56), "AR")
        pool.add(a(192, 4), "A", lambda: started(qR))
        if isA:
            pool.add(a(80, 32), "AR")
            pool.add(a(112, 24), "AR", lambda: self.mark.get("masks"))
            pool.add(a(160, 32), "A", lambda: self.mark.get("masks"))
            pool.add(a(48, 32), "A", lambda: started(qE2))
            pool.add(a(136, 24), "A", lambda: started(qE)); pool.add(v(128, 96), "A", lambda: started(qE))
            rawl = list(range(22, 32)) + list(range(40, 72))
        else:
            pool.add(a(144, 16), "AR"); pool.add(a(160, 32), "A")
            pool.add(a(112, 32), "AR", lambda: started(qE)); pool.add(v(128, 96), "AR", lambda: started(qE))
            pool.add(a(48, 64), "A", lambda: started(qE2))
            rawl = list(range(20, 32)) + list(range(40, 72))
        rawit = {}
        if C.raw:
            for n in rawl:
                rawit[n] = self.raw_load(n)
                qW.adds(rawit[n], earliest=C.raw0, deadline=M3 + 16 * (n // 8) - C.D - 40)
        def place(n):
            def f(E):
                need = M3 + 16 * (n // 8) - C.D
                if n in self.rawslot:
                    ch = self.b2_chunk(n); x = self.rawslot[n]
                    qU.add(lambda E: L.alloc(("b2", n), [ch]), deadline=need - 3)
                    if not C.dbg_dump: qU.add(ds_wr(vWQ, x["r"], 1024 * ch, tag=("b2", n)), deadline=need - 3)
                    qU.add(lambda E: pool.give(E, x), deadline=need - 3)
                else:
                    for it in rawit.get(n, []): it.dead = True
                    b2_add(n, E.gap)
            return f
        def b2_add(n, gap):
            qB.adds(self.b2_dma(n), earliest=gap, deadline=max(M3 + 16 * (n // 8) - D - C.b2lead, gap + 2))
        def barrier(gap, cover, name, **kw):
            mains[gap]["npre"] = 2
            mains[gap]["pre"] += [lambda E: self.stamp(name + "a"), self.bar(cover, gap - 1, **kw), lambda E: self.stamp(name)]
        for ks in range(1, 32):
            qN.adds(self.norm_ops(X(ks), vRINV, vNB, ks * 4), earliest=max(0, nt1 * (ks - C.nahead) - 1),
                    deadline=nt1 * ks if ks < 28 else nt1 * 28 + ks - 28)
        for j in (range(4, 7) if isA else range(3, 5)): qD.adds(self.slab_dma(("s1", j)), earliest=0, deadline=17 if isA else 20)
        L.last_use[("T",)] = M2 + 40 if isA else -1
        warm = []
        if C.touch_b2:
            warm = [[salu("s_lshl_b32", sT5, sRT, 14), self.touch(vTB, SWD, sT5, fl=C.b2_fl)],
                    [salu("s_lshr_b32", sT5, sRT, 1), salu("s_lshl_b32", sT5, sT5, 2), salu("s_add_u32", sT5, sT5, sRT),
                     salu("s_add_u32", sT5, sT5, 12), salu("s_lshl_b32", sT5, sT5, 15), self.touch(vTB, SWD, sT5, fl=C.b2_fl)],
                    [salu("s_lshl_b32", sT5, sRT, 15), self.touch(vTB, SWO, sT5, fl=C.b2_fl)]]
        tagload = vload(vTAG, None, SDBG, 0, fl="sc1")
        pre = []
        if C.pre_a2:
            pre = [valu("v_lshlrev_b32", vTW, 3, vL16)]
            if isA: pre += [valu("v_min_u32", vTW, 4095, vTW), self.touch(vTW, SWS, sStF), valu("v_min_u32", vTW, 2047, vTW), self.touch(vTW, SWS, sSt2)]
            else: pre += [self.touch(vTW, SWS, sStF), valu("v_min_u32", vTW, 4095, vTW), self.touch(vTW, SWS, sSt2)]
        def slab(jj): return ("s1", jj) if jj < 16 else ("s2", jj - 16)
        if isA:
            b2q = list(range(10))
            for g in range(1, 9):
                gap = 24 * g - D
                barrier(gap, [("s1", 2 * g), ("s1", 2 * g + 1)] if g < 8 else [("s2", j) for j in range(4)], f"b{g}")
                its = []
                for j in (2 * g + 4, 2 * g + 5):
                    if 7 <= j < 16: its += self.slab_dma(("s1", j))
                for j in {6: [0, 1, 2], 7: [3, 4, 5], 8: [6, 7]}.get(g, []): its += self.slab_dma(("s2", j))
                if 3 <= g <= 5 and warm: its += warm[g - 3]
                if g == 6: its.append(tagload)
                if g == C.pre_a2: its += pre
                for _ in range({2: 2, 3: 2, 4: 2, 5: 2, 6: 2}.get(g, 0)): b2_add(b2q.pop(0), gap + 6)
                qD.adds(its, earliest=gap, deadline=gap + (14 if g == 7 else 23))
            for j in range(16):
                g0 = max(0, 12 * j - D + 1)
                b = j & 1; ch = self.chunks(("s1", j))[0] * 1024
                its = [ds_rd(aXH[b], vHX, 1024 * j)]
                for u in range(2):
                    its += [ds_tr(aW16[b][u].sub(0, 2), vW16, ch + 1024 * (1 + u)), ds_tr(aW16[b][u].sub(2, 2), vW16, ch + 1024 * (1 + u) + 512)]
                qH.adds(its, earliest=g0, deadline=12 * j + 4)
                qH.add(mfma(aHACC[0], aW16[b][0], aXH[b], 0 if j == 0 else aHACC[0], "16x16x32"), earliest=g0, deadline=12 * j + 8)
                qH.add(mfma(aHACC[1], aXH[b], aW16[b][1], 0 if j == 0 else aHACC[1], "16x16x32"), earliest=12 * j + 7, deadline=12 * j + 10)
            gap = M2 + 32 - D
            barrier(gap, [("s2", j) for j in range(4, 8)], "mid", lds_tags=["exw"])
            for n in range(10, 22): b2_add(n, gap)
            first_use = {0: list(range(22, 28)) + list(range(32, 40)), 1: list(range(28, 32))}
        else:
            b2q = list(range(8)) + list(range(32, 40)) + list(range(8, 20))
            for g in range(1, 12):
                gap = 32 * g - D
                barrier(gap, [slab(2 * g), slab(2 * g + 1)], f"b{g}")
                its = []
                for jj in {8: (19,), 9: (20, 21, 22)}.get(g, (2 * g + 3, 2 * g + 4)):
                    if jj < 24: its += self.slab_dma(slab(jj))
                if 3 <= g <= 5 and warm: its += warm[g - 3]
                if g == 6: its.append(tagload)
                if g == C.pre_a2: its += pre
                for _ in range({2: 3, 3: 3, 4: 3, 5: 3, 6: 4, 10: 4, 11: 8}.get(g, 0)): b2_add(b2q.pop(0), gap + (10 if g < 10 else 0))
                qD.adds(its, earliest=gap, deadline=gap + (18 if g != 9 else 26))
            first_use = {0: list(range(20, 24)), 1: list(range(24, 32))}
        assert not b2q
        def xfree(reg): return M2 + nt2 * ((reg.lo + reg.n - 1) // 4) + nt2 - 1
        qFl.add(self.spin_check_tag(), earliest=M2 - 8, deadline=M2 - 4)
        def after(q, stage, tags):
            def arm(E):
                f = self.flag_store(stage, tags); p0 = E.pos; g0_ = E.gap
                fd = C.flagd if stage == 0 else C.flagl
                f.ready = lambda E: ((E.pos - p0) * 4 + (E.gap - g0_) * 8 >= fd or (E.gap - g0_) * 33 >= fd
                                     or not any(x[2] in tags for x in E.vq))
                qFl.add(f, earliest=E.gap)
            q.add(arm)
        if not isA:
            for t in range(8):
                T = ACC1(t % 6)
                its = [accr(T[r], self.acc1(t)[r]) for r in range(16)] if t >= 6 else []
                qE.adds(its + self.h_epilogue(T, sStF if t < 4 else sStH, 1024 * (t & 3), "h1"), earliest=nt1 * 28 + 4 * t + 3, deadline=nt1 * 28 + 4 * t + 8, hard=False)
            after(qE, 0, ["h1"])
        else:
            self.attention(qE, xfree)
            n0 = self.exw_check[1]; nn = len(qE.items)
            for k in range(n0, nn):
                it, ear, dl, hd = qE.items[k]
                qE.items[k] = (it, ear, int(M2 + 20 + (M3 + C.att_end - M2 - 20) * (k - n0) / (nn - n0)), False)
            after(qE, 3, ["o"])
        schedule(E, mains[:M2], [qN, qD, qH, qB, qW, qFl, qE], lambda g: (C.cap1A if isA else C.cap1B) if g < nt1 * 28 else C.cap1t,
                 0, flush=False, vm_gap=2)
        assert qN.empty() and qH.empty()
        self.stamp("s2")

        qL = Q("a2"); qF = Q("fin", vm_age=60); qP = Q("poll", top=True)
        g0 = M3 + (C.gate0A if isA else C.gate0B)
        for n_, dst in enumerate(PARKED):
            qR.add(accr(dst, a(aPARK + n_)), earliest=xfree(dst), deadline=min(g0, M3 - D) - 2)
        qR.add(valu("v_add_u32", vWQ, sM0B, vL16), earliest=xfree(vWQ), deadline=min(g0, M3 - D) - 2)
        tail = M2 + 24 * nt2
        for t in range(nt2):
            its = [accr(E2T[r], ACC2(t)[r]) for r in range(16)] + self.h_epilogue(E2T, sSt2, 1024 * t, "h2")
            qE2.adds(its, earliest=tail + 8 * t + 7, deadline=tail + 8 * t + 16)
        after(qE2, 1 if isA else 2, ["h2"])
        mains[M3]["pre"].append(lambda E: self.stamp("p2"))
        for n_ in range(72): mains[M3 + 2 * n_]["fix"].insert(0, lambda E, n_=n_: self.stamp(f"n{n_}"))
        gates = {0: g0, 32: M3 + 2 * (32 - C.la1), 40: M3 + 2 * (40 - C.la2), 56: M3 + 2 * (56 - C.la3)}
        def chk_free(q):
            def f(E): assert q.empty(), ("A2 slot still in use", q.name, E.gap)
            f.ready = lambda E: q.empty()
            return f
        cur = 0
        for n in range(72):
            if n in gates:
                cur = gates[n]; st = step_info(n)[2]; n0 = n
                qP.add(self.poll_load(st), earliest=cur - C.polld, deadline=cur - C.polld + 2)
                qL.add(self.gate(st), earliest=cur, deadline=cur + 1)
            its = self.a2_load(n)
            qL.adds(its, earliest=cur, deadline=max(M3 + 2 * n - C.a2lead, cur + 2 + (n - n0)), hard=False)
            qL.add(lambda E: None, earliest=cur, deadline=M3 + 2 * n - 6)
        b2q = list(range(40, 72))
        for c in range(9):
            gap = M3 + 16 * c - D
            barrier(gap, [("b2", n) for n in range(8 * c, 8 * c + 8)] + (["xt"] if c == 7 else []), f"c{c}",
                    lds_tags=["sw", "xr"] if c == 8 else ())
            for n in first_use.get(c, []): mains[gap]["pre"].append(place(n))
            while b2q and L.last_use[("b2", b2q[0] - 40)] <= gap - 1: mains[gap]["pre"].append(place(b2q.pop(0)))
        assert not b2q
        RD = v(0, 16); SF = v(16, 16); XF = v(48, 16); XR = v(224, 8); tt = v(32, 4)
        vRW = vTR[0]; vRR = vTR[1]; vOW = vTR[2]; vOR = vTR[3]; vOO = vTR[4]; vXD = vTR[5]; vXA = vG
        qF.add(chk_free(qE), earliest=M3 + 40); qF.add(chk_free(qE2), earliest=M3 + 40)
        its = [valu("v_lshrrev_b32", tt[0], 4, vL16), valu("v_and_b32", tt[1], 31, tt[0]),
               valu("v_lshrrev_b32", tt[2], 5, tt[0]), valu("v_lshlrev_b32", tt[2], 3, tt[2]),
               salu("s_lshr_b32", sT0, sM0B, 3), salu("s_add_u32", sT0, sT0, TB), valu("v_add_u32", vRW, sT0, vL16),
               valu("v_xor_b32", vRR, 8192, vRW),
               salu("s_and_b32", sT0, sW, 1), salu("s_lshl_b32", sT1, sT0, 12), salu("s_add_u32", sT1, sT1, TB + 16384),
               valu("v_lshlrev_b32", tt[3], 7, tt[1]), valu("v_add3_u32", vXA, tt[3], tt[2], sT1),
               valu("v_and_b32", tt[3], 7, tt[0]), valu("v_lshlrev_b32", tt[3], 4, tt[3]),
               salu("s_lshl_b32", sT1, sKH, 6), valu("v_xor_b32", tt[3], sT1, tt[3]), valu("v_add_u32", vXA, vXA, tt[3]),
               salu("s_mul_i32", sT0, sT0, 32 * 144, scc_w=False), salu("s_add_u32", sT0, sT0, sT1), salu("s_add_u32", sT0, sT0, TB),
               valu("v_mul_u32_u24", tt[1], 144, tt[1]), valu("v_add3_u32", vOW, tt[1], tt[2], sT0),
               valu("v_lshrrev_b32", tt[1], 3, tt[0]), valu("v_and_b32", tt[2], 0x70, vL16),
               valu("v_lshl_add_u32", vOO, tt[1], 10, tt[2]),
               valu("v_lshlrev_b32", tt[3], 4, tt[1]), valu("v_xor_b32", vXD, vOO, tt[3]),
               salu("s_mul_i32", sT0, sW, 16 * 144, scc_w=False), salu("s_add_u32", sT0, sT0, TB),
               valu("v_mul_u32_u24", tt[1], 144, tt[1]), valu("v_add3_u32", vOR, tt[1], tt[2], sT0),
               salu("s_lshl_b32", sXk, sW, 11), salu("s_add_u32", sXs, sOut, 8192 - 1024)]
        qF.adds(its, earliest=M3 + 40, deadline=M3 + 96 - D - 1)
        qD.adds([salu("s_add_u32", "m0", sXk, TB + 16384), dma(vXD, SX, sOut, 0, "xt"), dma(vXD, SX, sXs, 1024, "xt")],
                earliest=M3 + 96 - D, deadline=M3 + 96 - D + 4)
        its = []
        for a_ in range(4):
            its += [valu("v_xor_b32", tt[a_], 16 * a_, vXA), ds_rd(XR.sub(2 * a_, 2), tt[a_], 0, tag="xr")]
        qF.adds(its, earliest=M3 + 112 - D, deadline=M3 + 128 - D - 1)
        qF.adds([ds_wr(vRW, ACCS[1].sub(4 * i, 4), 1024 * i, tag="sw") for i in range(4)], earliest=M3 + 111, deadline=M3 + 128 - D)
        its = []
        for r in range(8):
            its += [valu("v_lshlrev_b32", XF[2 * r], 16, XR[r]), valu("v_and_b32", XF[2 * r + 1], sHI, XR[r])]
        qF.adds(its, earliest=M3 + 112)
        its = [ds_rd(SF.sub(4 * i, 4), vRR, 1024 * i) for i in range(4)]
        its += [valu("v_add_f32", SF[r], SF[r], ACCS[0][r]) for r in range(16)]
        its.append(salu("s_add_u32", sXs, sOut, 8192))
        qF.adds(its, earliest=M3 + 128 - D)
        cap2 = C.cap2A if isA else C.cap2B
        def capf(g):
            if not isA and not qE.empty(): return C.cap2h
            if g < tail + 7: return cap2
            if g < M3: return C.cap2t
            if not qE2.empty(): return 40
            return C.cap3 if qE.empty() else C.cap3x
        schedule(E, mains[M2:], [qFl, qP, qD, qL, qB, qW, qU, qR, qE2, qE, qF], capf, M2, flush=False,
                 vm_gap=lambda g: 2 if g < M3 else 1)
        assert qL.empty() and qD.empty() and qB.empty() and qE.empty() and qE2.empty() and qFl.empty()
        self.stamp("lastm")
        while not qF.empty():
            it = qF.head()[0]; qF.n += 1; run_item(E, it)
        for i in range(4): e(ds_wr(vRW, ACCD[1].sub(4 * i, 4), 16384 + 1024 * i, tag="dw"))
        E.wait_tags(lds=["dw"]); E.barrier()
        self.stamp("sbar")
        for i in range(4): e(ds_rd(RD.sub(4 * i, 4), vRR, 16384 + 1024 * i))
        G = ACCS[1]
        for a_ in range(4):
            rr = range(4 * a_, 4 * a_ + 4)
            for r in rr: e(valu("v_add_f32", RD[r], RD[r], ACCD[0][r]))
            for r in rr: e(valu("v_mul_f32", G[r], 0xbfb8aa3b, RD[r]))
            for r in rr: e(valu("v_exp_f32", G[r], G[r]))
            for r in rr: e(valu("v_mul_f32", RD[r], RD[r], SF[r]))
            for r in rr: e(valu("v_add_f32", G[r], 1.0, G[r]))
            for r in rr: e(valu("v_rcp_f32", G[r], G[r]))
        for a_ in range(4):
            rr = range(4 * a_, 4 * a_ + 4)
            for r in rr: e(valu("v_fma_f32", RD[r], RD[r], G[r], XF[r]))
            for d in range(2): e(valu("v_cvt_pk_bf16_f32", XR[2 * a_ + d], RD[4 * a_ + 2 * d], RD[4 * a_ + 2 * d + 1]))
            e(ds_wr(vOW, XR.sub(2 * a_, 2), 16 * a_))
        E.wait_all_lds(); E.barrier()
        for p in range(2): e(ds_rd(G.sub(4 * p, 4), vOR, 8 * 144 * p))
        for p in range(2): e(vstore(G.sub(4 * p, 4), vOO, SOUT, sXs if p else sOut, 0, fl=C.out_fl))
        self.stamp("end")
        if C.amp:
            k0, k1 = [STAMP0 + 2 * int(x) for x in C.amp.split("-")]
            l = self.lab("amp")
            E.line("s_waitcnt lgkmcnt(0)")
            E.line(f"s_sub_u32 {sT0}, s{k1}, s{k0}"); E.line(f"s_lshl_b32 {sT0}, {sT0}, 2"); E.line(f"s_add_u32 {sT0}, {sT0}, s{STAMP0 + 16}")
            E.label(l)
            E.line("s_memrealtime s[84:85]"); E.line("s_waitcnt lgkmcnt(0)"); E.line(f"s_sub_u32 s84, s84, {sT0}")
            E.line("s_cmp_lt_i32 s84, 0"); E.line(f"s_cbranch_scc1 {l}")
        elif C.stamps:
            E.line("s_waitcnt lgkmcnt(0)")
            e(salu("s_lshl_b32", sT0, sWG, 2)); e(salu("s_add_u32", sT0, sT0, sW)); e(salu("s_lshl_b32", sT0, sT0, 7))
            e(salu("s_add_u32", sT0, sT0, WS_STAMP))
            for k in range(9):
                e(valu("v_mov_b32", v(0), s(STAMP0 + 2 * k))); e(vstore(v(0), None, SWS, sT0, 4 * k))
            e(accr(v(0), a(198))); e(vstore(v(0), None, SWS, sT0, 44))
            E.line("s_memrealtime s[84:85]"); E.line("s_getreg_b32 s86, hwreg(HW_REG_XCC_ID)"); E.line("s_waitcnt lgkmcnt(0)")
            e(valu("v_mov_b32", v(0), s(84))); e(vstore(v(0), None, SWS, sT0, 36))
            e(valu("v_mov_b32", v(0), s(86))); e(vstore(v(0), None, SWS, sT0, 40))
        E.line("s_endpgm")
        E.out += self.cold

    def epoch_publish(self):
        E = self.E
        l = self.lab("nopub")
        E.emit(salu("s_or_b32", sT0, sWG, sW))
        E.line(f"s_cbranch_scc1 {l}")
        E.line(f"s_mov_b32 {sT0}, 0x9e3779b1")
        E.line(f"v_mul_lo_u32 {vPOLL}, {vPOLL}, {sT0}")
        E.line(f"v_add_u32 {vPOLL}, 0x7f4a7c15, {vPOLL}")
        E.line(f"v_max_u32 {vPOLL}, 1, {vPOLL}")
        E.line(f"s_mov_b32 {sT0}, {WS_EPOCH}")
        E.line(f"buffer_store_dword {vPOLL}, off, {SWS}, {sT0} sc1")
        E.line(f"buffer_store_dword {vPOLL}, off, {SDBG}, 0 sc1")
        E.label(l)

    def attention(self, q, xfree):
        M2 = self.M2
        Q0, Q1, K0, K1, V0, V1 = [ACC1(t) for t in range(6)]
        cvt = lambda d, x, y: valu("v_cvt_pk_bf16_f32", d, x, y)
        def pack(dst, src, n=8): return [cvt(dst[i], src[2 * i], src[2 * i + 1]) for i in range(n)]
        its = pack(K0, K0) + pack(K0.sub(8, 8), K1)
        its += [ds_wr(vEX, K0.sub(4 * h, 4), 6144 + 1024 * h, tag="exw") for h in range(4)]
        its += pack(V0, V0) + pack(V0.sub(8, 8), V1)
        bar2 = M2 + 32 - C.D
        q.adds(its, earliest=M2 - 21, deadline=bar2 - 2)
        its = [ds_wr(vEX, V0.sub(4 + 8 * j, 4), 6144 + 4096 + 1024 * j, tag="exw") for j in range(2)]
        its += [accr(NT[i], aHACC[0][i]) for i in range(4)] + [accr(NT[4 + i], aHACC[1][i]) for i in range(4)]
        hk = v(NT[0].lo, 2); hv = v(NT[4].lo, 2)
        its += [cvt(NT[0], NT[0], NT[1]), cvt(NT[1], NT[2], NT[3]), cvt(NT[4], NT[4], NT[5]), cvt(NT[5], NT[6], NT[7])]
        its += [salu("s_lshl_b32", sT0, sW, 10), salu("s_add_u32", sT0, sT0, 256), valu("v_add_u32", NT[2], sT0, vHW),
                salu("s_lshr_b32", sT0, sW, 1), salu("s_lshl_b32", sT0, sT0, 10), salu("s_and_b32", sT1, sW, 1),
                salu("s_lshl_b32", sT1, sT1, 8), salu("s_add_u32", sT0, sT0, sT1), valu("v_add_u32", NT[3], sT0, vHW),
                ds_wr(NT[2], hk, 0, tag="exw"), ds_wr(NT[3], hv, 4096, tag="exw")]
        q.adds(its, earliest=M2 - 1, deadline=bar2 - 2)
        self.exw_check = (q, len(q.items))
        q.adds(pack(Q0, Q0) + pack(Q0.sub(8, 8), Q1), earliest=M2)
        MASK = v(208, 24)
        q.adds([accr(MASK[r], aMASK[r]) for r in range(24)], earliest=M2)
        q.add(lambda E: self.mark.update(masks=True), earliest=M2)
        SC = K1; SP = v(0, 16); U = v(16, 8); P = v(24, 12); O = Q1
        mx, tm, mc = vRINV, vNB, vW16
        sums = [vHX, vH]; t2 = vTR[4]
        def add(i, ear=0):
            w = [x for x in i.w if x < 128]
            e_ = max([xfree(v(x)) for x in w], default=0)
            q.add(i, earliest=max(e_, ear))
        def qk(h, which):
            if which == 0: add(mfma(SC, K0.sub(4 * h, 4), Q0.sub(4 * h, 4), MASK.sub(0, 16)))
            else: add(mfma(SP, aKP[h], Q0.sub(4 * h, 4), MASK.sub(8, 16)))
        def fin(h):
            o = 8 * (h & 1); sm = sums[h & 1]
            l = [valu("v_rcp_f32", sm, sm)]
            l += [valu("v_mul_f32", O[o + r], O[o + r], sm) for r in range(8)]
            l += [cvt(O[o + r], O[o + 2 * r], O[o + 2 * r + 1]) for r in range(4)]
            l.append(vstore(O.sub(o, 4), vL16, SWS, sStF, 1024 * h, "o", C.st_fl))
            return l
        qk(0, 0)
        q.adds([ds_rd(aKP[h], vEX, 1024 * h) for h in range(4)] + [ds_rd(aVP[j], vEX, 4096 + 1024 * j) for j in range(2)], earliest=bar2)
        qk(0, 1)
        for h in range(4):
            for i in range(4): add(valu("v_max_f32", U[i], SC[2 * i], SC[2 * i + 1]))
            for i in range(4, 8): add(valu("v_max3_f32", U[i], SC[2 * i], SC[2 * i + 1], SP[2 * i]))
            if h < 3: qk(h + 1, 0)
            for i in range(4, 8): add(valu("v_max_f32", U[i], U[i], SP[2 * i + 1]))
            add(valu("v_max3_f32", mx, U[0], U[1], U[2])); add(valu("v_max3_f32", tm, U[3], U[4], U[5]))
            if h < 3: qk(h + 1, 1)
            add(valu("v_max3_f32", mx, mx, U[6], U[7])); add(valu("v_max_f32", mx, mx, tm))
            add(valu("v_mov_b32", tm, mx))
            fl = fin(h - 1) if h > 0 else []
            for x in fl[:3]: add(x)
            add(swap32(mx, tm)); add(valu("v_max_f32", mx, mx, tm))
            add(I(f"v_mul_f32 {mc}, -{mx}, {sCSC}", "valu", mx.ids() | sCSC.ids(), mc.ids()))
            for x in fl[3:]: add(x)
            for i in range(8): add(valu("v_fma_f32", U[i], U[i], sCSC, mc))
            for i in range(8): add(valu("v_exp_f32", U[i], U[i]))
            sm = sums[h & 1]; j = h >> 1
            for i in range(4):
                add(cvt(P[i], U[i], U[i])); add(valu("v_and_b32", P[i], vPM, P[i]))
            add(valu("v_add_f32", sm, U[0], U[1])); add(valu("v_add_f32", tm, U[2], U[3]))
            add(mfma(O, V0.sub(8 * j, 4), P.sub(0, 4), 0))
            for i in range(4):
                add(cvt(P[8 + i], U[4 + i], U[4 + i])); add(valu("v_and_b32", P[4 + i], vMHC, P[8 + i]))
            add(valu("v_add_f32", t2, U[4], U[5])); add(valu("v_add_f32", sm, sm, tm))
            add(mfma(O, V0.sub(8 * j + 4, 4), P.sub(4, 4), O))
            for i in range(4): add(valu("v_and_b32", P[8 + i], vMHP, P[8 + i]))
            add(valu("v_add_f32", tm, U[6], U[7])); add(valu("v_add_f32", t2, t2, tm))
            add(mfma(O, aVP[j], P.sub(8, 4), O))
            add(valu("v_add_f32", sm, sm, t2))
            add(valu("v_mov_b32", tm, sm))
            add(swap32(sm, tm)); add(valu("v_add_f32", sm, sm, tm))
        for x in fin(3): add(x)

    def build(self):
        E = self.E
        E.emit(scmp("s_cmp_ge_u32", sWG, 256))
        E.line("s_cbranch_scc1 L_end")
        E.line("s_load_dwordx16 s[8:23], s[0:1], 0")
        E.line("s_load_dwordx4 s[24:27], s[0:1], 64")
        E.emit(salu("s_lshr_b32", sJ, sWG, 3))
        self.code_touch()
        E.emit(I("s_bitcmp1_b32 s6, 3", "salu", sJ.ids(), {SCC}))
        E.line("s_cbranch_scc1 L_typeB")
        snap = E.snapshot()
        self.body("A")
        E.label("L_typeB")
        E.restore(snap)
        self.body("B")
        E.label("L_end")
        E.line("s_endpgm")
        E.label("L_code_end")
        E.out.append(".p2align 12")
        head = open(os.path.join(os.path.dirname(os.path.abspath(__file__)), "head.txt")).read()
        txt = head + f"""; @launch grid=(256,1,1) block=(256,1,1) lds=163840
.amdgcn_target "amdgcn-amd-amdhsa--gfx950"
.text
.globl {NAME}
.p2align 8
.type {NAME},@function
{NAME}:
""" + E.text() + f""".section .rodata,"a"
.p2align 6
.amdhsa_kernel {NAME}
  .amdhsa_next_free_vgpr 512
  .amdhsa_next_free_sgpr 102
  .amdhsa_accum_offset 256
  .amdhsa_group_segment_fixed_size 0
  .amdhsa_kernarg_size 80
  .amdhsa_user_sgpr_count 2
  .amdhsa_user_sgpr_kernarg_segment_ptr 1
  .amdhsa_system_sgpr_workgroup_id_x 1
.end_amdhsa_kernel
"""
        return txt


def place_pads(txt):
    import subprocess, re, tempfile
    sys.path.insert(0, "cdna_kernels")
    from cdna_launch import with_harness_metadata
    lines = txt.split("\n")
    probe = []
    for n, l in enumerate(lines):
        if l.startswith("    ") and not l.strip().startswith(";") and not l.strip().startswith("."): probe.append(f"LP_{n}:")
        probe.append(re.sub(r"L_pad[AB]_\d+", "L_end", l))
    d = tempfile.mkdtemp()
    open(d + "/p.s", "w").write(with_harness_metadata("\n".join(probe), NAME, 10, launch_lists=True))
    subprocess.run(["clang", "-x", "assembler", "-target", "amdgcn-amd-amdhsa", "-mcpu=gfx950", d + "/p.s", "-o", d + "/p.co"], check=True)
    sym = subprocess.run(["llvm-objdump", "-t", d + "/p.co"], capture_output=True, text=True).stdout
    addr = {int(m.group(2)): int(m.group(1), 16) for m in re.finditer(r"([0-9a-f]{16}) .* LP_(\d+)", sym)}
    shift = 0; typ = None; pads = {"A": [], "B": []}; prev = None
    for n, l in enumerate(lines):
        if l.startswith(";PADS_FROM"): typ = l.split()[1]
        if l.startswith("L_typeB:") or l.startswith("L_end:"): typ = None
        if n in addr:
            a_ = addr[n] + shift
            if typ and prev is not None and prev // 4096 != a_ // 4096:
                pads[typ].append(n); shift += 4
            prev = a_
    out = []
    for n, l in enumerate(lines):
        for t in "AB":
            if n in pads[t]:
                k = pads[t].index(n)
                out.append(f"L_pad{t}_{k}:")
                out.append(f"    s_cbranch_execz " + (f"L_pad{t}_{k + 4}" if k + 4 < len(pads[t]) else f"L_back{t}"))
        out.append(l)
    print("pads", {t: len(pads[t]) for t in pads}, "kernel at", hex(min(addr.values())))
    assert min(len(pads[t]) for t in pads) >= 4
    return "\n".join(out)


if __name__ == "__main__":
    g = Gen()
    txt = g.build()
    if C.pads: txt = place_pads(txt)
    open(sys.argv[1], "w").write(txt)
    print("instructions:", g.E.ninst)
```

```python
A0 = 256
S0 = 1000
VCC, EXEC, M0, SCC = 1200, 1201, 1202, 1203


class R:
    __slots__ = ("f", "lo", "n")

    def __init__(self, f, lo, n=1):
        self.f, self.lo, self.n = f, lo, n

    def __str__(self):
        if self.n == 1:
            return f"{self.f}{self.lo}"
        return f"{self.f}[{self.lo}:{self.lo + self.n - 1}]"

    def ids(self):
        base = {"v": 0, "a": A0, "s": S0}[self.f]
        return set(range(base + self.lo, base + self.lo + self.n))

    def sub(self, off, n=1):
        assert off + n <= self.n, (str(self), off, n)
        return R(self.f, self.lo + off, n)

    def __getitem__(self, i):
        return self.sub(i, 1)


def v(lo, n=1): return R("v", lo, n)
def a(lo, n=1): return R("a", lo, n)
def s(lo, n=1): return R("s", lo, n)


def ids(x):
    if isinstance(x, R):
        return x.ids()
    if x == "vcc": return {VCC}
    if x == "exec": return {EXEC}
    if x == "m0": return {M0}
    return set()


def fmt(x):
    if isinstance(x, R): return str(x)
    if isinstance(x, float): return repr(x)
    if isinstance(x, int):
        if -16 <= x <= 64: return str(x)
        return hex(x & 0xffffffff)
    return str(x)


VMCOST = 2
TRANS = ("v_exp_f32", "v_log_f32", "v_rcp_f32", "v_rsq_f32", "v_sqrt_f32")


class I:
    __slots__ = ("t", "k", "r", "w", "tag", "c", "d", "na", "counted", "passes", "cost", "dead")

    def __init__(self, t, k, r=(), w=(), tag=None):
        self.t, self.k = t, k
        self.r, self.w = set(r), set(w)
        self.tag = tag
        self.c = set()
        self.d = set()
        self.na = set()
        self.counted = True
        self.passes = 8
        self.cost = 1
        self.dead = False


def valu(op, d, *src, rd=False, mods=""):
    r = set()
    for x in src: r |= ids(x)
    w = ids(d)
    if rd: r |= w
    k = "trans" if op in TRANS else ("dot" if op.startswith("v_dot") else "valu")
    i = I(f"{op} {fmt(d)}, " + ", ".join(fmt(x) for x in src) + (" " + mods if mods else ""), k, r, w)
    if k == "trans": i.cost = 2
    return i


def vcmp(op, d, x, y):
    return I(f"{op} {fmt(d)}, {fmt(x)}, {fmt(y)}", "valu", ids(x) | ids(y), ids(d))


def cndmask(d, f, t, m):
    return I(f"v_cndmask_b32 {d}, {fmt(f)}, {fmt(t)}, {fmt(m)}", "valu", ids(f) | ids(t) | ids(m), ids(d))


def swap32(x, y):
    return I(f"v_permlane32_swap_b32 {x}, {y}", "perm", ids(x) | ids(y), ids(x) | ids(y))


def swap16(x, y):
    return I(f"v_permlane16_swap_b32 {x}, {y}", "perm", ids(x) | ids(y), ids(x) | ids(y))


def rfl(d, x):
    return I(f"v_readfirstlane_b32 {d}, {x}", "rfl", ids(x), ids(d))


def accr(d, x): return I(f"v_accvgpr_read_b32 {d}, {x}", "valu", ids(x), ids(d))
def accw(d, x): return I(f"v_accvgpr_write_b32 {d}, {fmt(x)}", "valu", ids(x), ids(d))


def salu(op, d, *src, scc_w=True, scc_r=False):
    r = set()
    for x in src: r |= ids(x)
    if scc_r: r.add(SCC)
    w = ids(d)
    if scc_w: w = w | {SCC}
    return I(f"{op} {fmt(d)}, " + ", ".join(fmt(x) for x in src), "salu", r, w)


def smov(d, x): return salu("s_mov_b32", d, x, scc_w=False)


def scmp(op, x, y):
    return I(f"{op} {fmt(x)}, {fmt(y)}", "salu", ids(x) | ids(y), {SCC})


def mfma(D, A, B, C, shape="32x32x16"):
    i = I(f"v_mfma_f32_{shape}_bf16 {D}, {A}, {B}, {fmt(C)}", "mfma", ids(A) | ids(B) | ids(C), ids(D))
    i.c = ids(C); i.na = ids(A) | ids(B)
    i.passes = 8 if shape == "32x32x16" else 4
    return i


def ds_tr(d, addr, off, tag=None):
    assert 0 <= off < 65536, off
    return I(f"ds_read_b64_tr_b16 {d}, {addr} offset:{off}", "dsr", ids(addr), ids(d), tag)


def ds_rd(d, addr, off, tag=None):
    assert 0 <= off < 65536, off
    op = {1: "ds_read_b32", 2: "ds_read_b64", 4: "ds_read_b128"}[d.n]
    return I(f"{op} {d}, {addr} offset:{off}", "dsr", ids(addr), ids(d), tag)


def ds_wr(addr, x, off, tag=None):
    assert 0 <= off < 65536, off
    op = {1: "ds_write_b32", 2: "ds_write_b64", 4: "ds_write_b128"}[x.n]
    i = I(f"{op} {addr}, {x} offset:{off}", "dsw", ids(addr) | ids(x), (), tag); i.cost = x.n
    return i


def _vo(voff):
    return ("off", "") if voff is None else (str(voff), " offen")


def dma(voff, srd, soff, imm=0, tag=None, fl=""):
    assert 0 <= imm < 4096
    t = f"buffer_load_dwordx4 {voff}, {srd}, {fmt(soff)} offen" + (f" offset:{imm}" if imm else "") + (" " + fl if fl else "") + " lds"
    i = I(t, "dma", ids(voff) | ids(srd) | ids(soff) | {M0}, (), tag); i.cost = VMCOST
    return i


def vload(d, voff, srd, soff, imm=0, tag=None, fl=""):
    assert 0 <= imm < 4096
    op = {1: "buffer_load_dword", 2: "buffer_load_dwordx2", 4: "buffer_load_dwordx4"}[d.n]
    vo, en = _vo(voff)
    t = f"{op} {d}, {vo}, {srd}, {fmt(soff)}{en}" + (f" offset:{imm}" if imm else "") + (" " + fl if fl else "")
    i = I(t, "vml", ids(voff) | ids(srd) | ids(soff), ids(d), tag); i.cost = VMCOST
    return i


def vstore(x, voff, srd, soff, imm=0, tag=None, fl=""):
    assert 0 <= imm < 4096
    op = {1: "buffer_store_dword", 2: "buffer_store_dwordx2", 4: "buffer_store_dwordx4"}[x.n]
    vo, en = _vo(voff)
    t = f"{op} {x}, {vo}, {srd}, {fmt(soff)}{en}" + (f" offset:{imm}" if imm else "") + (" " + fl if fl else "")
    i = I(t, "vms", ids(voff) | ids(srd) | ids(soff) | ids(x), (), tag)
    i.cost = VMCOST
    if x.n >= 3: i.d = ids(x)
    return i


def raw(t, k="other", r=(), w=()):
    return I(t, k, r, w)


class Emitter:
    LG_OLD = 10

    def __init__(self):
        self.out = []
        self.pos = 0
        self.reset_state()
        self.ninst = 0

    def reset_state(self):
        self.w_valu = {}; self.w_trans = {}; self.w_dot = {}; self.w_mfma = {}
        self.c_mfma = {}; self.w_vsgpr = {}; self.st_data = {}
        self.m0_pos = -100
        self.lq = []
        self.vq = []

    def snapshot(self):
        import copy
        return copy.deepcopy((self.pos, self.w_valu, self.w_trans, self.w_dot, self.w_mfma, self.c_mfma,
                              self.w_vsgpr, self.st_data, self.m0_pos, self.lq, self.vq))

    def restore(self, snap):
        import copy
        (self.pos, self.w_valu, self.w_trans, self.w_dot, self.w_mfma, self.c_mfma,
         self.w_vsgpr, self.st_data, self.m0_pos, self.lq, self.vq) = copy.deepcopy(snap)

    def nops(self, i):
        need = 0
        p = self.pos
        isv = i.k in ("valu", "trans", "dot", "perm", "rfl")
        mem = i.k in ("dsr", "dsw", "dma", "vml", "vms")

        def req(q, n):
            nonlocal need
            need = max(need, q + n + 1 - p)

        tab_valu = {8: 12, 4: 8}
        tab_part = {8: 10, 4: 6}
        tab_war = {8: 7, 4: 3}
        if i.k == "mfma":
            for x in i.r:
                if x in self.w_valu: req(self.w_valu[x], 2)
                if x in self.w_dot: req(self.w_dot[x][0], 3)
            for x in i.na:
                if x in self.w_mfma: req(self.w_mfma[x][0], tab_valu[self.w_mfma[x][2]])
            for x in i.c:
                if x in self.w_mfma:
                    q, dset, ps = self.w_mfma[x]
                    if not (dset == i.c and ps == i.passes): req(q, tab_part[ps])
            for x in i.w:
                if x in self.st_data: req(self.st_data[x], 2)
            for x in i.w - i.c:
                if x in self.w_mfma: req(self.w_mfma[x][0], tab_valu[self.w_mfma[x][2]])
        if isv or mem:
            for x in (i.r | i.w):
                if x in self.w_mfma: req(self.w_mfma[x][0], tab_valu[self.w_mfma[x][2]])
        if isv:
            for x in i.w:
                if x in self.c_mfma: req(self.c_mfma[x][0], tab_war[self.c_mfma[x][1]])
                if x in self.st_data: req(self.st_data[x], 2)
            for x in i.r:
                if x in self.w_trans and i.k != "trans": req(self.w_trans[x], 1)
                if x in self.w_vsgpr: req(self.w_vsgpr[x], 2)
            op = i.t.split()[0]
            for x in (i.r | i.w):
                if x in self.w_dot:
                    q, o = self.w_dot[x]
                    if not (i.k == "dot" and o == op and x in i.w): req(q, 3)
            if i.k == "perm":
                for x in i.r:
                    if x in self.w_valu: req(self.w_valu[x], 2)
            if i.k == "rfl":
                for x in i.r:
                    if x in self.w_valu: req(self.w_valu[x], 1)
        if mem:
            for x in i.r:
                if x in self.w_vsgpr: req(self.w_vsgpr[x], 5)
                if x in self.w_dot: req(self.w_dot[x][0], 3)
                if x in self.w_trans: req(self.w_trans[x], 1)
            for x in i.w:
                if x in self.st_data: req(self.st_data[x], 1)
                if x in self.c_mfma: req(self.c_mfma[x][0], tab_war[self.c_mfma[x][1]])
        if i.k == "dma": req(self.m0_pos, 1)
        if i.k == "salu":
            for x in i.r:
                if x in self.w_vsgpr: req(self.w_vsgpr[x], 3)
        return max(0, need)

    def _pending(self, q, i):
        touch = i.r | i.w
        last = -1
        for n, e in enumerate(q):
            if e[1] & touch: last = n
        return last

    def dep_age(self, i):
        n = self._pending(self.lq, i); m = self._pending(self.vq, i)
        return (self.pos - self.lq[n][0] if n >= 0 else 10 ** 6, self.pos - self.vq[m][0] if m >= 0 else 10 ** 6)

    def line(self, t, states=1):
        self.out.append("    " + t)
        self.pos += states
        self.ninst += 1

    def label(self, name):
        self.out.append(name + ":")

    def comment(self, t):
        self.out.append("    ; " + t)

    def _wait(self, ln, vn):
        parts = []
        if vn >= 0:
            n = sum(1 for e in self.vq[vn + 1:] if e[3])
            if n < 63: parts.append(f"vmcnt({n})")
            else: parts.append("vmcnt(62)")
            self.vq = self.vq[vn + 1:]
        if ln >= 0:
            while ln + 1 < len(self.lq) and self.pos - self.lq[ln + 1][0] >= self.LG_OLD: ln += 1
            n = len(self.lq) - 1 - ln
            parts.append(f"lgkmcnt({min(n, 15)})")
            self.lq = self.lq[ln + 1:]
        if parts: self.line("s_waitcnt " + " ".join(parts))

    def wait_tags(self, lds=(), vm=()):
        ln = max([n for n, e in enumerate(self.lq) if e[2] in lds], default=-1)
        vn = max([n for n, e in enumerate(self.vq) if e[2] in vm], default=-1)
        self._wait(ln, vn)

    def wait_all_lds(self):
        if self.lq: self._wait(len(self.lq) - 1, -1)

    def wait_all_vm(self):
        self.line("s_waitcnt vmcnt(0)"); self.vq = []

    def emit(self, i):
        self._wait(self._pending(self.lq, i), self._pending(self.vq, i))
        n = self.nops(i)
        while n > 0:
            k = min(n, 16)
            self.line(f"s_nop {k - 1}", k); n -= k
        p = self.pos
        self.line(i.t)
        isv = i.k in ("valu", "trans", "dot", "perm", "rfl")
        for x in i.w:
            for dct in (self.w_valu, self.w_trans, self.w_dot, self.w_mfma, self.w_vsgpr):
                dct.pop(x, None)
        if isv:
            for x in i.w:
                if x >= S0: self.w_vsgpr[x] = p
                else: self.w_valu[x] = p
                if i.k == "trans": self.w_trans[x] = p
                if i.k == "dot": self.w_dot[x] = (p, i.t.split()[0])
        if i.k == "mfma":
            for x in i.w: self.w_mfma[x] = (p, frozenset(i.w), i.passes)
            for x in i.c: self.c_mfma[x] = (p, i.passes)
        if i.k == "salu" and M0 in i.w: self.m0_pos = p
        for x in i.d: self.st_data[x] = p
        if i.k in ("dsr", "dsw"): self.lq.append([p, set(i.w), i.tag])
        if i.k in ("dma", "vml", "vms"): self.vq.append([p, set(i.w), i.tag, i.counted])

    def emits(self, lst):
        for i in lst: self.emit(i)

    def barrier(self):
        self.line("s_barrier")

    def text(self):
        return "\n".join(self.out) + "\n"


class Q:
    def __init__(self, name, lds_age=14, vm_age=200, hard=True, top=False):
        self.name = name; self.items = []; self.n = 0; self.hard = hard; self.top = top
        self.lds_age = lds_age; self.vm_age = vm_age

    def add(self, i, earliest=0, deadline=10 ** 9, hard=None):
        self.items.append((i, earliest, deadline, self.hard if hard is None else hard))

    def adds(self, lst, earliest=0, deadline=10 ** 9, hard=None):
        for i in lst: self.add(i, earliest, deadline, hard)

    def empty(self): return self.n >= len(self.items)
    def head(self): return self.items[self.n]


def run_item(E, it):
    if getattr(it, "dead", False): return
    if callable(it): it(E)
    else: E.emit(it)


def glue(lst):
    def f(E): E.emits(lst)
    return f


def m0_busy(q):
    for x in q.items[q.n:q.n + 12]:
        it = x[0]
        if callable(it): continue
        if it.k == "dma": return True
        if M0 in it.w: return False
    return False


def step(E, q, queues):
    it = q.head()[0]
    if not callable(it) and M0 in it.w:
        own = getattr(E, "m0_owner", None)
        if own is not None and own is not q:
            while m0_busy(own): step(E, own, queues)
        E.m0_owner = q
    q.n += 1
    run_item(E, it)


def is_vm(it):
    return getattr(it, "vm", False) if callable(it) else it.k in ("dma", "vml")


def lead(q):
    for x in q.items[q.n:q.n + 6]:
        it = x[0]
        if callable(it):
            if getattr(it, "vm", False): return it
            continue
        if it.k != "salu": return it
    return None


class Pool:
    def __init__(self): self.slots = []
    def add(self, reg, kinds, avail=None):
        for k in range(reg.n // 4): self.slots.append(dict(r=reg.sub(4 * k, 4), kinds=kinds, avail=avail, busy=False, pos=-100))
    def find(self, E, kind):
        c = [x for x in self.slots if set(kind) & set(x["kinds"]) and not x["busy"] and E.pos - x["pos"] >= 8 and (x["avail"] is None or x["avail"]())]
        c.sort(key=lambda x: (x["kinds"] != "E", len(x["kinds"])))
        return c[0] if c else None
    def take(self, E, kind):
        x = self.find(E, kind); assert x is not None, ("no free slot", kind, E.gap)
        x["busy"] = True; return x
    def give(self, E, x): x["busy"] = False; x["pos"] = E.pos


def schedule(E, mains, queues, cap, g0=0, flush=True, vm_gap=1):
    def blocked(q):
        own = getattr(E, "m0_owner", None)
        if own is None or own is q or not m0_busy(own): return False
        nx = next((x[0] for x in q.items[q.n:q.n + 2] if not callable(x[0])), None)
        return nx is not None and M0 in nx.w

    def getm(mn, peek=False):
        return mn["m"](peek) if callable(mn["m"]) else mn["m"]

    budget = 0.0
    reserved = 0
    last_vm = -100; last_vp = -1000
    INF = 10 ** 9
    for n, mn in enumerate(mains):
        g = g0 + n
        E.gap = g
        if getattr(E, "trace", False): print(g, {q.name: (q.n, len(q.items)) for q in queues}, round(budget, 1))
        vg = vm_gap(g) if callable(vm_gap) else vm_gap
        p0 = E.pos
        for q in queues:
            last = -1
            for k in range(q.n, len(q.items)):
                if q.items[k][3] and q.items[k][2] <= g: last = k
            while q.n <= last: step(E, q, queues)
        for it in mn.get("pre", ()): run_item(E, it)
        E.emit(getm(mn))
        c = cap(g) if callable(cap) else cap
        budget = max(min(budget + reserved - (E.pos - p0 - 1), 0.99), -1.5) + c
        p0 = E.pos
        for it in mn.get("fix", ()): run_item(E, it)
        budget -= E.pos - p0
        reserved = 0
        if n + 1 < len(mains):
            nm = getm(mains[n + 1], True)
            if nm is not None and (E._pending(E.lq, nm) >= 0 or E._pending(E.vq, nm) >= 0): reserved += 1
            reserved += mains[n + 1].get("npre", 0)
        budget -= reserved
        while True:
            cands = []
            for q in queues:
                while not q.empty() and getattr(q.head()[0], "dead", False): q.n += 1
                if q.empty(): continue
                it, ear, dl, _h = q.head()
                if ear > g or blocked(q): continue
                if callable(it) and hasattr(it, "ready") and not it.ready(E): continue
                nxt = lead(q)
                vm = nxt is not None and is_vm(nxt)
                if vm and ((g - last_vm < vg and (E.pos - last_vp) * 4 + (g - last_vm) * 4 < vg * 34) or (hasattr(nxt, "ready") and not nxt.ready(E))): continue
                if not callable(it):
                    if E.nops(it) > 0: continue
                    la, va = E.dep_age(it)
                    if la < q.lds_age or va < q.vm_age: continue
                dl = min(x[2] for x in q.items[q.n:q.n + 40])
                st = nxt is not None and not callable(nxt) and nxt.k == "vms"
                cands.append(((0 if q.top else (1 if (vm or st) else 2), dl), q, vm))
            if not cands: break
            cands.sort(key=lambda x: x[0])
            pick = None
            for key, q, vm in cands:
                it = q.head()[0]
                forced = False
                hd = [k for k in range(q.n, min(len(q.items), q.n + 60)) if q.items[k][3] and q.items[k][2] < INF]
                if hd:
                    d0 = min(q.items[k][2] for k in hd)
                    last = max(k for k in hd if q.items[k][2] <= d0)
                    forced = (last - q.n + 1) > (d0 - g - 1) * 5
                free = callable(it) and not is_vm(it)
                if budget >= 1.0 or forced or free or (vm and key[1] - g <= 24 and budget >= -1.0):
                    pick = q; break
            if pick is None: break
            it = pick.head()[0]
            p0 = E.pos
            step(E, pick, queues)
            budget -= E.pos - p0
            if is_vm(it): last_vm = g; last_vp = E.pos; budget -= VMCOST - 1
            elif not callable(it):
                budget -= it.cost - 1
                if it.k == "mfma": budget += (c + 1) if it.passes == 8 else 3
    if flush:
        for q in queues:
            while not q.empty(): step(E, q, queues)
```

```python
import sys, os
sys.path.insert(0, os.path.dirname(os.path.abspath(__file__)))
from emit import *

NAME = "recurrent_scan__sliding_local_dilated__glu_gated_bilinear__prompt_kernel"

class Cfg:
    stamps = False
    stset = "a"
    rt = False
    D = 6
    nahead = 4; cap1A = 7.0; cap1B = 6.5; cap1t = 8.0; cap2h = 9.0; cap2A = 6.0; cap2B = 7.0; cap3 = 7.0; cap2t = 7.5; cap3x = 20.0
    npre = 120
    gate0A = -8; gate0B = -40; vm3 = 2; nraw = 28
    rot = True
    pads = True
    la1 = 12; la2 = 12; la3 = 12
    polld = 22
    flagd = 450
    b2lead = 22; a2lead = 24; att_end = 30
    dbg_a2 = 0; dbg_dump = False; dbg_bar = False
    amp = ""
    rot2 = True; flagl = 160
    raw = True; raw0 = 84
    touch_w0 = True
    touch_code = True
    touch_b2 = False
    warm_all = True
    a2_fl = "sc1"; st_fl = "sc1"; pre_a2 = 0; x_fl = ""; w_fl = ""; b2_fl = ""; out_fl = ""
    spin_max = 1 << 16

C = Cfg()
for arg in sys.argv[2:]:
    k, val = arg.split("=")
    old = getattr(C, k)
    setattr(C, k, (val not in ("0", "False")) if isinstance(old, bool) else type(old)(val.replace("+", " ")))

WS_FLAG = 0x900000
WS_EPOCH = 0xA00000
WS_STAMP = 0xB00000
WS_SIZE = 0xC00000
TB = 131072

sWG = s(2); sW = s(3); sRB = s(4); sIDX = s(5); sJ = s(6); sXCD = s(7)
SX, SWO, SWG_, SWD, SDBG, SP5, SWU, SOUT, SWS, SP9 = [s(8 + 4 * i, 4) for i in range(10)]
SQKV = SWG2 = SP5; SWH = SWU2 = SP9
(sA2s, sB2s, sM0B, sT0, sT1, sS1, sS2, sS2b, sTAG, sFLW, sFLR, sStF, sStH, sSt2, sHI, sONE, sSPIN, sT2, sOut, sT5,
 sRT, sCT, sKH, sCSC, sXs, sM0T, sXo, sXk, sROT, sC512, sA2c0, sA2c1, sA2c2, sB2c0, sB2c1, sB2c2) = [s(48 + i) for i in range(36)]
sA2c = [sA2c0, sA2c1, sA2c2]; sB2c = [sB2c0, sB2c1, sB2c2]
sG3 = [sB2c0, s(0), s(1), s(4)]; sG1 = [sB2c2, s(5), s(6), s(7)]
sHo = sB2s
sPC = s(48, 2)
STAMP0 = 84

def X(ks): return v(4 * ks, 4)
def ACC1(t): return v(128 + 16 * t, 16)
NT = [v(224 + i) for i in range(8)]
vTR = [v(232 + i) for i in range(6)]
vG = v(238); vU = v(239); vH = v(240)
vB2 = v(241); vTW = v(242)
vL16 = v(243); vRINV = v(244); vNB = v(245); vW16 = v(246); vHX = v(247)
vTAG = v(248); vPOLL = v(249); vP4 = v(250); vTB = vTAG
vEX = v(251); vHW = v(252); vPM = v(253); vMHC = v(254); vMHP = v(255)
vTR2T = [v(42), v(43)]; vTR2 = [v(44), v(45)]; vWQ = v(46)
vPL = [vPOLL, v(36), v(37), v(47)]
PARKED = vTR2T + vTR2
E2T = v(48, 16)
ACCD = [v(64, 16), v(80, 16)]; ACCS = [v(96, 16), v(112, 16)]
def WF(m): return a(4 * (m % 12), 4)
def ACC2(t): return a(48 + 16 * t, 16)
aMASK = a(112, 24); aKP = [a(136 + 4 * i, 4) for i in range(4)]; aVP = [a(152 + 4 * i, 4) for i in range(2)]
aHACC = [a(160, 4), a(164, 4)]; aXH = [a(168, 4), a(172, 4)]
aW16 = [[a(176, 4), a(180, 4)], [a(184, 4), a(188, 4)]]
aPARK = 192
aDUM0 = a(199); vDUM1 = v(37)

NEG = 0xf149f2ca


class LDSMap:
    def __init__(self):
        self.own = {c: ("x", c // 4) for c in range(32)}
        for c in range(32, 40): self.own[c] = ("T",)
        self.last_use = {}
        self.visible = set()
        self.bar_m = -1
        self.xread = set()
    def alloc(self, obj, chunks):
        for c in chunks:
            o = self.own[c]
            if o[0] == "x": assert o[1] in self.xread, (obj, c, o)
            else: assert self.last_use[o] <= self.bar_m, (obj, c, o, self.last_use[o], self.bar_m)
            self.own[c] = obj
    def check_read(self, obj, chunks):
        assert obj in self.visible, ("not visible", obj)
        for c in chunks: assert self.own[c] == obj, (obj, c, self.own[c])


SHIFT = [48, 8, 16]


def step_info(n):
    if n < 32: return 16 + 12 * (n >> 3) + (n & 7), 0, 0
    if n < 40: return n - 32, 1, 1
    if n < 56: return 112 + n - 40, 2, 3
    return 24 + 12 * ((n - 56) >> 2) + ((n - 56) & 3), 0, 2


class Gen:
    def __init__(self):
        self.E = Emitter()
        self.E.trace = bool(os.environ.get("TRACE"))
        self.nlabel = 0
        self.nstamp = 0

    def lab(self, base):
        self.nlabel += 1
        return f"L_{base}_{self.nlabel}"

    STS = {"a": ["t0", "issued", "x0", "xdone", "s1", "s2", "p2", "lastm", "end"],
           "b": ["t0", "g0a", "g0b", "p2", "g1a", "g1b", "g2a", "g2b", "end"],
           "e": ["t0", "karg", "issued", "rest", "pads", "x0", "x1", "x3", "end"],
           "f": ["t0", "x4", "x5", "x6", "x7", "xdone", "s1", "b1", "end"],
           "g": ["t0", "s1", "b1a", "b1", "b2a", "b2", "b3a", "b3", "end"],
           "h": ["t0", "b3", "b4", "b5", "b6", "b7", "b8", "s2", "end"],
           "j": ["t0", "g2b", "n48", "n55", "n56", "n60", "n64", "n71", "end"],
           "k": ["t0", "g0b", "n0", "n4", "n8", "n16", "n24", "n31", "end"],
           "l": ["t0", "g1b", "g3b", "n31", "n32", "n39", "n40", "n47", "end"],
           "m": ["t0", "n0", "n8", "n16", "n24", "n32", "n40", "n56", "end"],
           "n": ["t0", "c0a", "c0", "c1a", "c1", "c2a", "c2", "c3a", "c3"],
           "o": ["t0", "c4a", "c4", "c5a", "c5", "c6a", "c6", "c7a", "c7"],
           "p": ["t0", "g0a", "g0b", "g1a", "g1b", "g3a", "g3b", "g2a", "g2b"],
           "q": ["t0", "s2", "f0a", "f0b", "g0a", "g0b", "f2a", "f2b", "end"],
           "r": ["t0", "s1", "b1", "b2", "b3", "b4", "b5", "b6", "b7"],
           "s": ["t0", "b7", "b8", "b9", "b10", "b11", "c0", "c1", "c2"],
           "t": ["n16", "n17", "n18", "n19", "n20", "n21", "n22", "n23", "n24"],
           "u": ["n40", "n41", "n42", "n43", "n44", "n45", "n46", "n47", "n48"],
           "v": ["n60", "n61", "n62", "n63", "n64", "n65", "n66", "n67", "n68"],
           "i": ["t0", "s2", "g0a", "g0b", "p2", "c1", "g1a", "g1b", "end"],
           "d": ["t0", "p2", "g1b", "g3a", "g3b", "g2a", "g2b", "lastm", "end"],
           "c": ["t0", "p2", "c1", "c3", "c5", "c7", "lastm", "sbar", "end"]}

    def stamp(self, name):
        if C.stamps and name in self.STS[C.stset]:
            k = self.STS[C.stset].index(name)
            self.E.line(f"{'s_memrealtime' if C.rt else 's_memtime'} s[{STAMP0 + 2 * k}:{STAMP0 + 2 * k + 1}]")

    def setup_first(self, typ):
        o = []; e = o.append
        lane = self.lane; vx = self.vx; t0, t1, t2 = v(201), v(202), v(203)
        e(valu("v_and_b32", lane, 63, v(0)))
        e(valu("v_lshrrev_b32", t0, 6, v(0)))
        e(salu("s_and_b32", sXCD, sWG, 7))
        e(rfl(sW, t0))
        e(salu("s_and_b32", sRB, sXCD, 1)); e(salu("s_lshl_b32", sRB, sRB, 3))
        e(salu("s_and_b32", sT0, sJ, 7)); e(salu("s_add_u32", sRB, sRB, sT0))
        e(salu("s_and_b32", sIDX, sXCD, 6)); e(salu("s_lshr_b32", sT0, sJ, 4)); e(salu("s_add_u32", sIDX, sIDX, sT0))
        e(valu("v_and_b32", t0, 7, lane)); e(valu("v_lshrrev_b32", t1, 4, lane)); e(valu("v_xor_b32", t0, t0, t1))
        e(valu("v_lshlrev_b32", t0, 4, t0))
        e(valu("v_lshrrev_b32", t1, 3, lane)); e(valu("v_lshlrev_b32", t1, 10, t1))
        e(valu("v_or_b32", vx[0], t0, t1)); e(valu("v_xor_b32", t2, 64, vx[0]))
        e(valu("v_add_u32", vx[1], 7168, t2)); e(valu("v_add_u32", vx[2], 2 * 7168, vx[0])); e(valu("v_add_u32", vx[3], 3 * 7168, t2))
        e(salu("s_lshl_b32", sM0B, sW, 15))
        e(salu("s_lshl_b32", sT0, sRB, 17)); e(salu("s_add_u32", sXo, sT0, sM0B))
        e(salu("s_lshr_b32", sT1, sJ, 3)); e(salu("s_add_u32", sT1, sT1, sJ)); e(salu("s_and_b32", sROT, sT1, 3 if C.rot else 0))
        e(salu("s_lshl_b32", sXk, sROT, 8))
        e(smov(SWS[2], WS_SIZE)); e(smov(SWS[3], 0x20000))
        if typ == "A":
            e(smov(SQKV[2], 512 * 3072)); e(smov(SQKV[3], 0x20000))
            hs = self.hs
            e(salu("s_sub_u32", sT1, sT0, 16 * 1024))
            e(valu("v_add_u32", hs[0], sT1, vx[0])); e(salu("s_add_u32", sT1, sT1, 1024)); e(valu("v_add_u32", hs[1], sT1, vx[1]))
            e(salu("s_add_u32", sHo, sW, sROT)); e(salu("s_and_b32", sHo, sHo, 3)); e(salu("s_lshl_b32", sHo, sHo, 8))
            e(salu("s_lshr_b32", sS2b, sM0B, 3))
            e(salu("s_lshl_b32", sT2, sIDX, 1))
            e(salu("s_lshl_b32", sS1, sIDX, 7))
        else:
            e(salu("s_mul_i32", sT2, sIDX, 12, scc_w=False)); e(salu("s_add_u32", sT2, sT2, 24))
            e(salu("s_lshl_b32", sS1, sT2, 5)); e(salu("s_sub_u32", sS1, sS1, 256))
            for d, sh in ((SWU, 1024), (SWG2, 1920), (SWU2, 2944)):
                e(smov(d[2], 512 * 3584 + sh)); e(smov(d[3], 0x20000))
        st1 = 3072 if typ == "A" else 3584
        e(salu("s_mul_i32", sT0, sROT, 128 * st1, scc_w=False)); e(salu("s_add_u32", sS1, sS1, sT0))
        if C.touch_w0:
            e(valu("v_and_b32", t0, 7, lane)); e(valu("v_mul_u32_u24", t0, st1, t0))
            if typ == "A":
                e(valu("v_bfe_u32", t1, lane, 3, 2)); e(valu("v_min_u32", t1, 2, t1)); e(valu("v_lshlrev_b32", t1, 10, t1))
            else:
                e(valu("v_bfe_u32", t1, lane, 3, 1)); e(valu("v_lshlrev_b32", t1, 7, t1))
            e(valu("v_add_u32", vTW, t0, t1))
            e(salu("s_and_b32", sT0, sJ, 4)); e(salu("s_add_u32", sT0, sT0, sW)); e(salu("s_mul_i32", sT0, sT0, 8 * st1, scc_w=False))
            e(salu("s_add_u32", sT5, sT0, sS1))
        return o

    def touch(self, voff, srd_, soff, imm=0, dst=None, fl=""):
        i = vload(dst or aDUM0, voff, srd_, soff, imm, fl=fl); i.w = set(); return i

    def consts(self, typ):
        o = []; e = o.append
        lane = self.lane
        t = [v(208 + i) for i in range(8)]
        li, g4, r2, hh, ub = v(190), v(191), v(192), v(193), v(194)
        e(valu("v_and_b32", li, 15, lane)); e(valu("v_lshrrev_b32", g4, 4, lane)); e(valu("v_lshrrev_b32", hh, 5, lane))
        e(valu("v_and_b32", ub, 1, g4)); e(valu("v_lshrrev_b32", r2, 2, li))
        e(valu("v_lshlrev_b32", vL16, 4, lane))
        e(smov(sHI, 0xffff0000)); e(smov(sONE, 0x3f803f80)); e(smov(sC512, 0x3b000000)); e(smov(sCSC, 0x3eb8aa3b))
        xa = self.xa
        e(valu("v_and_b32", t[0], 31, lane)); e(valu("v_lshlrev_b32", t[1], 7, t[0]))
        e(valu("v_bfe_u32", t[0], lane, 1, 3)); e(valu("v_xor_b32", t[0], t[0], hh)); e(valu("v_lshlrev_b32", t[0], 4, t[0]))
        e(valu("v_add_u32", t[1], sM0B, t[1]))
        for q in range(4):
            e(valu("v_xor_b32", t[2], 32 * q, t[0])); e(valu("v_add_u32", xa[q], t[1], t[2]))
        for r_ in self.acc: e(valu("v_mov_b32", r_, 0))
        if typ == "A":
            ha = self.ha
            e(valu("v_lshlrev_b32", t[1], 7, li)); e(valu("v_lshrrev_b32", t[0], 1, li)); e(valu("v_xor_b32", t[0], t[0], g4))
            e(valu("v_lshlrev_b32", t[0], 4, t[0]))
            e(salu("s_add_u32", sT0, sS2b, TB)); e(valu("v_add_u32", t[1], sT0, t[1]))
            e(valu("v_add_u32", ha[0], t[1], t[0])); e(valu("v_xor_b32", t[0], 64, t[0])); e(valu("v_add_u32", ha[1], t[1], t[0]))
            for r_ in self.hacc: e(valu("v_mov_b32", r_, 0))
            e(valu("v_add_u32", vHX, TB + 16384, vL16))
            e(valu("v_lshlrev_b32", ha[2], 3, lane)); e(valu("v_add_u32", ha[2], TB, ha[2])); e(valu("v_add_u32", ha[3], sS2b, ha[2]))
            e(valu("v_add_u32", ha[4], sS2b, vHX))
        e(salu("s_and_b32", sT0, sW, 1)); e(salu("s_lshl_b32", sT0, sT0, 4))
        e(salu("s_lshr_b32", sKH, sW, 1)); e(salu("s_lshl_b32", sT1, sKH, 3)); e(salu("s_add_u32", sT1, sT1, sT0))
        e(valu("v_lshrrev_b32", t[0], 3, lane)); e(valu("v_and_b32", t[1], 2, t[0])); e(valu("v_lshlrev_b32", t[1], 5, t[1]))
        e(valu("v_and_b32", t[2], 7, lane)); e(valu("v_lshlrev_b32", t[2], 4, t[2])); e(valu("v_xor_b32", t[2], t[2], t[1]))
        e(valu("v_add_u32", t[3], sT1, t[0]))
        if typ == "A":
            e(valu("v_mul_u32_u24", t[4], 3072, t[3])); e(valu("v_add_u32", vH, t[4], t[2]))
            e(salu("s_lshl_b32", sT0, sT0, 1))
            e(valu("v_lshrrev_b32", t[4], 2, lane)); e(valu("v_add_u32", t[4], sT0, t[4])); e(valu("v_mul_u32_u24", t[4], 3584, t[4]))
            e(valu("v_and_b32", t[5], 3, lane)); e(valu("v_lshlrev_b32", t[5], 4, t[5]))
            e(salu("s_lshl_b32", sT1, sKH, 5)); e(valu("v_xor_b32", t[5], sT1, t[5]))
            e(valu("v_add_u32", vG, t[4], t[5]))
            e(salu("s_lshl_b32", sS2, sT2, 5))
            e(smov(SWH[2], 512 * 3584)); e(smov(SWH[3], 0x20000))
        else:
            e(valu("v_mul_u32_u24", t[4], 3584, t[3])); e(valu("v_add_u32", vG, t[4], t[2]))
            e(valu("v_xor_b32", t[5], 32, t[2])); e(valu("v_add_u32", vU, t[4], t[5]))
            e(salu("s_mul_i32", sT0, sT0, 3584, scc_w=False))
            e(salu("s_lshl_b32", sS2, sT2, 5)); e(salu("s_add_u32", sS2, sS2, sT0))
        e(salu("s_mul_i32", sT0, sROT, 128 * 3584, scc_w=False)); e(salu("s_add_u32", sS2, sS2, sT0))
        e(salu("s_lshl_b32", sT0, sRB, 2)); e(salu("s_add_u32", sT0, sT0, sW))
        e(salu("s_mul_i32", sT1, sT0, 144, scc_w=False))
        e(salu("s_add_u32", sSt2, sT1, sT2)); e(salu("s_lshl_b32", sSt2, sSt2, 10))
        if typ == "A":
            e(salu("s_lshl_b32", sStF, sT2, 10)); e(salu("s_add_u32", sStF, sStF, sSt2)); e(salu("s_add_u32", sStF, sStF, 112 * 1024))
        else:
            e(salu("s_sub_u32", sStF, sSt2, 8192)); e(salu("s_sub_u32", sStH, sSt2, 4096))
        e(salu("s_lshl_b32", sT0, sT0, 1)); e(salu("s_lshr_b32", sT1, sIDX, 2)); e(salu("s_add_u32", sT0, sT0, sT1))
        e(salu("s_lshl_b32", sT0, sT0, 9))
        e(salu("s_and_b32", sT1, sIDX, 3)); e(salu("s_lshl_b32", sT1, sT1, 2))
        e(salu("s_add_u32", sT0, sT0, sT1)); e(salu("s_add_u32", sFLW, sT0, WS_FLAG))
        e(valu("v_and_b32", vP4, 3, lane)); e(valu("v_lshlrev_b32", vP4, 2, vP4))
        e(smov(SOUT[2], 0x200000)); e(smov(SOUT[3], 0x20000))
        e(salu("s_and_b32", sRT, sJ, 3)); e(salu("s_lshr_b32", sCT, sJ, 2))
        e(salu("s_lshl_b32", sT0, sXCD, 3)); e(salu("s_lshl_b32", sT1, sRT, 1)); e(salu("s_add_u32", sT0, sT0, sT1))
        e(salu("s_and_b32", sT1, sW, 1)); e(salu("s_add_u32", sT0, sT0, sT1))
        e(salu("s_mul_i32", sTAG, sT0, 144 * 1024, scc_w=False))
        e(smov(sA2c0, sTAG))
        for c_ in range(3): e(salu("s_mul_i32", sB2c[c_], sKH, SHIFT[c_] * 16384, scc_w=False))
        e(salu("s_lshr_b32", sA2c1, sB2c1, 4)); e(salu("s_add_u32", sA2c1, sA2c1, sTAG))
        e(salu("s_lshl_b32", sXs, sT0, 15))
        e(salu("s_lshl_b32", sFLR, sT0, 1)); e(salu("s_add_u32", sFLR, sFLR, sKH))
        e(salu("s_lshl_b32", sFLR, sFLR, 9)); e(salu("s_add_u32", sFLR, sFLR, WS_FLAG))
        e(salu("s_lshl_b32", sM0T, sW, 10)); e(salu("s_add_u32", sM0T, sM0T, TB))
        e(salu("s_lshl_b32", sT1, sT1, 13)); e(salu("s_lshl_b32", sCT, sCT, 7)); e(salu("s_add_u32", sT1, sT1, sCT))
        e(valu("v_lshlrev_b32", t[4], 10, t[0])); e(valu("v_add3_u32", vB2, t[4], t[2], sT1))
        e(salu("s_add_u32", sXs, sXs, sCT))
        e(salu("s_and_b32", sOut, sXs, 0xffff7fff)); e(salu("s_lshr_b32", sT0, sM0B, 1)); e(salu("s_add_u32", sOut, sOut, sT0))
        e(valu("v_lshlrev_b32", t[0], 7, r2))
        e(valu("v_and_b32", t[1], 3, lane)); e(valu("v_lshlrev_b32", t[1], 3, t[1])); e(valu("v_add_u32", t[0], t[0], t[1]))
        e(valu("v_and_b32", t[2], 2, r2))
        e(valu("v_or_b32", t[3], t[2], ub)); e(valu("v_lshlrev_b32", t[3], 5, t[3]))
        e(valu("v_lshlrev_b32", t[4], 16, hh)); e(valu("v_add_u32", t[4], t[4], t[0]))
        if typ == "A":
            for j in range(2):
                e(valu("v_xor_b32", t[6], 64 * j, t[3])); e(valu("v_add_u32", vTR[4 + j], t[6], t[4]))
            e(valu("v_lshlrev_b32", t[6], 3, hh)); e(valu("v_add_u32", t[6], t[6], r2)); e(valu("v_lshlrev_b32", t[6], 6, t[6]))
            e(valu("v_lshlrev_b32", t[7], 16, ub)); e(valu("v_add3_u32", t[6], t[6], t[7], t[1]))
            e(valu("v_lshlrev_b32", t[7], 5, ub)); e(valu("v_add_u32", vTR[0], t[6], t[7]))
            e(valu("v_xor_b32", t[7], 32, t[7])); e(valu("v_add_u32", vTR[1], t[6], t[7]))
        else:
            e(valu("v_lshlrev_b32", t[5], 10, ub)); e(valu("v_add_u32", t[5], t[5], t[4]))
            for tt in range(4):
                e(valu("v_xor_b32", t[6], 32 * tt, t[3])); e(valu("v_add_u32", vTR[tt], t[6], t[5]))
        def park(reg, src): e(accw(a(aPARK + [str(x) for x in PARKED].index(str(reg))), src))
        e(valu("v_lshlrev_b32", t[4], 9, hh)); e(valu("v_add_u32", t[4], t[4], t[0]))
        e(salu("s_lshl_b32", sT0, sKH, 6)); e(valu("v_xor_b32", t[6], sT0, t[3]))
        e(valu("v_add_u32", t[5], t[6], t[4])); e(valu("v_xor_b32", t[6], 64, t[5]))
        e(salu("s_lshl_b32", sT0, sKH, 16)); e(salu("s_lshl_b32", sT1, sKH, 11)); e(salu("s_add_u32", sT1, sT1, TB))
        for j in range(2):
            e(valu("v_add_u32", t[7], sT0, t[5 + j])); park(vTR2[j], t[7])
            e(valu("v_add_u32", t[7], sT1, t[5 + j])); park(vTR2T[j], t[7])
        if typ == "A":
            e(valu("v_lshlrev_b32", t[4], 16, ub)); e(valu("v_lshlrev_b32", t[5], 15, hh)); e(valu("v_add3_u32", t[4], t[4], t[5], t[0]))
            e(valu("v_xor_b32", t[6], sW, t[2])); e(valu("v_lshlrev_b32", t[6], 5, t[6])); e(valu("v_add_u32", vW16, t[4], t[6]))
            e(salu("s_mul_i32", sT0, sW, 6144, scc_w=False)); e(salu("s_add_u32", sT0, sT0, TB)); e(valu("v_add_u32", vEX, sT0, vL16))
            e(valu("v_lshlrev_b32", t[4], 5, ub)); e(valu("v_add_u32", t[4], t[4], li)); e(valu("v_lshlrev_b32", t[4], 4, t[4]))
            e(valu("v_lshlrev_b32", t[5], 3, hh)); e(smov(sT0, TB)); e(valu("v_add3_u32", vHW, t[4], t[5], sT0))
            q = t[0]; bb = v(t[2].lo, 2)
            e(valu("v_and_b32", q, 31, lane)); e(valu("v_add_u32", t[1], 18, q))
            e(valu("v_mov_b32", t[4], 0x5555)); e(valu("v_mov_b32", t[5], 0))
            e(valu("v_lshlrev_b64", bb, t[1], v(t[4].lo, 2)))
            e(salu("s_or_b32", sT1, sRB, sW)); e(salu("s_cselect_b32", sT1, -1, 0, scc_w=False, scc_r=True))
            e(valu("v_and_b32", bb[0], sT1, bb[0]))
            e(valu("v_lshlrev_b32", t[1], 2, hh))
            e(valu("v_lshrrev_b32", bb[0], t[1], bb[0])); e(valu("v_lshrrev_b32", bb[1], t[1], bb[1]))
            e(valu("v_not_b32", bb[0], bb[0])); e(valu("v_not_b32", bb[1], bb[1]))
            e(smov(sT0, NEG))
            for r in range(24):
                rr = r if r < 16 else r - 8
                tmp = t[6 + (r & 1)]
                e(valu("v_bfe_i32", tmp, bb[1] if r < 16 else bb[0], 8 * (rr >> 2) + (rr & 3), 1))
                e(valu("v_and_b32", tmp, sT0, tmp)); e(accw(aMASK[r], tmp))
            e(valu("v_and_b32", t[2], 1, q)); e(valu("v_lshlrev_b32", t[2], 4, t[2]))
            e(valu("v_mov_b32", t[3], 0xffff)); e(valu("v_lshlrev_b32", vPM, t[2], t[3]))
            e(valu("v_bfe_i32", t[2], q, 4, 1)); e(valu("v_and_b32", vMHC, t[2], vPM)); e(valu("v_xor_b32", vMHP, vMHC, vPM))
        return o

    def tables(self):
        o = []; e = o.append
        e(salu("s_lshr_b32", sT1, sCT, 7))
        for g in (3, 2, 1, 0):
            e(salu("s_add_u32", sT0, sT1, g)); e(salu("s_and_b32", sT0, sT0, 3 if C.rot2 else 0))
            if not C.rot2: e(smov(sT0, g))
            e(salu("s_lshl_b32", sT0, sT0, 16))
            e(salu("s_add_u32", sG1[g], sB2c2, sT0))
            e(salu("s_mul_i32", sT0, sT0, 3, scc_w=False)); e(salu("s_add_u32", sG3[g], sB2c0, sT0))
        return o

    def b2_soff(self, n, dst):
        ks, cls, st = step_info(n)
        if cls == 1: return salu("s_add_u32", dst, sB2c1, ks * 16384)
        if cls == 2: g = (ks - 112) >> 2; return salu("s_add_u32", dst, sG1[g], (ks - 112 - 4 * g) * 16384)
        g = (ks - 16) // 12; return salu("s_add_u32", dst, sG3[g], (ks - 12 * g) * 16384)

    def code_touch(self):
        E = self.E
        if not C.touch_code: return
        t = v(201)
        E.line(f"s_getpc_b64 {sPC}")
        pcl = self.lab("pc"); E.label(pcl)
        E.emit(salu("s_and_b32", sT0, sJ, 1)); E.emit(salu("s_lshl_b32", sT0, sT0, 15))
        E.emit(valu("v_lshlrev_b32", t, 7, v(0))); E.emit(valu("v_add_u32", t, sT0, t))
        E.line(f"s_mov_b32 {sT0}, L_code_end-{pcl}-4")
        E.emit(valu("v_min_u32", t, sT0, t))
        E.emit(I(f"global_load_dword {aDUM0}, {t}, {sPC}", "vml", t.ids(), ()))

    def finish_stats(self, sm, sq, rinv, nb, t0, t1):
        e = self.E.emit
        e(valu("v_mul_f32", sm, sC512, sm))
        e(valu("v_mul_f32", t0, sm, sm))
        e(I(f"v_fma_f32 {sq}, {sq}, {sC512}, -{t0}", "valu", sq.ids() | t0.ids() | sC512.ids(), sq.ids()))
        e(valu("v_max_f32", sq, 0, sq))
        e(valu("v_cvt_pk_bf16_f32", t0, sm, sq))
        e(valu("v_and_b32", t1, sHI, t0))
        e(valu("v_add_f32", t1, 0x3727c5ac, t1))
        e(valu("v_cvt_pk_bf16_f32", t1, t1, t1)); e(valu("v_and_b32", t1, sHI, t1))
        e(valu("v_sqrt_f32", t1, t1))
        e(valu("v_cvt_pk_bf16_f32", t1, t1, t1)); e(valu("v_and_b32", t1, sHI, t1))
        e(valu("v_rcp_f32", rinv, t1))
        e(valu("v_lshlrev_b32", t0, 16, t0))
        e(I(f"v_mul_f32 {nb}, -{t0}, {rinv}", "valu", t0.ids() | rinv.ids(), nb.ids()))

    def norm_ops(self, reg, rinv, nb, k0=0):
        ops = []
        for d in range(4):
            lo = NT[(2 * (k0 + d)) % 8]; hi = NT[(2 * (k0 + d) + 1) % 8]; x = reg[d]
            ops += [valu("v_lshlrev_b32", lo, 16, x), valu("v_and_b32", hi, sHI, x),
                    valu("v_fma_f32", lo, lo, rinv, nb), valu("v_fma_f32", hi, hi, rinv, nb),
                    valu("v_cvt_pk_bf16_f32", x, lo, hi)]
        return ops

    def dots(self, reg, acc):
        ops = []
        for d in range(reg.n):
            ops.append(valu("v_dot2_f32_bf16", acc[d & 1], reg[d], sONE, acc[d & 1]))
            ops.append(valu("v_dot2_f32_bf16", acc[2 + (d & 1)], reg[d], reg[d], acc[2 + (d & 1)]))
        return ops

    def wrap(self, reg, q, span):
        return glue([scmp("s_cmp_eq_u32", sROT, 4 - q), salu("s_cselect_b32", sS2b, span, 0, scc_w=False, scc_r=True),
                     salu("s_sub_u32", reg, reg, sS2b)])

    def chunks(self, obj):
        k, j = obj
        if self.typ == "A":
            if k == "s1": return list(range(3 * (j % 7), 3 * (j % 7) + 3))
            return [6 + 2 * j, 7 + 2 * j]
        jj = j if k == "s1" else 16 + j
        return list(range(4 * (jj % 6), 4 * (jj % 6) + 4))

    def slab_dma(self, obj):
        L = self.L; k, j = obj; ch = self.chunks(obj); fl = C.w_fl
        def f(E): L.alloc(obj, ch)
        ops = [f, salu("s_add_u32", "m0", sM0B, 1024 * ch[0])]
        if k == "s1":
            st = 3072 if self.typ == "A" else 3584
            if self.typ == "A": ops += [dma(vH, SQKV, sS1, 1024 * u, obj, fl) for u in range(3)]
            else: ops += [dma(vG, SWG_, sS1, 0, obj, fl), dma(vU, SWU, sS1, 1024, obj, fl), dma(vG, SWG2, sS1, 2048, obj, fl), dma(vU, SWU2, sS1, 3072, obj, fl)]
            if j < 15: ops.append(salu("s_add_u32", sS1, sS1, 32 * st))
            if j % 4 == 3 and j < 15 and C.rot: ops.append(self.wrap(sS1, (j + 1) // 4, 512 * st))
        else:
            if self.typ == "A":
                ops += [salu("s_add_u32", sS2b, sS2, 16 * 3584 - 1024), dma(vG, SWH, sS2, 0, obj, fl), dma(vG, SWH, sS2b, 1024, obj, fl)]
            else:
                ops += [salu("s_add_u32", sS2b, sS2, 16 * 3584 - 2048), dma(vG, SWG_, sS2, 0, obj, fl), dma(vU, SWU, sS2, 1024, obj, fl),
                        dma(vG, SWG_, sS2b, 2048, obj, fl), dma(vU, SWU, sS2b, 3072, obj, fl)]
            if j < 7: ops.append(salu("s_add_u32", sS2, sS2, 64 * 3584))
            if j % 2 == 1 and j < 7 and C.rot: ops.append(self.wrap(sS2, (j + 1) // 2, 512 * 3584))
        return ops

    def b2_chunk(self, n):
        if self.typ == "A": tab = list(range(22, 32)) + list(range(0, 22)) + list(range(32, 40))
        else: tab = list(range(24, 32)) + list(range(0, 24)) + list(range(32, 40))
        return tab[n % 40]

    def b2_dma(self, n):
        L = self.L
        ks, cls, _ = step_info(n)
        ch = self.b2_chunk(n)
        def f(E): L.alloc(("b2", n), [ch])
        return [f, salu("s_add_u32", "m0", sM0B, 1024 * ch) if ch < 32 else salu("s_add_u32", "m0", sM0T, 4096 * (ch - 32)),
                self.b2_soff(n, sB2s),
                dma(vB2, SWO if cls == 2 else SWD, sB2s, 0, ("b2", n), C.b2_fl)]

    def bar(self, cover, m_done, lds_all=False, lds_tags=()):
        L = self.L
        def f(E):
            E.wait_tags(lds=list(lds_tags) + list(cover), vm=cover)
            if lds_all: E.wait_all_lds()
            if not (C.dbg_bar and cover and cover[0][0] == "b2"): E.barrier()
            L.visible |= set(cover); L.bar_m = m_done
        return f

    def acc2(self, t): return ACC2(t) if self.typ == "A" else ACC1(t)

    def acc1(self, t): return ACC1(t) if t < 6 else a(112 + 16 * (t - 6), 16)

    def seq(self, typ):
        out = []
        order = [2, 3, 4, 5, 0, 1] if typ == "A" else list(range(8))
        s1 = [(ks, t) for ks in range(28) for t in order] + [(ks, t) for t in order for ks in range(28, 32)]
        for ks, t in s1:
            obj = ("s1", ks // 2); base = (ks & 1) * 32768 + self.chunks(obj)[0] * 1024
            if True:
                if typ == "A":
                    out.append(dict(acc=ACC1(t), x=X(ks), sw=(t >= 4), obj=obj, addr=vTR[4 + (t & 1)],
                                    imm=base + (t >> 1) * 1024, st=512, first=(ks == 0)))
                else:
                    out.append(dict(acc=self.acc1(t), x=X(ks), sw=False, obj=obj, addr=vTR[t & 3], imm=base + (t >> 2) * 2048, st=512, first=(ks == 0)))
        nt = self.nt2
        s2 = [(ks, t) for ks in range(24) for t in range(nt)] + [(ks, t) for t in range(nt) for ks in range(24, 32)]
        for ks, t in s2:
            obj = ("s2", ks // 4); k = ks & 3
            out.append(dict(acc=self.acc2(t), x=X(ks), sw=False, obj=obj, addr=vTR[t],
                            imm=(k >> 1) * 32768 + self.chunks(obj)[0] * 1024 + (k & 1) * (1024 if typ == "A" else 2048),
                            st=256 if typ == "A" else 512, first=(ks == 0)))
        for n in range(72):
            iso = step_info(n)[1] == 2
            for j in ((1, 0) if n in (55, 71) else (0, 1)):
                ch = self.b2_chunk(n)
                out.append(dict(acc=(ACCS if iso else ACCD)[j], x=n, sw=False, obj=("b2", n),
                                addr=vTR2[j] if ch < 32 else vTR2T[j], imm=ch * 1024 if ch < 32 else (ch - 32) * 4096,
                                st=32768 if ch < 32 else 1024, first=(n in (0, 40))))
        for m, o in enumerate(out): self.L.last_use[o["obj"]] = m
        return out

    def wreads(self, m):
        o = self.SEQ[m]; L = self.L
        def f(E): assert o["obj"] in L.visible, ("read of invisible", m, o["obj"])
        return [f, ds_tr(WF(m).sub(0, 2), o["addr"], o["imm"]), ds_tr(WF(m).sub(2, 2), o["addr"], o["imm"] + o["st"])]

    def main(self, m):
        o = self.SEQ[m]
        if isinstance(o["x"], int):
            def mk(peek):
                if peek and o["x"] not in self.a2slot: return None
                return mfma(o["acc"], WF(m), self.a2slot[o["x"]]["r"], 0 if o["first"] else o["acc"])
            mn = dict(pre=[], m=mk, fix=[])
            if m & 1: mn["fix"].append(lambda E: self.pool.give(E, self.a2slot[o["x"]]))
        else:
            A_, B_ = (o["x"], WF(m)) if o["sw"] else (WF(m), o["x"])
            mn = dict(pre=[], m=mfma(o["acc"], A_, B_, 0 if o["first"] else o["acc"]), fix=[])
        if m + C.D < len(self.SEQ): mn["fix"] += self.wreads(m + C.D)
        return mn

    def spin_check_tag(self):
        def f(E):
            ok = self.lab("tagok"); sp = self.lab("tagspin")
            E.emit(rfl(sTAG, vTAG))
            E.emit(scmp("s_cmp_eq_u32", sTAG, 0))
            E.line(f"s_cbranch_scc1 {sp}")
            E.label(ok)
            self.cold += [f"{sp}:", f"    s_mov_b32 {sSPIN}, 0", f"{sp}_l:",
                          f"    buffer_load_dword {vTAG}, off, {SDBG}, 0 sc1", f"    s_add_u32 {sSPIN}, {sSPIN}, 1",
                          "    s_waitcnt vmcnt(0)", f"    v_readfirstlane_b32 {sTAG}, {vTAG}",
                          f"    s_cmp_ge_u32 {sSPIN}, {C.spin_max}", f"    s_cbranch_scc1 {ok}",
                          f"    s_cmp_eq_u32 {sTAG}, 0", f"    s_cbranch_scc1 {sp}_l", f"    s_branch {ok}"]
        return f

    def poll_load(self, stage):
        return vload(vPL[stage], vP4, SWS, sFLR, 128 * stage, fl="sc1")

    def gate(self, stage):
        def f(E):
            ok = self.lab("gateok"); sp = self.lab("gatespin")
            self.stamp(f"g{stage}a")
            E.emit(vcmp("v_cmp_ne_u32", "vcc", sTAG, vPL[stage]))
            E.line(f"s_cbranch_vccnz {sp}")
            E.label(ok)
            self.cold += [f"{sp}:", f"    s_mov_b32 {sSPIN}, 0", f"{sp}_l:",
                          f"    buffer_load_dword {vPL[stage]}, {vP4}, {SWS}, {sFLR} offen offset:{128 * stage} sc1",
                          f"    s_add_u32 {sSPIN}, {sSPIN}, 1", f"    s_cmp_ge_u32 {sSPIN}, {C.spin_max}", f"    s_cbranch_scc1 {ok}",
                          "    s_waitcnt vmcnt(0)", f"    v_cmp_ne_u32 vcc, {sTAG}, {vPL[stage]}", f"    s_cbranch_vccnz {sp}_l", f"    s_branch {ok}"]
            self.stamp(f"g{stage}b")
        return f

    def flag_store(self, stage, tags):
        def f(E):
            self.stamp(f"f{stage}a")
            E.wait_tags(vm=tags)
            self.stamp(f"f{stage}b")
            E.emit(vstore(vTAG, None, SWS, sFLW, 128 * stage, fl="sc1"))
        return f

    def a2_load(self, n):
        ks, cls, _ = step_info(n)
        o = []
        if self.a2base is None or self.a2base[0] != cls or not (0 <= ks - self.a2base[1] < 4):
            self.a2base = (cls, ks)
            if cls == 1: o.append(salu("s_add_u32", sA2s, sA2c1, ks * 1024))
            else:
                g = (ks - 112) >> 2 if cls == 2 else (ks - 16) // 12
                o += [salu("s_lshr_b32", sA2s, (sG1 if cls == 2 else sG3)[g], 4),
                      salu("s_add_u32", sA2s, sA2s, sA2c0),
                      salu("s_add_u32", sA2s, sA2s, (ks - 4 * g if cls == 2 else ks - 12 * g) * 1024)]
        imm = (ks - self.a2base[1]) * 1024
        kind = "AE" if n < 40 else "A"
        def f(E):
            x = self.a2slot[n] = self.pool.take(E, kind)
            if not (C.dbg_a2 and n >= C.dbg_a2): E.emit(vload(x["r"], vL16, SWS, sA2s, imm, fl=C.a2_fl))
        f.vm = True; f.ready = lambda E: self.pool.find(E, kind) is not None
        return o + [f]

    def raw_load(self, n):
        ks, cls, _ = step_info(n)
        def f(E):
            x = self.rawslot[n] = self.pool.take(E, "R")
            E.emit(vload(x["r"], vB2, SWO if cls == 2 else SWD, sXo, 0, fl=C.b2_fl))
        f.vm = True; f.ready = lambda E: self.pool.find(E, "R") is not None
        return [self.b2_soff(n, sXo), f]

    def h_epilogue(self, T, sbase, imm, tag):
        ops = [valu("v_mul_f32", T[r], T[r], T[r + 8]) for r in range(8)]
        ops += [valu("v_cvt_pk_bf16_f32", T[r], T[2 * r], T[2 * r + 1]) for r in range(4)]
        ops.append(vstore(T.sub(0, 4), vL16, SWS, sbase, imm, tag, C.st_fl))
        return ops

    def body(self, typ):
        E = self.E; e = E.emit
        self.L = L = LDSMap()
        E.m0_owner = None
        self.typ = typ
        isA = typ == "A"
        nt1, nt2 = (6, 2) if isA else (8, 4)
        self.nt2 = nt2
        M2 = self.M2 = 32 * nt1; M3 = self.M3 = M2 + 32 * nt2
        self.SEQ = self.seq(typ)
        self.a2base = None
        self.cold = []
        self.lane = v(200); self.vx = [v(204 + g) for g in range(4)]; self.hs = [v(196), v(197)]
        self.xa = xa = [v(216 + q) for q in range(4)]; self.acc = acc = [v(220 + q) for q in range(4)]
        self.ha = ha = [v(144 + i) for i in range(5)]; self.hacc = hacc = [v(149 + i) for i in range(4)]
        self.stamp("t0")
        if C.stamps: E.line("s_memrealtime s[0:1]")
        first = self.setup_first(typ)
        rest = self.consts(typ)
        E.emits(first)
        k = max(0, C.npre - len(first))
        while SCC in rest[k].r: k += 1
        E.emits(rest[:k]); rest = rest[k:]
        E.line("s_waitcnt lgkmcnt(0)")
        self.stamp("karg")
        def inplace(d, size, other, shift=0):
            o = []
            if other is not None and shift: o += [salu("s_sub_u32", other[0], d[2], shift), salu("s_subb_u32", other[1], d[3], 0, scc_r=True)]
            elif other is not None: o += [smov(other[0], d[2]), smov(other[1], d[3])]
            return o + [smov(d[2], size), smov(d[3], 0x20000)]
        E.emits(inplace(SX, 0x200000, SQKV if isA else None))
        if isA: E.emits(inplace(SDBG, 256, SWS))
        def xd(sl):
            o = [salu("s_add_u32", "m0", sM0B, 4096 * sl), salu("s_add_u32", sA2s, sXo, sXk)]
            o += [dma(self.vx[g], SX, sA2s, 1024 * g, tag=("x", sl), fl=C.x_fl) for g in range(4)]
            if sl < 7: o += [salu("s_add_u32", sXk, sXk, 128), salu("s_and_b32", sXk, sXk, 1023)]
            return o
        if isA:
            for ee in range(2):
                for g in range(2):
                    e(salu("s_add_u32", "m0", sS2b, TB + 2048 * ee + 1024 * g))
                    e(dma(self.hs[g], SX, sHo, 0, tag="halo", fl=C.x_fl))
                if ee == 0: e(salu("s_add_u32", sHo, sHo, 128))
            lskip = self.lab("noep")
            e(salu("s_or_b32", sSPIN, sWG, sW))
            E.line(f"s_cbranch_scc1 {lskip}")
            E.line(f"s_mov_b32 {sSPIN}, {WS_EPOCH}")
            E.line(f"buffer_load_dword {vPOLL}, off, {SWS}, {sSPIN} sc1")
            E.label(lskip)
        E.emits(xd(0))
        if isA:
            if C.touch_w0: e(self.touch(vTW, SQKV, sT5, fl=C.w_fl))
        else:
            E.emits([salu("s_sub_u32", SWU2[0], SWG_[2], 2944), salu("s_subb_u32", SWU2[1], SWG_[3], 0, scc_r=True),
                     salu("s_sub_u32", SWG2[0], SWG_[0], 1920), salu("s_subb_u32", SWG2[1], SWG_[1], 0, scc_r=True)])
            E.emits(inplace(SWG_, 512 * 3584, SWU, 1024))
            if C.touch_w0: e(self.touch(vTW, SWG_, sT5, fl=C.w_fl)); e(self.touch(vTW, SWU, sT5, 1024, fl=C.w_fl))
        E.emits(xd(1))
        nx = 2
        if not isA: E.emits(xd(2)); nx = 3
        self.stamp("issued")
        if isA:
            e(scmp("s_cmp_ge_u32", sW, 2))
            e(salu("s_cselect_b32", SWH[0], SWG_[2], SWG_[0], scc_w=False, scc_r=True))
            e(salu("s_cselect_b32", SWH[1], SWG_[3], SWG_[1], scc_w=False, scc_r=True))
        else:
            E.emits(inplace(SDBG, 256, SWS))
        E.emits(inplace(SWD, 1792 * 1024, SOUT) + inplace(SWO, 512 * 1024, None))
        E.emits(rest)
        if C.warm_all:
            ww = [vU, vTR[2], vTR[3], vTB] if isA else [vH, vW16, vHX, vTB]; lane = self.lane
            e(salu("s_lshl_b32", sT0, sWG, 2)); e(salu("s_add_u32", sT0, sT0, sW))
            e(valu("v_min_u32", ww[0], 13, lane)); e(salu("s_mul_i32", sT1, sT0, 14, scc_w=False))
            e(valu("v_add_u32", ww[0], sT1, ww[0])); e(valu("v_lshlrev_b32", ww[0], 7, ww[0]))
            e(valu("v_and_b32", ww[3], 3, lane)); e(valu("v_lshlrev_b32", ww[3], 7, ww[3]))
            e(salu("s_lshl_b32", sT1, sT0, 9)); e(valu("v_add_u32", ww[1], sT1, ww[3]))
            nr = 16 if isA else 8
            e(valu("v_and_b32", ww[2], nr - 1, lane))
            e(salu("s_and_b32", sT0, sW, 1 if isA else 3)); e(salu("s_mul_i32", sT0, sT0, nr, scc_w=False))
            e(salu("s_lshl_b32", sT1, sRB, 5)); e(salu("s_add_u32", sT0, sT0, sT1))
            e(valu("v_add_u32", ww[2], sT0, ww[2])); e(valu("v_mul_u32_u24", ww[2], 3584, ww[2]))
            e(salu("s_lshl_b32", sT0, sT2, 5)); e(valu("v_add_u32", ww[2], sT0, ww[2]))
            self.warm_ops = [self.touch(ww[2], SWH, 0)] if isA else [self.touch(ww[2], SWG_, 0), self.touch(ww[2], SWU, 0, 1024)]
            self.warm_ops += [self.touch(ww[0], SWD, 0), self.touch(ww[1], SWO, 0), self.touch(ww[3], SWS, sFLR, fl="sc1")]
        if C.stamps: E.line("v_accvgpr_write_b32 a198, s0")
        E.emits(self.tables())
        self.stamp("rest")
        if C.pads:
            E.line("s_mov_b64 exec, 0")
            for w_ in (1, 2, 3):
                E.line(f"s_cmp_eq_u32 {sW}, {w_}"); E.line(f"s_cbranch_scc1 L_pad{typ}_{w_}")
            E.line(f"s_branch L_pad{typ}_0")
            E.label(f"L_back{typ}")
            E.line("s_mov_b64 exec, -1")
            E.out.append(f";PADS_FROM {typ}")
        self.stamp("pads")
        if isA:
            hx = v(128, 16); pr = v(154, 2); tp = v(156, 2); pp = v(158, 8)
            E.wait_tags(vm=["halo"])
            self.epoch_publish()
            for ee in range(2):
                for b in range(2): e(ds_rd(hx.sub(4 * (2 * ee + b), 4), ha[b], 2048 * ee))
            E.emits(xd(2)); nx = 3
            E.emits(self.dots(hx, hacc))
            e(valu("v_add_f32", pr[0], hacc[0], hacc[1])); e(valu("v_add_f32", pr[1], hacc[2], hacc[3]))
            for sw in (swap16, swap32):
                e(valu("v_mov_b32", tp[0], pr[0])); e(valu("v_mov_b32", tp[1], pr[1]))
                e(sw(pr[0], tp[0])); e(sw(pr[1], tp[1]))
                e(valu("v_add_f32", pr[0], pr[0], tp[0])); e(valu("v_add_f32", pr[1], pr[1], tp[1]))
            e(ds_wr(ha[3], pr, 0, tag="hp"))
        for sl in range(9):
            if sl < 8:
                E.wait_tags(vm=[("x", sl)])
                self.stamp(f"x{sl}")
                for q in range(4): e(ds_rd(X(4 * sl + q), xa[q], 4096 * sl))
                if nx == 7:
                    for it in self.slab_dma(("s1", 0)): run_item(E, it)
                if nx < 8: E.emits(xd(nx)); nx += 1
            if isA and sl == 0:
                E.wait_tags(lds=["hp"]); E.barrier()
                for w_ in range(4): e(ds_rd(pp.sub(2 * w_, 2), ha[2], 4096 * w_))
            if isA and sl == 1:
                e(valu("v_add_f32", pr[0], pp[0], pp[2])); e(valu("v_add_f32", pr[1], pp[1], pp[3]))
                e(valu("v_add_f32", tp[0], pp[4], pp[6])); e(valu("v_add_f32", tp[1], pp[5], pp[7]))
                e(valu("v_add_f32", pr[0], pr[0], tp[0])); e(valu("v_add_f32", pr[1], pr[1], tp[1]))
                self.finish_stats(pr[0], pr[1], vRINV, vNB, tp[0], tp[1])
            if isA and 1 <= sl <= 4:
                E.emits(self.norm_ops(hx.sub(4 * (sl - 1), 4), vRINV, vNB))
                e(ds_wr(ha[4], hx.sub(4 * (sl - 1), 4), 1024 * (sl - 1), tag="hxw"))
            if sl > 0:
                E.emits(self.dots(v(16 * (sl - 1), 16), acc))
                L.xread.add(sl - 1)
                if 5 <= sl <= (7 if isA else 6):
                    for it in self.slab_dma(("s1", sl - 4)): run_item(E, it)
        self.stamp("xdone")
        e(valu("v_add_f32", acc[0], acc[0], acc[1])); e(valu("v_add_f32", acc[2], acc[2], acc[3]))
        e(valu("v_mov_b32", acc[1], acc[0])); e(valu("v_mov_b32", acc[3], acc[2]))
        e(swap32(acc[0], acc[1])); e(swap32(acc[2], acc[3]))
        e(valu("v_add_f32", acc[0], acc[0], acc[1])); e(valu("v_add_f32", acc[2], acc[2], acc[3]))
        self.bar([("s1", 0), ("s1", 1)], -1, lds_tags=["hxw"])(E)
        for m in range(C.D):
            for it in self.wreads(m): run_item(E, it)
        self.finish_stats(acc[0], acc[2], vRINV, vNB, acc[1], acc[3])
        E.emits(self.norm_ops(X(0), vRINV, vNB))
        self.stamp("s1")

        mains = [self.main(m) for m in range(len(self.SEQ))]
        D = C.D
        qN = Q("norm"); qD = Q("dma"); qH = Q("halo"); qB = Q("b2"); qW = Q("raw", hard=False); qU = Q("dump", vm_age=0)
        qE = Q("epi"); qE2 = Q("epi2", hard=False, top=True); qR = Q("restore"); qFl = Q("flag", top=True)
        self.pool = pool = Pool(); self.a2slot = {}; self.rawslot = {}; self.mark = {}
        started = lambda q: (len(q.items) > 0 and q.empty())
        pool.add(a(200, 56), "AR")
        pool.add(a(192, 4), "A", lambda: started(qR))
        if isA:
            pool.add(a(80, 32), "AR")
            pool.add(a(112, 24), "AR", lambda: self.mark.get("masks"))
            pool.add(a(160, 32), "A", lambda: self.mark.get("masks"))
            pool.add(a(48, 32), "A", lambda: started(qE2))
            pool.add(a(136, 24), "A", lambda: started(qE)); pool.add(v(128, 96), "A", lambda: started(qE))
            rawl = list(range(22, 32)) + list(range(40, 72))
        else:
            pool.add(a(144, 16), "AR"); pool.add(a(160, 32), "A")
            pool.add(a(48, 64), "AR")
            pool.add(a(112, 32), "AR", lambda: started(qE)); pool.add(v(192, 32), "AR", lambda: started(qE))
            pool.add(v(128, 64), "A", lambda: started(qE2))
            for k in list(range(8)) + [12, 13, 14, 15]: pool.add(X(k), "E", lambda k=k: E.gap > M2 + 4 * k + 3)
            rawl = list(range(20, 32)) + list(range(40, 72))
        rawit = {}
        if C.raw:
            for n in rawl[:C.nraw]:
                rawit[n] = self.raw_load(n)
                qW.adds(rawit[n], earliest=C.raw0, deadline=M3 + 16 * (n // 8) - C.D - 40)
        def place(n):
            def f(E):
                need = M3 + 16 * (n // 8) - C.D
                if n in self.rawslot:
                    ch = self.b2_chunk(n); x = self.rawslot[n]
                    qU.add(lambda E: L.alloc(("b2", n), [ch]), deadline=need - 3)
                    if not C.dbg_dump: qU.add(ds_wr(vWQ, x["r"], 1024 * ch, tag=("b2", n)), deadline=need - 3)
                    qU.add(lambda E: pool.give(E, x), deadline=need - 3)
                else:
                    for it in rawit.get(n, []): it.dead = True
                    b2_add(n, E.gap)
            return f
        def b2_add(n, gap):
            qB.adds(self.b2_dma(n), earliest=gap, deadline=max(M3 + 16 * (n // 8) - D - C.b2lead, gap + 2))
        def barrier(gap, cover, name, **kw):
            mains[gap]["npre"] = 2
            mains[gap]["pre"] += [lambda E: self.stamp(name + "a"), self.bar(cover, gap - 1, **kw), lambda E: self.stamp(name)]
        for ks in range(1, 32):
            qN.adds(self.norm_ops(X(ks), vRINV, vNB, ks * 4), earliest=max(0, nt1 * (ks - C.nahead) - 1),
                    deadline=nt1 * ks if ks < 28 else nt1 * 28 + ks - 28)
        for j in (range(4, 7) if isA else range(3, 5)): qD.adds(self.slab_dma(("s1", j)), earliest=0, deadline=17 if isA else 20)
        L.last_use[("T",)] = M2 + 40 if isA else -1
        tagload = vload(vTAG, None, SDBG, 0, fl="sc1")
        pre = []
        if C.pre_a2:
            pre = [valu("v_lshlrev_b32", vTW, 3, vL16)]
            if isA: pre += [valu("v_min_u32", vTW, 4095, vTW), self.touch(vTW, SWS, sStF), valu("v_min_u32", vTW, 2047, vTW), self.touch(vTW, SWS, sSt2)]
            else: pre += [self.touch(vTW, SWS, sStF), valu("v_min_u32", vTW, 4095, vTW), self.touch(vTW, SWS, sSt2)]
        def slab(jj): return ("s1", jj) if jj < 16 else ("s2", jj - 16)
        if isA:
            b2q = list(range(10))
            for g in range(1, 9):
                gap = 24 * g - D
                barrier(gap, [("s1", 2 * g), ("s1", 2 * g + 1)] if g < 8 else [("s2", j) for j in range(4)], f"b{g}")
                its = []
                for j in (2 * g + 4, 2 * g + 5):
                    if 7 <= j < 16: its += self.slab_dma(("s1", j))
                for j in {6: [0, 1, 2], 7: [3, 4, 5], 8: [6, 7]}.get(g, []): its += self.slab_dma(("s2", j))
                if g == 1 and C.warm_all: its += self.warm_ops
                if g == 6: its.append(tagload)
                if g == C.pre_a2: its += pre
                for _ in range({4: 3, 5: 3, 6: 2, 7: 2}.get(g, 0)): b2_add(b2q.pop(0), gap + 6)
                qD.adds(its, earliest=gap, deadline=gap + (14 if g == 7 else 23))
            for j in range(16):
                g0 = max(0, 12 * j - D + 1)
                b = j & 1; ch = self.chunks(("s1", j))[0] * 1024
                its = [ds_rd(aXH[b], vHX, 1024 * j)]
                for u in range(2):
                    its += [ds_tr(aW16[b][u].sub(0, 2), vW16, ch + 1024 * (1 + u)), ds_tr(aW16[b][u].sub(2, 2), vW16, ch + 1024 * (1 + u) + 512)]
                qH.adds(its, earliest=g0, deadline=12 * j + 4)
                qH.add(mfma(aHACC[0], aW16[b][0], aXH[b], 0 if j == 0 else aHACC[0], "16x16x32"), earliest=g0, deadline=12 * j + 8)
                qH.add(mfma(aHACC[1], aXH[b], aW16[b][1], 0 if j == 0 else aHACC[1], "16x16x32"), earliest=12 * j + 7, deadline=12 * j + 10)
            gap = M2 + 32 - D
            barrier(gap, [("s2", j) for j in range(4, 8)], "mid", lds_tags=["exw"])
            for n in range(10, 22): b2_add(n, gap)
            first_use = {0: list(range(22, 28)) + list(range(32, 40)), 1: list(range(28, 32))}
        else:
            b2q = list(range(8)) + list(range(32, 40)) + list(range(8, 20))
            for g in range(1, 12):
                gap = 32 * g - D
                barrier(gap, [slab(2 * g), slab(2 * g + 1)], f"b{g}")
                its = []
                for jj in {8: (19,), 9: (20, 21, 22)}.get(g, (2 * g + 3, 2 * g + 4)):
                    if jj < 24: its += self.slab_dma(slab(jj))
                if g == 1 and C.warm_all: its += self.warm_ops
                if g == 6: its.append(tagload)
                if g == C.pre_a2: its += pre
                for _ in range({3: 4, 4: 4, 5: 4, 6: 4, 10: 4, 11: 8}.get(g, 0)): b2_add(b2q.pop(0), gap + (10 if g < 10 else 0))
                qD.adds(its, earliest=gap, deadline=gap + (18 if g not in (1, 9) else 28))
            first_use = {0: list(range(20, 24)), 1: list(range(24, 32))}
        assert not b2q
        def xfree(reg): return M2 + nt2 * ((reg.lo + reg.n - 1) // 4) + nt2 - 1
        qFl.add(self.spin_check_tag(), earliest=M2 - 8, deadline=M2 - 4)
        def after(q, stage, tags):
            def arm(E):
                f = self.flag_store(stage, tags); p0 = E.pos; g0_ = E.gap
                fd = C.flagd if stage == 0 else C.flagl
                f.ready = lambda E: ((E.pos - p0) * 4 + (E.gap - g0_) * 8 >= fd or (E.gap - g0_) * 33 >= fd
                                     or not any(x[2] in tags for x in E.vq))
                qFl.add(f, earliest=E.gap)
            q.add(arm)
        if not isA:
            for t in range(8):
                T = ACC1(t if t < 6 else t - 2)
                its = [accr(T[r], self.acc1(t)[r]) for r in range(16)] if t >= 6 else []
                qE.adds(its + self.h_epilogue(T, sStF if t < 4 else sStH, 1024 * (t & 3), "h1"), earliest=nt1 * 28 + 4 * t + 3,
                        deadline=M2 - 1 if t < 4 else nt1 * 28 + 4 * t + 8, hard=(t < 4))
            after(qE, 0, ["h1"])
        else:
            self.attention(qE, xfree)
            n0 = self.exw_check[1]; nn = len(qE.items)
            for k in range(n0, nn):
                it, ear, dl, hd = qE.items[k]
                qE.items[k] = (it, ear, int(M2 + 20 + (M3 + C.att_end - M2 - 20) * (k - n0) / (nn - n0)), False)
            after(qE, 3, ["o"])
        schedule(E, mains[:M2], [qN, qD, qH, qB, qW, qFl, qE], lambda g: (C.cap1A if isA else C.cap1B) if g < nt1 * 28 else C.cap1t,
                 0, flush=False, vm_gap=2)
        assert qN.empty() and qH.empty()
        self.stamp("s2")

        qL = Q("a2"); qF = Q("fin", vm_age=60); qP = Q("poll", top=True)
        g0 = M3 + (C.gate0A if isA else C.gate0B)
        for n_, dst in enumerate(PARKED):
            qR.add(accr(dst, a(aPARK + n_)), earliest=xfree(dst), deadline=min(g0, M3 - D) - 2)
        qR.add(valu("v_add_u32", vWQ, sM0B, vL16), earliest=xfree(vWQ), deadline=min(g0, M3 - D) - 2)
        tail = M2 + 24 * nt2
        for t in range(nt2):
            its = ([accr(E2T[r], ACC2(t)[r]) for r in range(16)] if isA else []) + self.h_epilogue(E2T if isA else ACC1(t), sSt2, 1024 * t, "h2")
            qE2.adds(its, earliest=tail + 8 * t + 7, deadline=tail + 8 * t + 16)
        after(qE2, 1 if isA else 2, ["h2"])
        mains[M3]["pre"].append(lambda E: self.stamp("p2"))
        for n_ in range(72): mains[M3 + 2 * n_]["fix"].insert(0, lambda E, n_=n_: self.stamp(f"n{n_}"))
        gates = {0: g0, 32: M3 + 2 * (32 - C.la1), 40: M3 + 2 * (40 - C.la2), 56: M3 + 2 * (56 - C.la3)}
        def chk_free(q):
            def f(E): assert q.empty(), ("A2 slot still in use", q.name, E.gap)
            f.ready = lambda E: q.empty()
            return f
        cur = 0
        for n in range(72):
            if n in gates:
                cur = gates[n]; st = step_info(n)[2]; n0 = n
                qP.add(self.poll_load(st), earliest=cur - C.polld, deadline=cur - C.polld + 2)
                qL.add(self.gate(st), earliest=cur, deadline=cur + 1)
            its = self.a2_load(n)
            qL.adds(its, earliest=cur, deadline=max(M3 + 2 * n - C.a2lead, cur + 2 + (n - n0)), hard=False)
            qL.add(lambda E: None, earliest=cur, deadline=M3 + 2 * n - 6)
        b2q = list(range(40, 72))
        for c in range(9):
            gap = M3 + 16 * c - D
            barrier(gap, [("b2", n) for n in range(8 * c, 8 * c + 8)] + (["xt"] if c == 7 else []), f"c{c}",
                    lds_tags=["sw", "xr"] if c == 8 else ())
            for n in first_use.get(c, []): mains[gap]["pre"].append(place(n))
            while b2q and L.last_use[("b2", b2q[0] - 40)] <= gap - 1: mains[gap]["pre"].append(place(b2q.pop(0)))
        assert not b2q
        RD = v(0, 16); SF = v(16, 16); XF = v(48, 16); XR = v(224, 8); tt = v(32, 4)
        vRW = vTR[0]; vRR = vTR[1]; vOW = vTR[2]; vOR = vTR[3]; vOO = vTR[4]; vXD = vTR[5]; vXA = vG
        qF.add(chk_free(qE), earliest=M3 + 40); qF.add(chk_free(qE2), earliest=M3 + 40)
        its = [valu("v_lshrrev_b32", tt[0], 4, vL16), valu("v_and_b32", tt[1], 31, tt[0]),
               valu("v_lshrrev_b32", tt[2], 5, tt[0]), valu("v_lshlrev_b32", tt[2], 3, tt[2]),
               salu("s_lshr_b32", sT0, sM0B, 3), salu("s_add_u32", sT0, sT0, TB), valu("v_add_u32", vRW, sT0, vL16),
               valu("v_xor_b32", vRR, 8192, vRW),
               salu("s_and_b32", sT0, sW, 1), salu("s_lshl_b32", sT1, sT0, 12), salu("s_add_u32", sT1, sT1, TB + 16384),
               valu("v_lshlrev_b32", tt[3], 7, tt[1]), valu("v_add3_u32", vXA, tt[3], tt[2], sT1),
               valu("v_and_b32", tt[3], 7, tt[0]), valu("v_lshlrev_b32", tt[3], 4, tt[3]),
               salu("s_lshl_b32", sT1, sKH, 6), valu("v_xor_b32", tt[3], sT1, tt[3]), valu("v_add_u32", vXA, vXA, tt[3]),
               salu("s_mul_i32", sT0, sT0, 32 * 144, scc_w=False), salu("s_add_u32", sT0, sT0, sT1), salu("s_add_u32", sT0, sT0, TB),
               valu("v_mul_u32_u24", tt[1], 144, tt[1]), valu("v_add3_u32", vOW, tt[1], tt[2], sT0),
               valu("v_lshrrev_b32", tt[1], 3, tt[0]), valu("v_and_b32", tt[2], 0x70, vL16),
               valu("v_lshl_add_u32", vOO, tt[1], 10, tt[2]),
               valu("v_lshlrev_b32", tt[3], 4, tt[1]), valu("v_xor_b32", vXD, vOO, tt[3]),
               salu("s_mul_i32", sT0, sW, 16 * 144, scc_w=False), salu("s_add_u32", sT0, sT0, TB),
               valu("v_mul_u32_u24", tt[1], 144, tt[1]), valu("v_add3_u32", vOR, tt[1], tt[2], sT0),
               salu("s_lshl_b32", sXk, sW, 11), salu("s_add_u32", sXs, sOut, 8192 - 1024)]
        qF.adds(its, earliest=M3 + 40, deadline=M3 + 96 - D - 1)
        qD.adds([salu("s_add_u32", "m0", sXk, TB + 16384), dma(vXD, SX, sOut, 0, "xt"), dma(vXD, SX, sXs, 1024, "xt")],
                earliest=M3 + 96 - D, deadline=M3 + 96 - D + 4)
        its = []
        for a_ in range(4):
            its += [valu("v_xor_b32", tt[a_], 16 * a_, vXA), ds_rd(XR.sub(2 * a_, 2), tt[a_], 0, tag="xr")]
        qF.adds(its, earliest=M3 + 112 - D, deadline=M3 + 128 - D - 1)
        qF.adds([ds_wr(vRW, ACCS[1].sub(4 * i, 4), 1024 * i, tag="sw") for i in range(4)], earliest=M3 + 111, deadline=M3 + 128 - D)
        its = []
        for r in range(8):
            its += [valu("v_lshlrev_b32", XF[2 * r], 16, XR[r]), valu("v_and_b32", XF[2 * r + 1], sHI, XR[r])]
        qF.adds(its, earliest=M3 + 112)
        its = [ds_rd(SF.sub(4 * i, 4), vRR, 1024 * i) for i in range(4)]
        its += [valu("v_add_f32", SF[r], SF[r], ACCS[0][r]) for r in range(16)]
        its.append(salu("s_add_u32", sXs, sOut, 8192))
        CK = v(38, 2); C1 = v(40, 2)
        its += [valu("v_mov_b32", CK[0], 0xbfb8aa3b), valu("v_mov_b32", CK[1], 0xbfb8aa3b), valu("v_mov_b32", C1[0], 1.0), valu("v_mov_b32", C1[1], 1.0)]
        qF.adds(its, earliest=M3 + 128 - D)
        cap2 = C.cap2A if isA else C.cap2B
        def capf(g):
            if not isA and not qE.empty(): return C.cap2h
            if g < tail + 7: return cap2
            if g < M3: return C.cap2t
            if not qE2.empty(): return 40
            return C.cap3 if qE.empty() else C.cap3x
        schedule(E, mains[M2:], [qFl, qP, qD, qL, qB, qW, qU, qR, qE2, qE, qF], capf, M2, flush=False,
                 vm_gap=lambda g: 2 if g < M3 else C.vm3)
        assert qL.empty() and qD.empty() and qB.empty() and qE.empty() and qE2.empty() and qFl.empty()
        self.stamp("lastm")
        while not qF.empty():
            it = qF.head()[0]; qF.n += 1; run_item(E, it)
        for i in range(4): e(ds_wr(vRW, ACCD[1].sub(4 * i, 4), 16384 + 1024 * i, tag="dw"))
        E.wait_tags(lds=["dw"]); E.barrier()
        self.stamp("sbar")
        for i in range(4): e(ds_rd(RD.sub(4 * i, 4), vRR, 16384 + 1024 * i))
        G = ACCS[1]
        def pk(op, d, *src):
            r = set()
            for x in src: r |= ids(x)
            return I(f"{op} {d}, " + ", ".join(fmt(x) for x in src), "valu", r, ids(d))
        P2 = lambda reg, r: reg.sub(r, 2)
        for a_ in range(4):
            pp_ = (4 * a_, 4 * a_ + 2); rr = range(4 * a_, 4 * a_ + 4)
            for r in pp_: e(pk("v_pk_add_f32", P2(RD, r), P2(RD, r), P2(ACCD[0], r)))
            for r in pp_: e(pk("v_pk_mul_f32", P2(G, r), P2(RD, r), CK))
            for r in pp_: e(pk("v_pk_mul_f32", P2(RD, r), P2(RD, r), P2(SF, r)))
            for r in rr: e(valu("v_exp_f32", G[r], G[r]))
        for a_ in range(4):
            pp_ = (4 * a_, 4 * a_ + 2); rr = range(4 * a_, 4 * a_ + 4)
            for r in pp_: e(pk("v_pk_add_f32", P2(G, r), P2(G, r), C1))
            for r in rr: e(valu("v_rcp_f32", G[r], G[r]))
        for a_ in range(4):
            pp_ = (4 * a_, 4 * a_ + 2)
            for r in pp_: e(pk("v_pk_fma_f32", P2(RD, r), P2(RD, r), P2(G, r), P2(XF, r)))
            for d in range(2): e(valu("v_cvt_pk_bf16_f32", XR[2 * a_ + d], RD[4 * a_ + 2 * d], RD[4 * a_ + 2 * d + 1]))
            e(ds_wr(vOW, XR.sub(2 * a_, 2), 16 * a_))
        E.wait_all_lds(); E.barrier()
        for p in range(2): e(ds_rd(G.sub(4 * p, 4), vOR, 8 * 144 * p))
        for p in range(2): e(vstore(G.sub(4 * p, 4), vOO, SOUT, sXs if p else sOut, 0, fl=C.out_fl))
        self.stamp("end")
        if C.amp:
            k0, k1 = [STAMP0 + 2 * int(x) for x in C.amp.split("-")]
            l = self.lab("amp")
            E.line("s_waitcnt lgkmcnt(0)")
            E.line(f"s_sub_u32 {sT0}, s{k1}, s{k0}"); E.line(f"s_lshl_b32 {sT0}, {sT0}, 2"); E.line(f"s_add_u32 {sT0}, {sT0}, s{STAMP0 + 16}")
            E.label(l)
            E.line("s_memrealtime s[84:85]"); E.line("s_waitcnt lgkmcnt(0)"); E.line(f"s_sub_u32 s84, s84, {sT0}")
            E.line("s_cmp_lt_i32 s84, 0"); E.line(f"s_cbranch_scc1 {l}")
        elif C.stamps:
            E.line("s_waitcnt lgkmcnt(0)")
            e(salu("s_lshl_b32", sT0, sWG, 2)); e(salu("s_add_u32", sT0, sT0, sW)); e(salu("s_lshl_b32", sT0, sT0, 7))
            e(salu("s_add_u32", sT0, sT0, WS_STAMP))
            for k in range(9):
                e(valu("v_mov_b32", v(0), s(STAMP0 + 2 * k))); e(vstore(v(0), None, SWS, sT0, 4 * k))
            e(accr(v(0), a(198))); e(vstore(v(0), None, SWS, sT0, 44))
            E.line("s_memrealtime s[84:85]"); E.line("s_getreg_b32 s86, hwreg(HW_REG_XCC_ID)"); E.line("s_waitcnt lgkmcnt(0)")
            e(valu("v_mov_b32", v(0), s(84))); e(vstore(v(0), None, SWS, sT0, 36))
            e(valu("v_mov_b32", v(0), s(86))); e(vstore(v(0), None, SWS, sT0, 40))
        E.line("s_endpgm")
        E.out += self.cold

    def epoch_publish(self):
        E = self.E
        l = self.lab("nopub")
        E.emit(salu("s_or_b32", sT0, sWG, sW))
        E.line(f"s_cbranch_scc1 {l}")
        E.line(f"s_mov_b32 {sT0}, 0x9e3779b1")
        E.line(f"v_mul_lo_u32 {vPOLL}, {vPOLL}, {sT0}")
        E.line(f"v_add_u32 {vPOLL}, 0x7f4a7c15, {vPOLL}")
        E.line(f"v_max_u32 {vPOLL}, 1, {vPOLL}")
        E.line(f"s_mov_b32 {sT0}, {WS_EPOCH}")
        E.line(f"buffer_store_dword {vPOLL}, off, {SWS}, {sT0} sc1")
        E.line(f"buffer_store_dword {vPOLL}, off, {SDBG}, 0 sc1")
        E.label(l)

    def attention(self, q, xfree):
        M2 = self.M2
        Q0, Q1, K0, K1, V0, V1 = [ACC1(t) for t in range(6)]
        cvt = lambda d, x, y: valu("v_cvt_pk_bf16_f32", d, x, y)
        def pack(dst, src, n=8): return [cvt(dst[i], src[2 * i], src[2 * i + 1]) for i in range(n)]
        its = pack(K0, K0) + pack(K0.sub(8, 8), K1)
        its += [ds_wr(vEX, K0.sub(4 * h, 4), 6144 + 1024 * h, tag="exw") for h in range(4)]
        its += pack(V0, V0) + pack(V0.sub(8, 8), V1)
        bar2 = M2 + 32 - C.D
        q.adds(its, earliest=M2 - 21, deadline=bar2 - 2)
        its = [ds_wr(vEX, V0.sub(4 + 8 * j, 4), 6144 + 4096 + 1024 * j, tag="exw") for j in range(2)]
        its += [accr(NT[i], aHACC[0][i]) for i in range(4)] + [accr(NT[4 + i], aHACC[1][i]) for i in range(4)]
        hk = v(NT[0].lo, 2); hv = v(NT[4].lo, 2)
        its += [cvt(NT[0], NT[0], NT[1]), cvt(NT[1], NT[2], NT[3]), cvt(NT[4], NT[4], NT[5]), cvt(NT[5], NT[6], NT[7])]
        its += [salu("s_lshl_b32", sT0, sW, 10), salu("s_add_u32", sT0, sT0, 256), valu("v_add_u32", NT[2], sT0, vHW),
                salu("s_lshr_b32", sT0, sW, 1), salu("s_lshl_b32", sT0, sT0, 10), salu("s_and_b32", sT1, sW, 1),
                salu("s_lshl_b32", sT1, sT1, 8), salu("s_add_u32", sT0, sT0, sT1), valu("v_add_u32", NT[3], sT0, vHW),
                ds_wr(NT[2], hk, 0, tag="exw"), ds_wr(NT[3], hv, 4096, tag="exw")]
        q.adds(its, earliest=M2 - 1, deadline=bar2 - 2)
        self.exw_check = (q, len(q.items))
        q.adds(pack(Q0, Q0) + pack(Q0.sub(8, 8), Q1), earliest=M2)
        MASK = v(208, 24)
        q.adds([accr(MASK[r], aMASK[r]) for r in range(24)], earliest=M2)
        q.add(lambda E: self.mark.update(masks=True), earliest=M2)
        SC = K1; SP = v(0, 16); U = v(16, 8); P = v(24, 12); O = Q1
        mx, tm, mc = vRINV, vNB, vW16
        sums = [vHX, vH]; t2 = vTR[4]
        def add(i, ear=0):
            w = [x for x in i.w if x < 128]
            e_ = max([xfree(v(x)) for x in w], default=0)
            q.add(i, earliest=max(e_, ear))
        def qk(h, which):
            if which == 0: add(mfma(SC, K0.sub(4 * h, 4), Q0.sub(4 * h, 4), MASK.sub(0, 16)))
            else: add(mfma(SP, aKP[h], Q0.sub(4 * h, 4), MASK.sub(8, 16)))
        def fin(h):
            o = 8 * (h & 1); sm = sums[h & 1]
            l = [valu("v_rcp_f32", sm, sm)]
            l += [valu("v_mul_f32", O[o + r], O[o + r], sm) for r in range(8)]
            l += [cvt(O[o + r], O[o + 2 * r], O[o + 2 * r + 1]) for r in range(4)]
            l.append(vstore(O.sub(o, 4), vL16, SWS, sStF, 1024 * h, "o", C.st_fl))
            return l
        qk(0, 0)
        q.adds([ds_rd(aKP[h], vEX, 1024 * h) for h in range(4)] + [ds_rd(aVP[j], vEX, 4096 + 1024 * j) for j in range(2)], earliest=bar2)
        qk(0, 1)
        for h in range(4):
            for i in range(4): add(valu("v_max_f32", U[i], SC[2 * i], SC[2 * i + 1]))
            for i in range(4, 8): add(valu("v_max3_f32", U[i], SC[2 * i], SC[2 * i + 1], SP[2 * i]))
            if h < 3: qk(h + 1, 0)
            for i in range(4, 8): add(valu("v_max_f32", U[i], U[i], SP[2 * i + 1]))
            add(valu("v_max3_f32", mx, U[0], U[1], U[2])); add(valu("v_max3_f32", tm, U[3], U[4], U[5]))
            if h < 3: qk(h + 1, 1)
            add(valu("v_max3_f32", mx, mx, U[6], U[7])); add(valu("v_max_f32", mx, mx, tm))
            add(valu("v_mov_b32", tm, mx))
            fl = fin(h - 1) if h > 0 else []
            for x in fl[:3]: add(x)
            add(swap32(mx, tm)); add(valu("v_max_f32", mx, mx, tm))
            add(I(f"v_mul_f32 {mc}, -{mx}, {sCSC}", "valu", mx.ids() | sCSC.ids(), mc.ids()))
            for x in fl[3:]: add(x)
            for i in range(8): add(valu("v_fma_f32", U[i], U[i], sCSC, mc))
            for i in range(8): add(valu("v_exp_f32", U[i], U[i]))
            sm = sums[h & 1]; j = h >> 1
            for i in range(4):
                add(cvt(P[i], U[i], U[i])); add(valu("v_and_b32", P[i], vPM, P[i]))
            add(valu("v_add_f32", sm, U[0], U[1])); add(valu("v_add_f32", tm, U[2], U[3]))
            add(mfma(O, V0.sub(8 * j, 4), P.sub(0, 4), 0))
            for i in range(4):
                add(cvt(P[8 + i], U[4 + i], U[4 + i])); add(valu("v_and_b32", P[4 + i], vMHC, P[8 + i]))
            add(valu("v_add_f32", t2, U[4], U[5])); add(valu("v_add_f32", sm, sm, tm))
            add(mfma(O, V0.sub(8 * j + 4, 4), P.sub(4, 4), O))
            for i in range(4): add(valu("v_and_b32", P[8 + i], vMHP, P[8 + i]))
            add(valu("v_add_f32", tm, U[6], U[7])); add(valu("v_add_f32", t2, t2, tm))
            add(mfma(O, aVP[j], P.sub(8, 4), O))
            add(valu("v_add_f32", sm, sm, t2))
            add(valu("v_mov_b32", tm, sm))
            add(swap32(sm, tm)); add(valu("v_add_f32", sm, sm, tm))
        for x in fin(3): add(x)

    def build(self):
        E = self.E
        E.emit(scmp("s_cmp_ge_u32", sWG, 256))
        E.line("s_cbranch_scc1 L_end")
        E.line("s_load_dwordx16 s[8:23], s[0:1], 0")
        E.line("s_load_dwordx4 s[24:27], s[0:1], 64")
        E.emit(salu("s_lshr_b32", sJ, sWG, 3))
        self.code_touch()
        E.emit(I("s_bitcmp1_b32 s6, 3", "salu", sJ.ids(), {SCC}))
        E.line("s_cbranch_scc1 L_typeB")
        snap = E.snapshot()
        self.body("A")
        E.label("L_typeB")
        E.restore(snap)
        self.body("B")
        E.label("L_end")
        E.line("s_endpgm")
        E.label("L_code_end")
        E.out.append(".p2align 12")
        head = open(os.path.join(os.path.dirname(os.path.abspath(__file__)), "head.txt")).read()
        txt = head + f"""; @launch grid=(256,1,1) block=(256,1,1) lds=163840
.amdgcn_target "amdgcn-amd-amdhsa--gfx950"
.text
.globl {NAME}
.p2align 8
.type {NAME},@function
{NAME}:
""" + E.text() + f""".section .rodata,"a"
.p2align 6
.amdhsa_kernel {NAME}
  .amdhsa_next_free_vgpr 512
  .amdhsa_next_free_sgpr 102
  .amdhsa_accum_offset 256
  .amdhsa_group_segment_fixed_size 0
  .amdhsa_kernarg_size 80
  .amdhsa_user_sgpr_count 2
  .amdhsa_user_sgpr_kernarg_segment_ptr 1
  .amdhsa_system_sgpr_workgroup_id_x 1
.end_amdhsa_kernel
"""
        return txt


def place_pads(txt):
    import subprocess, re, tempfile
    sys.path.insert(0, "cdna_kernels")
    from cdna_launch import with_harness_metadata
    lines = txt.split("\n")
    probe = []
    for n, l in enumerate(lines):
        if l.startswith("    ") and not l.strip().startswith(";") and not l.strip().startswith("."): probe.append(f"LP_{n}:")
        probe.append(re.sub(r"L_pad[AB]_\d+", "L_end", l))
    d = tempfile.mkdtemp()
    open(d + "/p.s", "w").write(with_harness_metadata("\n".join(probe), NAME, 10, launch_lists=True))
    subprocess.run(["clang", "-x", "assembler", "-target", "amdgcn-amd-amdhsa", "-mcpu=gfx950", d + "/p.s", "-o", d + "/p.co"], check=True)
    sym = subprocess.run(["llvm-objdump", "-t", d + "/p.co"], capture_output=True, text=True).stdout
    addr = {int(m.group(2)): int(m.group(1), 16) for m in re.finditer(r"([0-9a-f]{16}) .* LP_(\d+)", sym)}
    shift = 0; typ = None; pads = {"A": [], "B": []}; prev = None
    for n, l in enumerate(lines):
        if l.startswith(";PADS_FROM"): typ = l.split()[1]
        if l.startswith("L_typeB:") or l.startswith("L_end:"): typ = None
        if n in addr:
            a_ = addr[n] + shift
            if typ and prev is not None and prev // 4096 != a_ // 4096:
                pads[typ].append(n); shift += 4
            prev = a_
    out = []
    for n, l in enumerate(lines):
        for t in "AB":
            if n in pads[t]:
                k = pads[t].index(n)
                out.append(f"L_pad{t}_{k}:")
                out.append(f"    s_cbranch_execz " + (f"L_pad{t}_{k + 4}" if k + 4 < len(pads[t]) else f"L_back{t}"))
        out.append(l)
    print("pads", {t: len(pads[t]) for t in pads}, "kernel at", hex(min(addr.values())))
    assert min(len(pads[t]) for t in pads) >= 4
    return "\n".join(out)


if __name__ == "__main__":
    g = Gen()
    txt = g.build()
    if C.pads: txt = place_pads(txt)
    open(sys.argv[1], "w").write(txt)
    print("instructions:", g.E.ninst)
```

```python
import sys, os
sys.path.insert(0, os.path.dirname(os.path.abspath(__file__)))
from emit import *

NAME = "recurrent_scan__sliding_local_dilated__glu_gated_bilinear__prompt_kernel"

class Cfg:
    stamps = False
    stset = "a"
    rt = False
    D = 6
    nahead = 4; cap1A = 7.0; cap1B = 6.5; cap1t = 8.0; cap2h = 9.0; cap2A = 6.0; cap2B = 7.0; cap3 = 7.0; cap2t = 7.5; cap3x = 20.0
    npre = 120
    gate0A = -8; gate0B = -40; vm3 = 2; nraw = 28
    rot = True
    pads = True
    la1 = 12; la2 = 12; la3 = 12
    polld = 22
    flagd = 450
    b2lead = 22; a2lead = 24; att_end = 30
    dbg_a2 = 0; dbg_dump = False; dbg_bar = False
    amp = ""
    rot2 = True; flagl = 160
    raw = True; raw0 = 84
    touch_w0 = True
    touch_code = True
    touch_b2 = False
    warm_all = True
    a2_fl = "sc1"; st_fl = "sc1"; pre_a2 = 0; x_fl = ""; w_fl = ""; b2_fl = ""; out_fl = ""
    spin_max = 1 << 16

C = Cfg()
for arg in sys.argv[2:]:
    k, val = arg.split("=")
    old = getattr(C, k)
    setattr(C, k, (val not in ("0", "False")) if isinstance(old, bool) else type(old)(val.replace("+", " ")))

WS_FLAG = 0x900000
WS_EPOCH = 0xA00000
WS_STAMP = 0xB00000
WS_SIZE = 0xC00000
TB = 131072

sWG = s(2); sW = s(3); sRB = s(4); sIDX = s(5); sJ = s(6); sXCD = s(7)
SX, SWO, SWG_, SWD, SDBG, SP5, SWU, SOUT, SWS, SP9 = [s(8 + 4 * i, 4) for i in range(10)]
SQKV = SWG2 = SP5; SWH = SWU2 = SP9
(sA2s, sB2s, sM0B, sT0, sT1, sS1, sS2, sS2b, sTAG, sFLW, sFLR, sStF, sStH, sSt2, sHI, sONE, sSPIN, sT2, sOut, sT5,
 sRT, sCT, sKH, sCSC, sXs, sM0T, sXo, sXk, sROT, sC512, sA2c0, sA2c1, sA2c2, sB2c0, sB2c1, sB2c2) = [s(48 + i) for i in range(36)]
sA2c = [sA2c0, sA2c1, sA2c2]; sB2c = [sB2c0, sB2c1, sB2c2]
sG3 = [sB2c0, s(0), s(1), s(4)]; sG1 = [sB2c2, s(5), s(6), s(7)]
sHo = sB2s
sPC = s(48, 2)
STAMP0 = 84

def X(ks): return v(4 * ks, 4)
def ACC1(t): return v(128 + 16 * t, 16)
NT = [v(224 + i) for i in range(8)]
vTR = [v(232 + i) for i in range(6)]
vG = v(238); vU = v(239); vH = v(240)
vB2 = v(241); vTW = v(242)
vL16 = v(243); vRINV = v(244); vNB = v(245); vW16 = v(246); vHX = v(247)
vTAG = v(248); vPOLL = v(249); vP4 = v(250); vTB = vTAG
vEX = v(251); vHW = v(252); vPM = v(253); vMHC = v(254); vMHP = v(255)
vTR2T = [v(42), v(43)]; vTR2 = [v(44), v(45)]; vWQ = v(46)
vPL = [vPOLL, v(36), v(37), v(47)]
PARKED = vTR2T + vTR2
E2T = v(48, 16)
ACCD = [v(64, 16), v(80, 16)]; ACCS = [v(96, 16), v(112, 16)]
def WF(m): return a(4 * (m % 12), 4)
def ACC2(t): return a(48 + 16 * t, 16)
aMASK = a(112, 24); aKP = [a(136 + 4 * i, 4) for i in range(4)]; aVP = [a(152 + 4 * i, 4) for i in range(2)]
aHACC = [a(160, 4), a(164, 4)]; aXH = [a(168, 4), a(172, 4)]
aW16 = [[a(176, 4), a(180, 4)], [a(184, 4), a(188, 4)]]
aPARK = 192
aDUM0 = a(199); vDUM1 = v(37)

NEG = 0xf149f2ca


class LDSMap:
    def __init__(self):
        self.own = {c: ("x", c // 4) for c in range(32)}
        for c in range(32, 40): self.own[c] = ("T",)
        self.last_use = {}
        self.visible = set()
        self.bar_m = -1
        self.xread = set()
    def alloc(self, obj, chunks):
        for c in chunks:
            o = self.own[c]
            if o[0] == "x": assert o[1] in self.xread, (obj, c, o)
            else: assert self.last_use[o] <= self.bar_m, (obj, c, o, self.last_use[o], self.bar_m)
            self.own[c] = obj
    def check_read(self, obj, chunks):
        assert obj in self.visible, ("not visible", obj)
        for c in chunks: assert self.own[c] == obj, (obj, c, self.own[c])


SHIFT = [48, 8, 16]


def step_info(n):
    if n < 32: return 16 + 12 * (n >> 3) + (n & 7), 0, 0
    if n < 40: return n - 32, 1, 1
    if n < 56: return 112 + n - 40, 2, 3
    return 24 + 12 * ((n - 56) >> 2) + ((n - 56) & 3), 0, 2


class Gen:
    def __init__(self):
        self.E = Emitter()
        self.E.trace = bool(os.environ.get("TRACE"))
        self.nlabel = 0
        self.nstamp = 0

    def lab(self, base):
        self.nlabel += 1
        return f"L_{base}_{self.nlabel}"

    STS = {"a": ["t0", "issued", "x0", "xdone", "s1", "s2", "p2", "lastm", "end"],
           "b": ["t0", "g0a", "g0b", "p2", "g1a", "g1b", "g2a", "g2b", "end"],
           "e": ["t0", "karg", "issued", "rest", "pads", "x0", "x1", "x3", "end"],
           "f": ["t0", "x4", "x5", "x6", "x7", "xdone", "s1", "b1", "end"],
           "g": ["t0", "s1", "b1a", "b1", "b2a", "b2", "b3a", "b3", "end"],
           "h": ["t0", "b3", "b4", "b5", "b6", "b7", "b8", "s2", "end"],
           "j": ["t0", "g2b", "n48", "n55", "n56", "n60", "n64", "n71", "end"],
           "k": ["t0", "g0b", "n0", "n4", "n8", "n16", "n24", "n31", "end"],
           "l": ["t0", "g1b", "g3b", "n31", "n32", "n39", "n40", "n47", "end"],
           "m": ["t0", "n0", "n8", "n16", "n24", "n32", "n40", "n56", "end"],
           "n": ["t0", "c0a", "c0", "c1a", "c1", "c2a", "c2", "c3a", "c3"],
           "o": ["t0", "c4a", "c4", "c5a", "c5", "c6a", "c6", "c7a", "c7"],
           "p": ["t0", "g0a", "g0b", "g1a", "g1b", "g3a", "g3b", "g2a", "g2b"],
           "q": ["t0", "s2", "f0a", "f0b", "g0a", "g0b", "f2a", "f2b", "end"],
           "r": ["t0", "s1", "b1", "b2", "b3", "b4", "b5", "b6", "b7"],
           "s": ["t0", "b7", "b8", "b9", "b10", "b11", "c0", "c1", "c2"],
           "t": ["n16", "n17", "n18", "n19", "n20", "n21", "n22", "n23", "n24"],
           "u": ["n40", "n41", "n42", "n43", "n44", "n45", "n46", "n47", "n48"],
           "v": ["n60", "n61", "n62", "n63", "n64", "n65", "n66", "n67", "n68"],
           "w": ["t00", "t0", "karg", "issued", "rest", "pads", "x0", "xdone", "end"],
           "i": ["t0", "s2", "g0a", "g0b", "p2", "c1", "g1a", "g1b", "end"],
           "d": ["t0", "p2", "g1b", "g3a", "g3b", "g2a", "g2b", "lastm", "end"],
           "c": ["t0", "p2", "c1", "c3", "c5", "c7", "lastm", "sbar", "end"]}

    def stamp(self, name):
        if C.stamps and name in self.STS[C.stset]:
            k = self.STS[C.stset].index(name)
            self.E.line(f"{'s_memrealtime' if C.rt else 's_memtime'} s[{STAMP0 + 2 * k}:{STAMP0 + 2 * k + 1}]")

    def setup_first(self, typ):
        o = []; e = o.append
        lane = self.lane; vx = self.vx; t0, t1, t2 = v(201), v(202), v(203)
        e(valu("v_and_b32", lane, 63, v(0)))
        e(valu("v_lshrrev_b32", t0, 6, v(0)))
        e(salu("s_and_b32", sXCD, sWG, 7))
        e(rfl(sW, t0))
        e(salu("s_and_b32", sRB, sXCD, 1)); e(salu("s_lshl_b32", sRB, sRB, 3))
        e(salu("s_and_b32", sT0, sJ, 7)); e(salu("s_add_u32", sRB, sRB, sT0))
        e(salu("s_and_b32", sIDX, sXCD, 6)); e(salu("s_lshr_b32", sT0, sJ, 4)); e(salu("s_add_u32", sIDX, sIDX, sT0))
        e(valu("v_and_b32", t0, 7, lane)); e(valu("v_lshrrev_b32", t1, 4, lane)); e(valu("v_xor_b32", t0, t0, t1))
        e(valu("v_lshlrev_b32", t0, 4, t0))
        e(valu("v_lshrrev_b32", t1, 3, lane)); e(valu("v_lshlrev_b32", t1, 10, t1))
        e(valu("v_or_b32", vx[0], t0, t1)); e(valu("v_xor_b32", t2, 64, vx[0]))
        e(valu("v_add_u32", vx[1], 7168, t2)); e(valu("v_add_u32", vx[2], 2 * 7168, vx[0])); e(valu("v_add_u32", vx[3], 3 * 7168, t2))
        e(salu("s_lshl_b32", sM0B, sW, 15))
        e(salu("s_lshl_b32", sT0, sRB, 17)); e(salu("s_add_u32", sXo, sT0, sM0B))
        e(salu("s_lshr_b32", sT1, sJ, 3)); e(salu("s_add_u32", sT1, sT1, sJ)); e(salu("s_and_b32", sROT, sT1, 3 if C.rot else 0))
        e(salu("s_lshl_b32", sXk, sROT, 8))
        e(smov(SWS[2], WS_SIZE)); e(smov(SWS[3], 0x20000))
        if typ == "A":
            e(smov(SQKV[2], 512 * 3072)); e(smov(SQKV[3], 0x20000))
            hs = self.hs
            e(salu("s_sub_u32", sT1, sT0, 16 * 1024))
            e(valu("v_add_u32", hs[0], sT1, vx[0])); e(salu("s_add_u32", sT1, sT1, 1024)); e(valu("v_add_u32", hs[1], sT1, vx[1]))
            e(salu("s_add_u32", sHo, sW, sROT)); e(salu("s_and_b32", sHo, sHo, 3)); e(salu("s_lshl_b32", sHo, sHo, 8))
            e(salu("s_lshr_b32", sS2b, sM0B, 3))
            e(salu("s_lshl_b32", sT2, sIDX, 1))
            e(salu("s_lshl_b32", sS1, sIDX, 7))
        else:
            e(salu("s_mul_i32", sT2, sIDX, 12, scc_w=False)); e(salu("s_add_u32", sT2, sT2, 24))
            e(salu("s_lshl_b32", sS1, sT2, 5)); e(salu("s_sub_u32", sS1, sS1, 256))
            for d, sh in ((SWU, 1024), (SWG2, 1920), (SWU2, 2944)):
                e(smov(d[2], 512 * 3584 + sh)); e(smov(d[3], 0x20000))
        st1 = 3072 if typ == "A" else 3584
        e(salu("s_mul_i32", sT0, sROT, 128 * st1, scc_w=False)); e(salu("s_add_u32", sS1, sS1, sT0))
        if C.touch_w0:
            e(valu("v_and_b32", t0, 7, lane)); e(valu("v_mul_u32_u24", t0, st1, t0))
            if typ == "A":
                e(valu("v_bfe_u32", t1, lane, 3, 2)); e(valu("v_min_u32", t1, 2, t1)); e(valu("v_lshlrev_b32", t1, 10, t1))
            else:
                e(valu("v_bfe_u32", t1, lane, 3, 1)); e(valu("v_lshlrev_b32", t1, 7, t1))
            e(valu("v_add_u32", vTW, t0, t1))
            e(salu("s_and_b32", sT0, sJ, 4)); e(salu("s_add_u32", sT0, sT0, sW)); e(salu("s_mul_i32", sT0, sT0, 8 * st1, scc_w=False))
            e(salu("s_add_u32", sT5, sT0, sS1))
        return o

    def touch(self, voff, srd_, soff, imm=0, dst=None, fl=""):
        i = vload(dst or aDUM0, voff, srd_, soff, imm, fl=fl); i.w = set(); return i

    def consts(self, typ):
        o = []; e = o.append
        lane = self.lane
        t = [v(208 + i) for i in range(8)]
        li, g4, r2, hh, ub = v(190), v(191), v(192), v(193), v(194)
        e(valu("v_and_b32", li, 15, lane)); e(valu("v_lshrrev_b32", g4, 4, lane)); e(valu("v_lshrrev_b32", hh, 5, lane))
        e(valu("v_and_b32", ub, 1, g4)); e(valu("v_lshrrev_b32", r2, 2, li))
        e(valu("v_lshlrev_b32", vL16, 4, lane))
        e(smov(sHI, 0xffff0000)); e(smov(sONE, 0x3f803f80)); e(smov(sC512, 0x3b000000)); e(smov(sCSC, 0x3eb8aa3b))
        xa = self.xa
        e(valu("v_and_b32", t[0], 31, lane)); e(valu("v_lshlrev_b32", t[1], 7, t[0]))
        e(valu("v_bfe_u32", t[0], lane, 1, 3)); e(valu("v_xor_b32", t[0], t[0], hh)); e(valu("v_lshlrev_b32", t[0], 4, t[0]))
        e(valu("v_add_u32", t[1], sM0B, t[1]))
        for q in range(4):
            e(valu("v_xor_b32", t[2], 32 * q, t[0])); e(valu("v_add_u32", xa[q], t[1], t[2]))
        for r_ in self.acc: e(valu("v_mov_b32", r_, 0))
        if typ == "A":
            ha = self.ha
            e(valu("v_lshlrev_b32", t[1], 7, li)); e(valu("v_lshrrev_b32", t[0], 1, li)); e(valu("v_xor_b32", t[0], t[0], g4))
            e(valu("v_lshlrev_b32", t[0], 4, t[0]))
            e(salu("s_add_u32", sT0, sS2b, TB)); e(valu("v_add_u32", t[1], sT0, t[1]))
            e(valu("v_add_u32", ha[0], t[1], t[0])); e(valu("v_xor_b32", t[0], 64, t[0])); e(valu("v_add_u32", ha[1], t[1], t[0]))
            for r_ in self.hacc: e(valu("v_mov_b32", r_, 0))
            e(valu("v_add_u32", vHX, TB + 16384, vL16))
            e(valu("v_lshlrev_b32", ha[2], 3, lane)); e(valu("v_add_u32", ha[2], TB, ha[2])); e(valu("v_add_u32", ha[3], sS2b, ha[2]))
            e(valu("v_add_u32", ha[4], sS2b, vHX))
        e(salu("s_and_b32", sT0, sW, 1)); e(salu("s_lshl_b32", sT0, sT0, 4))
        e(salu("s_lshr_b32", sKH, sW, 1)); e(salu("s_lshl_b32", sT1, sKH, 3)); e(salu("s_add_u32", sT1, sT1, sT0))
        e(valu("v_lshrrev_b32", t[0], 3, lane)); e(valu("v_and_b32", t[1], 2, t[0])); e(valu("v_lshlrev_b32", t[1], 5, t[1]))
        e(valu("v_and_b32", t[2], 7, lane)); e(valu("v_lshlrev_b32", t[2], 4, t[2])); e(valu("v_xor_b32", t[2], t[2], t[1]))
        e(valu("v_add_u32", t[3], sT1, t[0]))
        if typ == "A":
            e(valu("v_mul_u32_u24", t[4], 3072, t[3])); e(valu("v_add_u32", vH, t[4], t[2]))
            e(salu("s_lshl_b32", sT0, sT0, 1))
            e(valu("v_lshrrev_b32", t[4], 2, lane)); e(valu("v_add_u32", t[4], sT0, t[4])); e(valu("v_mul_u32_u24", t[4], 3584, t[4]))
            e(valu("v_and_b32", t[5], 3, lane)); e(valu("v_lshlrev_b32", t[5], 4, t[5]))
            e(salu("s_lshl_b32", sT1, sKH, 5)); e(valu("v_xor_b32", t[5], sT1, t[5]))
            e(valu("v_add_u32", vG, t[4], t[5]))
            e(salu("s_lshl_b32", sS2, sT2, 5))
            e(smov(SWH[2], 512 * 3584)); e(smov(SWH[3], 0x20000))
        else:
            e(valu("v_mul_u32_u24", t[4], 3584, t[3])); e(valu("v_add_u32", vG, t[4], t[2]))
            e(valu("v_xor_b32", t[5], 32, t[2])); e(valu("v_add_u32", vU, t[4], t[5]))
            e(salu("s_mul_i32", sT0, sT0, 3584, scc_w=False))
            e(salu("s_lshl_b32", sS2, sT2, 5)); e(salu("s_add_u32", sS2, sS2, sT0))
        e(salu("s_mul_i32", sT0, sROT, 128 * 3584, scc_w=False)); e(salu("s_add_u32", sS2, sS2, sT0))
        e(salu("s_lshl_b32", sT0, sRB, 2)); e(salu("s_add_u32", sT0, sT0, sW))
        e(salu("s_mul_i32", sT1, sT0, 144, scc_w=False))
        e(salu("s_add_u32", sSt2, sT1, sT2)); e(salu("s_lshl_b32", sSt2, sSt2, 10))
        if typ == "A":
            e(salu("s_lshl_b32", sStF, sT2, 10)); e(salu("s_add_u32", sStF, sStF, sSt2)); e(salu("s_add_u32", sStF, sStF, 112 * 1024))
        else:
            e(salu("s_sub_u32", sStF, sSt2, 8192)); e(salu("s_sub_u32", sStH, sSt2, 4096))
        e(salu("s_lshl_b32", sT0, sT0, 1)); e(salu("s_lshr_b32", sT1, sIDX, 2)); e(salu("s_add_u32", sT0, sT0, sT1))
        e(salu("s_lshl_b32", sT0, sT0, 9))
        e(salu("s_and_b32", sT1, sIDX, 3)); e(salu("s_lshl_b32", sT1, sT1, 2))
        e(salu("s_add_u32", sT0, sT0, sT1)); e(salu("s_add_u32", sFLW, sT0, WS_FLAG))
        e(valu("v_and_b32", vP4, 3, lane)); e(valu("v_lshlrev_b32", vP4, 2, vP4))
        e(smov(SOUT[2], 0x200000)); e(smov(SOUT[3], 0x20000))
        e(salu("s_and_b32", sRT, sJ, 3)); e(salu("s_lshr_b32", sCT, sJ, 2))
        e(salu("s_lshl_b32", sT0, sXCD, 3)); e(salu("s_lshl_b32", sT1, sRT, 1)); e(salu("s_add_u32", sT0, sT0, sT1))
        e(salu("s_and_b32", sT1, sW, 1)); e(salu("s_add_u32", sT0, sT0, sT1))
        e(salu("s_mul_i32", sTAG, sT0, 144 * 1024, scc_w=False))
        e(smov(sA2c0, sTAG))
        for c_ in range(3): e(salu("s_mul_i32", sB2c[c_], sKH, SHIFT[c_] * 16384, scc_w=False))
        e(salu("s_lshr_b32", sA2c1, sB2c1, 4)); e(salu("s_add_u32", sA2c1, sA2c1, sTAG))
        e(salu("s_lshl_b32", sXs, sT0, 15))
        e(salu("s_lshl_b32", sFLR, sT0, 1)); e(salu("s_add_u32", sFLR, sFLR, sKH))
        e(salu("s_lshl_b32", sFLR, sFLR, 9)); e(salu("s_add_u32", sFLR, sFLR, WS_FLAG))
        e(salu("s_lshl_b32", sM0T, sW, 10)); e(salu("s_add_u32", sM0T, sM0T, TB))
        e(salu("s_lshl_b32", sT1, sT1, 13)); e(salu("s_lshl_b32", sCT, sCT, 7)); e(salu("s_add_u32", sT1, sT1, sCT))
        e(valu("v_lshlrev_b32", t[4], 10, t[0])); e(valu("v_add3_u32", vB2, t[4], t[2], sT1))
        e(salu("s_add_u32", sXs, sXs, sCT))
        e(salu("s_and_b32", sOut, sXs, 0xffff7fff)); e(salu("s_lshr_b32", sT0, sM0B, 1)); e(salu("s_add_u32", sOut, sOut, sT0))
        e(valu("v_lshlrev_b32", t[0], 7, r2))
        e(valu("v_and_b32", t[1], 3, lane)); e(valu("v_lshlrev_b32", t[1], 3, t[1])); e(valu("v_add_u32", t[0], t[0], t[1]))
        e(valu("v_and_b32", t[2], 2, r2))
        e(valu("v_or_b32", t[3], t[2], ub)); e(valu("v_lshlrev_b32", t[3], 5, t[3]))
        e(valu("v_lshlrev_b32", t[4], 16, hh)); e(valu("v_add_u32", t[4], t[4], t[0]))
        if typ == "A":
            for j in range(2):
                e(valu("v_xor_b32", t[6], 64 * j, t[3])); e(valu("v_add_u32", vTR[4 + j], t[6], t[4]))
            e(valu("v_lshlrev_b32", t[6], 3, hh)); e(valu("v_add_u32", t[6], t[6], r2)); e(valu("v_lshlrev_b32", t[6], 6, t[6]))
            e(valu("v_lshlrev_b32", t[7], 16, ub)); e(valu("v_add3_u32", t[6], t[6], t[7], t[1]))
            e(valu("v_lshlrev_b32", t[7], 5, ub)); e(valu("v_add_u32", vTR[0], t[6], t[7]))
            e(valu("v_xor_b32", t[7], 32, t[7])); e(valu("v_add_u32", vTR[1], t[6], t[7]))
        else:
            e(valu("v_lshlrev_b32", t[5], 10, ub)); e(valu("v_add_u32", t[5], t[5], t[4]))
            for tt in range(4):
                e(valu("v_xor_b32", t[6], 32 * tt, t[3])); e(valu("v_add_u32", vTR[tt], t[6], t[5]))
        def park(reg, src): e(accw(a(aPARK + [str(x) for x in PARKED].index(str(reg))), src))
        e(valu("v_lshlrev_b32", t[4], 9, hh)); e(valu("v_add_u32", t[4], t[4], t[0]))
        e(salu("s_lshl_b32", sT0, sKH, 6)); e(valu("v_xor_b32", t[6], sT0, t[3]))
        e(valu("v_add_u32", t[5], t[6], t[4])); e(valu("v_xor_b32", t[6], 64, t[5]))
        e(salu("s_lshl_b32", sT0, sKH, 16)); e(salu("s_lshl_b32", sT1, sKH, 11)); e(salu("s_add_u32", sT1, sT1, TB))
        for j in range(2):
            e(valu("v_add_u32", t[7], sT0, t[5 + j])); park(vTR2[j], t[7])
            e(valu("v_add_u32", t[7], sT1, t[5 + j])); park(vTR2T[j], t[7])
        if typ == "A":
            e(valu("v_lshlrev_b32", t[4], 16, ub)); e(valu("v_lshlrev_b32", t[5], 15, hh)); e(valu("v_add3_u32", t[4], t[4], t[5], t[0]))
            e(valu("v_xor_b32", t[6], sW, t[2])); e(valu("v_lshlrev_b32", t[6], 5, t[6])); e(valu("v_add_u32", vW16, t[4], t[6]))
            e(salu("s_mul_i32", sT0, sW, 6144, scc_w=False)); e(salu("s_add_u32", sT0, sT0, TB)); e(valu("v_add_u32", vEX, sT0, vL16))
            e(valu("v_lshlrev_b32", t[4], 5, ub)); e(valu("v_add_u32", t[4], t[4], li)); e(valu("v_lshlrev_b32", t[4], 4, t[4]))
            e(valu("v_lshlrev_b32", t[5], 3, hh)); e(smov(sT0, TB)); e(valu("v_add3_u32", vHW, t[4], t[5], sT0))
            q = t[0]; bb = v(t[2].lo, 2)
            e(valu("v_and_b32", q, 31, lane)); e(valu("v_add_u32", t[1], 18, q))
            e(valu("v_mov_b32", t[4], 0x5555)); e(valu("v_mov_b32", t[5], 0))
            e(valu("v_lshlrev_b64", bb, t[1], v(t[4].lo, 2)))
            e(salu("s_or_b32", sT1, sRB, sW)); e(salu("s_cselect_b32", sT1, -1, 0, scc_w=False, scc_r=True))
            e(valu("v_and_b32", bb[0], sT1, bb[0]))
            e(valu("v_lshlrev_b32", t[1], 2, hh))
            e(valu("v_lshrrev_b32", bb[0], t[1], bb[0])); e(valu("v_lshrrev_b32", bb[1], t[1], bb[1]))
            e(valu("v_not_b32", bb[0], bb[0])); e(valu("v_not_b32", bb[1], bb[1]))
            e(smov(sT0, NEG))
            for r in range(24):
                rr = r if r < 16 else r - 8
                tmp = t[6 + (r & 1)]
                e(valu("v_bfe_i32", tmp, bb[1] if r < 16 else bb[0], 8 * (rr >> 2) + (rr & 3), 1))
                e(valu("v_and_b32", tmp, sT0, tmp)); e(accw(aMASK[r], tmp))
            e(valu("v_and_b32", t[2], 1, q)); e(valu("v_lshlrev_b32", t[2], 4, t[2]))
            e(valu("v_mov_b32", t[3], 0xffff)); e(valu("v_lshlrev_b32", vPM, t[2], t[3]))
            e(valu("v_bfe_i32", t[2], q, 4, 1)); e(valu("v_and_b32", vMHC, t[2], vPM)); e(valu("v_xor_b32", vMHP, vMHC, vPM))
        return o

    def tables(self):
        o = []; e = o.append
        e(salu("s_lshr_b32", sT1, sCT, 7))
        for g in (3, 2, 1, 0):
            e(salu("s_add_u32", sT0, sT1, g)); e(salu("s_and_b32", sT0, sT0, 3 if C.rot2 else 0))
            if not C.rot2: e(smov(sT0, g))
            e(salu("s_lshl_b32", sT0, sT0, 16))
            e(salu("s_add_u32", sG1[g], sB2c2, sT0))
            e(salu("s_mul_i32", sT0, sT0, 3, scc_w=False)); e(salu("s_add_u32", sG3[g], sB2c0, sT0))
        return o

    def b2_soff(self, n, dst):
        ks, cls, st = step_info(n)
        if cls == 1: return salu("s_add_u32", dst, sB2c1, ks * 16384)
        if cls == 2: g = (ks - 112) >> 2; return salu("s_add_u32", dst, sG1[g], (ks - 112 - 4 * g) * 16384)
        g = (ks - 16) // 12; return salu("s_add_u32", dst, sG3[g], (ks - 12 * g) * 16384)

    def code_touch(self):
        E = self.E
        if not C.touch_code: return
        t = v(201)
        E.line(f"s_getpc_b64 {sPC}")
        pcl = self.lab("pc"); E.label(pcl)
        E.emit(salu("s_and_b32", sT0, sJ, 1)); E.emit(salu("s_lshl_b32", sT0, sT0, 15))
        E.emit(valu("v_lshlrev_b32", t, 7, v(0))); E.emit(valu("v_add_u32", t, sT0, t))
        E.line(f"s_mov_b32 {sT0}, L_code_end-{pcl}-4")
        E.emit(valu("v_min_u32", t, sT0, t))
        E.emit(I(f"global_load_dword {aDUM0}, {t}, {sPC}", "vml", t.ids(), ()))

    def finish_stats(self, sm, sq, rinv, nb, t0, t1):
        e = self.E.emit
        e(valu("v_mul_f32", sm, sC512, sm))
        e(valu("v_mul_f32", t0, sm, sm))
        e(I(f"v_fma_f32 {sq}, {sq}, {sC512}, -{t0}", "valu", sq.ids() | t0.ids() | sC512.ids(), sq.ids()))
        e(valu("v_max_f32", sq, 0, sq))
        e(valu("v_cvt_pk_bf16_f32", t0, sm, sq))
        e(valu("v_and_b32", t1, sHI, t0))
        e(valu("v_add_f32", t1, 0x3727c5ac, t1))
        e(valu("v_cvt_pk_bf16_f32", t1, t1, t1)); e(valu("v_and_b32", t1, sHI, t1))
        e(valu("v_sqrt_f32", t1, t1))
        e(valu("v_cvt_pk_bf16_f32", t1, t1, t1)); e(valu("v_and_b32", t1, sHI, t1))
        e(valu("v_rcp_f32", rinv, t1))
        e(valu("v_lshlrev_b32", t0, 16, t0))
        e(I(f"v_mul_f32 {nb}, -{t0}, {rinv}", "valu", t0.ids() | rinv.ids(), nb.ids()))

    def norm_ops(self, reg, rinv, nb, k0=0):
        ops = []
        for d in range(4):
            lo = NT[(2 * (k0 + d)) % 8]; hi = NT[(2 * (k0 + d) + 1) % 8]; x = reg[d]
            ops += [valu("v_lshlrev_b32", lo, 16, x), valu("v_and_b32", hi, sHI, x),
                    valu("v_fma_f32", lo, lo, rinv, nb), valu("v_fma_f32", hi, hi, rinv, nb),
                    valu("v_cvt_pk_bf16_f32", x, lo, hi)]
        return ops

    def dots(self, reg, acc):
        ops = []
        for d in range(reg.n):
            ops.append(valu("v_dot2_f32_bf16", acc[d & 1], reg[d], sONE, acc[d & 1]))
            ops.append(valu("v_dot2_f32_bf16", acc[2 + (d & 1)], reg[d], reg[d], acc[2 + (d & 1)]))
        return ops

    def wrap(self, reg, q, span):
        return glue([scmp("s_cmp_eq_u32", sROT, 4 - q), salu("s_cselect_b32", sS2b, span, 0, scc_w=False, scc_r=True),
                     salu("s_sub_u32", reg, reg, sS2b)])

    def chunks(self, obj):
        k, j = obj
        if self.typ == "A":
            if k == "s1": return list(range(3 * (j % 7), 3 * (j % 7) + 3))
            return [6 + 2 * j, 7 + 2 * j]
        jj = j if k == "s1" else 16 + j
        return list(range(4 * (jj % 6), 4 * (jj % 6) + 4))

    def slab_dma(self, obj):
        L = self.L; k, j = obj; ch = self.chunks(obj); fl = C.w_fl
        def f(E): L.alloc(obj, ch)
        ops = [f, salu("s_add_u32", "m0", sM0B, 1024 * ch[0])]
        if k == "s1":
            st = 3072 if self.typ == "A" else 3584
            if self.typ == "A": ops += [dma(vH, SQKV, sS1, 1024 * u, obj, fl) for u in range(3)]
            else: ops += [dma(vG, SWG_, sS1, 0, obj, fl), dma(vU, SWU, sS1, 1024, obj, fl), dma(vG, SWG2, sS1, 2048, obj, fl), dma(vU, SWU2, sS1, 3072, obj, fl)]
            if j < 15: ops.append(salu("s_add_u32", sS1, sS1, 32 * st))
            if j % 4 == 3 and j < 15 and C.rot: ops.append(self.wrap(sS1, (j + 1) // 4, 512 * st))
        else:
            if self.typ == "A":
                ops += [salu("s_add_u32", sS2b, sS2, 16 * 3584 - 1024), dma(vG, SWH, sS2, 0, obj, fl), dma(vG, SWH, sS2b, 1024, obj, fl)]
            else:
                ops += [salu("s_add_u32", sS2b, sS2, 16 * 3584 - 2048), dma(vG, SWG_, sS2, 0, obj, fl), dma(vU, SWU, sS2, 1024, obj, fl),
                        dma(vG, SWG_, sS2b, 2048, obj, fl), dma(vU, SWU, sS2b, 3072, obj, fl)]
            if j < 7: ops.append(salu("s_add_u32", sS2, sS2, 64 * 3584))
            if j % 2 == 1 and j < 7 and C.rot: ops.append(self.wrap(sS2, (j + 1) // 2, 512 * 3584))
        return ops

    def b2_chunk(self, n):
        if self.typ == "A": tab = list(range(22, 32)) + list(range(0, 22)) + list(range(32, 40))
        else: tab = list(range(24, 32)) + list(range(0, 24)) + list(range(32, 40))
        return tab[n % 40]

    def b2_dma(self, n):
        L = self.L
        ks, cls, _ = step_info(n)
        ch = self.b2_chunk(n)
        def f(E): L.alloc(("b2", n), [ch])
        return [f, salu("s_add_u32", "m0", sM0B, 1024 * ch) if ch < 32 else salu("s_add_u32", "m0", sM0T, 4096 * (ch - 32)),
                self.b2_soff(n, sB2s),
                dma(vB2, SWO if cls == 2 else SWD, sB2s, 0, ("b2", n), C.b2_fl)]

    def bar(self, cover, m_done, lds_all=False, lds_tags=()):
        L = self.L
        def f(E):
            E.wait_tags(lds=list(lds_tags) + list(cover), vm=cover)
            if lds_all: E.wait_all_lds()
            if not (C.dbg_bar and cover and cover[0][0] == "b2"): E.barrier()
            L.visible |= set(cover); L.bar_m = m_done
        return f

    def acc2(self, t): return ACC2(t) if self.typ == "A" else ACC1(t)

    def acc1(self, t): return ACC1(t) if t < 6 else a(112 + 16 * (t - 6), 16)

    def seq(self, typ):
        out = []
        order = [2, 3, 4, 5, 0, 1] if typ == "A" else list(range(8))
        s1 = [(ks, t) for ks in range(28) for t in order] + [(ks, t) for t in order for ks in range(28, 32)]
        for ks, t in s1:
            obj = ("s1", ks // 2); base = (ks & 1) * 32768 + self.chunks(obj)[0] * 1024
            if True:
                if typ == "A":
                    out.append(dict(acc=ACC1(t), x=X(ks), sw=(t >= 4), obj=obj, addr=vTR[4 + (t & 1)],
                                    imm=base + (t >> 1) * 1024, st=512, first=(ks == 0)))
                else:
                    out.append(dict(acc=self.acc1(t), x=X(ks), sw=False, obj=obj, addr=vTR[t & 3], imm=base + (t >> 2) * 2048, st=512, first=(ks == 0)))
        nt = self.nt2
        s2 = [(ks, t) for ks in range(24) for t in range(nt)] + [(ks, t) for t in range(nt) for ks in range(24, 32)]
        for ks, t in s2:
            obj = ("s2", ks // 4); k = ks & 3
            out.append(dict(acc=self.acc2(t), x=X(ks), sw=False, obj=obj, addr=vTR[t],
                            imm=(k >> 1) * 32768 + self.chunks(obj)[0] * 1024 + (k & 1) * (1024 if typ == "A" else 2048),
                            st=256 if typ == "A" else 512, first=(ks == 0)))
        for n in range(72):
            iso = step_info(n)[1] == 2
            for j in ((1, 0) if n in (55, 71) else (0, 1)):
                ch = self.b2_chunk(n)
                out.append(dict(acc=(ACCS if iso else ACCD)[j], x=n, sw=False, obj=("b2", n),
                                addr=vTR2[j] if ch < 32 else vTR2T[j], imm=ch * 1024 if ch < 32 else (ch - 32) * 4096,
                                st=32768 if ch < 32 else 1024, first=(n in (0, 40))))
        for m, o in enumerate(out): self.L.last_use[o["obj"]] = m
        return out

    def wreads(self, m):
        o = self.SEQ[m]; L = self.L
        def f(E): assert o["obj"] in L.visible, ("read of invisible", m, o["obj"])
        return [f, ds_tr(WF(m).sub(0, 2), o["addr"], o["imm"]), ds_tr(WF(m).sub(2, 2), o["addr"], o["imm"] + o["st"])]

    def main(self, m):
        o = self.SEQ[m]
        if isinstance(o["x"], int):
            def mk(peek):
                if peek and o["x"] not in self.a2slot: return None
                return mfma(o["acc"], WF(m), self.a2slot[o["x"]]["r"], 0 if o["first"] else o["acc"])
            mn = dict(pre=[], m=mk, fix=[])
            if m & 1: mn["fix"].append(lambda E: self.pool.give(E, self.a2slot[o["x"]]))
        else:
            A_, B_ = (o["x"], WF(m)) if o["sw"] else (WF(m), o["x"])
            mn = dict(pre=[], m=mfma(o["acc"], A_, B_, 0 if o["first"] else o["acc"]), fix=[])
        if m + C.D < len(self.SEQ): mn["fix"] += self.wreads(m + C.D)
        return mn

    def spin_check_tag(self):
        def f(E):
            ok = self.lab("tagok"); sp = self.lab("tagspin")
            E.emit(rfl(sTAG, vTAG))
            E.emit(scmp("s_cmp_eq_u32", sTAG, 0))
            E.line(f"s_cbranch_scc1 {sp}")
            E.label(ok)
            self.cold += [f"{sp}:", f"    s_mov_b32 {sSPIN}, 0", f"{sp}_l:",
                          f"    buffer_load_dword {vTAG}, off, {SDBG}, 0 sc1", f"    s_add_u32 {sSPIN}, {sSPIN}, 1",
                          "    s_waitcnt vmcnt(0)", f"    v_readfirstlane_b32 {sTAG}, {vTAG}",
                          f"    s_cmp_ge_u32 {sSPIN}, {C.spin_max}", f"    s_cbranch_scc1 {ok}",
                          f"    s_cmp_eq_u32 {sTAG}, 0", f"    s_cbranch_scc1 {sp}_l", f"    s_branch {ok}"]
        return f

    def poll_load(self, stage):
        return vload(vPL[stage], vP4, SWS, sFLR, 128 * stage, fl="sc1")

    def gate(self, stage):
        def f(E):
            ok = self.lab("gateok"); sp = self.lab("gatespin")
            self.stamp(f"g{stage}a")
            E.emit(vcmp("v_cmp_ne_u32", "vcc", sTAG, vPL[stage]))
            E.line(f"s_cbranch_vccnz {sp}")
            E.label(ok)
            self.cold += [f"{sp}:", f"    s_mov_b32 {sSPIN}, 0", f"{sp}_l:",
                          f"    buffer_load_dword {vPL[stage]}, {vP4}, {SWS}, {sFLR} offen offset:{128 * stage} sc1",
                          f"    s_add_u32 {sSPIN}, {sSPIN}, 1", f"    s_cmp_ge_u32 {sSPIN}, {C.spin_max}", f"    s_cbranch_scc1 {ok}",
                          "    s_waitcnt vmcnt(0)", f"    v_cmp_ne_u32 vcc, {sTAG}, {vPL[stage]}", f"    s_cbranch_vccnz {sp}_l", f"    s_branch {ok}"]
            self.stamp(f"g{stage}b")
        return f

    def flag_store(self, stage, tags):
        def f(E):
            self.stamp(f"f{stage}a")
            E.wait_tags(vm=tags)
            self.stamp(f"f{stage}b")
            E.emit(vstore(vTAG, None, SWS, sFLW, 128 * stage, fl="sc1"))
        return f

    def a2_load(self, n):
        ks, cls, _ = step_info(n)
        o = []
        if self.a2base is None or self.a2base[0] != cls or not (0 <= ks - self.a2base[1] < 4):
            self.a2base = (cls, ks)
            if cls == 1: o.append(salu("s_add_u32", sA2s, sA2c1, ks * 1024))
            else:
                g = (ks - 112) >> 2 if cls == 2 else (ks - 16) // 12
                o += [salu("s_lshr_b32", sA2s, (sG1 if cls == 2 else sG3)[g], 4),
                      salu("s_add_u32", sA2s, sA2s, sA2c0),
                      salu("s_add_u32", sA2s, sA2s, (ks - 4 * g if cls == 2 else ks - 12 * g) * 1024)]
        imm = (ks - self.a2base[1]) * 1024
        kind = "AE" if n < 40 else "A"
        def f(E):
            x = self.a2slot[n] = self.pool.take(E, kind)
            if not (C.dbg_a2 and n >= C.dbg_a2): E.emit(vload(x["r"], vL16, SWS, sA2s, imm, fl=C.a2_fl))
        f.vm = True; f.ready = lambda E: self.pool.find(E, kind) is not None
        return o + [f]

    def raw_load(self, n):
        ks, cls, _ = step_info(n)
        def f(E):
            x = self.rawslot[n] = self.pool.take(E, "R")
            E.emit(vload(x["r"], vB2, SWO if cls == 2 else SWD, sXo, 0, fl=C.b2_fl))
        f.vm = True; f.ready = lambda E: self.pool.find(E, "R") is not None
        return [self.b2_soff(n, sXo), f]

    def h_epilogue(self, T, sbase, imm, tag):
        ops = [valu("v_mul_f32", T[r], T[r], T[r + 8]) for r in range(8)]
        ops += [valu("v_cvt_pk_bf16_f32", T[r], T[2 * r], T[2 * r + 1]) for r in range(4)]
        ops.append(vstore(T.sub(0, 4), vL16, SWS, sbase, imm, tag, C.st_fl))
        return ops

    def body(self, typ):
        E = self.E; e = E.emit
        self.L = L = LDSMap()
        E.m0_owner = None
        self.typ = typ
        isA = typ == "A"
        nt1, nt2 = (6, 2) if isA else (8, 4)
        self.nt2 = nt2
        M2 = self.M2 = 32 * nt1; M3 = self.M3 = M2 + 32 * nt2
        self.SEQ = self.seq(typ)
        self.a2base = None
        self.cold = []
        self.lane = v(200); self.vx = [v(204 + g) for g in range(4)]; self.hs = [v(196), v(197)]
        self.xa = xa = [v(216 + q) for q in range(4)]; self.acc = acc = [v(220 + q) for q in range(4)]
        self.ha = ha = [v(144 + i) for i in range(5)]; self.hacc = hacc = [v(149 + i) for i in range(4)]
        self.stamp("t0")
        if C.stamps: E.line("s_memrealtime s[0:1]")
        first = self.setup_first(typ)
        rest = self.consts(typ)
        E.emits(first)
        k = max(0, C.npre - len(first))
        while SCC in rest[k].r: k += 1
        E.emits(rest[:k]); rest = rest[k:]
        E.line("s_waitcnt lgkmcnt(0)")
        self.stamp("karg")
        def inplace(d, size, other, shift=0):
            o = []
            if other is not None and shift: o += [salu("s_sub_u32", other[0], d[2], shift), salu("s_subb_u32", other[1], d[3], 0, scc_r=True)]
            elif other is not None: o += [smov(other[0], d[2]), smov(other[1], d[3])]
            return o + [smov(d[2], size), smov(d[3], 0x20000)]
        E.emits(inplace(SX, 0x200000, SQKV if isA else None))
        if isA: E.emits(inplace(SDBG, 256, SWS))
        def xd(sl):
            o = [salu("s_add_u32", "m0", sM0B, 4096 * sl), salu("s_add_u32", sA2s, sXo, sXk)]
            o += [dma(self.vx[g], SX, sA2s, 1024 * g, tag=("x", sl), fl=C.x_fl) for g in range(4)]
            if sl < 7: o += [salu("s_add_u32", sXk, sXk, 128), salu("s_and_b32", sXk, sXk, 1023)]
            return o
        if isA:
            for ee in range(2):
                for g in range(2):
                    e(salu("s_add_u32", "m0", sS2b, TB + 2048 * ee + 1024 * g))
                    e(dma(self.hs[g], SX, sHo, 0, tag="halo", fl=C.x_fl))
                if ee == 0: e(salu("s_add_u32", sHo, sHo, 128))
            lskip = self.lab("noep")
            e(salu("s_or_b32", sSPIN, sWG, sW))
            E.line(f"s_cbranch_scc1 {lskip}")
            E.line(f"s_mov_b32 {sSPIN}, {WS_EPOCH}")
            E.line(f"buffer_load_dword {vPOLL}, off, {SWS}, {sSPIN} sc1")
            E.label(lskip)
        E.emits(xd(0))
        if isA:
            if C.touch_w0: e(self.touch(vTW, SQKV, sT5, fl=C.w_fl))
        else:
            E.emits([salu("s_sub_u32", SWU2[0], SWG_[2], 2944), salu("s_subb_u32", SWU2[1], SWG_[3], 0, scc_r=True),
                     salu("s_sub_u32", SWG2[0], SWG_[0], 1920), salu("s_subb_u32", SWG2[1], SWG_[1], 0, scc_r=True)])
            E.emits(inplace(SWG_, 512 * 3584, SWU, 1024))
            if C.touch_w0: e(self.touch(vTW, SWG_, sT5, fl=C.w_fl)); e(self.touch(vTW, SWU, sT5, 1024, fl=C.w_fl))
        E.emits(xd(1))
        nx = 2
        if not isA: E.emits(xd(2)); nx = 3
        self.stamp("issued")
        if isA:
            e(scmp("s_cmp_ge_u32", sW, 2))
            e(salu("s_cselect_b32", SWH[0], SWG_[2], SWG_[0], scc_w=False, scc_r=True))
            e(salu("s_cselect_b32", SWH[1], SWG_[3], SWG_[1], scc_w=False, scc_r=True))
        else:
            E.emits(inplace(SDBG, 256, SWS))
        E.emits(inplace(SWD, 1792 * 1024, SOUT) + inplace(SWO, 512 * 1024, None))
        E.emits(rest)
        if C.warm_all:
            ww = [vU, vTR[2], vTR[3], vTB] if isA else [vH, vW16, vHX, vTB]; lane = self.lane
            e(salu("s_lshl_b32", sT0, sWG, 2)); e(salu("s_add_u32", sT0, sT0, sW))
            e(valu("v_min_u32", ww[0], 13, lane)); e(salu("s_mul_i32", sT1, sT0, 14, scc_w=False))
            e(valu("v_add_u32", ww[0], sT1, ww[0])); e(valu("v_lshlrev_b32", ww[0], 7, ww[0]))
            e(valu("v_and_b32", ww[3], 3, lane)); e(valu("v_lshlrev_b32", ww[3], 7, ww[3]))
            e(salu("s_lshl_b32", sT1, sT0, 9)); e(valu("v_add_u32", ww[1], sT1, ww[3]))
            nr = 16 if isA else 8
            e(valu("v_and_b32", ww[2], nr - 1, lane))
            e(salu("s_and_b32", sT0, sW, 1 if isA else 3)); e(salu("s_mul_i32", sT0, sT0, nr, scc_w=False))
            e(salu("s_lshl_b32", sT1, sRB, 5)); e(salu("s_add_u32", sT0, sT0, sT1))
            e(valu("v_add_u32", ww[2], sT0, ww[2])); e(valu("v_mul_u32_u24", ww[2], 3584, ww[2]))
            e(salu("s_lshl_b32", sT0, sT2, 5)); e(valu("v_add_u32", ww[2], sT0, ww[2]))
            self.warm_ops = [self.touch(ww[2], SWH, 0)] if isA else [self.touch(ww[2], SWG_, 0), self.touch(ww[2], SWU, 0, 1024)]
            self.warm_ops += [self.touch(ww[0], SWD, 0), self.touch(ww[1], SWO, 0), self.touch(ww[3], SWS, sFLR, fl="sc1")]
        if C.stamps: E.line("v_accvgpr_write_b32 a198, s0")
        E.emits(self.tables())
        self.stamp("rest")
        if C.pads:
            E.line("s_mov_b64 exec, 0")
            for w_ in (1, 2, 3):
                E.line(f"s_cmp_eq_u32 {sW}, {w_}"); E.line(f"s_cbranch_scc1 L_pad{typ}_{w_}")
            E.line(f"s_branch L_pad{typ}_0")
            E.label(f"L_back{typ}")
            E.line("s_mov_b64 exec, -1")
            E.out.append(f";PADS_FROM {typ}")
        self.stamp("pads")
        if isA:
            hx = v(128, 16); pr = v(154, 2); tp = v(156, 2); pp = v(158, 8)
            E.wait_tags(vm=["halo"])
            self.epoch_publish()
            for ee in range(2):
                for b in range(2): e(ds_rd(hx.sub(4 * (2 * ee + b), 4), ha[b], 2048 * ee))
            E.emits(xd(2)); nx = 3
            E.emits(self.dots(hx, hacc))
            e(valu("v_add_f32", pr[0], hacc[0], hacc[1])); e(valu("v_add_f32", pr[1], hacc[2], hacc[3]))
            for sw in (swap16, swap32):
                e(valu("v_mov_b32", tp[0], pr[0])); e(valu("v_mov_b32", tp[1], pr[1]))
                e(sw(pr[0], tp[0])); e(sw(pr[1], tp[1]))
                e(valu("v_add_f32", pr[0], pr[0], tp[0])); e(valu("v_add_f32", pr[1], pr[1], tp[1]))
            e(ds_wr(ha[3], pr, 0, tag="hp"))
        for sl in range(9):
            if sl < 8:
                E.wait_tags(vm=[("x", sl)])
                self.stamp(f"x{sl}")
                for q in range(4): e(ds_rd(X(4 * sl + q), xa[q], 4096 * sl))
                if nx == 7:
                    for it in self.slab_dma(("s1", 0)): run_item(E, it)
                if nx < 8: E.emits(xd(nx)); nx += 1
            if isA and sl == 0:
                E.wait_tags(lds=["hp"]); E.barrier()
                for w_ in range(4): e(ds_rd(pp.sub(2 * w_, 2), ha[2], 4096 * w_))
            if isA and sl == 1:
                e(valu("v_add_f32", pr[0], pp[0], pp[2])); e(valu("v_add_f32", pr[1], pp[1], pp[3]))
                e(valu("v_add_f32", tp[0], pp[4], pp[6])); e(valu("v_add_f32", tp[1], pp[5], pp[7]))
                e(valu("v_add_f32", pr[0], pr[0], tp[0])); e(valu("v_add_f32", pr[1], pr[1], tp[1]))
                self.finish_stats(pr[0], pr[1], vRINV, vNB, tp[0], tp[1])
            if isA and 1 <= sl <= 4:
                E.emits(self.norm_ops(hx.sub(4 * (sl - 1), 4), vRINV, vNB))
                e(ds_wr(ha[4], hx.sub(4 * (sl - 1), 4), 1024 * (sl - 1), tag="hxw"))
            if sl > 0:
                E.emits(self.dots(v(16 * (sl - 1), 16), acc))
                L.xread.add(sl - 1)
                if 5 <= sl <= (7 if isA else 6):
                    for it in self.slab_dma(("s1", sl - 4)): run_item(E, it)
        self.stamp("xdone")
        e(valu("v_add_f32", acc[0], acc[0], acc[1])); e(valu("v_add_f32", acc[2], acc[2], acc[3]))
        e(valu("v_mov_b32", acc[1], acc[0])); e(valu("v_mov_b32", acc[3], acc[2]))
        e(swap32(acc[0], acc[1])); e(swap32(acc[2], acc[3]))
        e(valu("v_add_f32", acc[0], acc[0], acc[1])); e(valu("v_add_f32", acc[2], acc[2], acc[3]))
        self.bar([("s1", 0), ("s1", 1)], -1, lds_tags=["hxw"])(E)
        for m in range(C.D):
            for it in self.wreads(m): run_item(E, it)
        self.finish_stats(acc[0], acc[2], vRINV, vNB, acc[1], acc[3])
        E.emits(self.norm_ops(X(0), vRINV, vNB))
        self.stamp("s1")

        mains = [self.main(m) for m in range(len(self.SEQ))]
        D = C.D
        qN = Q("norm"); qD = Q("dma"); qH = Q("halo"); qB = Q("b2"); qW = Q("raw", hard=False); qU = Q("dump", vm_age=0)
        qE = Q("epi"); qE2 = Q("epi2", hard=False, top=True); qR = Q("restore"); qFl = Q("flag", top=True)
        self.pool = pool = Pool(); self.a2slot = {}; self.rawslot = {}; self.mark = {}
        started = lambda q: (len(q.items) > 0 and q.empty())
        pool.add(a(200, 56), "AR")
        pool.add(a(192, 4), "A", lambda: started(qR))
        if isA:
            pool.add(a(80, 32), "AR")
            pool.add(a(112, 24), "AR", lambda: self.mark.get("masks"))
            pool.add(a(160, 32), "A", lambda: self.mark.get("masks"))
            pool.add(a(48, 32), "A", lambda: started(qE2))
            pool.add(a(136, 24), "A", lambda: started(qE)); pool.add(v(128, 96), "A", lambda: started(qE))
            rawl = list(range(22, 32)) + list(range(40, 72))
        else:
            pool.add(a(144, 16), "AR"); pool.add(a(160, 32), "A")
            pool.add(a(48, 64), "AR")
            pool.add(a(112, 32), "AR", lambda: started(qE)); pool.add(v(192, 32), "AR", lambda: started(qE))
            pool.add(v(128, 64), "A", lambda: started(qE2))
            for k in list(range(8)) + [12, 13, 14, 15]: pool.add(X(k), "E", lambda k=k: E.gap > M2 + 4 * k + 3)
            rawl = list(range(20, 32)) + list(range(40, 72))
        rawit = {}
        if C.raw:
            for n in rawl[:C.nraw]:
                rawit[n] = self.raw_load(n)
                qW.adds(rawit[n], earliest=C.raw0, deadline=M3 + 16 * (n // 8) - C.D - 40)
        def place(n):
            def f(E):
                need = M3 + 16 * (n // 8) - C.D
                if n in self.rawslot:
                    ch = self.b2_chunk(n); x = self.rawslot[n]
                    qU.add(lambda E: L.alloc(("b2", n), [ch]), deadline=need - 3)
                    if not C.dbg_dump: qU.add(ds_wr(vWQ, x["r"], 1024 * ch, tag=("b2", n)), deadline=need - 3)
                    qU.add(lambda E: pool.give(E, x), deadline=need - 3)
                else:
                    for it in rawit.get(n, []): it.dead = True
                    b2_add(n, E.gap)
            return f
        def b2_add(n, gap):
            qB.adds(self.b2_dma(n), earliest=gap, deadline=max(M3 + 16 * (n // 8) - D - C.b2lead, gap + 2))
        def barrier(gap, cover, name, **kw):
            mains[gap]["npre"] = 2
            mains[gap]["pre"] += [lambda E: self.stamp(name + "a"), self.bar(cover, gap - 1, **kw), lambda E: self.stamp(name)]
        for ks in range(1, 32):
            qN.adds(self.norm_ops(X(ks), vRINV, vNB, ks * 4), earliest=max(0, nt1 * (ks - C.nahead) - 1),
                    deadline=nt1 * ks if ks < 28 else nt1 * 28 + ks - 28)
        for j in (range(4, 7) if isA else range(3, 5)): qD.adds(self.slab_dma(("s1", j)), earliest=0, deadline=17 if isA else 20)
        L.last_use[("T",)] = M2 + 40 if isA else -1
        tagload = vload(vTAG, None, SDBG, 0, fl="sc1")
        pre = []
        if C.pre_a2:
            pre = [valu("v_lshlrev_b32", vTW, 3, vL16)]
            if isA: pre += [valu("v_min_u32", vTW, 4095, vTW), self.touch(vTW, SWS, sStF), valu("v_min_u32", vTW, 2047, vTW), self.touch(vTW, SWS, sSt2)]
            else: pre += [self.touch(vTW, SWS, sStF), valu("v_min_u32", vTW, 4095, vTW), self.touch(vTW, SWS, sSt2)]
        def slab(jj): return ("s1", jj) if jj < 16 else ("s2", jj - 16)
        if isA:
            b2q = list(range(10))
            for g in range(1, 9):
                gap = 24 * g - D
                barrier(gap, [("s1", 2 * g), ("s1", 2 * g + 1)] if g < 8 else [("s2", j) for j in range(4)], f"b{g}")
                its = []
                for j in (2 * g + 4, 2 * g + 5):
                    if 7 <= j < 16: its += self.slab_dma(("s1", j))
                for j in {6: [0, 1, 2], 7: [3, 4, 5], 8: [6, 7]}.get(g, []): its += self.slab_dma(("s2", j))
                if g == 1 and C.warm_all: its += self.warm_ops
                if g == 6: its.append(tagload)
                if g == C.pre_a2: its += pre
                for _ in range({4: 3, 5: 3, 6: 2, 7: 2}.get(g, 0)): b2_add(b2q.pop(0), gap + 6)
                qD.adds(its, earliest=gap, deadline=gap + (14 if g == 7 else 23))
            for j in range(16):
                g0 = max(0, 12 * j - D + 1)
                b = j & 1; ch = self.chunks(("s1", j))[0] * 1024
                its = [ds_rd(aXH[b], vHX, 1024 * j)]
                for u in range(2):
                    its += [ds_tr(aW16[b][u].sub(0, 2), vW16, ch + 1024 * (1 + u)), ds_tr(aW16[b][u].sub(2, 2), vW16, ch + 1024 * (1 + u) + 512)]
                qH.adds(its, earliest=g0, deadline=12 * j + 4)
                qH.add(mfma(aHACC[0], aW16[b][0], aXH[b], 0 if j == 0 else aHACC[0], "16x16x32"), earliest=g0, deadline=12 * j + 8)
                qH.add(mfma(aHACC[1], aXH[b], aW16[b][1], 0 if j == 0 else aHACC[1], "16x16x32"), earliest=12 * j + 7, deadline=12 * j + 10)
            gap = M2 + 32 - D
            barrier(gap, [("s2", j) for j in range(4, 8)], "mid", lds_tags=["exw"])
            for n in range(10, 22): b2_add(n, gap)
            first_use = {0: list(range(22, 28)) + list(range(32, 40)), 1: list(range(28, 32))}
        else:
            b2q = list(range(8)) + list(range(32, 40)) + list(range(8, 20))
            for g in range(1, 12):
                gap = 32 * g - D
                barrier(gap, [slab(2 * g), slab(2 * g + 1)], f"b{g}")
                its = []
                for jj in {8: (19,), 9: (20, 21, 22)}.get(g, (2 * g + 3, 2 * g + 4)):
                    if jj < 24: its += self.slab_dma(slab(jj))
                if g == 1 and C.warm_all: its += self.warm_ops
                if g == 6: its.append(tagload)
                if g == C.pre_a2: its += pre
                for _ in range({3: 4, 4: 4, 5: 4, 6: 4, 10: 4, 11: 8}.get(g, 0)): b2_add(b2q.pop(0), gap + (10 if g < 10 else 0))
                qD.adds(its, earliest=gap, deadline=gap + (18 if g not in (1, 9) else 28))
            first_use = {0: list(range(20, 24)), 1: list(range(24, 32))}
        assert not b2q
        def xfree(reg): return M2 + nt2 * ((reg.lo + reg.n - 1) // 4) + nt2 - 1
        qFl.add(self.spin_check_tag(), earliest=M2 - 8, deadline=M2 - 4)
        def after(q, stage, tags):
            def arm(E):
                f = self.flag_store(stage, tags); p0 = E.pos; g0_ = E.gap
                fd = C.flagd if stage == 0 else C.flagl
                f.ready = lambda E: ((E.pos - p0) * 4 + (E.gap - g0_) * 8 >= fd or (E.gap - g0_) * 33 >= fd
                                     or not any(x[2] in tags for x in E.vq))
                qFl.add(f, earliest=E.gap)
            q.add(arm)
        if not isA:
            for t in range(8):
                T = ACC1(t if t < 6 else t - 2)
                its = [accr(T[r], self.acc1(t)[r]) for r in range(16)] if t >= 6 else []
                qE.adds(its + self.h_epilogue(T, sStF if t < 4 else sStH, 1024 * (t & 3), "h1"), earliest=nt1 * 28 + 4 * t + 3,
                        deadline=M2 - 1 if t < 4 else nt1 * 28 + 4 * t + 8, hard=(t < 4))
            after(qE, 0, ["h1"])
        else:
            self.attention(qE, xfree)
            n0 = self.exw_check[1]; nn = len(qE.items)
            for k in range(n0, nn):
                it, ear, dl, hd = qE.items[k]
                qE.items[k] = (it, ear, int(M2 + 20 + (M3 + C.att_end - M2 - 20) * (k - n0) / (nn - n0)), False)
            after(qE, 3, ["o"])
        schedule(E, mains[:M2], [qN, qD, qH, qB, qW, qFl, qE], lambda g: (C.cap1A if isA else C.cap1B) if g < nt1 * 28 else C.cap1t,
                 0, flush=False, vm_gap=2)
        assert qN.empty() and qH.empty()
        self.stamp("s2")

        qL = Q("a2"); qF = Q("fin", vm_age=60); qP = Q("poll", top=True)
        g0 = M3 + (C.gate0A if isA else C.gate0B)
        for n_, dst in enumerate(PARKED):
            qR.add(accr(dst, a(aPARK + n_)), earliest=xfree(dst), deadline=min(g0, M3 - D) - 2)
        qR.add(valu("v_add_u32", vWQ, sM0B, vL16), earliest=xfree(vWQ), deadline=min(g0, M3 - D) - 2)
        tail = M2 + 24 * nt2
        for t in range(nt2):
            its = ([accr(E2T[r], ACC2(t)[r]) for r in range(16)] if isA else []) + self.h_epilogue(E2T if isA else ACC1(t), sSt2, 1024 * t, "h2")
            qE2.adds(its, earliest=tail + 8 * t + 7, deadline=tail + 8 * t + 16)
        after(qE2, 1 if isA else 2, ["h2"])
        mains[M3]["pre"].append(lambda E: self.stamp("p2"))
        for n_ in range(72): mains[M3 + 2 * n_]["fix"].insert(0, lambda E, n_=n_: self.stamp(f"n{n_}"))
        gates = {0: g0, 32: M3 + 2 * (32 - C.la1), 40: M3 + 2 * (40 - C.la2), 56: M3 + 2 * (56 - C.la3)}
        def chk_free(q):
            def f(E): assert q.empty(), ("A2 slot still in use", q.name, E.gap)
            f.ready = lambda E: q.empty()
            return f
        cur = 0
        for n in range(72):
            if n in gates:
                cur = gates[n]; st = step_info(n)[2]; n0 = n
                qP.add(self.poll_load(st), earliest=cur - C.polld, deadline=cur - C.polld + 2)
                qL.add(self.gate(st), earliest=cur, deadline=cur + 1)
            its = self.a2_load(n)
            qL.adds(its, earliest=cur, deadline=max(M3 + 2 * n - C.a2lead, cur + 2 + (n - n0)), hard=False)
            qL.add(lambda E: None, earliest=cur, deadline=M3 + 2 * n - 6)
        b2q = list(range(40, 72))
        for c in range(9):
            gap = M3 + 16 * c - D
            barrier(gap, [("b2", n) for n in range(8 * c, 8 * c + 8)] + (["xt"] if c == 7 else []), f"c{c}",
                    lds_tags=["sw", "xr"] if c == 8 else ())
            for n in first_use.get(c, []): mains[gap]["pre"].append(place(n))
            while b2q and L.last_use[("b2", b2q[0] - 40)] <= gap - 1: mains[gap]["pre"].append(place(b2q.pop(0)))
        assert not b2q
        RD = v(0, 16); SF = v(16, 16); XF = v(48, 16); XR = v(224, 8); tt = v(32, 4)
        vRW = vTR[0]; vRR = vTR[1]; vOW = vTR[2]; vOR = vTR[3]; vOO = vTR[4]; vXD = vTR[5]; vXA = vG
        qF.add(chk_free(qE), earliest=M3 + 40); qF.add(chk_free(qE2), earliest=M3 + 40)
        its = [valu("v_lshrrev_b32", tt[0], 4, vL16), valu("v_and_b32", tt[1], 31, tt[0]),
               valu("v_lshrrev_b32", tt[2], 5, tt[0]), valu("v_lshlrev_b32", tt[2], 3, tt[2]),
               salu("s_lshr_b32", sT0, sM0B, 3), salu("s_add_u32", sT0, sT0, TB), valu("v_add_u32", vRW, sT0, vL16),
               valu("v_xor_b32", vRR, 8192, vRW),
               salu("s_and_b32", sT0, sW, 1), salu("s_lshl_b32", sT1, sT0, 12), salu("s_add_u32", sT1, sT1, TB + 16384),
               valu("v_lshlrev_b32", tt[3], 7, tt[1]), valu("v_add3_u32", vXA, tt[3], tt[2], sT1),
               valu("v_and_b32", tt[3], 7, tt[0]), valu("v_lshlrev_b32", tt[3], 4, tt[3]),
               salu("s_lshl_b32", sT1, sKH, 6), valu("v_xor_b32", tt[3], sT1, tt[3]), valu("v_add_u32", vXA, vXA, tt[3]),
               salu("s_mul_i32", sT0, sT0, 32 * 144, scc_w=False), salu("s_add_u32", sT0, sT0, sT1), salu("s_add_u32", sT0, sT0, TB),
               valu("v_mul_u32_u24", tt[1], 144, tt[1]), valu("v_add3_u32", vOW, tt[1], tt[2], sT0),
               valu("v_lshrrev_b32", tt[1], 3, tt[0]), valu("v_and_b32", tt[2], 0x70, vL16),
               valu("v_lshl_add_u32", vOO, tt[1], 10, tt[2]),
               valu("v_lshlrev_b32", tt[3], 4, tt[1]), valu("v_xor_b32", vXD, vOO, tt[3]),
               salu("s_mul_i32", sT0, sW, 16 * 144, scc_w=False), salu("s_add_u32", sT0, sT0, TB),
               valu("v_mul_u32_u24", tt[1], 144, tt[1]), valu("v_add3_u32", vOR, tt[1], tt[2], sT0),
               salu("s_lshl_b32", sXk, sW, 11), salu("s_add_u32", sXs, sOut, 8192 - 1024)]
        qF.adds(its, earliest=M3 + 40, deadline=M3 + 96 - D - 1)
        qD.adds([salu("s_add_u32", "m0", sXk, TB + 16384), dma(vXD, SX, sOut, 0, "xt"), dma(vXD, SX, sXs, 1024, "xt")],
                earliest=M3 + 96 - D, deadline=M3 + 96 - D + 4)
        its = []
        for a_ in range(4):
            its += [valu("v_xor_b32", tt[a_], 16 * a_, vXA), ds_rd(XR.sub(2 * a_, 2), tt[a_], 0, tag="xr")]
        qF.adds(its, earliest=M3 + 112 - D, deadline=M3 + 128 - D - 1)
        qF.adds([ds_wr(vRW, ACCS[1].sub(4 * i, 4), 1024 * i, tag="sw") for i in range(4)], earliest=M3 + 111, deadline=M3 + 128 - D)
        its = []
        for r in range(8):
            its += [valu("v_lshlrev_b32", XF[2 * r], 16, XR[r]), valu("v_and_b32", XF[2 * r + 1], sHI, XR[r])]
        qF.adds(its, earliest=M3 + 112)
        its = [ds_rd(SF.sub(4 * i, 4), vRR, 1024 * i) for i in range(4)]
        its += [valu("v_add_f32", SF[r], SF[r], ACCS[0][r]) for r in range(16)]
        its.append(salu("s_add_u32", sXs, sOut, 8192))
        CK = v(38, 2); C1 = v(40, 2)
        its += [valu("v_mov_b32", CK[0], 0xbfb8aa3b), valu("v_mov_b32", CK[1], 0xbfb8aa3b), valu("v_mov_b32", C1[0], 1.0), valu("v_mov_b32", C1[1], 1.0)]
        qF.adds(its, earliest=M3 + 128 - D)
        cap2 = C.cap2A if isA else C.cap2B
        def capf(g):
            if not isA and not qE.empty(): return C.cap2h
            if g < tail + 7: return cap2
            if g < M3: return C.cap2t
            if not qE2.empty(): return 40
            return C.cap3 if qE.empty() else C.cap3x
        schedule(E, mains[M2:], [qFl, qP, qD, qL, qB, qW, qU, qR, qE2, qE, qF], capf, M2, flush=False,
                 vm_gap=lambda g: 2 if g < M3 else C.vm3)
        assert qL.empty() and qD.empty() and qB.empty() and qE.empty() and qE2.empty() and qFl.empty()
        self.stamp("lastm")
        while not qF.empty():
            it = qF.head()[0]; qF.n += 1; run_item(E, it)
        for i in range(4): e(ds_wr(vRW, ACCD[1].sub(4 * i, 4), 16384 + 1024 * i, tag="dw"))
        E.wait_tags(lds=["dw"]); E.barrier()
        self.stamp("sbar")
        for i in range(4): e(ds_rd(RD.sub(4 * i, 4), vRR, 16384 + 1024 * i))
        G = ACCS[1]
        def pk(op, d, *src):
            r = set()
            for x in src: r |= ids(x)
            return I(f"{op} {d}, " + ", ".join(fmt(x) for x in src), "valu", r, ids(d))
        P2 = lambda reg, r: reg.sub(r, 2)
        for a_ in range(4):
            pp_ = (4 * a_, 4 * a_ + 2); rr = range(4 * a_, 4 * a_ + 4)
            for r in pp_: e(pk("v_pk_add_f32", P2(RD, r), P2(RD, r), P2(ACCD[0], r)))
            for r in pp_: e(pk("v_pk_mul_f32", P2(G, r), P2(RD, r), CK))
            for r in pp_: e(pk("v_pk_mul_f32", P2(RD, r), P2(RD, r), P2(SF, r)))
            for r in rr: e(valu("v_exp_f32", G[r], G[r]))
        for a_ in range(4):
            pp_ = (4 * a_, 4 * a_ + 2); rr = range(4 * a_, 4 * a_ + 4)
            for r in pp_: e(pk("v_pk_add_f32", P2(G, r), P2(G, r), C1))
            for r in rr: e(valu("v_rcp_f32", G[r], G[r]))
        for a_ in range(4):
            pp_ = (4 * a_, 4 * a_ + 2)
            for r in pp_: e(pk("v_pk_fma_f32", P2(RD, r), P2(RD, r), P2(G, r), P2(XF, r)))
            for d in range(2): e(valu("v_cvt_pk_bf16_f32", XR[2 * a_ + d], RD[4 * a_ + 2 * d], RD[4 * a_ + 2 * d + 1]))
            e(ds_wr(vOW, XR.sub(2 * a_, 2), 16 * a_))
        E.wait_all_lds(); E.barrier()
        for p in range(2): e(ds_rd(G.sub(4 * p, 4), vOR, 8 * 144 * p))
        for p in range(2): e(vstore(G.sub(4 * p, 4), vOO, SOUT, sXs if p else sOut, 0, fl=C.out_fl))
        self.stamp("end")
        if C.amp:
            l = self.lab("amp")
            E.line("s_waitcnt lgkmcnt(0)")
            if C.amp.startswith("sk"):
                E.line(f"buffer_load_dword v0, off, {SDBG}, 0 offset:4 sc1"); E.line("s_waitcnt vmcnt(0)"); E.line(f"v_readfirstlane_b32 {sT1}, v0"); E.line("s_nop 4")
                if C.amp == "skp": E.line(f"s_sub_u32 {sT0}, s{STAMP0}, {sT1}")
                else: E.line(f"s_sub_u32 {sT0}, {sT1}, s{STAMP0}")
                E.line(f"s_max_i32 {sT0}, {sT0}, 0")
            else:
                k0, k1 = [STAMP0 + 2 * int(x) for x in C.amp.split("-")]
                E.line(f"s_sub_u32 {sT0}, s{k1}, s{k0}")
            pass; E.line(f"s_lshl_b32 {sT0}, {sT0}, 2"); E.line(f"s_add_u32 {sT0}, {sT0}, s{STAMP0 + 16}")
            E.label(l)
            E.line("s_memrealtime s[84:85]"); E.line("s_waitcnt lgkmcnt(0)"); E.line(f"s_sub_u32 s84, s84, {sT0}")
            E.line("s_cmp_lt_i32 s84, 0"); E.line(f"s_cbranch_scc1 {l}")
        elif C.stamps:
            E.line("s_waitcnt lgkmcnt(0)")
            e(salu("s_lshl_b32", sT0, sWG, 2)); e(salu("s_add_u32", sT0, sT0, sW)); e(salu("s_lshl_b32", sT0, sT0, 7))
            e(salu("s_add_u32", sT0, sT0, WS_STAMP))
            for k in range(9):
                e(valu("v_mov_b32", v(0), s(STAMP0 + 2 * k))); e(vstore(v(0), None, SWS, sT0, 4 * k))
            e(accr(v(0), a(198))); e(vstore(v(0), None, SWS, sT0, 44))
            E.line("s_memrealtime s[84:85]"); E.line("s_getreg_b32 s86, hwreg(HW_REG_XCC_ID)"); E.line("s_waitcnt lgkmcnt(0)")
            e(valu("v_mov_b32", v(0), s(84))); e(vstore(v(0), None, SWS, sT0, 36))
            e(valu("v_mov_b32", v(0), s(86))); e(vstore(v(0), None, SWS, sT0, 40))
        E.line("s_endpgm")
        E.out += self.cold

    def epoch_publish(self):
        E = self.E
        l = self.lab("nopub")
        E.emit(salu("s_or_b32", sT0, sWG, sW))
        E.line(f"s_cbranch_scc1 {l}")
        E.line(f"s_mov_b32 {sT0}, 0x9e3779b1")
        E.line(f"v_mul_lo_u32 {vPOLL}, {vPOLL}, {sT0}")
        E.line(f"v_add_u32 {vPOLL}, 0x7f4a7c15, {vPOLL}")
        E.line(f"v_max_u32 {vPOLL}, 1, {vPOLL}")
        E.line(f"s_mov_b32 {sT0}, {WS_EPOCH}")
        E.line(f"buffer_store_dword {vPOLL}, off, {SWS}, {sT0} sc1")
        if C.amp.startswith("sk"):
            E.line(f"v_mov_b32 v0, s{STAMP0}"); E.line(f"buffer_store_dword v0, off, {SDBG}, 0 offset:4 sc1"); E.line("s_waitcnt vmcnt(0)")
        E.line(f"buffer_store_dword {vPOLL}, off, {SDBG}, 0 sc1")
        E.label(l)

    def attention(self, q, xfree):
        M2 = self.M2
        Q0, Q1, K0, K1, V0, V1 = [ACC1(t) for t in range(6)]
        cvt = lambda d, x, y: valu("v_cvt_pk_bf16_f32", d, x, y)
        def pack(dst, src, n=8): return [cvt(dst[i], src[2 * i], src[2 * i + 1]) for i in range(n)]
        its = pack(K0, K0) + pack(K0.sub(8, 8), K1)
        its += [ds_wr(vEX, K0.sub(4 * h, 4), 6144 + 1024 * h, tag="exw") for h in range(4)]
        its += pack(V0, V0) + pack(V0.sub(8, 8), V1)
        bar2 = M2 + 32 - C.D
        q.adds(its, earliest=M2 - 21, deadline=bar2 - 2)
        its = [ds_wr(vEX, V0.sub(4 + 8 * j, 4), 6144 + 4096 + 1024 * j, tag="exw") for j in range(2)]
        its += [accr(NT[i], aHACC[0][i]) for i in range(4)] + [accr(NT[4 + i], aHACC[1][i]) for i in range(4)]
        hk = v(NT[0].lo, 2); hv = v(NT[4].lo, 2)
        its += [cvt(NT[0], NT[0], NT[1]), cvt(NT[1], NT[2], NT[3]), cvt(NT[4], NT[4], NT[5]), cvt(NT[5], NT[6], NT[7])]
        its += [salu("s_lshl_b32", sT0, sW, 10), salu("s_add_u32", sT0, sT0, 256), valu("v_add_u32", NT[2], sT0, vHW),
                salu("s_lshr_b32", sT0, sW, 1), salu("s_lshl_b32", sT0, sT0, 10), salu("s_and_b32", sT1, sW, 1),
                salu("s_lshl_b32", sT1, sT1, 8), salu("s_add_u32", sT0, sT0, sT1), valu("v_add_u32", NT[3], sT0, vHW),
                ds_wr(NT[2], hk, 0, tag="exw"), ds_wr(NT[3], hv, 4096, tag="exw")]
        q.adds(its, earliest=M2 - 1, deadline=bar2 - 2)
        self.exw_check = (q, len(q.items))
        q.adds(pack(Q0, Q0) + pack(Q0.sub(8, 8), Q1), earliest=M2)
        MASK = v(208, 24)
        q.adds([accr(MASK[r], aMASK[r]) for r in range(24)], earliest=M2)
        q.add(lambda E: self.mark.update(masks=True), earliest=M2)
        SC = K1; SP = v(0, 16); U = v(16, 8); P = v(24, 12); O = Q1
        mx, tm, mc = vRINV, vNB, vW16
        sums = [vHX, vH]; t2 = vTR[4]
        def add(i, ear=0):
            w = [x for x in i.w if x < 128]
            e_ = max([xfree(v(x)) for x in w], default=0)
            q.add(i, earliest=max(e_, ear))
        def qk(h, which):
            if which == 0: add(mfma(SC, K0.sub(4 * h, 4), Q0.sub(4 * h, 4), MASK.sub(0, 16)))
            else: add(mfma(SP, aKP[h], Q0.sub(4 * h, 4), MASK.sub(8, 16)))
        def fin(h):
            o = 8 * (h & 1); sm = sums[h & 1]
            l = [valu("v_rcp_f32", sm, sm)]
            l += [valu("v_mul_f32", O[o + r], O[o + r], sm) for r in range(8)]
            l += [cvt(O[o + r], O[o + 2 * r], O[o + 2 * r + 1]) for r in range(4)]
            l.append(vstore(O.sub(o, 4), vL16, SWS, sStF, 1024 * h, "o", C.st_fl))
            return l
        qk(0, 0)
        q.adds([ds_rd(aKP[h], vEX, 1024 * h) for h in range(4)] + [ds_rd(aVP[j], vEX, 4096 + 1024 * j) for j in range(2)], earliest=bar2)
        qk(0, 1)
        for h in range(4):
            for i in range(4): add(valu("v_max_f32", U[i], SC[2 * i], SC[2 * i + 1]))
            for i in range(4, 8): add(valu("v_max3_f32", U[i], SC[2 * i], SC[2 * i + 1], SP[2 * i]))
            if h < 3: qk(h + 1, 0)
            for i in range(4, 8): add(valu("v_max_f32", U[i], U[i], SP[2 * i + 1]))
            add(valu("v_max3_f32", mx, U[0], U[1], U[2])); add(valu("v_max3_f32", tm, U[3], U[4], U[5]))
            if h < 3: qk(h + 1, 1)
            add(valu("v_max3_f32", mx, mx, U[6], U[7])); add(valu("v_max_f32", mx, mx, tm))
            add(valu("v_mov_b32", tm, mx))
            fl = fin(h - 1) if h > 0 else []
            for x in fl[:3]: add(x)
            add(swap32(mx, tm)); add(valu("v_max_f32", mx, mx, tm))
            add(I(f"v_mul_f32 {mc}, -{mx}, {sCSC}", "valu", mx.ids() | sCSC.ids(), mc.ids()))
            for x in fl[3:]: add(x)
            for i in range(8): add(valu("v_fma_f32", U[i], U[i], sCSC, mc))
            for i in range(8): add(valu("v_exp_f32", U[i], U[i]))
            sm = sums[h & 1]; j = h >> 1
            for i in range(4):
                add(cvt(P[i], U[i], U[i])); add(valu("v_and_b32", P[i], vPM, P[i]))
            add(valu("v_add_f32", sm, U[0], U[1])); add(valu("v_add_f32", tm, U[2], U[3]))
            add(mfma(O, V0.sub(8 * j, 4), P.sub(0, 4), 0))
            for i in range(4):
                add(cvt(P[8 + i], U[4 + i], U[4 + i])); add(valu("v_and_b32", P[4 + i], vMHC, P[8 + i]))
            add(valu("v_add_f32", t2, U[4], U[5])); add(valu("v_add_f32", sm, sm, tm))
            add(mfma(O, V0.sub(8 * j + 4, 4), P.sub(4, 4), O))
            for i in range(4): add(valu("v_and_b32", P[8 + i], vMHP, P[8 + i]))
            add(valu("v_add_f32", tm, U[6], U[7])); add(valu("v_add_f32", t2, t2, tm))
            add(mfma(O, aVP[j], P.sub(8, 4), O))
            add(valu("v_add_f32", sm, sm, t2))
            add(valu("v_mov_b32", tm, sm))
            add(swap32(sm, tm)); add(valu("v_add_f32", sm, sm, tm))
        for x in fin(3): add(x)

    def build(self):
        E = self.E
        self.stamp("t00")
        E.emit(scmp("s_cmp_ge_u32", sWG, 256))
        E.line("s_cbranch_scc1 L_end")
        E.line("s_load_dwordx16 s[8:23], s[0:1], 0")
        E.line("s_load_dwordx4 s[24:27], s[0:1], 64")
        E.emit(salu("s_lshr_b32", sJ, sWG, 3))
        self.code_touch()
        E.emit(I("s_bitcmp1_b32 s6, 3", "salu", sJ.ids(), {SCC}))
        E.line("s_cbranch_scc1 L_typeB")
        snap = E.snapshot()
        self.body("A")
        E.label("L_typeB")
        E.restore(snap)
        self.body("B")
        E.label("L_end")
        E.line("s_endpgm")
        E.label("L_code_end")
        E.out.append(".p2align 12")
        head = open(os.path.join(os.path.dirname(os.path.abspath(__file__)), "head.txt")).read()
        txt = head + f"""; @launch grid=(256,1,1) block=(256,1,1) lds=163840
.amdgcn_target "amdgcn-amd-amdhsa--gfx950"
.text
.globl {NAME}
.p2align 8
.type {NAME},@function
{NAME}:
""" + E.text() + f""".section .rodata,"a"
.p2align 6
.amdhsa_kernel {NAME}
  .amdhsa_next_free_vgpr 512
  .amdhsa_next_free_sgpr 102
  .amdhsa_accum_offset 256
  .amdhsa_group_segment_fixed_size 0
  .amdhsa_kernarg_size 80
  .amdhsa_user_sgpr_count 2
  .amdhsa_user_sgpr_kernarg_segment_ptr 1
  .amdhsa_system_sgpr_workgroup_id_x 1
.end_amdhsa_kernel
"""
        return txt


def place_pads(txt):
    import subprocess, re, tempfile
    sys.path.insert(0, "cdna_kernels")
    from cdna_launch import with_harness_metadata
    lines = txt.split("\n")
    probe = []
    for n, l in enumerate(lines):
        if l.startswith("    ") and not l.strip().startswith(";") and not l.strip().startswith("."): probe.append(f"LP_{n}:")
        probe.append(re.sub(r"L_pad[AB]_\d+", "L_end", l))
    d = tempfile.mkdtemp()
    open(d + "/p.s", "w").write(with_harness_metadata("\n".join(probe), NAME, 10, launch_lists=True))
    subprocess.run(["clang", "-x", "assembler", "-target", "amdgcn-amd-amdhsa", "-mcpu=gfx950", d + "/p.s", "-o", d + "/p.co"], check=True)
    sym = subprocess.run(["llvm-objdump", "-t", d + "/p.co"], capture_output=True, text=True).stdout
    addr = {int(m.group(2)): int(m.group(1), 16) for m in re.finditer(r"([0-9a-f]{16}) .* LP_(\d+)", sym)}
    shift = 0; typ = None; pads = {"A": [], "B": []}; prev = None
    for n, l in enumerate(lines):
        if l.startswith(";PADS_FROM"): typ = l.split()[1]
        if l.startswith("L_typeB:") or l.startswith("L_end:"): typ = None
        if n in addr:
            a_ = addr[n] + shift
            if typ and prev is not None and prev // 4096 != a_ // 4096:
                pads[typ].append(n); shift += 4
            prev = a_
    out = []
    for n, l in enumerate(lines):
        for t in "AB":
            if n in pads[t]:
                k = pads[t].index(n)
                out.append(f"L_pad{t}_{k}:")
                out.append(f"    s_cbranch_execz " + (f"L_pad{t}_{k + 4}" if k + 4 < len(pads[t]) else f"L_back{t}"))
        out.append(l)
    print("pads", {t: len(pads[t]) for t in pads}, "kernel at", hex(min(addr.values())))
    assert min(len(pads[t]) for t in pads) >= 4
    return "\n".join(out)


if __name__ == "__main__":
    g = Gen()
    txt = g.build()
    if C.pads: txt = place_pads(txt)
    open(sys.argv[1], "w").write(txt)
    print("instructions:", g.E.ninst)
```

```python
import sys, os
sys.path.insert(0, os.path.dirname(os.path.abspath(__file__)))
from emit import *

NAME = "recurrent_scan__sliding_local_dilated__glu_gated_bilinear__prompt_kernel"

class Cfg:
    stamps = False
    stset = "a"
    rt = False
    D = 6
    nahead = 4; cap1A = 7.0; cap1B = 6.5; cap1t = 8.0; cap2h = 9.0; cap2A = 6.0; cap2B = 7.0; cap3 = 7.0; cap2t = 7.5; cap3x = 20.0
    npre = 120
    gate0A = -8; gate0B = -40; vm3 = 2; nraw = 28
    rot = True
    pads = True
    la1 = 12; la2 = 12; la3 = 12
    polld = 22
    flagd = 450
    b2lead = 22; a2lead = 24; att_end = 30
    dbg_a2 = 0; dbg_dump = False; dbg_bar = False
    amp = ""
    rot2 = True; flagl = 160
    raw = True; raw0 = 84
    w0at = 4; touch_w0 = 4; x2early = True
    touch_code = True
    touch_b2 = False
    warm_all = True
    a2_fl = "sc1"; st_fl = "sc1"; pre_a2 = 0; x_fl = ""; w_fl = ""; b2_fl = ""; out_fl = ""
    spin_max = 1 << 16

C = Cfg()
for arg in sys.argv[2:]:
    k, val = arg.split("=")
    old = getattr(C, k)
    setattr(C, k, (val not in ("0", "False")) if isinstance(old, bool) else type(old)(val.replace("+", " ")))

WS_FLAG = 0x900000
WS_EPOCH = 0xA00000
WS_STAMP = 0xB00000
WS_SIZE = 0xC00000
TB = 131072

sWG = s(2); sW = s(3); sRB = s(4); sIDX = s(5); sJ = s(6); sXCD = s(7)
SX, SWO, SWG_, SWD, SDBG, SP5, SWU, SOUT, SWS, SP9 = [s(8 + 4 * i, 4) for i in range(10)]
SQKV = SWG2 = SP5; SWH = SWU2 = SP9
(sA2s, sB2s, sM0B, sT0, sT1, sS1, sS2, sS2b, sTAG, sFLW, sFLR, sStF, sStH, sSt2, sHI, sONE, sSPIN, sT2, sOut, sT5,
 sRT, sCT, sKH, sCSC, sXs, sM0T, sXo, sXk, sROT, sC512, sA2c0, sA2c1, sA2c2, sB2c0, sB2c1, sB2c2) = [s(48 + i) for i in range(36)]
sA2c = [sA2c0, sA2c1, sA2c2]; sB2c = [sB2c0, sB2c1, sB2c2]
sHo = sB2s
sPC = s(48, 2)
STAMP0 = 84

def X(ks): return v(4 * ks, 4)
def ACC1(t): return v(128 + 16 * t, 16)
NT = [v(224 + i) for i in range(8)]
vTR = [v(232 + i) for i in range(6)]
vG = v(238); vU = v(239); vH = v(240)
vB2 = v(241); vTW = v(242)
vL16 = v(243); vRINV = v(244); vNB = v(245); vW16 = v(246); vHX = v(247)
vTAG = v(248); vPOLL = v(249); vP4 = v(250); vTB = vTAG
vEX = v(251); vHW = v(252); vPM = v(253); vMHC = v(254); vMHP = v(255)
vTR2T = [v(42), v(43)]; vTR2 = [v(44), v(45)]; vWQ = v(46)
vPL = [vPOLL, v(36), v(37), v(47)]
PARKED = vTR2T + vTR2
E2T = v(48, 16)
ACCD = [v(64, 16), v(80, 16)]; ACCS = [v(96, 16), v(112, 16)]
def WF(m): return a(4 * (m % 12), 4)
def ACC2(t): return a(48 + 16 * t, 16)
aMASK = a(112, 24); aKP = [a(136 + 4 * i, 4) for i in range(4)]; aVP = [a(152 + 4 * i, 4) for i in range(2)]
aHACC = [a(160, 4), a(164, 4)]; aXH = [a(168, 4), a(172, 4)]
aW16 = [[a(176, 4), a(180, 4)], [a(184, 4), a(188, 4)]]
aPARK = 192
aDUM0 = a(199); vDUM1 = v(37)

NEG = 0xf149f2ca


class LDSMap:
    def __init__(self):
        self.own = {c: ("x", c // 4) for c in range(32)}
        for c in range(32, 40): self.own[c] = ("T",)
        self.last_use = {}
        self.visible = set()
        self.bar_m = -1
        self.xread = set()
    def alloc(self, obj, chunks):
        for c in chunks:
            o = self.own[c]
            if o[0] == "x": assert o[1] in self.xread, (obj, c, o)
            else: assert self.last_use[o] <= self.bar_m, (obj, c, o, self.last_use[o], self.bar_m)
            self.own[c] = obj
    def check_read(self, obj, chunks):
        assert obj in self.visible, ("not visible", obj)
        for c in chunks: assert self.own[c] == obj, (obj, c, self.own[c])


SHIFT = [48, 8, 16]


def step_info(n):
    if n < 32: return 16 + 12 * (n >> 3) + (n & 7), 0, 0
    if n < 40: return n - 32, 1, 1
    if n < 56: return 112 + n - 40, 2, 3
    return 24 + 12 * ((n - 56) >> 2) + ((n - 56) & 3), 0, 2


class Gen:
    def __init__(self):
        self.E = Emitter()
        self.E.trace = bool(os.environ.get("TRACE"))
        self.nlabel = 0
        self.nstamp = 0

    def lab(self, base):
        self.nlabel += 1
        return f"L_{base}_{self.nlabel}"

    STS = {"a": ["t0", "issued", "x0", "xdone", "s1", "s2", "p2", "lastm", "end"],
           "b": ["t0", "g0a", "g0b", "p2", "g1a", "g1b", "g2a", "g2b", "end"],
           "e": ["t0", "karg", "issued", "rest", "pads", "x0", "x1", "x3", "end"],
           "f": ["t0", "x4", "x5", "x6", "x7", "xdone", "s1", "b1", "end"],
           "g": ["t0", "s1", "b1a", "b1", "b2a", "b2", "b3a", "b3", "end"],
           "h": ["t0", "b3", "b4", "b5", "b6", "b7", "b8", "s2", "end"],
           "j": ["t0", "g2b", "n48", "n55", "n56", "n60", "n64", "n71", "end"],
           "k": ["t0", "g0b", "n0", "n4", "n8", "n16", "n24", "n31", "end"],
           "l": ["t0", "g1b", "g3b", "n31", "n32", "n39", "n40", "n47", "end"],
           "m": ["t0", "n0", "n8", "n16", "n24", "n32", "n40", "n56", "end"],
           "n": ["t0", "c0a", "c0", "c1a", "c1", "c2a", "c2", "c3a", "c3"],
           "o": ["t0", "c4a", "c4", "c5a", "c5", "c6a", "c6", "c7a", "c7"],
           "p": ["t0", "g0a", "g0b", "g1a", "g1b", "g3a", "g3b", "g2a", "g2b"],
           "q": ["t0", "s2", "f0a", "f0b", "g0a", "g0b", "f2a", "f2b", "end"],
           "r": ["t0", "s1", "b1", "b2", "b3", "b4", "b5", "b6", "b7"],
           "s": ["t0", "b7", "b8", "b9", "b10", "b11", "c0", "c1", "c2"],
           "t": ["n16", "n17", "n18", "n19", "n20", "n21", "n22", "n23", "n24"],
           "u": ["n40", "n41", "n42", "n43", "n44", "n45", "n46", "n47", "n48"],
           "v": ["n60", "n61", "n62", "n63", "n64", "n65", "n66", "n67", "n68"],
           "w": ["t00", "t0", "karg", "issued", "rest", "pads", "x0", "xdone", "end"],
           "x": ["t0", "karg", "issued", "pads", "x0", "x1", "x2", "x3", "x4"],
           "y": ["t0", "x4", "x5", "x6", "x7", "xdone", "bx", "s1", "b1"],
           "i": ["t0", "s2", "g0a", "g0b", "p2", "c1", "g1a", "g1b", "end"],
           "d": ["t0", "p2", "g1b", "g3a", "g3b", "g2a", "g2b", "lastm", "end"],
           "c": ["t0", "p2", "c1", "c3", "c5", "c7", "lastm", "sbar", "end"]}

    def stamp(self, name):
        if C.stamps and name in self.STS[C.stset]:
            k = self.STS[C.stset].index(name)
            self.E.line(f"{'s_memrealtime' if C.rt else 's_memtime'} s[{STAMP0 + 2 * k}:{STAMP0 + 2 * k + 1}]")

    def setup_first(self, typ):
        o = []; e = o.append
        lane = self.lane; vx = self.vx; t0, t1, t2 = v(201), v(202), v(203)
        e(valu("v_and_b32", lane, 63, v(0)))
        e(valu("v_lshrrev_b32", t0, 6, v(0)))
        e(salu("s_and_b32", sXCD, sWG, 7))
        e(rfl(sW, t0))
        e(salu("s_and_b32", sRB, sXCD, 1)); e(salu("s_lshl_b32", sRB, sRB, 3))
        e(salu("s_and_b32", sT0, sJ, 7)); e(salu("s_add_u32", sRB, sRB, sT0))
        e(salu("s_and_b32", sIDX, sXCD, 6)); e(salu("s_lshr_b32", sT0, sJ, 4)); e(salu("s_add_u32", sIDX, sIDX, sT0))
        e(valu("v_and_b32", t0, 7, lane)); e(valu("v_lshrrev_b32", t1, 4, lane)); e(valu("v_xor_b32", t0, t0, t1))
        e(valu("v_lshlrev_b32", t0, 4, t0))
        e(valu("v_lshrrev_b32", t1, 3, lane)); e(valu("v_lshlrev_b32", t1, 10, t1))
        e(valu("v_or_b32", vx[0], t0, t1)); e(valu("v_xor_b32", t2, 64, vx[0]))
        e(valu("v_add_u32", vx[1], 7168, t2)); e(valu("v_add_u32", vx[2], 2 * 7168, vx[0])); e(valu("v_add_u32", vx[3], 3 * 7168, t2))
        e(salu("s_lshl_b32", sM0B, sW, 15))
        e(salu("s_lshl_b32", sT0, sRB, 17)); e(salu("s_add_u32", sXo, sT0, sM0B))
        e(salu("s_lshr_b32", sT1, sJ, 3)); e(salu("s_add_u32", sT1, sT1, sJ)); e(salu("s_and_b32", sROT, sT1, 3 if C.rot else 0))
        e(salu("s_lshl_b32", sXk, sROT, 8))
        e(smov(SWS[2], WS_SIZE)); e(smov(SWS[3], 0x20000))
        if typ == "A":
            e(smov(SQKV[2], 512 * 3072)); e(smov(SQKV[3], 0x20000))
            hs = self.hs
            e(salu("s_sub_u32", sT1, sT0, 16 * 1024))
            e(valu("v_add_u32", hs[0], sT1, vx[0])); e(salu("s_add_u32", sT1, sT1, 1024)); e(valu("v_add_u32", hs[1], sT1, vx[1]))
            e(salu("s_add_u32", sHo, sW, sROT)); e(salu("s_and_b32", sHo, sHo, 3)); e(salu("s_lshl_b32", sHo, sHo, 8))
            e(salu("s_lshr_b32", sS2b, sM0B, 3))
            e(salu("s_lshl_b32", sT2, sIDX, 1))
            e(salu("s_lshl_b32", sS1, sIDX, 7))
        else:
            e(salu("s_mul_i32", sT2, sIDX, 12, scc_w=False)); e(salu("s_add_u32", sT2, sT2, 24))
            e(salu("s_lshl_b32", sS1, sT2, 5)); e(salu("s_sub_u32", sS1, sS1, 256))
            for d, sh in ((SWU, 1024), (SWG2, 1920), (SWU2, 2944)):
                e(smov(d[2], 512 * 3584 + sh)); e(smov(d[3], 0x20000))
        st1 = 3072 if typ == "A" else 3584
        e(salu("s_mul_i32", sT0, sROT, 128 * st1, scc_w=False)); e(salu("s_add_u32", sS1, sS1, sT0))
        if C.touch_w0:
            e(valu("v_and_b32", t0, C.touch_w0 - 1, lane)); e(valu("v_mul_u32_u24", t0, st1, t0))
            if typ == "A":
                e(valu("v_lshrrev_b32", t1, 4, lane)); e(valu("v_min_u32", t1, 2, t1)); e(valu("v_lshlrev_b32", t1, 10, t1))
            else:
                e(valu("v_bfe_u32", t1, lane, 4, 1)); e(valu("v_lshlrev_b32", t1, 7, t1))
            e(valu("v_add_u32", vTW, t0, t1))
            e(salu("s_and_b32", sT0, sJ, 4)); e(salu("s_and_b32", sT1, sXCD, 1)); e(salu("s_lshl_b32", sT1, sT1, 3))
            e(salu("s_add_u32", sT0, sT0, sT1)); e(salu("s_add_u32", sT0, sT0, sW))
            e(salu("s_mul_i32", sT0, sT0, C.touch_w0 * st1, scc_w=False)); e(salu("s_add_u32", sT5, sT0, sS1))
        return o

    def touch(self, voff, srd_, soff, imm=0, dst=None, fl=""):
        i = vload(dst or aDUM0, voff, srd_, soff, imm, fl=fl); i.w = set(); return i

    def consts(self, typ):
        o = []; e = o.append
        lane = self.lane
        t = [v(208 + i) for i in range(8)]
        li, g4, r2, hh, ub = v(190), v(191), v(192), v(193), v(194)
        e(valu("v_and_b32", li, 15, lane)); e(valu("v_lshrrev_b32", g4, 4, lane)); e(valu("v_lshrrev_b32", hh, 5, lane))
        e(valu("v_and_b32", ub, 1, g4)); e(valu("v_lshrrev_b32", r2, 2, li))
        e(valu("v_lshlrev_b32", vL16, 4, lane))
        e(smov(sHI, 0xffff0000)); e(smov(sONE, 0x3f803f80)); e(smov(sC512, 0x3b000000)); e(smov(sCSC, 0x3eb8aa3b))
        xa = self.xa
        e(valu("v_and_b32", t[0], 31, lane)); e(valu("v_lshlrev_b32", t[1], 7, t[0]))
        e(valu("v_bfe_u32", t[0], lane, 1, 3)); e(valu("v_xor_b32", t[0], t[0], hh)); e(valu("v_lshlrev_b32", t[0], 4, t[0]))
        e(valu("v_add_u32", t[1], sM0B, t[1]))
        for q in range(4):
            e(valu("v_xor_b32", t[2], 32 * q, t[0])); e(valu("v_add_u32", xa[q], t[1], t[2]))
        for r_ in self.acc: e(valu("v_mov_b32", r_, 0))
        if typ == "A":
            ha = self.ha
            e(valu("v_lshlrev_b32", t[1], 7, li)); e(valu("v_lshrrev_b32", t[0], 1, li)); e(valu("v_xor_b32", t[0], t[0], g4))
            e(valu("v_lshlrev_b32", t[0], 4, t[0]))
            e(salu("s_add_u32", sT0, sS2b, TB)); e(valu("v_add_u32", t[1], sT0, t[1]))
            e(valu("v_add_u32", ha[0], t[1], t[0])); e(valu("v_xor_b32", t[0], 64, t[0])); e(valu("v_add_u32", ha[1], t[1], t[0]))
            for r_ in self.hacc: e(valu("v_mov_b32", r_, 0))
            e(valu("v_add_u32", vHX, TB + 16384, vL16))
            e(valu("v_lshlrev_b32", ha[2], 3, lane)); e(valu("v_add_u32", ha[2], TB, ha[2])); e(valu("v_add_u32", ha[3], sS2b, ha[2]))
            e(valu("v_add_u32", ha[4], sS2b, vHX))
        e(salu("s_and_b32", sT0, sW, 1)); e(salu("s_lshl_b32", sT0, sT0, 4))
        e(salu("s_lshr_b32", sKH, sW, 1)); e(salu("s_lshl_b32", sT1, sKH, 3)); e(salu("s_add_u32", sT1, sT1, sT0))
        e(valu("v_lshrrev_b32", t[0], 3, lane)); e(valu("v_and_b32", t[1], 2, t[0])); e(valu("v_lshlrev_b32", t[1], 5, t[1]))
        e(valu("v_and_b32", t[2], 7, lane)); e(valu("v_lshlrev_b32", t[2], 4, t[2])); e(valu("v_xor_b32", t[2], t[2], t[1]))
        e(valu("v_add_u32", t[3], sT1, t[0]))
        if typ == "A":
            e(valu("v_mul_u32_u24", t[4], 3072, t[3])); e(valu("v_add_u32", vH, t[4], t[2]))
            e(salu("s_lshl_b32", sT0, sT0, 1))
            e(valu("v_lshrrev_b32", t[4], 2, lane)); e(valu("v_add_u32", t[4], sT0, t[4])); e(valu("v_mul_u32_u24", t[4], 3584, t[4]))
            e(valu("v_and_b32", t[5], 3, lane)); e(valu("v_lshlrev_b32", t[5], 4, t[5]))
            e(salu("s_lshl_b32", sT1, sKH, 5)); e(valu("v_xor_b32", t[5], sT1, t[5]))
            e(valu("v_add_u32", vG, t[4], t[5]))
            e(salu("s_lshl_b32", sS2, sT2, 5))
            e(smov(SWH[2], 512 * 3584)); e(smov(SWH[3], 0x20000))
        else:
            e(valu("v_mul_u32_u24", t[4], 3584, t[3])); e(valu("v_add_u32", vG, t[4], t[2]))
            e(valu("v_xor_b32", t[5], 32, t[2])); e(valu("v_add_u32", vU, t[4], t[5]))
            e(salu("s_mul_i32", sT0, sT0, 3584, scc_w=False))
            e(salu("s_lshl_b32", sS2, sT2, 5)); e(salu("s_add_u32", sS2, sS2, sT0))
        e(salu("s_mul_i32", sT0, sROT, 128 * 3584, scc_w=False)); e(salu("s_add_u32", sS2, sS2, sT0))
        e(valu("v_and_b32", vP4, 3, lane)); e(valu("v_lshlrev_b32", vP4, 2, vP4))
        e(valu("v_lshl_add_u32", vB2, t[0], 10, t[2]))
        if C.warm_all:
            ww = self.ww
            e(valu("v_min_u32", ww[0], 13, lane)); e(valu("v_lshlrev_b32", ww[0], 7, ww[0])); e(valu("v_lshlrev_b32", ww[1], 5, vP4))
            e(valu("v_and_b32", ww[2], 15 if typ == "A" else 7, lane)); e(valu("v_mul_u32_u24", ww[2], 3584, ww[2]))
        e(valu("v_lshlrev_b32", t[0], 7, r2))
        e(valu("v_and_b32", t[1], 3, lane)); e(valu("v_lshlrev_b32", t[1], 3, t[1])); e(valu("v_add_u32", t[0], t[0], t[1]))
        e(valu("v_and_b32", t[2], 2, r2))
        e(valu("v_or_b32", t[3], t[2], ub)); e(valu("v_lshlrev_b32", t[3], 5, t[3]))
        e(valu("v_lshlrev_b32", t[4], 16, hh)); e(valu("v_add_u32", t[4], t[4], t[0]))
        if typ == "A":
            for j in range(2):
                e(valu("v_xor_b32", t[6], 64 * j, t[3])); e(valu("v_add_u32", vTR[4 + j], t[6], t[4]))
            e(valu("v_lshlrev_b32", t[6], 3, hh)); e(valu("v_add_u32", t[6], t[6], r2)); e(valu("v_lshlrev_b32", t[6], 6, t[6]))
            e(valu("v_lshlrev_b32", t[7], 16, ub)); e(valu("v_add3_u32", t[6], t[6], t[7], t[1]))
            e(valu("v_lshlrev_b32", t[7], 5, ub)); e(valu("v_add_u32", vTR[0], t[6], t[7]))
            e(valu("v_xor_b32", t[7], 32, t[7])); e(valu("v_add_u32", vTR[1], t[6], t[7]))
        else:
            e(valu("v_lshlrev_b32", t[5], 10, ub)); e(valu("v_add_u32", t[5], t[5], t[4]))
            for tt in range(4):
                e(valu("v_xor_b32", t[6], 32 * tt, t[3])); e(valu("v_add_u32", vTR[tt], t[6], t[5]))
        def park(reg, src): e(accw(a(aPARK + [str(x) for x in PARKED].index(str(reg))), src))
        e(valu("v_lshlrev_b32", t[4], 9, hh)); e(valu("v_add_u32", t[4], t[4], t[0]))
        e(salu("s_lshl_b32", sT0, sKH, 6)); e(valu("v_xor_b32", t[6], sT0, t[3]))
        e(valu("v_add_u32", t[5], t[6], t[4])); e(valu("v_xor_b32", t[6], 64, t[5]))
        e(salu("s_lshl_b32", sT0, sKH, 16)); e(salu("s_lshl_b32", sT1, sKH, 11)); e(salu("s_add_u32", sT1, sT1, TB))
        for j in range(2):
            e(valu("v_add_u32", t[7], sT0, t[5 + j])); park(vTR2[j], t[7])
            e(valu("v_add_u32", t[7], sT1, t[5 + j])); park(vTR2T[j], t[7])
        if typ == "A":
            e(valu("v_lshlrev_b32", t[4], 16, ub)); e(valu("v_lshlrev_b32", t[5], 15, hh)); e(valu("v_add3_u32", t[4], t[4], t[5], t[0]))
            e(valu("v_xor_b32", t[6], sW, t[2])); e(valu("v_lshlrev_b32", t[6], 5, t[6])); e(valu("v_add_u32", vW16, t[4], t[6]))
            e(salu("s_mul_i32", sT0, sW, 6144, scc_w=False)); e(salu("s_add_u32", sT0, sT0, TB)); e(valu("v_add_u32", vEX, sT0, vL16))
            e(valu("v_lshlrev_b32", t[4], 5, ub)); e(valu("v_add_u32", t[4], t[4], li)); e(valu("v_lshlrev_b32", t[4], 4, t[4]))
            e(valu("v_lshlrev_b32", t[5], 3, hh)); e(smov(sT0, TB)); e(valu("v_add3_u32", vHW, t[4], t[5], sT0))
            q = t[0]; bb = v(t[2].lo, 2)
            e(valu("v_and_b32", q, 31, lane)); e(valu("v_add_u32", t[1], 18, q))
            e(valu("v_mov_b32", t[4], 0x5555)); e(valu("v_mov_b32", t[5], 0))
            e(valu("v_lshlrev_b64", bb, t[1], v(t[4].lo, 2)))
            e(salu("s_or_b32", sT1, sRB, sW)); e(salu("s_cselect_b32", sT1, -1, 0, scc_w=False, scc_r=True))
            e(valu("v_and_b32", bb[0], sT1, bb[0]))
            e(valu("v_lshlrev_b32", t[1], 2, hh))
            e(valu("v_lshrrev_b32", bb[0], t[1], bb[0])); e(valu("v_lshrrev_b32", bb[1], t[1], bb[1]))
            e(valu("v_not_b32", bb[0], bb[0])); e(valu("v_not_b32", bb[1], bb[1]))
            e(accw(a(196), bb[0])); e(accw(a(197), bb[1]))
            e(valu("v_and_b32", t[2], 1, q)); e(valu("v_lshlrev_b32", t[2], 4, t[2]))
            e(valu("v_mov_b32", t[3], 0xffff)); e(valu("v_lshlrev_b32", vPM, t[2], t[3]))
            e(valu("v_bfe_i32", t[2], q, 4, 1)); e(valu("v_and_b32", vMHC, t[2], vPM)); e(valu("v_xor_b32", vMHP, vMHC, vPM))
        return o

    def scalars(self, typ):
        o = []; e = o.append
        e(salu("s_and_b32", sRT, sJ, 3)); e(salu("s_lshr_b32", sCT, sJ, 2)); e(salu("s_lshl_b32", sCT, sCT, 7))
        e(salu("s_lshl_b32", sT0, sXCD, 3)); e(salu("s_lshl_b32", sT1, sRT, 1)); e(salu("s_add_u32", sT0, sT0, sT1))
        e(salu("s_and_b32", sT1, sW, 1)); e(salu("s_add_u32", sT0, sT0, sT1))
        e(salu("s_lshl_b32", sFLR, sT0, 1)); e(salu("s_add_u32", sFLR, sFLR, sKH))
        e(salu("s_lshl_b32", sFLR, sFLR, 9)); e(salu("s_add_u32", sFLR, sFLR, WS_FLAG))
        e(salu("s_mul_i32", sTAG, sT0, 144 * 1024, scc_w=False))
        e(salu("s_lshl_b32", sOut, sT0, 15)); e(salu("s_and_b32", sOut, sOut, 0xffff7fff)); e(salu("s_add_u32", sOut, sOut, sCT))
        e(salu("s_lshr_b32", sT0, sM0B, 1)); e(salu("s_add_u32", sOut, sOut, sT0))
        e(salu("s_lshl_b32", sT1, sT1, 13)); e(salu("s_add_u32", sT1, sT1, sCT))
        for c_ in range(3):
            e(salu("s_mul_i32", sT0, sKH, SHIFT[c_] * 1024, scc_w=False)); e(salu("s_add_u32", sA2c[c_], sTAG, sT0))
            e(salu("s_lshl_b32", sT0, sT0, 4)); e(salu("s_add_u32", sB2c[c_], sT0, sT1))
        e(salu("s_lshl_b32", sM0T, sW, 10)); e(salu("s_add_u32", sM0T, sM0T, TB))
        e(salu("s_lshl_b32", sT0, sRB, 2)); e(salu("s_add_u32", sT0, sT0, sW))
        e(salu("s_mul_i32", sT1, sT0, 144, scc_w=False))
        e(salu("s_add_u32", sSt2, sT1, sT2)); e(salu("s_lshl_b32", sSt2, sSt2, 10))
        if typ == "A":
            e(salu("s_lshl_b32", sStF, sT2, 10)); e(salu("s_add_u32", sStF, sStF, sSt2)); e(salu("s_add_u32", sStF, sStF, 112 * 1024))
        else:
            e(salu("s_sub_u32", sStF, sSt2, 8192)); e(salu("s_sub_u32", sStH, sSt2, 4096))
        e(salu("s_lshl_b32", sT0, sT0, 1)); e(salu("s_lshr_b32", sT1, sIDX, 2)); e(salu("s_add_u32", sT0, sT0, sT1))
        e(salu("s_lshl_b32", sT0, sT0, 9))
        e(salu("s_and_b32", sT1, sIDX, 3)); e(salu("s_lshl_b32", sT1, sT1, 2))
        e(salu("s_add_u32", sT0, sT0, sT1)); e(salu("s_add_u32", sFLW, sT0, WS_FLAG))
        e(smov(SOUT[2], 0x200000)); e(smov(SOUT[3], 0x20000))
        return o

    def warm_ops(self, isA):
        ww = self.ww; nr = 16 if isA else 8
        o = [salu("s_and_b32", sT5, sW, 1 if isA else 3), salu("s_mul_i32", sT5, sT5, nr, scc_w=False),
             salu("s_lshl_b32", sXk, sRB, 5), salu("s_add_u32", sT5, sT5, sXk), salu("s_mul_i32", sT5, sT5, 3584, scc_w=False),
             salu("s_lshl_b32", sXk, sT2, 5), salu("s_add_u32", sT5, sT5, sXk)]
        o += [self.touch(ww[2], SWH, sT5)] if isA else [self.touch(ww[2], SWG_, sT5), self.touch(ww[2], SWU, sT5, 1024)]
        o += [salu("s_lshl_b32", sXk, sWG, 2), salu("s_add_u32", sXk, sXk, sW), salu("s_mul_i32", sT5, sXk, 14 * 128, scc_w=False),
              self.touch(ww[0], SWD, sT5), salu("s_lshl_b32", sT5, sXk, 9), self.touch(ww[1], SWO, sT5),
              self.touch(ww[1], SWS, sFLR, fl="sc1")]
        return o

    def b2_soff(self, n, dst):
        ks, cls, st = step_info(n)
        return salu("s_add_u32", dst, sB2c[cls], (ks - 112 if cls == 2 else ks) * 16384)

    def code_touch(self):
        E = self.E
        if not C.touch_code: return
        t = v(201)
        E.line(f"s_getpc_b64 {sPC}")
        pcl = self.lab("pc"); E.label(pcl)
        E.emit(salu("s_and_b32", sT0, sJ, 1)); E.emit(salu("s_lshl_b32", sT0, sT0, 15))
        E.emit(valu("v_lshlrev_b32", t, 7, v(0))); E.emit(valu("v_add_u32", t, sT0, t))
        E.line(f"s_mov_b32 {sT0}, L_code_end-{pcl}-4")
        E.emit(valu("v_min_u32", t, sT0, t))
        E.emit(I(f"global_load_dword {aDUM0}, {t}, {sPC}", "vml", t.ids(), ()))

    def finish_stats(self, sm, sq, rinv, nb, t0, t1):
        e = self.E.emit
        e(valu("v_mul_f32", sm, sC512, sm))
        e(valu("v_mul_f32", t0, sm, sm))
        e(I(f"v_fma_f32 {sq}, {sq}, {sC512}, -{t0}", "valu", sq.ids() | t0.ids() | sC512.ids(), sq.ids()))
        e(valu("v_max_f32", sq, 0, sq))
        e(valu("v_cvt_pk_bf16_f32", t0, sm, sq))
        e(valu("v_and_b32", t1, sHI, t0))
        e(valu("v_add_f32", t1, 0x3727c5ac, t1))
        e(valu("v_cvt_pk_bf16_f32", t1, t1, t1)); e(valu("v_and_b32", t1, sHI, t1))
        e(valu("v_sqrt_f32", t1, t1))
        e(valu("v_cvt_pk_bf16_f32", t1, t1, t1)); e(valu("v_and_b32", t1, sHI, t1))
        e(valu("v_rcp_f32", rinv, t1))
        e(valu("v_lshlrev_b32", t0, 16, t0))
        e(I(f"v_mul_f32 {nb}, -{t0}, {rinv}", "valu", t0.ids() | rinv.ids(), nb.ids()))

    def norm_ops(self, reg, rinv, nb, k0=0):
        ops = []
        for d in range(4):
            lo = NT[(2 * (k0 + d)) % 8]; hi = NT[(2 * (k0 + d) + 1) % 8]; x = reg[d]
            ops += [valu("v_lshlrev_b32", lo, 16, x), valu("v_and_b32", hi, sHI, x),
                    valu("v_fma_f32", lo, lo, rinv, nb), valu("v_fma_f32", hi, hi, rinv, nb),
                    valu("v_cvt_pk_bf16_f32", x, lo, hi)]
        return ops

    def dots(self, reg, acc):
        ops = []
        for d in range(reg.n):
            ops.append(valu("v_dot2_f32_bf16", acc[d & 1], reg[d], sONE, acc[d & 1]))
            ops.append(valu("v_dot2_f32_bf16", acc[2 + (d & 1)], reg[d], reg[d], acc[2 + (d & 1)]))
        return ops

    def wrap(self, reg, q, span):
        return glue([scmp("s_cmp_eq_u32", sROT, 4 - q), salu("s_cselect_b32", sS2b, span, 0, scc_w=False, scc_r=True),
                     salu("s_sub_u32", reg, reg, sS2b)])

    def chunks(self, obj):
        k, j = obj
        if self.typ == "A":
            if k == "s1": return list(range(3 * (j % 7), 3 * (j % 7) + 3))
            return [6 + 2 * j, 7 + 2 * j]
        jj = j if k == "s1" else 16 + j
        return list(range(4 * (jj % 6), 4 * (jj % 6) + 4))

    def slab_dma(self, obj):
        L = self.L; k, j = obj; ch = self.chunks(obj); fl = C.w_fl
        def f(E): L.alloc(obj, ch)
        ops = [f, salu("s_add_u32", "m0", sM0B, 1024 * ch[0])]
        if k == "s1":
            st = 3072 if self.typ == "A" else 3584
            if self.typ == "A": ops += [dma(vH, SQKV, sS1, 1024 * u, obj, fl) for u in range(3)]
            else: ops += [dma(vG, SWG_, sS1, 0, obj, fl), dma(vU, SWU, sS1, 1024, obj, fl), dma(vG, SWG2, sS1, 2048, obj, fl), dma(vU, SWU2, sS1, 3072, obj, fl)]
            if j < 15: ops.append(salu("s_add_u32", sS1, sS1, 32 * st))
            if j % 4 == 3 and j < 15 and C.rot: ops.append(self.wrap(sS1, (j + 1) // 4, 512 * st))
        else:
            if self.typ == "A":
                ops += [salu("s_add_u32", sS2b, sS2, 16 * 3584 - 1024), dma(vG, SWH, sS2, 0, obj, fl), dma(vG, SWH, sS2b, 1024, obj, fl)]
            else:
                ops += [salu("s_add_u32", sS2b, sS2, 16 * 3584 - 2048), dma(vG, SWG_, sS2, 0, obj, fl), dma(vU, SWU, sS2, 1024, obj, fl),
                        dma(vG, SWG_, sS2b, 2048, obj, fl), dma(vU, SWU, sS2b, 3072, obj, fl)]
            if j < 7: ops.append(salu("s_add_u32", sS2, sS2, 64 * 3584))
            if j % 2 == 1 and j < 7 and C.rot: ops.append(self.wrap(sS2, (j + 1) // 2, 512 * 3584))
        return ops

    def b2_chunk(self, n):
        if self.typ == "A": tab = list(range(22, 32)) + list(range(0, 22)) + list(range(32, 40))
        else: tab = list(range(24, 32)) + list(range(0, 24)) + list(range(32, 40))
        return tab[n % 40]

    def b2_dma(self, n):
        L = self.L
        ks, cls, _ = step_info(n)
        ch = self.b2_chunk(n)
        def f(E): L.alloc(("b2", n), [ch])
        return [f, salu("s_add_u32", "m0", sM0B, 1024 * ch) if ch < 32 else salu("s_add_u32", "m0", sM0T, 4096 * (ch - 32)),
                self.b2_soff(n, sB2s),
                dma(vB2, SWO if cls == 2 else SWD, sB2s, 0, ("b2", n), C.b2_fl)]

    def bar(self, cover, m_done, lds_all=False, lds_tags=()):
        L = self.L
        def f(E):
            E.wait_tags(lds=list(lds_tags) + list(cover), vm=cover)
            if lds_all: E.wait_all_lds()
            if not (C.dbg_bar and cover and cover[0][0] == "b2"): E.barrier()
            L.visible |= set(cover); L.bar_m = m_done
        return f

    def acc2(self, t): return ACC2(t) if self.typ == "A" else ACC1(t)

    def acc1(self, t): return ACC1(t) if t < 6 else a(112 + 16 * (t - 6), 16)

    def seq(self, typ):
        out = []
        order = [2, 3, 4, 5, 0, 1] if typ == "A" else list(range(8))
        s1 = [(ks, t) for ks in range(28) for t in order] + [(ks, t) for t in order for ks in range(28, 32)]
        for ks, t in s1:
            obj = ("s1", ks // 2); base = (ks & 1) * 32768 + self.chunks(obj)[0] * 1024
            if True:
                if typ == "A":
                    out.append(dict(acc=ACC1(t), x=X(ks), sw=(t >= 4), obj=obj, addr=vTR[4 + (t & 1)],
                                    imm=base + (t >> 1) * 1024, st=512, first=(ks == 0)))
                else:
                    out.append(dict(acc=self.acc1(t), x=X(ks), sw=False, obj=obj, addr=vTR[t & 3], imm=base + (t >> 2) * 2048, st=512, first=(ks == 0)))
        nt = self.nt2
        s2 = [(ks, t) for ks in range(24) for t in range(nt)] + [(ks, t) for t in range(nt) for ks in range(24, 32)]
        for ks, t in s2:
            obj = ("s2", ks // 4); k = ks & 3
            out.append(dict(acc=self.acc2(t), x=X(ks), sw=False, obj=obj, addr=vTR[t],
                            imm=(k >> 1) * 32768 + self.chunks(obj)[0] * 1024 + (k & 1) * (1024 if typ == "A" else 2048),
                            st=256 if typ == "A" else 512, first=(ks == 0)))
        for n in range(72):
            iso = step_info(n)[1] == 2
            for j in ((1, 0) if n in (55, 71) else (0, 1)):
                ch = self.b2_chunk(n)
                out.append(dict(acc=(ACCS if iso else ACCD)[j], x=n, sw=False, obj=("b2", n),
                                addr=vTR2[j] if ch < 32 else vTR2T[j], imm=ch * 1024 if ch < 32 else (ch - 32) * 4096,
                                st=32768 if ch < 32 else 1024, first=(n in (0, 40))))
        for m, o in enumerate(out): self.L.last_use[o["obj"]] = m
        return out

    def wreads(self, m):
        o = self.SEQ[m]; L = self.L
        def f(E): assert o["obj"] in L.visible, ("read of invisible", m, o["obj"])
        return [f, ds_tr(WF(m).sub(0, 2), o["addr"], o["imm"]), ds_tr(WF(m).sub(2, 2), o["addr"], o["imm"] + o["st"])]

    def main(self, m):
        o = self.SEQ[m]
        if isinstance(o["x"], int):
            def mk(peek):
                if peek and o["x"] not in self.a2slot: return None
                return mfma(o["acc"], WF(m), self.a2slot[o["x"]]["r"], 0 if o["first"] else o["acc"])
            mn = dict(pre=[], m=mk, fix=[])
            if m & 1: mn["fix"].append(lambda E: self.pool.give(E, self.a2slot[o["x"]]))
        else:
            A_, B_ = (o["x"], WF(m)) if o["sw"] else (WF(m), o["x"])
            mn = dict(pre=[], m=mfma(o["acc"], A_, B_, 0 if o["first"] else o["acc"]), fix=[])
        if m + C.D < len(self.SEQ): mn["fix"] += self.wreads(m + C.D)
        return mn

    def spin_check_tag(self):
        def f(E):
            ok = self.lab("tagok"); sp = self.lab("tagspin")
            E.emit(rfl(sTAG, vTAG))
            E.emit(scmp("s_cmp_eq_u32", sTAG, 0))
            E.line(f"s_cbranch_scc1 {sp}")
            E.label(ok)
            self.cold += [f"{sp}:", f"    s_mov_b32 {sSPIN}, 0", f"{sp}_l:",
                          f"    buffer_load_dword {vTAG}, off, {SDBG}, 0 sc1", f"    s_add_u32 {sSPIN}, {sSPIN}, 1",
                          "    s_waitcnt vmcnt(0)", f"    v_readfirstlane_b32 {sTAG}, {vTAG}",
                          f"    s_cmp_ge_u32 {sSPIN}, {C.spin_max}", f"    s_cbranch_scc1 {ok}",
                          f"    s_cmp_eq_u32 {sTAG}, 0", f"    s_cbranch_scc1 {sp}_l", f"    s_branch {ok}"]
        return f

    def poll_load(self, stage):
        return vload(vPL[stage], vP4, SWS, sFLR, 128 * stage, fl="sc1")

    def gate(self, stage):
        def f(E):
            ok = self.lab("gateok"); sp = self.lab("gatespin")
            self.stamp(f"g{stage}a")
            E.emit(vcmp("v_cmp_ne_u32", "vcc", sTAG, vPL[stage]))
            E.line(f"s_cbranch_vccnz {sp}")
            E.label(ok)
            self.cold += [f"{sp}:", f"    s_mov_b32 {sSPIN}, 0", f"{sp}_l:",
                          f"    buffer_load_dword {vPL[stage]}, {vP4}, {SWS}, {sFLR} offen offset:{128 * stage} sc1",
                          f"    s_add_u32 {sSPIN}, {sSPIN}, 1", f"    s_cmp_ge_u32 {sSPIN}, {C.spin_max}", f"    s_cbranch_scc1 {ok}",
                          "    s_waitcnt vmcnt(0)", f"    v_cmp_ne_u32 vcc, {sTAG}, {vPL[stage]}", f"    s_cbranch_vccnz {sp}_l", f"    s_branch {ok}"]
            self.stamp(f"g{stage}b")
        return f

    def flag_store(self, stage, tags):
        def f(E):
            self.stamp(f"f{stage}a")
            E.wait_tags(vm=tags)
            self.stamp(f"f{stage}b")
            E.emit(vstore(vTAG, None, SWS, sFLW, 128 * stage, fl="sc1"))
        return f

    def a2_load(self, n):
        ks, cls, _ = step_info(n)
        o = []
        if self.a2base is None or self.a2base[0] != cls or not (0 <= ks - self.a2base[1] < 4):
            self.a2base = (cls, ks)
            o.append(salu("s_add_u32", sA2s, sA2c[cls], ks * 1024))
        imm = (ks - self.a2base[1]) * 1024
        kind = "AE" if n < 40 else "A"
        def f(E):
            x = self.a2slot[n] = self.pool.take(E, kind)
            if not (C.dbg_a2 and n >= C.dbg_a2): E.emit(vload(x["r"], vL16, SWS, sA2s, imm, fl=C.a2_fl))
        f.vm = True; f.ready = lambda E: self.pool.find(E, kind) is not None
        return o + [f]

    def raw_load(self, n):
        ks, cls, _ = step_info(n)
        def f(E):
            x = self.rawslot[n] = self.pool.take(E, "R")
            E.emit(vload(x["r"], vB2, SWO if cls == 2 else SWD, sXo, 0, fl=C.b2_fl))
        f.vm = True; f.ready = lambda E: self.pool.find(E, "R") is not None
        return [self.b2_soff(n, sXo), f]

    def h_epilogue(self, T, sbase, imm, tag):
        ops = [valu("v_mul_f32", T[r], T[r], T[r + 8]) for r in range(8)]
        ops += [valu("v_cvt_pk_bf16_f32", T[r], T[2 * r], T[2 * r + 1]) for r in range(4)]
        ops.append(vstore(T.sub(0, 4), vL16, SWS, sbase, imm, tag, C.st_fl))
        return ops

    def body(self, typ):
        E = self.E; e = E.emit
        self.L = L = LDSMap()
        E.m0_owner = None
        self.typ = typ
        isA = typ == "A"
        nt1, nt2 = (6, 2) if isA else (8, 4)
        self.nt2 = nt2
        M2 = self.M2 = 32 * nt1; M3 = self.M3 = M2 + 32 * nt2
        self.SEQ = self.seq(typ)
        self.a2base = None
        self.cold = []
        self.lane = v(200); self.vx = [v(204 + g) for g in range(4)]; self.hs = [v(196), v(197)]
        self.xa = xa = [v(216 + q) for q in range(4)]; self.acc = acc = [v(220 + q) for q in range(4)]
        self.ha = ha = [v(144 + i) for i in range(5)]; self.hacc = hacc = [v(149 + i) for i in range(4)]
        self.ww = [vU, vTR[2], vTR[3]] if isA else [vH, vW16, vHX]
        self.stamp("t0")
        if C.stamps: E.line("s_memrealtime s[0:1]")
        first = self.setup_first(typ)
        rest = self.consts(typ)
        E.emits(first)
        k = max(0, C.npre - len(first))
        while SCC in rest[k].r: k += 1
        E.emits(rest[:k]); rest = rest[k:]
        E.line("s_waitcnt lgkmcnt(0)")
        self.stamp("karg")
        def inplace(d, size, other, shift=0):
            o = []
            if other is not None and shift: o += [salu("s_sub_u32", other[0], d[2], shift), salu("s_subb_u32", other[1], d[3], 0, scc_r=True)]
            elif other is not None: o += [smov(other[0], d[2]), smov(other[1], d[3])]
            return o + [smov(d[2], size), smov(d[3], 0x20000)]
        E.emits(inplace(SX, 0x200000, SQKV if isA else None))
        if isA: E.emits(inplace(SDBG, 256, SWS))
        def xd(sl):
            o = [salu("s_add_u32", "m0", sM0B, 4096 * sl), salu("s_add_u32", sA2s, sXo, sXk)]
            o += [dma(self.vx[g], SX, sA2s, 1024 * g, tag=("x", sl), fl=C.x_fl) for g in range(4)]
            if sl < 7: o += [salu("s_add_u32", sXk, sXk, 128), salu("s_and_b32", sXk, sXk, 1023)]
            return o
        if isA:
            for ee in range(2):
                for g in range(2):
                    e(salu("s_add_u32", "m0", sS2b, TB + 2048 * ee + 1024 * g))
                    e(dma(self.hs[g], SX, sHo, 0, tag="halo", fl=C.x_fl))
                if ee == 0: e(salu("s_add_u32", sHo, sHo, 128))
            lskip = self.lab("noep")
            e(salu("s_or_b32", sSPIN, sWG, sW))
            E.line(f"s_cbranch_scc1 {lskip}")
            E.line(f"s_mov_b32 {sSPIN}, {WS_EPOCH}")
            E.line(f"buffer_load_dword {vPOLL}, off, {SWS}, {sSPIN} sc1")
            E.label(lskip)
        E.emits(xd(0)); E.emits(xd(1))
        nx = 2
        if isA:
            if C.touch_w0: e(self.touch(vTW, SQKV, sT5))
            e(scmp("s_cmp_ge_u32", sW, 2))
            e(salu("s_cselect_b32", SWH[0], SWG_[2], SWG_[0], scc_w=False, scc_r=True))
            e(salu("s_cselect_b32", SWH[1], SWG_[3], SWG_[1], scc_w=False, scc_r=True))
        else:
            E.emits([salu("s_sub_u32", SWU2[0], SWG_[2], 2944), salu("s_subb_u32", SWU2[1], SWG_[3], 0, scc_r=True),
                     salu("s_sub_u32", SWG2[0], SWG_[0], 1920), salu("s_subb_u32", SWG2[1], SWG_[1], 0, scc_r=True)])
            E.emits(inplace(SWG_, 512 * 3584, SWU, 1024))
            if C.touch_w0: e(self.touch(vTW, SWG_, sT5)); e(self.touch(vTW, SWU, sT5, 1024))
            if C.x2early: E.emits(xd(2)); nx = 3
        self.stamp("issued")
        late_srd = ([] if isA else inplace(SDBG, 256, SWS)) + inplace(SWD, 1792 * 1024, SOUT) + inplace(SWO, 512 * 1024, None)
        E.emits(rest)
        if C.stamps: E.line("v_accvgpr_write_b32 a198, s0")
        self.stamp("rest")
        if C.pads:
            E.line("s_mov_b64 exec, 0")
            for w_ in (1, 2, 3):
                E.line(f"s_cmp_eq_u32 {sW}, {w_}"); E.line(f"s_cbranch_scc1 L_pad{typ}_{w_}")
            E.line(f"s_branch L_pad{typ}_0")
            E.label(f"L_back{typ}")
            E.line("s_mov_b64 exec, -1")
            E.out.append(f";PADS_FROM {typ}")
        self.stamp("pads")
        if nx == 2 and not isA: E.emits(xd(2)); nx = 3
        if isA:
            hx = v(128, 16); pr = v(154, 2); tp = v(156, 2); pp = v(158, 8)
            E.wait_tags(vm=["halo"])
            self.epoch_publish()
            for ee in range(2):
                for b in range(2): e(ds_rd(hx.sub(4 * (2 * ee + b), 4), ha[b], 2048 * ee))
            E.emits(xd(2)); nx = 3
            E.emits(self.dots(hx, hacc))
            e(valu("v_add_f32", pr[0], hacc[0], hacc[1])); e(valu("v_add_f32", pr[1], hacc[2], hacc[3]))
            for sw in (swap16, swap32):
                e(valu("v_mov_b32", tp[0], pr[0])); e(valu("v_mov_b32", tp[1], pr[1]))
                e(sw(pr[0], tp[0])); e(sw(pr[1], tp[1]))
                e(valu("v_add_f32", pr[0], pr[0], tp[0])); e(valu("v_add_f32", pr[1], pr[1], tp[1]))
            e(ds_wr(ha[3], pr, 0, tag="hp"))
        for sl in range(9):
            if sl < 8:
                E.wait_tags(vm=[("x", sl)])
                self.stamp(f"x{sl}")
                for q in range(4): e(ds_rd(X(4 * sl + q), xa[q], 4096 * sl))
                if nx < 8: E.emits(xd(nx)); nx += 1
            if isA and sl == 0:
                E.wait_tags(lds=["hp"]); E.barrier()
                for w_ in range(4): e(ds_rd(pp.sub(2 * w_, 2), ha[2], 4096 * w_))
            if isA and sl == 1:
                e(valu("v_add_f32", pr[0], pp[0], pp[2])); e(valu("v_add_f32", pr[1], pp[1], pp[3]))
                e(valu("v_add_f32", tp[0], pp[4], pp[6])); e(valu("v_add_f32", tp[1], pp[5], pp[7]))
                e(valu("v_add_f32", pr[0], pr[0], tp[0])); e(valu("v_add_f32", pr[1], pr[1], tp[1]))
                self.finish_stats(pr[0], pr[1], vRINV, vNB, tp[0], tp[1])
            if isA and 1 <= sl <= 4:
                E.emits(self.norm_ops(hx.sub(4 * (sl - 1), 4), vRINV, vNB))
                e(ds_wr(ha[4], hx.sub(4 * (sl - 1), 4), 1024 * (sl - 1), tag="hxw"))
            if sl > 0:
                E.emits(self.dots(v(16 * (sl - 1), 16), acc))
                L.xread.add(sl - 1)
                for j in {C.w0at: [0], C.w0at + 1: [1], 6: [2], 7: [3] if isA else []}.get(sl, []):
                    for it in self.slab_dma(("s1", j)): run_item(E, it)
        self.stamp("xdone")
        e(valu("v_add_f32", acc[0], acc[0], acc[1])); e(valu("v_add_f32", acc[2], acc[2], acc[3]))
        e(valu("v_mov_b32", acc[1], acc[0])); e(valu("v_mov_b32", acc[3], acc[2]))
        e(swap32(acc[0], acc[1])); e(swap32(acc[2], acc[3]))
        e(valu("v_add_f32", acc[0], acc[0], acc[1])); e(valu("v_add_f32", acc[2], acc[2], acc[3]))
        self.bar([("s1", 0), ("s1", 1)], -1, lds_tags=["hxw"])(E)
        self.stamp("bx")
        for m in range(C.D):
            for it in self.wreads(m): run_item(E, it)
        self.finish_stats(acc[0], acc[2], vRINV, vNB, acc[1], acc[3])
        E.emits(self.norm_ops(X(0), vRINV, vNB))
        self.stamp("s1")

        mains = [self.main(m) for m in range(len(self.SEQ))]
        D = C.D
        qN = Q("norm"); qD = Q("dma"); qH = Q("halo"); qB = Q("b2"); qW = Q("raw", hard=False); qU = Q("dump", vm_age=0)
        qE = Q("epi"); qE2 = Q("epi2", hard=False, top=True); qR = Q("restore"); qFl = Q("flag", top=True)
        self.pool = pool = Pool(); self.a2slot = {}; self.rawslot = {}; self.mark = {}
        started = lambda q: (len(q.items) > 0 and q.empty())
        pool.add(a(200, 56), "AR")
        pool.add(a(192, 4), "A", lambda: started(qR))
        if isA:
            pool.add(a(80, 32), "AR")
            pool.add(a(112, 24), "AR")
            pool.add(a(160, 32), "A", lambda: self.mark.get("masks"))
            pool.add(a(48, 32), "A", lambda: started(qE2))
            pool.add(a(136, 24), "A", lambda: started(qE)); pool.add(v(128, 96), "A", lambda: started(qE))
            rawl = list(range(22, 32)) + list(range(40, 72))
        else:
            pool.add(a(144, 16), "AR"); pool.add(a(160, 32), "A")
            pool.add(a(48, 64), "AR")
            pool.add(a(112, 32), "AR", lambda: started(qE)); pool.add(v(192, 32), "AR", lambda: started(qE))
            pool.add(v(128, 64), "A", lambda: started(qE2))
            for k in list(range(8)) + [12, 13, 14, 15]: pool.add(X(k), "E", lambda k=k: E.gap > M2 + 4 * k + 3)
            rawl = list(range(20, 32)) + list(range(40, 72))
        rawit = {}
        if C.raw:
            for n in rawl[:C.nraw]:
                rawit[n] = self.raw_load(n)
                qW.adds(rawit[n], earliest=C.raw0, deadline=M3 + 16 * (n // 8) - C.D - 40)
        def place(n):
            def f(E):
                need = M3 + 16 * (n // 8) - C.D
                if n in self.rawslot:
                    ch = self.b2_chunk(n); x = self.rawslot[n]
                    qU.add(lambda E: L.alloc(("b2", n), [ch]), deadline=need - 3)
                    if not C.dbg_dump: qU.add(ds_wr(vWQ, x["r"], 1024 * ch, tag=("b2", n)), deadline=need - 3)
                    qU.add(lambda E: pool.give(E, x), deadline=need - 3)
                else:
                    for it in rawit.get(n, []): it.dead = True
                    b2_add(n, E.gap)
            return f
        def b2_add(n, gap):
            qB.adds(self.b2_dma(n), earliest=gap, deadline=max(M3 + 16 * (n // 8) - D - C.b2lead, gap + 2))
        def barrier(gap, cover, name, **kw):
            mains[gap]["npre"] = 2
            mains[gap]["pre"] += [lambda E: self.stamp(name + "a"), self.bar(cover, gap - 1, **kw), lambda E: self.stamp(name)]
        for ks in range(1, 32):
            qN.adds(self.norm_ops(X(ks), vRINV, vNB, ks * 4), earliest=max(0, nt1 * (ks - C.nahead) - 1),
                    deadline=nt1 * ks if ks < 28 else nt1 * 28 + ks - 28)
        for j in (range(4, 7) if isA else range(3, 5)): qD.adds(self.slab_dma(("s1", j)), earliest=0, deadline=17 if isA else 20)
        qK = Q("scal")
        qK.adds(late_srd + self.scalars(typ), earliest=0, deadline=(24 if isA else 32) - D + 14)
        L.last_use[("T",)] = M2 + 40 if isA else -1
        tagload = vload(vTAG, None, SDBG, 0, fl="sc1")
        def slab(jj): return ("s1", jj) if jj < 16 else ("s2", jj - 16)
        if isA:
            b2q = list(range(10))
            for g in range(1, 9):
                gap = 24 * g - D
                barrier(gap, [("s1", 2 * g), ("s1", 2 * g + 1)] if g < 8 else [("s2", j) for j in range(4)], f"b{g}")
                its = []
                for j in (2 * g + 4, 2 * g + 5):
                    if 7 <= j < 16: its += self.slab_dma(("s1", j))
                for j in {6: [0, 1, 2], 7: [3, 4, 5], 8: [6, 7]}.get(g, []): its += self.slab_dma(("s2", j))
                if g == 1 and C.warm_all: qD.adds(its, earliest=gap, deadline=gap + 16); its = []; qK.adds(self.warm_ops(isA), earliest=gap + 12, deadline=gap + 30)
                if g == 6: its.append(tagload)
                for _ in range({4: 3, 5: 3, 6: 2, 7: 2}.get(g, 0)): b2_add(b2q.pop(0), gap + 6)
                qD.adds(its, earliest=gap, deadline=gap + (14 if g == 7 else 23))
            for j in range(16):
                g0 = max(0, 12 * j - D + 1)
                b = j & 1; ch = self.chunks(("s1", j))[0] * 1024
                its = [ds_rd(aXH[b], vHX, 1024 * j)]
                for u in range(2):
                    its += [ds_tr(aW16[b][u].sub(0, 2), vW16, ch + 1024 * (1 + u)), ds_tr(aW16[b][u].sub(2, 2), vW16, ch + 1024 * (1 + u) + 512)]
                qH.adds(its, earliest=g0, deadline=12 * j + 4)
                qH.add(mfma(aHACC[0], aW16[b][0], aXH[b], 0 if j == 0 else aHACC[0], "16x16x32"), earliest=g0, deadline=12 * j + 8)
                qH.add(mfma(aHACC[1], aXH[b], aW16[b][1], 0 if j == 0 else aHACC[1], "16x16x32"), earliest=12 * j + 7, deadline=12 * j + 10)
            gap = M2 + 32 - D
            barrier(gap, [("s2", j) for j in range(4, 8)], "mid", lds_tags=["exw"])
            for n in range(10, 22): b2_add(n, gap)
            first_use = {0: list(range(22, 28)) + list(range(32, 40)), 1: list(range(28, 32))}
        else:
            b2q = list(range(8)) + list(range(32, 40)) + list(range(8, 20))
            for g in range(1, 12):
                gap = 32 * g - D
                barrier(gap, [slab(2 * g), slab(2 * g + 1)], f"b{g}")
                its = []
                for jj in {8: (19,), 9: (20, 21, 22)}.get(g, (2 * g + 3, 2 * g + 4)):
                    if jj < 24: its += self.slab_dma(slab(jj))
                if g == 1 and C.warm_all: qD.adds(its, earliest=gap, deadline=gap + 16); its = []; qK.adds(self.warm_ops(isA), earliest=gap + 12, deadline=gap + 30)
                if g == 6: its.append(tagload)
                for _ in range({3: 4, 4: 4, 5: 4, 6: 4, 10: 4, 11: 8}.get(g, 0)): b2_add(b2q.pop(0), gap + (10 if g < 10 else 0))
                qD.adds(its, earliest=gap, deadline=gap + (18 if g not in (1, 9) else 28))
            first_use = {0: list(range(20, 24)), 1: list(range(24, 32))}
        assert not b2q
        def xfree(reg): return M2 + nt2 * ((reg.lo + reg.n - 1) // 4) + nt2 - 1
        qFl.add(self.spin_check_tag(), earliest=M2 - 8, deadline=M2 - 4)
        def after(q, stage, tags):
            def arm(E):
                f = self.flag_store(stage, tags); p0 = E.pos; g0_ = E.gap
                fd = C.flagd if stage == 0 else C.flagl
                f.ready = lambda E: ((E.pos - p0) * 4 + (E.gap - g0_) * 8 >= fd or (E.gap - g0_) * 33 >= fd
                                     or not any(x[2] in tags for x in E.vq))
                qFl.add(f, earliest=E.gap)
            q.add(arm)
        if not isA:
            for t in range(8):
                T = ACC1(t if t < 6 else t - 2)
                its = [accr(T[r], self.acc1(t)[r]) for r in range(16)] if t >= 6 else []
                qE.adds(its + self.h_epilogue(T, sStF if t < 4 else sStH, 1024 * (t & 3), "h1"), earliest=nt1 * 28 + 4 * t + 3,
                        deadline=M2 - 1 if t < 4 else nt1 * 28 + 4 * t + 8, hard=(t < 4))
            after(qE, 0, ["h1"])
        else:
            self.attention(qE, xfree)
            n0 = self.exw_check[1]; nn = len(qE.items)
            for k in range(n0, nn):
                it, ear, dl, hd = qE.items[k]
                qE.items[k] = (it, ear, int(M2 + 20 + (M3 + C.att_end - M2 - 20) * (k - n0) / (nn - n0)), False)
            after(qE, 3, ["o"])
        schedule(E, mains[:M2], [qN, qK, qD, qH, qB, qW, qFl, qE], lambda g: (C.cap1A if isA else C.cap1B) if g < nt1 * 28 else C.cap1t,
                 0, flush=False, vm_gap=2)
        assert qN.empty() and qH.empty()
        self.stamp("s2")

        qL = Q("a2"); qF = Q("fin", vm_age=60); qP = Q("poll", top=True)
        g0 = M3 + (C.gate0A if isA else C.gate0B)
        for n_, dst in enumerate(PARKED):
            qR.add(accr(dst, a(aPARK + n_)), earliest=xfree(dst), deadline=min(g0, M3 - D) - 2)
        qR.add(valu("v_add_u32", vWQ, sM0B, vL16), earliest=xfree(vWQ), deadline=min(g0, M3 - D) - 2)
        tail = M2 + 24 * nt2
        for t in range(nt2):
            its = ([accr(E2T[r], ACC2(t)[r]) for r in range(16)] if isA else []) + self.h_epilogue(E2T if isA else ACC1(t), sSt2, 1024 * t, "h2")
            qE2.adds(its, earliest=tail + 8 * t + 7, deadline=tail + 8 * t + 16)
        after(qE2, 1 if isA else 2, ["h2"])
        mains[M3]["pre"].append(lambda E: self.stamp("p2"))
        for n_ in range(72): mains[M3 + 2 * n_]["fix"].insert(0, lambda E, n_=n_: self.stamp(f"n{n_}"))
        gates = {0: g0, 32: M3 + 2 * (32 - C.la1), 40: M3 + 2 * (40 - C.la2), 56: M3 + 2 * (56 - C.la3)}
        def chk_free(q):
            def f(E): assert q.empty(), ("A2 slot still in use", q.name, E.gap)
            f.ready = lambda E: q.empty()
            return f
        cur = 0
        for n in range(72):
            if n in gates:
                cur = gates[n]; st = step_info(n)[2]; n0 = n
                qP.add(self.poll_load(st), earliest=cur - C.polld, deadline=cur - C.polld + 2)
                qL.add(self.gate(st), earliest=cur, deadline=cur + 1)
            its = self.a2_load(n)
            qL.adds(its, earliest=cur, deadline=max(M3 + 2 * n - C.a2lead, cur + 2 + (n - n0)), hard=False)
            qL.add(lambda E: None, earliest=cur, deadline=M3 + 2 * n - 6)
        b2q = list(range(40, 72))
        for c in range(9):
            gap = M3 + 16 * c - D
            barrier(gap, [("b2", n) for n in range(8 * c, 8 * c + 8)] + (["xt"] if c == 7 else []), f"c{c}",
                    lds_tags=["sw", "xr"] if c == 8 else ())
            for n in first_use.get(c, []): mains[gap]["pre"].append(place(n))
            while b2q and L.last_use[("b2", b2q[0] - 40)] <= gap - 1: mains[gap]["pre"].append(place(b2q.pop(0)))
        assert not b2q
        RD = v(0, 16); SF = v(16, 16); XF = v(48, 16); XR = v(224, 8); tt = v(32, 4)
        vRW = vTR[0]; vRR = vTR[1]; vOW = vTR[2]; vOR = vTR[3]; vOO = vTR[4]; vXD = vTR[5]; vXA = vG
        qF.add(chk_free(qE), earliest=M3 + 40); qF.add(chk_free(qE2), earliest=M3 + 40)
        its = [valu("v_lshrrev_b32", tt[0], 4, vL16), valu("v_and_b32", tt[1], 31, tt[0]),
               valu("v_lshrrev_b32", tt[2], 5, tt[0]), valu("v_lshlrev_b32", tt[2], 3, tt[2]),
               salu("s_lshr_b32", sT0, sM0B, 3), salu("s_add_u32", sT0, sT0, TB), valu("v_add_u32", vRW, sT0, vL16),
               valu("v_xor_b32", vRR, 8192, vRW),
               salu("s_and_b32", sT0, sW, 1), salu("s_lshl_b32", sT1, sT0, 12), salu("s_add_u32", sT1, sT1, TB + 16384),
               valu("v_lshlrev_b32", tt[3], 7, tt[1]), valu("v_add3_u32", vXA, tt[3], tt[2], sT1),
               valu("v_and_b32", tt[3], 7, tt[0]), valu("v_lshlrev_b32", tt[3], 4, tt[3]),
               salu("s_lshl_b32", sT1, sKH, 6), valu("v_xor_b32", tt[3], sT1, tt[3]), valu("v_add_u32", vXA, vXA, tt[3]),
               salu("s_mul_i32", sT0, sT0, 32 * 144, scc_w=False), salu("s_add_u32", sT0, sT0, sT1), salu("s_add_u32", sT0, sT0, TB),
               valu("v_mul_u32_u24", tt[1], 144, tt[1]), valu("v_add3_u32", vOW, tt[1], tt[2], sT0),
               valu("v_lshrrev_b32", tt[1], 3, tt[0]), valu("v_and_b32", tt[2], 0x70, vL16),
               valu("v_lshl_add_u32", vOO, tt[1], 10, tt[2]),
               valu("v_lshlrev_b32", tt[3], 4, tt[1]), valu("v_xor_b32", vXD, vOO, tt[3]),
               salu("s_mul_i32", sT0, sW, 16 * 144, scc_w=False), salu("s_add_u32", sT0, sT0, TB),
               valu("v_mul_u32_u24", tt[1], 144, tt[1]), valu("v_add3_u32", vOR, tt[1], tt[2], sT0),
               salu("s_lshl_b32", sXk, sW, 11), salu("s_add_u32", sXs, sOut, 8192 - 1024)]
        qF.adds(its, earliest=M3 + 40, deadline=M3 + 96 - D - 1)
        qD.adds([salu("s_add_u32", "m0", sXk, TB + 16384), dma(vXD, SX, sOut, 0, "xt"), dma(vXD, SX, sXs, 1024, "xt")],
                earliest=M3 + 96 - D, deadline=M3 + 96 - D + 4)
        its = []
        for a_ in range(4):
            its += [valu("v_xor_b32", tt[a_], 16 * a_, vXA), ds_rd(XR.sub(2 * a_, 2), tt[a_], 0, tag="xr")]
        qF.adds(its, earliest=M3 + 112 - D, deadline=M3 + 128 - D - 1)
        qF.adds([ds_wr(vRW, ACCS[1].sub(4 * i, 4), 1024 * i, tag="sw") for i in range(4)], earliest=M3 + 111, deadline=M3 + 128 - D)
        its = []
        for r in range(8):
            its += [valu("v_lshlrev_b32", XF[2 * r], 16, XR[r]), valu("v_and_b32", XF[2 * r + 1], sHI, XR[r])]
        qF.adds(its, earliest=M3 + 112)
        its = [ds_rd(SF.sub(4 * i, 4), vRR, 1024 * i) for i in range(4)]
        its += [valu("v_add_f32", SF[r], SF[r], ACCS[0][r]) for r in range(16)]
        its.append(salu("s_add_u32", sXs, sOut, 8192))
        CK = v(38, 2); C1 = v(40, 2)
        its += [valu("v_mov_b32", CK[0], 0xbfb8aa3b), valu("v_mov_b32", CK[1], 0xbfb8aa3b), valu("v_mov_b32", C1[0], 1.0), valu("v_mov_b32", C1[1], 1.0)]
        qF.adds(its, earliest=M3 + 128 - D)
        cap2 = C.cap2A if isA else C.cap2B
        def capf(g):
            if not isA and not qE.empty(): return C.cap2h
            if g < tail + 7: return cap2
            if g < M3: return C.cap2t
            if not qE2.empty(): return 40
            return C.cap3 if qE.empty() else C.cap3x
        schedule(E, mains[M2:], [qFl, qP, qD, qL, qB, qW, qU, qR, qE2, qE, qF], capf, M2, flush=False,
                 vm_gap=lambda g: 2 if g < M3 else C.vm3)
        assert qL.empty() and qD.empty() and qB.empty() and qE.empty() and qE2.empty() and qFl.empty()
        self.stamp("lastm")
        while not qF.empty():
            it = qF.head()[0]; qF.n += 1; run_item(E, it)
        for i in range(4): e(ds_wr(vRW, ACCD[1].sub(4 * i, 4), 16384 + 1024 * i, tag="dw"))
        E.wait_tags(lds=["dw"]); E.barrier()
        self.stamp("sbar")
        for i in range(4): e(ds_rd(RD.sub(4 * i, 4), vRR, 16384 + 1024 * i))
        G = ACCS[1]
        def pk(op, d, *src):
            r = set()
            for x in src: r |= ids(x)
            return I(f"{op} {d}, " + ", ".join(fmt(x) for x in src), "valu", r, ids(d))
        P2 = lambda reg, r: reg.sub(r, 2)
        for a_ in range(4):
            pp_ = (4 * a_, 4 * a_ + 2); rr = range(4 * a_, 4 * a_ + 4)
            for r in pp_: e(pk("v_pk_add_f32", P2(RD, r), P2(RD, r), P2(ACCD[0], r)))
            for r in pp_: e(pk("v_pk_mul_f32", P2(G, r), P2(RD, r), CK))
            for r in pp_: e(pk("v_pk_mul_f32", P2(RD, r), P2(RD, r), P2(SF, r)))
            for r in rr: e(valu("v_exp_f32", G[r], G[r]))
        for a_ in range(4):
            pp_ = (4 * a_, 4 * a_ + 2); rr = range(4 * a_, 4 * a_ + 4)
            for r in pp_: e(pk("v_pk_add_f32", P2(G, r), P2(G, r), C1))
            for r in rr: e(valu("v_rcp_f32", G[r], G[r]))
        for a_ in range(4):
            pp_ = (4 * a_, 4 * a_ + 2)
            for r in pp_: e(pk("v_pk_fma_f32", P2(RD, r), P2(RD, r), P2(G, r), P2(XF, r)))
            for d in range(2): e(valu("v_cvt_pk_bf16_f32", XR[2 * a_ + d], RD[4 * a_ + 2 * d], RD[4 * a_ + 2 * d + 1]))
            e(ds_wr(vOW, XR.sub(2 * a_, 2), 16 * a_))
        E.wait_all_lds(); E.barrier()
        for p in range(2): e(ds_rd(G.sub(4 * p, 4), vOR, 8 * 144 * p))
        for p in range(2): e(vstore(G.sub(4 * p, 4), vOO, SOUT, sXs if p else sOut, 0, fl=C.out_fl))
        self.stamp("end")
        if C.amp:
            l = self.lab("amp")
            E.line("s_waitcnt lgkmcnt(0)")
            if C.amp.startswith("sk"):
                E.line(f"buffer_load_dword v0, off, {SDBG}, 0 offset:4 sc1"); E.line("s_waitcnt vmcnt(0)"); E.line(f"v_readfirstlane_b32 {sT1}, v0"); E.line("s_nop 4")
                if C.amp == "skp": E.line(f"s_sub_u32 {sT0}, s{STAMP0}, {sT1}")
                else: E.line(f"s_sub_u32 {sT0}, {sT1}, s{STAMP0}")
                E.line(f"s_max_i32 {sT0}, {sT0}, 0")
            else:
                k0, k1 = [STAMP0 + 2 * int(x) for x in C.amp.split("-")]
                E.line(f"s_sub_u32 {sT0}, s{k1}, s{k0}")
            pass; E.line(f"s_lshl_b32 {sT0}, {sT0}, 2"); E.line(f"s_add_u32 {sT0}, {sT0}, s{STAMP0 + 16}")
            E.label(l)
            E.line("s_memrealtime s[84:85]"); E.line("s_waitcnt lgkmcnt(0)"); E.line(f"s_sub_u32 s84, s84, {sT0}")
            E.line("s_cmp_lt_i32 s84, 0"); E.line(f"s_cbranch_scc1 {l}")
        elif C.stamps:
            E.line("s_waitcnt lgkmcnt(0)")
            e(salu("s_lshl_b32", sT0, sWG, 2)); e(salu("s_add_u32", sT0, sT0, sW)); e(salu("s_lshl_b32", sT0, sT0, 7))
            e(salu("s_add_u32", sT0, sT0, WS_STAMP))
            for k in range(9):
                e(valu("v_mov_b32", v(0), s(STAMP0 + 2 * k))); e(vstore(v(0), None, SWS, sT0, 4 * k))
            e(accr(v(0), a(198))); e(vstore(v(0), None, SWS, sT0, 44))
            E.line("s_memrealtime s[84:85]"); E.line("s_getreg_b32 s86, hwreg(HW_REG_XCC_ID)"); E.line("s_waitcnt lgkmcnt(0)")
            e(valu("v_mov_b32", v(0), s(84))); e(vstore(v(0), None, SWS, sT0, 36))
            e(valu("v_mov_b32", v(0), s(86))); e(vstore(v(0), None, SWS, sT0, 40))
        E.line("s_endpgm")
        E.out += self.cold

    def epoch_publish(self):
        E = self.E
        l = self.lab("nopub")
        E.emit(salu("s_or_b32", sT0, sWG, sW))
        E.line(f"s_cbranch_scc1 {l}")
        E.line(f"s_mov_b32 {sT0}, 0x9e3779b1")
        E.line(f"v_mul_lo_u32 {vPOLL}, {vPOLL}, {sT0}")
        E.line(f"v_add_u32 {vPOLL}, 0x7f4a7c15, {vPOLL}")
        E.line(f"v_max_u32 {vPOLL}, 1, {vPOLL}")
        E.line(f"s_mov_b32 {sT0}, {WS_EPOCH}")
        E.line(f"buffer_store_dword {vPOLL}, off, {SWS}, {sT0} sc1")
        if C.amp.startswith("sk"):
            E.line(f"v_mov_b32 v0, s{STAMP0}"); E.line(f"buffer_store_dword v0, off, {SDBG}, 0 offset:4 sc1"); E.line("s_waitcnt vmcnt(0)")
        E.line(f"buffer_store_dword {vPOLL}, off, {SDBG}, 0 sc1")
        E.label(l)

    def attention(self, q, xfree):
        M2 = self.M2
        Q0, Q1, K0, K1, V0, V1 = [ACC1(t) for t in range(6)]
        cvt = lambda d, x, y: valu("v_cvt_pk_bf16_f32", d, x, y)
        def pack(dst, src, n=8): return [cvt(dst[i], src[2 * i], src[2 * i + 1]) for i in range(n)]
        its = pack(K0, K0) + pack(K0.sub(8, 8), K1)
        its += [ds_wr(vEX, K0.sub(4 * h, 4), 6144 + 1024 * h, tag="exw") for h in range(4)]
        its += pack(V0, V0) + pack(V0.sub(8, 8), V1)
        bar2 = M2 + 32 - C.D
        q.adds(its, earliest=M2 - 21, deadline=bar2 - 2)
        its = [ds_wr(vEX, V0.sub(4 + 8 * j, 4), 6144 + 4096 + 1024 * j, tag="exw") for j in range(2)]
        its += [accr(NT[i], aHACC[0][i]) for i in range(4)] + [accr(NT[4 + i], aHACC[1][i]) for i in range(4)]
        hk = v(NT[0].lo, 2); hv = v(NT[4].lo, 2)
        its += [cvt(NT[0], NT[0], NT[1]), cvt(NT[1], NT[2], NT[3]), cvt(NT[4], NT[4], NT[5]), cvt(NT[5], NT[6], NT[7])]
        its += [salu("s_lshl_b32", sT0, sW, 10), salu("s_add_u32", sT0, sT0, 256), valu("v_add_u32", NT[2], sT0, vHW),
                salu("s_lshr_b32", sT0, sW, 1), salu("s_lshl_b32", sT0, sT0, 10), salu("s_and_b32", sT1, sW, 1),
                salu("s_lshl_b32", sT1, sT1, 8), salu("s_add_u32", sT0, sT0, sT1), valu("v_add_u32", NT[3], sT0, vHW),
                ds_wr(NT[2], hk, 0, tag="exw"), ds_wr(NT[3], hv, 4096, tag="exw")]
        q.adds(its, earliest=M2 - 1, deadline=bar2 - 2)
        self.exw_check = (q, len(q.items))
        q.adds(pack(Q0, Q0) + pack(Q0.sub(8, 8), Q1), earliest=M2)
        MASK = v(208, 24)
        its = [accr(vRINV, a(196)), accr(vNB, a(197)), smov(sONE, NEG)]
        for r in range(24):
            rr = r if r < 16 else r - 8
            its += [valu("v_bfe_i32", MASK[r], vNB if r < 16 else vRINV, 8 * (rr >> 2) + (rr & 3), 1), valu("v_and_b32", MASK[r], sONE, MASK[r])]
        q.adds(its, earliest=M2)
        q.add(lambda E: self.mark.update(masks=True), earliest=M2)
        SC = K1; SP = v(0, 16); U = v(16, 8); P = v(24, 12); O = Q1
        mx, tm, mc = vRINV, vNB, vW16
        sums = [vHX, vH]; t2 = vTR[4]
        def add(i, ear=0):
            w = [x for x in i.w if x < 128]
            e_ = max([xfree(v(x)) for x in w], default=0)
            q.add(i, earliest=max(e_, ear))
        def qk(h, which):
            if which == 0: add(mfma(SC, K0.sub(4 * h, 4), Q0.sub(4 * h, 4), MASK.sub(0, 16)))
            else: add(mfma(SP, aKP[h], Q0.sub(4 * h, 4), MASK.sub(8, 16)))
        def fin(h):
            o = 8 * (h & 1); sm = sums[h & 1]
            l = [valu("v_rcp_f32", sm, sm)]
            l += [valu("v_mul_f32", O[o + r], O[o + r], sm) for r in range(8)]
            l += [cvt(O[o + r], O[o + 2 * r], O[o + 2 * r + 1]) for r in range(4)]
            l.append(vstore(O.sub(o, 4), vL16, SWS, sStF, 1024 * h, "o", C.st_fl))
            return l
        qk(0, 0)
        q.adds([ds_rd(aKP[h], vEX, 1024 * h) for h in range(4)] + [ds_rd(aVP[j], vEX, 4096 + 1024 * j) for j in range(2)], earliest=bar2)
        qk(0, 1)
        for h in range(4):
            for i in range(4): add(valu("v_max_f32", U[i], SC[2 * i], SC[2 * i + 1]))
            for i in range(4, 8): add(valu("v_max3_f32", U[i], SC[2 * i], SC[2 * i + 1], SP[2 * i]))
            if h < 3: qk(h + 1, 0)
            for i in range(4, 8): add(valu("v_max_f32", U[i], U[i], SP[2 * i + 1]))
            add(valu("v_max3_f32", mx, U[0], U[1], U[2])); add(valu("v_max3_f32", tm, U[3], U[4], U[5]))
            if h < 3: qk(h + 1, 1)
            add(valu("v_max3_f32", mx, mx, U[6], U[7])); add(valu("v_max_f32", mx, mx, tm))
            add(valu("v_mov_b32", tm, mx))
            fl = fin(h - 1) if h > 0 else []
            for x in fl[:3]: add(x)
            add(swap32(mx, tm)); add(valu("v_max_f32", mx, mx, tm))
            add(I(f"v_mul_f32 {mc}, -{mx}, {sCSC}", "valu", mx.ids() | sCSC.ids(), mc.ids()))
            for x in fl[3:]: add(x)
            for i in range(8): add(valu("v_fma_f32", U[i], U[i], sCSC, mc))
            for i in range(8): add(valu("v_exp_f32", U[i], U[i]))
            sm = sums[h & 1]; j = h >> 1
            for i in range(4):
                add(cvt(P[i], U[i], U[i])); add(valu("v_and_b32", P[i], vPM, P[i]))
            add(valu("v_add_f32", sm, U[0], U[1])); add(valu("v_add_f32", tm, U[2], U[3]))
            add(mfma(O, V0.sub(8 * j, 4), P.sub(0, 4), 0))
            for i in range(4):
                add(cvt(P[8 + i], U[4 + i], U[4 + i])); add(valu("v_and_b32", P[4 + i], vMHC, P[8 + i]))
            add(valu("v_add_f32", t2, U[4], U[5])); add(valu("v_add_f32", sm, sm, tm))
            add(mfma(O, V0.sub(8 * j + 4, 4), P.sub(4, 4), O))
            for i in range(4): add(valu("v_and_b32", P[8 + i], vMHP, P[8 + i]))
            add(valu("v_add_f32", tm, U[6], U[7])); add(valu("v_add_f32", t2, t2, tm))
            add(mfma(O, aVP[j], P.sub(8, 4), O))
            add(valu("v_add_f32", sm, sm, t2))
            add(valu("v_mov_b32", tm, sm))
            add(swap32(sm, tm)); add(valu("v_add_f32", sm, sm, tm))
        for x in fin(3): add(x)

    def build(self):
        E = self.E
        self.stamp("t00")
        E.emit(scmp("s_cmp_ge_u32", sWG, 256))
        E.line("s_cbranch_scc1 L_end")
        E.line("s_load_dwordx16 s[8:23], s[0:1], 0")
        E.line("s_load_dwordx4 s[24:27], s[0:1], 64")
        E.emit(salu("s_lshr_b32", sJ, sWG, 3))
        self.code_touch()
        E.emit(I("s_bitcmp1_b32 s6, 3", "salu", sJ.ids(), {SCC}))
        E.line("s_cbranch_scc1 L_typeB")
        snap = E.snapshot()
        self.body("A")
        E.label("L_typeB")
        E.restore(snap)
        self.body("B")
        E.label("L_end")
        E.line("s_endpgm")
        E.label("L_code_end")
        E.out.append(".p2align 12")
        head = open(os.path.join(os.path.dirname(os.path.abspath(__file__)), "head.txt")).read()
        txt = head + f"""; @launch grid=(256,1,1) block=(256,1,1) lds=163840
.amdgcn_target "amdgcn-amd-amdhsa--gfx950"
.text
.globl {NAME}
.p2align 8
.type {NAME},@function
{NAME}:
""" + E.text() + f""".section .rodata,"a"
.p2align 6
.amdhsa_kernel {NAME}
  .amdhsa_next_free_vgpr 512
  .amdhsa_next_free_sgpr 102
  .amdhsa_accum_offset 256
  .amdhsa_group_segment_fixed_size 0
  .amdhsa_kernarg_size 80
  .amdhsa_user_sgpr_count 2
  .amdhsa_user_sgpr_kernarg_segment_ptr 1
  .amdhsa_system_sgpr_workgroup_id_x 1
.end_amdhsa_kernel
"""
        return txt


def place_pads(txt):
    import subprocess, re, tempfile
    sys.path.insert(0, "cdna_kernels")
    from cdna_launch import with_harness_metadata
    lines = txt.split("\n")
    probe = []
    for n, l in enumerate(lines):
        if l.startswith("    ") and not l.strip().startswith(";") and not l.strip().startswith("."): probe.append(f"LP_{n}:")
        probe.append(re.sub(r"L_pad[AB]_\d+", "L_end", l))
    d = tempfile.mkdtemp()
    open(d + "/p.s", "w").write(with_harness_metadata("\n".join(probe), NAME, 10, launch_lists=True))
    subprocess.run(["clang", "-x", "assembler", "-target", "amdgcn-amd-amdhsa", "-mcpu=gfx950", d + "/p.s", "-o", d + "/p.co"], check=True)
    sym = subprocess.run(["llvm-objdump", "-t", d + "/p.co"], capture_output=True, text=True).stdout
    addr = {int(m.group(2)): int(m.group(1), 16) for m in re.finditer(r"([0-9a-f]{16}) .* LP_(\d+)", sym)}
    shift = 0; typ = None; pads = {"A": [], "B": []}; prev = None
    for n, l in enumerate(lines):
        if l.startswith(";PADS_FROM"): typ = l.split()[1]
        if l.startswith("L_typeB:") or l.startswith("L_end:"): typ = None
        if n in addr:
            a_ = addr[n] + shift
            if typ and prev is not None and prev // 4096 != a_ // 4096:
                pads[typ].append(n); shift += 4
            prev = a_
    out = []
    for n, l in enumerate(lines):
        for t in "AB":
            if n in pads[t]:
                k = pads[t].index(n)
                out.append(f"L_pad{t}_{k}:")
                out.append(f"    s_cbranch_execz " + (f"L_pad{t}_{k + 4}" if k + 4 < len(pads[t]) else f"L_back{t}"))
        out.append(l)
    print("pads", {t: len(pads[t]) for t in pads}, "kernel at", hex(min(addr.values())))
    assert min(len(pads[t]) for t in pads) >= 4
    return "\n".join(out)


if __name__ == "__main__":
    g = Gen()
    txt = g.build()
    if C.pads: txt = place_pads(txt)
    open(sys.argv[1], "w").write(txt)
    print("instructions:", g.E.ninst)
```

```python
A0 = 256
S0 = 1000
VCC, EXEC, M0, SCC = 1200, 1201, 1202, 1203


class R:
    __slots__ = ("f", "lo", "n")

    def __init__(self, f, lo, n=1):
        self.f, self.lo, self.n = f, lo, n

    def __str__(self):
        if self.n == 1:
            return f"{self.f}{self.lo}"
        return f"{self.f}[{self.lo}:{self.lo + self.n - 1}]"

    def ids(self):
        base = {"v": 0, "a": A0, "s": S0}[self.f]
        return set(range(base + self.lo, base + self.lo + self.n))

    def sub(self, off, n=1):
        assert off + n <= self.n, (str(self), off, n)
        return R(self.f, self.lo + off, n)

    def __getitem__(self, i):
        return self.sub(i, 1)


def v(lo, n=1): return R("v", lo, n)
def a(lo, n=1): return R("a", lo, n)
def s(lo, n=1): return R("s", lo, n)


def ids(x):
    if isinstance(x, R):
        return x.ids()
    if x == "vcc": return {VCC}
    if x == "exec": return {EXEC}
    if x == "m0": return {M0}
    return set()


def fmt(x):
    if isinstance(x, R): return str(x)
    if isinstance(x, float): return repr(x)
    if isinstance(x, int):
        if -16 <= x <= 64: return str(x)
        return hex(x & 0xffffffff)
    return str(x)


VMCOST = 2
TRANS = ("v_exp_f32", "v_log_f32", "v_rcp_f32", "v_rsq_f32", "v_sqrt_f32")


class I:
    __slots__ = ("t", "k", "r", "w", "tag", "c", "d", "na", "counted", "passes", "cost", "dead", "pre")

    def __init__(self, t, k, r=(), w=(), tag=None):
        self.t, self.k = t, k
        self.r, self.w = set(r), set(w)
        self.tag = tag
        self.c = set()
        self.d = set()
        self.na = set()
        self.counted = True
        self.passes = 8
        self.cost = 1
        self.dead = False
        self.pre = None


def valu(op, d, *src, rd=False, mods=""):
    r = set()
    for x in src: r |= ids(x)
    w = ids(d)
    if rd: r |= w
    k = "trans" if op in TRANS else ("dot" if op.startswith("v_dot") else "valu")
    i = I(f"{op} {fmt(d)}, " + ", ".join(fmt(x) for x in src) + (" " + mods if mods else ""), k, r, w)
    if k == "trans": i.cost = 2
    return i


def vcmp(op, d, x, y):
    return I(f"{op} {fmt(d)}, {fmt(x)}, {fmt(y)}", "valu", ids(x) | ids(y), ids(d))


def cndmask(d, f, t, m):
    return I(f"v_cndmask_b32 {d}, {fmt(f)}, {fmt(t)}, {fmt(m)}", "valu", ids(f) | ids(t) | ids(m), ids(d))


def swap32(x, y):
    return I(f"v_permlane32_swap_b32 {x}, {y}", "perm", ids(x) | ids(y), ids(x) | ids(y))


def swap16(x, y):
    return I(f"v_permlane16_swap_b32 {x}, {y}", "perm", ids(x) | ids(y), ids(x) | ids(y))


def rfl(d, x):
    return I(f"v_readfirstlane_b32 {d}, {x}", "rfl", ids(x), ids(d))


def accr(d, x): return I(f"v_accvgpr_read_b32 {d}, {x}", "valu", ids(x), ids(d))
def accw(d, x): return I(f"v_accvgpr_write_b32 {d}, {fmt(x)}", "valu", ids(x), ids(d))


def salu(op, d, *src, scc_w=True, scc_r=False):
    r = set()
    for x in src: r |= ids(x)
    if scc_r: r.add(SCC)
    w = ids(d)
    if scc_w: w = w | {SCC}
    return I(f"{op} {fmt(d)}, " + ", ".join(fmt(x) for x in src), "salu", r, w)


def smov(d, x): return salu("s_mov_b32", d, x, scc_w=False)


def scmp(op, x, y):
    return I(f"{op} {fmt(x)}, {fmt(y)}", "salu", ids(x) | ids(y), {SCC})


def mfma(D, A, B, C, shape="32x32x16"):
    i = I(f"v_mfma_f32_{shape}_bf16 {D}, {A}, {B}, {fmt(C)}", "mfma", ids(A) | ids(B) | ids(C), ids(D))
    i.c = ids(C); i.na = ids(A) | ids(B)
    i.passes = 8 if shape == "32x32x16" else 4
    return i


def ds_tr(d, addr, off, tag=None):
    assert 0 <= off < 65536, off
    return I(f"ds_read_b64_tr_b16 {d}, {addr} offset:{off}", "dsr", ids(addr), ids(d), tag)


def ds_rd(d, addr, off, tag=None):
    assert 0 <= off < 65536, off
    op = {1: "ds_read_b32", 2: "ds_read_b64", 4: "ds_read_b128"}[d.n]
    return I(f"{op} {d}, {addr} offset:{off}", "dsr", ids(addr), ids(d), tag)


def ds_wr(addr, x, off, tag=None):
    assert 0 <= off < 65536, off
    op = {1: "ds_write_b32", 2: "ds_write_b64", 4: "ds_write_b128"}[x.n]
    i = I(f"{op} {addr}, {x} offset:{off}", "dsw", ids(addr) | ids(x), (), tag); i.cost = x.n
    return i


def _vo(voff):
    return ("off", "") if voff is None else (str(voff), " offen")


def dma(voff, srd, soff, imm=0, tag=None, fl=""):
    assert 0 <= imm < 4096
    t = f"buffer_load_dwordx4 {voff}, {srd}, {fmt(soff)} offen" + (f" offset:{imm}" if imm else "") + (" " + fl if fl else "") + " lds"
    i = I(t, "dma", ids(voff) | ids(srd) | ids(soff) | {M0}, (), tag); i.cost = VMCOST
    return i


def vload(d, voff, srd, soff, imm=0, tag=None, fl=""):
    assert 0 <= imm < 4096
    op = {1: "buffer_load_dword", 2: "buffer_load_dwordx2", 4: "buffer_load_dwordx4"}[d.n]
    vo, en = _vo(voff)
    t = f"{op} {d}, {vo}, {srd}, {fmt(soff)}{en}" + (f" offset:{imm}" if imm else "") + (" " + fl if fl else "")
    i = I(t, "vml", ids(voff) | ids(srd) | ids(soff), ids(d), tag); i.cost = VMCOST
    return i


def vstore(x, voff, srd, soff, imm=0, tag=None, fl=""):
    assert 0 <= imm < 4096
    op = {1: "buffer_store_dword", 2: "buffer_store_dwordx2", 4: "buffer_store_dwordx4"}[x.n]
    vo, en = _vo(voff)
    t = f"{op} {x}, {vo}, {srd}, {fmt(soff)}{en}" + (f" offset:{imm}" if imm else "") + (" " + fl if fl else "")
    i = I(t, "vms", ids(voff) | ids(srd) | ids(soff) | ids(x), (), tag)
    i.cost = VMCOST
    if x.n >= 3: i.d = ids(x)
    return i


def raw(t, k="other", r=(), w=()):
    return I(t, k, r, w)


class Emitter:
    LG_OLD = 10

    def __init__(self):
        self.out = []
        self.pos = 0
        self.reset_state()
        self.ninst = 0

    def reset_state(self):
        self.w_valu = {}; self.w_trans = {}; self.w_dot = {}; self.w_mfma = {}
        self.c_mfma = {}; self.w_vsgpr = {}; self.st_data = {}
        self.m0_pos = -100
        self.lq = []
        self.vq = []

    def snapshot(self):
        import copy
        return copy.deepcopy((self.pos, self.w_valu, self.w_trans, self.w_dot, self.w_mfma, self.c_mfma,
                              self.w_vsgpr, self.st_data, self.m0_pos, self.lq, self.vq))

    def restore(self, snap):
        import copy
        (self.pos, self.w_valu, self.w_trans, self.w_dot, self.w_mfma, self.c_mfma,
         self.w_vsgpr, self.st_data, self.m0_pos, self.lq, self.vq) = copy.deepcopy(snap)

    def nops(self, i):
        need = 0
        p = self.pos
        isv = i.k in ("valu", "trans", "dot", "perm", "rfl")
        mem = i.k in ("dsr", "dsw", "dma", "vml", "vms")

        def req(q, n):
            nonlocal need
            need = max(need, q + n + 1 - p)

        tab_valu = {8: 12, 4: 8}
        tab_part = {8: 10, 4: 6}
        tab_war = {8: 7, 4: 3}
        if i.k == "mfma":
            for x in i.r:
                if x in self.w_valu: req(self.w_valu[x], 2)
                if x in self.w_dot: req(self.w_dot[x][0], 3)
            for x in i.na:
                if x in self.w_mfma: req(self.w_mfma[x][0], tab_valu[self.w_mfma[x][2]])
            for x in i.c:
                if x in self.w_mfma:
                    q, dset, ps = self.w_mfma[x]
                    if not (dset == i.c and ps == i.passes): req(q, tab_part[ps])
            for x in i.w:
                if x in self.st_data: req(self.st_data[x], 2)
            for x in i.w - i.c:
                if x in self.w_mfma: req(self.w_mfma[x][0], tab_valu[self.w_mfma[x][2]])
        if isv or mem:
            for x in (i.r | i.w):
                if x in self.w_mfma: req(self.w_mfma[x][0], tab_valu[self.w_mfma[x][2]])
        if isv:
            for x in i.w:
                if x in self.c_mfma: req(self.c_mfma[x][0], tab_war[self.c_mfma[x][1]])
                if x in self.st_data: req(self.st_data[x], 2)
            for x in i.r:
                if x in self.w_trans and i.k != "trans": req(self.w_trans[x], 1)
                if x in self.w_vsgpr: req(self.w_vsgpr[x], 2)
            op = i.t.split()[0]
            for x in (i.r | i.w):
                if x in self.w_dot:
                    q, o = self.w_dot[x]
                    if not (i.k == "dot" and o == op and x in i.w): req(q, 3)
            if i.k == "perm":
                for x in i.r:
                    if x in self.w_valu: req(self.w_valu[x], 2)
            if i.k == "rfl":
                for x in i.r:
                    if x in self.w_valu: req(self.w_valu[x], 1)
        if mem:
            for x in i.r:
                if x in self.w_vsgpr: req(self.w_vsgpr[x], 5)
                if x in self.w_dot: req(self.w_dot[x][0], 3)
                if x in self.w_trans: req(self.w_trans[x], 1)
            for x in i.w:
                if x in self.st_data: req(self.st_data[x], 1)
                if x in self.c_mfma: req(self.c_mfma[x][0], tab_war[self.c_mfma[x][1]])
        if i.k == "dma": req(self.m0_pos, 1)
        if i.k == "salu":
            for x in i.r:
                if x in self.w_vsgpr: req(self.w_vsgpr[x], 3)
        return max(0, need)

    def _pending(self, q, i):
        touch = i.r | i.w
        last = -1
        for n, e in enumerate(q):
            if e[1] & touch: last = n
        return last

    def dep_age(self, i):
        n = self._pending(self.lq, i); m = self._pending(self.vq, i)
        return (self.pos - self.lq[n][0] if n >= 0 else 10 ** 6, self.pos - self.vq[m][0] if m >= 0 else 10 ** 6)

    def line(self, t, states=1):
        self.out.append("    " + t)
        self.pos += states
        self.ninst += 1

    def label(self, name):
        self.out.append(name + ":")

    def comment(self, t):
        self.out.append("    ; " + t)

    def _wait(self, ln, vn):
        parts = []
        if vn >= 0:
            n = sum(1 for e in self.vq[vn + 1:] if e[3])
            if n < 63: parts.append(f"vmcnt({n})")
            else: parts.append("vmcnt(62)")
            self.vq = self.vq[vn + 1:]
        if ln >= 0:
            while ln + 1 < len(self.lq) and self.pos - self.lq[ln + 1][0] >= self.LG_OLD: ln += 1
            n = len(self.lq) - 1 - ln
            parts.append(f"lgkmcnt({min(n, 15)})")
            self.lq = self.lq[ln + 1:]
        if parts: self.line("s_waitcnt " + " ".join(parts))

    def wait_tags(self, lds=(), vm=()):
        ln = max([n for n, e in enumerate(self.lq) if e[2] in lds], default=-1)
        vn = max([n for n, e in enumerate(self.vq) if e[2] in vm], default=-1)
        self._wait(ln, vn)

    def wait_all_lds(self):
        if self.lq: self._wait(len(self.lq) - 1, -1)

    def wait_all_vm(self):
        self.line("s_waitcnt vmcnt(0)"); self.vq = []

    def emit(self, i):
        if i.pre is not None: self.emit(i.pre)
        self._wait(self._pending(self.lq, i), self._pending(self.vq, i))
        n = self.nops(i)
        while n > 0:
            k = min(n, 16)
            self.line(f"s_nop {k - 1}", k); n -= k
        p = self.pos
        self.line(i.t)
        isv = i.k in ("valu", "trans", "dot", "perm", "rfl")
        for x in i.w:
            for dct in (self.w_valu, self.w_trans, self.w_dot, self.w_mfma, self.w_vsgpr):
                dct.pop(x, None)
        if isv:
            for x in i.w:
                if x >= S0: self.w_vsgpr[x] = p
                else: self.w_valu[x] = p
                if i.k == "trans": self.w_trans[x] = p
                if i.k == "dot": self.w_dot[x] = (p, i.t.split()[0])
        if i.k == "mfma":
            for x in i.w: self.w_mfma[x] = (p, frozenset(i.w), i.passes)
            for x in i.c: self.c_mfma[x] = (p, i.passes)
        if i.k == "salu" and M0 in i.w: self.m0_pos = p
        for x in i.d: self.st_data[x] = p
        if i.k in ("dsr", "dsw"): self.lq.append([p, set(i.w), i.tag])
        if i.k in ("dma", "vml", "vms"):
            self.vq.append([p, set(i.w), i.tag, i.counted])
            if getattr(self, "fifo", None): self.fifo.push(self)

    def emits(self, lst):
        for i in lst: self.emit(i)

    def barrier(self):
        self.line("s_barrier")

    def text(self):
        return "\n".join(self.out) + "\n"


class Q:
    def __init__(self, name, lds_age=14, vm_age=200, hard=True, top=False):
        self.name = name; self.items = []; self.n = 0; self.hard = hard; self.top = top
        self.lds_age = lds_age; self.vm_age = vm_age

    def add(self, i, earliest=0, deadline=10 ** 9, hard=None):
        self.items.append((i, earliest, deadline, self.hard if hard is None else hard))

    def adds(self, lst, earliest=0, deadline=10 ** 9, hard=None):
        for i in lst: self.add(i, earliest, deadline, hard)

    def empty(self): return self.n >= len(self.items)
    def head(self): return self.items[self.n]


def run_item(E, it):
    if getattr(it, "dead", False): return
    if callable(it): it(E)
    else: E.emit(it)


def glue(lst):
    def f(E): E.emits(lst)
    return f


def m0_busy(q):
    for x in q.items[q.n:q.n + 12]:
        it = x[0]
        if callable(it): continue
        if it.k == "dma": return True
        if M0 in it.w: return False
    return False


def step(E, q, queues):
    it = q.head()[0]
    if not callable(it) and M0 in it.w:
        own = getattr(E, "m0_owner", None)
        if own is not None and own is not q:
            while m0_busy(own): step(E, own, queues)
        E.m0_owner = q
    q.n += 1
    run_item(E, it)


def is_vm(it):
    return getattr(it, "vm", False) if callable(it) else it.k in ("dma", "vml")


def lead(q):
    for x in q.items[q.n:q.n + 6]:
        it = x[0]
        if callable(it):
            if getattr(it, "vm", False): return it
            continue
        if it.k != "salu": return it
    return None


class Fifo:
    PERIOD = 68.0
    def __init__(self): self.n = 0.0; self.p = 0; self.g = 0
    def level(self, E):
        dt = max((E.pos - self.p) * 4 + (E.gap - self.g) * 4, (E.gap - self.g) * 34)
        return max(0.0, self.n - dt / self.PERIOD)
    def push(self, E, k=1.0):
        self.n = self.level(E) + k; self.p = E.pos; self.g = E.gap


class Pool:
    def __init__(self): self.slots = []
    def add(self, reg, kinds, avail=None):
        for k in range(reg.n // 4): self.slots.append(dict(r=reg.sub(4 * k, 4), kinds=kinds, avail=avail, busy=False, pos=-100))
    def find(self, E, kind):
        c = [x for x in self.slots if set(kind) & set(x["kinds"]) and not x["busy"] and E.pos - x["pos"] >= 8 and (x["avail"] is None or x["avail"]())]
        c.sort(key=lambda x: (x["kinds"] != "E", len(x["kinds"])))
        return c[0] if c else None
    def take(self, E, kind):
        x = self.find(E, kind); assert x is not None, ("no free slot", kind, E.gap)
        x["busy"] = True; return x
    def give(self, E, x): x["busy"] = False; x["pos"] = E.pos


def schedule(E, mains, queues, cap, g0=0, flush=True, vm_gap=1):
    def blocked(q):
        own = getattr(E, "m0_owner", None)
        if own is None or own is q or not m0_busy(own): return False
        nx = next((x[0] for x in q.items[q.n:q.n + 2] if not callable(x[0])), None)
        return nx is not None and M0 in nx.w

    def getm(mn, peek=False):
        return mn["m"](peek) if callable(mn["m"]) else mn["m"]

    fifo = E.fifo
    budget = 0.0
    reserved = 0
    last_vm = -100; last_vp = -1000
    INF = 10 ** 9
    for n, mn in enumerate(mains):
        g = g0 + n
        E.gap = g
        if getattr(E, "trace", False): print(g, {q.name: (q.n, len(q.items)) for q in queues}, round(budget, 1))
        vg = vm_gap(g) if callable(vm_gap) else vm_gap
        p0 = E.pos
        for q in queues:
            last = -1
            for k in range(q.n, len(q.items)):
                if q.items[k][3] and q.items[k][2] <= g: last = k
            while q.n <= last: step(E, q, queues)
        for it in mn.get("pre", ()): run_item(E, it)
        E.emit(getm(mn))
        c = cap(g) if callable(cap) else cap
        budget = max(min(budget + reserved - (E.pos - p0 - 1), 0.99), -1.5) + c
        p0 = E.pos
        for it in mn.get("fix", ()): run_item(E, it)
        budget -= E.pos - p0
        reserved = 0
        if n + 1 < len(mains):
            nm = getm(mains[n + 1], True)
            if nm is not None and (E._pending(E.lq, nm) >= 0 or E._pending(E.vq, nm) >= 0): reserved += 1
            reserved += mains[n + 1].get("npre", 0)
        budget -= reserved
        while True:
            cands = []
            for q in queues:
                while not q.empty() and getattr(q.head()[0], "dead", False): q.n += 1
                if q.empty(): continue
                it, ear, dl, _h = q.head()
                if ear > g or blocked(q): continue
                if callable(it) and hasattr(it, "ready") and not it.ready(E): continue
                nxt = lead(q)
                vm = nxt is not None and is_vm(nxt)
                dl = min(x[2] for x in q.items[q.n:q.n + 6])
                if vm and (g == last_vm and E.pos - last_vp < 12 or (fifo.level(E) > vg and dl > g) or (hasattr(nxt, "ready") and not nxt.ready(E))): continue
                if not callable(it):
                    if E.nops(it) > 0: continue
                    la, va = E.dep_age(it)
                    if la < q.lds_age or va < q.vm_age: continue
                if not vm: dl = min(x[2] for x in q.items[q.n:q.n + 40])
                st = nxt is not None and not callable(nxt) and nxt.k == "vms"
                cands.append(((0 if q.top else (1 if (vm or st) else 2), dl), q, vm))
            if not cands: break
            cands.sort(key=lambda x: x[0])
            pick = None
            for key, q, vm in cands:
                it = q.head()[0]
                forced = False
                hd = [k for k in range(q.n, min(len(q.items), q.n + 60)) if q.items[k][3] and q.items[k][2] < INF]
                if hd:
                    d0 = min(q.items[k][2] for k in hd)
                    last = max(k for k in hd if q.items[k][2] <= d0)
                    forced = (last - q.n + 1) > (d0 - g - 1) * 5
                free = callable(it) and not is_vm(it) and not hasattr(it, "slots")
                if budget >= 1.0 or forced or free or (vm and key[1] - g <= 24 and budget >= -1.0):
                    pick = q; break
            if pick is None: break
            it = pick.head()[0]
            p0 = E.pos
            step(E, pick, queues)
            budget -= E.pos - p0
            if is_vm(it): last_vm = g; last_vp = E.pos; budget -= VMCOST - 1
            elif not callable(it):
                budget -= it.cost - 1
                if it.k == "mfma": budget += (c + 1) if it.passes == 8 else 3
    if flush:
        for q in queues:
            while not q.empty(): step(E, q, queues)
```

```python
import sys, os
sys.path.insert(0, os.path.dirname(os.path.abspath(__file__)))
from emit import *

NAME = "recurrent_scan__sliding_local_dilated__glu_gated_bilinear__prompt_kernel"

class Cfg:
    stamps = False
    stset = "a"
    rt = False
    D = 6
    nahead = 4; cap1A = 7.0; cap1B = 6.5; cap1t = 8.0; cap2h = 9.0; cap2A = 7.5; cap2B = 7.0; cap3 = 7.0; cap2t = 7.5; cap3x = 20.0
    npre = 120
    att_gate = 0.7; gate0B = -44; vm1 = 2.0; vm3 = 8.0; nrawA = 0; nrawB = 10; warm_gA = 2; warm_gB = 1; warm_sp = 1; b2gA = 4; b2gB = 3; raw0A = 130; raw0B = 270
    rot = True
    pads = True
    la1 = 14; la2 = 14; la3 = 18; la4A = 13; la4B = 18
    polld = 34
    flagd = 600
    b2lead = 24; a2lead = 30; att_end = 30
    dbg_st = False; dbg_a2 = 0; dbg_dump = False; dbg_bar = False
    amp = ""
    rot2 = True; flagl = 300
    raw = True; raw0 = 84
    npre_norm = 3; npre_normA = 1; hn_early = 0; exbar = 12; npoll = 3
    w0at = 4; touch_w0 = 4; x2early = True
    touch_code = True
    touch_b2 = False; b2g = 4
    warm_all = True
    a2_fl = "sc1"; st_fl = "sc1"; pre_a2 = 0; x_fl = ""; w_fl = ""; b2_fl = ""; out_fl = ""
    spin_max = 1 << 16

C = Cfg()
for arg in sys.argv[2:]:
    k, val = arg.split("=")
    old = getattr(C, k)
    setattr(C, k, (val not in ("0", "False")) if isinstance(old, bool) else type(old)(val.replace("+", " ")))

WS_FLAG = 0x900000
WS_EPOCH = 0xA00000
WS_STAMP = 0xB00000
WS_SIZE = 0xC00000
TB = 131072

sWG = s(2); sW = s(3); sRB = s(4); sIDX = s(5); sJ = s(6); sXCD = s(7)
SX, SWO, SWG_, SWD, SDBG, SP5, SWU, SOUT, SWS, SP9 = [s(8 + 4 * i, 4) for i in range(10)]
SQKV = SWG2 = SP5; SWH = SWU2 = SP9
(sA2s, sB2s, sM0B, sT0, sT1, sS1, sS2, sS2b, sTAG, sFLW, sFLR, sStF, sStH, sSt2, sHI, sONE, sSPIN, sT2, sOut, sT5,
 sRT, sCT, sKH, sCSC, sXs, sM0T, sXo, sXk, sROT, sC512, sA2c0, sA2c1, sA2c2, sB2c0, sB2c1, sB2c2) = [s(48 + i) for i in range(36)]
sA2c = [sA2c0, sA2c1, sA2c2]; sB2c = [sB2c0, sB2c1, sB2c2]
sHo = sB2s
sPC = s(48, 2)
STAMP0 = 84

def X(ks): return v(4 * ks, 4)
def ACC1(t): return v(128 + 16 * t, 16)
NT = [v(224 + i) for i in range(8)]
vTR = [v(232 + i) for i in range(6)]
vG = v(238); vU = v(239); vH = v(240)
vB2 = v(241); vTW = v(242)
vL16 = v(243); vRINV = v(244); vNB = v(245); vW16 = v(246); vHX = v(247)
vTAG = v(248); vPOLL = v(249); vP4 = v(250); vTB = vTAG
vEX = v(251); vHW = v(252); vPM = v(253); vMHC = v(254); vMHP = v(255)
vTR2T = [v(42), v(43)]; vTR2 = [v(44), v(45)]; vWQ = v(46)
vPL = [vPOLL, v(36), v(37), v(47)]
vSP = [vTW, v(46 - 5)]
PARKED = vTR2T + vTR2
E2T = v(48, 16)
ACCD = [v(64, 16), v(80, 16)]; ACCS = [v(96, 16), v(112, 16)]
def WF(m): return a(4 * (m % 12), 4)
def ACC2(t): return a(48 + 16 * t, 16)
aMASK = a(112, 24); aKP = [a(136 + 4 * i, 4) for i in range(4)]; aVP = [a(152 + 4 * i, 4) for i in range(2)]
aHACC = [a(160, 4), a(164, 4)]; aXH = [a(168, 4), a(172, 4)]
aW16 = [[a(176, 4), a(180, 4)], [a(184, 4), a(188, 4)]]
aPARK = 192
aDUM0 = a(199); vDUM1 = v(37)

NEG = 0xf149f2ca


class LDSMap:
    def __init__(self):
        self.own = {c: ("x", c // 4) for c in range(32)}
        for c in range(32, 40): self.own[c] = ("T",)
        self.last_use = {}
        self.visible = set()
        self.bar_m = -1
        self.xread = set()
    def alloc(self, obj, chunks):
        for c in chunks:
            o = self.own[c]
            if o[0] == "x": assert o[1] in self.xread, (obj, c, o)
            else: assert self.last_use[o] <= self.bar_m, (obj, c, o, self.last_use[o], self.bar_m)
            self.own[c] = obj
    def check_read(self, obj, chunks):
        assert obj in self.visible, ("not visible", obj)
        for c in chunks: assert self.own[c] == obj, (obj, c, self.own[c])


SHIFT = [48, 8, 16]


def step_info(n):
    if n < 32: return 16 + 12 * (n >> 3) + (n & 7), 0, 0
    if n < 40: return n - 32, 1, 1
    if n < 56: return 112 + n - 40, 2, 3
    hi = n >= 64; k = (n - 56) & 7
    return 24 + 12 * (k >> 1) + (k & 1) + 2 * hi, 0, (4 if hi else 2)


class Gen:
    def __init__(self):
        self.E = Emitter()
        self.E.trace = bool(os.environ.get("TRACE"))
        self.nlabel = 0
        self.nstamp = 0

    def lab(self, base):
        self.nlabel += 1
        return f"L_{base}_{self.nlabel}"

    STS = {"a": ["t0", "issued", "x0", "xdone", "s1", "s2", "p2", "lastm", "end"],
           "b": ["t0", "g0a", "g0b", "p2", "g1a", "g1b", "g2a", "g2b", "end"],
           "e": ["t0", "karg", "issued", "rest", "pads", "x0", "x1", "x3", "end"],
           "f": ["t0", "x4", "x5", "x6", "x7", "xdone", "s1", "b1", "end"],
           "g": ["t0", "s1", "b1a", "b1", "b2a", "b2", "b3a", "b3", "end"],
           "h": ["t0", "b3", "b4", "b5", "b6", "b7", "b8", "s2", "end"],
           "j": ["t0", "g2b", "n48", "n55", "n56", "n60", "n64", "n71", "end"],
           "k": ["t0", "g0b", "n0", "n4", "n8", "n16", "n24", "n31", "end"],
           "l": ["t0", "g1b", "g3b", "n31", "n32", "n39", "n40", "n47", "end"],
           "m": ["t0", "n0", "n8", "n16", "n24", "n32", "n40", "n56", "end"],
           "n": ["t0", "c0a", "c0", "c1a", "c1", "c2a", "c2", "c3a", "c3"],
           "o": ["t0", "c4a", "c4", "c5a", "c5", "c6a", "c6", "c7a", "c7"],
           "p": ["t0", "g0a", "g0b", "g1a", "g1b", "g3a", "g3b", "g2a", "g2b"],
           "q": ["t0", "s2", "f0a", "f0b", "g0a", "g0b", "f2a", "f2b", "end"],
           "r": ["t0", "s1", "b1", "b2", "b3", "b4", "b5", "b6", "b7"],
           "s": ["t0", "b7", "b8", "b9", "b10", "b11", "c0", "c1", "c2"],
           "t": ["n16", "n17", "n18", "n19", "n20", "n21", "n22", "n23", "n24"],
           "u": ["n40", "n41", "n42", "n43", "n44", "n45", "n46", "n47", "n48"],
           "v": ["n60", "n61", "n62", "n63", "n64", "n65", "n66", "n67", "n68"],
           "w": ["t00", "t0", "karg", "issued", "rest", "pads", "x0", "xdone", "end"],
           "x": ["t0", "karg", "issued", "pads", "x0", "x1", "x2", "x3", "x4"],
           "y": ["t0", "x4", "x5", "x6", "x7", "xdone", "bx", "s1", "b1"],
           "z": ["t0", "p2", "f2b", "f4b", "g2a", "g2b", "g4a", "g4b", "end"],
           "i": ["t0", "s2", "g0a", "g0b", "p2", "c1", "g1a", "g1b", "end"],
           "d": ["t0", "p2", "g1b", "g3a", "g3b", "g2a", "g2b", "lastm", "end"],
           "c": ["t0", "p2", "c1", "c3", "c5", "c7", "lastm", "sbar", "end"]}

    def stamp(self, name):
        if C.stset.startswith("B"):
            g = int(C.stset[1:]); self.STS[C.stset] = [f"b{g}"] + [f"b{g + k}{x}" for k in range(1, 5) for x in ("a", "")]
        if C.stset.startswith("N"): self.STS[C.stset] = [f"n{int(C.stset[1:]) + k}" for k in range(9)]
        if C.stamps and name in self.STS[C.stset]:
            k = self.STS[C.stset].index(name)
            self.E.line(f"{'s_memrealtime' if C.rt else 's_memtime'} s[{STAMP0 + 2 * k}:{STAMP0 + 2 * k + 1}]")

    def setup_first(self, typ):
        o = []; e = o.append
        lane = self.lane; vx = self.vx; t0, t1, t2 = v(201), v(202), v(203)
        e(valu("v_and_b32", lane, 63, v(0)))
        e(valu("v_lshrrev_b32", t0, 6, v(0)))
        e(salu("s_and_b32", sXCD, sWG, 7))
        e(rfl(sW, t0))
        e(salu("s_and_b32", sRB, sXCD, 1)); e(salu("s_lshl_b32", sRB, sRB, 3))
        e(salu("s_and_b32", sT0, sJ, 7)); e(salu("s_add_u32", sRB, sRB, sT0))
        e(salu("s_and_b32", sIDX, sXCD, 6)); e(salu("s_lshr_b32", sT0, sJ, 4)); e(salu("s_add_u32", sIDX, sIDX, sT0))
        e(valu("v_and_b32", t0, 7, lane)); e(valu("v_lshrrev_b32", t1, 4, lane)); e(valu("v_xor_b32", t0, t0, t1))
        e(valu("v_lshlrev_b32", t0, 4, t0))
        e(valu("v_lshrrev_b32", t1, 3, lane)); e(valu("v_lshlrev_b32", t1, 10, t1))
        e(valu("v_or_b32", vx[0], t0, t1)); e(valu("v_xor_b32", t2, 64, vx[0]))
        e(valu("v_add_u32", vx[1], 7168, t2)); e(valu("v_add_u32", vx[2], 2 * 7168, vx[0])); e(valu("v_add_u32", vx[3], 3 * 7168, t2))
        e(salu("s_lshl_b32", sM0B, sW, 15))
        e(salu("s_lshl_b32", sT0, sRB, 17)); e(salu("s_add_u32", sXo, sT0, sM0B))
        e(salu("s_lshr_b32", sT1, sJ, 3)); e(salu("s_add_u32", sT1, sT1, sJ)); e(salu("s_and_b32", sROT, sT1, 3 if C.rot else 0))
        e(salu("s_lshl_b32", sXk, sROT, 8))
        e(smov(SWS[2], WS_SIZE)); e(smov(SWS[3], 0x20000))
        if typ == "A":
            e(smov(SQKV[2], 512 * 3072)); e(smov(SQKV[3], 0x20000))
            hs = self.hs
            e(salu("s_sub_u32", sT1, sT0, 16 * 1024))
            e(valu("v_add_u32", hs[0], sT1, vx[0])); e(salu("s_add_u32", sT1, sT1, 1024)); e(valu("v_add_u32", hs[1], sT1, vx[1]))
            e(salu("s_add_u32", sHo, sW, sROT)); e(salu("s_and_b32", sHo, sHo, 3)); e(salu("s_lshl_b32", sHo, sHo, 8))
            e(salu("s_lshr_b32", sS2b, sM0B, 3))
            e(salu("s_lshl_b32", sT2, sIDX, 1))
            e(salu("s_lshl_b32", sS1, sIDX, 7))
        else:
            e(salu("s_mul_i32", sT2, sIDX, 12, scc_w=False)); e(salu("s_add_u32", sT2, sT2, 24))
            e(salu("s_lshl_b32", sS1, sT2, 5)); e(salu("s_sub_u32", sS1, sS1, 256))
            for d, sh in ((SWU, 1024), (SWG2, 1920), (SWU2, 2944)):
                e(smov(d[2], 512 * 3584 + sh)); e(smov(d[3], 0x20000))
        st1 = 3072 if typ == "A" else 3584
        e(salu("s_mul_i32", sT0, sROT, 128 * st1, scc_w=False)); e(salu("s_add_u32", sS1, sS1, sT0))
        if C.touch_w0:
            e(valu("v_and_b32", t0, C.touch_w0 - 1, lane)); e(valu("v_mul_u32_u24", t0, st1, t0))
            if typ == "A":
                e(valu("v_lshrrev_b32", t1, 4, lane)); e(valu("v_min_u32", t1, 2, t1)); e(valu("v_lshlrev_b32", t1, 10, t1))
            else:
                e(valu("v_bfe_u32", t1, lane, 4, 1)); e(valu("v_lshlrev_b32", t1, 7, t1))
            e(valu("v_add_u32", vTW, t0, t1))
            e(salu("s_and_b32", sT0, sJ, 4)); e(salu("s_and_b32", sT1, sXCD, 1)); e(salu("s_lshl_b32", sT1, sT1, 3))
            e(salu("s_add_u32", sT0, sT0, sT1)); e(salu("s_add_u32", sT0, sT0, sW))
            e(salu("s_mul_i32", sT0, sT0, C.touch_w0 * st1, scc_w=False)); e(salu("s_add_u32", sT5, sT0, sS1))
        return o

    def touch(self, voff, srd_, soff, imm=0, dst=None, fl=""):
        i = vload(dst or aDUM0, voff, srd_, soff, imm, fl=fl); i.w = set(); return i

    def consts(self, typ):
        o = []; e = o.append
        lane = self.lane
        t = [v(208 + i) for i in range(8)]
        li, g4, r2, hh, ub = v(190), v(191), v(192), v(193), v(194)
        e(valu("v_and_b32", li, 15, lane)); e(valu("v_lshrrev_b32", g4, 4, lane)); e(valu("v_lshrrev_b32", hh, 5, lane))
        e(valu("v_and_b32", ub, 1, g4)); e(valu("v_lshrrev_b32", r2, 2, li))
        e(valu("v_lshlrev_b32", vL16, 4, lane))
        e(smov(sHI, 0xffff0000)); e(smov(sONE, 0x3f803f80)); e(smov(sC512, 0x3b000000)); e(smov(sCSC, 0x3eb8aa3b))
        xa = self.xa
        e(valu("v_and_b32", t[0], 31, lane)); e(valu("v_lshlrev_b32", t[1], 7, t[0]))
        e(valu("v_bfe_u32", t[0], lane, 1, 3)); e(valu("v_xor_b32", t[0], t[0], hh)); e(valu("v_lshlrev_b32", t[0], 4, t[0]))
        e(valu("v_add_u32", t[1], sM0B, t[1]))
        for q in range(4):
            e(valu("v_xor_b32", t[2], 32 * q, t[0])); e(valu("v_add_u32", xa[q], t[1], t[2]))
        for r_ in self.acc: e(valu("v_mov_b32", r_, 0))
        if typ == "A":
            ha = self.ha
            e(valu("v_lshlrev_b32", t[1], 7, li)); e(valu("v_lshrrev_b32", t[0], 1, li)); e(valu("v_xor_b32", t[0], t[0], g4))
            e(valu("v_lshlrev_b32", t[0], 4, t[0]))
            e(salu("s_add_u32", sT0, sS2b, TB)); e(valu("v_add_u32", t[1], sT0, t[1]))
            e(valu("v_add_u32", ha[0], t[1], t[0])); e(valu("v_xor_b32", t[0], 64, t[0])); e(valu("v_add_u32", ha[1], t[1], t[0]))
            for r_ in self.hacc: e(valu("v_mov_b32", r_, 0))
            e(valu("v_add_u32", vHX, TB + 16384, vL16))
            e(valu("v_lshlrev_b32", ha[2], 3, lane)); e(valu("v_add_u32", ha[2], TB, ha[2])); e(valu("v_add_u32", ha[3], sS2b, ha[2]))
            e(valu("v_add_u32", ha[4], sS2b, vHX))
        e(salu("s_and_b32", sT0, sW, 1)); e(salu("s_lshl_b32", sT0, sT0, 4))
        e(salu("s_lshr_b32", sKH, sW, 1)); e(salu("s_lshl_b32", sT1, sKH, 3)); e(salu("s_add_u32", sT1, sT1, sT0))
        e(valu("v_lshrrev_b32", t[0], 3, lane)); e(valu("v_and_b32", t[1], 2, t[0])); e(valu("v_lshlrev_b32", t[1], 5, t[1]))
        e(valu("v_and_b32", t[2], 7, lane)); e(valu("v_lshlrev_b32", t[2], 4, t[2])); e(valu("v_xor_b32", t[2], t[2], t[1]))
        e(valu("v_add_u32", t[3], sT1, t[0]))
        if typ == "A":
            e(valu("v_mul_u32_u24", t[4], 3072, t[3])); e(valu("v_add_u32", vH, t[4], t[2]))
            e(salu("s_lshl_b32", sT0, sT0, 1))
            e(valu("v_lshrrev_b32", t[4], 2, lane)); e(valu("v_add_u32", t[4], sT0, t[4])); e(valu("v_mul_u32_u24", t[4], 3584, t[4]))
            e(valu("v_and_b32", t[5], 3, lane)); e(valu("v_lshlrev_b32", t[5], 4, t[5]))
            e(salu("s_lshl_b32", sT1, sKH, 5)); e(valu("v_xor_b32", t[5], sT1, t[5]))
            e(valu("v_add_u32", vG, t[4], t[5]))
            e(salu("s_lshl_b32", sS2, sT2, 5))
            e(smov(SWH[2], 512 * 3584)); e(smov(SWH[3], 0x20000))
        else:
            e(valu("v_mul_u32_u24", t[4], 3584, t[3])); e(valu("v_add_u32", vG, t[4], t[2]))
            e(valu("v_xor_b32", t[5], 32, t[2])); e(valu("v_add_u32", vU, t[4], t[5]))
            e(salu("s_mul_i32", sT0, sT0, 3584, scc_w=False))
            e(salu("s_lshl_b32", sS2, sT2, 5)); e(salu("s_add_u32", sS2, sS2, sT0))
        e(salu("s_mul_i32", sT0, sROT, 128 * 3584, scc_w=False)); e(salu("s_add_u32", sS2, sS2, sT0))
        e(valu("v_and_b32", vP4, 3, lane)); e(valu("v_lshlrev_b32", vP4, 2, vP4))
        e(valu("v_lshl_add_u32", vB2, t[0], 10, t[2]))
        if C.warm_all:
            ww = self.ww
            e(valu("v_min_u32", ww[0], 13, lane)); e(valu("v_lshlrev_b32", ww[0], 7, ww[0])); e(valu("v_lshlrev_b32", ww[1], 5, vP4))
            e(valu("v_and_b32", ww[2], 15 if typ == "A" else 7, lane)); e(valu("v_mul_u32_u24", ww[2], 3584, ww[2]))
        e(valu("v_lshlrev_b32", t[0], 7, r2))
        e(valu("v_and_b32", t[1], 3, lane)); e(valu("v_lshlrev_b32", t[1], 3, t[1])); e(valu("v_add_u32", t[0], t[0], t[1]))
        e(valu("v_and_b32", t[2], 2, r2))
        e(valu("v_or_b32", t[3], t[2], ub)); e(valu("v_lshlrev_b32", t[3], 5, t[3]))
        e(valu("v_lshlrev_b32", t[4], 16, hh)); e(valu("v_add_u32", t[4], t[4], t[0]))
        if typ == "A":
            for j in range(2):
                e(valu("v_xor_b32", t[6], 64 * j, t[3])); e(valu("v_add_u32", vTR[4 + j], t[6], t[4]))
            e(valu("v_lshlrev_b32", t[6], 3, hh)); e(valu("v_add_u32", t[6], t[6], r2)); e(valu("v_lshlrev_b32", t[6], 6, t[6]))
            e(valu("v_lshlrev_b32", t[7], 16, ub)); e(valu("v_add3_u32", t[6], t[6], t[7], t[1]))
            e(valu("v_lshlrev_b32", t[7], 5, ub)); e(valu("v_add_u32", vTR[0], t[6], t[7]))
            e(valu("v_xor_b32", t[7], 32, t[7])); e(valu("v_add_u32", vTR[1], t[6], t[7]))
        else:
            e(valu("v_lshlrev_b32", t[5], 10, ub)); e(valu("v_add_u32", t[5], t[5], t[4]))
            for tt in range(4):
                e(valu("v_xor_b32", t[6], 32 * tt, t[3])); e(valu("v_add_u32", vTR[tt], t[6], t[5]))
        def park(reg, s0_, s1_):
            names = [str(x) for x in self.parked]
            if str(reg) in names: e(valu("v_add_u32", t[7], s0_, s1_)); e(accw(a(aPARK + names.index(str(reg))), t[7]))
            else: e(valu("v_add_u32", reg, s0_, s1_))
        e(valu("v_lshlrev_b32", t[4], 9, hh)); e(valu("v_add_u32", t[4], t[4], t[0]))
        e(salu("s_lshl_b32", sT0, sKH, 6)); e(valu("v_xor_b32", t[6], sT0, t[3]))
        e(valu("v_add_u32", t[5], t[6], t[4])); e(valu("v_xor_b32", t[6], 64, t[5]))
        e(salu("s_lshl_b32", sT0, sKH, 16)); e(salu("s_lshl_b32", sT1, sKH, 11)); e(salu("s_add_u32", sT1, sT1, TB))
        for j in range(2):
            park(self.tr2[j], sT0, t[5 + j]); park(self.tr2t[j], sT1, t[5 + j])
        if typ == "A":
            e(valu("v_lshlrev_b32", t[4], 16, ub)); e(valu("v_lshlrev_b32", t[5], 15, hh)); e(valu("v_add3_u32", t[4], t[4], t[5], t[0]))
            e(valu("v_xor_b32", t[6], sW, t[2])); e(valu("v_lshlrev_b32", t[6], 5, t[6])); e(valu("v_add_u32", vW16, t[4], t[6]))
            e(salu("s_mul_i32", sT0, sW, 6144, scc_w=False)); e(salu("s_add_u32", sT0, sT0, TB)); e(valu("v_add_u32", vEX, sT0, vL16))
            e(valu("v_lshlrev_b32", t[4], 5, ub)); e(valu("v_add_u32", t[4], t[4], li)); e(valu("v_lshlrev_b32", t[4], 4, t[4]))
            e(valu("v_lshlrev_b32", t[5], 3, hh)); e(smov(sT0, TB)); e(valu("v_add3_u32", vHW, t[4], t[5], sT0))
            q = t[0]; bb = v(t[2].lo, 2)
            e(valu("v_and_b32", q, 31, lane)); e(valu("v_add_u32", t[1], 18, q))
            e(valu("v_mov_b32", t[4], 0x5555)); e(valu("v_mov_b32", t[5], 0))
            e(valu("v_lshlrev_b64", bb, t[1], v(t[4].lo, 2)))
            e(salu("s_or_b32", sT1, sRB, sW)); e(salu("s_cselect_b32", sT1, -1, 0, scc_w=False, scc_r=True))
            e(valu("v_and_b32", bb[0], sT1, bb[0]))
            e(valu("v_lshlrev_b32", t[1], 2, hh))
            e(valu("v_lshrrev_b32", bb[0], t[1], bb[0])); e(valu("v_lshrrev_b32", bb[1], t[1], bb[1]))
            e(valu("v_not_b32", bb[0], bb[0])); e(valu("v_not_b32", bb[1], bb[1]))
            e(accw(a(196), bb[0])); e(accw(a(197), bb[1]))
            e(valu("v_and_b32", t[2], 1, q)); e(valu("v_lshlrev_b32", t[2], 4, t[2]))
            e(valu("v_mov_b32", t[3], 0xffff)); e(valu("v_lshlrev_b32", vPM, t[2], t[3]))
            e(valu("v_bfe_i32", t[2], q, 4, 1)); e(valu("v_and_b32", vMHC, t[2], vPM)); e(valu("v_xor_b32", vMHP, vMHC, vPM))
        return o

    def scalars(self, typ):
        o = []; e = o.append
        e(salu("s_and_b32", sRT, sJ, 3)); e(salu("s_lshr_b32", sCT, sJ, 2)); e(salu("s_lshl_b32", sCT, sCT, 7))
        e(salu("s_lshl_b32", sT0, sXCD, 3)); e(salu("s_lshl_b32", sT1, sRT, 1)); e(salu("s_add_u32", sT0, sT0, sT1))
        e(salu("s_and_b32", sT1, sW, 1)); e(salu("s_add_u32", sT0, sT0, sT1))
        e(salu("s_lshl_b32", sFLR, sT0, 1)); e(salu("s_add_u32", sFLR, sFLR, sKH))
        e(salu("s_lshl_b32", sFLR, sFLR, 10)); e(salu("s_add_u32", sFLR, sFLR, WS_FLAG))
        e(salu("s_mul_i32", sTAG, sT0, 144 * 1024, scc_w=False))
        e(salu("s_lshl_b32", sOut, sT0, 15)); e(salu("s_and_b32", sOut, sOut, 0xffff7fff)); e(salu("s_add_u32", sOut, sOut, sCT))
        e(salu("s_lshr_b32", sT0, sM0B, 1)); e(salu("s_add_u32", sOut, sOut, sT0))
        e(salu("s_lshl_b32", sT1, sT1, 13)); e(salu("s_add_u32", sT1, sT1, sCT))
        for c_ in range(3):
            e(salu("s_mul_i32", sT0, sKH, SHIFT[c_] * 1024, scc_w=False)); e(salu("s_add_u32", sA2c[c_], sTAG, sT0))
            e(salu("s_lshl_b32", sT0, sT0, 4)); e(salu("s_add_u32", sB2c[c_], sT0, sT1))
        e(salu("s_lshl_b32", sM0T, sW, 10)); e(salu("s_add_u32", sM0T, sM0T, TB))
        e(salu("s_lshl_b32", sT0, sRB, 2)); e(salu("s_add_u32", sT0, sT0, sW))
        e(salu("s_mul_i32", sT1, sT0, 144, scc_w=False))
        e(salu("s_add_u32", sSt2, sT1, sT2)); e(salu("s_lshl_b32", sSt2, sSt2, 10))
        if typ == "A":
            e(salu("s_lshl_b32", sStF, sT2, 10)); e(salu("s_add_u32", sStF, sStF, sSt2)); e(salu("s_add_u32", sStF, sStF, 112 * 1024))
        else:
            e(salu("s_sub_u32", sStF, sSt2, 8192)); e(salu("s_sub_u32", sStH, sSt2, 4096))
        e(salu("s_lshl_b32", sT0, sT0, 1)); e(salu("s_lshr_b32", sT1, sIDX, 2)); e(salu("s_add_u32", sT0, sT0, sT1))
        e(salu("s_lshl_b32", sT0, sT0, 10))
        e(salu("s_and_b32", sT1, sIDX, 3)); e(salu("s_lshl_b32", sT1, sT1, 2))
        e(salu("s_add_u32", sT0, sT0, sT1)); e(salu("s_add_u32", sFLW, sT0, WS_FLAG))
        e(smov(SOUT[2], 0x200000)); e(smov(SOUT[3], 0x20000))
        return o

    def warm_ops(self, isA):
        ww = self.ww; nr = 16 if isA else 8
        o = [salu("s_and_b32", sT5, sW, 1 if isA else 3), salu("s_mul_i32", sT5, sT5, nr, scc_w=False),
             salu("s_lshl_b32", sXk, sRB, 5), salu("s_add_u32", sT5, sT5, sXk), salu("s_mul_i32", sT5, sT5, 3584, scc_w=False),
             salu("s_lshl_b32", sXk, sT2, 5), salu("s_add_u32", sT5, sT5, sXk)]
        o += [self.touch(ww[2], SWH, sT5)] if isA else [self.touch(ww[2], SWG_, sT5), self.touch(ww[2], SWU, sT5, 1024)]
        o1 = [salu("s_lshl_b32", sXk, sWG, 2), salu("s_add_u32", sXk, sXk, sW), salu("s_mul_i32", sT5, sXk, 14 * 128, scc_w=False),
              self.touch(ww[0], SWD, sT5)]
        o2 = [salu("s_lshl_b32", sT5, sXk, 9), self.touch(ww[1], SWO, sT5), self.touch(ww[0], SWS, sFLR, fl="sc1")]
        return [o1, o2 + o]

    def b2_soff(self, n, dst):
        ks, cls, st = step_info(n)
        return salu("s_add_u32", dst, sB2c[cls], (ks - 112 if cls == 2 else ks) * 16384)

    def code_touch(self):
        E = self.E
        if not C.touch_code: return
        t = v(201)
        E.line(f"s_getpc_b64 {sPC}")
        pcl = self.lab("pc"); E.label(pcl)
        E.emit(salu("s_and_b32", sT0, sJ, 1)); E.emit(salu("s_lshl_b32", sT0, sT0, 15))
        E.emit(valu("v_lshlrev_b32", t, 7, v(0))); E.emit(valu("v_add_u32", t, sT0, t))
        E.line(f"s_mov_b32 {sT0}, L_code_end-{pcl}-4")
        E.emit(valu("v_min_u32", t, sT0, t))
        E.emit(I(f"global_load_dword {aDUM0}, {t}, {sPC}", "vml", t.ids(), ()))

    def finish_stats(self, sm, sq, rinv, nb, t0, t1):
        e = self.E.emit
        e(valu("v_mul_f32", sm, sC512, sm))
        e(valu("v_mul_f32", t0, sm, sm))
        e(I(f"v_fma_f32 {sq}, {sq}, {sC512}, -{t0}", "valu", sq.ids() | t0.ids() | sC512.ids(), sq.ids()))
        e(valu("v_max_f32", sq, 0, sq))
        e(valu("v_cvt_pk_bf16_f32", t0, sm, sq))
        e(valu("v_and_b32", t1, sHI, t0))
        e(valu("v_add_f32", t1, 0x3727c5ac, t1))
        e(valu("v_cvt_pk_bf16_f32", t1, t1, t1)); e(valu("v_and_b32", t1, sHI, t1))
        e(valu("v_sqrt_f32", t1, t1))
        e(valu("v_cvt_pk_bf16_f32", t1, t1, t1)); e(valu("v_and_b32", t1, sHI, t1))
        e(valu("v_rcp_f32", rinv, t1))
        e(valu("v_lshlrev_b32", t0, 16, t0))
        e(I(f"v_mul_f32 {nb}, -{t0}, {rinv}", "valu", t0.ids() | rinv.ids(), nb.ids()))

    def norm_ops(self, reg, rinv, nb, k0=0):
        ops = []
        for d in range(4):
            lo = NT[(2 * (k0 + d)) % 8]; hi = NT[(2 * (k0 + d) + 1) % 8]; x = reg[d]
            ops += [valu("v_lshlrev_b32", lo, 16, x), valu("v_and_b32", hi, sHI, x),
                    valu("v_fma_f32", lo, lo, rinv, nb), valu("v_fma_f32", hi, hi, rinv, nb),
                    valu("v_cvt_pk_bf16_f32", x, lo, hi)]
        return ops

    def dots(self, reg, acc):
        ops = []
        for d in range(reg.n):
            ops.append(valu("v_dot2_f32_bf16", acc[d & 1], reg[d], sONE, acc[d & 1]))
            ops.append(valu("v_dot2_f32_bf16", acc[2 + (d & 1)], reg[d], reg[d], acc[2 + (d & 1)]))
        return ops

    def wrap(self, reg, q, span):
        return glue([scmp("s_cmp_eq_u32", sROT, 4 - q), salu("s_cselect_b32", sS2b, span, 0, scc_w=False, scc_r=True),
                     salu("s_sub_u32", reg, reg, sS2b)])

    def chunks(self, obj):
        k, j = obj
        if self.typ == "A":
            if k == "s1": return list(range(3 * (j % 7), 3 * (j % 7) + 3))
            return [6 + 2 * j, 7 + 2 * j]
        jj = j if k == "s1" else 16 + j
        return list(range(4 * (jj % 6), 4 * (jj % 6) + 4))

    def slab_dma(self, obj):
        L = self.L; k, j = obj; ch = self.chunks(obj); fl = C.w_fl
        def f(E): L.alloc(obj, ch)
        ops = [f, salu("s_add_u32", "m0", sM0B, 1024 * ch[0])]
        if k == "s1":
            st = 3072 if self.typ == "A" else 3584
            if self.typ == "A": ops += [dma(vH, SQKV, sS1, 1024 * u, obj, fl) for u in range(3)]
            else: ops += [dma(vG, SWG_, sS1, 0, obj, fl), dma(vU, SWU, sS1, 1024, obj, fl), dma(vG, SWG2, sS1, 2048, obj, fl), dma(vU, SWU2, sS1, 3072, obj, fl)]
            if j < 15: ops.append(salu("s_add_u32", sS1, sS1, 32 * st))
            if j % 4 == 3 and j < 15 and C.rot: ops.append(self.wrap(sS1, (j + 1) // 4, 512 * st))
        else:
            if self.typ == "A":
                ops += [salu("s_add_u32", sS2b, sS2, 16 * 3584 - 1024), dma(vG, SWH, sS2, 0, obj, fl), dma(vG, SWH, sS2b, 1024, obj, fl)]
            else:
                ops += [salu("s_add_u32", sS2b, sS2, 16 * 3584 - 2048), dma(vG, SWG_, sS2, 0, obj, fl), dma(vU, SWU, sS2, 1024, obj, fl),
                        dma(vG, SWG_, sS2b, 2048, obj, fl), dma(vU, SWU, sS2b, 3072, obj, fl)]
            if j < 7: ops.append(salu("s_add_u32", sS2, sS2, 64 * 3584))
            if j % 2 == 1 and j < 7 and C.rot: ops.append(self.wrap(sS2, (j + 1) // 2, 512 * 3584))
        return ops

    def b2_chunk(self, n):
        R_ = lambda lo, hi: list(range(lo, hi))
        if self.typ == "A":
            tab = R_(22, 32) + R_(22, 32) + R_(0, 12) + R_(32, 40) + R_(12, 22) + R_(22, 32) + R_(0, 12)
        else:
            tab = R_(24, 40) + R_(24, 40) + R_(0, 24) + R_(24, 32) + R_(0, 8)
        return tab[n]

    def b2_dma(self, n):
        L = self.L
        ks, cls, _ = step_info(n)
        ch = self.b2_chunk(n)
        def f(E): L.alloc(("b2", n), [ch])
        return [f, salu("s_add_u32", "m0", sM0B, 1024 * ch) if ch < 32 else salu("s_add_u32", "m0", sM0T, 4096 * (ch - 32)),
                self.b2_soff(n, sB2s),
                dma(vB2, SWO if cls == 2 else SWD, sB2s, 0, ("b2", n), C.b2_fl)]

    def bar(self, cover, m_done, lds_all=False, lds_tags=()):
        L = self.L
        def f(E):
            E.wait_tags(lds=list(lds_tags) + list(cover), vm=cover)
            if lds_all: E.wait_all_lds()
            if not (C.dbg_bar and cover and cover[0][0] == "b2"): E.barrier()
            L.visible |= set(cover); L.bar_m = m_done
        return f

    def acc2(self, t): return ACC2(t) if self.typ == "A" else ACC1(t)

    def acc1(self, t): return ACC1(t) if t < 6 else a(112 + 16 * (t - 6), 16)

    def seq(self, typ):
        out = []
        order = [2, 3, 4, 5, 0, 1] if typ == "A" else list(range(8))
        s1 = [(ks, t) for ks in range(28) for t in order] + [(ks, t) for t in order for ks in range(28, 32)]
        for ks, t in s1:
            obj = ("s1", ks // 2); base = (ks & 1) * 32768 + self.chunks(obj)[0] * 1024
            if True:
                if typ == "A":
                    out.append(dict(acc=ACC1(t), x=X(ks), sw=(t >= 4), obj=obj, addr=vTR[4 + (t & 1)],
                                    imm=base + (t >> 1) * 1024, st=512, first=(ks == 0)))
                else:
                    out.append(dict(acc=self.acc1(t), x=X(ks), sw=False, obj=obj, addr=vTR[t & 3], imm=base + (t >> 2) * 2048, st=512, first=(ks == 0)))
        nt = self.nt2
        k0 = self.k0
        s2 = [(ks, t) for ks in range(k0) for t in range(nt)] + [(ks, t) for t in range(nt) for ks in range(k0, 32)]
        for ks, t in s2:
            obj = ("s2", ks // 4); k = ks & 3
            out.append(dict(acc=self.acc2(t), x=X(ks), sw=False, obj=obj, addr=vTR[t],
                            imm=(k >> 1) * 32768 + self.chunks(obj)[0] * 1024 + (k & 1) * (1024 if typ == "A" else 2048),
                            st=256 if typ == "A" else 512, first=(ks == 0)))
        for n in range(72):
            iso = step_info(n)[1] == 2
            for j in ((1, 0) if n in (55, 71) else (0, 1)):
                ch = self.b2_chunk(n)
                out.append(dict(acc=(ACCS if iso else ACCD)[j], x=n, sw=False, obj=("b2", n),
                                addr=self.tr2[j] if ch < 32 else self.tr2t[j], j=j, imm=ch * 1024 if ch < 32 else (ch - 32) * 4096,
                                st=32768 if ch < 32 else 1024, first=(n in (0, 40))))
        for m, o in enumerate(out): self.L.last_use[o["obj"]] = m
        return out

    def wreads(self, m):
        o = self.SEQ[m]; L = self.L
        if o["obj"][0] == "b2" and o["obj"][1] < self.nF: return []
        def f(E): assert o["obj"] in L.visible, ("read of invisible", m, o["obj"])
        return [f, ds_tr(WF(m).sub(0, 2), o["addr"], o["imm"]), ds_tr(WF(m).sub(2, 2), o["addr"], o["imm"] + o["st"])]

    def main(self, m):
        o = self.SEQ[m]
        if isinstance(o["x"], int):
            def mk(peek):
                if peek and o["x"] not in self.a2slot: return None
                w = self.frag[(o["x"], o["j"])]["r"] if o["x"] < self.nF else WF(m)
                return mfma(o["acc"], w, self.a2slot[o["x"]]["r"], 0 if o["first"] else o["acc"])
            mn = dict(pre=[], m=mk, fix=[])
            if o["x"] < self.nF: mn["fix"].append(lambda E: self.pool.give(E, self.frag[(o["x"], o["j"])]))
            if m & 1: mn["fix"].append(lambda E: self.pool.give(E, self.a2slot[o["x"]]))
        else:
            A_, B_ = (o["x"], WF(m)) if o["sw"] else (WF(m), o["x"])
            mn = dict(pre=[], m=mfma(o["acc"], A_, B_, 0 if o["first"] else o["acc"]), fix=[])
        if m + C.D < len(self.SEQ): mn["fix"] += self.wreads(m + C.D)
        return mn

    def spin_check_tag(self):
        def f(E):
            ok = self.lab("tagok"); sp = self.lab("tagspin")
            E.emit(rfl(sTAG, vTAG))
            E.emit(scmp("s_cmp_eq_u32", sTAG, 0))
            E.line(f"s_cbranch_scc1 {sp}")
            E.label(ok)
            self.cold += [f"{sp}:", f"    s_mov_b32 {sSPIN}, 0", f"{sp}_l:",
                          f"    buffer_load_dword {vTAG}, off, {SDBG}, 0 sc1", f"    s_add_u32 {sSPIN}, {sSPIN}, 1",
                          "    s_waitcnt vmcnt(0)", f"    v_readfirstlane_b32 {sTAG}, {vTAG}",
                          f"    s_cmp_ge_u32 {sSPIN}, {C.spin_max}", f"    s_cbranch_scc1 {ok}",
                          f"    s_cmp_eq_u32 {sTAG}, 0", f"    s_cbranch_scc1 {sp}_l", f"    s_branch {ok}"]
        return f

    def poll_load(self, stage):
        return vload(self.vpl[stage], vP4, SWS, sFLR, 128 * stage, fl="sc1")

    def gate(self, stage):
        def f(E):
            ok = self.lab("gateok"); sp = self.lab("gatespin")
            self.stamp(f"g{stage}a")
            E.emit(vcmp("v_cmp_ne_u32", "vcc", sTAG, self.vpl[stage]))
            E.line(f"s_cbranch_vccnz {sp}")
            E.label(ok)
            ld = lambda r: f"    buffer_load_dword {r}, {vP4}, {SWS}, {sFLR} offen offset:{128 * stage} sc1"
            regs = [self.vpl[stage], vSP[0], vSP[1]][:C.npoll]; k = len(regs)
            self.cold += [f"{sp}:", f"    s_mov_b32 {sSPIN}, 0"] + [x for r in regs[:-1] for x in (ld(r), "    s_nop 15", "    s_nop 15")] + [f"{sp}_l:"]
            for q_ in range(k):
                self.cold += [ld(regs[(q_ + k - 1) % k]), f"    s_waitcnt vmcnt({k - 1})", f"    v_cmp_ne_u32 vcc, {sTAG}, {regs[q_]}", f"    s_cbranch_vccz {ok}"]
            self.cold += [f"    s_add_u32 {sSPIN}, {sSPIN}, 1", f"    s_cmp_ge_u32 {sSPIN}, {C.spin_max}", f"    s_cbranch_scc0 {sp}_l", f"    s_branch {ok}"]
            self.stamp(f"g{stage}b")
        return f

    def flag_store(self, stage, tags):
        def f(E):
            self.stamp(f"f{stage}a")
            E.wait_tags(vm=tags)
            self.stamp(f"f{stage}b")
            E.emit(vstore(vTAG, None, SWS, sFLW, 128 * stage, fl="sc1"))
        return f

    def a2_load(self, n):
        ks, cls, _ = step_info(n)
        o = []
        if self.a2base is None or self.a2base[0] != cls or not (0 <= ks - self.a2base[1] < 4):
            self.a2base = (cls, ks)
            o.append(salu("s_add_u32", sA2s, sA2c[cls], ks * 1024))
        imm = (ks - self.a2base[1]) * 1024
        kind = "AE" if n < 40 else "A"
        def f(E):
            x = self.a2slot[n] = self.pool.take(E, kind)
            if not (C.dbg_a2 and n >= C.dbg_a2): E.emit(vload(x["r"], vL16, SWS, sA2s, imm, fl=C.a2_fl))
        f.vm = True; f.ready = lambda E: self.pool.find(E, kind) is not None
        return o + [f]

    def pre_read(self, n):
        out = []
        for m in (self.M3 + 2 * n, self.M3 + 2 * n + 1):
            o = self.SEQ[m]
            def f(E, o=o):
                assert o["obj"] in self.L.visible
                x = self.frag[(n, o["j"])] = self.pool.take(E, "R")
                E.emit(ds_tr(x["r"].sub(0, 2), o["addr"], o["imm"], tag=("fr", n)))
                E.emit(ds_tr(x["r"].sub(2, 2), o["addr"], o["imm"] + o["st"], tag=("fr", n)))
            f.slots = 2
            out.append(f)
        return out

    def raw_load(self, n):
        ks, cls, _ = step_info(n)
        def f(E):
            x = self.rawslot[n] = self.pool.take(E, "R")
            E.emit(vload(x["r"], vB2, SWO if cls == 2 else SWD, sXo, 0, fl=C.b2_fl))
        f.vm = True; f.ready = lambda E: self.pool.find(E, "R") is not None
        return [self.b2_soff(n, sXo), f]

    def h_epilogue(self, T, sbase, imm, tag):
        ops = [valu("v_mul_f32", T[r], T[r], T[r + 8]) for r in range(8)]
        ops += [valu("v_cvt_pk_bf16_f32", T[r], T[2 * r], T[2 * r + 1]) for r in range(4)]
        if not (C.dbg_st and tag == "h1"): ops.append(vstore(T.sub(0, 4), vL16, SWS, sbase, imm, tag, C.st_fl))
        return ops

    def body(self, typ):
        E = self.E; e = E.emit
        self.L = L = LDSMap()
        E.m0_owner = None; E.fifo = None
        self.typ = typ
        isA = typ == "A"
        nt1, nt2 = (6, 2) if isA else (8, 4)
        self.nt2 = nt2; self.k0 = k0 = 24 if isA else 20
        M2 = self.M2 = 32 * nt1; M3 = self.M3 = M2 + 32 * nt2
        self.nF = 10 if isA else 16
        self.tr2 = [vTR[2], vTR[3]] if isA else [vEX, vHW]
        self.tr2t = vTR2T if isA else [vPM, vMHC]
        self.parked = self.tr2 + self.tr2t if isA else []
        self.frag = {}
        self.SEQ = self.seq(typ)
        self.a2base = None
        self.cold = []
        self.lane = v(200); self.vx = [v(204 + g) for g in range(4)]; self.hs = [v(196), v(197)]
        self.xa = xa = [v(216 + q) for q in range(4)]; self.acc = acc = [v(220 + q) for q in range(4)]
        self.ha = ha = [v(144 + i) for i in range(5)]; self.hacc = hacc = [v(149 + i) for i in range(4)]
        self.ww = [vU, vTR[2], vTR[3]] if isA else [vH, vW16, vHX]
        self.vpl = vPL + [self.ww[0]]
        self.stamp("t0")
        if C.stamps: E.line("s_memrealtime s[0:1]")
        first = self.setup_first(typ)
        rest = self.consts(typ)
        E.emits(first)
        k = max(0, C.npre - len(first))
        while SCC in rest[k].r: k += 1
        E.emits(rest[:k]); rest = rest[k:]
        E.line("s_waitcnt lgkmcnt(0)")
        self.stamp("karg")
        def inplace(d, size, other, shift=0):
            o = []
            if other is not None and shift: o += [salu("s_sub_u32", other[0], d[2], shift), salu("s_subb_u32", other[1], d[3], 0, scc_r=True)]
            elif other is not None: o += [smov(other[0], d[2]), smov(other[1], d[3])]
            return o + [smov(d[2], size), smov(d[3], 0x20000)]
        E.emits(inplace(SX, 0x200000, SQKV if isA else None))
        if isA: E.emits(inplace(SDBG, 256, SWS))
        def xd(sl):
            o = [salu("s_add_u32", "m0", sM0B, 4096 * sl), salu("s_add_u32", sA2s, sXo, sXk)]
            o += [dma(self.vx[g], SX, sA2s, 1024 * g, tag=("x", sl), fl=C.x_fl) for g in range(4)]
            if sl < 7: o += [salu("s_add_u32", sXk, sXk, 128), salu("s_and_b32", sXk, sXk, 1023)]
            return o
        if isA:
            for ee in range(2):
                for g in range(2):
                    e(salu("s_add_u32", "m0", sS2b, TB + 2048 * ee + 1024 * g))
                    e(dma(self.hs[g], SX, sHo, 0, tag="halo", fl=C.x_fl))
                if ee == 0: e(salu("s_add_u32", sHo, sHo, 128))
            lskip = self.lab("noep")
            e(salu("s_or_b32", sSPIN, sWG, sW))
            E.line(f"s_cbranch_scc1 {lskip}")
            E.line(f"s_mov_b32 {sSPIN}, {WS_EPOCH}")
            E.line(f"buffer_load_dword {vPOLL}, off, {SWS}, {sSPIN} sc1")
            E.label(lskip)
        E.emits(xd(0)); E.emits(xd(1))
        nx = 2
        if isA:
            if C.touch_w0: e(self.touch(vTW, SQKV, sT5))
            e(scmp("s_cmp_ge_u32", sW, 2))
            e(salu("s_cselect_b32", SWH[0], SWG_[2], SWG_[0], scc_w=False, scc_r=True))
            e(salu("s_cselect_b32", SWH[1], SWG_[3], SWG_[1], scc_w=False, scc_r=True))
        else:
            E.emits([salu("s_sub_u32", SWU2[0], SWG_[2], 2944), salu("s_subb_u32", SWU2[1], SWG_[3], 0, scc_r=True),
                     salu("s_sub_u32", SWG2[0], SWG_[0], 1920), salu("s_subb_u32", SWG2[1], SWG_[1], 0, scc_r=True)])
            E.emits(inplace(SWG_, 512 * 3584, SWU, 1024))
            if C.touch_w0: e(self.touch(vTW, SWG_, sT5)); e(self.touch(vTW, SWU, sT5, 1024))
            if C.x2early: E.emits(xd(2)); nx = 3
        self.stamp("issued")
        late_srd = ([] if isA else inplace(SDBG, 256, SWS)) + inplace(SWD, 1792 * 1024, SOUT) + inplace(SWO, 512 * 1024, None)
        E.emits(rest)
        if C.stamps: E.line("v_accvgpr_write_b32 a198, s0")
        self.stamp("rest")
        if C.pads:
            E.line("s_mov_b64 exec, 0")
            for w_ in (1, 2, 3):
                E.line(f"s_cmp_eq_u32 {sW}, {w_}"); E.line(f"s_cbranch_scc1 L_pad{typ}_{w_}")
            E.line(f"s_branch L_pad{typ}_0")
            E.label(f"L_back{typ}")
            E.line("s_mov_b64 exec, -1")
            E.out.append(f";PADS_FROM {typ}")
        self.stamp("pads")
        if nx == 2 and not isA: E.emits(xd(2)); nx = 3
        if isA:
            hx = v(128, 16); pr = v(154, 2); tp = v(156, 2); pp = v(158, 8)
            E.wait_tags(vm=["halo"])
            self.epoch_publish()
            for ee in range(2):
                for b in range(2): e(ds_rd(hx.sub(4 * (2 * ee + b), 4), ha[b], 2048 * ee))
            E.emits(xd(2)); nx = 3
            E.emits(self.dots(hx, hacc))
            e(valu("v_add_f32", pr[0], hacc[0], hacc[1])); e(valu("v_add_f32", pr[1], hacc[2], hacc[3]))
            for sw in (swap16, swap32):
                e(valu("v_mov_b32", tp[0], pr[0])); e(valu("v_mov_b32", tp[1], pr[1]))
                e(sw(pr[0], tp[0])); e(sw(pr[1], tp[1]))
                e(valu("v_add_f32", pr[0], pr[0], tp[0])); e(valu("v_add_f32", pr[1], pr[1], tp[1]))
            e(ds_wr(ha[3], pr, 0, tag="hp"))
        for sl in range(9):
            if sl < 8:
                E.wait_tags(vm=[("x", sl)])
                self.stamp(f"x{sl}")
                for q in range(4): e(ds_rd(X(4 * sl + q), xa[q], 4096 * sl))
                if nx < 8: E.emits(xd(nx)); nx += 1
            if isA and sl == 0:
                E.wait_tags(lds=["hp"]); E.barrier()
                for w_ in range(4): e(ds_rd(pp.sub(2 * w_, 2), ha[2], 4096 * w_))
            if isA and sl == 1:
                e(valu("v_add_f32", pr[0], pp[0], pp[2])); e(valu("v_add_f32", pr[1], pp[1], pp[3]))
                e(valu("v_add_f32", tp[0], pp[4], pp[6])); e(valu("v_add_f32", tp[1], pp[5], pp[7]))
                e(valu("v_add_f32", pr[0], pr[0], tp[0])); e(valu("v_add_f32", pr[1], pr[1], tp[1]))
                self.finish_stats(pr[0], pr[1], pp[0], pp[1], tp[0], tp[1])
            if isA and 1 <= sl <= C.hn_early:
                E.emits(self.norm_ops(hx.sub(4 * (sl - 1), 4), pp[0], pp[1]))
                e(ds_wr(ha[4], hx.sub(4 * (sl - 1), 4), 1024 * (sl - 1), tag="hxw"))
            if sl > 0:
                E.emits(self.dots(v(16 * (sl - 1), 16), acc))
                L.xread.add(sl - 1)
                for j in {C.w0at: [0], C.w0at + 1: [1], 6: [2], 7: [3] if isA else []}.get(sl, []):
                    for it in self.slab_dma(("s1", j)): run_item(E, it)
        self.stamp("xdone")
        e(valu("v_add_f32", acc[0], acc[0], acc[1])); e(valu("v_add_f32", acc[2], acc[2], acc[3]))
        e(valu("v_mov_b32", acc[1], acc[0])); e(valu("v_mov_b32", acc[3], acc[2]))
        e(swap32(acc[0], acc[1])); e(swap32(acc[2], acc[3]))
        e(valu("v_add_f32", acc[0], acc[0], acc[1])); e(valu("v_add_f32", acc[2], acc[2], acc[3]))
        self.finish_stats(acc[0], acc[2], vRINV, vNB, acc[1], acc[3])
        npn = C.npre_normA if isA else C.npre_norm
        if isA:
            for f_ in range(C.hn_early, 4):
                E.emits(self.norm_ops(hx.sub(4 * f_, 4), pp[0], pp[1]))
                e(ds_wr(ha[4], hx.sub(4 * f_, 4), 1024 * f_, tag="hxw"))
        for ks in range(npn - 1): E.emits(self.norm_ops(X(ks), vRINV, vNB))
        self.bar([("s1", 0), ("s1", 1)], -1, lds_tags=["hxw"])(E)
        self.stamp("bx")
        for m in range(C.D):
            for it in self.wreads(m): run_item(E, it)
        E.emits(self.norm_ops(X(npn - 1), vRINV, vNB))
        self.stamp("s1"); self.stamp("b0")

        mains = [self.main(m) for m in range(len(self.SEQ))]
        E.gap = 0; E.fifo = Fifo(); E.fifo.p = E.pos; E.fifo.n = 4
        D = C.D
        qN = Q("norm"); qD = Q("dma"); qH = Q("halo"); qB = Q("b2"); qW = Q("raw", hard=False); qU = Q("dump", vm_age=0)
        qE = Q("epi"); qE2 = Q("epi2", hard=False, top=True); qR = Q("restore"); qFl = Q("flag", top=True)
        self.pool = pool = Pool(); self.a2slot = {}; self.rawslot = {}; self.mark = {}
        started = lambda q: (len(q.items) > 0 and q.empty())
        pool.add(a(200, 56), "AR")
        pool.add(a(192, 4), "A", lambda: started(qR))
        if isA:
            pool.add(a(80, 32), "AR")
            pool.add(a(112, 24), "AR")
            pool.add(a(160, 32), "A", lambda: self.mark.get("masks"))
            pool.add(a(48, 32), "A", lambda: started(qE2))
            pool.add(a(136, 24), "A", lambda: started(qE)); pool.add(v(128, 96), "A", lambda: started(qE))
            rawl = list(range(40, 72))
        else:
            pool.add(a(144, 16), "AR"); pool.add(a(160, 32), "A")
            pool.add(a(48, 64), "AR")
            pool.add(a(112, 32), "AR", lambda: started(qE)); pool.add(v(192, 32), "AR", lambda: started(qE))
            pool.add(v(128, 64), "A", lambda: started(qE2))
            for k in list(range(8)) + [12, 13, 14, 15]: pool.add(X(k), "E", lambda k=k: E.gap > M2 + 4 * k + 3)
            rawl = list(range(44, 72))
        rawit = {}
        if C.raw:
            for n in rawl[:C.nrawA if isA else C.nrawB]:
                rawit[n] = self.raw_load(n)
                qW.adds(rawit[n], earliest=C.raw0A if isA else C.raw0B, deadline=M3 + 16 * (n // 8) - C.D - 40)
        def place(n):
            def f(E):
                need = M3 + 16 * (n // 8) - C.D
                if n in self.rawslot:
                    ch = self.b2_chunk(n); x = self.rawslot[n]
                    qU.add(lambda E: L.alloc(("b2", n), [ch]), deadline=need - 3)
                    if not C.dbg_dump: qU.add(ds_wr(vWQ, x["r"], 1024 * ch, tag=("b2", n)), deadline=need - 3)
                    qU.add(lambda E: pool.give(E, x), deadline=need - 3)
                else:
                    for it in rawit.get(n, []): it.dead = True
                    b2_add(n, E.gap)
            return f
        qG = Q("frag")
        def b2_add(n, gap, need=None):
            need = need or M3 + 16 * (n // 8) - D
            qB.adds(self.b2_dma(n), earliest=gap, deadline=need - C.b2lead - 2 * (7 - n % 8), hard=False)
            qB.add(lambda E: None, earliest=gap, deadline=max(need - 10, gap + 2))
        def frag_plan(g, step_, groups):
            b0 = C.b2gA if isA else C.b2gB
            cover = []; tags = []; gap = step_ * g - D
            for k, pg in enumerate(groups):
                if g == b0 + k:
                    for n in pg: b2_add(n, gap + 4, gap + 2 * step_)
                if g == b0 + k + 2:
                    cover += [("b2", n) for n in pg]
                    for n in pg:
                        qG.adds(self.pre_read(n), earliest=gap, deadline=gap + step_ - 3); L.last_use[("b2", n)] = gap + step_ - 1
                if g == b0 + k + 3:
                    tags += [("fr", n) for n in pg]
                    for n in pg: b2_add(n + self.nF, gap)
            return cover, tags
        def barrier(gap, cover, name, **kw):
            mains[gap]["npre"] = 2
            mains[gap]["pre"] += [lambda E: self.stamp(name + "a"), self.bar(cover, gap - 1, **kw), lambda E: self.stamp(name)]
        for ks in range(npn, 32):
            qN.adds(self.norm_ops(X(ks), vRINV, vNB, ks * 4), earliest=max(0, nt1 * (ks - C.nahead) - 1),
                    deadline=nt1 * ks if ks < 28 else nt1 * 28 + ks - 28)
        for j in (range(4, 7) if isA else range(3, 5)): qD.adds(self.slab_dma(("s1", j)), earliest=0, deadline=17 if isA else 20)
        qK = Q("scal")
        qK.adds(late_srd + self.scalars(typ), earliest=0, deadline=(24 if isA else 32) - D + 14)
        L.last_use[("T",)] = M2 + 40 if isA else -1
        tagload = vload(vTAG, None, SDBG, 0, fl="sc1")
        warm = []
        if C.touch_b2:
            tb = self.ww[0]
            warm = [[valu("v_lshlrev_b32", tb, 6, vL16), valu("v_and_b32", tb, 0x7c00, tb), valu("v_add_u32", tb, sCT, tb),
                     salu("s_lshl_b32", sRT, sRT, 2), salu("s_add_u32", sRT, sRT, sW),
                     salu("s_lshl_b32", sT5, sRT, 14), self.touch(tb, SWD, sT5)],
                    [salu("s_lshr_b32", sT5, sRT, 1), salu("s_lshl_b32", sT5, sT5, 2), salu("s_add_u32", sT5, sT5, sRT),
                     salu("s_add_u32", sT5, sT5, 12), salu("s_lshl_b32", sT5, sT5, 15), self.touch(tb, SWD, sT5)],
                    [salu("s_lshl_b32", sT5, sRT, 15), self.touch(tb, SWO, sT5)]]
        def slab(jj): return ("s1", jj) if jj < 16 else ("s2", jj - 16)
        if isA:
            for g in range(1, 9):
                gap = 24 * g - D
                cv, tg = frag_plan(g, 24, [range(0, 5), range(5, 10)])
                barrier(gap, ([("s1", 2 * g), ("s1", 2 * g + 1)] if g < 8 else [("s2", j) for j in range(4)]) + cv, f"b{g}", lds_tags=tg)
                its = []
                for j in (2 * g + 4, 2 * g + 5):
                    if 7 <= j < 16: its += self.slab_dma(("s1", j))
                for j in {6: [0, 1, 2], 7: [3, 4, 5], 8: [6, 7]}.get(g, []): its += self.slab_dma(("s2", j))
                k_ = g - (C.warm_gA if isA else C.warm_gB)
                if k_ in (0, C.warm_sp) and C.warm_all:
                    qD.adds(its, earliest=gap, deadline=gap + 16); its = []
                    wo = self.warm_ops(isA)
                    qK.adds(wo[0] + wo[1] if C.warm_sp == 0 else wo[k_ > 0], earliest=gap + 12, deadline=gap + 30)
                if C.b2g <= g < C.b2g + 3 and warm: its += warm[g - C.b2g]
                if g == 6: its.append(tagload)
                if g == C.warm_gA + C.warm_sp: qK.adds([accr(self.tr2[n_], a(aPARK + n_)) for n_ in range(2)], earliest=gap + 12, deadline=gap + 40)
                qD.adds(its, earliest=gap, deadline=gap + (14 if g == 7 else 23))
            for j in range(16):
                g0 = max(0, 12 * j - D + 1)
                b = j & 1; ch = self.chunks(("s1", j))[0] * 1024
                its = [ds_rd(aXH[b], vHX, 1024 * j)]
                for u in range(2):
                    its += [ds_tr(aW16[b][u].sub(0, 2), vW16, ch + 1024 * (1 + u)), ds_tr(aW16[b][u].sub(2, 2), vW16, ch + 1024 * (1 + u) + 512)]
                qH.adds(its, earliest=g0, deadline=12 * j + 4)
                qH.add(mfma(aHACC[0], aW16[b][0], aXH[b], 0 if j == 0 else aHACC[0], "16x16x32"), earliest=g0, deadline=12 * j + 8)
                qH.add(mfma(aHACC[1], aXH[b], aW16[b][1], 0 if j == 0 else aHACC[1], "16x16x32"), earliest=12 * j + 7, deadline=12 * j + 10)
            gap = M2 + 32 - D
            barrier(M2 + C.exbar, [], "ex", lds_tags=["exw"])
            barrier(gap, [("s2", j) for j in range(4, 8)], "mid")
            for n in range(20, 32): b2_add(n, gap)
            first_use = {0: list(range(32, 46)), 1: list(range(46, 50))}
        else:
            for g in range(1, 12):
                gap = 32 * g - D - (8 if g == 11 else 0)
                cv, tg = frag_plan(g, 32, [range(0, 8), range(8, 16)])
                barrier(gap, [slab(jj) for jj in {10: (20, 21, 22), 11: (23,)}.get(g, (2 * g, 2 * g + 1))] + cv, f"b{g}", lds_tags=tg)
                its = []
                for jj in {8: (19,), 9: (20, 21, 22)}.get(g, (2 * g + 3, 2 * g + 4)):
                    if jj < 24: its += self.slab_dma(slab(jj))
                k_ = g - (C.warm_gA if isA else C.warm_gB)
                if k_ in (0, C.warm_sp) and C.warm_all:
                    qD.adds(its, earliest=gap, deadline=gap + 16); its = []
                    wo = self.warm_ops(isA)
                    qK.adds(wo[0] + wo[1] if C.warm_sp == 0 else wo[k_ > 0], earliest=gap + 12, deadline=gap + 30)
                if C.b2g <= g < C.b2g + 3 and warm: its += warm[g - C.b2g]
                if g == 6: its.append(tagload)
                for n in {10: range(32, 36), 11: range(36, 44)}.get(g, []): b2_add(n, gap)
                qD.adds(its, earliest=gap, deadline=gap + {1: 28, 9: 22, 10: 7}.get(g, 18))
            first_use = {0: list(range(44, 48)), 1: list(range(48, 56))}
        def xfree(reg): return M2 + nt2 * ((reg.lo + reg.n - 1) // 4) + nt2 - 1
        qFl.add(self.spin_check_tag(), earliest=M2 - 8, deadline=M2 - 4)
        def after(q, stage, tags):
            def arm(E):
                f = self.flag_store(stage, tags); p0 = E.pos; g0_ = E.gap
                fd = C.flagd if stage in (0, 2) else C.flagl
                f.ready = lambda E: ((E.pos - p0) * 4 + (E.gap - g0_) * 8 >= fd or (E.gap - g0_) * 33 >= fd
                                     or not any(x[2] in tags for x in E.vq))
                qFl.add(f, earliest=E.gap)
            q.add(arm)
        if not isA:
            for t in range(8):
                T = ACC1(t if t < 6 else t - 2)
                its = [accr(T[r], self.acc1(t)[r]) for r in range(16)] if t >= 6 else []
                qE.adds(its + self.h_epilogue(T, sStF if t < 4 else sStH, 1024 * (t & 3), "h1"), earliest=nt1 * 28 + 4 * t + 3,
                        deadline=M2 - 1 if t < 4 else nt1 * 28 + 4 * t + 8, hard=(t < 4))
            after(qE, 0, ["h1"])
        else:
            self.attention(qE, xfree)
            n0 = self.exw_check[1]; nn = len(qE.items)
            for k in range(n0, nn):
                it, ear, dl, hd = qE.items[k]
                qE.items[k] = (it, ear, int(M2 + 8 + (M3 + C.att_end - M2 - 8) * (k - n0) / (nn - n0)), False)
            after(qE, 3, ["o"])
        schedule(E, mains[:M2], [qN, qK, qD, qH, qG, qB, qW, qFl, qE], lambda g: (C.cap1A if isA else C.cap1B) if g < nt1 * 28 else C.cap1t,
                 0, flush=False, vm_gap=C.vm1)
        assert qN.empty() and qH.empty()
        self.stamp("s2")

        qL = Q("a2"); qF = Q("fin", vm_age=60); qP = Q("poll", top=True)
        g0 = M3 if isA else M3 + C.gate0B
        for n_, dst in enumerate(self.parked):
            if dst.lo < 128: qR.add(accr(dst, a(aPARK + n_)), earliest=xfree(dst), deadline=min(g0, M3 - D) - 2)
        qR.add(valu("v_add_u32", vWQ, sM0B, vL16), earliest=xfree(vWQ), deadline=min(g0, M3 - D) - 2)
        tail = M2 + k0 * nt2; tl = 32 - k0
        for t in range(nt2):
            its = ([accr(E2T[r], ACC2(t)[r]) for r in range(16)] if isA else []) + self.h_epilogue(E2T if isA else ACC1(t), sSt2, 1024 * t, "h2" if t < 2 else "h3")
            qE2.adds(its, earliest=tail + tl * t + tl - 1, deadline=tail + tl * t + tl + 8)
            if t == 1: after(qE2, 1 if isA else 2, ["h2"])
            if t == 3: after(qE2, 4, ["h3"])
        mains[M3]["pre"].append(lambda E: self.stamp("p2"))
        for n_ in range(72): mains[M3 + 2 * n_]["fix"].insert(0, lambda E, n_=n_: self.stamp(f"n{n_}"))
        gates = {0: g0, 32: M3 + 2 * (32 - C.la1), 40: M3 + 2 * (40 - C.la2), 56: M3 + 2 * (56 - C.la3),
                 64: M3 + 2 * (64 - (C.la4A if isA else C.la4B))}
        def chk_free(q):
            def f(E): assert q.empty(), ("A2 slot still in use", q.name, E.gap)
            f.ready = lambda E: q.empty()
            return f
        cur = 0
        for n in range(72):
            if n in gates:
                cur = gates[n]; st = step_info(n)[2]; n0 = n
                qP.add(self.poll_load(st), earliest=cur - C.polld, deadline=cur - C.polld + 2)
                qL.add(self.gate(st), earliest=cur, deadline=cur + 1)
                if n == 0 and isA: qP.items[-1] = (qP.items[-1][0], M3 + 1, M3 + 1, False)
            its = self.a2_load(n)
            qL.adds(its, earliest=cur, deadline=M3 + 2 * n - C.a2lead, hard=False)
            qL.add(lambda E: None, earliest=cur, deadline=max(M3 + 2 * n - 6, M3 + 1 if isA else 0))
        if isA:
            def boundary(E):
                qs = [qFl, qE2, qE, qL, qB, qW, qU, qP]
                def flags():
                    while not qFl.empty() and (not hasattr(qFl.head()[0], "ready") or qFl.head()[0].ready(E)): step(E, qFl, qs)
                def one_vm(q):
                    while not q.empty() and q.head()[1] <= M3:
                        it = q.head()[0]
                        if hasattr(it, "ready") and not it.ready(E): return False
                        step(E, q, qs)
                        if is_vm(it) and not getattr(it, "dead", False): return True
                    return False
                left = len(qE.items) - qE.n; base = qE.n
                polled = gated = False; lastv = E.pos; nl = 0
                while not (qE2.empty() and qE.empty()):
                    a_, b_ = (qE2, qE) if not qE2.empty() else (qE, qE2)
                    h = a_.head()[0]
                    if not callable(h) and E.nops(h) > 0 and not b_.empty() and (callable(b_.head()[0]) or E.nops(b_.head()[0]) == 0): a_ = b_
                    elif not callable(h) and E.nops(h) > 0 and not qU.empty(): a_ = qU
                    step(E, a_, qs)
                    flags()
                    fr = (qE.n - base) / max(1, left)
                    if not polled and fr >= C.att_gate - 0.45: step(E, qP, qs); polled = True
                    if not gated and fr >= C.att_gate: step(E, qL, qs); gated = True
                    if E.pos - lastv >= 16:
                        if (gated and nl < 14 and one_vm(qL)): nl += 1; lastv = E.pos
                        elif one_vm(qB) or one_vm(qW): lastv = E.pos
                if not polled: step(E, qP, qs)
                if not gated: step(E, qL, qs)
                while nl < 12 and one_vm(qL): nl += 1; flags()
                E.pos += 1000; flags(); E.pos -= 1000
            mains[M3]["pre"].insert(0, boundary)
        b2q = list(range(50 if isA else 56, 72))
        prevpg = lambda n: max(k for k in range(n) if self.b2_chunk(k) == self.b2_chunk(n))
        for c in range(9):
            gap = M3 + 16 * c - D
            barrier(gap, [("b2", n) for n in range(8 * c, 8 * c + 8)] + (["xt"] if c == 7 else []), f"c{c}",
                    lds_tags=["sw", "xr"] if c == 8 else ())
            for n in first_use.get(c, []): mains[gap]["pre"].append(place(n))
            while b2q and L.last_use[("b2", prevpg(b2q[0]))] <= gap - 1: mains[gap]["pre"].append(place(b2q.pop(0)))
        assert not b2q
        RD = v(0, 16); SF = v(16, 16); XF = v(48, 16); XR = v(224, 8); tt = v(32, 4)
        vRW = vTR[0]; vRR = vTR[1]; vOW = vRINV; vOR = vNB; vOO = vTR[4]; vXD = vTR[5]; vXA = vG
        qF.add(chk_free(qE), earliest=M3 + 30); qF.add(chk_free(qE2), earliest=M3 + 30)
        its = [valu("v_lshrrev_b32", tt[0], 4, vL16), valu("v_and_b32", tt[1], 31, tt[0]),
               valu("v_lshrrev_b32", tt[2], 5, tt[0]), valu("v_lshlrev_b32", tt[2], 3, tt[2]),
               salu("s_lshr_b32", sT0, sM0B, 3), salu("s_add_u32", sT0, sT0, TB), valu("v_add_u32", vRW, sT0, vL16),
               valu("v_xor_b32", vRR, 8192, vRW),
               salu("s_and_b32", sT0, sW, 1), salu("s_lshl_b32", sT1, sT0, 12), salu("s_add_u32", sT1, sT1, TB + 16384),
               valu("v_lshlrev_b32", tt[3], 7, tt[1]), valu("v_add3_u32", vXA, tt[3], tt[2], sT1),
               valu("v_and_b32", tt[3], 7, tt[0]), valu("v_lshlrev_b32", tt[3], 4, tt[3]),
               salu("s_lshl_b32", sT1, sKH, 6), valu("v_xor_b32", tt[3], sT1, tt[3]), valu("v_add_u32", vXA, vXA, tt[3]),
               salu("s_mul_i32", sT0, sT0, 32 * 144, scc_w=False), salu("s_add_u32", sT0, sT0, sT1), salu("s_add_u32", sT0, sT0, TB),
               valu("v_mul_u32_u24", tt[1], 144, tt[1]), valu("v_add3_u32", vOW, tt[1], tt[2], sT0),
               valu("v_lshrrev_b32", tt[1], 3, tt[0]), valu("v_and_b32", tt[2], 0x70, vL16),
               valu("v_lshl_add_u32", vOO, tt[1], 10, tt[2]),
               valu("v_lshlrev_b32", tt[3], 4, tt[1]), valu("v_xor_b32", vXD, vOO, tt[3]),
               salu("s_mul_i32", sT0, sW, 16 * 144, scc_w=False), salu("s_add_u32", sT0, sT0, TB),
               valu("v_mul_u32_u24", tt[1], 144, tt[1]), valu("v_add3_u32", vOR, tt[1], tt[2], sT0),
               salu("s_lshl_b32", sXk, sW, 11), salu("s_add_u32", sXk, sXk, TB + 16384), salu("s_add_u32", sXs, sOut, 8192)]
        its += [vload(XR.sub(0, 4), vXD, SX, sOut), vload(XR.sub(4, 4), vXD, SX, sXs), valu("v_add_u32", vXD, sXk, vL16)]
        qF.adds(its, earliest=M3 + 30, deadline=M3 + 64)
        qF.adds([ds_wr(vXD, XR.sub(4 * i, 4), 1024 * i, tag="xt") for i in range(2)], earliest=M3 + 96 - D, deadline=M3 + 112 - D - 2)
        its = []
        for a_ in range(4):
            its += [valu("v_xor_b32", tt[a_], 16 * a_, vXA), ds_rd(XR.sub(2 * a_, 2), tt[a_], 0, tag="xr")]
        qF.adds(its, earliest=M3 + 112 - D, deadline=M3 + 128 - D - 1)
        qF.adds([ds_wr(vRW, ACCS[1].sub(4 * i, 4), 1024 * i, tag="sw") for i in range(4)], earliest=M3 + 111, deadline=M3 + 128 - D)
        its = []
        for r in range(8):
            its += [valu("v_lshlrev_b32", XF[2 * r], 16, XR[r]), valu("v_and_b32", XF[2 * r + 1], sHI, XR[r])]
        qF.adds(its, earliest=M3 + 112)
        its = [ds_rd(SF.sub(4 * i, 4), vRR, 1024 * i) for i in range(4)]
        its += [valu("v_add_f32", SF[r], SF[r], ACCS[0][r]) for r in range(16)]
        CK = v(38, 2); C1 = v(40, 2)
        its += [valu("v_mov_b32", CK[0], 0xbfb8aa3b), valu("v_mov_b32", CK[1], 0xbfb8aa3b), valu("v_mov_b32", C1[0], 1.0), valu("v_mov_b32", C1[1], 1.0)]
        qF.adds(its, earliest=M3 + 128 - D)
        cap2 = C.cap2A if isA else C.cap2B
        def capf(g):
            if not isA and not qE.empty(): return C.cap2h
            if g < tail + tl - 1: return cap2
            if g < M3: return C.cap2t
            if not qE2.empty(): return 40
            return C.cap3 if qE.empty() else C.cap3x
        schedule(E, mains[M2:], [qFl, qP, qD, qG, qL, qB, qW, qU, qR, qE2, qE, qF], capf, M2, flush=False,
                 vm_gap=lambda g: C.vm1 if g < M3 else C.vm3)
        assert qL.empty() and qD.empty() and qB.empty() and qE.empty() and qE2.empty() and qFl.empty()
        self.stamp("lastm")
        while not qF.empty():
            it = qF.head()[0]; qF.n += 1; run_item(E, it)
        for i in range(4): e(ds_wr(vRW, ACCD[1].sub(4 * i, 4), 16384 + 1024 * i, tag="dw"))
        E.wait_tags(lds=["dw"]); E.barrier()
        self.stamp("sbar")
        for i in range(4): e(ds_rd(RD.sub(4 * i, 4), vRR, 16384 + 1024 * i))
        G = ACCS[1]
        def pk(op, d, *src):
            r = set()
            for x in src: r |= ids(x)
            return I(f"{op} {d}, " + ", ".join(fmt(x) for x in src), "valu", r, ids(d))
        P2 = lambda reg, r: reg.sub(r, 2)
        for a_ in range(4):
            pp_ = (4 * a_, 4 * a_ + 2); rr = range(4 * a_, 4 * a_ + 4)
            for r in pp_: e(pk("v_pk_add_f32", P2(RD, r), P2(RD, r), P2(ACCD[0], r)))
            for r in pp_: e(pk("v_pk_mul_f32", P2(G, r), P2(RD, r), CK))
            for r in pp_: e(pk("v_pk_mul_f32", P2(RD, r), P2(RD, r), P2(SF, r)))
            for r in rr: e(valu("v_exp_f32", G[r], G[r]))
        for a_ in range(4):
            pp_ = (4 * a_, 4 * a_ + 2); rr = range(4 * a_, 4 * a_ + 4)
            for r in pp_: e(pk("v_pk_add_f32", P2(G, r), P2(G, r), C1))
            for r in rr: e(valu("v_rcp_f32", G[r], G[r]))
        for a_ in range(4):
            pp_ = (4 * a_, 4 * a_ + 2)
            for r in pp_: e(pk("v_pk_fma_f32", P2(RD, r), P2(RD, r), P2(G, r), P2(XF, r)))
            for d in range(2): e(valu("v_cvt_pk_bf16_f32", XR[2 * a_ + d], RD[4 * a_ + 2 * d], RD[4 * a_ + 2 * d + 1]))
            e(ds_wr(vOW, XR.sub(2 * a_, 2), 16 * a_))
        E.wait_all_lds(); E.barrier()
        for p in range(2): e(ds_rd(G.sub(4 * p, 4), vOR, 8 * 144 * p))
        for p in range(2): e(vstore(G.sub(4 * p, 4), vOO, SOUT, sXs if p else sOut, 0, fl=C.out_fl))
        self.stamp("end")
        if C.amp:
            l = self.lab("amp")
            E.line("s_waitcnt lgkmcnt(0)")
            if C.amp.startswith("sk"):
                E.line(f"buffer_load_dword v0, off, {SDBG}, 0 offset:4 sc1"); E.line("s_waitcnt vmcnt(0)"); E.line(f"v_readfirstlane_b32 {sT1}, v0"); E.line("s_nop 4")
                if C.amp == "skp": E.line(f"s_sub_u32 {sT0}, s{STAMP0}, {sT1}")
                else: E.line(f"s_sub_u32 {sT0}, {sT1}, s{STAMP0}")
                E.line(f"s_max_i32 {sT0}, {sT0}, 0")
            else:
                k0, k1 = [STAMP0 + 2 * int(x) for x in C.amp.split("-")]
                E.line(f"s_sub_u32 {sT0}, s{k1}, s{k0}")
            pass; E.line(f"s_lshl_b32 {sT0}, {sT0}, 2"); E.line(f"s_add_u32 {sT0}, {sT0}, s{STAMP0 + 16}")
            E.label(l)
            E.line("s_memrealtime s[84:85]"); E.line("s_waitcnt lgkmcnt(0)"); E.line(f"s_sub_u32 s84, s84, {sT0}")
            E.line("s_cmp_lt_i32 s84, 0"); E.line(f"s_cbranch_scc1 {l}")
        elif C.stamps:
            E.line("s_waitcnt lgkmcnt(0)")
            e(salu("s_lshl_b32", sT0, sWG, 2)); e(salu("s_add_u32", sT0, sT0, sW)); e(salu("s_lshl_b32", sT0, sT0, 7))
            e(salu("s_add_u32", sT0, sT0, WS_STAMP))
            for k in range(9):
                e(valu("v_mov_b32", v(0), s(STAMP0 + 2 * k))); e(vstore(v(0), None, SWS, sT0, 4 * k))
            e(accr(v(0), a(198))); e(vstore(v(0), None, SWS, sT0, 44))
            E.line("s_memrealtime s[84:85]"); E.line("s_getreg_b32 s86, hwreg(HW_REG_XCC_ID)"); E.line("s_waitcnt lgkmcnt(0)")
            e(valu("v_mov_b32", v(0), s(84))); e(vstore(v(0), None, SWS, sT0, 36))
            e(valu("v_mov_b32", v(0), s(86))); e(vstore(v(0), None, SWS, sT0, 40))
        E.line("s_endpgm")
        E.out += self.cold

    def epoch_publish(self):
        E = self.E
        l = self.lab("nopub")
        E.emit(salu("s_or_b32", sT0, sWG, sW))
        E.line(f"s_cbranch_scc1 {l}")
        E.line(f"s_mov_b32 {sT0}, 0x9e3779b1")
        E.line(f"v_mul_lo_u32 {vPOLL}, {vPOLL}, {sT0}")
        E.line(f"v_add_u32 {vPOLL}, 0x7f4a7c15, {vPOLL}")
        E.line(f"v_max_u32 {vPOLL}, 1, {vPOLL}")
        E.line(f"s_mov_b32 {sT0}, {WS_EPOCH}")
        E.line(f"buffer_store_dword {vPOLL}, off, {SWS}, {sT0} sc1")
        if C.amp.startswith("sk"):
            E.line(f"v_mov_b32 v0, s{STAMP0}"); E.line(f"buffer_store_dword v0, off, {SDBG}, 0 offset:4 sc1"); E.line("s_waitcnt vmcnt(0)")
        E.line(f"buffer_store_dword {vPOLL}, off, {SDBG}, 0 sc1")
        E.label(l)

    def attention(self, q, xfree):
        M2 = self.M2
        Q0, Q1, K0, K1, V0, V1 = [ACC1(t) for t in range(6)]
        cvt = lambda d, x, y: valu("v_cvt_pk_bf16_f32", d, x, y)
        def pack(dst, src, n=8): return [cvt(dst[i], src[2 * i], src[2 * i + 1]) for i in range(n)]
        its = pack(K0, K0) + pack(K0.sub(8, 8), K1)
        its += [ds_wr(vEX, K0.sub(4 * h, 4), 6144 + 1024 * h, tag="exw") for h in range(4)]
        its += pack(V0, V0) + pack(V0.sub(8, 8), V1)
        bar2 = M2 + C.exbar
        q.adds(its, earliest=M2 - 21, deadline=bar2 - 1)
        its = [ds_wr(vEX, V0.sub(4 + 8 * j, 4), 6144 + 4096 + 1024 * j, tag="exw") for j in range(2)]
        its += [accr(NT[i], aHACC[0][i]) for i in range(4)] + [accr(NT[4 + i], aHACC[1][i]) for i in range(4)]
        hk = v(NT[0].lo, 2); hv = v(NT[4].lo, 2)
        its += [cvt(NT[0], NT[0], NT[1]), cvt(NT[1], NT[2], NT[3]), cvt(NT[4], NT[4], NT[5]), cvt(NT[5], NT[6], NT[7])]
        its += [salu("s_lshl_b32", sT0, sW, 10), salu("s_add_u32", sT0, sT0, 256), valu("v_add_u32", NT[2], sT0, vHW),
                salu("s_lshr_b32", sT0, sW, 1), salu("s_lshl_b32", sT0, sT0, 10), salu("s_and_b32", sT1, sW, 1),
                salu("s_lshl_b32", sT1, sT1, 8), salu("s_add_u32", sT0, sT0, sT1), valu("v_add_u32", NT[3], sT0, vHW),
                ds_wr(NT[2], hk, 0, tag="exw"), ds_wr(NT[3], hv, 4096, tag="exw")]
        q.adds(its, earliest=M2 - 1, deadline=bar2 - 1)
        self.exw_check = (q, len(q.items))
        q.adds(pack(Q0, Q0) + pack(Q0.sub(8, 8), Q1), earliest=M2)
        MASK = v(208, 24)
        its = [accr(vRINV, a(196)), accr(vNB, a(197)), smov(sONE, NEG)]
        for r in range(24):
            rr = r if r < 16 else r - 8
            its += [valu("v_bfe_i32", MASK[r], vNB if r < 16 else vRINV, 8 * (rr >> 2) + (rr & 3), 1), valu("v_and_b32", MASK[r], sONE, MASK[r])]
        q.adds(its, earliest=M2)
        q.add(lambda E: self.mark.update(masks=True), earliest=M2)
        SC = K1; SP = v(0, 16); U = v(16, 8); P = v(24, 12); O = Q1
        mx, tm, mc = vRINV, vNB, vW16
        sums = [vHX, vH]; t2 = vTR[4]
        def add(i, ear=0):
            w = [x for x in i.w if x < 128]
            e_ = max([xfree(v(x)) for x in w], default=0)
            q.add(i, earliest=max(e_, ear))
        def qk(h, which):
            if which == 0: add(mfma(SC, K0.sub(4 * h, 4), Q0.sub(4 * h, 4), MASK.sub(0, 16)))
            else: add(mfma(SP, aKP[h], Q0.sub(4 * h, 4), MASK.sub(8, 16)))
        def fin(h):
            o = 8 * (h & 1); sm = sums[h & 1]
            l = [valu("v_rcp_f32", sm, sm)]
            l += [valu("v_mul_f32", O[o + r], O[o + r], sm) for r in range(8)]
            l += [cvt(O[o + r], O[o + 2 * r], O[o + 2 * r + 1]) for r in range(4)]
            l.append(vstore(O.sub(o, 4), vL16, SWS, sStF, 1024 * h, "o", C.st_fl))
            return l
        qk(0, 0)
        q.adds([ds_rd(aKP[h], vEX, 1024 * h) for h in range(4)] + [ds_rd(aVP[j], vEX, 4096 + 1024 * j) for j in range(2)], earliest=bar2)
        qk(0, 1)
        for h in range(4):
            for i in range(4): add(valu("v_max_f32", U[i], SC[2 * i], SC[2 * i + 1]))
            for i in range(4, 8): add(valu("v_max3_f32", U[i], SC[2 * i], SC[2 * i + 1], SP[2 * i]))
            if h < 3: qk(h + 1, 0)
            for i in range(4, 8): add(valu("v_max_f32", U[i], U[i], SP[2 * i + 1]))
            add(valu("v_max3_f32", mx, U[0], U[1], U[2])); add(valu("v_max3_f32", tm, U[3], U[4], U[5]))
            if h < 3: qk(h + 1, 1)
            add(valu("v_max3_f32", mx, mx, U[6], U[7])); add(valu("v_max_f32", mx, mx, tm))
            add(valu("v_mov_b32", tm, mx))
            fl = fin(h - 1) if h > 0 else []
            for x in fl[:3]: add(x)
            add(swap32(mx, tm)); add(valu("v_max_f32", mx, mx, tm))
            add(I(f"v_mul_f32 {mc}, -{mx}, {sCSC}", "valu", mx.ids() | sCSC.ids(), mc.ids()))
            for x in fl[3:]: add(x)
            for i in range(8): add(valu("v_fma_f32", U[i], U[i], sCSC, mc))
            for i in range(8): add(valu("v_exp_f32", U[i], U[i]))
            sm = sums[h & 1]; j = h >> 1
            for i in range(4):
                add(cvt(P[i], U[i], U[i])); add(valu("v_and_b32", P[i], vPM, P[i]))
            add(valu("v_add_f32", sm, U[0], U[1])); add(valu("v_add_f32", tm, U[2], U[3]))
            add(mfma(O, V0.sub(8 * j, 4), P.sub(0, 4), 0))
            for i in range(4):
                add(cvt(P[8 + i], U[4 + i], U[4 + i])); add(valu("v_and_b32", P[4 + i], vMHC, P[8 + i]))
            add(valu("v_add_f32", t2, U[4], U[5])); add(valu("v_add_f32", sm, sm, tm))
            add(mfma(O, V0.sub(8 * j + 4, 4), P.sub(4, 4), O))
            for i in range(4): add(valu("v_and_b32", P[8 + i], vMHP, P[8 + i]))
            add(valu("v_add_f32", tm, U[6], U[7])); add(valu("v_add_f32", t2, t2, tm))
            add(mfma(O, aVP[j], P.sub(8, 4), O))
            add(valu("v_add_f32", sm, sm, t2))
            add(valu("v_mov_b32", tm, sm))
            add(swap32(sm, tm)); add(valu("v_add_f32", sm, sm, tm))
        for x in fin(3): add(x)

    def build(self):
        E = self.E
        self.stamp("t00")
        E.emit(scmp("s_cmp_ge_u32", sWG, 256))
        E.line("s_cbranch_scc1 L_end")
        E.line("s_load_dwordx16 s[8:23], s[0:1], 0")
        E.line("s_load_dwordx4 s[24:27], s[0:1], 64")
        E.emit(salu("s_lshr_b32", sJ, sWG, 3))
        self.code_touch()
        E.emit(I("s_bitcmp1_b32 s6, 3", "salu", sJ.ids(), {SCC}))
        E.line("s_cbranch_scc1 L_typeB")
        snap = E.snapshot()
        self.body("A")
        E.label("L_typeB")
        E.restore(snap)
        self.body("B")
        E.label("L_end")
        E.line("s_endpgm")
        E.label("L_code_end")
        E.out.append(".p2align 12")
        head = open(os.path.join(os.path.dirname(os.path.abspath(__file__)), "head.txt")).read()
        txt = head + f"""; @launch grid=(256,1,1) block=(256,1,1) lds=163840
.amdgcn_target "amdgcn-amd-amdhsa--gfx950"
.text
.globl {NAME}
.p2align 8
.type {NAME},@function
{NAME}:
""" + E.text() + f""".section .rodata,"a"
.p2align 6
.amdhsa_kernel {NAME}
  .amdhsa_next_free_vgpr 512
  .amdhsa_next_free_sgpr 102
  .amdhsa_accum_offset 256
  .amdhsa_group_segment_fixed_size 0
  .amdhsa_kernarg_size 80
  .amdhsa_user_sgpr_count 2
  .amdhsa_user_sgpr_kernarg_segment_ptr 1
  .amdhsa_system_sgpr_workgroup_id_x 1
.end_amdhsa_kernel
"""
        return txt


def place_pads(txt):
    import subprocess, re, tempfile
    sys.path.insert(0, "cdna_kernels")
    from cdna_launch import with_harness_metadata
    lines = txt.split("\n")
    probe = []
    for n, l in enumerate(lines):
        if l.startswith("    ") and not l.strip().startswith(";") and not l.strip().startswith("."): probe.append(f"LP_{n}:")
        probe.append(re.sub(r"L_pad[AB]_\d+", "L_end", l))
    d = tempfile.mkdtemp()
    open(d + "/p.s", "w").write(with_harness_metadata("\n".join(probe), NAME, 10, launch_lists=True))
    subprocess.run(["clang", "-x", "assembler", "-target", "amdgcn-amd-amdhsa", "-mcpu=gfx950", d + "/p.s", "-o", d + "/p.co"], check=True)
    sym = subprocess.run(["llvm-objdump", "-t", d + "/p.co"], capture_output=True, text=True).stdout
    addr = {int(m.group(2)): int(m.group(1), 16) for m in re.finditer(r"([0-9a-f]{16}) .* LP_(\d+)", sym)}
    shift = 0; typ = None; pads = {"A": [], "B": []}; prev = None
    for n, l in enumerate(lines):
        if l.startswith(";PADS_FROM"): typ = l.split()[1]
        if l.startswith("L_typeB:") or l.startswith("L_end:"): typ = None
        if n in addr:
            a_ = addr[n] + shift
            if typ and prev is not None and prev // 4096 != a_ // 4096:
                pads[typ].append(n); shift += 4
            prev = a_
    out = []
    for n, l in enumerate(lines):
        for t in "AB":
            if n in pads[t]:
                k = pads[t].index(n)
                out.append(f"L_pad{t}_{k}:")
                out.append(f"    s_cbranch_execz " + (f"L_pad{t}_{k + 4}" if k + 4 < len(pads[t]) else f"L_back{t}"))
        out.append(l)
    print("pads", {t: len(pads[t]) for t in pads}, "kernel at", hex(min(addr.values())))
    assert min(len(pads[t]) for t in pads) >= 4
    return "\n".join(out)


if __name__ == "__main__":
    g = Gen()
    txt = g.build()
    if C.pads: txt = place_pads(txt)
    open(sys.argv[1], "w").write(txt)
    print("instructions:", g.E.ninst)
```

```python
import sys, os
sys.path.insert(0, os.path.dirname(os.path.abspath(__file__)))
from emit import *

NAME = "recurrent_scan__sliding_local_dilated__glu_gated_bilinear__prompt_kernel"

class Cfg:
    stamps = False
    stset = "a"
    rt = False
    D = 6
    nahead = 4; cap1A = 7.0; cap1B = 6.5; cap1t = 8.0; cap2h = 9.0; cap2A = 7.5; cap2B = 7.0; cap3 = 7.0; cap2t = 7.5; cap3x = 20.0
    npre = 120
    att_gate = 0.7; gate0B = -44; vm1 = 2.0; vm3 = 8.0; nrawA = 0; nrawB = 10; warm_gA = 2; warm_gB = 1; warm_sp = 1; b2gA = 4; b2gB = 3; raw0A = 130; raw0B = 270
    rot = True; rot_half = False
    pads = True
    la1 = 14; la2 = 14; la3 = 18; la4A = 13; la4B = 18
    polld = 34
    flagd = 600
    b2lead = 24; a2lead = 30; att_end = 30
    dbg_st = False; dbg_a2 = 0; dbg_dump = False; dbg_bar = False
    amp = ""
    lg_old = 10; vmfirst = False
    rot2 = True; flagl = 300
    raw = True; raw0 = 84
    npre_norm = 1; npre_normA = 1; hn_at = 4; dots_first = 6; exbar = 12; npoll = 3
    w3early = True
    w0at = 4; touch_w0 = 4; x2early = False
    touch_code = True
    touch_b2 = False; b2g = 4
    warm_all = True; warm_byA = False
    a2_fl = "sc1"; st_fl = "sc1"; pre_a2 = 0; x_fl = ""; w_fl = ""; b2_fl = ""; out_fl = ""
    spin_max = 1 << 16

C = Cfg()
import emit as _emit
for arg in sys.argv[2:]:
    k, val = arg.split("=")
    old = getattr(C, k)
    setattr(C, k, (val not in ("0", "False")) if isinstance(old, bool) else type(old)(val.replace("+", " ")))

Emitter.LG_OLD = C.lg_old
WS_FLAG = 0x900000
WS_EPOCH = 0xA00000
WS_STAMP = 0xB00000
WS_SIZE = 0xC00000
TB = 131072

sWG = s(2); sW = s(3); sRB = s(4); sIDX = s(5); sJ = s(6); sXCD = s(7)
SX, SWO, SWG_, SWD, SDBG, SP5, SWU, SOUT, SWS, SP9 = [s(8 + 4 * i, 4) for i in range(10)]
SQKV = SWG2 = SP5; SWH = SWU2 = SP9
(sA2s, sB2s, sM0B, sT0, sT1, sS1, sS2, sS2b, sTAG, sFLW, sFLR, sStF, sStH, sSt2, sHI, sONE, sSPIN, sT2, sOut, sT5,
 sRT, sCT, sKH, sCSC, sXs, sM0T, sXo, sXk, sROT, sC512, sA2c0, sA2c1, sA2c2, sB2c0, sB2c1, sB2c2) = [s(48 + i) for i in range(36)]
sA2c = [sA2c0, sA2c1, sA2c2]; sB2c = [sB2c0, sB2c1, sB2c2]
sHo = sB2s
sPC = s(48, 2)
STAMP0 = 84

def X(ks): return v(4 * ks, 4)
def ACC1(t): return v(128 + 16 * t, 16)
NT = [v(224 + i) for i in range(8)]
vTR = [v(232 + i) for i in range(6)]
vG = v(238); vU = v(239); vH = v(240)
vB2 = v(241); vTW = v(242)
vL16 = v(243); vRINV = v(244); vNB = v(245); vW16 = v(246); vHX = v(247)
vTAG = v(248); vPOLL = v(249); vP4 = v(250); vTB = vTAG
vEX = v(251); vHW = v(252); vPM = v(253); vMHC = v(254); vMHP = v(255)
vTR2T = [v(42), v(43)]; vTR2 = [v(44), v(45)]; vWQ = v(46)
vPL = [vPOLL, v(36), v(37), v(47)]
vSP = [vTW, v(46 - 5)]
PARKED = vTR2T + vTR2
E2T = v(48, 16)
ACCD = [v(64, 16), v(80, 16)]; ACCS = [v(96, 16), v(112, 16)]
def WF(m): return a(4 * (m % 12), 4)
def ACC2(t): return a(48 + 16 * t, 16)
aMASK = a(112, 24); aKP = [a(136 + 4 * i, 4) for i in range(4)]; aVP = [a(152 + 4 * i, 4) for i in range(2)]
aHACC = [a(160, 4), a(164, 4)]; aXH = [a(168, 4), a(172, 4)]
aW16 = [[a(176, 4), a(180, 4)], [a(184, 4), a(188, 4)]]
aPARK = 192
aDUM0 = a(199); vDUM1 = v(37)

NEG = 0xf149f2ca


class LDSMap:
    def __init__(self):
        self.own = {c: ("x", c // 4) for c in range(32)}
        for c in range(32, 40): self.own[c] = ("T",)
        self.last_use = {}
        self.visible = set()
        self.bar_m = -1
        self.xread = set()
    def alloc(self, obj, chunks):
        for c in chunks:
            o = self.own[c]
            if o[0] == "x": assert o[1] in self.xread, (obj, c, o)
            else: assert self.last_use[o] <= self.bar_m, (obj, c, o, self.last_use[o], self.bar_m)
            self.own[c] = obj
    def check_read(self, obj, chunks):
        assert obj in self.visible, ("not visible", obj)
        for c in chunks: assert self.own[c] == obj, (obj, c, self.own[c])


SHIFT = [48, 8, 16]


def step_info(n):
    if n < 32: return 16 + 12 * (n >> 3) + (n & 7), 0, 0
    if n < 40: return n - 32, 1, 1
    if n < 56: return 112 + n - 40, 2, 3
    hi = n >= 64; k = (n - 56) & 7
    return 24 + 12 * (k >> 1) + (k & 1) + 2 * hi, 0, (4 if hi else 2)


class Gen:
    def __init__(self):
        self.E = Emitter()
        self.E.trace = bool(os.environ.get("TRACE"))
        self.nlabel = 0
        self.nstamp = 0

    def lab(self, base):
        self.nlabel += 1
        return f"L_{base}_{self.nlabel}"

    STS = {"a": ["t0", "issued", "x0", "xdone", "s1", "s2", "p2", "lastm", "end"],
           "b": ["t0", "g0a", "g0b", "p2", "g1a", "g1b", "g2a", "g2b", "end"],
           "e": ["t0", "karg", "issued", "rest", "pads", "x0", "x1", "x3", "end"],
           "f": ["t0", "x4", "x5", "x6", "x7", "xdone", "s1", "b1", "end"],
           "g": ["t0", "s1", "b1a", "b1", "b2a", "b2", "b3a", "b3", "end"],
           "h": ["t0", "b3", "b4", "b5", "b6", "b7", "b8", "s2", "end"],
           "j": ["t0", "g2b", "n48", "n55", "n56", "n60", "n64", "n71", "end"],
           "k": ["t0", "g0b", "n0", "n4", "n8", "n16", "n24", "n31", "end"],
           "l": ["t0", "g1b", "g3b", "n31", "n32", "n39", "n40", "n47", "end"],
           "m": ["t0", "n0", "n8", "n16", "n24", "n32", "n40", "n56", "end"],
           "n": ["t0", "c0a", "c0", "c1a", "c1", "c2a", "c2", "c3a", "c3"],
           "o": ["t0", "c4a", "c4", "c5a", "c5", "c6a", "c6", "c7a", "c7"],
           "p": ["t0", "g0a", "g0b", "g1a", "g1b", "g3a", "g3b", "g2a", "g2b"],
           "q": ["t0", "s2", "f0a", "f0b", "g0a", "g0b", "f2a", "f2b", "end"],
           "r": ["t0", "s1", "b1", "b2", "b3", "b4", "b5", "b6", "b7"],
           "s": ["t0", "b7", "b8", "b9", "b10", "b11", "c0", "c1", "c2"],
           "t": ["n16", "n17", "n18", "n19", "n20", "n21", "n22", "n23", "n24"],
           "u": ["n40", "n41", "n42", "n43", "n44", "n45", "n46", "n47", "n48"],
           "v": ["n60", "n61", "n62", "n63", "n64", "n65", "n66", "n67", "n68"],
           "w": ["t00", "t0", "karg", "issued", "rest", "pads", "x0", "xdone", "end"],
           "x": ["t0", "issued", "pads", "x0", "x2", "x4", "x7", "bx", "s1"],
           "y": ["t0", "x4", "x5", "x6", "x7", "xdone", "bx", "s1", "b1"],
           "z": ["t0", "p2", "f2b", "f4b", "g2a", "g2b", "g4a", "g4b", "end"],
           "0": ["t0", "end"],
           "AMP": ["t0", "-1", "-2", "-3", "-4", "-5", "-6", "-7", "end"],
           "i": ["t0", "s2", "g0a", "g0b", "p2", "c1", "g1a", "g1b", "end"],
           "d": ["t0", "p2", "g1b", "g3a", "g3b", "g2a", "g2b", "lastm", "end"],
           "c": ["t0", "p2", "c1", "c3", "c5", "c7", "lastm", "sbar", "end"]}

    def stamp(self, name):
        if C.stset.startswith("B"):
            g = int(C.stset[1:]); self.STS[C.stset] = [f"b{g}"] + [f"b{g + k}{x}" for k in range(1, 5) for x in ("a", "")]
        if C.stset.startswith("N"): self.STS[C.stset] = [f"n{int(C.stset[1:]) + k}" for k in range(9)]
        if C.stamps and name in self.STS[C.stset]:
            k = self.STS[C.stset].index(name)
            self.E.line(f"{'s_memrealtime' if C.rt else 's_memtime'} s[{STAMP0 + 2 * k}:{STAMP0 + 2 * k + 1}]")

    def setup_first(self, typ):
        o = []; e = o.append
        lane = self.lane; vx = self.vx; t0, t1, t2 = v(201), v(202), v(203)
        e(valu("v_and_b32", lane, 63, v(0)))
        e(valu("v_lshrrev_b32", t0, 6, v(0)))
        e(salu("s_and_b32", sXCD, sWG, 7))
        e(rfl(sW, t0))
        e(salu("s_and_b32", sRB, sXCD, 1)); e(salu("s_lshl_b32", sRB, sRB, 3))
        e(salu("s_and_b32", sT0, sJ, 7)); e(salu("s_add_u32", sRB, sRB, sT0))
        e(salu("s_and_b32", sIDX, sXCD, 6)); e(salu("s_lshr_b32", sT0, sJ, 4)); e(salu("s_add_u32", sIDX, sIDX, sT0))
        e(valu("v_and_b32", t0, 7, lane)); e(valu("v_lshrrev_b32", t1, 4, lane)); e(valu("v_xor_b32", t0, t0, t1))
        e(valu("v_lshlrev_b32", t0, 4, t0))
        e(valu("v_lshrrev_b32", t1, 3, lane)); e(valu("v_lshlrev_b32", t1, 10, t1))
        e(valu("v_or_b32", vx[0], t0, t1)); e(valu("v_xor_b32", t2, 64, vx[0]))
        e(valu("v_add_u32", vx[1], 7168, t2)); e(valu("v_add_u32", vx[2], 2 * 7168, vx[0])); e(valu("v_add_u32", vx[3], 3 * 7168, t2))
        e(salu("s_lshl_b32", sM0B, sW, 15))
        e(salu("s_lshl_b32", sT0, sRB, 17)); e(salu("s_add_u32", sXo, sT0, sM0B))
        e(salu("s_lshr_b32", sT1, sJ, 3)); e(salu("s_add_u32", sT1, sT1, sJ)); e(salu("s_and_b32", sROT, sT1, (1 if C.rot_half else 3) if C.rot else 0))
        if C.rot_half: e(salu("s_lshl_b32", sROT, sROT, 1))
        e(salu("s_lshl_b32", sXk, sROT, 8))
        e(smov(SWS[2], WS_SIZE)); e(smov(SWS[3], 0x20000))
        if typ == "A":
            e(smov(SQKV[2], 512 * 3072)); e(smov(SQKV[3], 0x20000))
            hs = self.hs
            e(salu("s_sub_u32", sT1, sT0, 16 * 1024))
            e(valu("v_add_u32", hs[0], sT1, vx[0])); e(salu("s_add_u32", sT1, sT1, 1024)); e(valu("v_add_u32", hs[1], sT1, vx[1]))
            e(salu("s_add_u32", sHo, sW, sROT)); e(salu("s_and_b32", sHo, sHo, 3)); e(salu("s_lshl_b32", sHo, sHo, 8))
            e(salu("s_lshr_b32", sS2b, sM0B, 3))
            e(salu("s_lshl_b32", sT2, sIDX, 1))
            e(salu("s_lshl_b32", sS1, sIDX, 7))
        else:
            e(salu("s_mul_i32", sT2, sIDX, 12, scc_w=False)); e(salu("s_add_u32", sT2, sT2, 24))
            e(salu("s_lshl_b32", sS1, sT2, 5)); e(salu("s_sub_u32", sS1, sS1, 256))
            for d, sh in ((SWU, 1024), (SWG2, 1920), (SWU2, 2944)):
                e(smov(d[2], 512 * 3584 + sh)); e(smov(d[3], 0x20000))
        st1 = 3072 if typ == "A" else 3584
        e(salu("s_mul_i32", sT0, sROT, 128 * st1, scc_w=False)); e(salu("s_add_u32", sS1, sS1, sT0))
        if C.touch_w0:
            e(valu("v_and_b32", t0, C.touch_w0 - 1, lane)); e(valu("v_mul_u32_u24", t0, st1, t0))
            if typ == "A":
                e(valu("v_lshrrev_b32", t1, 4, lane)); e(valu("v_min_u32", t1, 2, t1)); e(valu("v_lshlrev_b32", t1, 10, t1))
            else:
                e(valu("v_bfe_u32", t1, lane, 4, 1)); e(valu("v_lshlrev_b32", t1, 7, t1))
            e(valu("v_add_u32", vTW, t0, t1))
            e(salu("s_and_b32", sT0, sJ, 4)); e(salu("s_and_b32", sT1, sXCD, 1)); e(salu("s_lshl_b32", sT1, sT1, 3))
            e(salu("s_add_u32", sT0, sT0, sT1)); e(salu("s_add_u32", sT0, sT0, sW))
            e(salu("s_mul_i32", sT0, sT0, C.touch_w0 * st1, scc_w=False)); e(salu("s_add_u32", sT5, sT0, sS1))
        return o

    def touch(self, voff, srd_, soff, imm=0, dst=None, fl=""):
        i = vload(dst or aDUM0, voff, srd_, soff, imm, fl=fl); i.w = set(); return i

    def consts(self, typ):
        o = []; e = o.append
        lane = self.lane
        t = [v(208 + i) for i in range(8)]
        li, g4, r2, hh, ub = v(190), v(191), v(192), v(193), v(194)
        e(valu("v_and_b32", li, 15, lane)); e(valu("v_lshrrev_b32", g4, 4, lane)); e(valu("v_lshrrev_b32", hh, 5, lane))
        e(valu("v_and_b32", ub, 1, g4)); e(valu("v_lshrrev_b32", r2, 2, li))
        e(valu("v_lshlrev_b32", vL16, 4, lane))
        e(smov(sHI, 0xffff0000)); e(smov(sONE, 0x3f803f80)); e(smov(sC512, 0x3b000000)); e(smov(sCSC, 0x3eb8aa3b))
        xa = self.xa
        e(valu("v_and_b32", t[0], 31, lane)); e(valu("v_lshlrev_b32", t[1], 7, t[0]))
        e(valu("v_bfe_u32", t[0], lane, 1, 3)); e(valu("v_xor_b32", t[0], t[0], hh)); e(valu("v_lshlrev_b32", t[0], 4, t[0]))
        e(valu("v_add_u32", t[1], sM0B, t[1]))
        for q in range(4):
            e(valu("v_xor_b32", t[2], 32 * q, t[0])); e(valu("v_add_u32", xa[q], t[1], t[2]))
        for r_ in self.acc: e(valu("v_mov_b32", r_, 0))
        if typ == "A":
            ha = self.ha
            e(valu("v_lshlrev_b32", t[1], 7, li)); e(valu("v_lshrrev_b32", t[0], 1, li)); e(valu("v_xor_b32", t[0], t[0], g4))
            e(valu("v_lshlrev_b32", t[0], 4, t[0]))
            e(salu("s_add_u32", sT0, sS2b, TB)); e(valu("v_add_u32", t[1], sT0, t[1]))
            e(valu("v_add_u32", ha[0], t[1], t[0])); e(valu("v_xor_b32", t[0], 64, t[0])); e(valu("v_add_u32", ha[1], t[1], t[0]))
            for r_ in self.hacc: e(valu("v_mov_b32", r_, 0))
            e(valu("v_add_u32", vHX, TB + 16384, vL16))
            e(valu("v_lshlrev_b32", ha[2], 3, lane)); e(valu("v_add_u32", ha[2], TB, ha[2])); e(valu("v_add_u32", ha[3], sS2b, ha[2]))
            e(valu("v_add_u32", ha[4], sS2b, vHX))
        e(salu("s_and_b32", sT0, sW, 1)); e(salu("s_lshl_b32", sT0, sT0, 4))
        e(salu("s_lshr_b32", sKH, sW, 1)); e(salu("s_lshl_b32", sT1, sKH, 3)); e(salu("s_add_u32", sT1, sT1, sT0))
        e(valu("v_lshrrev_b32", t[0], 3, lane)); e(valu("v_and_b32", t[1], 2, t[0])); e(valu("v_lshlrev_b32", t[1], 5, t[1]))
        e(valu("v_and_b32", t[2], 7, lane)); e(valu("v_lshlrev_b32", t[2], 4, t[2])); e(valu("v_xor_b32", t[2], t[2], t[1]))
        e(valu("v_add_u32", t[3], sT1, t[0]))
        if typ == "A":
            e(valu("v_mul_u32_u24", t[4], 3072, t[3])); e(valu("v_add_u32", vH, t[4], t[2]))
            e(salu("s_lshl_b32", sT0, sT0, 1))
            e(valu("v_lshrrev_b32", t[4], 2, lane)); e(valu("v_add_u32", t[4], sT0, t[4])); e(valu("v_mul_u32_u24", t[4], 3584, t[4]))
            e(valu("v_and_b32", t[5], 3, lane)); e(valu("v_lshlrev_b32", t[5], 4, t[5]))
            e(salu("s_lshl_b32", sT1, sKH, 5)); e(valu("v_xor_b32", t[5], sT1, t[5]))
            e(valu("v_add_u32", vG, t[4], t[5]))
            e(salu("s_lshl_b32", sS2, sT2, 5))
            e(smov(SWH[2], 512 * 3584)); e(smov(SWH[3], 0x20000))
        else:
            e(valu("v_mul_u32_u24", t[4], 3584, t[3])); e(valu("v_add_u32", vG, t[4], t[2]))
            e(valu("v_xor_b32", t[5], 32, t[2])); e(valu("v_add_u32", vU, t[4], t[5]))
            e(salu("s_mul_i32", sT0, sT0, 3584, scc_w=False))
            e(salu("s_lshl_b32", sS2, sT2, 5)); e(salu("s_add_u32", sS2, sS2, sT0))
        e(salu("s_mul_i32", sT0, sROT, 128 * 3584, scc_w=False)); e(salu("s_add_u32", sS2, sS2, sT0))
        e(valu("v_and_b32", vP4, 3, lane)); e(valu("v_lshlrev_b32", vP4, 2, vP4))
        e(valu("v_lshl_add_u32", vB2, t[0], 10, t[2]))
        if C.warm_all:
            ww = self.ww
            e(valu("v_min_u32", ww[0], 13, lane)); e(valu("v_lshlrev_b32", ww[0], 7, ww[0])); e(valu("v_lshlrev_b32", ww[1], 5, vP4))
            e(valu("v_and_b32", ww[2], 15 if typ == "A" else 7, lane)); e(valu("v_mul_u32_u24", ww[2], 3584, ww[2]))
        e(valu("v_lshlrev_b32", t[0], 7, r2))
        e(valu("v_and_b32", t[1], 3, lane)); e(valu("v_lshlrev_b32", t[1], 3, t[1])); e(valu("v_add_u32", t[0], t[0], t[1]))
        e(valu("v_and_b32", t[2], 2, r2))
        e(valu("v_or_b32", t[3], t[2], ub)); e(valu("v_lshlrev_b32", t[3], 5, t[3]))
        e(valu("v_lshlrev_b32", t[4], 16, hh)); e(valu("v_add_u32", t[4], t[4], t[0]))
        if typ == "A":
            for j in range(2):
                e(valu("v_xor_b32", t[6], 64 * j, t[3])); e(valu("v_add_u32", vTR[4 + j], t[6], t[4]))
            e(valu("v_lshlrev_b32", t[6], 3, hh)); e(valu("v_add_u32", t[6], t[6], r2)); e(valu("v_lshlrev_b32", t[6], 6, t[6]))
            e(valu("v_lshlrev_b32", t[7], 16, ub)); e(valu("v_add3_u32", t[6], t[6], t[7], t[1]))
            e(valu("v_lshlrev_b32", t[7], 5, ub)); e(valu("v_add_u32", vTR[0], t[6], t[7]))
            e(valu("v_xor_b32", t[7], 32, t[7])); e(valu("v_add_u32", vTR[1], t[6], t[7]))
        else:
            e(valu("v_lshlrev_b32", t[5], 10, ub)); e(valu("v_add_u32", t[5], t[5], t[4]))
            for tt in range(4):
                e(valu("v_xor_b32", t[6], 32 * tt, t[3])); e(valu("v_add_u32", vTR[tt], t[6], t[5]))
        def park(reg, s0_, s1_):
            names = [str(x) for x in self.parked]
            if str(reg) in names: e(valu("v_add_u32", t[7], s0_, s1_)); e(accw(a(aPARK + names.index(str(reg))), t[7]))
            else: e(valu("v_add_u32", reg, s0_, s1_))
        e(valu("v_lshlrev_b32", t[4], 9, hh)); e(valu("v_add_u32", t[4], t[4], t[0]))
        e(salu("s_lshl_b32", sT0, sKH, 6)); e(valu("v_xor_b32", t[6], sT0, t[3]))
        e(valu("v_add_u32", t[5], t[6], t[4])); e(valu("v_xor_b32", t[6], 64, t[5]))
        e(salu("s_lshl_b32", sT0, sKH, 16)); e(salu("s_lshl_b32", sT1, sKH, 11)); e(salu("s_add_u32", sT1, sT1, TB))
        for j in range(2):
            park(self.tr2[j], sT0, t[5 + j]); park(self.tr2t[j], sT1, t[5 + j])
        if typ == "A":
            e(valu("v_lshlrev_b32", t[4], 16, ub)); e(valu("v_lshlrev_b32", t[5], 15, hh)); e(valu("v_add3_u32", t[4], t[4], t[5], t[0]))
            e(valu("v_xor_b32", t[6], sW, t[2])); e(valu("v_lshlrev_b32", t[6], 5, t[6])); e(valu("v_add_u32", vW16, t[4], t[6]))
            e(salu("s_mul_i32", sT0, sW, 6144, scc_w=False)); e(salu("s_add_u32", sT0, sT0, TB)); e(valu("v_add_u32", vEX, sT0, vL16))
            e(valu("v_lshlrev_b32", t[4], 5, ub)); e(valu("v_add_u32", t[4], t[4], li)); e(valu("v_lshlrev_b32", t[4], 4, t[4]))
            e(valu("v_lshlrev_b32", t[5], 3, hh)); e(smov(sT0, TB)); e(valu("v_add3_u32", vHW, t[4], t[5], sT0))
            q = t[0]; bb = v(t[2].lo, 2)
            e(valu("v_and_b32", q, 31, lane)); e(valu("v_add_u32", t[1], 18, q))
            e(valu("v_mov_b32", t[4], 0x5555)); e(valu("v_mov_b32", t[5], 0))
            e(valu("v_lshlrev_b64", bb, t[1], v(t[4].lo, 2)))
            e(salu("s_or_b32", sT1, sRB, sW)); e(salu("s_cselect_b32", sT1, -1, 0, scc_w=False, scc_r=True))
            e(valu("v_and_b32", bb[0], sT1, bb[0]))
            e(valu("v_lshlrev_b32", t[1], 2, hh))
            e(valu("v_lshrrev_b32", bb[0], t[1], bb[0])); e(valu("v_lshrrev_b32", bb[1], t[1], bb[1]))
            e(valu("v_not_b32", bb[0], bb[0])); e(valu("v_not_b32", bb[1], bb[1]))
            e(accw(a(196), bb[0])); e(accw(a(197), bb[1]))
            e(valu("v_and_b32", t[2], 1, q)); e(valu("v_lshlrev_b32", t[2], 4, t[2]))
            e(valu("v_mov_b32", t[3], 0xffff)); e(valu("v_lshlrev_b32", vPM, t[2], t[3]))
            e(valu("v_bfe_i32", t[2], q, 4, 1)); e(valu("v_and_b32", vMHC, t[2], vPM)); e(valu("v_xor_b32", vMHP, vMHC, vPM))
        return o

    def scalars(self, typ):
        o = []; e = o.append
        e(salu("s_and_b32", sRT, sJ, 3)); e(salu("s_lshr_b32", sCT, sJ, 2)); e(salu("s_lshl_b32", sCT, sCT, 7))
        e(salu("s_lshl_b32", sT0, sXCD, 3)); e(salu("s_lshl_b32", sT1, sRT, 1)); e(salu("s_add_u32", sT0, sT0, sT1))
        e(salu("s_and_b32", sT1, sW, 1)); e(salu("s_add_u32", sT0, sT0, sT1))
        e(salu("s_lshl_b32", sFLR, sT0, 1)); e(salu("s_add_u32", sFLR, sFLR, sKH))
        e(salu("s_lshl_b32", sFLR, sFLR, 10)); e(salu("s_add_u32", sFLR, sFLR, WS_FLAG))
        e(salu("s_mul_i32", sTAG, sT0, 144 * 1024, scc_w=False))
        e(salu("s_lshl_b32", sOut, sT0, 15)); e(salu("s_and_b32", sOut, sOut, 0xffff7fff)); e(salu("s_add_u32", sOut, sOut, sCT))
        e(salu("s_lshr_b32", sT0, sM0B, 1)); e(salu("s_add_u32", sOut, sOut, sT0))
        e(salu("s_lshl_b32", sT1, sT1, 13)); e(salu("s_add_u32", sT1, sT1, sCT))
        for c_ in range(3):
            e(salu("s_mul_i32", sT0, sKH, SHIFT[c_] * 1024, scc_w=False)); e(salu("s_add_u32", sA2c[c_], sTAG, sT0))
            e(salu("s_lshl_b32", sT0, sT0, 4)); e(salu("s_add_u32", sB2c[c_], sT0, sT1))
        e(salu("s_lshl_b32", sM0T, sW, 10)); e(salu("s_add_u32", sM0T, sM0T, TB))
        e(salu("s_lshl_b32", sT0, sRB, 2)); e(salu("s_add_u32", sT0, sT0, sW))
        e(salu("s_mul_i32", sT1, sT0, 144, scc_w=False))
        e(salu("s_add_u32", sSt2, sT1, sT2)); e(salu("s_lshl_b32", sSt2, sSt2, 10))
        if typ == "A":
            e(salu("s_lshl_b32", sStF, sT2, 10)); e(salu("s_add_u32", sStF, sStF, sSt2)); e(salu("s_add_u32", sStF, sStF, 112 * 1024))
        else:
            e(salu("s_sub_u32", sStF, sSt2, 8192)); e(salu("s_sub_u32", sStH, sSt2, 4096))
        e(salu("s_lshl_b32", sT0, sT0, 1)); e(salu("s_lshr_b32", sT1, sIDX, 2)); e(salu("s_add_u32", sT0, sT0, sT1))
        e(salu("s_lshl_b32", sT0, sT0, 10))
        e(salu("s_and_b32", sT1, sIDX, 3)); e(salu("s_lshl_b32", sT1, sT1, 2))
        e(salu("s_add_u32", sT0, sT0, sT1)); e(salu("s_add_u32", sFLW, sT0, WS_FLAG))
        e(smov(SOUT[2], 0x200000)); e(smov(SOUT[3], 0x20000))
        return o

    def warm_ops(self, isA):
        ww = self.ww; nr = 16 if isA else 8
        o = [salu("s_and_b32", sT5, sW, 1 if isA else 3), salu("s_mul_i32", sT5, sT5, nr, scc_w=False),
             salu("s_lshl_b32", sXk, sRB, 5), salu("s_add_u32", sT5, sT5, sXk), salu("s_mul_i32", sT5, sT5, 3584, scc_w=False),
             salu("s_lshl_b32", sXk, sT2, 5), salu("s_add_u32", sT5, sT5, sXk)]
        o += [self.touch(ww[2], SWH, sT5)] if isA else [self.touch(ww[2], SWG_, sT5), self.touch(ww[2], SWU, sT5, 1024)]
        fl = [self.touch(ww[0], SWS, sFLR, fl="sc1")]
        if not C.warm_byA:
            o1 = [salu("s_lshl_b32", sXk, sWG, 2), salu("s_add_u32", sXk, sXk, sW), salu("s_mul_i32", sT5, sXk, 14 * 128, scc_w=False),
                  self.touch(ww[0], SWD, sT5)]
            o2 = [salu("s_lshl_b32", sT5, sXk, 9), self.touch(ww[1], SWO, sT5)]
            return [o1, o2 + fl + o]
        if not isA: return [[], fl + o]
        o1 = [salu("s_lshr_b32", sXk, sWG, 7), salu("s_lshl_b32", sXk, sXk, 6), salu("s_and_b32", sT5, sWG, 63), salu("s_add_u32", sXk, sXk, sT5),
              salu("s_lshl_b32", sXk, sXk, 2), salu("s_add_u32", sXk, sXk, sW), salu("s_mul_i32", sT5, sXk, 28 * 128, scc_w=False),
              self.touch(ww[0], SWD, sT5), self.touch(ww[0], SWD, sT5, 14 * 128)]
        o2 = [salu("s_lshl_b32", sT5, sXk, 10), self.touch(ww[1], SWO, sT5), self.touch(ww[1], SWO, sT5, 512)]
        return [o1, o2 + fl + o]

    def b2_soff(self, n, dst):
        ks, cls, st = step_info(n)
        return salu("s_add_u32", dst, sB2c[cls], (ks - 112 if cls == 2 else ks) * 16384)

    def code_touch(self):
        E = self.E
        if not C.touch_code: return
        t = v(201)
        E.line(f"s_getpc_b64 {sPC}")
        pcl = self.lab("pc"); E.label(pcl)
        E.emit(salu("s_and_b32", sT0, sJ, 1)); E.emit(salu("s_lshl_b32", sT0, sT0, 15))
        E.emit(valu("v_lshlrev_b32", t, 7, v(0))); E.emit(valu("v_add_u32", t, sT0, t))
        E.line(f"s_mov_b32 {sT0}, L_code_end-{pcl}-4")
        E.emit(valu("v_min_u32", t, sT0, t))
        E.emit(I(f"global_load_dword {aDUM0}, {t}, {sPC}", "vml", t.ids(), ()))

    def finish_stats(self, sm, sq, rinv, nb, t0, t1):
        e = self.E.emit
        e(valu("v_mul_f32", sm, sC512, sm))
        e(valu("v_mul_f32", t0, sm, sm))
        e(I(f"v_fma_f32 {sq}, {sq}, {sC512}, -{t0}", "valu", sq.ids() | t0.ids() | sC512.ids(), sq.ids()))
        e(valu("v_max_f32", sq, 0, sq))
        e(valu("v_cvt_pk_bf16_f32", t0, sm, sq))
        e(valu("v_and_b32", t1, sHI, t0))
        e(valu("v_add_f32", t1, 0x3727c5ac, t1))
        e(valu("v_cvt_pk_bf16_f32", t1, t1, t1)); e(valu("v_and_b32", t1, sHI, t1))
        e(valu("v_sqrt_f32", t1, t1))
        e(valu("v_cvt_pk_bf16_f32", t1, t1, t1)); e(valu("v_and_b32", t1, sHI, t1))
        e(valu("v_rcp_f32", rinv, t1))
        e(valu("v_lshlrev_b32", t0, 16, t0))
        e(I(f"v_mul_f32 {nb}, -{t0}, {rinv}", "valu", t0.ids() | rinv.ids(), nb.ids()))

    def norm_ops(self, reg, rinv, nb, k0=0):
        ops = []
        for d in range(4):
            lo = NT[(2 * (k0 + d)) % 8]; hi = NT[(2 * (k0 + d) + 1) % 8]; x = reg[d]
            ops += [valu("v_lshlrev_b32", lo, 16, x), valu("v_and_b32", hi, sHI, x),
                    valu("v_fma_f32", lo, lo, rinv, nb), valu("v_fma_f32", hi, hi, rinv, nb),
                    valu("v_cvt_pk_bf16_f32", x, lo, hi)]
        return ops

    def dots(self, reg, acc):
        ops = []
        for d in range(reg.n):
            ops.append(valu("v_dot2_f32_bf16", acc[d & 1], reg[d], sONE, acc[d & 1]))
            ops.append(valu("v_dot2_f32_bf16", acc[2 + (d & 1)], reg[d], reg[d], acc[2 + (d & 1)]))
        return ops

    def wrap(self, reg, q, span):
        return glue([scmp("s_cmp_eq_u32", sROT, 4 - q), salu("s_cselect_b32", sS2b, span, 0, scc_w=False, scc_r=True),
                     salu("s_sub_u32", reg, reg, sS2b)])

    def chunks(self, obj):
        k, j = obj
        if self.typ == "A":
            if k == "s1": return list(range(3 * (j % 7), 3 * (j % 7) + 3))
            return [6 + 2 * j, 7 + 2 * j]
        jj = j if k == "s1" else 16 + j
        return list(range(4 * (jj % 6), 4 * (jj % 6) + 4))

    def slab_dma(self, obj):
        L = self.L; k, j = obj; ch = self.chunks(obj); fl = C.w_fl
        def f(E): L.alloc(obj, ch)
        ops = [f, salu("s_add_u32", "m0", sM0B, 1024 * ch[0])]
        if k == "s1":
            st = 3072 if self.typ == "A" else 3584
            if self.typ == "A": ops += [dma(vH, SQKV, sS1, 1024 * u, obj, fl) for u in range(3)]
            else: ops += [dma(vG, SWG_, sS1, 0, obj, fl), dma(vU, SWU, sS1, 1024, obj, fl), dma(vG, SWG2, sS1, 2048, obj, fl), dma(vU, SWU2, sS1, 3072, obj, fl)]
            if j < 15: ops.append(salu("s_add_u32", sS1, sS1, 32 * st))
            if j % 4 == 3 and j < 15 and C.rot: ops.append(self.wrap(sS1, (j + 1) // 4, 512 * st))
        else:
            if self.typ == "A":
                ops += [salu("s_add_u32", sS2b, sS2, 16 * 3584 - 1024), dma(vG, SWH, sS2, 0, obj, fl), dma(vG, SWH, sS2b, 1024, obj, fl)]
            else:
                ops += [salu("s_add_u32", sS2b, sS2, 16 * 3584 - 2048), dma(vG, SWG_, sS2, 0, obj, fl), dma(vU, SWU, sS2, 1024, obj, fl),
                        dma(vG, SWG_, sS2b, 2048, obj, fl), dma(vU, SWU, sS2b, 3072, obj, fl)]
            if j < 7: ops.append(salu("s_add_u32", sS2, sS2, 64 * 3584))
            if j % 2 == 1 and j < 7 and C.rot: ops.append(self.wrap(sS2, (j + 1) // 2, 512 * 3584))
        return ops

    def b2_chunk(self, n):
        R_ = lambda lo, hi: list(range(lo, hi))
        if self.typ == "A":
            tab = R_(22, 32) + R_(22, 32) + R_(0, 12) + R_(32, 40) + R_(12, 22) + R_(22, 32) + R_(0, 12)
        else:
            tab = R_(24, 40) + R_(24, 40) + R_(0, 24) + R_(24, 32) + R_(0, 8)
        return tab[n]

    def b2_dma(self, n):
        L = self.L
        ks, cls, _ = step_info(n)
        ch = self.b2_chunk(n)
        def f(E): L.alloc(("b2", n), [ch])
        return [f, salu("s_add_u32", "m0", sM0B, 1024 * ch) if ch < 32 else salu("s_add_u32", "m0", sM0T, 4096 * (ch - 32)),
                self.b2_soff(n, sB2s),
                dma(vB2, SWO if cls == 2 else SWD, sB2s, 0, ("b2", n), C.b2_fl)]

    def bar(self, cover, m_done, lds_all=False, lds_tags=()):
        L = self.L
        def f(E):
            E.wait_tags(lds=list(lds_tags) + list(cover), vm=cover)
            if lds_all: E.wait_all_lds()
            if not (C.dbg_bar and cover and cover[0][0] == "b2"): E.barrier()
            L.visible |= set(cover); L.bar_m = m_done
        return f

    def acc2(self, t): return ACC2(t) if self.typ == "A" else ACC1(t)

    def acc1(self, t): return ACC1(t) if t < 6 else a(112 + 16 * (t - 6), 16)

    def seq(self, typ):
        out = []
        order = [2, 3, 4, 5, 0, 1] if typ == "A" else list(range(8))
        s1 = [(ks, t) for ks in range(28) for t in order] + [(ks, t) for t in order for ks in range(28, 32)]
        for ks, t in s1:
            obj = ("s1", ks // 2); base = (ks & 1) * 32768 + self.chunks(obj)[0] * 1024
            if True:
                if typ == "A":
                    out.append(dict(acc=ACC1(t), x=X(ks), sw=(t >= 4), obj=obj, addr=vTR[4 + (t & 1)],
                                    imm=base + (t >> 1) * 1024, st=512, first=(ks == 0)))
                else:
                    out.append(dict(acc=self.acc1(t), x=X(ks), sw=False, obj=obj, addr=vTR[t & 3], imm=base + (t >> 2) * 2048, st=512, first=(ks == 0)))
        nt = self.nt2
        k0 = self.k0
        s2 = [(ks, t) for ks in range(k0) for t in range(nt)] + [(ks, t) for t in range(nt) for ks in range(k0, 32)]
        for ks, t in s2:
            obj = ("s2", ks // 4); k = ks & 3
            out.append(dict(acc=self.acc2(t), x=X(ks), sw=False, obj=obj, addr=vTR[t],
                            imm=(k >> 1) * 32768 + self.chunks(obj)[0] * 1024 + (k & 1) * (1024 if typ == "A" else 2048),
                            st=256 if typ == "A" else 512, first=(ks == 0)))
        for n in range(72):
            iso = step_info(n)[1] == 2
            for j in ((1, 0) if n in (55, 71) else (0, 1)):
                ch = self.b2_chunk(n)
                out.append(dict(acc=(ACCS if iso else ACCD)[j], x=n, sw=False, obj=("b2", n),
                                addr=self.tr2[j] if ch < 32 else self.tr2t[j], j=j, imm=ch * 1024 if ch < 32 else (ch - 32) * 4096,
                                st=32768 if ch < 32 else 1024, first=(n in (0, 40))))
        for m, o in enumerate(out): self.L.last_use[o["obj"]] = m
        return out

    def wreads(self, m):
        o = self.SEQ[m]; L = self.L
        if o["obj"][0] == "b2" and o["obj"][1] < self.nF: return []
        def f(E): assert o["obj"] in L.visible, ("read of invisible", m, o["obj"])
        return [f, ds_tr(WF(m).sub(0, 2), o["addr"], o["imm"]), ds_tr(WF(m).sub(2, 2), o["addr"], o["imm"] + o["st"])]

    def main(self, m):
        o = self.SEQ[m]
        if isinstance(o["x"], int):
            def mk(peek):
                if peek and o["x"] not in self.a2slot: return None
                w = self.frag[(o["x"], o["j"])]["r"] if o["x"] < self.nF else WF(m)
                return mfma(o["acc"], w, self.a2slot[o["x"]]["r"], 0 if o["first"] else o["acc"])
            mn = dict(pre=[], m=mk, fix=[])
            if o["x"] < self.nF: mn["fix"].append(lambda E: self.pool.give(E, self.frag[(o["x"], o["j"])]))
            if m & 1: mn["fix"].append(lambda E: self.pool.give(E, self.a2slot[o["x"]]))
        else:
            A_, B_ = (o["x"], WF(m)) if o["sw"] else (WF(m), o["x"])
            mn = dict(pre=[], m=mfma(o["acc"], A_, B_, 0 if o["first"] else o["acc"]), fix=[])
        if m + C.D < len(self.SEQ): mn["fix"] += self.wreads(m + C.D)
        return mn

    def spin_check_tag(self):
        def f(E):
            ok = self.lab("tagok"); sp = self.lab("tagspin")
            E.emit(rfl(sTAG, vTAG))
            E.emit(scmp("s_cmp_eq_u32", sTAG, 0))
            E.line(f"s_cbranch_scc1 {sp}")
            E.label(ok)
            self.cold += [f"{sp}:", f"    s_mov_b32 {sSPIN}, 0", f"{sp}_l:",
                          f"    buffer_load_dword {vTAG}, off, {SDBG}, 0 sc1", f"    s_add_u32 {sSPIN}, {sSPIN}, 1",
                          "    s_waitcnt vmcnt(0)", f"    v_readfirstlane_b32 {sTAG}, {vTAG}",
                          f"    s_cmp_ge_u32 {sSPIN}, {C.spin_max}", f"    s_cbranch_scc1 {ok}",
                          f"    s_cmp_eq_u32 {sTAG}, 0", f"    s_cbranch_scc1 {sp}_l", f"    s_branch {ok}"]
        return f

    def poll_load(self, stage):
        return vload(self.vpl[stage], vP4, SWS, sFLR, 128 * stage, fl="sc1")

    def gate(self, stage):
        def f(E):
            ok = self.lab("gateok"); sp = self.lab("gatespin")
            self.stamp(f"g{stage}a")
            E.emit(vcmp("v_cmp_ne_u32", "vcc", sTAG, self.vpl[stage]))
            E.line(f"s_cbranch_vccnz {sp}")
            E.label(ok)
            ld = lambda r: f"    buffer_load_dword {r}, {vP4}, {SWS}, {sFLR} offen offset:{128 * stage} sc1"
            regs = [self.vpl[stage], vSP[0], vSP[1]][:C.npoll]; k = len(regs)
            self.cold += [f"{sp}:", f"    s_mov_b32 {sSPIN}, 0"] + [x for r in regs[:-1] for x in (ld(r), "    s_nop 15", "    s_nop 15")] + [f"{sp}_l:"]
            for q_ in range(k):
                self.cold += [ld(regs[(q_ + k - 1) % k]), f"    s_waitcnt vmcnt({k - 1})", f"    v_cmp_ne_u32 vcc, {sTAG}, {regs[q_]}", f"    s_cbranch_vccz {ok}"]
            self.cold += [f"    s_add_u32 {sSPIN}, {sSPIN}, 1", f"    s_cmp_ge_u32 {sSPIN}, {C.spin_max}", f"    s_cbranch_scc0 {sp}_l", f"    s_branch {ok}"]
            self.stamp(f"g{stage}b")
        return f

    def flag_store(self, stage, tags):
        def f(E):
            self.stamp(f"f{stage}a")
            E.wait_tags(vm=tags)
            self.stamp(f"f{stage}b")
            E.emit(vstore(vTAG, None, SWS, sFLW, 128 * stage, fl="sc1"))
        return f

    def a2_load(self, n):
        ks, cls, _ = step_info(n)
        o = []
        if self.a2base is None or self.a2base[0] != cls or not (0 <= ks - self.a2base[1] < 4):
            self.a2base = (cls, ks)
            o.append(salu("s_add_u32", sA2s, sA2c[cls], ks * 1024))
        imm = (ks - self.a2base[1]) * 1024
        kind = "AE" if n < 40 else "A"
        def f(E):
            x = self.a2slot[n] = self.pool.take(E, kind)
            if not (C.dbg_a2 and n >= C.dbg_a2): E.emit(vload(x["r"], vL16, SWS, sA2s, imm, fl=C.a2_fl))
        f.vm = True; f.ready = lambda E: self.pool.find(E, kind) is not None
        return o + [f]

    def pre_read(self, n):
        out = []
        for m in (self.M3 + 2 * n, self.M3 + 2 * n + 1):
            o = self.SEQ[m]
            def f(E, o=o):
                assert o["obj"] in self.L.visible
                x = self.frag[(n, o["j"])] = self.pool.take(E, "R")
                E.emit(ds_tr(x["r"].sub(0, 2), o["addr"], o["imm"], tag=("fr", n)))
                E.emit(ds_tr(x["r"].sub(2, 2), o["addr"], o["imm"] + o["st"], tag=("fr", n)))
            f.slots = 2
            out.append(f)
        return out

    def raw_load(self, n):
        ks, cls, _ = step_info(n)
        def f(E):
            x = self.rawslot[n] = self.pool.take(E, "R")
            E.emit(vload(x["r"], vB2, SWO if cls == 2 else SWD, sXo, 0, fl=C.b2_fl))
        f.vm = True; f.ready = lambda E: self.pool.find(E, "R") is not None
        return [self.b2_soff(n, sXo), f]

    def h_epilogue(self, T, sbase, imm, tag):
        ops = [valu("v_mul_f32", T[r], T[r], T[r + 8]) for r in range(8)]
        ops += [valu("v_cvt_pk_bf16_f32", T[r], T[2 * r], T[2 * r + 1]) for r in range(4)]
        if not (C.dbg_st and tag == "h1"): ops.append(vstore(T.sub(0, 4), vL16, SWS, sbase, imm, tag, C.st_fl))
        return ops

    def body(self, typ):
        E = self.E; e = E.emit
        self.L = L = LDSMap()
        E.m0_owner = None; E.fifo = None
        self.typ = typ
        isA = typ == "A"
        nt1, nt2 = (6, 2) if isA else (8, 4)
        self.nt2 = nt2; self.k0 = k0 = 24 if isA else 20
        M2 = self.M2 = 32 * nt1; M3 = self.M3 = M2 + 32 * nt2
        self.nF = 10 if isA else 16
        self.tr2 = [vTR[2], vTR[3]] if isA else [vEX, vHW]
        self.tr2t = vTR2T if isA else [vPM, vMHC]
        self.parked = self.tr2 + self.tr2t if isA else []
        self.frag = {}
        self.SEQ = self.seq(typ)
        self.a2base = None
        self.cold = []
        self.lane = v(200); self.vx = [v(204 + g) for g in range(4)]; self.hs = [v(196), v(197)]
        self.xa = xa = [v(216 + q) for q in range(4)]; self.acc = acc = [v(220 + q) for q in range(4)]
        self.ha = ha = [v(144 + i) for i in range(5)]; self.hacc = hacc = [v(149 + i) for i in range(4)]
        self.ww = [vU, vTR[2], vTR[3]] if isA else [vH, vW16, vHX]
        self.vpl = vPL + [self.ww[0]]
        self.stamp("t0")
        if C.stamps: E.line("s_memrealtime s[0:1]")
        first = self.setup_first(typ)
        rest = self.consts(typ)
        E.emits(first)
        k = max(0, C.npre - len(first))
        while k < len(rest) and SCC in rest[k].r: k += 1
        E.emits(rest[:k]); rest = rest[k:]
        E.line("s_waitcnt lgkmcnt(0)")
        self.stamp("karg")
        def inplace(d, size, other, shift=0):
            o = []
            if other is not None and shift: o += [salu("s_sub_u32", other[0], d[2], shift), salu("s_subb_u32", other[1], d[3], 0, scc_r=True)]
            elif other is not None: o += [smov(other[0], d[2]), smov(other[1], d[3])]
            return o + [smov(d[2], size), smov(d[3], 0x20000)]
        E.emits(inplace(SX, 0x200000, SQKV if isA else None))
        if isA: E.emits(inplace(SDBG, 256, SWS))
        def xd(sl):
            o = [salu("s_add_u32", "m0", sM0B, 4096 * sl), salu("s_add_u32", sA2s, sXo, sXk)]
            o += [dma(self.vx[g], SX, sA2s, 1024 * g, tag=("x", sl), fl=C.x_fl) for g in range(4)]
            if sl < 7: o += [salu("s_add_u32", sXk, sXk, 128), salu("s_and_b32", sXk, sXk, 1023)]
            return o
        if isA:
            for ee in range(2):
                for g in range(2):
                    e(salu("s_add_u32", "m0", sS2b, TB + 2048 * ee + 1024 * g))
                    e(dma(self.hs[g], SX, sHo, 0, tag="halo", fl=C.x_fl))
                if ee == 0: e(salu("s_add_u32", sHo, sHo, 128))
            lskip = self.lab("noep")
            e(salu("s_or_b32", sSPIN, sWG, sW))
            E.line(f"s_cbranch_scc1 {lskip}")
            E.line(f"s_mov_b32 {sSPIN}, {WS_EPOCH}")
            E.line(f"buffer_load_dword {vPOLL}, off, {SWS}, {sSPIN} sc1")
            E.label(lskip)
        E.emits(xd(0)); E.emits(xd(1))
        nx = 2
        if isA:
            if C.touch_w0: e(self.touch(vTW, SQKV, sT5))
            e(scmp("s_cmp_ge_u32", sW, 2))
            e(salu("s_cselect_b32", SWH[0], SWG_[2], SWG_[0], scc_w=False, scc_r=True))
            e(salu("s_cselect_b32", SWH[1], SWG_[3], SWG_[1], scc_w=False, scc_r=True))
        else:
            E.emits([salu("s_sub_u32", SWU2[0], SWG_[2], 2944), salu("s_subb_u32", SWU2[1], SWG_[3], 0, scc_r=True),
                     salu("s_sub_u32", SWG2[0], SWG_[0], 1920), salu("s_subb_u32", SWG2[1], SWG_[1], 0, scc_r=True)])
            E.emits(inplace(SWG_, 512 * 3584, SWU, 1024))
            if C.touch_w0: e(self.touch(vTW, SWG_, sT5)); e(self.touch(vTW, SWU, sT5, 1024))
            if C.x2early: E.emits(xd(2)); nx = 3
        self.stamp("issued")
        late_srd = ([] if isA else inplace(SDBG, 256, SWS)) + inplace(SWD, 1792 * 1024, SOUT) + inplace(SWO, 512 * 1024, None)
        E.emits(rest)
        if C.stamps: E.line("v_accvgpr_write_b32 a198, s0")
        self.stamp("rest")
        if C.pads:
            E.line("s_mov_b64 exec, 0")
            for w_ in (1, 2, 3):
                E.line(f"s_cmp_eq_u32 {sW}, {w_}"); E.line(f"s_cbranch_scc1 L_pad{typ}_{w_}")
            E.line(f"s_branch L_pad{typ}_0")
            E.label(f"L_back{typ}")
            E.line("s_mov_b64 exec, -1")
            E.out.append(f";PADS_FROM {typ}")
        self.stamp("pads")
        if nx == 2 and not isA: E.emits(xd(2)); nx = 3
        if isA:
            hx = v(128, 16); pr = v(154, 2); tp = v(156, 2); pp = v(158, 8)
            E.wait_tags(vm=["halo"])
            self.epoch_publish()
            for ee in range(2):
                for b in range(2): e(ds_rd(hx.sub(4 * (2 * ee + b), 4), ha[b], 2048 * ee))
            E.emits(xd(2)); nx = 3
            E.emits(self.dots(hx, hacc))
            e(valu("v_add_f32", pr[0], hacc[0], hacc[1])); e(valu("v_add_f32", pr[1], hacc[2], hacc[3]))
            for sw in (swap16, swap32):
                e(valu("v_mov_b32", tp[0], pr[0])); e(valu("v_mov_b32", tp[1], pr[1]))
                e(sw(pr[0], tp[0])); e(sw(pr[1], tp[1]))
                e(valu("v_add_f32", pr[0], pr[0], tp[0])); e(valu("v_add_f32", pr[1], pr[1], tp[1]))
            e(ds_wr(ha[3], pr, 0, tag="hp"))
        def xdots(k):
            E.emits(self.dots(v(16 * k, 16), acc)); L.xread.add(k)
        for sl in range(9):
            early = sl >= C.dots_first
            if sl > 0 and early: xdots(sl - 1)
            if sl < 8:
                E.wait_tags(vm=[("x", sl)])
                self.stamp(f"x{sl}")
                for q in range(4): e(ds_rd(X(4 * sl + q), xa[q], 4096 * sl))
                if nx < 8: E.emits(xd(nx)); nx += 1
            if isA and sl == 0:
                E.wait_tags(lds=["hp"]); E.barrier()
                for w_ in range(4): e(ds_rd(pp.sub(2 * w_, 2), ha[2], 4096 * w_))
            if isA and sl == 1:
                e(valu("v_add_f32", pr[0], pp[0], pp[2])); e(valu("v_add_f32", pr[1], pp[1], pp[3]))
                e(valu("v_add_f32", tp[0], pp[4], pp[6])); e(valu("v_add_f32", tp[1], pp[5], pp[7]))
                e(valu("v_add_f32", pr[0], pr[0], tp[0])); e(valu("v_add_f32", pr[1], pr[1], tp[1]))
                self.finish_stats(pr[0], pr[1], pp[0], pp[1], tp[0], tp[1])
            if isA and C.hn_at <= sl < C.hn_at + 4:
                E.emits(self.norm_ops(hx.sub(4 * (sl - C.hn_at), 4), pp[0], pp[1]))
                e(ds_wr(ha[4], hx.sub(4 * (sl - C.hn_at), 4), 1024 * (sl - C.hn_at), tag="hxw"))
            if sl > 0 and not early: xdots(sl - 1)
            for j in {C.w0at: [0], C.w0at + 1: [1], 6: [2], 7: [3] if C.w3early or isA else []}.get(sl, []):
                for it in self.slab_dma(("s1", j)): run_item(E, it)
        self.stamp("xdone")
        npn = C.npre_normA if isA else C.npre_norm
        def bx():
            self.bar([("s1", 0), ("s1", 1)], -1, lds_tags=["hxw"])(E)
            self.stamp("bx")
            for m in range(C.D):
                for it in self.wreads(m): run_item(E, it)
        e(valu("v_add_f32", acc[0], acc[0], acc[1])); e(valu("v_add_f32", acc[2], acc[2], acc[3]))
        e(valu("v_mov_b32", acc[1], acc[0])); e(valu("v_mov_b32", acc[3], acc[2]))
        e(swap32(acc[0], acc[1])); e(swap32(acc[2], acc[3]))
        e(valu("v_add_f32", acc[0], acc[0], acc[1])); e(valu("v_add_f32", acc[2], acc[2], acc[3]))
        self.finish_stats(acc[0], acc[2], vRINV, vNB, acc[1], acc[3])
        for ks in range(npn - 1): E.emits(self.norm_ops(X(ks), vRINV, vNB))
        bx()
        E.emits(self.norm_ops(X(npn - 1), vRINV, vNB))
        self.stamp("s1"); self.stamp("b0")

        mains = [self.main(m) for m in range(len(self.SEQ))]
        E.gap = 0; E.fifo = Fifo(); E.fifo.p = E.pos; E.fifo.n = 4
        D = C.D
        qN = Q("norm"); qD = Q("dma"); qH = Q("halo"); qB = Q("b2"); qW = Q("raw", hard=False); qU = Q("dump", vm_age=0)
        qE = Q("epi"); qE2 = Q("epi2", hard=False, top=True); qR = Q("restore"); qFl = Q("flag", top=True)
        self.pool = pool = Pool(); self.a2slot = {}; self.rawslot = {}; self.mark = {}
        started = lambda q: (len(q.items) > 0 and q.empty())
        pool.add(a(200, 56), "AR")
        pool.add(a(192, 4), "A", lambda: started(qR))
        if isA:
            pool.add(a(80, 32), "AR")
            pool.add(a(112, 24), "AR")
            pool.add(a(160, 32), "A", lambda: self.mark.get("masks"))
            pool.add(a(48, 32), "A", lambda: started(qE2))
            pool.add(a(136, 24), "A", lambda: started(qE)); pool.add(v(128, 96), "A", lambda: started(qE))
            rawl = list(range(40, 72))
        else:
            pool.add(a(144, 16), "AR"); pool.add(a(160, 32), "A")
            pool.add(a(48, 64), "AR")
            pool.add(a(112, 32), "AR", lambda: started(qE)); pool.add(v(192, 32), "AR", lambda: started(qE))
            pool.add(v(128, 64), "A", lambda: started(qE2))
            for k in list(range(8)) + [12, 13, 14, 15]: pool.add(X(k), "E", lambda k=k: E.gap > M2 + 4 * k + 3)
            rawl = list(range(44, 72))
        rawit = {}
        if C.raw:
            for n in rawl[:C.nrawA if isA else C.nrawB]:
                rawit[n] = self.raw_load(n)
                qW.adds(rawit[n], earliest=C.raw0A if isA else C.raw0B, deadline=M3 + 16 * (n // 8) - C.D - 40)
        def place(n):
            def f(E):
                need = M3 + 16 * (n // 8) - C.D
                if n in self.rawslot:
                    ch = self.b2_chunk(n); x = self.rawslot[n]
                    qU.add(lambda E: L.alloc(("b2", n), [ch]), deadline=need - 3)
                    if not C.dbg_dump: qU.add(ds_wr(vWQ, x["r"], 1024 * ch, tag=("b2", n)), deadline=need - 3)
                    qU.add(lambda E: pool.give(E, x), deadline=need - 3)
                else:
                    for it in rawit.get(n, []): it.dead = True
                    b2_add(n, E.gap)
            return f
        qG = Q("frag")
        def b2_add(n, gap, need=None):
            need = need or M3 + 16 * (n // 8) - D
            qB.adds(self.b2_dma(n), earliest=gap, deadline=need - C.b2lead - 2 * (7 - n % 8), hard=False)
            qB.add(lambda E: None, earliest=gap, deadline=max(need - 10, gap + 2))
        def frag_plan(g, step_, groups):
            b0 = C.b2gA if isA else C.b2gB
            cover = []; tags = []; gap = step_ * g - D
            for k, pg in enumerate(groups):
                if g == b0 + k:
                    for n in pg: b2_add(n, gap + 4, gap + 2 * step_)
                if g == b0 + k + 2:
                    cover += [("b2", n) for n in pg]
                    for n in pg:
                        qG.adds(self.pre_read(n), earliest=gap, deadline=gap + step_ - 3); L.last_use[("b2", n)] = gap + step_ - 1
                if g == b0 + k + 3:
                    tags += [("fr", n) for n in pg]
                    for n in pg: b2_add(n + self.nF, gap)
            return cover, tags
        def barrier(gap, cover, name, **kw):
            mains[gap]["npre"] = 2
            mains[gap]["pre"] += [lambda E: self.stamp(name + "a"), self.bar(cover, gap - 1, **kw), lambda E: self.stamp(name)]
        for ks in range(npn, 32):
            qN.adds(self.norm_ops(X(ks), vRINV, vNB, ks * 4), earliest=max(0, nt1 * (ks - C.nahead) - 1),
                    deadline=nt1 * ks if ks < 28 else nt1 * 28 + ks - 28)
        for j in (range(4, 7) if isA else range(4 if C.w3early else 3, 5)): qD.adds(self.slab_dma(("s1", j)), earliest=0, deadline=17 if isA else 20)
        qK = Q("scal")
        qK.adds(late_srd + self.scalars(typ), earliest=0, deadline=(24 if isA else 32) - D + 14)
        L.last_use[("T",)] = M2 + 40 if isA else -1
        tagload = vload(vTAG, None, SDBG, 0, fl="sc1")
        warm = []
        if C.touch_b2:
            tb = self.ww[0]
            warm = [[valu("v_lshlrev_b32", tb, 6, vL16), valu("v_and_b32", tb, 0x7c00, tb), valu("v_add_u32", tb, sCT, tb),
                     salu("s_lshl_b32", sRT, sRT, 2), salu("s_add_u32", sRT, sRT, sW),
                     salu("s_lshl_b32", sT5, sRT, 14), self.touch(tb, SWD, sT5)],
                    [salu("s_lshr_b32", sT5, sRT, 1), salu("s_lshl_b32", sT5, sT5, 2), salu("s_add_u32", sT5, sT5, sRT),
                     salu("s_add_u32", sT5, sT5, 12), salu("s_lshl_b32", sT5, sT5, 15), self.touch(tb, SWD, sT5)],
                    [salu("s_lshl_b32", sT5, sRT, 15), self.touch(tb, SWO, sT5)]]
        def slab(jj): return ("s1", jj) if jj < 16 else ("s2", jj - 16)
        if isA:
            for g in range(1, 9):
                gap = 24 * g - D
                cv, tg = frag_plan(g, 24, [range(0, 5), range(5, 10)])
                barrier(gap, ([("s1", 2 * g), ("s1", 2 * g + 1)] if g < 8 else [("s2", j) for j in range(4)]) + cv, f"b{g}", lds_tags=tg)
                its = []
                for j in (2 * g + 4, 2 * g + 5):
                    if 7 <= j < 16: its += self.slab_dma(("s1", j))
                for j in {6: [0, 1, 2], 7: [3, 4, 5], 8: [6, 7]}.get(g, []): its += self.slab_dma(("s2", j))
                k_ = g - (C.warm_gA if isA else C.warm_gB)
                if k_ in (0, C.warm_sp) and C.warm_all:
                    qD.adds(its, earliest=gap, deadline=gap + 16); its = []
                    wo = self.warm_ops(isA)
                    qK.adds(wo[0] + wo[1] if C.warm_sp == 0 else wo[k_ > 0], earliest=gap + 12, deadline=gap + 30)
                if C.b2g <= g < C.b2g + 3 and warm: its += warm[g - C.b2g]
                if g == 6: its.append(tagload)
                if g == C.warm_gA + C.warm_sp: qK.adds([accr(self.tr2[n_], a(aPARK + n_)) for n_ in range(2)], earliest=gap + 12, deadline=gap + 40)
                qD.adds(its, earliest=gap, deadline=gap + (14 if g == 7 else 23))
            for j in range(16):
                g0 = max(0, 12 * j - D + 1)
                b = j & 1; ch = self.chunks(("s1", j))[0] * 1024
                its = [ds_rd(aXH[b], vHX, 1024 * j)]
                for u in range(2):
                    its += [ds_tr(aW16[b][u].sub(0, 2), vW16, ch + 1024 * (1 + u)), ds_tr(aW16[b][u].sub(2, 2), vW16, ch + 1024 * (1 + u) + 512)]
                qH.adds(its, earliest=g0, deadline=12 * j + 4)
                qH.add(mfma(aHACC[0], aW16[b][0], aXH[b], 0 if j == 0 else aHACC[0], "16x16x32"), earliest=g0, deadline=12 * j + 8)
                qH.add(mfma(aHACC[1], aXH[b], aW16[b][1], 0 if j == 0 else aHACC[1], "16x16x32"), earliest=12 * j + 7, deadline=12 * j + 10)
            gap = M2 + 32 - D
            barrier(M2 + C.exbar, [], "ex", lds_tags=["exw"])
            barrier(gap, [("s2", j) for j in range(4, 8)], "mid")
            for n in range(20, 32): b2_add(n, gap)
            first_use = {0: list(range(32, 46)), 1: list(range(46, 50))}
        else:
            for g in range(1, 12):
                gap = 32 * g - D - (8 if g == 11 else 0)
                cv, tg = frag_plan(g, 32, [range(0, 8), range(8, 16)])
                barrier(gap, [slab(jj) for jj in {10: (20, 21, 22), 11: (23,)}.get(g, (2 * g, 2 * g + 1))] + cv, f"b{g}", lds_tags=tg)
                its = []
                for jj in {8: (19,), 9: (20, 21, 22)}.get(g, (2 * g + 3, 2 * g + 4)):
                    if jj < 24: its += self.slab_dma(slab(jj))
                k_ = g - (C.warm_gA if isA else C.warm_gB)
                if k_ in (0, C.warm_sp) and C.warm_all:
                    qD.adds(its, earliest=gap, deadline=gap + 16); its = []
                    wo = self.warm_ops(isA)
                    qK.adds(wo[0] + wo[1] if C.warm_sp == 0 else wo[k_ > 0], earliest=gap + 12, deadline=gap + 30)
                if C.b2g <= g < C.b2g + 3 and warm: its += warm[g - C.b2g]
                if g == 6: its.append(tagload)
                for n in {10: range(32, 36), 11: range(36, 44)}.get(g, []): b2_add(n, gap)
                qD.adds(its, earliest=gap, deadline=gap + {1: 28, 9: 22, 10: 7}.get(g, 18))
            first_use = {0: list(range(44, 48)), 1: list(range(48, 56))}
        def xfree(reg): return M2 + nt2 * ((reg.lo + reg.n - 1) // 4) + nt2 - 1
        qFl.add(self.spin_check_tag(), earliest=M2 - 8, deadline=M2 - 4)
        def after(q, stage, tags):
            def arm(E):
                f = self.flag_store(stage, tags); p0 = E.pos; g0_ = E.gap
                fd = C.flagd if stage in (0, 2) else C.flagl
                f.ready = lambda E: ((E.pos - p0) * 4 + (E.gap - g0_) * 8 >= fd or (E.gap - g0_) * 33 >= fd
                                     or not any(x[2] in tags for x in E.vq))
                qFl.add(f, earliest=E.gap)
            q.add(arm)
        if not isA:
            for t in range(8):
                T = ACC1(t if t < 6 else t - 2)
                its = [accr(T[r], self.acc1(t)[r]) for r in range(16)] if t >= 6 else []
                qE.adds(its + self.h_epilogue(T, sStF if t < 4 else sStH, 1024 * (t & 3), "h1"), earliest=nt1 * 28 + 4 * t + 3,
                        deadline=M2 - 1 if t < 4 else nt1 * 28 + 4 * t + 8, hard=(t < 4))
            after(qE, 0, ["h1"])
        else:
            self.attention(qE, xfree)
            n0 = self.exw_check[1]; nn = len(qE.items)
            for k in range(n0, nn):
                it, ear, dl, hd = qE.items[k]
                qE.items[k] = (it, ear, int(M2 + 8 + (M3 + C.att_end - M2 - 8) * (k - n0) / (nn - n0)), False)
            after(qE, 3, ["o"])
        schedule(E, mains[:M2], [qN, qK, qD, qH, qG, qB, qW, qFl, qE], lambda g: (C.cap1A if isA else C.cap1B) if g < nt1 * 28 else C.cap1t,
                 0, flush=False, vm_gap=C.vm1)
        assert qN.empty() and qH.empty()
        self.stamp("s2")

        qL = Q("a2"); qF = Q("fin", vm_age=60); qP = Q("poll", top=True)
        g0 = M3 if isA else M3 + C.gate0B
        for n_, dst in enumerate(self.parked):
            if dst.lo < 128: qR.add(accr(dst, a(aPARK + n_)), earliest=xfree(dst), deadline=min(g0, M3 - D) - 2)
        qR.add(valu("v_add_u32", vWQ, sM0B, vL16), earliest=xfree(vWQ), deadline=min(g0, M3 - D) - 2)
        tail = M2 + k0 * nt2; tl = 32 - k0
        for t in range(nt2):
            its = ([accr(E2T[r], ACC2(t)[r]) for r in range(16)] if isA else []) + self.h_epilogue(E2T if isA else ACC1(t), sSt2, 1024 * t, "h2" if t < 2 else "h3")
            qE2.adds(its, earliest=tail + tl * t + tl - 1, deadline=tail + tl * t + tl + 8)
            if t == 1: after(qE2, 1 if isA else 2, ["h2"])
            if t == 3: after(qE2, 4, ["h3"])
        mains[M3]["pre"].append(lambda E: self.stamp("p2"))
        for n_ in range(72): mains[M3 + 2 * n_]["fix"].insert(0, lambda E, n_=n_: self.stamp(f"n{n_}"))
        gates = {0: g0, 32: M3 + 2 * (32 - C.la1), 40: M3 + 2 * (40 - C.la2), 56: M3 + 2 * (56 - C.la3),
                 64: M3 + 2 * (64 - (C.la4A if isA else C.la4B))}
        def chk_free(q):
            def f(E): assert q.empty(), ("A2 slot still in use", q.name, E.gap)
            f.ready = lambda E: q.empty()
            return f
        cur = 0
        for n in range(72):
            if n in gates:
                cur = gates[n]; st = step_info(n)[2]; n0 = n
                qP.add(self.poll_load(st), earliest=cur - C.polld, deadline=cur - C.polld + 2)
                qL.add(self.gate(st), earliest=cur, deadline=cur + 1)
                if n == 0 and isA: qP.items[-1] = (qP.items[-1][0], M3 + 1, M3 + 1, False)
            its = self.a2_load(n)
            qL.adds(its, earliest=cur, deadline=M3 + 2 * n - C.a2lead, hard=False)
            qL.add(lambda E: None, earliest=cur, deadline=max(M3 + 2 * n - 6, M3 + 1 if isA else 0))
        if isA:
            def boundary(E):
                qs = [qFl, qE2, qE, qL, qB, qW, qU, qP]
                def flags():
                    while not qFl.empty() and (not hasattr(qFl.head()[0], "ready") or qFl.head()[0].ready(E)): step(E, qFl, qs)
                def one_vm(q):
                    while not q.empty() and q.head()[1] <= M3:
                        it = q.head()[0]
                        if hasattr(it, "ready") and not it.ready(E): return False
                        step(E, q, qs)
                        if is_vm(it) and not getattr(it, "dead", False): return True
                    return False
                left = len(qE.items) - qE.n; base = qE.n
                polled = gated = False; lastv = E.pos; nl = 0
                while not (qE2.empty() and qE.empty()):
                    a_, b_ = (qE2, qE) if not qE2.empty() else (qE, qE2)
                    h = a_.head()[0]
                    if not callable(h) and E.nops(h) > 0 and not b_.empty() and (callable(b_.head()[0]) or E.nops(b_.head()[0]) == 0): a_ = b_
                    elif not callable(h) and E.nops(h) > 0 and not qU.empty(): a_ = qU
                    step(E, a_, qs)
                    flags()
                    fr = (qE.n - base) / max(1, left)
                    if not polled and fr >= C.att_gate - 0.45: step(E, qP, qs); polled = True
                    if not gated and fr >= C.att_gate: step(E, qL, qs); gated = True
                    if E.pos - lastv >= 16:
                        if (gated and nl < 14 and one_vm(qL)): nl += 1; lastv = E.pos
                        elif one_vm(qB) or one_vm(qW): lastv = E.pos
                if not polled: step(E, qP, qs)
                if not gated: step(E, qL, qs)
                while nl < 12 and one_vm(qL): nl += 1; flags()
                E.pos += 1000; flags(); E.pos -= 1000
            mains[M3]["pre"].insert(0, boundary)
        b2q = list(range(50 if isA else 56, 72))
        prevpg = lambda n: max(k for k in range(n) if self.b2_chunk(k) == self.b2_chunk(n))
        for c in range(9):
            gap = M3 + 16 * c - D
            barrier(gap, [("b2", n) for n in range(8 * c, 8 * c + 8)] + (["xt"] if c == 7 else []), f"c{c}",
                    lds_tags=["sw", "xr"] if c == 8 else ())
            for n in first_use.get(c, []): mains[gap]["pre"].append(place(n))
            while b2q and L.last_use[("b2", prevpg(b2q[0]))] <= gap - 1: mains[gap]["pre"].append(place(b2q.pop(0)))
        assert not b2q
        RD = v(0, 16); SF = v(16, 16); XF = v(48, 16); XR = v(224, 8); tt = v(32, 4)
        vRW = vTR[0]; vRR = vTR[1]; vOW = vRINV; vOR = vNB; vOO = vTR[4]; vXD = vTR[5]; vXA = vG
        qF.add(chk_free(qE), earliest=M3 + 30); qF.add(chk_free(qE2), earliest=M3 + 30)
        its = [valu("v_lshrrev_b32", tt[0], 4, vL16), valu("v_and_b32", tt[1], 31, tt[0]),
               valu("v_lshrrev_b32", tt[2], 5, tt[0]), valu("v_lshlrev_b32", tt[2], 3, tt[2]),
               salu("s_lshr_b32", sT0, sM0B, 3), salu("s_add_u32", sT0, sT0, TB), valu("v_add_u32", vRW, sT0, vL16),
               valu("v_xor_b32", vRR, 8192, vRW),
               salu("s_and_b32", sT0, sW, 1), salu("s_lshl_b32", sT1, sT0, 12), salu("s_add_u32", sT1, sT1, TB + 16384),
               valu("v_lshlrev_b32", tt[3], 7, tt[1]), valu("v_add3_u32", vXA, tt[3], tt[2], sT1),
               valu("v_and_b32", tt[3], 7, tt[0]), valu("v_lshlrev_b32", tt[3], 4, tt[3]),
               salu("s_lshl_b32", sT1, sKH, 6), valu("v_xor_b32", tt[3], sT1, tt[3]), valu("v_add_u32", vXA, vXA, tt[3]),
               salu("s_mul_i32", sT0, sT0, 32 * 144, scc_w=False), salu("s_add_u32", sT0, sT0, sT1), salu("s_add_u32", sT0, sT0, TB),
               valu("v_mul_u32_u24", tt[1], 144, tt[1]), valu("v_add3_u32", vOW, tt[1], tt[2], sT0),
               valu("v_lshrrev_b32", tt[1], 3, tt[0]), valu("v_and_b32", tt[2], 0x70, vL16),
               valu("v_lshl_add_u32", vOO, tt[1], 10, tt[2]),
               valu("v_lshlrev_b32", tt[3], 4, tt[1]), valu("v_xor_b32", vXD, vOO, tt[3]),
               salu("s_mul_i32", sT0, sW, 16 * 144, scc_w=False), salu("s_add_u32", sT0, sT0, TB),
               valu("v_mul_u32_u24", tt[1], 144, tt[1]), valu("v_add3_u32", vOR, tt[1], tt[2], sT0),
               salu("s_lshl_b32", sXk, sW, 11), salu("s_add_u32", sXk, sXk, TB + 16384), salu("s_add_u32", sXs, sOut, 8192)]
        its += [vload(XR.sub(0, 4), vXD, SX, sOut), vload(XR.sub(4, 4), vXD, SX, sXs), valu("v_add_u32", vXD, sXk, vL16)]
        qF.adds(its, earliest=M3 + 30, deadline=M3 + 64)
        qF.adds([ds_wr(vXD, XR.sub(4 * i, 4), 1024 * i, tag="xt") for i in range(2)], earliest=M3 + 96 - D, deadline=M3 + 112 - D - 2)
        its = []
        for a_ in range(4):
            its += [valu("v_xor_b32", tt[a_], 16 * a_, vXA), ds_rd(XR.sub(2 * a_, 2), tt[a_], 0, tag="xr")]
        qF.adds(its, earliest=M3 + 112 - D, deadline=M3 + 128 - D - 1)
        qF.adds([ds_wr(vRW, ACCS[1].sub(4 * i, 4), 1024 * i, tag="sw") for i in range(4)], earliest=M3 + 111, deadline=M3 + 128 - D)
        its = []
        for r in range(8):
            its += [valu("v_lshlrev_b32", XF[2 * r], 16, XR[r]), valu("v_and_b32", XF[2 * r + 1], sHI, XR[r])]
        qF.adds(its, earliest=M3 + 112)
        its = [ds_rd(SF.sub(4 * i, 4), vRR, 1024 * i) for i in range(4)]
        its += [valu("v_add_f32", SF[r], SF[r], ACCS[0][r]) for r in range(16)]
        CK = v(38, 2); C1 = v(40, 2)
        its += [valu("v_mov_b32", CK[0], 0xbfb8aa3b), valu("v_mov_b32", CK[1], 0xbfb8aa3b), valu("v_mov_b32", C1[0], 1.0), valu("v_mov_b32", C1[1], 1.0)]
        qF.adds(its, earliest=M3 + 128 - D)
        cap2 = C.cap2A if isA else C.cap2B
        def capf(g):
            if not isA and not qE.empty(): return C.cap2h
            if g < tail + tl - 1: return cap2
            if g < M3: return C.cap2t
            if not qE2.empty(): return 40
            return C.cap3 if qE.empty() else C.cap3x
        schedule(E, mains[M2:], [qFl, qP, qD, qG, qL, qB, qW, qU, qR, qE2, qE, qF], capf, M2, flush=False,
                 vm_gap=lambda g: C.vm1 if g < M3 else C.vm3)
        assert qL.empty() and qD.empty() and qB.empty() and qE.empty() and qE2.empty() and qFl.empty()
        self.stamp("lastm")
        while not qF.empty():
            it = qF.head()[0]; qF.n += 1; run_item(E, it)
        for i in range(4): e(ds_wr(vRW, ACCD[1].sub(4 * i, 4), 16384 + 1024 * i, tag="dw"))
        E.wait_tags(lds=["dw"]); E.barrier()
        self.stamp("sbar")
        for i in range(4): e(ds_rd(RD.sub(4 * i, 4), vRR, 16384 + 1024 * i))
        G = ACCS[1]
        def pk(op, d, *src):
            r = set()
            for x in src: r |= ids(x)
            return I(f"{op} {d}, " + ", ".join(fmt(x) for x in src), "valu", r, ids(d))
        P2 = lambda reg, r: reg.sub(r, 2)
        for a_ in range(4):
            pp_ = (4 * a_, 4 * a_ + 2); rr = range(4 * a_, 4 * a_ + 4)
            for r in pp_: e(pk("v_pk_add_f32", P2(RD, r), P2(RD, r), P2(ACCD[0], r)))
            for r in pp_: e(pk("v_pk_mul_f32", P2(G, r), P2(RD, r), CK))
            for r in pp_: e(pk("v_pk_mul_f32", P2(RD, r), P2(RD, r), P2(SF, r)))
            for r in rr: e(valu("v_exp_f32", G[r], G[r]))
        for a_ in range(4):
            pp_ = (4 * a_, 4 * a_ + 2); rr = range(4 * a_, 4 * a_ + 4)
            for r in pp_: e(pk("v_pk_add_f32", P2(G, r), P2(G, r), C1))
            for r in rr: e(valu("v_rcp_f32", G[r], G[r]))
        for a_ in range(4):
            pp_ = (4 * a_, 4 * a_ + 2)
            for r in pp_: e(pk("v_pk_fma_f32", P2(RD, r), P2(RD, r), P2(G, r), P2(XF, r)))
            for d in range(2): e(valu("v_cvt_pk_bf16_f32", XR[2 * a_ + d], RD[4 * a_ + 2 * d], RD[4 * a_ + 2 * d + 1]))
            e(ds_wr(vOW, XR.sub(2 * a_, 2), 16 * a_))
        E.wait_all_lds(); E.barrier()
        for p in range(2): e(ds_rd(G.sub(4 * p, 4), vOR, 8 * 144 * p))
        for p in range(2): e(vstore(G.sub(4 * p, 4), vOO, SOUT, sXs if p else sOut, 0, fl=C.out_fl))
        self.stamp("end")
        if C.amp:
            l = self.lab("amp")
            E.line("s_waitcnt lgkmcnt(0)")
            if C.amp.startswith("sk"):
                E.line(f"buffer_load_dword v0, off, {SDBG}, 0 offset:4 sc1"); E.line("s_waitcnt vmcnt(0)"); E.line(f"v_readfirstlane_b32 {sT1}, v0"); E.line("s_nop 4")
                if C.amp == "skp": E.line(f"s_sub_u32 {sT0}, s{STAMP0}, {sT1}")
                else: E.line(f"s_sub_u32 {sT0}, {sT1}, s{STAMP0}")
                E.line(f"s_max_i32 {sT0}, {sT0}, 0")
            else:
                k0, k1 = [STAMP0 + 2 * int(x) for x in C.amp.split("-")]
                E.line(f"s_sub_u32 {sT0}, s{k1}, s{k0}")
            pass; E.line(f"s_lshl_b32 {sT0}, {sT0}, 2"); E.line(f"s_add_u32 {sT0}, {sT0}, s{STAMP0 + 16}")
            E.label(l)
            E.line("s_memrealtime s[84:85]"); E.line("s_waitcnt lgkmcnt(0)"); E.line(f"s_sub_u32 s84, s84, {sT0}")
            E.line("s_cmp_lt_i32 s84, 0"); E.line(f"s_cbranch_scc1 {l}")
        elif C.stamps:
            E.line("s_waitcnt lgkmcnt(0)")
            e(salu("s_lshl_b32", sT0, sWG, 2)); e(salu("s_add_u32", sT0, sT0, sW)); e(salu("s_lshl_b32", sT0, sT0, 7))
            e(salu("s_add_u32", sT0, sT0, WS_STAMP))
            for k in range(9):
                e(valu("v_mov_b32", v(0), s(STAMP0 + 2 * k))); e(vstore(v(0), None, SWS, sT0, 4 * k))
            e(accr(v(0), a(198))); e(vstore(v(0), None, SWS, sT0, 44))
            E.line("s_memrealtime s[84:85]"); E.line("s_getreg_b32 s86, hwreg(HW_REG_XCC_ID)"); E.line("s_waitcnt lgkmcnt(0)")
            e(valu("v_mov_b32", v(0), s(84))); e(vstore(v(0), None, SWS, sT0, 36))
            e(valu("v_mov_b32", v(0), s(86))); e(vstore(v(0), None, SWS, sT0, 40))
        E.line("s_endpgm")
        E.out += self.cold

    def epoch_publish(self):
        E = self.E
        l = self.lab("nopub")
        E.emit(salu("s_or_b32", sT0, sWG, sW))
        E.line(f"s_cbranch_scc1 {l}")
        E.line(f"s_mov_b32 {sT0}, 0x9e3779b1")
        E.line(f"v_mul_lo_u32 {vPOLL}, {vPOLL}, {sT0}")
        E.line(f"v_add_u32 {vPOLL}, 0x7f4a7c15, {vPOLL}")
        E.line(f"v_max_u32 {vPOLL}, 1, {vPOLL}")
        E.line(f"s_mov_b32 {sT0}, {WS_EPOCH}")
        E.line(f"buffer_store_dword {vPOLL}, off, {SWS}, {sT0} sc1")
        if C.amp.startswith("sk"):
            E.line(f"v_mov_b32 v0, s{STAMP0}"); E.line(f"buffer_store_dword v0, off, {SDBG}, 0 offset:4 sc1"); E.line("s_waitcnt vmcnt(0)")
        E.line(f"buffer_store_dword {vPOLL}, off, {SDBG}, 0 sc1")
        E.label(l)

    def attention(self, q, xfree):
        M2 = self.M2
        Q0, Q1, K0, K1, V0, V1 = [ACC1(t) for t in range(6)]
        cvt = lambda d, x, y: valu("v_cvt_pk_bf16_f32", d, x, y)
        def pack(dst, src, n=8): return [cvt(dst[i], src[2 * i], src[2 * i + 1]) for i in range(n)]
        its = pack(K0, K0) + pack(K0.sub(8, 8), K1)
        its += [ds_wr(vEX, K0.sub(4 * h, 4), 6144 + 1024 * h, tag="exw") for h in range(4)]
        its += pack(V0, V0) + pack(V0.sub(8, 8), V1)
        bar2 = M2 + C.exbar
        q.adds(its, earliest=M2 - 21, deadline=bar2 - 1)
        its = [ds_wr(vEX, V0.sub(4 + 8 * j, 4), 6144 + 4096 + 1024 * j, tag="exw") for j in range(2)]
        its += [accr(NT[i], aHACC[0][i]) for i in range(4)] + [accr(NT[4 + i], aHACC[1][i]) for i in range(4)]
        hk = v(NT[0].lo, 2); hv = v(NT[4].lo, 2)
        its += [cvt(NT[0], NT[0], NT[1]), cvt(NT[1], NT[2], NT[3]), cvt(NT[4], NT[4], NT[5]), cvt(NT[5], NT[6], NT[7])]
        its += [salu("s_lshl_b32", sT0, sW, 10), salu("s_add_u32", sT0, sT0, 256), valu("v_add_u32", NT[2], sT0, vHW),
                salu("s_lshr_b32", sT0, sW, 1), salu("s_lshl_b32", sT0, sT0, 10), salu("s_and_b32", sT1, sW, 1),
                salu("s_lshl_b32", sT1, sT1, 8), salu("s_add_u32", sT0, sT0, sT1), valu("v_add_u32", NT[3], sT0, vHW),
                ds_wr(NT[2], hk, 0, tag="exw"), ds_wr(NT[3], hv, 4096, tag="exw")]
        q.adds(its, earliest=M2 - 1, deadline=bar2 - 1)
        self.exw_check = (q, len(q.items))
        q.adds(pack(Q0, Q0) + pack(Q0.sub(8, 8), Q1), earliest=M2)
        MASK = v(208, 24)
        its = [accr(vRINV, a(196)), accr(vNB, a(197)), smov(sONE, NEG)]
        for r in range(24):
            rr = r if r < 16 else r - 8
            its += [valu("v_bfe_i32", MASK[r], vNB if r < 16 else vRINV, 8 * (rr >> 2) + (rr & 3), 1), valu("v_and_b32", MASK[r], sONE, MASK[r])]
        q.adds(its, earliest=M2)
        q.add(lambda E: self.mark.update(masks=True), earliest=M2)
        SC = K1; SP = v(0, 16); U = v(16, 8); P = v(24, 12); O = Q1
        mx, tm, mc = vRINV, vNB, vW16
        sums = [vHX, vH]; t2 = vTR[4]
        def add(i, ear=0):
            w = [x for x in i.w if x < 128]
            e_ = max([xfree(v(x)) for x in w], default=0)
            q.add(i, earliest=max(e_, ear))
        def qk(h, which):
            if which == 0: add(mfma(SC, K0.sub(4 * h, 4), Q0.sub(4 * h, 4), MASK.sub(0, 16)))
            else: add(mfma(SP, aKP[h], Q0.sub(4 * h, 4), MASK.sub(8, 16)))
        def fin(h):
            o = 8 * (h & 1); sm = sums[h & 1]
            l = [valu("v_rcp_f32", sm, sm)]
            l += [valu("v_mul_f32", O[o + r], O[o + r], sm) for r in range(8)]
            l += [cvt(O[o + r], O[o + 2 * r], O[o + 2 * r + 1]) for r in range(4)]
            l.append(vstore(O.sub(o, 4), vL16, SWS, sStF, 1024 * h, "o", C.st_fl))
            return l
        qk(0, 0)
        q.adds([ds_rd(aKP[h], vEX, 1024 * h) for h in range(4)] + [ds_rd(aVP[j], vEX, 4096 + 1024 * j) for j in range(2)], earliest=bar2)
        qk(0, 1)
        for h in range(4):
            for i in range(4): add(valu("v_max_f32", U[i], SC[2 * i], SC[2 * i + 1]))
            for i in range(4, 8): add(valu("v_max3_f32", U[i], SC[2 * i], SC[2 * i + 1], SP[2 * i]))
            if h < 3: qk(h + 1, 0)
            for i in range(4, 8): add(valu("v_max_f32", U[i], U[i], SP[2 * i + 1]))
            add(valu("v_max3_f32", mx, U[0], U[1], U[2])); add(valu("v_max3_f32", tm, U[3], U[4], U[5]))
            if h < 3: qk(h + 1, 1)
            add(valu("v_max3_f32", mx, mx, U[6], U[7])); add(valu("v_max_f32", mx, mx, tm))
            add(valu("v_mov_b32", tm, mx))
            fl = fin(h - 1) if h > 0 else []
            for x in fl[:3]: add(x)
            add(swap32(mx, tm)); add(valu("v_max_f32", mx, mx, tm))
            add(I(f"v_mul_f32 {mc}, -{mx}, {sCSC}", "valu", mx.ids() | sCSC.ids(), mc.ids()))
            for x in fl[3:]: add(x)
            for i in range(8): add(valu("v_fma_f32", U[i], U[i], sCSC, mc))
            for i in range(8): add(valu("v_exp_f32", U[i], U[i]))
            sm = sums[h & 1]; j = h >> 1
            for i in range(4):
                add(cvt(P[i], U[i], U[i])); add(valu("v_and_b32", P[i], vPM, P[i]))
            add(valu("v_add_f32", sm, U[0], U[1])); add(valu("v_add_f32", tm, U[2], U[3]))
            add(mfma(O, V0.sub(8 * j, 4), P.sub(0, 4), 0))
            for i in range(4):
                add(cvt(P[8 + i], U[4 + i], U[4 + i])); add(valu("v_and_b32", P[4 + i], vMHC, P[8 + i]))
            add(valu("v_add_f32", t2, U[4], U[5])); add(valu("v_add_f32", sm, sm, tm))
            add(mfma(O, V0.sub(8 * j + 4, 4), P.sub(4, 4), O))
            for i in range(4): add(valu("v_and_b32", P[8 + i], vMHP, P[8 + i]))
            add(valu("v_add_f32", tm, U[6], U[7])); add(valu("v_add_f32", t2, t2, tm))
            add(mfma(O, aVP[j], P.sub(8, 4), O))
            add(valu("v_add_f32", sm, sm, t2))
            add(valu("v_mov_b32", tm, sm))
            add(swap32(sm, tm)); add(valu("v_add_f32", sm, sm, tm))
        for x in fin(3): add(x)

    def build(self):
        E = self.E
        self.stamp("t00")
        E.emit(scmp("s_cmp_ge_u32", sWG, 256))
        E.line("s_cbranch_scc1 L_end")
        E.line("s_load_dwordx16 s[8:23], s[0:1], 0")
        E.line("s_load_dwordx4 s[24:27], s[0:1], 64")
        E.emit(salu("s_lshr_b32", sJ, sWG, 3))
        self.code_touch()
        E.emit(I("s_bitcmp1_b32 s6, 3", "salu", sJ.ids(), {SCC}))
        E.line("s_cbranch_scc1 L_typeB")
        snap = E.snapshot()
        self.body("A")
        E.label("L_typeB")
        E.restore(snap)
        self.body("B")
        E.label("L_end")
        E.line("s_endpgm")
        E.label("L_code_end")
        E.out.append(".p2align 12")
        head = open(os.path.join(os.path.dirname(os.path.abspath(__file__)), "head.txt")).read()
        txt = head + f"""; @launch grid=(256,1,1) block=(256,1,1) lds=163840
.amdgcn_target "amdgcn-amd-amdhsa--gfx950"
.text
.globl {NAME}
.p2align 8
.type {NAME},@function
{NAME}:
""" + E.text() + f""".section .rodata,"a"
.p2align 6
.amdhsa_kernel {NAME}
  .amdhsa_next_free_vgpr 512
  .amdhsa_next_free_sgpr 102
  .amdhsa_accum_offset 256
  .amdhsa_group_segment_fixed_size 0
  .amdhsa_kernarg_size 80
  .amdhsa_user_sgpr_count 2
  .amdhsa_user_sgpr_kernarg_segment_ptr 1
  .amdhsa_system_sgpr_workgroup_id_x 1
.end_amdhsa_kernel
"""
        return txt


def place_pads(txt):
    import subprocess, re, tempfile
    sys.path.insert(0, "cdna_kernels")
    from cdna_launch import with_harness_metadata
    lines = txt.split("\n")
    probe = []
    for n, l in enumerate(lines):
        if l.startswith("    ") and not l.strip().startswith(";") and not l.strip().startswith("."): probe.append(f"LP_{n}:")
        probe.append(re.sub(r"L_pad[AB]_\d+", "L_end", l))
    d = tempfile.mkdtemp()
    open(d + "/p.s", "w").write(with_harness_metadata("\n".join(probe), NAME, 10, launch_lists=True))
    subprocess.run(["clang", "-x", "assembler", "-target", "amdgcn-amd-amdhsa", "-mcpu=gfx950", d + "/p.s", "-o", d + "/p.co"], check=True)
    sym = subprocess.run(["llvm-objdump", "-t", d + "/p.co"], capture_output=True, text=True).stdout
    addr = {int(m.group(2)): int(m.group(1), 16) for m in re.finditer(r"([0-9a-f]{16}) .* LP_(\d+)", sym)}
    shift = 0; typ = None; pads = {"A": [], "B": []}; prev = None
    for n, l in enumerate(lines):
        if l.startswith(";PADS_FROM"): typ = l.split()[1]
        if l.startswith("L_typeB:") or l.startswith("L_end:"): typ = None
        if n in addr:
            a_ = addr[n] + shift
            if typ and prev is not None and prev // 4096 != a_ // 4096:
                pads[typ].append(n); shift += 4
            prev = a_
    out = []
    for n, l in enumerate(lines):
        for t in "AB":
            if n in pads[t]:
                k = pads[t].index(n)
                out.append(f"L_pad{t}_{k}:")
                out.append(f"    s_cbranch_execz " + (f"L_pad{t}_{k + 4}" if k + 4 < len(pads[t]) else f"L_back{t}"))
        out.append(l)
    print("pads", {t: len(pads[t]) for t in pads}, "kernel at", hex(min(addr.values())))
    assert min(len(pads[t]) for t in pads) >= 4
    return "\n".join(out)


if __name__ == "__main__":
    g = Gen()
    txt = g.build()
    if C.pads: txt = place_pads(txt)
    open(sys.argv[1], "w").write(txt)
    print("instructions:", g.E.ninst)
```

```python
import sys, os
sys.path.insert(0, os.path.dirname(os.path.abspath(__file__)))
from emit import *

NAME = "recurrent_scan__sliding_local_dilated__glu_gated_bilinear__prompt_kernel"

class Cfg:
    stamps = False
    stset = "a"
    rt = False
    D = 6
    nahead = 4; cap1A = 6.0; cap1B = 6.0; cap1t = 8.0; cap2h = 9.0; cap2A = 7.5; cap2B = 7.0; cap3 = 7.0; cap2t = 7.5; cap3x = 20.0
    npre = 120
    att_gate = 0.7; gate0B = -44; vm1 = 2.0; vm3 = 8.0; nrawA = 0; nrawB = 10; warm_gA = 2; warm_gB = 1; warm_sp = 1; b2gA = 2; b2gB = 1; raw0A = 130; raw0B = 270
    rot = True; rot_half = False
    pads = True
    la1 = 14; la2 = 14; la3 = 18; la4A = 13; la4B = 18
    polld = 34
    flagd = 600
    b2lead = 24; a2lead = 30; att_end = 30
    dbg_st = False; dbg_a2 = 0; dbg_dump = False; dbg_bar = False
    amp = ""
    lg_old = 10; vmfirst = False
    wsoff = 0
    rot2 = True; flagl = 300
    raw = True; raw0 = 84
    npre_norm = 1; npre_normA = 1; hn_at = 4; dots_first = 6; exbar = 12; npoll = 3
    w3early = True
    pre_xn = False; p0mode = 3; nw0A = 4; nw0B = 3; warm_pre = True; mimic = True; xlead = 26; w_first = 0
    w0at = 4; touch_w0 = 4; x2early = False
    touch_code = True
    touch_b2 = False; b2g = 4
    warm_all = True; warm_byA = False
    a2_fl = "sc1"; st_fl = "sc1"; pre_a2 = 0; x_fl = ""; w_fl = ""; b2_fl = ""; out_fl = ""
    spin_max = 1 << 16

C = Cfg()
import emit as _emit
for arg in sys.argv[2:]:
    k, val = arg.split("=")
    old = getattr(C, k)
    setattr(C, k, (val not in ("0", "False")) if isinstance(old, bool) else type(old)(val.replace("+", " ")))

Emitter.LG_OLD = C.lg_old
WS_FLAG = 0x900000
WS_EPOCH = 0xA00000
WS_STAMP = 0xB00000
WS_FL0 = 0x980000
WS_XN = 0xC00000
WS_SIZE = 0xE00000
TB = 131072

sWG = s(2); sW = s(3); sRB = s(4); sIDX = s(5); sJ = s(6); sXCD = s(7)
SX, SWO, SWG_, SWD, SDBG, SP5, SWU, SOUT, SWS, SP9 = [s(8 + 4 * i, 4) for i in range(10)]
SQKV = SWG2 = SP5; SWH = SWU2 = SP9
(sA2s, sB2s, sM0B, sT0, sT1, sS1, sS2, sS2b, sTAG, sFLW, sFLR, sStF, sStH, sSt2, sHI, sONE, sSPIN, sT2, sOut, sT5,
 sRT, sCT, sKH, sCSC, sXs, sM0T, sXo, sXk, sROT, sC512, sA2c0, sA2c1, sA2c2, sB2c0, sB2c1, sB2c2) = [s(48 + i) for i in range(36)]
sA2c = [sA2c0, sA2c1, sA2c2]; sB2c = [sB2c0, sB2c1, sB2c2]
sHo = sB2s
sPC = s(48, 2)
STAMP0 = 84

def X(ks): return v(4 * ks, 4)
def ACC1(t): return v(128 + 16 * t, 16)
NT = [v(224 + i) for i in range(8)]
vTR = [v(232 + i) for i in range(6)]
vG = v(238); vU = v(239); vH = v(240)
vB2 = v(241); vTW = v(242)
vL16 = v(243); vRINV = v(244); vNB = v(245); vW16 = v(246); vHX = v(247)
vTAG = v(248); vPOLL = v(249); vP4 = v(250); vTB = vTAG
vEX = v(251); vHW = v(252); vPM = v(253); vMHC = v(254); vMHP = v(255)
vTR2T = [v(42), v(43)]; vTR2 = [v(44), v(45)]; vWQ = v(46)
vPL = [vPOLL, v(36), v(37), v(47)]
vSP = [vTW, v(46 - 5)]
PARKED = vTR2T + vTR2
E2T = v(48, 16)
ACCD = [v(64, 16), v(80, 16)]; ACCS = [v(96, 16), v(112, 16)]
def WF(m): return a(4 * (m % 12), 4)
def ACC2(t): return a(48 + 16 * t, 16)
aMASK = a(112, 24); aKP = [a(136 + 4 * i, 4) for i in range(4)]; aVP = [a(152 + 4 * i, 4) for i in range(2)]
aHACC = [a(160, 4), a(164, 4)]; aXH = [a(168, 4), a(172, 4)]
aW16 = [[a(176, 4), a(180, 4)], [a(184, 4), a(188, 4)]]
aPARK = 192
aDUM0 = a(199); vDUM1 = v(37)

NEG = 0xf149f2ca


class LDSMap:
    def __init__(self):
        self.own = {c: ("free",) for c in range(32)}
        for c in range(32, 40): self.own[c] = ("T",)
        self.last_use = {("free",): -1}
        self.visible = set()
        self.bar_m = -1
        self.xread = set()
    def alloc(self, obj, chunks):
        for c in chunks:
            o = self.own[c]
            if o[0] == "x": assert o[1] in self.xread, (obj, c, o)
            else: assert self.last_use[o] <= self.bar_m, (obj, c, o, self.last_use[o], self.bar_m)
            self.own[c] = obj
    def check_read(self, obj, chunks):
        assert obj in self.visible, ("not visible", obj)
        for c in chunks: assert self.own[c] == obj, (obj, c, self.own[c])


SHIFT = [48, 8, 16]


def step_info(n):
    if n < 32: return 16 + 12 * (n >> 3) + (n & 7), 0, 0
    if n < 40: return n - 32, 1, 1
    if n < 56: return 112 + n - 40, 2, 3
    hi = n >= 64; k = (n - 56) & 7
    return 24 + 12 * (k >> 1) + (k & 1) + 2 * hi, 0, (4 if hi else 2)


class Gen:
    def __init__(self):
        self.E = Emitter()
        self.E.trace = bool(os.environ.get("TRACE"))
        self.nlabel = 0
        self.nstamp = 0

    def lab(self, base):
        self.nlabel += 1
        return f"L_{base}_{self.nlabel}"

    STS = {"a": ["t0", "issued", "x0", "xdone", "s1", "s2", "p2", "lastm", "end"],
           "b": ["t0", "g0a", "g0b", "p2", "g1a", "g1b", "g2a", "g2b", "end"],
           "e": ["t0", "karg", "issued", "rest", "pads", "x0", "x1", "x3", "end"],
           "f": ["t0", "x4", "x5", "x6", "x7", "xdone", "s1", "b1", "end"],
           "g": ["t0", "s1", "b1a", "b1", "b2a", "b2", "b3a", "b3", "end"],
           "h": ["t0", "b3", "b4", "b5", "b6", "b7", "b8", "s2", "end"],
           "j": ["t0", "g2b", "n48", "n55", "n56", "n60", "n64", "n71", "end"],
           "k": ["t0", "g0b", "n0", "n4", "n8", "n16", "n24", "n31", "end"],
           "l": ["t0", "g1b", "g3b", "n31", "n32", "n39", "n40", "n47", "end"],
           "m": ["t0", "n0", "n8", "n16", "n24", "n32", "n40", "n56", "end"],
           "n": ["t0", "c0a", "c0", "c1a", "c1", "c2a", "c2", "c3a", "c3"],
           "o": ["t0", "c4a", "c4", "c5a", "c5", "c6a", "c6", "c7a", "c7"],
           "p": ["t0", "g0a", "g0b", "g1a", "g1b", "g3a", "g3b", "g2a", "g2b"],
           "q": ["t0", "s2", "f0a", "f0b", "g0a", "g0b", "f2a", "f2b", "end"],
           "r": ["t0", "s1", "b1", "b2", "b3", "b4", "b5", "b6", "b7"],
           "s": ["t0", "b7", "b8", "b9", "b10", "b11", "c0", "c1", "c2"],
           "t": ["n16", "n17", "n18", "n19", "n20", "n21", "n22", "n23", "n24"],
           "u": ["n40", "n41", "n42", "n43", "n44", "n45", "n46", "n47", "n48"],
           "v": ["n60", "n61", "n62", "n63", "n64", "n65", "n66", "n67", "n68"],
           "w": ["t00", "t0", "karg", "issued", "rest", "pads", "x0", "xdone", "end"],
           "x": ["t0", "issued", "pads", "x0", "x2", "x4", "x7", "bx", "s1"],
           "y": ["t0", "x4", "x5", "x6", "x7", "xdone", "bx", "s1", "b1"],
           "z": ["t0", "p2", "f2b", "f4b", "g2a", "g2b", "g4a", "g4b", "end"],
           "0": ["t0", "end"],
           "AMP": ["t0", "-1", "-2", "-3", "-4", "-5", "-6", "-7", "end"],
           "i": ["t0", "s2", "g0a", "g0b", "p2", "c1", "g1a", "g1b", "end"],
           "d": ["t0", "p2", "g1b", "g3a", "g3b", "g2a", "g2b", "lastm", "end"],
           "c": ["t0", "p2", "c1", "c3", "c5", "c7", "lastm", "sbar", "end"]}

    def stamp(self, name):
        if C.stset.startswith("B"):
            g = int(C.stset[1:]); self.STS[C.stset] = [f"b{g}"] + [f"b{g + k}{x}" for k in range(1, 5) for x in ("a", "")]
        if C.stset.startswith("N"): self.STS[C.stset] = [f"n{int(C.stset[1:]) + k}" for k in range(9)]
        if C.stamps and name in self.STS[C.stset]:
            k = self.STS[C.stset].index(name)
            self.E.line(f"{'s_memrealtime' if C.rt else 's_memtime'} s[{STAMP0 + 2 * k}:{STAMP0 + 2 * k + 1}]")

    def setup_first(self, typ):
        o = []; e = o.append
        lane = self.lane; t0, t1, t2 = v(201), v(202), v(203)
        e(valu("v_and_b32", lane, 63, v(0)))
        e(valu("v_lshrrev_b32", t0, 6, v(0)))
        e(salu("s_and_b32", sXCD, sWG, 7))
        e(rfl(sW, t0))
        e(salu("s_and_b32", sRB, sXCD, 1)); e(salu("s_lshl_b32", sRB, sRB, 3))
        e(salu("s_and_b32", sT0, sJ, 7)); e(salu("s_add_u32", sRB, sRB, sT0))
        e(salu("s_and_b32", sIDX, sXCD, 6)); e(salu("s_lshr_b32", sT0, sJ, 4)); e(salu("s_add_u32", sIDX, sIDX, sT0))
        e(valu("v_and_b32", t0, 7, lane)); e(valu("v_lshrrev_b32", t1, 3, lane))
        e(valu("v_lshlrev_b32", t2, 4, t1)); e(valu("v_lshl_add_u32", self.vp0, t0, 10, t2))
        e(valu("v_and_b32", t2, 1, t1)); e(valu("v_lshlrev_b32", t2, 9, t2)); e(valu("v_lshl_add_u32", t2, t0, 4, t2))
        e(valu("v_lshrrev_b32", t1, 1, t1)); e(valu("v_lshl_add_u32", self.vx0[0], t1, 10, t2)); e(valu("v_add_u32", self.vx0[1], 4096, self.vx0[0]))
        e(salu("s_lshl_b32", sT0, sRB, 3)); e(salu("s_add_u32", sT0, sT0, sIDX)); e(salu("s_lshl_b32", sT0, sT0, 1))
        if typ == "B": e(salu("s_add_u32", sT0, sT0, 1))
        e(salu("s_lshl_b32", sXs, sT0, 13)); e(salu("s_lshl_b32", sT1, sW, 8)); e(salu("s_add_u32", sXs, sXs, sT1))
        e(salu("s_lshr_b32", sT1, sT0, 2)); e(salu("s_lshl_b32", sT1, sT1, 2)); e(salu("s_add_u32", sT1, sT1, sW))
        e(salu("s_and_b32", sT0, sT0, 3))
        e(salu("s_lshl_b32", sOut, sT1, 13)); e(salu("s_lshl_b32", sFLW, sT0, 7)); e(salu("s_add_u32", sOut, sOut, sFLW))
        e(salu("s_add_u32", sOut, sOut, WS_XN))
        e(salu("s_lshl_b32", sFLW, sT1, 7)); e(salu("s_lshl_b32", sT0, sT0, 2)); e(salu("s_add_u32", sFLW, sFLW, sT0))
        e(salu("s_add_u32", sFLW, sFLW, WS_FL0))
        e(smov(sSPIN, WS_EPOCH))
        e(salu("s_lshl_b32", sM0B, sW, 15))
        e(salu("s_lshl_b32", sT0, sRB, 17)); e(salu("s_add_u32", sXo, sT0, sM0B)); e(salu("s_add_u32", sXo, sXo, WS_XN))
        e(salu("s_lshr_b32", sT1, sJ, 3)); e(salu("s_add_u32", sT1, sT1, sJ)); e(salu("s_and_b32", sROT, sT1, 3 if C.rot else 0))
        e(salu("s_lshl_b32", sXk, sROT, 13))
        e(smov(SWS[2], WS_SIZE)); e(smov(SWS[3], 0x20000))
        if typ == "A":
            e(smov(SQKV[2], 512 * 3072)); e(smov(SQKV[3], 0x20000))
            e(salu("s_lshl_b32", sT2, sIDX, 1))
            e(salu("s_lshl_b32", sS1, sIDX, 7))
        else:
            e(salu("s_mul_i32", sT2, sIDX, 12, scc_w=False)); e(salu("s_add_u32", sT2, sT2, 24))
            e(salu("s_lshl_b32", sS1, sT2, 5)); e(salu("s_sub_u32", sS1, sS1, 256))
            for d, sh in ((SWU, 1024), (SWG2, 1920), (SWU2, 2944)):
                e(smov(d[2], 512 * 3584 + sh)); e(smov(d[3], 0x20000))
        st1 = 3072 if typ == "A" else 3584
        e(salu("s_mul_i32", sT0, sROT, 128 * st1, scc_w=False)); e(salu("s_add_u32", sS1, sS1, sT0))
        if C.touch_w0:
            e(valu("v_and_b32", t0, C.touch_w0 - 1, lane)); e(valu("v_mul_u32_u24", t0, st1, t0))
            if typ == "A":
                e(valu("v_lshrrev_b32", t1, 4, lane)); e(valu("v_min_u32", t1, 2, t1)); e(valu("v_lshlrev_b32", t1, 10, t1))
            else:
                e(valu("v_bfe_u32", t1, lane, 4, 1)); e(valu("v_lshlrev_b32", t1, 7, t1))
            e(valu("v_add_u32", vTW, t0, t1))
            e(salu("s_and_b32", sT0, sJ, 4)); e(salu("s_and_b32", sT1, sXCD, 1)); e(salu("s_lshl_b32", sT1, sT1, 3))
            e(salu("s_add_u32", sT0, sT0, sT1)); e(salu("s_add_u32", sT0, sT0, sW))
            e(salu("s_mul_i32", sT0, sT0, C.touch_w0 * st1, scc_w=False)); e(salu("s_add_u32", sT5, sT0, sS1))
        return o

    def touch(self, voff, srd_, soff, imm=0, dst=None, fl=""):
        i = vload(dst or aDUM0, voff, srd_, soff, imm, fl=fl); i.w = set(); return i

    def consts(self, typ):
        o = []; e = o.append
        lane = self.lane
        t = [v(208 + i) for i in range(8)]
        li, g4, r2, hh, ub = v(190), v(191), v(192), v(193), v(194)
        e(valu("v_and_b32", li, 15, lane)); e(valu("v_lshrrev_b32", g4, 4, lane)); e(valu("v_lshrrev_b32", hh, 5, lane))
        e(valu("v_and_b32", ub, 1, g4)); e(valu("v_lshrrev_b32", r2, 2, li))
        e(valu("v_lshlrev_b32", vL16, 4, lane))
        e(smov(sHI, 0xffff0000)); e(smov(sONE, 0x3f803f80)); e(smov(sC512, 0x3b000000)); e(smov(sCSC, 0x3eb8aa3b))
        for r_ in self.acc: e(valu("v_mov_b32", r_, 0))
        ha = self.ha
        e(valu("v_and_b32", ha[0], 7, lane)); e(valu("v_lshlrev_b32", ha[0], 3, ha[0])); e(valu("v_add_u32", ha[0], TB, ha[0]))
        e(salu("s_lshl_b32", sT0, sW, 6)); e(valu("v_add_u32", ha[1], sT0, ha[0]))
        e(valu("v_lshlrev_b32", t[0], 7, r2)); e(valu("v_and_b32", t[1], 3, lane)); e(valu("v_lshl_add_u32", t[0], t[1], 2, t[0]))
        e(salu("s_add_u32", sT0, sW, 1)); e(salu("s_lshl_b32", sT0, sT0, 9))
        e(salu("s_lshl_b32", sFLR, sRB, 11)); e(salu("s_add_u32", sFLR, sFLR, WS_FL0 - 512))
        if typ == "A":
            e(valu("v_or_b32", t[1], 8, t[0])); e(valu("v_add_u32", t[0], sT0, t[0]))
            e(scmp("s_cmp_eq_u32", sRB, 0)); e(salu("s_cselect_b32", sT1, sT0, 0, scc_w=False, scc_r=True))
            e(salu("s_cselect_b32", sS2b, 0x7f000000, 0, scc_w=False, scc_r=True))
            e(valu("v_add_u32", t[1], sT1, t[1])); e(valu("v_sub_u32", t[1], t[1], t[0])); e(valu("v_mul_u32_u24", t[2], 1, ub))
            e(valu("v_mul_lo_u32", t[1], t[1], t[2])); e(valu("v_add_u32", ha[2], t[0], t[1]))
            e(valu("v_lshlrev_b32", t[0], 10, hh)); e(valu("v_lshl_add_u32", t[0], ub, 9, t[0])); e(valu("v_lshl_add_u32", t[0], li, 4, t[0]))
            e(salu("s_add_u32", sS2b, sS2b, 256)); e(valu("v_add_u32", ha[3], sS2b, t[0]))
            e(salu("s_add_u32", sHo, sW, sROT)); e(salu("s_and_b32", sHo, sHo, 3)); e(salu("s_lshl_b32", sHo, sHo, 13))
            e(salu("s_lshl_b32", sT0, sRB, 17)); e(salu("s_add_u32", sHo, sHo, sT0)); e(salu("s_add_u32", sHo, sHo, WS_XN - 32768))
            e(valu("v_add_u32", vHX, TB + 16384, vL16))
        else:
            e(valu("v_add_u32", ha[2], sT0, t[0]))
        e(salu("s_and_b32", sT0, sW, 1)); e(salu("s_lshl_b32", sT0, sT0, 4))
        e(salu("s_lshr_b32", sKH, sW, 1)); e(salu("s_lshl_b32", sT1, sKH, 3)); e(salu("s_add_u32", sT1, sT1, sT0))
        e(valu("v_lshrrev_b32", t[0], 3, lane)); e(valu("v_and_b32", t[1], 2, t[0])); e(valu("v_lshlrev_b32", t[1], 5, t[1]))
        e(valu("v_and_b32", t[2], 7, lane)); e(valu("v_lshlrev_b32", t[2], 4, t[2])); e(valu("v_xor_b32", t[2], t[2], t[1]))
        e(valu("v_add_u32", t[3], sT1, t[0]))
        if typ == "A":
            e(valu("v_mul_u32_u24", t[4], 3072, t[3])); e(valu("v_add_u32", vH, t[4], t[2]))
            e(salu("s_lshl_b32", sT0, sT0, 1))
            e(valu("v_lshrrev_b32", t[4], 2, lane)); e(valu("v_add_u32", t[4], sT0, t[4])); e(valu("v_mul_u32_u24", t[4], 3584, t[4]))
            e(valu("v_and_b32", t[5], 3, lane)); e(valu("v_lshlrev_b32", t[5], 4, t[5]))
            e(salu("s_lshl_b32", sT1, sKH, 5)); e(valu("v_xor_b32", t[5], sT1, t[5]))
            e(valu("v_add_u32", vG, t[4], t[5]))
            e(salu("s_lshl_b32", sS2, sT2, 5))
            e(smov(SWH[2], 512 * 3584)); e(smov(SWH[3], 0x20000))
        else:
            e(valu("v_mul_u32_u24", t[4], 3584, t[3])); e(valu("v_add_u32", vG, t[4], t[2]))
            e(valu("v_xor_b32", t[5], 32, t[2])); e(valu("v_add_u32", vU, t[4], t[5]))
            e(salu("s_mul_i32", sT0, sT0, 3584, scc_w=False))
            e(salu("s_lshl_b32", sS2, sT2, 5)); e(salu("s_add_u32", sS2, sS2, sT0))
        e(salu("s_mul_i32", sT0, sROT, 128 * 3584, scc_w=False)); e(salu("s_add_u32", sS2, sS2, sT0))
        e(valu("v_and_b32", vP4, 3, lane)); e(valu("v_lshlrev_b32", vP4, 2, vP4))
        e(valu("v_lshl_add_u32", vB2, t[0], 10, t[2]))
        if C.warm_all:
            ww = self.ww
            e(valu("v_min_u32", ww[0], 13, lane)); e(valu("v_lshlrev_b32", ww[0], 7, ww[0])); e(valu("v_lshlrev_b32", ww[1], 5, vP4))
            e(valu("v_and_b32", ww[2], 15 if typ == "A" else 7, lane)); e(valu("v_mul_u32_u24", ww[2], 3584, ww[2]))
        e(valu("v_lshlrev_b32", t[0], 7, r2))
        e(valu("v_and_b32", t[1], 3, lane)); e(valu("v_lshlrev_b32", t[1], 3, t[1])); e(valu("v_add_u32", t[0], t[0], t[1]))
        e(valu("v_and_b32", t[2], 2, r2))
        e(valu("v_or_b32", t[3], t[2], ub)); e(valu("v_lshlrev_b32", t[3], 5, t[3]))
        e(valu("v_lshlrev_b32", t[4], 16, hh)); e(valu("v_add_u32", t[4], t[4], t[0]))
        if typ == "A":
            for j in range(2):
                e(valu("v_xor_b32", t[6], 64 * j, t[3])); e(valu("v_add_u32", vTR[4 + j], t[6], t[4]))
            e(valu("v_lshlrev_b32", t[6], 3, hh)); e(valu("v_add_u32", t[6], t[6], r2)); e(valu("v_lshlrev_b32", t[6], 6, t[6]))
            e(valu("v_lshlrev_b32", t[7], 16, ub)); e(valu("v_add3_u32", t[6], t[6], t[7], t[1]))
            e(valu("v_lshlrev_b32", t[7], 5, ub)); e(valu("v_add_u32", vTR[0], t[6], t[7]))
            e(valu("v_xor_b32", t[7], 32, t[7])); e(valu("v_add_u32", vTR[1], t[6], t[7]))
        else:
            e(valu("v_lshlrev_b32", t[5], 10, ub)); e(valu("v_add_u32", t[5], t[5], t[4]))
            for tt in range(4):
                e(valu("v_xor_b32", t[6], 32 * tt, t[3])); e(valu("v_add_u32", vTR[tt], t[6], t[5]))
        def park(reg, s0_, s1_):
            names = [str(x) for x in self.parked]
            if str(reg) in names: e(valu("v_add_u32", t[7], s0_, s1_)); e(accw(a(aPARK + names.index(str(reg))), t[7]))
            else: e(valu("v_add_u32", reg, s0_, s1_))
        e(valu("v_lshlrev_b32", t[4], 9, hh)); e(valu("v_add_u32", t[4], t[4], t[0]))
        e(salu("s_lshl_b32", sT0, sKH, 6)); e(valu("v_xor_b32", t[6], sT0, t[3]))
        e(valu("v_add_u32", t[5], t[6], t[4])); e(valu("v_xor_b32", t[6], 64, t[5]))
        e(salu("s_lshl_b32", sT0, sKH, 16)); e(salu("s_lshl_b32", sT1, sKH, 11)); e(salu("s_add_u32", sT1, sT1, TB))
        for j in range(2):
            park(self.tr2[j], sT0, t[5 + j]); park(self.tr2t[j], sT1, t[5 + j])
        if typ == "A":
            e(valu("v_lshlrev_b32", t[4], 16, ub)); e(valu("v_lshlrev_b32", t[5], 15, hh)); e(valu("v_add3_u32", t[4], t[4], t[5], t[0]))
            e(valu("v_xor_b32", t[6], sW, t[2])); e(valu("v_lshlrev_b32", t[6], 5, t[6])); e(valu("v_add_u32", vW16, t[4], t[6]))
            e(salu("s_mul_i32", sT0, sW, 6144, scc_w=False)); e(salu("s_add_u32", sT0, sT0, TB)); e(valu("v_add_u32", vEX, sT0, vL16))
            e(valu("v_lshlrev_b32", t[4], 5, ub)); e(valu("v_add_u32", t[4], t[4], li)); e(valu("v_lshlrev_b32", t[4], 4, t[4]))
            e(valu("v_lshlrev_b32", t[5], 3, hh)); e(smov(sT0, TB)); e(valu("v_add3_u32", vHW, t[4], t[5], sT0))
            q = t[0]; bb = v(t[2].lo, 2)
            e(valu("v_and_b32", q, 31, lane)); e(valu("v_add_u32", t[1], 18, q))
            e(valu("v_mov_b32", t[4], 0x5555)); e(valu("v_mov_b32", t[5], 0))
            e(valu("v_lshlrev_b64", bb, t[1], v(t[4].lo, 2)))
            e(salu("s_or_b32", sT1, sRB, sW)); e(salu("s_cselect_b32", sT1, -1, 0, scc_w=False, scc_r=True))
            e(valu("v_and_b32", bb[0], sT1, bb[0]))
            e(valu("v_lshlrev_b32", t[1], 2, hh))
            e(valu("v_lshrrev_b32", bb[0], t[1], bb[0])); e(valu("v_lshrrev_b32", bb[1], t[1], bb[1]))
            e(valu("v_not_b32", bb[0], bb[0])); e(valu("v_not_b32", bb[1], bb[1]))
            e(accw(a(196), bb[0])); e(accw(a(197), bb[1]))
            e(valu("v_and_b32", t[2], 1, q)); e(valu("v_lshlrev_b32", t[2], 4, t[2]))
            e(valu("v_mov_b32", t[3], 0xffff)); e(valu("v_lshlrev_b32", vPM, t[2], t[3]))
            e(valu("v_bfe_i32", t[2], q, 4, 1)); e(valu("v_and_b32", vMHC, t[2], vPM)); e(valu("v_xor_b32", vMHP, vMHC, vPM))
        return o

    def scalars(self, typ):
        o = []; e = o.append
        e(salu("s_and_b32", sRT, sJ, 3)); e(salu("s_lshr_b32", sCT, sJ, 2)); e(salu("s_lshl_b32", sCT, sCT, 7))
        e(salu("s_lshl_b32", sT0, sXCD, 3)); e(salu("s_lshl_b32", sT1, sRT, 1)); e(salu("s_add_u32", sT0, sT0, sT1))
        e(salu("s_and_b32", sT1, sW, 1)); e(salu("s_add_u32", sT0, sT0, sT1))
        e(salu("s_lshl_b32", sFLR, sT0, 1)); e(salu("s_add_u32", sFLR, sFLR, sKH))
        e(salu("s_lshl_b32", sFLR, sFLR, 10)); e(salu("s_add_u32", sFLR, sFLR, WS_FLAG))
        e(salu("s_mul_i32", sStH, sT0, 144 * 1024, scc_w=False))
        e(salu("s_lshl_b32", sOut, sT0, 15)); e(salu("s_and_b32", sOut, sOut, 0xffff7fff)); e(salu("s_add_u32", sOut, sOut, sCT))
        e(salu("s_lshr_b32", sT0, sM0B, 1)); e(salu("s_add_u32", sOut, sOut, sT0))
        e(salu("s_lshl_b32", sT1, sT1, 13)); e(salu("s_add_u32", sT1, sT1, sCT))
        for c_ in range(3):
            e(salu("s_mul_i32", sT0, sKH, SHIFT[c_] * 1024, scc_w=False)); e(salu("s_add_u32", sA2c[c_], sStH, sT0))
            e(salu("s_lshl_b32", sT0, sT0, 4)); e(salu("s_add_u32", sB2c[c_], sT0, sT1))
        e(salu("s_lshl_b32", sM0T, sW, 10)); e(salu("s_add_u32", sM0T, sM0T, TB))
        e(salu("s_lshl_b32", sT0, sRB, 2)); e(salu("s_add_u32", sT0, sT0, sW))
        e(salu("s_mul_i32", sT1, sT0, 144, scc_w=False))
        e(salu("s_add_u32", sSt2, sT1, sT2)); e(salu("s_lshl_b32", sSt2, sSt2, 10))
        if typ == "A":
            e(salu("s_lshl_b32", sStF, sT2, 10)); e(salu("s_add_u32", sStF, sStF, sSt2)); e(salu("s_add_u32", sStF, sStF, 112 * 1024))
        else:
            e(salu("s_sub_u32", sStF, sSt2, 8192)); e(salu("s_sub_u32", sStH, sSt2, 4096))
        e(salu("s_lshl_b32", sT0, sT0, 1)); e(salu("s_lshr_b32", sT1, sIDX, 2)); e(salu("s_add_u32", sT0, sT0, sT1))
        e(salu("s_lshl_b32", sT0, sT0, 10))
        e(salu("s_and_b32", sT1, sIDX, 3)); e(salu("s_lshl_b32", sT1, sT1, 2))
        e(salu("s_add_u32", sT0, sT0, sT1)); e(salu("s_add_u32", sFLW, sT0, WS_FLAG))
        e(smov(SOUT[2], 0x200000)); e(smov(SOUT[3], 0x20000))
        k = [n for n, x in enumerate(o) if x.w & sFLR.ids()]
        late = [o[n] for n in k]
        early = [x for n, x in enumerate(o) if n not in k]
        return early, [salu("s_lshr_b32", sT0, sOut, 16), salu("s_lshl_b32", sT0, sT0, 1), salu("s_and_b32", sT1, sW, 1),
                       salu("s_add_u32", sT0, sT0, sT1)] + late

    def warm_ops(self, isA):
        ww = self.ww; nr = 16 if isA else 8
        o = [salu("s_and_b32", sT5, sW, 1 if isA else 3), salu("s_mul_i32", sT5, sT5, nr, scc_w=False),
             salu("s_lshl_b32", sXs, sRB, 5), salu("s_add_u32", sT5, sT5, sXs), salu("s_mul_i32", sT5, sT5, 3584, scc_w=False),
             salu("s_lshl_b32", sXs, sT2, 5), salu("s_add_u32", sT5, sT5, sXs)]
        o += [self.touch(ww[2], SWH, sT5)] if isA else [self.touch(ww[2], SWG_, sT5), self.touch(ww[2], SWU, sT5, 1024)]
        fl = [self.touch(ww[0], SWS, sFLR, fl="sc1")]
        if not C.warm_byA:
            o1 = [salu("s_lshl_b32", sXs, sWG, 2), salu("s_add_u32", sXs, sXs, sW), salu("s_mul_i32", sT5, sXs, 14 * 128, scc_w=False),
                  self.touch(ww[0], SWD, sT5)]
            o2 = [salu("s_lshl_b32", sT5, sXs, 9), self.touch(ww[1], SWO, sT5)]
            return [o1, o2 + fl + o]
        if not isA: return [[], fl + o]
        o1 = [salu("s_lshr_b32", sXs, sWG, 7), salu("s_lshl_b32", sXs, sXs, 6), salu("s_and_b32", sT5, sWG, 63), salu("s_add_u32", sXs, sXs, sT5),
              salu("s_lshl_b32", sXs, sXs, 2), salu("s_add_u32", sXs, sXs, sW), salu("s_mul_i32", sT5, sXs, 28 * 128, scc_w=False),
              self.touch(ww[0], SWD, sT5), self.touch(ww[0], SWD, sT5, 14 * 128)]
        o2 = [salu("s_lshl_b32", sT5, sXs, 10), self.touch(ww[1], SWO, sT5), self.touch(ww[1], SWO, sT5, 512)]
        return [o1, o2 + fl + o]

    def b2_soff(self, n, dst):
        ks, cls, st = step_info(n)
        return salu("s_add_u32", dst, sB2c[cls], (ks - 112 if cls == 2 else ks) * 16384)

    def code_touch(self):
        E = self.E
        if not C.touch_code: return
        t = v(201)
        E.line(f"s_getpc_b64 {sPC}")
        pcl = self.lab("pc"); E.label(pcl)
        E.emit(salu("s_and_b32", sT0, sJ, 1)); E.emit(salu("s_lshl_b32", sT0, sT0, 15))
        E.emit(valu("v_lshlrev_b32", t, 7, v(0))); E.emit(valu("v_add_u32", t, sT0, t))
        E.line(f"s_mov_b32 {sT0}, L_code_end-{pcl}-4")
        E.emit(valu("v_min_u32", t, sT0, t))
        E.emit(I(f"global_load_dword {aDUM0}, {t}, {sPC}", "vml", t.ids(), ()))

    def finish_stats(self, sm, sq, rinv, nb, t0, t1):
        e = self.E.emit
        e(valu("v_mul_f32", sm, sC512, sm))
        e(valu("v_mul_f32", t0, sm, sm))
        e(I(f"v_fma_f32 {sq}, {sq}, {sC512}, -{t0}", "valu", sq.ids() | t0.ids() | sC512.ids(), sq.ids()))
        e(valu("v_max_f32", sq, 0, sq))
        e(valu("v_cvt_pk_bf16_f32", t0, sm, sq))
        e(valu("v_and_b32", t1, sHI, t0))
        e(valu("v_add_f32", t1, 0x3727c5ac, t1))
        e(valu("v_cvt_pk_bf16_f32", t1, t1, t1)); e(valu("v_and_b32", t1, sHI, t1))
        e(valu("v_sqrt_f32", t1, t1))
        e(valu("v_cvt_pk_bf16_f32", t1, t1, t1)); e(valu("v_and_b32", t1, sHI, t1))
        e(valu("v_rcp_f32", rinv, t1))
        e(valu("v_lshlrev_b32", t0, 16, t0))
        e(I(f"v_mul_f32 {nb}, -{t0}, {rinv}", "valu", t0.ids() | rinv.ids(), nb.ids()))

    def norm_ops(self, reg, rinv, nb, k0=0):
        ops = []
        for d in range(4):
            lo = NT[(2 * (k0 + d)) % 8]; hi = NT[(2 * (k0 + d) + 1) % 8]; x = reg[d]
            ops += [valu("v_lshlrev_b32", lo, 16, x), valu("v_and_b32", hi, sHI, x),
                    valu("v_fma_f32", lo, lo, rinv, nb), valu("v_fma_f32", hi, hi, rinv, nb),
                    valu("v_cvt_pk_bf16_f32", x, lo, hi)]
        return ops

    def dots(self, reg, acc):
        ops = []
        for d in range(reg.n):
            ops.append(valu("v_dot2_f32_bf16", acc[d & 1], reg[d], sONE, acc[d & 1]))
            ops.append(valu("v_dot2_f32_bf16", acc[2 + (d & 1)], reg[d], reg[d], acc[2 + (d & 1)]))
        return ops

    def wrap(self, reg, q, span):
        return glue([scmp("s_cmp_eq_u32", sROT, 4 - q), salu("s_cselect_b32", sS2b, span, 0, scc_w=False, scc_r=True),
                     salu("s_sub_u32", reg, reg, sS2b)])

    def chunks(self, obj):
        k, j = obj
        if self.typ == "A":
            if k == "s1": return list(range(3 * (j % 7), 3 * (j % 7) + 3))
            return [6 + 2 * j, 7 + 2 * j]
        jj = j if k == "s1" else 16 + j
        return list(range(4 * (jj % 6), 4 * (jj % 6) + 4))

    def slab_dma(self, obj):
        L = self.L; k, j = obj; ch = self.chunks(obj); fl = C.w_fl
        def f(E): L.alloc(obj, ch)
        ops = [f, salu("s_add_u32", "m0", sM0B, 1024 * ch[0])]
        if k == "s1":
            st = 3072 if self.typ == "A" else 3584
            if self.typ == "A": ops += [dma(vH, SQKV, sS1, 1024 * u, obj, fl) for u in range(3)]
            else: ops += [dma(vG, SWG_, sS1, 0, obj, fl), dma(vU, SWU, sS1, 1024, obj, fl), dma(vG, SWG2, sS1, 2048, obj, fl), dma(vU, SWU2, sS1, 3072, obj, fl)]
            if j < 15: ops.append(salu("s_add_u32", sS1, sS1, 32 * st))
            if j % 4 == 3 and j < 15 and C.rot: ops.append(self.wrap(sS1, (j + 1) // 4, 512 * st))
        else:
            if self.typ == "A":
                ops += [salu("s_add_u32", sS2b, sS2, 16 * 3584 - 1024), dma(vG, SWH, sS2, 0, obj, fl), dma(vG, SWH, sS2b, 1024, obj, fl)]
            else:
                ops += [salu("s_add_u32", sS2b, sS2, 16 * 3584 - 2048), dma(vG, SWG_, sS2, 0, obj, fl), dma(vU, SWU, sS2, 1024, obj, fl),
                        dma(vG, SWG_, sS2b, 2048, obj, fl), dma(vU, SWU, sS2b, 3072, obj, fl)]
            if j < 7: ops.append(salu("s_add_u32", sS2, sS2, 64 * 3584))
            if j % 2 == 1 and j < 7 and C.rot: ops.append(self.wrap(sS2, (j + 1) // 2, 512 * 3584))
        return ops

    def b2_chunk(self, n):
        R_ = lambda lo, hi: list(range(lo, hi))
        if self.typ == "A":
            tab = R_(22, 32) + R_(22, 32) + R_(0, 12) + R_(32, 40) + R_(12, 22) + R_(22, 32) + R_(0, 12)
        else:
            tab = R_(24, 40) + R_(24, 40) + R_(0, 24) + R_(24, 32) + R_(0, 8)
        return tab[n]

    def b2_dma(self, n):
        L = self.L
        ks, cls, _ = step_info(n)
        ch = self.b2_chunk(n)
        def f(E): L.alloc(("b2", n), [ch])
        return [f, salu("s_add_u32", "m0", sM0B, 1024 * ch) if ch < 32 else salu("s_add_u32", "m0", sM0T, 4096 * (ch - 32)),
                self.b2_soff(n, sB2s),
                dma(vB2, SWO if cls == 2 else SWD, sB2s, 0, ("b2", n), C.b2_fl)]

    def bar(self, cover, m_done, lds_all=False, lds_tags=()):
        L = self.L
        def f(E):
            E.wait_tags(lds=list(lds_tags) + list(cover), vm=cover)
            if lds_all: E.wait_all_lds()
            if not (C.dbg_bar and cover and cover[0][0] == "b2"): E.barrier()
            L.visible |= set(cover); L.bar_m = m_done
        return f

    def acc2(self, t): return ACC2(t) if self.typ == "A" else ACC1(t)

    def acc1(self, t): return ACC1(t) if t < 6 else a(112 + 16 * (t - 6), 16)

    def seq(self, typ):
        out = []
        order = [2, 3, 4, 5, 0, 1] if typ == "A" else list(range(8))
        s1 = [(ks, t) for ks in range(28) for t in order] + [(ks, t) for t in order for ks in range(28, 32)]
        for ks, t in s1:
            obj = ("s1", ks // 2); base = (ks & 1) * 32768 + self.chunks(obj)[0] * 1024
            if True:
                if typ == "A":
                    out.append(dict(acc=ACC1(t), x=X(ks), sw=(t >= 4), obj=obj, addr=vTR[4 + (t & 1)],
                                    imm=base + (t >> 1) * 1024, st=512, first=(ks == 0)))
                else:
                    out.append(dict(acc=self.acc1(t), x=X(ks), sw=False, obj=obj, addr=vTR[t & 3], imm=base + (t >> 2) * 2048, st=512, first=(ks == 0)))
        nt = self.nt2
        k0 = self.k0
        s2 = [(ks, t) for ks in range(k0) for t in range(nt)] + [(ks, t) for t in range(nt) for ks in range(k0, 32)]
        for ks, t in s2:
            obj = ("s2", ks // 4); k = ks & 3
            out.append(dict(acc=self.acc2(t), x=X(ks), sw=False, obj=obj, addr=vTR[t],
                            imm=(k >> 1) * 32768 + self.chunks(obj)[0] * 1024 + (k & 1) * (1024 if typ == "A" else 2048),
                            st=256 if typ == "A" else 512, first=(ks == 0)))
        for n in range(72):
            iso = step_info(n)[1] == 2
            for j in ((1, 0) if n in (55, 71) else (0, 1)):
                ch = self.b2_chunk(n)
                out.append(dict(acc=(ACCS if iso else ACCD)[j], x=n, sw=False, obj=("b2", n),
                                addr=self.tr2[j] if ch < 32 else self.tr2t[j], j=j, imm=ch * 1024 if ch < 32 else (ch - 32) * 4096,
                                st=32768 if ch < 32 else 1024, first=(n in (0, 40))))
        for m, o in enumerate(out): self.L.last_use[o["obj"]] = m
        return out

    def wreads(self, m):
        o = self.SEQ[m]; L = self.L
        if o["obj"][0] == "b2" and o["obj"][1] < self.nF: return []
        def f(E): assert o["obj"] in L.visible, ("read of invisible", m, o["obj"])
        return [f, ds_tr(WF(m).sub(0, 2), o["addr"], o["imm"]), ds_tr(WF(m).sub(2, 2), o["addr"], o["imm"] + o["st"])]

    def main(self, m):
        o = self.SEQ[m]
        if isinstance(o["x"], int):
            def mk(peek):
                if peek and o["x"] not in self.a2slot: return None
                w = self.frag[(o["x"], o["j"])]["r"] if o["x"] < self.nF else WF(m)
                return mfma(o["acc"], w, self.a2slot[o["x"]]["r"], 0 if o["first"] else o["acc"])
            mn = dict(pre=[], m=mk, fix=[])
            if o["x"] < self.nF: mn["fix"].append(lambda E: self.pool.give(E, self.frag[(o["x"], o["j"])]))
            if m & 1: mn["fix"].append(lambda E: self.pool.give(E, self.a2slot[o["x"]]))
        else:
            A_, B_ = (o["x"], WF(m)) if o["sw"] else (WF(m), o["x"])
            mn = dict(pre=[], m=mfma(o["acc"], A_, B_, 0 if o["first"] else o["acc"]), fix=[])
        if m + C.D < len(self.SEQ): mn["fix"] += self.wreads(m + C.D)
        return mn

    def spin_check_tag(self):
        def f(E):
            ok = self.lab("tagok"); sp = self.lab("tagspin")
            E.emit(rfl(sTAG, vTAG))
            E.emit(scmp("s_cmp_eq_u32", sTAG, 0))
            E.line(f"s_cbranch_scc1 {sp}")
            E.label(ok)
            self.cold += [f"{sp}:", f"    s_mov_b32 {sSPIN}, 0", f"{sp}_l:",
                          f"    buffer_load_dword {vTAG}, off, {SDBG}, 0 sc1", f"    s_add_u32 {sSPIN}, {sSPIN}, 1",
                          "    s_waitcnt vmcnt(0)", f"    v_readfirstlane_b32 {sTAG}, {vTAG}",
                          f"    s_cmp_ge_u32 {sSPIN}, {C.spin_max}", f"    s_cbranch_scc1 {ok}",
                          f"    s_cmp_eq_u32 {sTAG}, 0", f"    s_cbranch_scc1 {sp}_l", f"    s_branch {ok}"]
        return f

    def poll_load(self, stage):
        return vload(self.vpl[stage], vP4, SWS, sFLR, 128 * stage, fl="sc1")

    def gate(self, stage):
        def f(E):
            ok = self.lab("gateok"); sp = self.lab("gatespin")
            self.stamp(f"g{stage}a")
            E.emit(vcmp("v_cmp_ne_u32", "vcc", sTAG, self.vpl[stage]))
            E.line(f"s_cbranch_vccnz {sp}")
            E.label(ok)
            ld = lambda r: f"    buffer_load_dword {r}, {vP4}, {SWS}, {sFLR} offen offset:{128 * stage} sc1"
            regs = [self.vpl[stage], vSP[0], vSP[1]][:C.npoll]; k = len(regs)
            self.cold += [f"{sp}:", f"    s_mov_b32 {sSPIN}, 0"] + [x for r in regs[:-1] for x in (ld(r), "    s_nop 15", "    s_nop 15")] + [f"{sp}_l:"]
            for q_ in range(k):
                self.cold += [ld(regs[(q_ + k - 1) % k]), f"    s_waitcnt vmcnt({k - 1})", f"    v_cmp_ne_u32 vcc, {sTAG}, {regs[q_]}", f"    s_cbranch_vccz {ok}"]
            self.cold += [f"    s_add_u32 {sSPIN}, {sSPIN}, 1", f"    s_cmp_ge_u32 {sSPIN}, {C.spin_max}", f"    s_cbranch_scc0 {sp}_l", f"    s_branch {ok}"]
            self.stamp(f"g{stage}b")
        return f

    def flag_store(self, stage, tags):
        def f(E):
            self.stamp(f"f{stage}a")
            E.wait_tags(vm=tags)
            self.stamp(f"f{stage}b")
            E.emit(vstore(vTAG, None, SWS, sFLW, 128 * stage, fl="sc1"))
        return f

    def a2_load(self, n):
        ks, cls, _ = step_info(n)
        o = []
        if self.a2base is None or self.a2base[0] != cls or not (0 <= ks - self.a2base[1] < 4):
            self.a2base = (cls, ks)
            o.append(salu("s_add_u32", sA2s, sA2c[cls], ks * 1024))
        imm = (ks - self.a2base[1]) * 1024
        kind = "AE" if n < 40 else "A"
        def f(E):
            x = self.a2slot[n] = self.pool.take(E, kind)
            if not (C.dbg_a2 and n >= C.dbg_a2): E.emit(vload(x["r"], vL16, SWS, sA2s, imm, fl=C.a2_fl))
        f.vm = True; f.ready = lambda E: self.pool.find(E, kind) is not None
        return o + [f]

    def pre_read(self, n):
        out = []
        for m in (self.M3 + 2 * n, self.M3 + 2 * n + 1):
            o = self.SEQ[m]
            def f(E, o=o):
                assert o["obj"] in self.L.visible
                x = self.frag[(n, o["j"])] = self.pool.take(E, "R")
                E.emit(ds_tr(x["r"].sub(0, 2), o["addr"], o["imm"], tag=("fr", n)))
                E.emit(ds_tr(x["r"].sub(2, 2), o["addr"], o["imm"] + o["st"], tag=("fr", n)))
            f.slots = 2
            out.append(f)
        return out

    def raw_load(self, n):
        ks, cls, _ = step_info(n)
        def f(E):
            x = self.rawslot[n] = self.pool.take(E, "R")
            E.emit(vload(x["r"], vB2, SWO if cls == 2 else SWD, sXo, 0, fl=C.b2_fl))
        f.vm = True; f.ready = lambda E: self.pool.find(E, "R") is not None
        return [self.b2_soff(n, sXo), f]

    def h_epilogue(self, T, sbase, imm, tag):
        ops = [valu("v_mul_f32", T[r], T[r], T[r + 8]) for r in range(8)]
        ops += [valu("v_cvt_pk_bf16_f32", T[r], T[2 * r], T[2 * r + 1]) for r in range(4)]
        if not (C.dbg_st and tag == "h1"): ops.append(vstore(T.sub(0, 4), vL16, SWS, sbase, imm, tag, C.st_fl))
        return ops

    def body(self, typ):
        E = self.E; e = E.emit
        self.L = L = LDSMap()
        E.m0_owner = None; E.fifo = None
        self.typ = typ
        isA = typ == "A"
        nt1, nt2 = (6, 2) if isA else (8, 4)
        self.nt2 = nt2; self.k0 = k0 = 24 if isA else 20
        M2 = self.M2 = 32 * nt1; M3 = self.M3 = M2 + 32 * nt2
        self.nF = 10 if isA else 16
        self.tr2 = [vTR[2], vTR[3]] if isA else [vEX, vHW]
        self.tr2t = vTR2T if isA else [vPM, vMHC]
        self.parked = self.tr2 + self.tr2t if isA else []
        self.frag = {}
        self.SEQ = self.seq(typ)
        self.a2base = None
        self.cold = []
        self.lane = v(200); self.vp0 = v(204); self.vx0 = [v(205), v(206)]
        self.acc = acc = [v(220 + q) for q in range(4)]
        self.ha = ha = [v(144 + i) for i in range(4)]
        self.ww = [vU, vTR[2], vTR[3]] if isA else [vH, vW16, vHX]
        self.vpl = vPL + [self.ww[0]]
        self.stamp("t0")
        if C.stamps: E.line("s_memrealtime s[0:1]")
        first = self.setup_first(typ)
        rest = self.consts(typ)
        E.emits(first)
        k = max(0, C.npre - len(first))
        while k < len(rest) and SCC in rest[k].r: k += 1
        E.emits(rest[:k]); rest = rest[k:]
        E.line("s_waitcnt lgkmcnt(0)")
        self.stamp("karg")
        def inplace(d, size, other, shift=0):
            o = []
            if other is not None and shift: o += [salu("s_sub_u32", other[0], d[2], shift), salu("s_subb_u32", other[1], d[3], 0, scc_r=True)]
            elif other is not None: o += [smov(other[0], d[2]), smov(other[1], d[3])]
            return o + [smov(d[2], size), smov(d[3], 0x20000)]
        P0 = v(128, 8); pr = v(154, 2); tp = v(156, 2); pp = v(158, 8)
        E.emits(inplace(SX, 0x200000, SQKV if isA else None))
        e(vload(P0.sub(0, 4), self.vp0, SX, sXs)); e(vload(P0.sub(4, 4), self.vp0, SX, sXs, 128))
        e(salu("s_add_u32", SWS[0], SDBG[2], C.wsoff << 20)); e(salu("s_addc_u32", SWS[1], SDBG[3], 0, scc_r=True))
        e(vload(vTAG, None, SWS, sSPIN, fl="sc1"))
        if C.pre_xn:
            for i_ in range(2): e(self.touch(self.vx0[i_], SWS, sOut))
        if isA:
            if C.touch_w0: e(self.touch(vTW, SQKV, sT5))
            e(scmp("s_cmp_ge_u32", sW, 2))
            e(salu("s_cselect_b32", SWH[0], SWG_[2], SWG_[0], scc_w=False, scc_r=True))
            e(salu("s_cselect_b32", SWH[1], SWG_[3], SWG_[1], scc_w=False, scc_r=True))
        else:
            E.emits([salu("s_sub_u32", SWU2[0], SWG_[2], 2944), salu("s_subb_u32", SWU2[1], SWG_[3], 0, scc_r=True),
                     salu("s_sub_u32", SWG2[0], SWG_[0], 1920), salu("s_subb_u32", SWG2[1], SWG_[1], 0, scc_r=True)])
            E.emits(inplace(SWG_, 512 * 3584, SWU, 1024))
            if C.touch_w0: e(self.touch(vTW, SWG_, sT5)); e(self.touch(vTW, SWU, sT5, 1024))
        self.stamp("issued")
        E.emits(inplace(SWD, 1792 * 1024, SOUT) + inplace(SWO, 512 * 1024, None))
        E.emits(rest)
        if C.stamps: E.line("v_accvgpr_write_b32 a198, s0")
        self.stamp("rest")
        if C.pads:
            E.line("s_mov_b64 exec, 0")
            for w_ in (1, 2, 3):
                E.line(f"s_cmp_eq_u32 {sW}, {w_}"); E.line(f"s_cbranch_scc1 L_pad{typ}_{w_}")
            E.line(f"s_branch L_pad{typ}_0")
            E.label(f"L_back{typ}")
            E.line("s_mov_b64 exec, -1")
            E.out.append(f";PADS_FROM {typ}")
        self.stamp("pads")
        nw0 = C.nw0A if isA else C.nw0B
        if C.w_first:
            for j in range(C.w_first):
                for it in self.slab_dma(("s1", j)): run_item(E, it)
        E.emits(self.dots(P0, acc))
        self.stamp("x0")
        e(valu("v_add_f32", pr[0], acc[0], acc[1])); e(valu("v_add_f32", pr[1], acc[2], acc[3]))
        E.line("s_nop 1", 2)
        for i_ in range(2):
            e(I(f"v_add_f32_dpp {pr[i_]}, {pr[i_]}, {pr[i_]} row_ror:8 row_mask:0xf bank_mask:0xf", "valu", pr[i_].ids(), pr[i_].ids()))
        for sw in (swap16, swap32):
            e(valu("v_mov_b32", tp[0], pr[0])); e(valu("v_mov_b32", tp[1], pr[1]))
            e(sw(pr[0], tp[0])); e(sw(pr[1], tp[1]))
            e(valu("v_add_f32", pr[0], pr[0], tp[0])); e(valu("v_add_f32", pr[1], pr[1], tp[1]))
        e(ds_wr(ha[1], pr, 0))
        e(smov(sT0, 0x9e3779b1)); e(valu("v_mul_lo_u32", vTAG, vTAG, sT0)); e(valu("v_add_u32", vTAG, 0x7f4a7c15, vTAG))
        E.wait_all_lds(); E.barrier()
        for w_ in range(4): e(ds_rd(pp.sub(2 * w_, 2), ha[0], 64 * w_))
        U0 = v(168, 16)
        for d in range(8):
            e(valu("v_lshlrev_b32", U0[2 * d], 16, P0[d])); e(valu("v_and_b32", U0[2 * d + 1], sHI, P0[d]))
        e(rfl(sTAG, vTAG))
        e(valu("v_add_f32", pr[0], pp[0], pp[2])); e(valu("v_add_f32", pr[1], pp[1], pp[3]))
        e(valu("v_add_f32", tp[0], pp[4], pp[6])); e(valu("v_add_f32", tp[1], pp[5], pp[7]))
        e(valu("v_add_f32", pr[0], pr[0], tp[0])); e(valu("v_add_f32", pr[1], pr[1], tp[1]))
        self.finish_stats(pr[0], pr[1], vRINV, vNB, tp[0], tp[1])
        if C.mimic:
            for d in range(16): e(valu("v_sub_f32", U0[d], U0[d], tp[0]))
            for d in range(8): e(valu("v_cvt_pk_bf16_f32", P0[d], U0[2 * d], U0[2 * d + 1]))
            for d in range(8):
                e(valu("v_lshlrev_b32", U0[2 * d], 16, P0[d])); e(valu("v_and_b32", U0[2 * d + 1], sHI, P0[d]))
            for d in range(16): e(valu("v_mul_f32", U0[d], U0[d], vRINV))
        else:
            for d in range(16): e(valu("v_fma_f32", U0[d], U0[d], vRINV, vNB))
        for i_ in range(2):
            for d in range(4 * i_, 4 * i_ + 4): e(valu("v_cvt_pk_bf16_f32", P0[d], U0[2 * d], U0[2 * d + 1]))
            e(vstore(P0.sub(4 * i_, 4), self.vx0[i_], SWS, sOut, 0, "xn", "sc1"))
        self.stamp("x2")
        for j in range(C.w_first, nw0):
            for it in self.slab_dma(("s1", j)): run_item(E, it)
        E.wait_tags(vm=["xn"])
        e(vstore(vTAG, None, SWS, sFLW, 0, fl="sc1"))
        self.stamp("x4")
        E.emits(self.scalars(typ)[0])
        if C.warm_pre:
            wo = self.warm_ops(isA)
            E.emits([x for x in wo[0] + wo[1] if "sc1" not in x.t])
        sp = self.lab("g0spin"); ok = self.lab("g0ok")
        ld = lambda r: f"buffer_load_dword {r}, {ha[2]}, {SWS}, {sFLR} offen sc1"
        E.line(f"s_mov_b32 {sSPIN}, 0")
        if C.p0mode == 0:
            E.line(ld(pp[0]))
            E.label(sp)
            for a_, b_ in ((pp[1], pp[0]), (pp[0], pp[1])):
                E.line(ld(a_)); E.line("s_waitcnt vmcnt(1)"); E.line(f"v_cmp_ne_u32 vcc, {sTAG}, {b_}"); E.line(f"s_cbranch_vccz {ok}")
        else:
            E.line("s_waitcnt vmcnt(0)")
            E.label(sp)
            if C.p0mode > 1: E.line(f"s_sleep {C.p0mode - 1}")
            E.line(ld(pp[0])); E.line("s_waitcnt vmcnt(0)"); E.line(f"v_cmp_ne_u32 vcc, {sTAG}, {pp[0]}"); E.line(f"s_cbranch_vccz {ok}")
        E.line(f"s_add_u32 {sSPIN}, {sSPIN}, 1"); E.line(f"s_cmp_ge_u32 {sSPIN}, {C.spin_max}"); E.line(f"s_cbranch_scc0 {sp}")
        E.label(ok)
        E.vq = []
        self.stamp("x7")
        def xl(ks):
            o = [salu("s_add_u32", sA2s, sXo, sXk)] if ks % 4 == 0 else []
            o.append(vload(X(ks), vL16, SWS, sA2s, 1024 * (ks & 3), fl="sc1"))
            if ks % 4 == 3 and ks < 31: o += [salu("s_add_u32", sXk, sXk, 4096), salu("s_and_b32", sXk, sXk, 32767)]
            return o
        for ks in range(2): E.emits(xl(ks))
        if isA:
            e(salu("s_lshr_b32", sT0, sM0B, 3))
            for jj in range(4):
                e(salu("s_add_u32", "m0", sT0, TB + 16384 + 1024 * jj))
                e(dma(ha[3], SWS, sHo, 0, tag="halo", fl="sc1"))
                if jj < 3: e(salu("s_add_u32", sHo, sHo, 2048))
        nx0 = 8 if isA else 12
        for ks in range(2, nx0): E.emits(xl(ks))
        E.emits(self.scalars(typ)[1])
        self.bar([("s1", 0), ("s1", 1), "halo"], -1)(E)
        self.stamp("bx")
        for m in range(C.D):
            for it in self.wreads(m): run_item(E, it)
        self.stamp("s1"); self.stamp("b0")

        mains = [self.main(m) for m in range(len(self.SEQ))]
        E.gap = 0; E.fifo = Fifo(); E.fifo.p = E.pos; E.fifo.n = 4
        D = C.D
        qN = Q("norm"); qD = Q("dma"); qH = Q("halo"); qB = Q("b2"); qW = Q("raw", hard=False); qU = Q("dump", vm_age=0)
        qE = Q("epi"); qE2 = Q("epi2", hard=False, top=True); qR = Q("restore"); qFl = Q("flag", top=True)
        self.pool = pool = Pool(); self.a2slot = {}; self.rawslot = {}; self.mark = {}
        started = lambda q: (len(q.items) > 0 and q.empty())
        pool.add(a(200, 56), "AR")
        pool.add(a(192, 4), "A", lambda: started(qR))
        if isA:
            pool.add(a(80, 32), "AR")
            pool.add(a(112, 24), "AR")
            pool.add(a(160, 32), "A", lambda: self.mark.get("masks"))
            pool.add(a(48, 32), "A", lambda: started(qE2))
            pool.add(a(136, 24), "A", lambda: started(qE)); pool.add(v(128, 96), "A", lambda: started(qE))
            rawl = list(range(40, 72))
        else:
            pool.add(a(144, 16), "AR"); pool.add(a(160, 32), "A")
            pool.add(a(48, 64), "AR")
            pool.add(a(112, 32), "AR", lambda: started(qE)); pool.add(v(192, 32), "AR", lambda: started(qE))
            pool.add(v(128, 64), "A", lambda: started(qE2))
            for k in list(range(8)) + [12, 13, 14, 15]: pool.add(X(k), "E", lambda k=k: E.gap > M2 + 4 * k + 3)
            rawl = list(range(44, 72))
        rawit = {}
        if C.raw:
            for n in rawl[:C.nrawA if isA else C.nrawB]:
                rawit[n] = self.raw_load(n)
                qW.adds(rawit[n], earliest=C.raw0A if isA else C.raw0B, deadline=M3 + 16 * (n // 8) - C.D - 40)
        def place(n):
            def f(E):
                need = M3 + 16 * (n // 8) - C.D
                if n in self.rawslot:
                    ch = self.b2_chunk(n); x = self.rawslot[n]
                    qU.add(lambda E: L.alloc(("b2", n), [ch]), deadline=need - 3)
                    if not C.dbg_dump: qU.add(ds_wr(vWQ, x["r"], 1024 * ch, tag=("b2", n)), deadline=need - 3)
                    qU.add(lambda E: pool.give(E, x), deadline=need - 3)
                else:
                    for it in rawit.get(n, []): it.dead = True
                    b2_add(n, E.gap)
            return f
        qG = Q("frag")
        def b2_add(n, gap, need=None):
            need = need or M3 + 16 * (n // 8) - D
            qB.adds(self.b2_dma(n), earliest=gap, deadline=need - C.b2lead - 2 * (7 - n % 8), hard=False)
            qB.add(lambda E: None, earliest=gap, deadline=max(need - 10, gap + 2))
        def frag_plan(g, step_, groups):
            b0 = C.b2gA if isA else C.b2gB
            cover = []; tags = []; gap = step_ * g - D
            for k, pg in enumerate(groups):
                if g == b0 + k:
                    for n in pg: b2_add(n, gap + 4, gap + 2 * step_)
                if g == b0 + k + 2:
                    cover += [("b2", n) for n in pg]
                    for n in pg:
                        qG.adds(self.pre_read(n), earliest=gap, deadline=gap + step_ - 3); L.last_use[("b2", n)] = gap + step_ - 1
                if g == b0 + k + 3:
                    tags += [("fr", n) for n in pg]
                    for n in pg: b2_add(n + self.nF, gap)
            return cover, tags
        def barrier(gap, cover, name, **kw):
            mains[gap]["npre"] = 2
            mains[gap]["pre"] += [lambda E: self.stamp(name + "a"), self.bar(cover, gap - 1, **kw), lambda E: self.stamp(name)]
        for ks in range(nx0, 32):
            need = nt1 * ks if ks < 28 else nt1 * 28 + ks - 28
            qN.adds(xl(ks), earliest=0, deadline=need - C.xlead, hard=False)
            qN.add(lambda E: None, deadline=need - 10)
        for j in (range(nw0, 7) if isA else range(nw0, 6)):
            qD.adds(self.slab_dma(("s1", j)), earliest=0, deadline=(24 if isA else 32) * (j // 2) - D - 22, hard=False)
            qD.add(lambda E: None, deadline=max(4, (24 if isA else 32) * (j // 2) - D - 12))
        qK = Q("scal")
        L.last_use[("T",)] = M2 + 40 if isA else -1
        warm = []
        if C.touch_b2:
            tb = self.ww[0]
            warm = [[valu("v_lshlrev_b32", tb, 6, vL16), valu("v_and_b32", tb, 0x7c00, tb), valu("v_add_u32", tb, sCT, tb),
                     salu("s_lshl_b32", sRT, sRT, 2), salu("s_add_u32", sRT, sRT, sW),
                     salu("s_lshl_b32", sT5, sRT, 14), self.touch(tb, SWD, sT5)],
                    [salu("s_lshr_b32", sT5, sRT, 1), salu("s_lshl_b32", sT5, sT5, 2), salu("s_add_u32", sT5, sT5, sRT),
                     salu("s_add_u32", sT5, sT5, 12), salu("s_lshl_b32", sT5, sT5, 15), self.touch(tb, SWD, sT5)],
                    [salu("s_lshl_b32", sT5, sRT, 15), self.touch(tb, SWO, sT5)]]
        def slab(jj): return ("s1", jj) if jj < 16 else ("s2", jj - 16)
        if isA:
            for g in range(1, 9):
                gap = 24 * g - D
                cv, tg = frag_plan(g, 24, [range(0, 5), range(5, 10)])
                barrier(gap, ([("s1", 2 * g), ("s1", 2 * g + 1)] if g < 8 else [("s2", j) for j in range(4)]) + cv, f"b{g}", lds_tags=tg)
                its = []
                for j in (2 * g + 4, 2 * g + 5):
                    if 7 <= j < 16: its += self.slab_dma(("s1", j))
                for j in {6: [0, 1, 2], 7: [3, 4, 5], 8: [6, 7]}.get(g, []): its += self.slab_dma(("s2", j))
                k_ = g - (C.warm_gA if isA else C.warm_gB)
                if k_ in (0, C.warm_sp) and C.warm_all and not C.warm_pre:
                    qD.adds(its, earliest=gap, deadline=gap + 16); its = []
                    wo = self.warm_ops(isA)
                    qK.adds(wo[0] + wo[1] if C.warm_sp == 0 else wo[k_ > 0], earliest=gap + 12, deadline=gap + 30)
                if C.b2g <= g < C.b2g + 3 and warm: its += warm[g - C.b2g]
                if g == C.warm_gA + C.warm_sp: qK.adds([accr(self.tr2[n_], a(aPARK + n_)) for n_ in range(2)], earliest=gap + 12, deadline=gap + 40)
                qD.adds(its, earliest=gap, deadline=gap + (14 if g == 7 else 23))
            for j in range(16):
                g0 = max(0, 12 * j - D + 1)
                b = j & 1; ch = self.chunks(("s1", j))[0] * 1024
                its = [ds_rd(aXH[b], vHX, 1024 * j)]
                for u in range(2):
                    its += [ds_tr(aW16[b][u].sub(0, 2), vW16, ch + 1024 * (1 + u)), ds_tr(aW16[b][u].sub(2, 2), vW16, ch + 1024 * (1 + u) + 512)]
                qH.adds(its, earliest=g0, deadline=12 * j + 4)
                qH.add(mfma(aHACC[0], aW16[b][0], aXH[b], 0 if j == 0 else aHACC[0], "16x16x32"), earliest=g0, deadline=12 * j + 8)
                qH.add(mfma(aHACC[1], aXH[b], aW16[b][1], 0 if j == 0 else aHACC[1], "16x16x32"), earliest=12 * j + 7, deadline=12 * j + 10)
            gap = M2 + 32 - D
            barrier(M2 + C.exbar, [], "ex", lds_tags=["exw"])
            barrier(gap, [("s2", j) for j in range(4, 8)], "mid")
            for n in range(20, 32): b2_add(n, gap)
            first_use = {0: list(range(32, 46)), 1: list(range(46, 50))}
        else:
            for g in range(1, 12):
                gap = 32 * g - D - (8 if g == 11 else 0)
                cv, tg = frag_plan(g, 32, [range(0, 8), range(8, 16)])
                barrier(gap, [slab(jj) for jj in {10: (20, 21, 22), 11: (23,)}.get(g, (2 * g, 2 * g + 1))] + cv, f"b{g}", lds_tags=tg)
                its = []
                for jj in {1: (6,), 8: (19,), 9: (20, 21, 22)}.get(g, (2 * g + 3, 2 * g + 4)):
                    if jj < 24: its += self.slab_dma(slab(jj))
                k_ = g - (C.warm_gA if isA else C.warm_gB)
                if k_ in (0, C.warm_sp) and C.warm_all and not C.warm_pre:
                    qD.adds(its, earliest=gap, deadline=gap + 16); its = []
                    wo = self.warm_ops(isA)
                    qK.adds(wo[0] + wo[1] if C.warm_sp == 0 else wo[k_ > 0], earliest=gap + 12, deadline=gap + 30)
                if C.b2g <= g < C.b2g + 3 and warm: its += warm[g - C.b2g]
                for n in {10: range(32, 36), 11: range(36, 44)}.get(g, []): b2_add(n, gap)
                qD.adds(its, earliest=gap, deadline=gap + {1: 28, 9: 22, 10: 7}.get(g, 18))
            first_use = {0: list(range(44, 48)), 1: list(range(48, 56))}
        def xfree(reg): return M2 + nt2 * ((reg.lo + reg.n - 1) // 4) + nt2 - 1
        if isA: self.epoch_bump(qFl)
        def after(q, stage, tags):
            def arm(E):
                f = self.flag_store(stage, tags); p0 = E.pos; g0_ = E.gap
                fd = C.flagd if stage in (0, 2) else C.flagl
                f.ready = lambda E: ((E.pos - p0) * 4 + (E.gap - g0_) * 8 >= fd or (E.gap - g0_) * 33 >= fd
                                     or not any(x[2] in tags for x in E.vq))
                qFl.add(f, earliest=E.gap)
            q.add(arm)
        if not isA:
            for t in range(8):
                T = ACC1(t if t < 6 else t - 2)
                its = [accr(T[r], self.acc1(t)[r]) for r in range(16)] if t >= 6 else []
                qE.adds(its + self.h_epilogue(T, sStF if t < 4 else sStH, 1024 * (t & 3), "h1"), earliest=nt1 * 28 + 4 * t + 3,
                        deadline=M2 - 1 if t < 4 else nt1 * 28 + 4 * t + 8, hard=(t < 4))
            after(qE, 0, ["h1"])
        else:
            self.attention(qE, xfree)
            n0 = self.exw_check[1]; nn = len(qE.items)
            for k in range(n0, nn):
                it, ear, dl, hd = qE.items[k]
                qE.items[k] = (it, ear, int(M2 + 8 + (M3 + C.att_end - M2 - 8) * (k - n0) / (nn - n0)), False)
            after(qE, 3, ["o"])
        schedule(E, mains[:M2], [qN, qK, qD, qH, qG, qB, qW, qFl, qE], lambda g: (C.cap1A if isA else C.cap1B) if g < nt1 * 28 else C.cap1t,
                 0, flush=False, vm_gap=C.vm1)
        assert qN.empty() and qH.empty()
        self.stamp("s2")

        qL = Q("a2"); qF = Q("fin", vm_age=60); qP = Q("poll", top=True)
        g0 = M3 if isA else M3 + C.gate0B
        for n_, dst in enumerate(self.parked):
            if dst.lo < 128: qR.add(accr(dst, a(aPARK + n_)), earliest=xfree(dst), deadline=min(g0, M3 - D) - 2)
        qR.add(valu("v_add_u32", vWQ, sM0B, vL16), earliest=xfree(vWQ), deadline=min(g0, M3 - D) - 2)
        tail = M2 + k0 * nt2; tl = 32 - k0
        for t in range(nt2):
            its = ([accr(E2T[r], ACC2(t)[r]) for r in range(16)] if isA else []) + self.h_epilogue(E2T if isA else ACC1(t), sSt2, 1024 * t, "h2" if t < 2 else "h3")
            qE2.adds(its, earliest=tail + tl * t + tl - 1, deadline=tail + tl * t + tl + 8)
            if t == 1: after(qE2, 1 if isA else 2, ["h2"])
            if t == 3: after(qE2, 4, ["h3"])
        mains[M3]["pre"].append(lambda E: self.stamp("p2"))
        for n_ in range(72): mains[M3 + 2 * n_]["fix"].insert(0, lambda E, n_=n_: self.stamp(f"n{n_}"))
        gates = {0: g0, 32: M3 + 2 * (32 - C.la1), 40: M3 + 2 * (40 - C.la2), 56: M3 + 2 * (56 - C.la3),
                 64: M3 + 2 * (64 - (C.la4A if isA else C.la4B))}
        def chk_free(q):
            def f(E): assert q.empty(), ("A2 slot still in use", q.name, E.gap)
            f.ready = lambda E: q.empty()
            return f
        cur = 0
        for n in range(72):
            if n in gates:
                cur = gates[n]; st = step_info(n)[2]; n0 = n
                qP.add(self.poll_load(st), earliest=cur - C.polld, deadline=cur - C.polld + 2)
                qL.add(self.gate(st), earliest=cur, deadline=cur + 1)
                if n == 0 and isA: qP.items[-1] = (qP.items[-1][0], M3 + 1, M3 + 1, False)
            its = self.a2_load(n)
            qL.adds(its, earliest=cur, deadline=M3 + 2 * n - C.a2lead, hard=False)
            qL.add(lambda E: None, earliest=cur, deadline=max(M3 + 2 * n - 6, M3 + 1 if isA else 0))
        if isA:
            def boundary(E):
                qs = [qFl, qE2, qE, qL, qB, qW, qU, qP]
                def flags():
                    while not qFl.empty() and (not hasattr(qFl.head()[0], "ready") or qFl.head()[0].ready(E)): step(E, qFl, qs)
                def one_vm(q):
                    while not q.empty() and q.head()[1] <= M3:
                        it = q.head()[0]
                        if hasattr(it, "ready") and not it.ready(E): return False
                        step(E, q, qs)
                        if is_vm(it) and not getattr(it, "dead", False): return True
                    return False
                left = len(qE.items) - qE.n; base = qE.n
                polled = gated = False; lastv = E.pos; nl = 0
                while not (qE2.empty() and qE.empty()):
                    a_, b_ = (qE2, qE) if not qE2.empty() else (qE, qE2)
                    h = a_.head()[0]
                    if not callable(h) and E.nops(h) > 0 and not b_.empty() and (callable(b_.head()[0]) or E.nops(b_.head()[0]) == 0): a_ = b_
                    elif not callable(h) and E.nops(h) > 0 and not qU.empty(): a_ = qU
                    step(E, a_, qs)
                    flags()
                    fr = (qE.n - base) / max(1, left)
                    if not polled and fr >= C.att_gate - 0.45: step(E, qP, qs); polled = True
                    if not gated and fr >= C.att_gate: step(E, qL, qs); gated = True
                    if E.pos - lastv >= 16:
                        if (gated and nl < 14 and one_vm(qL)): nl += 1; lastv = E.pos
                        elif one_vm(qB) or one_vm(qW): lastv = E.pos
                if not polled: step(E, qP, qs)
                if not gated: step(E, qL, qs)
                while nl < 12 and one_vm(qL): nl += 1; flags()
                E.pos += 1000; flags(); E.pos -= 1000
            mains[M3]["pre"].insert(0, boundary)
        b2q = list(range(50 if isA else 56, 72))
        prevpg = lambda n: max(k for k in range(n) if self.b2_chunk(k) == self.b2_chunk(n))
        for c in range(9):
            gap = M3 + 16 * c - D
            barrier(gap, [("b2", n) for n in range(8 * c, 8 * c + 8)] + (["xt"] if c == 7 else []), f"c{c}",
                    lds_tags=["sw", "xr"] if c == 8 else ())
            for n in first_use.get(c, []): mains[gap]["pre"].append(place(n))
            while b2q and L.last_use[("b2", prevpg(b2q[0]))] <= gap - 1: mains[gap]["pre"].append(place(b2q.pop(0)))
        assert not b2q
        RD = v(0, 16); SF = v(16, 16); XF = v(48, 16); XR = v(224, 8); tt = v(32, 4)
        vRW = vTR[0]; vRR = vTR[1]; vOW = vRINV; vOR = vNB; vOO = vTR[4]; vXD = vTR[5]; vXA = vG
        qF.add(chk_free(qE), earliest=M3 + 30); qF.add(chk_free(qE2), earliest=M3 + 30)
        its = [valu("v_lshrrev_b32", tt[0], 4, vL16), valu("v_and_b32", tt[1], 31, tt[0]),
               valu("v_lshrrev_b32", tt[2], 5, tt[0]), valu("v_lshlrev_b32", tt[2], 3, tt[2]),
               salu("s_lshr_b32", sT0, sM0B, 3), salu("s_add_u32", sT0, sT0, TB), valu("v_add_u32", vRW, sT0, vL16),
               valu("v_xor_b32", vRR, 8192, vRW),
               salu("s_and_b32", sT0, sW, 1), salu("s_lshl_b32", sT1, sT0, 12), salu("s_add_u32", sT1, sT1, TB + 16384),
               valu("v_lshlrev_b32", tt[3], 7, tt[1]), valu("v_add3_u32", vXA, tt[3], tt[2], sT1),
               valu("v_and_b32", tt[3], 7, tt[0]), valu("v_lshlrev_b32", tt[3], 4, tt[3]),
               salu("s_lshl_b32", sT1, sKH, 6), valu("v_xor_b32", tt[3], sT1, tt[3]), valu("v_add_u32", vXA, vXA, tt[3]),
               salu("s_mul_i32", sT0, sT0, 32 * 144, scc_w=False), salu("s_add_u32", sT0, sT0, sT1), salu("s_add_u32", sT0, sT0, TB),
               valu("v_mul_u32_u24", tt[1], 144, tt[1]), valu("v_add3_u32", vOW, tt[1], tt[2], sT0),
               valu("v_lshrrev_b32", tt[1], 3, tt[0]), valu("v_and_b32", tt[2], 0x70, vL16),
               valu("v_lshl_add_u32", vOO, tt[1], 10, tt[2]),
               valu("v_lshlrev_b32", tt[3], 4, tt[1]), valu("v_xor_b32", vXD, vOO, tt[3]),
               salu("s_mul_i32", sT0, sW, 16 * 144, scc_w=False), salu("s_add_u32", sT0, sT0, TB),
               valu("v_mul_u32_u24", tt[1], 144, tt[1]), valu("v_add3_u32", vOR, tt[1], tt[2], sT0),
               salu("s_lshl_b32", sXk, sW, 11), salu("s_add_u32", sXk, sXk, TB + 16384), salu("s_add_u32", sXs, sOut, 8192)]
        its += [vload(XR.sub(0, 4), vXD, SX, sOut), vload(XR.sub(4, 4), vXD, SX, sXs), valu("v_add_u32", vXD, sXk, vL16)]
        qF.adds(its, earliest=M3 + 30, deadline=M3 + 64)
        qF.adds([ds_wr(vXD, XR.sub(4 * i, 4), 1024 * i, tag="xt") for i in range(2)], earliest=M3 + 96 - D, deadline=M3 + 112 - D - 2)
        its = []
        for a_ in range(4):
            its += [valu("v_xor_b32", tt[a_], 16 * a_, vXA), ds_rd(XR.sub(2 * a_, 2), tt[a_], 0, tag="xr")]
        qF.adds(its, earliest=M3 + 112 - D, deadline=M3 + 128 - D - 1)
        qF.adds([ds_wr(vRW, ACCS[1].sub(4 * i, 4), 1024 * i, tag="sw") for i in range(4)], earliest=M3 + 111, deadline=M3 + 128 - D)
        its = []
        for r in range(8):
            its += [valu("v_lshlrev_b32", XF[2 * r], 16, XR[r]), valu("v_and_b32", XF[2 * r + 1], sHI, XR[r])]
        qF.adds(its, earliest=M3 + 112)
        its = [ds_rd(SF.sub(4 * i, 4), vRR, 1024 * i) for i in range(4)]
        its += [valu("v_add_f32", SF[r], SF[r], ACCS[0][r]) for r in range(16)]
        CK = v(38, 2); C1 = v(40, 2)
        its += [valu("v_mov_b32", CK[0], 0xbfb8aa3b), valu("v_mov_b32", CK[1], 0xbfb8aa3b), valu("v_mov_b32", C1[0], 1.0), valu("v_mov_b32", C1[1], 1.0)]
        qF.adds(its, earliest=M3 + 128 - D)
        cap2 = C.cap2A if isA else C.cap2B
        def capf(g):
            if not isA and not qE.empty(): return C.cap2h
            if g < tail + tl - 1: return cap2
            if g < M3: return C.cap2t
            if not qE2.empty(): return 40
            return C.cap3 if qE.empty() else C.cap3x
        schedule(E, mains[M2:], [qFl, qP, qD, qG, qL, qB, qW, qU, qR, qE2, qE, qF], capf, M2, flush=False,
                 vm_gap=lambda g: C.vm1 if g < M3 else C.vm3)
        assert qL.empty() and qD.empty() and qB.empty() and qE.empty() and qE2.empty() and qFl.empty()
        self.stamp("lastm")
        while not qF.empty():
            it = qF.head()[0]; qF.n += 1; run_item(E, it)
        for i in range(4): e(ds_wr(vRW, ACCD[1].sub(4 * i, 4), 16384 + 1024 * i, tag="dw"))
        E.wait_tags(lds=["dw"]); E.barrier()
        self.stamp("sbar")
        for i in range(4): e(ds_rd(RD.sub(4 * i, 4), vRR, 16384 + 1024 * i))
        G = ACCS[1]
        def pk(op, d, *src):
            r = set()
            for x in src: r |= ids(x)
            return I(f"{op} {d}, " + ", ".join(fmt(x) for x in src), "valu", r, ids(d))
        P2 = lambda reg, r: reg.sub(r, 2)
        for a_ in range(4):
            pp_ = (4 * a_, 4 * a_ + 2); rr = range(4 * a_, 4 * a_ + 4)
            for r in pp_: e(pk("v_pk_add_f32", P2(RD, r), P2(RD, r), P2(ACCD[0], r)))
            for r in pp_: e(pk("v_pk_mul_f32", P2(G, r), P2(RD, r), CK))
            for r in pp_: e(pk("v_pk_mul_f32", P2(RD, r), P2(RD, r), P2(SF, r)))
            for r in rr: e(valu("v_exp_f32", G[r], G[r]))
        for a_ in range(4):
            pp_ = (4 * a_, 4 * a_ + 2); rr = range(4 * a_, 4 * a_ + 4)
            for r in pp_: e(pk("v_pk_add_f32", P2(G, r), P2(G, r), C1))
            for r in rr: e(valu("v_rcp_f32", G[r], G[r]))
        for a_ in range(4):
            pp_ = (4 * a_, 4 * a_ + 2)
            for r in pp_: e(pk("v_pk_fma_f32", P2(RD, r), P2(RD, r), P2(G, r), P2(XF, r)))
            for d in range(2): e(valu("v_cvt_pk_bf16_f32", XR[2 * a_ + d], RD[4 * a_ + 2 * d], RD[4 * a_ + 2 * d + 1]))
            e(ds_wr(vOW, XR.sub(2 * a_, 2), 16 * a_))
        E.wait_all_lds(); E.barrier()
        for p in range(2): e(ds_rd(G.sub(4 * p, 4), vOR, 8 * 144 * p))
        for p in range(2): e(vstore(G.sub(4 * p, 4), vOO, SOUT, sXs if p else sOut, 0, fl=C.out_fl))
        self.stamp("end")
        if C.amp:
            l = self.lab("amp")
            E.line("s_waitcnt lgkmcnt(0)")
            if C.amp.startswith("sk"):
                E.line(f"buffer_load_dword v0, off, {SDBG}, 0 offset:4 sc1"); E.line("s_waitcnt vmcnt(0)"); E.line(f"v_readfirstlane_b32 {sT1}, v0"); E.line("s_nop 4")
                if C.amp == "skp": E.line(f"s_sub_u32 {sT0}, s{STAMP0}, {sT1}")
                else: E.line(f"s_sub_u32 {sT0}, {sT1}, s{STAMP0}")
                E.line(f"s_max_i32 {sT0}, {sT0}, 0")
            else:
                k0, k1 = [STAMP0 + 2 * int(x) for x in C.amp.split("-")]
                E.line(f"s_sub_u32 {sT0}, s{k1}, s{k0}")
            pass; E.line(f"s_lshl_b32 {sT0}, {sT0}, 2"); E.line(f"s_add_u32 {sT0}, {sT0}, s{STAMP0 + 16}")
            E.label(l)
            E.line("s_memrealtime s[84:85]"); E.line("s_waitcnt lgkmcnt(0)"); E.line(f"s_sub_u32 s84, s84, {sT0}")
            E.line("s_cmp_lt_i32 s84, 0"); E.line(f"s_cbranch_scc1 {l}")
        elif C.stamps:
            E.line("s_waitcnt lgkmcnt(0)")
            e(salu("s_lshl_b32", sT0, sWG, 2)); e(salu("s_add_u32", sT0, sT0, sW)); e(salu("s_lshl_b32", sT0, sT0, 7))
            e(salu("s_add_u32", sT0, sT0, WS_STAMP))
            for k in range(9):
                e(valu("v_mov_b32", v(0), s(STAMP0 + 2 * k))); e(vstore(v(0), None, SWS, sT0, 4 * k))
            e(accr(v(0), a(198))); e(vstore(v(0), None, SWS, sT0, 44))
            E.line("s_memrealtime s[84:85]"); E.line("s_getreg_b32 s86, hwreg(HW_REG_XCC_ID)"); E.line("s_waitcnt lgkmcnt(0)")
            e(valu("v_mov_b32", v(0), s(84))); e(vstore(v(0), None, SWS, sT0, 36))
            e(valu("v_mov_b32", v(0), s(86))); e(vstore(v(0), None, SWS, sT0, 40))
        E.line("s_endpgm")
        E.out += self.cold

    def epoch_bump(self, q):
        st = {}
        def lds_(): return [f"buffer_load_dwordx4 {st['x'][k]['r']}, {vRINV}, {SWS}, {sT5} offen sc1" for k in range(4)]
        def issue(E):
            st["x"] = [self.pool.take(E, "R") for _ in range(4)]
            l = self.lab("nobump")
            E.emit(salu("s_or_b32", sT5, sWG, sW)); E.line(f"s_cbranch_scc1 {l}")
            E.line(f"v_lshlrev_b32 {vRINV}, 3, {vL16}")
            for k, t_ in enumerate(lds_()): E.line(f"s_mov_b32 {sT5}, {WS_FL0 + 8192 * k}"); E.line(t_)
            E.label(l)
            E.vq.append([E.pos, set(), "bump", False])
        def check(E):
            l = self.lab("nobump"); sp = self.lab("bumpspin")
            n = next((sum(1 for x in E.vq[k + 1:] if x[3]) for k, x in enumerate(E.vq) if x[2] == "bump"), 62)
            E.emit(salu("s_or_b32", sT5, sWG, sW)); E.line(f"s_cbranch_scc0 {sp}")
            E.label(l)
            c = [f"{sp}:", f"    s_mov_b32 {sSPIN}, 0", f"    s_waitcnt vmcnt({min(n, 62)})", f"{sp}_l:", f"    v_mov_b32 {vNB}, 0"]
            for k in range(4):
                for d in range(4):
                    c += [f"    v_accvgpr_read_b32 {NT[0]}, {st['x'][k]['r'][d]}", f"    v_xor_b32 {NT[0]}, {vTAG}, {NT[0]}", f"    v_or_b32 {vNB}, {vNB}, {NT[0]}"]
            c += [f"    v_cmp_ne_u32 vcc, 0, {vNB}", f"    s_cbranch_vccz {sp}_d",
                  f"    s_add_u32 {sSPIN}, {sSPIN}, 1", f"    s_cmp_ge_u32 {sSPIN}, {C.spin_max}", f"    s_cbranch_scc1 {sp}_d"]
            for k, t_ in enumerate(lds_()): c += [f"    s_mov_b32 {sT5}, {WS_FL0 + 8192 * k}", "    " + t_]
            c += ["    s_waitcnt vmcnt(0)", f"    s_branch {sp}_l", f"{sp}_d:", f"    s_mov_b32 {sT5}, {WS_EPOCH}",
                  f"    buffer_store_dword {vTAG}, off, {SWS}, {sT5} sc1", f"    s_branch {l}"]
            self.cold += c
            for x in st["x"]: assert x["r"].f == "a"; self.pool.give(E, x)
        q.add(issue, earliest=100, deadline=101); q.add(check, earliest=134, deadline=135)

    def attention(self, q, xfree):
        M2 = self.M2
        Q0, Q1, K0, K1, V0, V1 = [ACC1(t) for t in range(6)]
        cvt = lambda d, x, y: valu("v_cvt_pk_bf16_f32", d, x, y)
        def pack(dst, src, n=8): return [cvt(dst[i], src[2 * i], src[2 * i + 1]) for i in range(n)]
        its = pack(K0, K0) + pack(K0.sub(8, 8), K1)
        its += [ds_wr(vEX, K0.sub(4 * h, 4), 6144 + 1024 * h, tag="exw") for h in range(4)]
        its += pack(V0, V0) + pack(V0.sub(8, 8), V1)
        bar2 = M2 + C.exbar
        q.adds(its, earliest=M2 - 21, deadline=bar2 - 1)
        its = [ds_wr(vEX, V0.sub(4 + 8 * j, 4), 6144 + 4096 + 1024 * j, tag="exw") for j in range(2)]
        its += [accr(NT[i], aHACC[0][i]) for i in range(4)] + [accr(NT[4 + i], aHACC[1][i]) for i in range(4)]
        hk = v(NT[0].lo, 2); hv = v(NT[4].lo, 2)
        its += [cvt(NT[0], NT[0], NT[1]), cvt(NT[1], NT[2], NT[3]), cvt(NT[4], NT[4], NT[5]), cvt(NT[5], NT[6], NT[7])]
        its += [salu("s_lshl_b32", sT0, sW, 10), salu("s_add_u32", sT0, sT0, 256), valu("v_add_u32", NT[2], sT0, vHW),
                salu("s_lshr_b32", sT0, sW, 1), salu("s_lshl_b32", sT0, sT0, 10), salu("s_and_b32", sT1, sW, 1),
                salu("s_lshl_b32", sT1, sT1, 8), salu("s_add_u32", sT0, sT0, sT1), valu("v_add_u32", NT[3], sT0, vHW),
                ds_wr(NT[2], hk, 0, tag="exw"), ds_wr(NT[3], hv, 4096, tag="exw")]
        q.adds(its, earliest=M2 - 1, deadline=bar2 - 1)
        self.exw_check = (q, len(q.items))
        q.adds(pack(Q0, Q0) + pack(Q0.sub(8, 8), Q1), earliest=M2)
        MASK = v(208, 24)
        its = [accr(vRINV, a(196)), accr(vNB, a(197)), smov(sONE, NEG)]
        for r in range(24):
            rr = r if r < 16 else r - 8
            its += [valu("v_bfe_i32", MASK[r], vNB if r < 16 else vRINV, 8 * (rr >> 2) + (rr & 3), 1), valu("v_and_b32", MASK[r], sONE, MASK[r])]
        q.adds(its, earliest=M2)
        q.add(lambda E: self.mark.update(masks=True), earliest=M2)
        SC = K1; SP = v(0, 16); U = v(16, 8); P = v(24, 12); O = Q1
        mx, tm, mc = vRINV, vNB, vW16
        sums = [vHX, vH]; t2 = vTR[4]
        def add(i, ear=0):
            w = [x for x in i.w if x < 128]
            e_ = max([xfree(v(x)) for x in w], default=0)
            q.add(i, earliest=max(e_, ear))
        def qk(h, which):
            if which == 0: add(mfma(SC, K0.sub(4 * h, 4), Q0.sub(4 * h, 4), MASK.sub(0, 16)))
            else: add(mfma(SP, aKP[h], Q0.sub(4 * h, 4), MASK.sub(8, 16)))
        def fin(h):
            o = 8 * (h & 1); sm = sums[h & 1]
            l = [valu("v_rcp_f32", sm, sm)]
            l += [valu("v_mul_f32", O[o + r], O[o + r], sm) for r in range(8)]
            l += [cvt(O[o + r], O[o + 2 * r], O[o + 2 * r + 1]) for r in range(4)]
            l.append(vstore(O.sub(o, 4), vL16, SWS, sStF, 1024 * h, "o", C.st_fl))
            return l
        qk(0, 0)
        q.adds([ds_rd(aKP[h], vEX, 1024 * h) for h in range(4)] + [ds_rd(aVP[j], vEX, 4096 + 1024 * j) for j in range(2)], earliest=bar2)
        qk(0, 1)
        for h in range(4):
            for i in range(4): add(valu("v_max_f32", U[i], SC[2 * i], SC[2 * i + 1]))
            for i in range(4, 8): add(valu("v_max3_f32", U[i], SC[2 * i], SC[2 * i + 1], SP[2 * i]))
            if h < 3: qk(h + 1, 0)
            for i in range(4, 8): add(valu("v_max_f32", U[i], U[i], SP[2 * i + 1]))
            add(valu("v_max3_f32", mx, U[0], U[1], U[2])); add(valu("v_max3_f32", tm, U[3], U[4], U[5]))
            if h < 3: qk(h + 1, 1)
            add(valu("v_max3_f32", mx, mx, U[6], U[7])); add(valu("v_max_f32", mx, mx, tm))
            add(valu("v_mov_b32", tm, mx))
            fl = fin(h - 1) if h > 0 else []
            for x in fl[:3]: add(x)
            add(swap32(mx, tm)); add(valu("v_max_f32", mx, mx, tm))
            add(I(f"v_mul_f32 {mc}, -{mx}, {sCSC}", "valu", mx.ids() | sCSC.ids(), mc.ids()))
            for x in fl[3:]: add(x)
            for i in range(8): add(valu("v_fma_f32", U[i], U[i], sCSC, mc))
            for i in range(8): add(valu("v_exp_f32", U[i], U[i]))
            sm = sums[h & 1]; j = h >> 1
            for i in range(4):
                add(cvt(P[i], U[i], U[i])); add(valu("v_and_b32", P[i], vPM, P[i]))
            add(valu("v_add_f32", sm, U[0], U[1])); add(valu("v_add_f32", tm, U[2], U[3]))
            add(mfma(O, V0.sub(8 * j, 4), P.sub(0, 4), 0))
            for i in range(4):
                add(cvt(P[8 + i], U[4 + i], U[4 + i])); add(valu("v_and_b32", P[4 + i], vMHC, P[8 + i]))
            add(valu("v_add_f32", t2, U[4], U[5])); add(valu("v_add_f32", sm, sm, tm))
            add(mfma(O, V0.sub(8 * j + 4, 4), P.sub(4, 4), O))
            for i in range(4): add(valu("v_and_b32", P[8 + i], vMHP, P[8 + i]))
            add(valu("v_add_f32", tm, U[6], U[7])); add(valu("v_add_f32", t2, t2, tm))
            add(mfma(O, aVP[j], P.sub(8, 4), O))
            add(valu("v_add_f32", sm, sm, t2))
            add(valu("v_mov_b32", tm, sm))
            add(swap32(sm, tm)); add(valu("v_add_f32", sm, sm, tm))
        for x in fin(3): add(x)

    def build(self):
        E = self.E
        self.stamp("t00")
        E.emit(scmp("s_cmp_ge_u32", sWG, 256))
        E.line("s_cbranch_scc1 L_end")
        E.line("s_load_dwordx16 s[8:23], s[0:1], 0")
        E.line("s_load_dwordx4 s[24:27], s[0:1], 64")
        E.emit(salu("s_lshr_b32", sJ, sWG, 3))
        self.code_touch()
        E.emit(I("s_bitcmp1_b32 s6, 3", "salu", sJ.ids(), {SCC}))
        E.line("s_cbranch_scc1 L_typeB")
        snap = E.snapshot()
        self.body("A")
        E.label("L_typeB")
        E.restore(snap)
        self.body("B")
        E.label("L_end")
        E.line("s_endpgm")
        E.label("L_code_end")
        E.out.append(".p2align 12")
        head = open(os.path.join(os.path.dirname(os.path.abspath(__file__)), "head.txt")).read()
        txt = head + f"""; @launch grid=(256,1,1) block=(256,1,1) lds=163840
.amdgcn_target "amdgcn-amd-amdhsa--gfx950"
.text
.globl {NAME}
.p2align 8
.type {NAME},@function
{NAME}:
""" + E.text() + f""".section .rodata,"a"
.p2align 6
.amdhsa_kernel {NAME}
  .amdhsa_next_free_vgpr 512
  .amdhsa_next_free_sgpr 102
  .amdhsa_accum_offset 256
  .amdhsa_group_segment_fixed_size 0
  .amdhsa_kernarg_size 80
  .amdhsa_user_sgpr_count 2
  .amdhsa_user_sgpr_kernarg_segment_ptr 1
  .amdhsa_system_sgpr_workgroup_id_x 1
.end_amdhsa_kernel
"""
        return txt


def place_pads(txt):
    import subprocess, re, tempfile
    sys.path.insert(0, "cdna_kernels")
    from cdna_launch import with_harness_metadata
    lines = txt.split("\n")
    probe = []
    for n, l in enumerate(lines):
        if l.startswith("    ") and not l.strip().startswith(";") and not l.strip().startswith("."): probe.append(f"LP_{n}:")
        probe.append(re.sub(r"L_pad[AB]_\d+", "L_end", l))
    d = tempfile.mkdtemp()
    open(d + "/p.s", "w").write(with_harness_metadata("\n".join(probe), NAME, 10, launch_lists=True))
    subprocess.run(["clang", "-x", "assembler", "-target", "amdgcn-amd-amdhsa", "-mcpu=gfx950", d + "/p.s", "-o", d + "/p.co"], check=True)
    sym = subprocess.run(["llvm-objdump", "-t", d + "/p.co"], capture_output=True, text=True).stdout
    addr = {int(m.group(2)): int(m.group(1), 16) for m in re.finditer(r"([0-9a-f]{16}) .* LP_(\d+)", sym)}
    shift = 0; typ = None; pads = {"A": [], "B": []}; prev = None
    for n, l in enumerate(lines):
        if l.startswith(";PADS_FROM"): typ = l.split()[1]
        if l.startswith("L_typeB:") or l.startswith("L_end:"): typ = None
        if n in addr:
            a_ = addr[n] + shift
            if typ and prev is not None and prev // 4096 != a_ // 4096:
                pads[typ].append(n); shift += 4
            prev = a_
    out = []
    for n, l in enumerate(lines):
        for t in "AB":
            if n in pads[t]:
                k = pads[t].index(n)
                out.append(f"L_pad{t}_{k}:")
                out.append(f"    s_cbranch_execz " + (f"L_pad{t}_{k + 4}" if k + 4 < len(pads[t]) else f"L_back{t}"))
        out.append(l)
    print("pads", {t: len(pads[t]) for t in pads}, "kernel at", hex(min(addr.values())))
    assert min(len(pads[t]) for t in pads) >= 4
    return "\n".join(out)


if __name__ == "__main__":
    g = Gen()
    txt = g.build()
    if C.pads: txt = place_pads(txt)
    open(sys.argv[1], "w").write(txt)
    print("instructions:", g.E.ninst)
```

```python
import sys, os
sys.path.insert(0, os.path.dirname(os.path.abspath(__file__)))
from emit import *

NAME = "recurrent_scan__sliding_local_dilated__glu_gated_bilinear__prompt_kernel"

class Cfg:
    stamps = False
    stset = "a"
    rt = False
    D = 6
    nahead = 4; cap1A = 7.0; cap1B = 6.5; cap1t = 8.0; cap2h = 9.0; cap2A = 7.5; cap2B = 7.0; cap3 = 7.0; cap2t = 7.5; cap3x = 20.0
    npre = 120
    att_gate = 0.7; gate0B = -44; vm1 = 2.0; vm3 = 8.0; nrawA = 0; nrawB = 10; warm_gA = 2; warm_gB = 1; warm_sp = 1; b2gA = 4; b2gB = 3; raw0A = 130; raw0B = 270
    rot = True; rot_half = False
    pads = True
    la1 = 14; la2 = 14; la3 = 18; la4A = 13; la4B = 18
    polld = 34
    flagd = 600
    b2lead = 24; a2lead = 30; att_end = 30
    dbg_st = False; dbg_a2 = 0; dbg_dump = False; dbg_bar = False
    amp = ""
    lg_old = 10; vmfirst = False
    wsoff = 0; pre_out = False
    rot2 = True; flagl = 300
    raw = True; raw0 = 84
    npre_norm = 1; npre_normA = 1; hn_at = 4; dots_first = 6; exbar = 12; npoll = 3
    w3early = True
    w0at = 4; touch_w0 = 4; x2early = False
    touch_code = True
    touch_b2 = False; b2g = 4
    warm_all = True; warm_byA = False
    a2_fl = "sc1"; st_fl = "sc1"; pre_a2 = 0; x_fl = ""; w_fl = ""; b2_fl = ""; out_fl = ""
    spin_max = 1 << 16

C = Cfg()
import emit as _emit
for arg in sys.argv[2:]:
    k, val = arg.split("=")
    old = getattr(C, k)
    setattr(C, k, (val not in ("0", "False")) if isinstance(old, bool) else type(old)(val.replace("+", " ")))

Emitter.LG_OLD = C.lg_old
WS_FLAG = 0x900000
WS_EPOCH = 0xA00000
WS_STAMP = 0xB00000
WS_SIZE = 0xC00000
TB = 131072

sWG = s(2); sW = s(3); sRB = s(4); sIDX = s(5); sJ = s(6); sXCD = s(7)
SX, SWO, SWG_, SWD, SDBG, SP5, SWU, SOUT, SWS, SP9 = [s(8 + 4 * i, 4) for i in range(10)]
SQKV = SWG2 = SP5; SWH = SWU2 = SP9
(sA2s, sB2s, sM0B, sT0, sT1, sS1, sS2, sS2b, sTAG, sFLW, sFLR, sStF, sStH, sSt2, sHI, sONE, sSPIN, sT2, sOut, sT5,
 sRT, sCT, sKH, sCSC, sXs, sM0T, sXo, sXk, sROT, sC512, sA2c0, sA2c1, sA2c2, sB2c0, sB2c1, sB2c2) = [s(48 + i) for i in range(36)]
sA2c = [sA2c0, sA2c1, sA2c2]; sB2c = [sB2c0, sB2c1, sB2c2]
sHo = sB2s
sPC = s(48, 2)
STAMP0 = 84

def X(ks): return v(4 * ks, 4)
def ACC1(t): return v(128 + 16 * t, 16)
NT = [v(224 + i) for i in range(8)]
vTR = [v(232 + i) for i in range(6)]
vG = v(238); vU = v(239); vH = v(240)
vB2 = v(241); vTW = v(242)
vL16 = v(243); vRINV = v(244); vNB = v(245); vW16 = v(246); vHX = v(247)
vTAG = v(248); vPOLL = v(249); vP4 = v(250); vTB = vTAG
vEX = v(251); vHW = v(252); vPM = v(253); vMHC = v(254); vMHP = v(255)
vTR2T = [v(42), v(43)]; vTR2 = [v(44), v(45)]; vWQ = v(46)
vPL = [vPOLL, v(36), v(37), v(47)]
vSP = [vTW, v(46 - 5)]
PARKED = vTR2T + vTR2
E2T = v(48, 16)
ACCD = [v(64, 16), v(80, 16)]; ACCS = [v(96, 16), v(112, 16)]
def WF(m): return a(4 * (m % 12), 4)
def ACC2(t): return a(48 + 16 * t, 16)
aMASK = a(112, 24); aKP = [a(136 + 4 * i, 4) for i in range(4)]; aVP = [a(152 + 4 * i, 4) for i in range(2)]
aHACC = [a(160, 4), a(164, 4)]; aXH = [a(168, 4), a(172, 4)]
aW16 = [[a(176, 4), a(180, 4)], [a(184, 4), a(188, 4)]]
aPARK = 192
aDUM0 = a(199); vDUM1 = v(37)

NEG = 0xf149f2ca


class LDSMap:
    def __init__(self):
        self.own = {c: ("x", c // 4) for c in range(32)}
        for c in range(32, 40): self.own[c] = ("T",)
        self.last_use = {}
        self.visible = set()
        self.bar_m = -1
        self.xread = set()
    def alloc(self, obj, chunks):
        for c in chunks:
            o = self.own[c]
            if o[0] == "x": assert o[1] in self.xread, (obj, c, o)
            else: assert self.last_use[o] <= self.bar_m, (obj, c, o, self.last_use[o], self.bar_m)
            self.own[c] = obj
    def check_read(self, obj, chunks):
        assert obj in self.visible, ("not visible", obj)
        for c in chunks: assert self.own[c] == obj, (obj, c, self.own[c])


SHIFT = [48, 8, 16]


def step_info(n):
    if n < 32: return 16 + 12 * (n >> 3) + (n & 7), 0, 0
    if n < 40: return n - 32, 1, 1
    if n < 56: return 112 + n - 40, 2, 3
    hi = n >= 64; k = (n - 56) & 7
    return 24 + 12 * (k >> 1) + (k & 1) + 2 * hi, 0, (4 if hi else 2)


class Gen:
    def __init__(self):
        self.E = Emitter()
        self.E.trace = bool(os.environ.get("TRACE"))
        self.nlabel = 0
        self.nstamp = 0

    def lab(self, base):
        self.nlabel += 1
        return f"L_{base}_{self.nlabel}"

    STS = {"a": ["t0", "issued", "x0", "xdone", "s1", "s2", "p2", "lastm", "end"],
           "b": ["t0", "g0a", "g0b", "p2", "g1a", "g1b", "g2a", "g2b", "end"],
           "e": ["t0", "karg", "issued", "rest", "pads", "x0", "x1", "x3", "end"],
           "f": ["t0", "x4", "x5", "x6", "x7", "xdone", "s1", "b1", "end"],
           "g": ["t0", "s1", "b1a", "b1", "b2a", "b2", "b3a", "b3", "end"],
           "h": ["t0", "b3", "b4", "b5", "b6", "b7", "b8", "s2", "end"],
           "j": ["t0", "g2b", "n48", "n55", "n56", "n60", "n64", "n71", "end"],
           "k": ["t0", "g0b", "n0", "n4", "n8", "n16", "n24", "n31", "end"],
           "l": ["t0", "g1b", "g3b", "n31", "n32", "n39", "n40", "n47", "end"],
           "m": ["t0", "n0", "n8", "n16", "n24", "n32", "n40", "n56", "end"],
           "n": ["t0", "c0a", "c0", "c1a", "c1", "c2a", "c2", "c3a", "c3"],
           "o": ["t0", "c4a", "c4", "c5a", "c5", "c6a", "c6", "c7a", "c7"],
           "p": ["t0", "g0a", "g0b", "g1a", "g1b", "g3a", "g3b", "g2a", "g2b"],
           "q": ["t0", "s2", "f0a", "f0b", "g0a", "g0b", "f2a", "f2b", "end"],
           "r": ["t0", "s1", "b1", "b2", "b3", "b4", "b5", "b6", "b7"],
           "s": ["t0", "b7", "b8", "b9", "b10", "b11", "c0", "c1", "c2"],
           "t": ["n16", "n17", "n18", "n19", "n20", "n21", "n22", "n23", "n24"],
           "u": ["n40", "n41", "n42", "n43", "n44", "n45", "n46", "n47", "n48"],
           "v": ["n60", "n61", "n62", "n63", "n64", "n65", "n66", "n67", "n68"],
           "w": ["t00", "t0", "karg", "issued", "rest", "pads", "x0", "xdone", "end"],
           "x": ["t0", "issued", "pads", "x0", "x2", "x4", "x7", "bx", "s1"],
           "y": ["t0", "x4", "x5", "x6", "x7", "xdone", "bx", "s1", "b1"],
           "z": ["t0", "p2", "f2b", "f4b", "g2a", "g2b", "g4a", "g4b", "end"],
           "0": ["t0", "end"],
           "AMP": ["t0", "-1", "-2", "-3", "-4", "-5", "-6", "-7", "end"],
           "i": ["t0", "s2", "g0a", "g0b", "p2", "c1", "g1a", "g1b", "end"],
           "d": ["t0", "p2", "g1b", "g3a", "g3b", "g2a", "g2b", "lastm", "end"],
           "c": ["t0", "p2", "c1", "c3", "c5", "c7", "lastm", "sbar", "end"]}

    def stamp(self, name):
        if C.stset.startswith("B"):
            g = int(C.stset[1:]); self.STS[C.stset] = [f"b{g}"] + [f"b{g + k}{x}" for k in range(1, 5) for x in ("a", "")]
        if C.stset.startswith("N"): self.STS[C.stset] = [f"n{int(C.stset[1:]) + k}" for k in range(9)]
        if C.stamps and name in self.STS[C.stset]:
            k = self.STS[C.stset].index(name)
            self.E.line(f"{'s_memrealtime' if C.rt else 's_memtime'} s[{STAMP0 + 2 * k}:{STAMP0 + 2 * k + 1}]")

    def setup_first(self, typ):
        o = []; e = o.append
        lane = self.lane; vx = self.vx; t0, t1, t2 = v(201), v(202), v(203)
        e(valu("v_and_b32", lane, 63, v(0)))
        e(valu("v_lshrrev_b32", t0, 6, v(0)))
        e(salu("s_and_b32", sXCD, sWG, 7))
        e(rfl(sW, t0))
        e(salu("s_and_b32", sRB, sXCD, 1)); e(salu("s_lshl_b32", sRB, sRB, 3))
        e(salu("s_and_b32", sT0, sJ, 7)); e(salu("s_add_u32", sRB, sRB, sT0))
        e(salu("s_and_b32", sIDX, sXCD, 6)); e(salu("s_lshr_b32", sT0, sJ, 4)); e(salu("s_add_u32", sIDX, sIDX, sT0))
        e(valu("v_and_b32", t0, 7, lane)); e(valu("v_lshrrev_b32", t1, 4, lane)); e(valu("v_xor_b32", t0, t0, t1))
        e(valu("v_lshlrev_b32", t0, 4, t0))
        e(valu("v_lshrrev_b32", t1, 3, lane)); e(valu("v_lshlrev_b32", t1, 10, t1))
        e(valu("v_or_b32", vx[0], t0, t1)); e(valu("v_xor_b32", t2, 64, vx[0]))
        e(valu("v_add_u32", vx[1], 7168, t2)); e(valu("v_add_u32", vx[2], 2 * 7168, vx[0])); e(valu("v_add_u32", vx[3], 3 * 7168, t2))
        e(salu("s_lshl_b32", sM0B, sW, 15))
        e(salu("s_lshl_b32", sT0, sRB, 17)); e(salu("s_add_u32", sXo, sT0, sM0B))
        e(salu("s_lshr_b32", sT1, sJ, 3)); e(salu("s_add_u32", sT1, sT1, sJ)); e(salu("s_and_b32", sROT, sT1, (1 if C.rot_half else 3) if C.rot else 0))
        if C.rot_half: e(salu("s_lshl_b32", sROT, sROT, 1))
        e(salu("s_lshl_b32", sXk, sROT, 8))
        e(smov(SWS[2], WS_SIZE)); e(smov(SWS[3], 0x20000))
        if typ == "A":
            e(smov(SQKV[2], 512 * 3072)); e(smov(SQKV[3], 0x20000))
            hs = self.hs
            e(salu("s_sub_u32", sT1, sT0, 16 * 1024))
            e(valu("v_add_u32", hs[0], sT1, vx[0])); e(salu("s_add_u32", sT1, sT1, 1024)); e(valu("v_add_u32", hs[1], sT1, vx[1]))
            e(salu("s_add_u32", sHo, sW, sROT)); e(salu("s_and_b32", sHo, sHo, 3)); e(salu("s_lshl_b32", sHo, sHo, 8))
            e(salu("s_lshr_b32", sS2b, sM0B, 3))
            e(salu("s_lshl_b32", sT2, sIDX, 1))
            e(salu("s_lshl_b32", sS1, sIDX, 7))
        else:
            e(salu("s_mul_i32", sT2, sIDX, 12, scc_w=False)); e(salu("s_add_u32", sT2, sT2, 24))
            e(salu("s_lshl_b32", sS1, sT2, 5)); e(salu("s_sub_u32", sS1, sS1, 256))
            for d, sh in ((SWU, 1024), (SWG2, 1920), (SWU2, 2944)):
                e(smov(d[2], 512 * 3584 + sh)); e(smov(d[3], 0x20000))
        st1 = 3072 if typ == "A" else 3584
        e(salu("s_mul_i32", sT0, sROT, 128 * st1, scc_w=False)); e(salu("s_add_u32", sS1, sS1, sT0))
        if C.touch_w0:
            e(valu("v_and_b32", t0, C.touch_w0 - 1, lane)); e(valu("v_mul_u32_u24", t0, st1, t0))
            if typ == "A":
                e(valu("v_lshrrev_b32", t1, 4, lane)); e(valu("v_min_u32", t1, 2, t1)); e(valu("v_lshlrev_b32", t1, 10, t1))
            else:
                e(valu("v_bfe_u32", t1, lane, 4, 1)); e(valu("v_lshlrev_b32", t1, 7, t1))
            e(valu("v_add_u32", vTW, t0, t1))
            e(salu("s_and_b32", sT0, sJ, 4)); e(salu("s_and_b32", sT1, sXCD, 1)); e(salu("s_lshl_b32", sT1, sT1, 3))
            e(salu("s_add_u32", sT0, sT0, sT1)); e(salu("s_add_u32", sT0, sT0, sW))
            e(salu("s_mul_i32", sT0, sT0, C.touch_w0 * st1, scc_w=False)); e(salu("s_add_u32", sT5, sT0, sS1))
        return o

    def touch(self, voff, srd_, soff, imm=0, dst=None, fl=""):
        i = vload(dst or aDUM0, voff, srd_, soff, imm, fl=fl); i.w = set(); return i

    def consts(self, typ):
        o = []; e = o.append
        lane = self.lane
        t = [v(208 + i) for i in range(8)]
        li, g4, r2, hh, ub = v(190), v(191), v(192), v(193), v(194)
        e(valu("v_and_b32", li, 15, lane)); e(valu("v_lshrrev_b32", g4, 4, lane)); e(valu("v_lshrrev_b32", hh, 5, lane))
        e(valu("v_and_b32", ub, 1, g4)); e(valu("v_lshrrev_b32", r2, 2, li))
        e(valu("v_lshlrev_b32", vL16, 4, lane))
        e(smov(sHI, 0xffff0000)); e(smov(sONE, 0x3f803f80)); e(smov(sC512, 0x3b000000)); e(smov(sCSC, 0x3eb8aa3b))
        xa = self.xa
        e(valu("v_and_b32", t[0], 31, lane)); e(valu("v_lshlrev_b32", t[1], 7, t[0]))
        e(valu("v_bfe_u32", t[0], lane, 1, 3)); e(valu("v_xor_b32", t[0], t[0], hh)); e(valu("v_lshlrev_b32", t[0], 4, t[0]))
        e(valu("v_add_u32", t[1], sM0B, t[1]))
        for q in range(4):
            e(valu("v_xor_b32", t[2], 32 * q, t[0])); e(valu("v_add_u32", xa[q], t[1], t[2]))
        for r_ in self.acc: e(valu("v_mov_b32", r_, 0))
        if typ == "A":
            ha = self.ha
            e(valu("v_lshlrev_b32", t[1], 7, li)); e(valu("v_lshrrev_b32", t[0], 1, li)); e(valu("v_xor_b32", t[0], t[0], g4))
            e(valu("v_lshlrev_b32", t[0], 4, t[0]))
            e(salu("s_add_u32", sT0, sS2b, TB)); e(valu("v_add_u32", t[1], sT0, t[1]))
            e(valu("v_add_u32", ha[0], t[1], t[0])); e(valu("v_xor_b32", t[0], 64, t[0])); e(valu("v_add_u32", ha[1], t[1], t[0]))
            for r_ in self.hacc: e(valu("v_mov_b32", r_, 0))
            e(valu("v_add_u32", vHX, TB + 16384, vL16))
            e(valu("v_lshlrev_b32", ha[2], 3, lane)); e(valu("v_add_u32", ha[2], TB, ha[2])); e(valu("v_add_u32", ha[3], sS2b, ha[2]))
            e(valu("v_add_u32", ha[4], sS2b, vHX))
        e(salu("s_and_b32", sT0, sW, 1)); e(salu("s_lshl_b32", sT0, sT0, 4))
        e(salu("s_lshr_b32", sKH, sW, 1)); e(salu("s_lshl_b32", sT1, sKH, 3)); e(salu("s_add_u32", sT1, sT1, sT0))
        e(valu("v_lshrrev_b32", t[0], 3, lane)); e(valu("v_and_b32", t[1], 2, t[0])); e(valu("v_lshlrev_b32", t[1], 5, t[1]))
        e(valu("v_and_b32", t[2], 7, lane)); e(valu("v_lshlrev_b32", t[2], 4, t[2])); e(valu("v_xor_b32", t[2], t[2], t[1]))
        e(valu("v_add_u32", t[3], sT1, t[0]))
        if typ == "A":
            e(valu("v_mul_u32_u24", t[4], 3072, t[3])); e(valu("v_add_u32", vH, t[4], t[2]))
            e(salu("s_lshl_b32", sT0, sT0, 1))
            e(valu("v_lshrrev_b32", t[4], 2, lane)); e(valu("v_add_u32", t[4], sT0, t[4])); e(valu("v_mul_u32_u24", t[4], 3584, t[4]))
            e(valu("v_and_b32", t[5], 3, lane)); e(valu("v_lshlrev_b32", t[5], 4, t[5]))
            e(salu("s_lshl_b32", sT1, sKH, 5)); e(valu("v_xor_b32", t[5], sT1, t[5]))
            e(valu("v_add_u32", vG, t[4], t[5]))
            e(salu("s_lshl_b32", sS2, sT2, 5))
            e(smov(SWH[2], 512 * 3584)); e(smov(SWH[3], 0x20000))
        else:
            e(valu("v_mul_u32_u24", t[4], 3584, t[3])); e(valu("v_add_u32", vG, t[4], t[2]))
            e(valu("v_xor_b32", t[5], 32, t[2])); e(valu("v_add_u32", vU, t[4], t[5]))
            e(salu("s_mul_i32", sT0, sT0, 3584, scc_w=False))
            e(salu("s_lshl_b32", sS2, sT2, 5)); e(salu("s_add_u32", sS2, sS2, sT0))
        e(salu("s_mul_i32", sT0, sROT, 128 * 3584, scc_w=False)); e(salu("s_add_u32", sS2, sS2, sT0))
        e(valu("v_and_b32", vP4, 3, lane)); e(valu("v_lshlrev_b32", vP4, 2, vP4))
        e(valu("v_lshl_add_u32", vB2, t[0], 10, t[2]))
        if C.warm_all:
            ww = self.ww
            e(valu("v_min_u32", ww[0], 13, lane)); e(valu("v_lshlrev_b32", ww[0], 7, ww[0])); e(valu("v_lshlrev_b32", ww[1], 5, vP4))
            e(valu("v_and_b32", ww[2], 15 if typ == "A" else 7, lane)); e(valu("v_mul_u32_u24", ww[2], 3584, ww[2]))
        e(valu("v_lshlrev_b32", t[0], 7, r2))
        e(valu("v_and_b32", t[1], 3, lane)); e(valu("v_lshlrev_b32", t[1], 3, t[1])); e(valu("v_add_u32", t[0], t[0], t[1]))
        e(valu("v_and_b32", t[2], 2, r2))
        e(valu("v_or_b32", t[3], t[2], ub)); e(valu("v_lshlrev_b32", t[3], 5, t[3]))
        e(valu("v_lshlrev_b32", t[4], 16, hh)); e(valu("v_add_u32", t[4], t[4], t[0]))
        if typ == "A":
            for j in range(2):
                e(valu("v_xor_b32", t[6], 64 * j, t[3])); e(valu("v_add_u32", vTR[4 + j], t[6], t[4]))
            e(valu("v_lshlrev_b32", t[6], 3, hh)); e(valu("v_add_u32", t[6], t[6], r2)); e(valu("v_lshlrev_b32", t[6], 6, t[6]))
            e(valu("v_lshlrev_b32", t[7], 16, ub)); e(valu("v_add3_u32", t[6], t[6], t[7], t[1]))
            e(valu("v_lshlrev_b32", t[7], 5, ub)); e(valu("v_add_u32", vTR[0], t[6], t[7]))
            e(valu("v_xor_b32", t[7], 32, t[7])); e(valu("v_add_u32", vTR[1], t[6], t[7]))
        else:
            e(valu("v_lshlrev_b32", t[5], 10, ub)); e(valu("v_add_u32", t[5], t[5], t[4]))
            for tt in range(4):
                e(valu("v_xor_b32", t[6], 32 * tt, t[3])); e(valu("v_add_u32", vTR[tt], t[6], t[5]))
        def park(reg, s0_, s1_):
            names = [str(x) for x in self.parked]
            if str(reg) in names: e(valu("v_add_u32", t[7], s0_, s1_)); e(accw(a(aPARK + names.index(str(reg))), t[7]))
            else: e(valu("v_add_u32", reg, s0_, s1_))
        e(valu("v_lshlrev_b32", t[4], 9, hh)); e(valu("v_add_u32", t[4], t[4], t[0]))
        e(salu("s_lshl_b32", sT0, sKH, 6)); e(valu("v_xor_b32", t[6], sT0, t[3]))
        e(valu("v_add_u32", t[5], t[6], t[4])); e(valu("v_xor_b32", t[6], 64, t[5]))
        e(salu("s_lshl_b32", sT0, sKH, 16)); e(salu("s_lshl_b32", sT1, sKH, 11)); e(salu("s_add_u32", sT1, sT1, TB))
        for j in range(2):
            park(self.tr2[j], sT0, t[5 + j]); park(self.tr2t[j], sT1, t[5 + j])
        if typ == "A":
            e(valu("v_lshlrev_b32", t[4], 16, ub)); e(valu("v_lshlrev_b32", t[5], 15, hh)); e(valu("v_add3_u32", t[4], t[4], t[5], t[0]))
            e(valu("v_xor_b32", t[6], sW, t[2])); e(valu("v_lshlrev_b32", t[6], 5, t[6])); e(valu("v_add_u32", vW16, t[4], t[6]))
            e(salu("s_mul_i32", sT0, sW, 6144, scc_w=False)); e(salu("s_add_u32", sT0, sT0, TB)); e(valu("v_add_u32", vEX, sT0, vL16))
            e(valu("v_lshlrev_b32", t[4], 5, ub)); e(valu("v_add_u32", t[4], t[4], li)); e(valu("v_lshlrev_b32", t[4], 4, t[4]))
            e(valu("v_lshlrev_b32", t[5], 3, hh)); e(smov(sT0, TB)); e(valu("v_add3_u32", vHW, t[4], t[5], sT0))
            q = t[0]; bb = v(t[2].lo, 2)
            e(valu("v_and_b32", q, 31, lane)); e(valu("v_add_u32", t[1], 18, q))
            e(valu("v_mov_b32", t[4], 0x5555)); e(valu("v_mov_b32", t[5], 0))
            e(valu("v_lshlrev_b64", bb, t[1], v(t[4].lo, 2)))
            e(salu("s_or_b32", sT1, sRB, sW)); e(salu("s_cselect_b32", sT1, -1, 0, scc_w=False, scc_r=True))
            e(valu("v_and_b32", bb[0], sT1, bb[0]))
            e(valu("v_lshlrev_b32", t[1], 2, hh))
            e(valu("v_lshrrev_b32", bb[0], t[1], bb[0])); e(valu("v_lshrrev_b32", bb[1], t[1], bb[1]))
            e(valu("v_not_b32", bb[0], bb[0])); e(valu("v_not_b32", bb[1], bb[1]))
            e(accw(a(196), bb[0])); e(accw(a(197), bb[1]))
            e(valu("v_and_b32", t[2], 1, q)); e(valu("v_lshlrev_b32", t[2], 4, t[2]))
            e(valu("v_mov_b32", t[3], 0xffff)); e(valu("v_lshlrev_b32", vPM, t[2], t[3]))
            e(valu("v_bfe_i32", t[2], q, 4, 1)); e(valu("v_and_b32", vMHC, t[2], vPM)); e(valu("v_xor_b32", vMHP, vMHC, vPM))
        return o

    def scalars(self, typ):
        o = []; e = o.append
        e(salu("s_and_b32", sRT, sJ, 3)); e(salu("s_lshr_b32", sCT, sJ, 2)); e(salu("s_lshl_b32", sCT, sCT, 7))
        e(salu("s_lshl_b32", sT0, sXCD, 3)); e(salu("s_lshl_b32", sT1, sRT, 1)); e(salu("s_add_u32", sT0, sT0, sT1))
        e(salu("s_and_b32", sT1, sW, 1)); e(salu("s_add_u32", sT0, sT0, sT1))
        e(salu("s_lshl_b32", sFLR, sT0, 1)); e(salu("s_add_u32", sFLR, sFLR, sKH))
        e(salu("s_lshl_b32", sFLR, sFLR, 10)); e(salu("s_add_u32", sFLR, sFLR, WS_FLAG))
        e(salu("s_mul_i32", sTAG, sT0, 144 * 1024, scc_w=False))
        e(salu("s_lshl_b32", sOut, sT0, 15)); e(salu("s_and_b32", sOut, sOut, 0xffff7fff)); e(salu("s_add_u32", sOut, sOut, sCT))
        e(salu("s_lshr_b32", sT0, sM0B, 1)); e(salu("s_add_u32", sOut, sOut, sT0))
        e(salu("s_lshl_b32", sT1, sT1, 13)); e(salu("s_add_u32", sT1, sT1, sCT))
        for c_ in range(3):
            e(salu("s_mul_i32", sT0, sKH, SHIFT[c_] * 1024, scc_w=False)); e(salu("s_add_u32", sA2c[c_], sTAG, sT0))
            e(salu("s_lshl_b32", sT0, sT0, 4)); e(salu("s_add_u32", sB2c[c_], sT0, sT1))
        e(salu("s_lshl_b32", sM0T, sW, 10)); e(salu("s_add_u32", sM0T, sM0T, TB))
        e(salu("s_lshl_b32", sT0, sRB, 2)); e(salu("s_add_u32", sT0, sT0, sW))
        e(salu("s_mul_i32", sT1, sT0, 144, scc_w=False))
        e(salu("s_add_u32", sSt2, sT1, sT2)); e(salu("s_lshl_b32", sSt2, sSt2, 10))
        if typ == "A":
            e(salu("s_lshl_b32", sStF, sT2, 10)); e(salu("s_add_u32", sStF, sStF, sSt2)); e(salu("s_add_u32", sStF, sStF, 112 * 1024))
        else:
            e(salu("s_sub_u32", sStF, sSt2, 8192)); e(salu("s_sub_u32", sStH, sSt2, 4096))
        e(salu("s_lshl_b32", sT0, sT0, 1)); e(salu("s_lshr_b32", sT1, sIDX, 2)); e(salu("s_add_u32", sT0, sT0, sT1))
        e(salu("s_lshl_b32", sT0, sT0, 10))
        e(salu("s_and_b32", sT1, sIDX, 3)); e(salu("s_lshl_b32", sT1, sT1, 2))
        e(salu("s_add_u32", sT0, sT0, sT1)); e(salu("s_add_u32", sFLW, sT0, WS_FLAG))
        e(smov(SOUT[2], 0x200000)); e(smov(SOUT[3], 0x20000))
        return o

    def warm_ops(self, isA):
        ww = self.ww; nr = 16 if isA else 8
        o = [salu("s_and_b32", sT5, sW, 1 if isA else 3), salu("s_mul_i32", sT5, sT5, nr, scc_w=False),
             salu("s_lshl_b32", sXk, sRB, 5), salu("s_add_u32", sT5, sT5, sXk), salu("s_mul_i32", sT5, sT5, 3584, scc_w=False),
             salu("s_lshl_b32", sXk, sT2, 5), salu("s_add_u32", sT5, sT5, sXk)]
        o += [self.touch(ww[2], SWH, sT5)] if isA else [self.touch(ww[2], SWG_, sT5), self.touch(ww[2], SWU, sT5, 1024)]
        fl = [self.touch(ww[0], SWS, sFLR, fl="sc1")]
        if not C.warm_byA:
            o1 = [salu("s_lshl_b32", sXk, sWG, 2), salu("s_add_u32", sXk, sXk, sW), salu("s_mul_i32", sT5, sXk, 14 * 128, scc_w=False),
                  self.touch(ww[0], SWD, sT5)]
            o2 = [salu("s_lshl_b32", sT5, sXk, 9), self.touch(ww[1], SWO, sT5)]
            return [o1, o2 + fl + o]
        if not isA: return [[], fl + o]
        o1 = [salu("s_lshr_b32", sXk, sWG, 7), salu("s_lshl_b32", sXk, sXk, 6), salu("s_and_b32", sT5, sWG, 63), salu("s_add_u32", sXk, sXk, sT5),
              salu("s_lshl_b32", sXk, sXk, 2), salu("s_add_u32", sXk, sXk, sW), salu("s_mul_i32", sT5, sXk, 28 * 128, scc_w=False),
              self.touch(ww[0], SWD, sT5), self.touch(ww[0], SWD, sT5, 14 * 128)]
        o2 = [salu("s_lshl_b32", sT5, sXk, 10), self.touch(ww[1], SWO, sT5), self.touch(ww[1], SWO, sT5, 512)]
        return [o1, o2 + fl + o]

    def b2_soff(self, n, dst):
        ks, cls, st = step_info(n)
        return salu("s_add_u32", dst, sB2c[cls], (ks - 112 if cls == 2 else ks) * 16384)

    def code_touch(self):
        E = self.E
        if not C.touch_code: return
        t = v(201)
        E.line(f"s_getpc_b64 {sPC}")
        pcl = self.lab("pc"); E.label(pcl)
        E.emit(salu("s_and_b32", sT0, sJ, 1)); E.emit(salu("s_lshl_b32", sT0, sT0, 15))
        E.emit(valu("v_lshlrev_b32", t, 7, v(0))); E.emit(valu("v_add_u32", t, sT0, t))
        E.line(f"s_mov_b32 {sT0}, L_code_end-{pcl}-4")
        E.emit(valu("v_min_u32", t, sT0, t))
        E.emit(I(f"global_load_dword {aDUM0}, {t}, {sPC}", "vml", t.ids(), ()))

    def finish_stats(self, sm, sq, rinv, nb, t0, t1):
        e = self.E.emit
        e(valu("v_mul_f32", sm, sC512, sm))
        e(valu("v_mul_f32", t0, sm, sm))
        e(I(f"v_fma_f32 {sq}, {sq}, {sC512}, -{t0}", "valu", sq.ids() | t0.ids() | sC512.ids(), sq.ids()))
        e(valu("v_max_f32", sq, 0, sq))
        e(valu("v_cvt_pk_bf16_f32", t0, sm, sq))
        e(valu("v_and_b32", t1, sHI, t0))
        e(valu("v_add_f32", t1, 0x3727c5ac, t1))
        e(valu("v_cvt_pk_bf16_f32", t1, t1, t1)); e(valu("v_and_b32", t1, sHI, t1))
        e(valu("v_sqrt_f32", t1, t1))
        e(valu("v_cvt_pk_bf16_f32", t1, t1, t1)); e(valu("v_and_b32", t1, sHI, t1))
        e(valu("v_rcp_f32", rinv, t1))
        e(valu("v_lshlrev_b32", t0, 16, t0))
        e(I(f"v_mul_f32 {nb}, -{t0}, {rinv}", "valu", t0.ids() | rinv.ids(), nb.ids()))

    def norm_ops(self, reg, rinv, nb, k0=0):
        ops = []
        for d in range(4):
            lo = NT[(2 * (k0 + d)) % 8]; hi = NT[(2 * (k0 + d) + 1) % 8]; x = reg[d]
            ops += [valu("v_lshlrev_b32", lo, 16, x), valu("v_and_b32", hi, sHI, x),
                    valu("v_fma_f32", lo, lo, rinv, nb), valu("v_fma_f32", hi, hi, rinv, nb),
                    valu("v_cvt_pk_bf16_f32", x, lo, hi)]
        return ops

    def dots(self, reg, acc):
        ops = []
        for d in range(reg.n):
            ops.append(valu("v_dot2_f32_bf16", acc[d & 1], reg[d], sONE, acc[d & 1]))
            ops.append(valu("v_dot2_f32_bf16", acc[2 + (d & 1)], reg[d], reg[d], acc[2 + (d & 1)]))
        return ops

    def wrap(self, reg, q, span):
        return glue([scmp("s_cmp_eq_u32", sROT, 4 - q), salu("s_cselect_b32", sS2b, span, 0, scc_w=False, scc_r=True),
                     salu("s_sub_u32", reg, reg, sS2b)])

    def chunks(self, obj):
        k, j = obj
        if self.typ == "A":
            if k == "s1": return list(range(3 * (j % 7), 3 * (j % 7) + 3))
            return [6 + 2 * j, 7 + 2 * j]
        jj = j if k == "s1" else 16 + j
        return list(range(4 * (jj % 6), 4 * (jj % 6) + 4))

    def slab_dma(self, obj):
        L = self.L; k, j = obj; ch = self.chunks(obj); fl = C.w_fl
        def f(E): L.alloc(obj, ch)
        ops = [f, salu("s_add_u32", "m0", sM0B, 1024 * ch[0])]
        if k == "s1":
            st = 3072 if self.typ == "A" else 3584
            if self.typ == "A": ops += [dma(vH, SQKV, sS1, 1024 * u, obj, fl) for u in range(3)]
            else: ops += [dma(vG, SWG_, sS1, 0, obj, fl), dma(vU, SWU, sS1, 1024, obj, fl), dma(vG, SWG2, sS1, 2048, obj, fl), dma(vU, SWU2, sS1, 3072, obj, fl)]
            if j < 15: ops.append(salu("s_add_u32", sS1, sS1, 32 * st))
            if j % 4 == 3 and j < 15 and C.rot: ops.append(self.wrap(sS1, (j + 1) // 4, 512 * st))
        else:
            if self.typ == "A":
                ops += [salu("s_add_u32", sS2b, sS2, 16 * 3584 - 1024), dma(vG, SWH, sS2, 0, obj, fl), dma(vG, SWH, sS2b, 1024, obj, fl)]
            else:
                ops += [salu("s_add_u32", sS2b, sS2, 16 * 3584 - 2048), dma(vG, SWG_, sS2, 0, obj, fl), dma(vU, SWU, sS2, 1024, obj, fl),
                        dma(vG, SWG_, sS2b, 2048, obj, fl), dma(vU, SWU, sS2b, 3072, obj, fl)]
            if j < 7: ops.append(salu("s_add_u32", sS2, sS2, 64 * 3584))
            if j % 2 == 1 and j < 7 and C.rot: ops.append(self.wrap(sS2, (j + 1) // 2, 512 * 3584))
        return ops

    def b2_chunk(self, n):
        R_ = lambda lo, hi: list(range(lo, hi))
        if self.typ == "A":
            tab = R_(22, 32) + R_(22, 32) + R_(0, 12) + R_(32, 40) + R_(12, 22) + R_(22, 32) + R_(0, 12)
        else:
            tab = R_(24, 40) + R_(24, 40) + R_(0, 24) + R_(24, 32) + R_(0, 8)
        return tab[n]

    def b2_dma(self, n):
        L = self.L
        ks, cls, _ = step_info(n)
        ch = self.b2_chunk(n)
        def f(E): L.alloc(("b2", n), [ch])
        return [f, salu("s_add_u32", "m0", sM0B, 1024 * ch) if ch < 32 else salu("s_add_u32", "m0", sM0T, 4096 * (ch - 32)),
                self.b2_soff(n, sB2s),
                dma(vB2, SWO if cls == 2 else SWD, sB2s, 0, ("b2", n), C.b2_fl)]

    def bar(self, cover, m_done, lds_all=False, lds_tags=()):
        L = self.L
        def f(E):
            E.wait_tags(lds=list(lds_tags) + list(cover), vm=cover)
            if lds_all: E.wait_all_lds()
            if not (C.dbg_bar and cover and cover[0][0] == "b2"): E.barrier()
            L.visible |= set(cover); L.bar_m = m_done
        return f

    def acc2(self, t): return ACC2(t) if self.typ == "A" else ACC1(t)

    def acc1(self, t): return ACC1(t) if t < 6 else a(112 + 16 * (t - 6), 16)

    def seq(self, typ):
        out = []
        order = [2, 3, 4, 5, 0, 1] if typ == "A" else list(range(8))
        s1 = [(ks, t) for ks in range(28) for t in order] + [(ks, t) for t in order for ks in range(28, 32)]
        for ks, t in s1:
            obj = ("s1", ks // 2); base = (ks & 1) * 32768 + self.chunks(obj)[0] * 1024
            if True:
                if typ == "A":
                    out.append(dict(acc=ACC1(t), x=X(ks), sw=(t >= 4), obj=obj, addr=vTR[4 + (t & 1)],
                                    imm=base + (t >> 1) * 1024, st=512, first=(ks == 0)))
                else:
                    out.append(dict(acc=self.acc1(t), x=X(ks), sw=False, obj=obj, addr=vTR[t & 3], imm=base + (t >> 2) * 2048, st=512, first=(ks == 0)))
        nt = self.nt2
        k0 = self.k0
        s2 = [(ks, t) for ks in range(k0) for t in range(nt)] + [(ks, t) for t in range(nt) for ks in range(k0, 32)]
        for ks, t in s2:
            obj = ("s2", ks // 4); k = ks & 3
            out.append(dict(acc=self.acc2(t), x=X(ks), sw=False, obj=obj, addr=vTR[t],
                            imm=(k >> 1) * 32768 + self.chunks(obj)[0] * 1024 + (k & 1) * (1024 if typ == "A" else 2048),
                            st=256 if typ == "A" else 512, first=(ks == 0)))
        for n in range(72):
            iso = step_info(n)[1] == 2
            for j in ((1, 0) if n in (55, 71) else (0, 1)):
                ch = self.b2_chunk(n)
                out.append(dict(acc=(ACCS if iso else ACCD)[j], x=n, sw=False, obj=("b2", n),
                                addr=self.tr2[j] if ch < 32 else self.tr2t[j], j=j, imm=ch * 1024 if ch < 32 else (ch - 32) * 4096,
                                st=32768 if ch < 32 else 1024, first=(n in (0, 40))))
        for m, o in enumerate(out): self.L.last_use[o["obj"]] = m
        return out

    def wreads(self, m):
        o = self.SEQ[m]; L = self.L
        if o["obj"][0] == "b2" and o["obj"][1] < self.nF: return []
        def f(E): assert o["obj"] in L.visible, ("read of invisible", m, o["obj"])
        return [f, ds_tr(WF(m).sub(0, 2), o["addr"], o["imm"]), ds_tr(WF(m).sub(2, 2), o["addr"], o["imm"] + o["st"])]

    def main(self, m):
        o = self.SEQ[m]
        if isinstance(o["x"], int):
            def mk(peek):
                if peek and o["x"] not in self.a2slot: return None
                w = self.frag[(o["x"], o["j"])]["r"] if o["x"] < self.nF else WF(m)
                return mfma(o["acc"], w, self.a2slot[o["x"]]["r"], 0 if o["first"] else o["acc"])
            mn = dict(pre=[], m=mk, fix=[])
            if o["x"] < self.nF: mn["fix"].append(lambda E: self.pool.give(E, self.frag[(o["x"], o["j"])]))
            if m & 1: mn["fix"].append(lambda E: self.pool.give(E, self.a2slot[o["x"]]))
        else:
            A_, B_ = (o["x"], WF(m)) if o["sw"] else (WF(m), o["x"])
            mn = dict(pre=[], m=mfma(o["acc"], A_, B_, 0 if o["first"] else o["acc"]), fix=[])
        if m + C.D < len(self.SEQ): mn["fix"] += self.wreads(m + C.D)
        return mn

    def spin_check_tag(self):
        def f(E):
            ok = self.lab("tagok"); sp = self.lab("tagspin")
            E.emit(rfl(sTAG, vTAG))
            E.emit(scmp("s_cmp_eq_u32", sTAG, 0))
            E.line(f"s_cbranch_scc1 {sp}")
            E.label(ok)
            self.cold += [f"{sp}:", f"    s_mov_b32 {sSPIN}, 0", f"{sp}_l:",
                          f"    buffer_load_dword {vTAG}, off, {SDBG}, 0 sc1", f"    s_add_u32 {sSPIN}, {sSPIN}, 1",
                          "    s_waitcnt vmcnt(0)", f"    v_readfirstlane_b32 {sTAG}, {vTAG}",
                          f"    s_cmp_ge_u32 {sSPIN}, {C.spin_max}", f"    s_cbranch_scc1 {ok}",
                          f"    s_cmp_eq_u32 {sTAG}, 0", f"    s_cbranch_scc1 {sp}_l", f"    s_branch {ok}"]
        return f

    def poll_load(self, stage):
        return vload(self.vpl[stage], vP4, SWS, sFLR, 128 * stage, fl="sc1")

    def gate(self, stage):
        def f(E):
            ok = self.lab("gateok"); sp = self.lab("gatespin")
            self.stamp(f"g{stage}a")
            E.emit(vcmp("v_cmp_ne_u32", "vcc", sTAG, self.vpl[stage]))
            E.line(f"s_cbranch_vccnz {sp}")
            E.label(ok)
            ld = lambda r: f"    buffer_load_dword {r}, {vP4}, {SWS}, {sFLR} offen offset:{128 * stage} sc1"
            regs = [self.vpl[stage], vSP[0], vSP[1]][:C.npoll]; k = len(regs)
            self.cold += [f"{sp}:", f"    s_mov_b32 {sSPIN}, 0"] + [x for r in regs[:-1] for x in (ld(r), "    s_nop 15", "    s_nop 15")] + [f"{sp}_l:"]
            for q_ in range(k):
                self.cold += [ld(regs[(q_ + k - 1) % k]), f"    s_waitcnt vmcnt({k - 1})", f"    v_cmp_ne_u32 vcc, {sTAG}, {regs[q_]}", f"    s_cbranch_vccz {ok}"]
            self.cold += [f"    s_add_u32 {sSPIN}, {sSPIN}, 1", f"    s_cmp_ge_u32 {sSPIN}, {C.spin_max}", f"    s_cbranch_scc0 {sp}_l", f"    s_branch {ok}"]
            self.stamp(f"g{stage}b")
        return f

    def flag_store(self, stage, tags):
        def f(E):
            self.stamp(f"f{stage}a")
            E.wait_tags(vm=tags)
            self.stamp(f"f{stage}b")
            E.emit(vstore(vTAG, None, SWS, sFLW, 128 * stage, fl="sc1"))
        return f

    def a2_load(self, n):
        ks, cls, _ = step_info(n)
        o = []
        if self.a2base is None or self.a2base[0] != cls or not (0 <= ks - self.a2base[1] < 4):
            self.a2base = (cls, ks)
            o.append(salu("s_add_u32", sA2s, sA2c[cls], ks * 1024))
        imm = (ks - self.a2base[1]) * 1024
        kind = "AE" if n < 40 else "A"
        def f(E):
            x = self.a2slot[n] = self.pool.take(E, kind)
            if not (C.dbg_a2 and n >= C.dbg_a2): E.emit(vload(x["r"], vL16, SWS, sA2s, imm, fl=C.a2_fl))
        f.vm = True; f.ready = lambda E: self.pool.find(E, kind) is not None
        return o + [f]

    def pre_read(self, n):
        out = []
        for m in (self.M3 + 2 * n, self.M3 + 2 * n + 1):
            o = self.SEQ[m]
            def f(E, o=o):
                assert o["obj"] in self.L.visible
                x = self.frag[(n, o["j"])] = self.pool.take(E, "R")
                E.emit(ds_tr(x["r"].sub(0, 2), o["addr"], o["imm"], tag=("fr", n)))
                E.emit(ds_tr(x["r"].sub(2, 2), o["addr"], o["imm"] + o["st"], tag=("fr", n)))
            f.slots = 2
            out.append(f)
        return out

    def raw_load(self, n):
        ks, cls, _ = step_info(n)
        def f(E):
            x = self.rawslot[n] = self.pool.take(E, "R")
            E.emit(vload(x["r"], vB2, SWO if cls == 2 else SWD, sXo, 0, fl=C.b2_fl))
        f.vm = True; f.ready = lambda E: self.pool.find(E, "R") is not None
        return [self.b2_soff(n, sXo), f]

    def h_epilogue(self, T, sbase, imm, tag):
        ops = [valu("v_mul_f32", T[r], T[r], T[r + 8]) for r in range(8)]
        ops += [valu("v_cvt_pk_bf16_f32", T[r], T[2 * r], T[2 * r + 1]) for r in range(4)]
        if not (C.dbg_st and tag == "h1"): ops.append(vstore(T.sub(0, 4), vL16, SWS, sbase, imm, tag, C.st_fl))
        return ops

    def body(self, typ):
        E = self.E; e = E.emit
        self.L = L = LDSMap()
        E.m0_owner = None; E.fifo = None
        self.typ = typ
        isA = typ == "A"
        nt1, nt2 = (6, 2) if isA else (8, 4)
        self.nt2 = nt2; self.k0 = k0 = 24 if isA else 20
        M2 = self.M2 = 32 * nt1; M3 = self.M3 = M2 + 32 * nt2
        self.nF = 10 if isA else 16
        self.tr2 = [vTR[2], vTR[3]] if isA else [vEX, vHW]
        self.tr2t = vTR2T if isA else [vPM, vMHC]
        self.parked = self.tr2 + self.tr2t if isA else []
        self.frag = {}
        self.SEQ = self.seq(typ)
        self.a2base = None
        self.cold = []
        self.lane = v(200); self.vx = [v(204 + g) for g in range(4)]; self.hs = [v(196), v(197)]
        self.xa = xa = [v(216 + q) for q in range(4)]; self.acc = acc = [v(220 + q) for q in range(4)]
        self.ha = ha = [v(144 + i) for i in range(5)]; self.hacc = hacc = [v(149 + i) for i in range(4)]
        self.ww = [vU, vTR[2], vTR[3]] if isA else [vH, vW16, vHX]
        self.vpl = vPL + [self.ww[0]]
        self.stamp("t0")
        if C.stamps: E.line("s_memrealtime s[0:1]")
        first = self.setup_first(typ)
        rest = self.consts(typ)
        E.emits(first)
        k = max(0, C.npre - len(first))
        while k < len(rest) and SCC in rest[k].r: k += 1
        E.emits(rest[:k]); rest = rest[k:]
        E.line("s_waitcnt lgkmcnt(0)")
        self.stamp("karg")
        def inplace(d, size, other, shift=0):
            o = []
            if other is SWS and C.wsoff:
                return [glue([salu("s_add_u32", other[0], d[2], C.wsoff << 20), salu("s_addc_u32", other[1], d[3], 0, scc_r=True)]),
                        smov(d[2], size), smov(d[3], 0x20000)]
            if other is not None and shift: o += [salu("s_sub_u32", other[0], d[2], shift), salu("s_subb_u32", other[1], d[3], 0, scc_r=True)]
            elif other is not None: o += [smov(other[0], d[2]), smov(other[1], d[3])]
            return o + [smov(d[2], size), smov(d[3], 0x20000)]
        E.emits(inplace(SX, 0x200000, SQKV if isA else None))
        if isA:
            for it in inplace(SDBG, 256, SWS): run_item(E, it)
        def xd(sl):
            o = [salu("s_add_u32", "m0", sM0B, 4096 * sl), salu("s_add_u32", sA2s, sXo, sXk)]
            o += [dma(self.vx[g], SX, sA2s, 1024 * g, tag=("x", sl), fl=C.x_fl) for g in range(4)]
            if sl < 7: o += [salu("s_add_u32", sXk, sXk, 128), salu("s_and_b32", sXk, sXk, 1023)]
            return o
        if isA:
            for ee in range(2):
                for g in range(2):
                    e(salu("s_add_u32", "m0", sS2b, TB + 2048 * ee + 1024 * g))
                    e(dma(self.hs[g], SX, sHo, 0, tag="halo", fl=C.x_fl))
                if ee == 0: e(salu("s_add_u32", sHo, sHo, 128))
            lskip = self.lab("noep")
            e(salu("s_or_b32", sSPIN, sWG, sW))
            E.line(f"s_cbranch_scc1 {lskip}")
            E.line(f"s_mov_b32 {sSPIN}, {WS_EPOCH}")
            E.line(f"buffer_load_dword {vPOLL}, off, {SWS}, {sSPIN} sc1")
            E.label(lskip)
        E.emits(xd(0)); E.emits(xd(1))
        nx = 2
        if isA:
            if C.touch_w0: e(self.touch(vTW, SQKV, sT5))
            e(scmp("s_cmp_ge_u32", sW, 2))
            e(salu("s_cselect_b32", SWH[0], SWG_[2], SWG_[0], scc_w=False, scc_r=True))
            e(salu("s_cselect_b32", SWH[1], SWG_[3], SWG_[1], scc_w=False, scc_r=True))
        else:
            E.emits([salu("s_sub_u32", SWU2[0], SWG_[2], 2944), salu("s_subb_u32", SWU2[1], SWG_[3], 0, scc_r=True),
                     salu("s_sub_u32", SWG2[0], SWG_[0], 1920), salu("s_subb_u32", SWG2[1], SWG_[1], 0, scc_r=True)])
            E.emits(inplace(SWG_, 512 * 3584, SWU, 1024))
            if C.touch_w0: e(self.touch(vTW, SWG_, sT5)); e(self.touch(vTW, SWU, sT5, 1024))
            if C.x2early: E.emits(xd(2)); nx = 3
        self.stamp("issued")
        late_srd = ([] if isA else inplace(SDBG, 256, SWS)) + inplace(SWD, 1792 * 1024, SOUT) + inplace(SWO, 512 * 1024, None)
        E.emits(rest)
        if C.stamps: E.line("v_accvgpr_write_b32 a198, s0")
        self.stamp("rest")
        if C.pads:
            E.line("s_mov_b64 exec, 0")
            for w_ in (1, 2, 3):
                E.line(f"s_cmp_eq_u32 {sW}, {w_}"); E.line(f"s_cbranch_scc1 L_pad{typ}_{w_}")
            E.line(f"s_branch L_pad{typ}_0")
            E.label(f"L_back{typ}")
            E.line("s_mov_b64 exec, -1")
            E.out.append(f";PADS_FROM {typ}")
        self.stamp("pads")
        if nx == 2 and not isA: E.emits(xd(2)); nx = 3
        if isA:
            hx = v(128, 16); pr = v(154, 2); tp = v(156, 2); pp = v(158, 8)
            E.wait_tags(vm=["halo"])
            self.epoch_publish()
            for ee in range(2):
                for b in range(2): e(ds_rd(hx.sub(4 * (2 * ee + b), 4), ha[b], 2048 * ee))
            E.emits(xd(2)); nx = 3
            E.emits(self.dots(hx, hacc))
            e(valu("v_add_f32", pr[0], hacc[0], hacc[1])); e(valu("v_add_f32", pr[1], hacc[2], hacc[3]))
            for sw in (swap16, swap32):
                e(valu("v_mov_b32", tp[0], pr[0])); e(valu("v_mov_b32", tp[1], pr[1]))
                e(sw(pr[0], tp[0])); e(sw(pr[1], tp[1]))
                e(valu("v_add_f32", pr[0], pr[0], tp[0])); e(valu("v_add_f32", pr[1], pr[1], tp[1]))
            e(ds_wr(ha[3], pr, 0, tag="hp"))
        def xdots(k):
            E.emits(self.dots(v(16 * k, 16), acc)); L.xread.add(k)
        for sl in range(9):
            early = sl >= C.dots_first
            if sl > 0 and early: xdots(sl - 1)
            if sl < 8:
                E.wait_tags(vm=[("x", sl)])
                self.stamp(f"x{sl}")
                for q in range(4): e(ds_rd(X(4 * sl + q), xa[q], 4096 * sl))
                if nx < 8: E.emits(xd(nx)); nx += 1
            if isA and sl == 0:
                E.wait_tags(lds=["hp"]); E.barrier()
                for w_ in range(4): e(ds_rd(pp.sub(2 * w_, 2), ha[2], 4096 * w_))
            if isA and sl == 1:
                e(valu("v_add_f32", pr[0], pp[0], pp[2])); e(valu("v_add_f32", pr[1], pp[1], pp[3]))
                e(valu("v_add_f32", tp[0], pp[4], pp[6])); e(valu("v_add_f32", tp[1], pp[5], pp[7]))
                e(valu("v_add_f32", pr[0], pr[0], tp[0])); e(valu("v_add_f32", pr[1], pr[1], tp[1]))
                self.finish_stats(pr[0], pr[1], pp[0], pp[1], tp[0], tp[1])
            if isA and C.hn_at <= sl < C.hn_at + 4:
                E.emits(self.norm_ops(hx.sub(4 * (sl - C.hn_at), 4), pp[0], pp[1]))
                e(ds_wr(ha[4], hx.sub(4 * (sl - C.hn_at), 4), 1024 * (sl - C.hn_at), tag="hxw"))
            if sl > 0 and not early: xdots(sl - 1)
            for j in {C.w0at: [0], C.w0at + 1: [1], 6: [2], 7: [3] if C.w3early or isA else []}.get(sl, []):
                for it in self.slab_dma(("s1", j)): run_item(E, it)
        self.stamp("xdone")
        npn = C.npre_normA if isA else C.npre_norm
        def bx():
            self.bar([("s1", 0), ("s1", 1)], -1, lds_tags=["hxw"])(E)
            self.stamp("bx")
            for m in range(C.D):
                for it in self.wreads(m): run_item(E, it)
        e(valu("v_add_f32", acc[0], acc[0], acc[1])); e(valu("v_add_f32", acc[2], acc[2], acc[3]))
        e(valu("v_mov_b32", acc[1], acc[0])); e(valu("v_mov_b32", acc[3], acc[2]))
        e(swap32(acc[0], acc[1])); e(swap32(acc[2], acc[3]))
        e(valu("v_add_f32", acc[0], acc[0], acc[1])); e(valu("v_add_f32", acc[2], acc[2], acc[3]))
        self.finish_stats(acc[0], acc[2], vRINV, vNB, acc[1], acc[3])
        for ks in range(npn - 1): E.emits(self.norm_ops(X(ks), vRINV, vNB))
        bx()
        E.emits(self.norm_ops(X(npn - 1), vRINV, vNB))
        self.stamp("s1"); self.stamp("b0")

        mains = [self.main(m) for m in range(len(self.SEQ))]
        E.gap = 0; E.fifo = Fifo(); E.fifo.p = E.pos; E.fifo.n = 4
        D = C.D
        qN = Q("norm"); qD = Q("dma"); qH = Q("halo"); qB = Q("b2"); qW = Q("raw", hard=False); qU = Q("dump", vm_age=0)
        qE = Q("epi"); qE2 = Q("epi2", hard=False, top=True); qR = Q("restore"); qFl = Q("flag", top=True)
        self.pool = pool = Pool(); self.a2slot = {}; self.rawslot = {}; self.mark = {}
        started = lambda q: (len(q.items) > 0 and q.empty())
        pool.add(a(200, 56), "AR")
        pool.add(a(192, 4), "A", lambda: started(qR))
        if isA:
            pool.add(a(80, 32), "AR")
            pool.add(a(112, 24), "AR")
            pool.add(a(160, 32), "A", lambda: self.mark.get("masks"))
            pool.add(a(48, 32), "A", lambda: started(qE2))
            pool.add(a(136, 24), "A", lambda: started(qE)); pool.add(v(128, 96), "A", lambda: started(qE))
            rawl = list(range(40, 72))
        else:
            pool.add(a(144, 16), "AR"); pool.add(a(160, 32), "A")
            pool.add(a(48, 64), "AR")
            pool.add(a(112, 32), "AR", lambda: started(qE)); pool.add(v(192, 32), "AR", lambda: started(qE))
            pool.add(v(128, 64), "A", lambda: started(qE2))
            for k in list(range(8)) + [12, 13, 14, 15]: pool.add(X(k), "E", lambda k=k: E.gap > M2 + 4 * k + 3)
            rawl = list(range(44, 72))
        rawit = {}
        if C.raw:
            for n in rawl[:C.nrawA if isA else C.nrawB]:
                rawit[n] = self.raw_load(n)
                qW.adds(rawit[n], earliest=C.raw0A if isA else C.raw0B, deadline=M3 + 16 * (n // 8) - C.D - 40)
        def place(n):
            def f(E):
                need = M3 + 16 * (n // 8) - C.D
                if n in self.rawslot:
                    ch = self.b2_chunk(n); x = self.rawslot[n]
                    qU.add(lambda E: L.alloc(("b2", n), [ch]), deadline=need - 3)
                    if not C.dbg_dump: qU.add(ds_wr(vWQ, x["r"], 1024 * ch, tag=("b2", n)), deadline=need - 3)
                    qU.add(lambda E: pool.give(E, x), deadline=need - 3)
                else:
                    for it in rawit.get(n, []): it.dead = True
                    b2_add(n, E.gap)
            return f
        qG = Q("frag")
        def b2_add(n, gap, need=None):
            need = need or M3 + 16 * (n // 8) - D
            qB.adds(self.b2_dma(n), earliest=gap, deadline=need - C.b2lead - 2 * (7 - n % 8), hard=False)
            qB.add(lambda E: None, earliest=gap, deadline=max(need - 10, gap + 2))
        def frag_plan(g, step_, groups):
            b0 = C.b2gA if isA else C.b2gB
            cover = []; tags = []; gap = step_ * g - D
            for k, pg in enumerate(groups):
                if g == b0 + k:
                    for n in pg: b2_add(n, gap + 4, gap + 2 * step_)
                if g == b0 + k + 2:
                    cover += [("b2", n) for n in pg]
                    for n in pg:
                        qG.adds(self.pre_read(n), earliest=gap, deadline=gap + step_ - 3); L.last_use[("b2", n)] = gap + step_ - 1
                if g == b0 + k + 3:
                    tags += [("fr", n) for n in pg]
                    for n in pg: b2_add(n + self.nF, gap)
            return cover, tags
        def barrier(gap, cover, name, **kw):
            mains[gap]["npre"] = 2
            mains[gap]["pre"] += [lambda E: self.stamp(name + "a"), self.bar(cover, gap - 1, **kw), lambda E: self.stamp(name)]
        for ks in range(npn, 32):
            qN.adds(self.norm_ops(X(ks), vRINV, vNB, ks * 4), earliest=max(0, nt1 * (ks - C.nahead) - 1),
                    deadline=nt1 * ks if ks < 28 else nt1 * 28 + ks - 28)
        for j in (range(4, 7) if isA else range(4 if C.w3early else 3, 5)): qD.adds(self.slab_dma(("s1", j)), earliest=0, deadline=17 if isA else 20)
        qK = Q("scal")
        qK.adds(late_srd + self.scalars(typ), earliest=0, deadline=(24 if isA else 32) - D + 14)
        L.last_use[("T",)] = M2 + 40 if isA else -1
        tagload = vload(vTAG, None, SDBG, 0, fl="sc1")
        warm = []
        if C.touch_b2:
            tb = self.ww[0]
            warm = [[valu("v_lshlrev_b32", tb, 6, vL16), valu("v_and_b32", tb, 0x7c00, tb), valu("v_add_u32", tb, sCT, tb),
                     salu("s_lshl_b32", sRT, sRT, 2), salu("s_add_u32", sRT, sRT, sW),
                     salu("s_lshl_b32", sT5, sRT, 14), self.touch(tb, SWD, sT5)],
                    [salu("s_lshr_b32", sT5, sRT, 1), salu("s_lshl_b32", sT5, sT5, 2), salu("s_add_u32", sT5, sT5, sRT),
                     salu("s_add_u32", sT5, sT5, 12), salu("s_lshl_b32", sT5, sT5, 15), self.touch(tb, SWD, sT5)],
                    [salu("s_lshl_b32", sT5, sRT, 15), self.touch(tb, SWO, sT5)]]
        def slab(jj): return ("s1", jj) if jj < 16 else ("s2", jj - 16)
        if isA:
            for g in range(1, 9):
                gap = 24 * g - D
                cv, tg = frag_plan(g, 24, [range(0, 5), range(5, 10)])
                barrier(gap, ([("s1", 2 * g), ("s1", 2 * g + 1)] if g < 8 else [("s2", j) for j in range(4)]) + cv, f"b{g}", lds_tags=tg)
                its = []
                for j in (2 * g + 4, 2 * g + 5):
                    if 7 <= j < 16: its += self.slab_dma(("s1", j))
                for j in {6: [0, 1, 2], 7: [3, 4, 5], 8: [6, 7]}.get(g, []): its += self.slab_dma(("s2", j))
                k_ = g - (C.warm_gA if isA else C.warm_gB)
                if k_ in (0, C.warm_sp) and C.warm_all:
                    qD.adds(its, earliest=gap, deadline=gap + 16); its = []
                    wo = self.warm_ops(isA)
                    qK.adds(wo[0] + wo[1] if C.warm_sp == 0 else wo[k_ > 0], earliest=gap + 12, deadline=gap + 30)
                if C.b2g <= g < C.b2g + 3 and warm: its += warm[g - C.b2g]
                if g == 6: its.append(tagload)
                if g == C.warm_gA + C.warm_sp: qK.adds([accr(self.tr2[n_], a(aPARK + n_)) for n_ in range(2)], earliest=gap + 12, deadline=gap + 40)
                qD.adds(its, earliest=gap, deadline=gap + (14 if g == 7 else 23))
            for j in range(16):
                g0 = max(0, 12 * j - D + 1)
                b = j & 1; ch = self.chunks(("s1", j))[0] * 1024
                its = [ds_rd(aXH[b], vHX, 1024 * j)]
                for u in range(2):
                    its += [ds_tr(aW16[b][u].sub(0, 2), vW16, ch + 1024 * (1 + u)), ds_tr(aW16[b][u].sub(2, 2), vW16, ch + 1024 * (1 + u) + 512)]
                qH.adds(its, earliest=g0, deadline=12 * j + 4)
                qH.add(mfma(aHACC[0], aW16[b][0], aXH[b], 0 if j == 0 else aHACC[0], "16x16x32"), earliest=g0, deadline=12 * j + 8)
                qH.add(mfma(aHACC[1], aXH[b], aW16[b][1], 0 if j == 0 else aHACC[1], "16x16x32"), earliest=12 * j + 7, deadline=12 * j + 10)
            gap = M2 + 32 - D
            barrier(M2 + C.exbar, [], "ex", lds_tags=["exw"])
            barrier(gap, [("s2", j) for j in range(4, 8)], "mid")
            for n in range(20, 32): b2_add(n, gap)
            first_use = {0: list(range(32, 46)), 1: list(range(46, 50))}
        else:
            for g in range(1, 12):
                gap = 32 * g - D - (8 if g == 11 else 0)
                cv, tg = frag_plan(g, 32, [range(0, 8), range(8, 16)])
                barrier(gap, [slab(jj) for jj in {10: (20, 21, 22), 11: (23,)}.get(g, (2 * g, 2 * g + 1))] + cv, f"b{g}", lds_tags=tg)
                its = []
                for jj in {8: (19,), 9: (20, 21, 22)}.get(g, (2 * g + 3, 2 * g + 4)):
                    if jj < 24: its += self.slab_dma(slab(jj))
                k_ = g - (C.warm_gA if isA else C.warm_gB)
                if k_ in (0, C.warm_sp) and C.warm_all:
                    qD.adds(its, earliest=gap, deadline=gap + 16); its = []
                    wo = self.warm_ops(isA)
                    qK.adds(wo[0] + wo[1] if C.warm_sp == 0 else wo[k_ > 0], earliest=gap + 12, deadline=gap + 30)
                if C.b2g <= g < C.b2g + 3 and warm: its += warm[g - C.b2g]
                if g == 6: its.append(tagload)
                for n in {10: range(32, 36), 11: range(36, 44)}.get(g, []): b2_add(n, gap)
                qD.adds(its, earliest=gap, deadline=gap + {1: 28, 9: 22, 10: 7}.get(g, 18))
            first_use = {0: list(range(44, 48)), 1: list(range(48, 56))}
        def xfree(reg): return M2 + nt2 * ((reg.lo + reg.n - 1) // 4) + nt2 - 1
        qFl.add(self.spin_check_tag(), earliest=M2 - 8, deadline=M2 - 4)
        def after(q, stage, tags):
            def arm(E):
                f = self.flag_store(stage, tags); p0 = E.pos; g0_ = E.gap
                fd = C.flagd if stage in (0, 2) else C.flagl
                f.ready = lambda E: ((E.pos - p0) * 4 + (E.gap - g0_) * 8 >= fd or (E.gap - g0_) * 33 >= fd
                                     or not any(x[2] in tags for x in E.vq))
                qFl.add(f, earliest=E.gap)
            q.add(arm)
        if not isA:
            for t in range(8):
                T = ACC1(t if t < 6 else t - 2)
                its = [accr(T[r], self.acc1(t)[r]) for r in range(16)] if t >= 6 else []
                qE.adds(its + self.h_epilogue(T, sStF if t < 4 else sStH, 1024 * (t & 3), "h1"), earliest=nt1 * 28 + 4 * t + 3,
                        deadline=M2 - 1 if t < 4 else nt1 * 28 + 4 * t + 8, hard=(t < 4))
            after(qE, 0, ["h1"])
        else:
            self.attention(qE, xfree)
            n0 = self.exw_check[1]; nn = len(qE.items)
            for k in range(n0, nn):
                it, ear, dl, hd = qE.items[k]
                qE.items[k] = (it, ear, int(M2 + 8 + (M3 + C.att_end - M2 - 8) * (k - n0) / (nn - n0)), False)
            after(qE, 3, ["o"])
        schedule(E, mains[:M2], [qN, qK, qD, qH, qG, qB, qW, qFl, qE], lambda g: (C.cap1A if isA else C.cap1B) if g < nt1 * 28 else C.cap1t,
                 0, flush=False, vm_gap=C.vm1)
        assert qN.empty() and qH.empty()
        self.stamp("s2")

        qL = Q("a2"); qF = Q("fin", vm_age=60); qP = Q("poll", top=True)
        g0 = M3 if isA else M3 + C.gate0B
        for n_, dst in enumerate(self.parked):
            if dst.lo < 128: qR.add(accr(dst, a(aPARK + n_)), earliest=xfree(dst), deadline=min(g0, M3 - D) - 2)
        qR.add(valu("v_add_u32", vWQ, sM0B, vL16), earliest=xfree(vWQ), deadline=min(g0, M3 - D) - 2)
        tail = M2 + k0 * nt2; tl = 32 - k0
        for t in range(nt2):
            its = ([accr(E2T[r], ACC2(t)[r]) for r in range(16)] if isA else []) + self.h_epilogue(E2T if isA else ACC1(t), sSt2, 1024 * t, "h2" if t < 2 else "h3")
            qE2.adds(its, earliest=tail + tl * t + tl - 1, deadline=tail + tl * t + tl + 8)
            if t == 1: after(qE2, 1 if isA else 2, ["h2"])
            if t == 3: after(qE2, 4, ["h3"])
        mains[M3]["pre"].append(lambda E: self.stamp("p2"))
        for n_ in range(72): mains[M3 + 2 * n_]["fix"].insert(0, lambda E, n_=n_: self.stamp(f"n{n_}"))
        gates = {0: g0, 32: M3 + 2 * (32 - C.la1), 40: M3 + 2 * (40 - C.la2), 56: M3 + 2 * (56 - C.la3),
                 64: M3 + 2 * (64 - (C.la4A if isA else C.la4B))}
        def chk_free(q):
            def f(E): assert q.empty(), ("A2 slot still in use", q.name, E.gap)
            f.ready = lambda E: q.empty()
            return f
        cur = 0
        for n in range(72):
            if n in gates:
                cur = gates[n]; st = step_info(n)[2]; n0 = n
                qP.add(self.poll_load(st), earliest=cur - C.polld, deadline=cur - C.polld + 2)
                qL.add(self.gate(st), earliest=cur, deadline=cur + 1)
                if n == 0 and isA: qP.items[-1] = (qP.items[-1][0], M3 + 1, M3 + 1, False)
            its = self.a2_load(n)
            qL.adds(its, earliest=cur, deadline=M3 + 2 * n - C.a2lead, hard=False)
            qL.add(lambda E: None, earliest=cur, deadline=max(M3 + 2 * n - 6, M3 + 1 if isA else 0))
        if isA:
            def boundary(E):
                qs = [qFl, qE2, qE, qL, qB, qW, qU, qP]
                def flags():
                    while not qFl.empty() and (not hasattr(qFl.head()[0], "ready") or qFl.head()[0].ready(E)): step(E, qFl, qs)
                def one_vm(q):
                    while not q.empty() and q.head()[1] <= M3:
                        it = q.head()[0]
                        if hasattr(it, "ready") and not it.ready(E): return False
                        step(E, q, qs)
                        if is_vm(it) and not getattr(it, "dead", False): return True
                    return False
                left = len(qE.items) - qE.n; base = qE.n
                polled = gated = False; lastv = E.pos; nl = 0
                while not (qE2.empty() and qE.empty()):
                    a_, b_ = (qE2, qE) if not qE2.empty() else (qE, qE2)
                    h = a_.head()[0]
                    if not callable(h) and E.nops(h) > 0 and not b_.empty() and (callable(b_.head()[0]) or E.nops(b_.head()[0]) == 0): a_ = b_
                    elif not callable(h) and E.nops(h) > 0 and not qU.empty(): a_ = qU
                    step(E, a_, qs)
                    flags()
                    fr = (qE.n - base) / max(1, left)
                    if not polled and fr >= C.att_gate - 0.45: step(E, qP, qs); polled = True
                    if not gated and fr >= C.att_gate: step(E, qL, qs); gated = True
                    if E.pos - lastv >= 16:
                        if (gated and nl < 14 and one_vm(qL)): nl += 1; lastv = E.pos
                        elif one_vm(qB) or one_vm(qW): lastv = E.pos
                if not polled: step(E, qP, qs)
                if not gated: step(E, qL, qs)
                while nl < 12 and one_vm(qL): nl += 1; flags()
                E.pos += 1000; flags(); E.pos -= 1000
            mains[M3]["pre"].insert(0, boundary)
        b2q = list(range(50 if isA else 56, 72))
        prevpg = lambda n: max(k for k in range(n) if self.b2_chunk(k) == self.b2_chunk(n))
        for c in range(9):
            gap = M3 + 16 * c - D
            barrier(gap, [("b2", n) for n in range(8 * c, 8 * c + 8)] + (["xt"] if c == 7 else []), f"c{c}",
                    lds_tags=["sw", "xr"] if c == 8 else ())
            for n in first_use.get(c, []): mains[gap]["pre"].append(place(n))
            while b2q and L.last_use[("b2", prevpg(b2q[0]))] <= gap - 1: mains[gap]["pre"].append(place(b2q.pop(0)))
        assert not b2q
        RD = v(0, 16); SF = v(16, 16); XF = v(48, 16); XR = v(224, 8); tt = v(32, 4)
        vRW = vTR[0]; vRR = vTR[1]; vOW = vRINV; vOR = vNB; vOO = vTR[4]; vXD = vTR[5]; vXA = vG
        qF.add(chk_free(qE), earliest=M3 + 30); qF.add(chk_free(qE2), earliest=M3 + 30)
        its = [valu("v_lshrrev_b32", tt[0], 4, vL16), valu("v_and_b32", tt[1], 31, tt[0]),
               valu("v_lshrrev_b32", tt[2], 5, tt[0]), valu("v_lshlrev_b32", tt[2], 3, tt[2]),
               salu("s_lshr_b32", sT0, sM0B, 3), salu("s_add_u32", sT0, sT0, TB), valu("v_add_u32", vRW, sT0, vL16),
               valu("v_xor_b32", vRR, 8192, vRW),
               salu("s_and_b32", sT0, sW, 1), salu("s_lshl_b32", sT1, sT0, 12), salu("s_add_u32", sT1, sT1, TB + 16384),
               valu("v_lshlrev_b32", tt[3], 7, tt[1]), valu("v_add3_u32", vXA, tt[3], tt[2], sT1),
               valu("v_and_b32", tt[3], 7, tt[0]), valu("v_lshlrev_b32", tt[3], 4, tt[3]),
               salu("s_lshl_b32", sT1, sKH, 6), valu("v_xor_b32", tt[3], sT1, tt[3]), valu("v_add_u32", vXA, vXA, tt[3]),
               salu("s_mul_i32", sT0, sT0, 32 * 144, scc_w=False), salu("s_add_u32", sT0, sT0, sT1), salu("s_add_u32", sT0, sT0, TB),
               valu("v_mul_u32_u24", tt[1], 144, tt[1]), valu("v_add3_u32", vOW, tt[1], tt[2], sT0),
               valu("v_lshrrev_b32", tt[1], 3, tt[0]), valu("v_and_b32", tt[2], 0x70, vL16),
               valu("v_lshl_add_u32", vOO, tt[1], 10, tt[2]),
               valu("v_lshlrev_b32", tt[3], 4, tt[1]), valu("v_xor_b32", vXD, vOO, tt[3]),
               salu("s_mul_i32", sT0, sW, 16 * 144, scc_w=False), salu("s_add_u32", sT0, sT0, TB),
               valu("v_mul_u32_u24", tt[1], 144, tt[1]), valu("v_add3_u32", vOR, tt[1], tt[2], sT0),
               salu("s_lshl_b32", sXk, sW, 11), salu("s_add_u32", sXk, sXk, TB + 16384), salu("s_add_u32", sXs, sOut, 8192)]
        its += [vload(XR.sub(0, 4), vXD, SX, sOut), vload(XR.sub(4, 4), vXD, SX, sXs), valu("v_add_u32", vXD, sXk, vL16)]
        if C.pre_out: its += [self.touch(vOO, SOUT, sOut, dst=vSP[0]), self.touch(vOO, SOUT, sXs, dst=vSP[0])]
        qF.adds(its, earliest=M3 + 30, deadline=M3 + 64)
        qF.adds([ds_wr(vXD, XR.sub(4 * i, 4), 1024 * i, tag="xt") for i in range(2)], earliest=M3 + 96 - D, deadline=M3 + 112 - D - 2)
        its = []
        for a_ in range(4):
            its += [valu("v_xor_b32", tt[a_], 16 * a_, vXA), ds_rd(XR.sub(2 * a_, 2), tt[a_], 0, tag="xr")]
        qF.adds(its, earliest=M3 + 112 - D, deadline=M3 + 128 - D - 1)
        qF.adds([ds_wr(vRW, ACCS[1].sub(4 * i, 4), 1024 * i, tag="sw") for i in range(4)], earliest=M3 + 111, deadline=M3 + 128 - D)
        its = []
        for r in range(8):
            its += [valu("v_lshlrev_b32", XF[2 * r], 16, XR[r]), valu("v_and_b32", XF[2 * r + 1], sHI, XR[r])]
        qF.adds(its, earliest=M3 + 112)
        its = [ds_rd(SF.sub(4 * i, 4), vRR, 1024 * i) for i in range(4)]
        its += [valu("v_add_f32", SF[r], SF[r], ACCS[0][r]) for r in range(16)]
        CK = v(38, 2); C1 = v(40, 2)
        its += [valu("v_mov_b32", CK[0], 0xbfb8aa3b), valu("v_mov_b32", CK[1], 0xbfb8aa3b), valu("v_mov_b32", C1[0], 1.0), valu("v_mov_b32", C1[1], 1.0)]
        qF.adds(its, earliest=M3 + 128 - D)
        cap2 = C.cap2A if isA else C.cap2B
        def capf(g):
            if not isA and not qE.empty(): return C.cap2h
            if g < tail + tl - 1: return cap2
            if g < M3: return C.cap2t
            if not qE2.empty(): return 40
            return C.cap3 if qE.empty() else C.cap3x
        schedule(E, mains[M2:], [qFl, qP, qD, qG, qL, qB, qW, qU, qR, qE2, qE, qF], capf, M2, flush=False,
                 vm_gap=lambda g: C.vm1 if g < M3 else C.vm3)
        assert qL.empty() and qD.empty() and qB.empty() and qE.empty() and qE2.empty() and qFl.empty()
        self.stamp("lastm")
        while not qF.empty():
            it = qF.head()[0]; qF.n += 1; run_item(E, it)
        for i in range(4): e(ds_wr(vRW, ACCD[1].sub(4 * i, 4), 16384 + 1024 * i, tag="dw"))
        E.wait_tags(lds=["dw"]); E.barrier()
        self.stamp("sbar")
        for i in range(4): e(ds_rd(RD.sub(4 * i, 4), vRR, 16384 + 1024 * i))
        G = ACCS[1]
        def pk(op, d, *src):
            r = set()
            for x in src: r |= ids(x)
            return I(f"{op} {d}, " + ", ".join(fmt(x) for x in src), "valu", r, ids(d))
        P2 = lambda reg, r: reg.sub(r, 2)
        for a_ in range(4):
            pp_ = (4 * a_, 4 * a_ + 2); rr = range(4 * a_, 4 * a_ + 4)
            for r in pp_: e(pk("v_pk_add_f32", P2(RD, r), P2(RD, r), P2(ACCD[0], r)))
            for r in pp_: e(pk("v_pk_mul_f32", P2(G, r), P2(RD, r), CK))
            for r in pp_: e(pk("v_pk_mul_f32", P2(RD, r), P2(RD, r), P2(SF, r)))
            for r in rr: e(valu("v_exp_f32", G[r], G[r]))
        for a_ in range(4):
            pp_ = (4 * a_, 4 * a_ + 2); rr = range(4 * a_, 4 * a_ + 4)
            for r in pp_: e(pk("v_pk_add_f32", P2(G, r), P2(G, r), C1))
            for r in rr: e(valu("v_rcp_f32", G[r], G[r]))
        for a_ in range(4):
            pp_ = (4 * a_, 4 * a_ + 2)
            for r in pp_: e(pk("v_pk_fma_f32", P2(RD, r), P2(RD, r), P2(G, r), P2(XF, r)))
            for d in range(2): e(valu("v_cvt_pk_bf16_f32", XR[2 * a_ + d], RD[4 * a_ + 2 * d], RD[4 * a_ + 2 * d + 1]))
            e(ds_wr(vOW, XR.sub(2 * a_, 2), 16 * a_))
        E.wait_all_lds(); E.barrier()
        for p in range(2): e(ds_rd(G.sub(4 * p, 4), vOR, 8 * 144 * p))
        for p in range(2): e(vstore(G.sub(4 * p, 4), vOO, SOUT, sXs if p else sOut, 0, fl=C.out_fl))
        self.stamp("end")
        if C.amp:
            l = self.lab("amp")
            E.line("s_waitcnt lgkmcnt(0)")
            if C.amp.startswith("sk"):
                E.line(f"buffer_load_dword v0, off, {SDBG}, 0 offset:4 sc1"); E.line("s_waitcnt vmcnt(0)"); E.line(f"v_readfirstlane_b32 {sT1}, v0"); E.line("s_nop 4")
                if C.amp == "skp": E.line(f"s_sub_u32 {sT0}, s{STAMP0}, {sT1}")
                else: E.line(f"s_sub_u32 {sT0}, {sT1}, s{STAMP0}")
                E.line(f"s_max_i32 {sT0}, {sT0}, 0")
            else:
                k0, k1 = [STAMP0 + 2 * int(x) for x in C.amp.split("-")]
                E.line(f"s_sub_u32 {sT0}, s{k1}, s{k0}")
            pass; E.line(f"s_lshl_b32 {sT0}, {sT0}, 2"); E.line(f"s_add_u32 {sT0}, {sT0}, s{STAMP0 + 16}")
            E.label(l)
            E.line("s_memrealtime s[84:85]"); E.line("s_waitcnt lgkmcnt(0)"); E.line(f"s_sub_u32 s84, s84, {sT0}")
            E.line("s_cmp_lt_i32 s84, 0"); E.line(f"s_cbranch_scc1 {l}")
        elif C.stamps:
            E.line("s_waitcnt lgkmcnt(0)")
            e(salu("s_lshl_b32", sT0, sWG, 2)); e(salu("s_add_u32", sT0, sT0, sW)); e(salu("s_lshl_b32", sT0, sT0, 7))
            e(salu("s_add_u32", sT0, sT0, WS_STAMP))
            for k in range(9):
                e(valu("v_mov_b32", v(0), s(STAMP0 + 2 * k))); e(vstore(v(0), None, SWS, sT0, 4 * k))
            e(accr(v(0), a(198))); e(vstore(v(0), None, SWS, sT0, 44))
            E.line("s_memrealtime s[84:85]"); E.line("s_getreg_b32 s86, hwreg(HW_REG_XCC_ID)"); E.line("s_waitcnt lgkmcnt(0)")
            e(valu("v_mov_b32", v(0), s(84))); e(vstore(v(0), None, SWS, sT0, 36))
            e(valu("v_mov_b32", v(0), s(86))); e(vstore(v(0), None, SWS, sT0, 40))
        E.line("s_endpgm")
        E.out += self.cold

    def epoch_publish(self):
        E = self.E
        l = self.lab("nopub")
        E.emit(salu("s_or_b32", sT0, sWG, sW))
        E.line(f"s_cbranch_scc1 {l}")
        E.line(f"s_mov_b32 {sT0}, 0x9e3779b1")
        E.line(f"v_mul_lo_u32 {vPOLL}, {vPOLL}, {sT0}")
        E.line(f"v_add_u32 {vPOLL}, 0x7f4a7c15, {vPOLL}")
        E.line(f"v_max_u32 {vPOLL}, 1, {vPOLL}")
        E.line(f"s_mov_b32 {sT0}, {WS_EPOCH}")
        E.line(f"buffer_store_dword {vPOLL}, off, {SWS}, {sT0} sc1")
        if C.amp.startswith("sk"):
            E.line(f"v_mov_b32 v0, s{STAMP0}"); E.line(f"buffer_store_dword v0, off, {SDBG}, 0 offset:4 sc1"); E.line("s_waitcnt vmcnt(0)")
        E.line(f"buffer_store_dword {vPOLL}, off, {SDBG}, 0 sc1")
        E.label(l)

    def attention(self, q, xfree):
        M2 = self.M2
        Q0, Q1, K0, K1, V0, V1 = [ACC1(t) for t in range(6)]
        cvt = lambda d, x, y: valu("v_cvt_pk_bf16_f32", d, x, y)
        def pack(dst, src, n=8): return [cvt(dst[i], src[2 * i], src[2 * i + 1]) for i in range(n)]
        its = pack(K0, K0) + pack(K0.sub(8, 8), K1)
        its += [ds_wr(vEX, K0.sub(4 * h, 4), 6144 + 1024 * h, tag="exw") for h in range(4)]
        its += pack(V0, V0) + pack(V0.sub(8, 8), V1)
        bar2 = M2 + C.exbar
        q.adds(its, earliest=M2 - 21, deadline=bar2 - 1)
        its = [ds_wr(vEX, V0.sub(4 + 8 * j, 4), 6144 + 4096 + 1024 * j, tag="exw") for j in range(2)]
        its += [accr(NT[i], aHACC[0][i]) for i in range(4)] + [accr(NT[4 + i], aHACC[1][i]) for i in range(4)]
        hk = v(NT[0].lo, 2); hv = v(NT[4].lo, 2)
        its += [cvt(NT[0], NT[0], NT[1]), cvt(NT[1], NT[2], NT[3]), cvt(NT[4], NT[4], NT[5]), cvt(NT[5], NT[6], NT[7])]
        its += [salu("s_lshl_b32", sT0, sW, 10), salu("s_add_u32", sT0, sT0, 256), valu("v_add_u32", NT[2], sT0, vHW),
                salu("s_lshr_b32", sT0, sW, 1), salu("s_lshl_b32", sT0, sT0, 10), salu("s_and_b32", sT1, sW, 1),
                salu("s_lshl_b32", sT1, sT1, 8), salu("s_add_u32", sT0, sT0, sT1), valu("v_add_u32", NT[3], sT0, vHW),
                ds_wr(NT[2], hk, 0, tag="exw"), ds_wr(NT[3], hv, 4096, tag="exw")]
        q.adds(its, earliest=M2 - 1, deadline=bar2 - 1)
        self.exw_check = (q, len(q.items))
        q.adds(pack(Q0, Q0) + pack(Q0.sub(8, 8), Q1), earliest=M2)
        MASK = v(208, 24)
        its = [accr(vRINV, a(196)), accr(vNB, a(197)), smov(sONE, NEG)]
        for r in range(24):
            rr = r if r < 16 else r - 8
            its += [valu("v_bfe_i32", MASK[r], vNB if r < 16 else vRINV, 8 * (rr >> 2) + (rr & 3), 1), valu("v_and_b32", MASK[r], sONE, MASK[r])]
        q.adds(its, earliest=M2)
        q.add(lambda E: self.mark.update(masks=True), earliest=M2)
        SC = K1; SP = v(0, 16); U = v(16, 8); P = v(24, 12); O = Q1
        mx, tm, mc = vRINV, vNB, vW16
        sums = [vHX, vH]; t2 = vTR[4]
        def add(i, ear=0):
            w = [x for x in i.w if x < 128]
            e_ = max([xfree(v(x)) for x in w], default=0)
            q.add(i, earliest=max(e_, ear))
        def qk(h, which):
            if which == 0: add(mfma(SC, K0.sub(4 * h, 4), Q0.sub(4 * h, 4), MASK.sub(0, 16)))
            else: add(mfma(SP, aKP[h], Q0.sub(4 * h, 4), MASK.sub(8, 16)))
        def fin(h):
            o = 8 * (h & 1); sm = sums[h & 1]
            l = [valu("v_rcp_f32", sm, sm)]
            l += [valu("v_mul_f32", O[o + r], O[o + r], sm) for r in range(8)]
            l += [cvt(O[o + r], O[o + 2 * r], O[o + 2 * r + 1]) for r in range(4)]
            l.append(vstore(O.sub(o, 4), vL16, SWS, sStF, 1024 * h, "o", C.st_fl))
            return l
        qk(0, 0)
        q.adds([ds_rd(aKP[h], vEX, 1024 * h) for h in range(4)] + [ds_rd(aVP[j], vEX, 4096 + 1024 * j) for j in range(2)], earliest=bar2)
        qk(0, 1)
        for h in range(4):
            for i in range(4): add(valu("v_max_f32", U[i], SC[2 * i], SC[2 * i + 1]))
            for i in range(4, 8): add(valu("v_max3_f32", U[i], SC[2 * i], SC[2 * i + 1], SP[2 * i]))
            if h < 3: qk(h + 1, 0)
            for i in range(4, 8): add(valu("v_max_f32", U[i], U[i], SP[2 * i + 1]))
            add(valu("v_max3_f32", mx, U[0], U[1], U[2])); add(valu("v_max3_f32", tm, U[3], U[4], U[5]))
            if h < 3: qk(h + 1, 1)
            add(valu("v_max3_f32", mx, mx, U[6], U[7])); add(valu("v_max_f32", mx, mx, tm))
            add(valu("v_mov_b32", tm, mx))
            fl = fin(h - 1) if h > 0 else []
            for x in fl[:3]: add(x)
            add(swap32(mx, tm)); add(valu("v_max_f32", mx, mx, tm))
            add(I(f"v_mul_f32 {mc}, -{mx}, {sCSC}", "valu", mx.ids() | sCSC.ids(), mc.ids()))
            for x in fl[3:]: add(x)
            for i in range(8): add(valu("v_fma_f32", U[i], U[i], sCSC, mc))
            for i in range(8): add(valu("v_exp_f32", U[i], U[i]))
            sm = sums[h & 1]; j = h >> 1
            for i in range(4):
                add(cvt(P[i], U[i], U[i])); add(valu("v_and_b32", P[i], vPM, P[i]))
            add(valu("v_add_f32", sm, U[0], U[1])); add(valu("v_add_f32", tm, U[2], U[3]))
            add(mfma(O, V0.sub(8 * j, 4), P.sub(0, 4), 0))
            for i in range(4):
                add(cvt(P[8 + i], U[4 + i], U[4 + i])); add(valu("v_and_b32", P[4 + i], vMHC, P[8 + i]))
            add(valu("v_add_f32", t2, U[4], U[5])); add(valu("v_add_f32", sm, sm, tm))
            add(mfma(O, V0.sub(8 * j + 4, 4), P.sub(4, 4), O))
            for i in range(4): add(valu("v_and_b32", P[8 + i], vMHP, P[8 + i]))
            add(valu("v_add_f32", tm, U[6], U[7])); add(valu("v_add_f32", t2, t2, tm))
            add(mfma(O, aVP[j], P.sub(8, 4), O))
            add(valu("v_add_f32", sm, sm, t2))
            add(valu("v_mov_b32", tm, sm))
            add(swap32(sm, tm)); add(valu("v_add_f32", sm, sm, tm))
        for x in fin(3): add(x)

    def build(self):
        E = self.E
        self.stamp("t00")
        E.emit(scmp("s_cmp_ge_u32", sWG, 256))
        E.line("s_cbranch_scc1 L_end")
        E.line("s_load_dwordx16 s[8:23], s[0:1], 0")
        E.line("s_load_dwordx4 s[24:27], s[0:1], 64")
        E.emit(salu("s_lshr_b32", sJ, sWG, 3))
        self.code_touch()
        E.emit(I("s_bitcmp1_b32 s6, 3", "salu", sJ.ids(), {SCC}))
        E.line("s_cbranch_scc1 L_typeB")
        snap = E.snapshot()
        self.body("A")
        E.label("L_typeB")
        E.restore(snap)
        self.body("B")
        E.label("L_end")
        E.line("s_endpgm")
        E.label("L_code_end")
        E.out.append(".p2align 12")
        head = open(os.path.join(os.path.dirname(os.path.abspath(__file__)), "head.txt")).read()
        txt = head + f"""; @launch grid=(256,1,1) block=(256,1,1) lds=163840
.amdgcn_target "amdgcn-amd-amdhsa--gfx950"
.text
.globl {NAME}
.p2align 8
.type {NAME},@function
{NAME}:
""" + E.text() + f""".section .rodata,"a"
.p2align 6
.amdhsa_kernel {NAME}
  .amdhsa_next_free_vgpr 512
  .amdhsa_next_free_sgpr 102
  .amdhsa_accum_offset 256
  .amdhsa_group_segment_fixed_size 0
  .amdhsa_kernarg_size 80
  .amdhsa_user_sgpr_count 2
  .amdhsa_user_sgpr_kernarg_segment_ptr 1
  .amdhsa_system_sgpr_workgroup_id_x 1
.end_amdhsa_kernel
"""
        return txt


def place_pads(txt):
    import subprocess, re, tempfile
    sys.path.insert(0, "cdna_kernels")
    from cdna_launch import with_harness_metadata
    lines = txt.split("\n")
    probe = []
    for n, l in enumerate(lines):
        if l.startswith("    ") and not l.strip().startswith(";") and not l.strip().startswith("."): probe.append(f"LP_{n}:")
        probe.append(re.sub(r"L_pad[AB]_\d+", "L_end", l))
    d = tempfile.mkdtemp()
    open(d + "/p.s", "w").write(with_harness_metadata("\n".join(probe), NAME, 10, launch_lists=True))
    subprocess.run(["clang", "-x", "assembler", "-target", "amdgcn-amd-amdhsa", "-mcpu=gfx950", d + "/p.s", "-o", d + "/p.co"], check=True)
    sym = subprocess.run(["llvm-objdump", "-t", d + "/p.co"], capture_output=True, text=True).stdout
    addr = {int(m.group(2)): int(m.group(1), 16) for m in re.finditer(r"([0-9a-f]{16}) .* LP_(\d+)", sym)}
    shift = 0; typ = None; pads = {"A": [], "B": []}; prev = None
    for n, l in enumerate(lines):
        if l.startswith(";PADS_FROM"): typ = l.split()[1]
        if l.startswith("L_typeB:") or l.startswith("L_end:"): typ = None
        if n in addr:
            a_ = addr[n] + shift
            if typ and prev is not None and prev // 4096 != a_ // 4096:
                pads[typ].append(n); shift += 4
            prev = a_
    out = []
    for n, l in enumerate(lines):
        for t in "AB":
            if n in pads[t]:
                k = pads[t].index(n)
                out.append(f"L_pad{t}_{k}:")
                out.append(f"    s_cbranch_execz " + (f"L_pad{t}_{k + 4}" if k + 4 < len(pads[t]) else f"L_back{t}"))
        out.append(l)
    print("pads", {t: len(pads[t]) for t in pads}, "kernel at", hex(min(addr.values())))
    assert min(len(pads[t]) for t in pads) >= 4
    return "\n".join(out)


if __name__ == "__main__":
    g = Gen()
    txt = g.build()
    if C.pads: txt = place_pads(txt)
    open(sys.argv[1], "w").write(txt)
    print("instructions:", g.E.ninst)
```

```python
import sys, os
sys.path.insert(0, os.path.dirname(os.path.abspath(__file__)))
from emit import *

NAME = "recurrent_scan__sliding_local_dilated__glu_gated_bilinear__prompt_kernel"

class Cfg:
    stamps = False
    stset = "a"
    rt = False
    D = 6
    nahead = 8; cap1A = 7.0; cap1B = 6.8; cap1t = 12.0; cap2h = 9.0; cap2A = 7.5; cap2B = 7.0; cap3 = 7.0; cap2t = 7.5; cap3x = 20.0
    npre = 120
    att_gate = 0.7; gate0B = -44; vm1 = 2.0; vm3 = 8.0; nrawA = 0; nrawB = 14; warm_gA = 1; warm_gB = 1; warm_off = 12; warm_mode = 0; scal_span = 30; b2gA = 4; b2gB = 3; raw0A = 130; raw0B = 270
    rot = True; rot_half = False
    pads = True
    la1 = 14; la2 = 14; la3 = 18; la4A = 13; la4B = 18
    polld = 34
    flagd = 600
    b2lead = 24; a2lead = 30; att_end = 30
    dbg_st = False; dbg_a2 = 0; dbg_dump = False; dbg_bar = False
    amp = ""
    lg_old = 10; vmfirst = False
    abl_norm = False; abl_tr = 0; abl_tr2 = False; abl_att = False
    fs = 1024; skip3 = False; rot3 = True
    ctrot = 0; k1B = 30; flstride = 1024
    lastk = 1; capl = 7.0
    wsoff = 0; pre_out = False
    rot2 = True; flagl = 300; flag1 = 300
    raw = True; raw0 = 84
    npre_norm = 1; npre_normA = 1; hn_at = 4; dots_first = 6; exbar = 12; npoll = 3
    w3early = True
    w0at = 4; touch_w0 = 4; x2early = False
    touch_code = True
    touch_b2 = False; b2g = 4
    warm_all = True; warm_byA = False
    a2_fl = "sc1"; st_fl = "sc1"; pre_a2 = 0; x_fl = ""; w_fl = ""; b2_fl = ""; out_fl = ""
    spin_max = 1 << 16

C = Cfg()
import emit as _emit
for arg in sys.argv[2:]:
    k, val = arg.split("=")
    old = getattr(C, k)
    setattr(C, k, (val not in ("0", "False")) if isinstance(old, bool) else type(old)(val.replace("+", " ")))

Emitter.LG_OLD = C.lg_old
WS_FLAG = 0x1C00000
WS_EPOCH = 0x1D00000
WS_STAMP = 0x1E00000
WS_SIZE = 0x1F00000
FS = C.fs
FLO = [0, 128, 256, 512, 640]
TB = 131072

sWG = s(2); sW = s(3); sRB = s(4); sIDX = s(5); sJ = s(6); sXCD = s(7)
SX, SWO, SWG_, SWD, SDBG, SP5, SWU, SOUT, SWS, SP9 = [s(8 + 4 * i, 4) for i in range(10)]
SQKV = SWG2 = SP5; SWH = SWU2 = SP9
(sA2s, sB2s, sM0B, sT0, sT1, sS1, sS2, sS2b, sTAG, sFLW, sFLR, sStF, sStH, sSt2, sHI, sONE, sSPIN, sT2, sOut, sT5,
 sRT, sCT, sKH, sCSC, sXs, sM0T, sXo, sXk, sROT, sC512, sA2c0, sA2c1, sA2c2, sB2c0, sB2c1, sB2c2) = [s(48 + i) for i in range(36)]
sA2c = [sA2c0, sA2c1, sA2c2]; sB2c = [sB2c0, sB2c1, sB2c2]
sHo = sB2s
sG3 = [sB2c0, s(0), s(1), s(5)]; sG1 = [sB2c2, s(6), s(7), sC512]
sPC = s(48, 2)
STAMP0 = 84

def X(ks): return v(4 * ks, 4)
def ACC1(t): return v(128 + 16 * t, 16)
NT = [v(224 + i) for i in range(8)]
vTR = [v(232 + i) for i in range(6)]
vG = v(238); vU = v(239); vH = v(240)
vB2 = v(241); vTW = v(242)
vL16 = v(243); vRINV = v(244); vNB = v(245); vW16 = v(246); vHX = v(247)
vTAG = v(248); vPOLL = v(249); vP4 = v(250); vTB = vTAG
vEX = v(251); vHW = v(252); vPM = v(253); vMHC = v(254); vMHP = v(255)
vTR2T = [v(42), v(43)]; vTR2 = [v(44), v(45)]; vWQ = v(46)
vPL = [vPOLL, v(36), v(37), v(47)]
vA2O = vTW
vSP = [v(39), v(41)]
PARKED = vTR2T + vTR2
E2T = v(48, 16)
ACCD = [v(64, 16), v(80, 16)]; ACCS = [v(96, 16), v(112, 16)]
def WF(m): return a(4 * (m % 12), 4)
def ACC2(t): return a(48 + 16 * t, 16)
aMASK = a(112, 24); aKP = [a(136 + 4 * i, 4) for i in range(4)]; aVP = [a(152 + 4 * i, 4) for i in range(2)]
aHACC = [a(160, 4), a(164, 4)]; aXH = [a(168, 4), a(172, 4)]
aW16 = [[a(176, 4), a(180, 4)], [a(184, 4), a(188, 4)]]
aPARK = 192
aDUM0 = a(199); vDUM1 = v(37)

NEG = 0xf149f2ca


class LDSMap:
    def __init__(self):
        self.own = {c: ("x", c // 4) for c in range(32)}
        for c in range(32, 40): self.own[c] = ("T",)
        self.last_use = {}
        self.visible = set()
        self.bar_m = -1
        self.xread = set()
    def alloc(self, obj, chunks):
        for c in chunks:
            o = self.own[c]
            if o[0] == "x": assert o[1] in self.xread, (obj, c, o)
            else: assert self.last_use[o] <= self.bar_m, (obj, c, o, self.last_use[o], self.bar_m)
            self.own[c] = obj
    def check_read(self, obj, chunks):
        assert obj in self.visible, ("not visible", obj)
        for c in chunks: assert self.own[c] == obj, (obj, c, self.own[c])


SHIFT = [48, 8, 16]


def step_info(n):
    if n < 32: return 16 + 12 * (n >> 3) + (n & 7), 0, 0
    if n < 40: return n - 32, 1, 1
    if n < 56: return 112 + n - 40, 2, 3
    hi = n >= 64; k = (n - 56) & 7
    return 24 + 12 * (k >> 1) + (k & 1) + 2 * hi, 0, (4 if hi else 2)


class Gen:
    def __init__(self):
        self.E = Emitter()
        self.E.trace = bool(os.environ.get("TRACE"))
        self.nlabel = 0
        self.nstamp = 0

    def lab(self, base):
        self.nlabel += 1
        return f"L_{base}_{self.nlabel}"

    STS = {"a": ["t0", "issued", "x0", "xdone", "s1", "s2", "p2", "lastm", "end"],
           "b": ["t0", "g0a", "g0b", "p2", "g1a", "g1b", "g2a", "g2b", "end"],
           "e": ["t0", "karg", "issued", "rest", "pads", "x0", "x1", "x3", "end"],
           "f": ["t0", "x4", "x5", "x6", "x7", "xdone", "s1", "b1", "end"],
           "g": ["t0", "s1", "b1a", "b1", "b2a", "b2", "b3a", "b3", "end"],
           "h": ["t0", "b3", "b4", "b5", "b6", "b7", "b8", "s2", "end"],
           "j": ["t0", "g2b", "n48", "n55", "n56", "n60", "n64", "n71", "end"],
           "k": ["t0", "g0b", "n0", "n4", "n8", "n16", "n24", "n31", "end"],
           "l": ["t0", "g1b", "g3b", "n31", "n32", "n39", "n40", "n47", "end"],
           "m": ["t0", "n0", "n8", "n16", "n24", "n32", "n40", "n56", "end"],
           "n": ["t0", "c0a", "c0", "c1a", "c1", "c2a", "c2", "c3a", "c3"],
           "o": ["t0", "c4a", "c4", "c5a", "c5", "c6a", "c6", "c7a", "c7"],
           "p": ["t0", "g0a", "g0b", "g1a", "g1b", "g3a", "g3b", "g2a", "g2b"],
           "q": ["t0", "s2", "f0a", "f0b", "g0a", "g0b", "f2a", "f2b", "end"],
           "r": ["t0", "s1", "b1", "b2", "b3", "b4", "b5", "b6", "b7"],
           "s": ["t0", "b7", "b8", "b9", "b10", "b11", "c0", "c1", "c2"],
           "t": ["n16", "n17", "n18", "n19", "n20", "n21", "n22", "n23", "n24"],
           "u": ["n40", "n41", "n42", "n43", "n44", "n45", "n46", "n47", "n48"],
           "v": ["n60", "n61", "n62", "n63", "n64", "n65", "n66", "n67", "n68"],
           "w": ["t00", "t0", "karg", "issued", "rest", "pads", "x0", "xdone", "end"],
           "x": ["t0", "issued", "pads", "x0", "x2", "x4", "x7", "bx", "s1"],
           "y": ["t0", "x4", "x5", "x6", "x7", "xdone", "bx", "s1", "b1"],
           "z": ["t0", "p2", "f2b", "f4b", "g2a", "g2b", "g4a", "g4b", "end"],
           "0": ["t0", "end"],
           "AMP": ["t0", "-1", "-2", "-3", "-4", "-5", "-6", "-7", "end"],
           "i": ["t0", "s2", "g0a", "g0b", "p2", "c1", "g1a", "g1b", "end"],
           "d": ["t0", "p2", "g1b", "g3a", "g3b", "g2a", "g2b", "lastm", "end"],
           "c": ["t0", "p2", "c1", "c3", "c5", "c7", "lastm", "sbar", "end"]}

    def stamp(self, name):
        if C.stset.startswith("B"):
            g = int(C.stset[1:]); self.STS[C.stset] = [f"b{g}"] + [f"b{g + k}{x}" for k in range(1, 5) for x in ("a", "")]
        if C.stset.startswith("N"): self.STS[C.stset] = [f"n{int(C.stset[1:]) + k}" for k in range(9)]
        if C.stamps and name in self.STS[C.stset]:
            k = self.STS[C.stset].index(name)
            self.E.line(f"{'s_memrealtime' if C.rt else 's_memtime'} s[{STAMP0 + 2 * k}:{STAMP0 + 2 * k + 1}]")

    def setup_first(self, typ):
        o = []; e = o.append
        lane = self.lane; vx = self.vx; t0, t1, t2 = v(201), v(202), v(203)
        e(valu("v_and_b32", lane, 63, v(0)))
        e(valu("v_lshrrev_b32", t0, 6, v(0)))
        e(salu("s_and_b32", sXCD, sWG, 7))
        e(rfl(sW, t0))
        e(salu("s_and_b32", sRB, sXCD, 1)); e(salu("s_lshl_b32", sRB, sRB, 3))
        e(salu("s_and_b32", sT0, sJ, 7)); e(salu("s_add_u32", sRB, sRB, sT0))
        e(salu("s_and_b32", sIDX, sXCD, 6)); e(salu("s_lshr_b32", sT0, sJ, 4)); e(salu("s_add_u32", sIDX, sIDX, sT0))
        e(valu("v_and_b32", t0, 7, lane)); e(valu("v_lshrrev_b32", t1, 4, lane)); e(valu("v_xor_b32", t0, t0, t1))
        e(valu("v_lshlrev_b32", t0, 4, t0))
        e(valu("v_lshrrev_b32", t1, 3, lane)); e(valu("v_lshlrev_b32", t1, 10, t1))
        e(valu("v_or_b32", vx[0], t0, t1)); e(valu("v_xor_b32", t2, 64, vx[0]))
        e(valu("v_add_u32", vx[1], 7168, t2)); e(valu("v_add_u32", vx[2], 2 * 7168, vx[0])); e(valu("v_add_u32", vx[3], 3 * 7168, t2))
        e(salu("s_lshl_b32", sM0B, sW, 15))
        e(salu("s_lshl_b32", sT0, sRB, 17)); e(salu("s_add_u32", sXo, sT0, sM0B))
        e(salu("s_lshr_b32", sT1, sJ, 3)); e(salu("s_add_u32", sT1, sT1, sJ)); e(salu("s_and_b32", sROT, sT1, (1 if C.rot_half else 3) if C.rot else 0))
        if C.rot_half: e(salu("s_lshl_b32", sROT, sROT, 1))
        e(salu("s_lshl_b32", sXk, sROT, 8))
        e(smov(SWS[2], WS_SIZE)); e(smov(SWS[3], 0x20000))
        if typ == "A":
            e(smov(SQKV[2], 512 * 3072)); e(smov(SQKV[3], 0x20000))
            hs = self.hs
            e(salu("s_sub_u32", sT1, sT0, 16 * 1024))
            e(valu("v_add_u32", hs[0], sT1, vx[0])); e(salu("s_add_u32", sT1, sT1, 1024)); e(valu("v_add_u32", hs[1], sT1, vx[1]))
            e(salu("s_add_u32", sHo, sW, sROT)); e(salu("s_and_b32", sHo, sHo, 3)); e(salu("s_lshl_b32", sHo, sHo, 8))
            e(salu("s_lshr_b32", sS2b, sM0B, 3))
            e(salu("s_lshl_b32", sT2, sIDX, 1))
            e(salu("s_lshl_b32", sS1, sIDX, 7))
        else:
            e(salu("s_mul_i32", sT2, sIDX, 12, scc_w=False)); e(salu("s_add_u32", sT2, sT2, 24))
            e(salu("s_lshl_b32", sS1, sT2, 5)); e(salu("s_sub_u32", sS1, sS1, 256))
            for d, sh in ((SWU, 1024), (SWG2, 1920), (SWU2, 2944)):
                e(smov(d[2], 512 * 3584 + sh)); e(smov(d[3], 0x20000))
        st1 = 3072 if typ == "A" else 3584
        e(salu("s_mul_i32", sT0, sROT, 128 * st1, scc_w=False)); e(salu("s_add_u32", sS1, sS1, sT0))
        if C.touch_w0:
            e(valu("v_and_b32", t0, C.touch_w0 - 1, lane)); e(valu("v_mul_u32_u24", t0, st1, t0))
            if typ == "A":
                e(valu("v_lshrrev_b32", t1, 4, lane)); e(valu("v_min_u32", t1, 2, t1)); e(valu("v_lshlrev_b32", t1, 10, t1))
            else:
                e(valu("v_bfe_u32", t1, lane, 4, 1)); e(valu("v_lshlrev_b32", t1, 7, t1))
            e(valu("v_add_u32", vTW, t0, t1))
            e(salu("s_and_b32", sT0, sJ, 4)); e(salu("s_and_b32", sT1, sXCD, 1)); e(salu("s_lshl_b32", sT1, sT1, 3))
            e(salu("s_add_u32", sT0, sT0, sT1)); e(salu("s_add_u32", sT0, sT0, sW))
            e(salu("s_mul_i32", sT0, sT0, C.touch_w0 * st1, scc_w=False)); e(salu("s_add_u32", sT5, sT0, sS1))
        return o

    def touch(self, voff, srd_, soff, imm=0, dst=None, fl=""):
        i = vload(dst or aDUM0, voff, srd_, soff, imm, fl=fl); i.w = set(); return i

    def consts(self, typ):
        o = []; e = o.append
        lane = self.lane
        t = [v(208 + i) for i in range(8)]
        li, g4, r2, hh, ub = v(190), v(191), v(192), v(193), v(194)
        e(valu("v_and_b32", li, 15, lane)); e(valu("v_lshrrev_b32", g4, 4, lane)); e(valu("v_lshrrev_b32", hh, 5, lane))
        e(valu("v_and_b32", ub, 1, g4)); e(valu("v_lshrrev_b32", r2, 2, li))
        e(valu("v_lshlrev_b32", vL16, 4, lane))
        e(smov(sHI, 0xffff0000)); e(smov(sONE, 0x3f803f80)); e(smov(sC512, 0x3b000000)); e(smov(sCSC, 0x3eb8aa3b))
        xa = self.xa
        e(valu("v_and_b32", t[0], 31, lane)); e(valu("v_lshlrev_b32", t[1], 7, t[0]))
        e(valu("v_bfe_u32", t[0], lane, 1, 3)); e(valu("v_xor_b32", t[0], t[0], hh)); e(valu("v_lshlrev_b32", t[0], 4, t[0]))
        e(valu("v_add_u32", t[1], sM0B, t[1]))
        for q in range(4):
            e(valu("v_xor_b32", t[2], 32 * q, t[0])); e(valu("v_add_u32", xa[q], t[1], t[2]))
        for r_ in self.acc: e(valu("v_mov_b32", r_, 0))
        if typ == "A":
            ha = self.ha
            e(valu("v_lshlrev_b32", t[1], 7, li)); e(valu("v_lshrrev_b32", t[0], 1, li)); e(valu("v_xor_b32", t[0], t[0], g4))
            e(valu("v_lshlrev_b32", t[0], 4, t[0]))
            e(salu("s_add_u32", sT0, sS2b, TB)); e(valu("v_add_u32", t[1], sT0, t[1]))
            e(valu("v_add_u32", ha[0], t[1], t[0])); e(valu("v_xor_b32", t[0], 64, t[0])); e(valu("v_add_u32", ha[1], t[1], t[0]))
            for r_ in self.hacc: e(valu("v_mov_b32", r_, 0))
            e(valu("v_add_u32", vHX, TB + 16384, vL16))
            e(valu("v_lshlrev_b32", ha[2], 3, lane)); e(valu("v_add_u32", ha[2], TB, ha[2])); e(valu("v_add_u32", ha[3], sS2b, ha[2]))
            e(valu("v_add_u32", ha[4], sS2b, vHX))
        e(salu("s_and_b32", sT0, sW, 1)); e(salu("s_lshl_b32", sT0, sT0, 4))
        e(salu("s_lshr_b32", sKH, sW, 1)); e(salu("s_lshl_b32", sT1, sKH, 3)); e(salu("s_add_u32", sT1, sT1, sT0))
        e(valu("v_lshrrev_b32", t[0], 3, lane)); e(valu("v_and_b32", t[1], 2, t[0])); e(valu("v_lshlrev_b32", t[1], 5, t[1]))
        e(valu("v_and_b32", t[2], 7, lane)); e(valu("v_lshlrev_b32", t[2], 4, t[2])); e(valu("v_xor_b32", t[2], t[2], t[1]))
        e(valu("v_add_u32", t[3], sT1, t[0]))
        if typ == "A":
            e(valu("v_mul_u32_u24", t[4], 3072, t[3])); e(valu("v_add_u32", vH, t[4], t[2]))
            e(salu("s_lshl_b32", sT0, sT0, 1))
            e(valu("v_lshrrev_b32", t[4], 2, lane)); e(valu("v_add_u32", t[4], sT0, t[4])); e(valu("v_mul_u32_u24", t[4], 3584, t[4]))
            e(valu("v_and_b32", t[5], 3, lane)); e(valu("v_lshlrev_b32", t[5], 4, t[5]))
            e(salu("s_lshl_b32", sT1, sKH, 5)); e(valu("v_xor_b32", t[5], sT1, t[5]))
            e(valu("v_add_u32", vG, t[4], t[5]))
            e(salu("s_lshl_b32", sS2, sT2, 5))
            e(smov(SWH[2], 512 * 3584)); e(smov(SWH[3], 0x20000))
        else:
            e(valu("v_mul_u32_u24", t[4], 3584, t[3])); e(valu("v_add_u32", vG, t[4], t[2]))
            e(valu("v_xor_b32", t[5], 32, t[2])); e(valu("v_add_u32", vU, t[4], t[5]))
            e(salu("s_mul_i32", sT0, sT0, 3584, scc_w=False))
            e(salu("s_lshl_b32", sS2, sT2, 5)); e(salu("s_add_u32", sS2, sS2, sT0))
        e(salu("s_mul_i32", sT0, sROT, 128 * 3584, scc_w=False)); e(salu("s_add_u32", sS2, sS2, sT0))
        e(valu("v_and_b32", vP4, 3, lane)); e(valu("v_lshlrev_b32", vP4, 2, vP4))
        e(valu("v_lshl_add_u32", vB2, t[0], 10, t[2]))
        if C.warm_all:
            ww = self.ww
            e(valu("v_min_u32", ww[0], 13, lane)); e(valu("v_lshlrev_b32", ww[0], 7, ww[0])); e(valu("v_lshlrev_b32", ww[1], 5, vP4))
            e(valu("v_and_b32", ww[2], 15 if typ == "A" else 7, lane)); e(valu("v_mul_u32_u24", ww[2], 3584, ww[2]))
        e(valu("v_lshlrev_b32", t[0], 7, r2))
        e(valu("v_and_b32", t[1], 3, lane)); e(valu("v_lshlrev_b32", t[1], 3, t[1])); e(valu("v_add_u32", t[0], t[0], t[1]))
        e(valu("v_and_b32", t[2], 2, r2))
        e(valu("v_or_b32", t[3], t[2], ub)); e(valu("v_lshlrev_b32", t[3], 5, t[3]))
        e(valu("v_lshlrev_b32", t[4], 16, hh)); e(valu("v_add_u32", t[4], t[4], t[0]))
        if typ == "A":
            for j in range(2):
                e(valu("v_xor_b32", t[6], 64 * j, t[3])); e(valu("v_add_u32", vTR[4 + j], t[6], t[4]))
            e(valu("v_lshlrev_b32", t[6], 3, hh)); e(valu("v_add_u32", t[6], t[6], r2)); e(valu("v_lshlrev_b32", t[6], 6, t[6]))
            e(valu("v_lshlrev_b32", t[7], 16, ub)); e(valu("v_add3_u32", t[6], t[6], t[7], t[1]))
            e(valu("v_lshlrev_b32", t[7], 5, ub)); e(valu("v_add_u32", vTR[0], t[6], t[7]))
            e(valu("v_xor_b32", t[7], 32, t[7])); e(valu("v_add_u32", vTR[1], t[6], t[7]))
        else:
            e(valu("v_lshlrev_b32", t[5], 10, ub)); e(valu("v_add_u32", t[5], t[5], t[4]))
            for tt in range(4):
                e(valu("v_xor_b32", t[6], 32 * tt, t[3])); e(valu("v_add_u32", vTR[tt], t[6], t[5]))
        def park(reg, s0_, s1_):
            names = [str(x) for x in self.parked]
            if str(reg) in names: e(valu("v_add_u32", t[7], s0_, s1_)); e(accw(a(aPARK + names.index(str(reg))), t[7]))
            else: e(valu("v_add_u32", reg, s0_, s1_))
        e(valu("v_lshlrev_b32", t[4], 9, hh)); e(valu("v_add_u32", t[4], t[4], t[0]))
        e(salu("s_lshl_b32", sT0, sKH, 6)); e(valu("v_xor_b32", t[6], sT0, t[3]))
        e(valu("v_add_u32", t[5], t[6], t[4])); e(valu("v_xor_b32", t[6], 64, t[5]))
        e(salu("s_lshl_b32", sT0, sKH, 16)); e(salu("s_lshl_b32", sT1, sKH, 11)); e(salu("s_add_u32", sT1, sT1, TB))
        for j in range(2):
            park(self.tr2[j], sT0, t[5 + j]); park(self.tr2t[j], sT1, t[5 + j])
        if typ == "A":
            e(valu("v_lshlrev_b32", t[4], 16, ub)); e(valu("v_lshlrev_b32", t[5], 15, hh)); e(valu("v_add3_u32", t[4], t[4], t[5], t[0]))
            e(valu("v_xor_b32", t[6], sW, t[2])); e(valu("v_lshlrev_b32", t[6], 5, t[6])); e(valu("v_add_u32", vW16, t[4], t[6]))
            e(salu("s_mul_i32", sT0, sW, 6144, scc_w=False)); e(salu("s_add_u32", sT0, sT0, TB)); e(valu("v_add_u32", vEX, sT0, vL16))
            e(valu("v_lshlrev_b32", t[4], 5, ub)); e(valu("v_add_u32", t[4], t[4], li)); e(valu("v_lshlrev_b32", t[4], 4, t[4]))
            e(valu("v_lshlrev_b32", t[5], 3, hh)); e(smov(sT0, TB)); e(valu("v_add3_u32", vHW, t[4], t[5], sT0))
            q = t[0]; bb = v(t[2].lo, 2)
            e(valu("v_and_b32", q, 31, lane)); e(valu("v_add_u32", t[1], 18, q))
            e(valu("v_mov_b32", t[4], 0x5555)); e(valu("v_mov_b32", t[5], 0))
            e(valu("v_lshlrev_b64", bb, t[1], v(t[4].lo, 2)))
            e(salu("s_or_b32", sT1, sRB, sW)); e(salu("s_cselect_b32", sT1, -1, 0, scc_w=False, scc_r=True))
            e(valu("v_and_b32", bb[0], sT1, bb[0]))
            e(valu("v_lshlrev_b32", t[1], 2, hh))
            e(valu("v_lshrrev_b32", bb[0], t[1], bb[0])); e(valu("v_lshrrev_b32", bb[1], t[1], bb[1]))
            e(valu("v_not_b32", bb[0], bb[0])); e(valu("v_not_b32", bb[1], bb[1]))
            e(accw(a(196), bb[0])); e(accw(a(197), bb[1]))
            e(valu("v_and_b32", t[2], 1, q)); e(valu("v_lshlrev_b32", t[2], 4, t[2]))
            e(valu("v_mov_b32", t[3], 0xffff)); e(valu("v_lshlrev_b32", vPM, t[2], t[3]))
            e(valu("v_bfe_i32", t[2], q, 4, 1)); e(valu("v_and_b32", vMHC, t[2], vPM)); e(valu("v_xor_b32", vMHP, vMHC, vPM))
        return o

    def scalars(self, typ):
        o = []; e = o.append
        e(salu("s_and_b32", sRT, sJ, 3)); e(salu("s_lshr_b32", sCT, sJ, 2))
        if C.ctrot: e(salu("s_add_u32", sCT, sCT, C.ctrot)); e(salu("s_and_b32", sCT, sCT, 7))
        e(salu("s_lshl_b32", sCT, sCT, 7))
        e(salu("s_lshl_b32", sT0, sXCD, 3)); e(salu("s_lshl_b32", sT1, sRT, 1)); e(salu("s_add_u32", sT0, sT0, sT1))
        e(salu("s_and_b32", sT1, sW, 1)); e(salu("s_add_u32", sT0, sT0, sT1))
        e(salu("s_lshl_b32", sFLR, sT0, 1)); e(salu("s_add_u32", sFLR, sFLR, sKH))
        e(salu("s_mul_i32", sFLR, sFLR, C.flstride, scc_w=False)); e(salu("s_add_u32", sFLR, sFLR, WS_FLAG))
        e(salu("s_mul_i32", sTAG, sT0, 144 * FS, scc_w=False))
        e(salu("s_lshl_b32", sOut, sT0, 15)); e(salu("s_and_b32", sOut, sOut, 0xffff7fff)); e(salu("s_add_u32", sOut, sOut, sCT))
        e(salu("s_lshr_b32", sT0, sM0B, 1)); e(salu("s_add_u32", sOut, sOut, sT0))
        e(salu("s_lshl_b32", sT1, sT1, 13)); e(salu("s_add_u32", sT1, sT1, sCT))
        for c_ in range(3):
            e(salu("s_mul_i32", sT0, sKH, SHIFT[c_] * FS, scc_w=False)); e(salu("s_add_u32", sA2c[c_], sTAG, sT0))
            e(salu("s_mul_i32", sT0, sKH, SHIFT[c_] * 16384, scc_w=False)); e(salu("s_add_u32", sB2c[c_], sT0, sT1))
        e(salu("s_lshl_b32", sM0T, sW, 10)); e(salu("s_add_u32", sM0T, sM0T, TB))
        e(salu("s_lshl_b32", sT0, sRB, 2)); e(salu("s_add_u32", sT0, sT0, sW))
        e(salu("s_mul_i32", sT1, sT0, 144, scc_w=False))
        e(salu("s_add_u32", sSt2, sT1, sT2)); e(salu("s_mul_i32", sSt2, sSt2, FS, scc_w=False))
        if typ == "A":
            e(salu("s_mul_i32", sStF, sT2, FS, scc_w=False)); e(salu("s_add_u32", sStF, sStF, sSt2)); e(salu("s_add_u32", sStF, sStF, 112 * FS))
        else:
            e(salu("s_sub_u32", sStF, sSt2, 8 * FS))
        if C.skip3:
            e(valu("v_add_u32", vA2O, 640, vL16)); e(valu("v_lshrrev_b32", vA2O, 10, vA2O)); e(valu("v_lshl_add_u32", vA2O, vA2O, 7, vL16))
        else: e(valu("v_mov_b32", vA2O, vL16))
        e(salu("s_lshl_b32", sT0, sT0, 1)); e(salu("s_lshr_b32", sT1, sIDX, 2)); e(salu("s_add_u32", sT0, sT0, sT1))
        e(salu("s_mul_i32", sT0, sT0, C.flstride, scc_w=False))
        e(salu("s_and_b32", sT1, sIDX, 3)); e(salu("s_lshl_b32", sT1, sT1, 2))
        e(salu("s_add_u32", sT0, sT0, sT1)); e(salu("s_add_u32", sFLW, sT0, WS_FLAG))
        e(smov(SOUT[2], 0x200000)); e(smov(SOUT[3], 0x20000))
        if C.rot3:
            e(salu("s_lshr_b32", sT0, sB2c0, 4)); e(salu("s_sub_u32", sA2c0, sA2c0, sT0))
            e(salu("s_lshr_b32", sT0, sB2c2, 4)); e(salu("s_sub_u32", sA2c2, sA2c2, sT0))
            for g in (3, 2, 1, 0):
                e(salu("s_add_u32", sT0, sRT, g)); e(salu("s_and_b32", sT0, sT0, 3)); e(salu("s_lshl_b32", sT0, sT0, 16))
                e(salu("s_add_u32", sG1[g], sB2c2, sT0))
                e(salu("s_mul_i32", sT0, sT0, 3, scc_w=False)); e(salu("s_add_u32", sG3[g], sB2c0, sT0))
        return o

    def warm_ops(self, isA):
        ww = self.ww; nr = 16 if isA else 8
        o = [salu("s_and_b32", sT5, sW, 1 if isA else 3), salu("s_mul_i32", sT5, sT5, nr, scc_w=False),
             salu("s_lshl_b32", sXk, sRB, 5), salu("s_add_u32", sT5, sT5, sXk), salu("s_mul_i32", sT5, sT5, 3584, scc_w=False),
             salu("s_lshl_b32", sXk, sT2, 5), salu("s_add_u32", sT5, sT5, sXk)]
        o += [self.touch(ww[2], SWH, sT5)] if isA else [self.touch(ww[2], SWG_, sT5), self.touch(ww[2], SWU, sT5, 1024)]
        fl = [self.touch(ww[0], SWS, sFLR, fl="sc1")]
        if not C.warm_byA:
            o1 = [salu("s_lshl_b32", sXk, sWG, 2), salu("s_add_u32", sXk, sXk, sW), salu("s_mul_i32", sT5, sXk, 14 * 128, scc_w=False),
                  self.touch(ww[0], SWD, sT5)]
            o2 = [salu("s_lshl_b32", sT5, sXk, 9), self.touch(ww[1], SWO, sT5)]
            return [[o1, o2 + fl, o], [o1 + o2 + fl, o, []], [o + o1, o2 + fl, []], [o1 + o2 + fl + o, [], []]][C.warm_mode]
        if not isA: return [[], fl + o]
        o1 = [salu("s_lshr_b32", sXk, sWG, 7), salu("s_lshl_b32", sXk, sXk, 6), salu("s_and_b32", sT5, sWG, 63), salu("s_add_u32", sXk, sXk, sT5),
              salu("s_lshl_b32", sXk, sXk, 2), salu("s_add_u32", sXk, sXk, sW), salu("s_mul_i32", sT5, sXk, 28 * 128, scc_w=False),
              self.touch(ww[0], SWD, sT5), self.touch(ww[0], SWD, sT5, 14 * 128)]
        o2 = [salu("s_lshl_b32", sT5, sXk, 10), self.touch(ww[1], SWO, sT5), self.touch(ww[1], SWO, sT5, 512)]
        return [o1, o2 + fl + o]

    def b2_soff(self, n, dst):
        ks, cls, st = step_info(n)
        if cls == 1 or not C.rot3: return salu("s_add_u32", dst, sB2c[cls], (ks - 112 if cls == 2 else ks) * 16384)
        if cls == 2: g = (ks - 112) >> 2; return salu("s_add_u32", dst, sG1[g], (ks - 112 - 4 * g) * 16384)
        g = (ks - 16) // 12; return salu("s_add_u32", dst, sG3[g], (ks - 12 * g) * 16384)

    def code_touch(self):
        E = self.E
        if not C.touch_code: return
        t = v(201)
        E.line(f"s_getpc_b64 {sPC}")
        pcl = self.lab("pc"); E.label(pcl)
        E.emit(salu("s_and_b32", sT0, sJ, 1)); E.emit(salu("s_lshl_b32", sT0, sT0, 15))
        E.emit(valu("v_lshlrev_b32", t, 7, v(0))); E.emit(valu("v_add_u32", t, sT0, t))
        E.line(f"s_mov_b32 {sT0}, L_code_end-{pcl}-4")
        E.emit(valu("v_min_u32", t, sT0, t))
        E.emit(I(f"global_load_dword {aDUM0}, {t}, {sPC}", "vml", t.ids(), ()))

    def finish_stats(self, sm, sq, rinv, nb, t0, t1):
        e = self.E.emit
        e(valu("v_mul_f32", sm, sC512, sm))
        e(valu("v_mul_f32", t0, sm, sm))
        e(I(f"v_fma_f32 {sq}, {sq}, {sC512}, -{t0}", "valu", sq.ids() | t0.ids() | sC512.ids(), sq.ids()))
        e(valu("v_max_f32", sq, 0, sq))
        e(valu("v_cvt_pk_bf16_f32", t0, sm, sq))
        e(valu("v_and_b32", t1, sHI, t0))
        e(valu("v_add_f32", t1, 0x3727c5ac, t1))
        e(valu("v_cvt_pk_bf16_f32", t1, t1, t1)); e(valu("v_and_b32", t1, sHI, t1))
        e(valu("v_sqrt_f32", t1, t1))
        e(valu("v_cvt_pk_bf16_f32", t1, t1, t1)); e(valu("v_and_b32", t1, sHI, t1))
        e(valu("v_rcp_f32", rinv, t1))
        e(valu("v_lshlrev_b32", t0, 16, t0))
        e(I(f"v_mul_f32 {nb}, -{t0}, {rinv}", "valu", t0.ids() | rinv.ids(), nb.ids()))

    def norm_ops(self, reg, rinv, nb, k0=0):
        ops = []
        for d in range(4):
            lo = NT[(2 * (k0 + d)) % 8]; hi = NT[(2 * (k0 + d) + 1) % 8]; x = reg[d]
            ops += [valu("v_lshlrev_b32", lo, 16, x), valu("v_and_b32", hi, sHI, x),
                    valu("v_fma_f32", lo, lo, rinv, nb), valu("v_fma_f32", hi, hi, rinv, nb),
                    valu("v_cvt_pk_bf16_f32", x, lo, hi)]
        return ops

    def dots(self, reg, acc):
        ops = []
        for d in range(reg.n):
            ops.append(valu("v_dot2_f32_bf16", acc[d & 1], reg[d], sONE, acc[d & 1]))
            ops.append(valu("v_dot2_f32_bf16", acc[2 + (d & 1)], reg[d], reg[d], acc[2 + (d & 1)]))
        return ops

    def wrap(self, reg, q, span):
        return glue([scmp("s_cmp_eq_u32", sROT, 4 - q), salu("s_cselect_b32", sS2b, span, 0, scc_w=False, scc_r=True),
                     salu("s_sub_u32", reg, reg, sS2b)])

    def chunks(self, obj):
        k, j = obj
        if self.typ == "A":
            if k == "s1": return list(range(3 * (j % 7), 3 * (j % 7) + 3))
            return [6 + 2 * j, 7 + 2 * j]
        jj = j if k == "s1" else 16 + j
        return list(range(4 * (jj % 6), 4 * (jj % 6) + 4))

    def slab_dma(self, obj):
        L = self.L; k, j = obj; ch = self.chunks(obj); fl = C.w_fl
        def f(E): L.alloc(obj, ch)
        ops = [f, salu("s_add_u32", "m0", sM0B, 1024 * ch[0])]
        if k == "s1":
            st = 3072 if self.typ == "A" else 3584
            if self.typ == "A": ops += [dma(vH, SQKV, sS1, 1024 * u, obj, fl) for u in range(3)]
            else: ops += [dma(vG, SWG_, sS1, 0, obj, fl), dma(vU, SWU, sS1, 1024, obj, fl), dma(vG, SWG2, sS1, 2048, obj, fl), dma(vU, SWU2, sS1, 3072, obj, fl)]
            if j < 15: ops.append(salu("s_add_u32", sS1, sS1, 32 * st))
            if j % 4 == 3 and j < 15 and C.rot: ops.append(self.wrap(sS1, (j + 1) // 4, 512 * st))
        else:
            if self.typ == "A":
                ops += [salu("s_add_u32", sS2b, sS2, 16 * 3584 - 1024), dma(vG, SWH, sS2, 0, obj, fl), dma(vG, SWH, sS2b, 1024, obj, fl)]
            else:
                ops += [salu("s_add_u32", sS2b, sS2, 16 * 3584 - 2048), dma(vG, SWG_, sS2, 0, obj, fl), dma(vU, SWU, sS2, 1024, obj, fl),
                        dma(vG, SWG_, sS2b, 2048, obj, fl), dma(vU, SWU, sS2b, 3072, obj, fl)]
            if j < 7: ops.append(salu("s_add_u32", sS2, sS2, 64 * 3584))
            if j % 2 == 1 and j < 7 and C.rot: ops.append(self.wrap(sS2, (j + 1) // 2, 512 * 3584))
        return ops

    def b2_chunk(self, n):
        R_ = lambda lo, hi: list(range(lo, hi))
        if self.typ == "A":
            tab = R_(22, 32) + R_(22, 32) + R_(0, 12) + R_(32, 40) + R_(12, 22) + R_(22, 32) + R_(0, 12)
        else:
            tab = R_(24, 40) + R_(24, 40) + R_(0, 24) + R_(24, 32) + R_(0, 8)
        return tab[n]

    def b2_dma(self, n):
        L = self.L
        ks, cls, _ = step_info(n)
        ch = self.b2_chunk(n)
        def f(E): L.alloc(("b2", n), [ch])
        return [f, salu("s_add_u32", "m0", sM0B, 1024 * ch) if ch < 32 else salu("s_add_u32", "m0", sM0T, 4096 * (ch - 32)),
                self.b2_soff(n, sB2s),
                dma(vB2, SWO if cls == 2 else SWD, sB2s, 0, ("b2", n), C.b2_fl)]

    def bar(self, cover, m_done, lds_all=False, lds_tags=()):
        L = self.L
        def f(E):
            E.wait_tags(lds=list(lds_tags) + list(cover), vm=cover)
            if lds_all: E.wait_all_lds()
            if not (C.dbg_bar and cover and cover[0][0] == "b2"): E.barrier()
            L.visible |= set(cover); L.bar_m = m_done
        return f

    def acc2(self, t): return ACC2(t) if self.typ == "A" else ACC1(t)

    def acc1(self, t): return ACC1(t) if t < 6 else a(112 + 16 * (t - 6), 16)

    def seq(self, typ):
        out = []
        order = [2, 3, 4, 5, 0, 1] if typ == "A" else list(range(8))
        k1 = self.k1
        s1 = [(ks, t) for ks in range(k1) for t in order] + [(ks, t) for t in order for ks in range(k1, 32)]
        for ks, t in s1:
            obj = ("s1", ks // 2); base = (ks & 1) * 32768 + self.chunks(obj)[0] * 1024
            if True:
                if typ == "A":
                    out.append(dict(acc=ACC1(t), x=X(ks), sw=(t >= 4), obj=obj, addr=vTR[4 + (t & 1)],
                                    imm=base + (t >> 1) * 1024, st=512, first=(ks == 0)))
                else:
                    out.append(dict(acc=self.acc1(t), x=X(ks), sw=False, obj=obj, addr=vTR[t & 3], imm=base + (t >> 2) * 2048, st=512, first=(ks == 0)))
        nt = self.nt2
        k0 = self.k0
        s2 = [(ks, t) for ks in range(k0) for t in range(nt)] + [(ks, t) for t in range(nt) for ks in range(k0, 32)]
        for ks, t in s2:
            obj = ("s2", ks // 4); k = ks & 3
            out.append(dict(acc=self.acc2(t), x=X(ks), sw=False, obj=obj, addr=vTR[t],
                            imm=(k >> 1) * 32768 + self.chunks(obj)[0] * 1024 + (k & 1) * (1024 if typ == "A" else 2048),
                            st=256 if typ == "A" else 512, first=(ks == 0)))
        nl = 72 - C.lastk
        p2 = [(n, j) for n in range(nl) for j in ((1, 0) if n == 55 else (0, 1))] + [(n, j) for j in (1, 0) for n in range(nl, 72)]
        for n, j in p2:
            iso = step_info(n)[1] == 2
            if True:
                ch = self.b2_chunk(n)
                out.append(dict(acc=(ACCS if iso else ACCD)[j], x=n, sw=False, obj=("b2", n),
                                addr=self.tr2[j] if ch < 32 else self.tr2t[j], j=j, imm=ch * 1024 if ch < 32 else (ch - 32) * 4096,
                                st=32768 if ch < 32 else 1024, first=(n in (0, 40))))
        for m, o in enumerate(out): self.L.last_use[o["obj"]] = m
        return out

    def wreads(self, m):
        o = self.SEQ[m]; L = self.L
        if o["obj"][0] == "b2" and o["obj"][1] < self.nF: return []
        if C.abl_tr and m >= 24 and (m % C.abl_tr) and (o["obj"][0] != "b2" or C.abl_tr2): return []
        def f(E): assert o["obj"] in L.visible, ("read of invisible", m, o["obj"])
        return [f, ds_tr(WF(m).sub(0, 2), o["addr"], o["imm"]), ds_tr(WF(m).sub(2, 2), o["addr"], o["imm"] + o["st"])]

    def main(self, m):
        o = self.SEQ[m]
        if isinstance(o["x"], int):
            def mk(peek):
                if peek and o["x"] not in self.a2slot: return None
                w = self.frag[(o["x"], o["j"])]["r"] if o["x"] < self.nF else WF(m)
                return mfma(o["acc"], w, self.a2slot[o["x"]]["r"], 0 if o["first"] else o["acc"])
            mn = dict(pre=[], m=mk, fix=[])
            if o["x"] < self.nF: mn["fix"].append(lambda E: self.pool.give(E, self.frag[(o["x"], o["j"])]))
            if m == self.L.last_use[o["obj"]]: mn["fix"].append(lambda E: self.pool.give(E, self.a2slot[o["x"]]))
        else:
            A_, B_ = (o["x"], WF(m)) if o["sw"] else (WF(m), o["x"])
            mn = dict(pre=[], m=mfma(o["acc"], A_, B_, 0 if o["first"] else o["acc"]), fix=[])
        if m + C.D < len(self.SEQ): mn["fix"] += self.wreads(m + C.D)
        return mn

    def spin_check_tag(self):
        def f(E):
            ok = self.lab("tagok"); sp = self.lab("tagspin")
            E.emit(rfl(sTAG, vTAG))
            E.emit(scmp("s_cmp_eq_u32", sTAG, 0))
            E.line(f"s_cbranch_scc1 {sp}")
            E.label(ok)
            self.cold += [f"{sp}:", f"    s_mov_b32 {sSPIN}, 0", f"{sp}_l:",
                          f"    buffer_load_dword {vTAG}, off, {SDBG}, 0 sc1", f"    s_add_u32 {sSPIN}, {sSPIN}, 1",
                          "    s_waitcnt vmcnt(0)", f"    v_readfirstlane_b32 {sTAG}, {vTAG}",
                          f"    s_cmp_ge_u32 {sSPIN}, {C.spin_max}", f"    s_cbranch_scc1 {ok}",
                          f"    s_cmp_eq_u32 {sTAG}, 0", f"    s_cbranch_scc1 {sp}_l", f"    s_branch {ok}"]
        return f

    def poll_load(self, stage):
        return vload(self.vpl[stage], vP4, SWS, sFLR, FLO[stage], fl="sc1")

    def gate(self, stage):
        def f(E):
            ok = self.lab("gateok"); sp = self.lab("gatespin")
            self.stamp(f"g{stage}a")
            E.emit(vcmp("v_cmp_ne_u32", "vcc", sTAG, self.vpl[stage]))
            E.line(f"s_cbranch_vccnz {sp}")
            E.label(ok)
            ld = lambda r: f"    buffer_load_dword {r}, {vP4}, {SWS}, {sFLR} offen offset:{FLO[stage]} sc1"
            regs = [self.vpl[stage], vSP[0], vSP[1]][:C.npoll]; k = len(regs)
            self.cold += [f"{sp}:", f"    s_mov_b32 {sSPIN}, 0"] + [x for r in regs[:-1] for x in (ld(r), "    s_nop 15", "    s_nop 15")] + [f"{sp}_l:"]
            for q_ in range(k):
                self.cold += [ld(regs[(q_ + k - 1) % k]), f"    s_waitcnt vmcnt({k - 1})", f"    v_cmp_ne_u32 vcc, {sTAG}, {regs[q_]}", f"    s_cbranch_vccz {ok}"]
            self.cold += [f"    s_add_u32 {sSPIN}, {sSPIN}, 1", f"    s_cmp_ge_u32 {sSPIN}, {C.spin_max}", f"    s_cbranch_scc0 {sp}_l", f"    s_branch {ok}"]
            self.stamp(f"g{stage}b")
        return f

    def flag_store(self, stage, tags):
        def f(E):
            self.stamp(f"f{stage}a")
            E.wait_tags(vm=tags)
            self.stamp(f"f{stage}b")
            E.emit(vstore(vTAG, None, SWS, sFLW, FLO[stage], fl="sc1"))
        return f

    def a2_load(self, n):
        ks, cls, _ = step_info(n)
        o = []
        if self.a2base is None or self.a2base[0] != cls or not (0 <= (ks - self.a2base[1]) * FS < 4096):
            self.a2base = (cls, ks)
            if cls == 1 or not C.rot3: o.append(salu("s_add_u32", sA2s, sA2c[cls], ks * FS))
            else:
                assert FS == 1024
                g = (ks - 112) >> 2 if cls == 2 else (ks - 16) // 12
                o += [salu("s_lshr_b32", sA2s, (sG1 if cls == 2 else sG3)[g], 4), salu("s_add_u32", sA2s, sA2s, sA2c[cls]),
                      salu("s_add_u32", sA2s, sA2s, (ks - 4 * g if cls == 2 else ks - 12 * g) * 1024)]
        imm = (ks - self.a2base[1]) * FS
        kind = "AE" if n < 40 else "A"
        def f(E):
            x = self.a2slot[n] = self.pool.take(E, kind)
            if not (C.dbg_a2 and n >= C.dbg_a2): E.emit(vload(x["r"], vA2O, SWS, sA2s, imm, fl=C.a2_fl))
        f.vm = True; f.ready = lambda E: self.pool.find(E, kind) is not None
        return o + [f]

    def pre_read(self, n):
        out = []
        for m in (self.M3 + 2 * n, self.M3 + 2 * n + 1):
            o = self.SEQ[m]
            def f(E, o=o):
                assert o["obj"] in self.L.visible
                x = self.frag[(n, o["j"])] = self.pool.take(E, "R")
                E.emit(ds_tr(x["r"].sub(0, 2), o["addr"], o["imm"], tag=("fr", n)))
                E.emit(ds_tr(x["r"].sub(2, 2), o["addr"], o["imm"] + o["st"], tag=("fr", n)))
            f.slots = 2
            out.append(f)
        return out

    def raw_load(self, n):
        ks, cls, _ = step_info(n)
        def f(E):
            x = self.rawslot[n] = self.pool.take(E, "R")
            E.emit(vload(x["r"], vB2, SWO if cls == 2 else SWD, sXo, 0, fl=C.b2_fl))
        f.vm = True; f.ready = lambda E: self.pool.find(E, "R") is not None
        return [self.b2_soff(n, sXo), f]

    def a2_store(self, reg, sbase, t, tag):
        st = vstore(reg, vA2O, SWS, sStH if t * FS >= 4096 else sbase, 0 if t * FS >= 4096 else t * FS, tag, C.st_fl)
        if t * FS >= 4096: st.pre = salu("s_add_u32", sStH, sbase, t * FS)
        return st

    def h_epilogue(self, T, sbase, imm, tag):
        ops = [valu("v_mul_f32", T[r], T[r], T[r + 8]) for r in range(8)]
        ops += [valu("v_cvt_pk_bf16_f32", T[r], T[2 * r], T[2 * r + 1]) for r in range(4)]
        ops.append(self.a2_store(T.sub(0, 4), sbase, imm, tag))
        return ops

    def body(self, typ):
        E = self.E; e = E.emit
        self.L = L = LDSMap()
        E.m0_owner = None; E.fifo = None
        self.typ = typ
        isA = typ == "A"
        nt1, nt2 = (6, 2) if isA else (8, 4)
        self.nt2 = nt2; self.k0 = k0 = 24 if isA else 20
        self.k1 = k1 = 28 if isA else C.k1B
        M2 = self.M2 = 32 * nt1; M3 = self.M3 = M2 + 32 * nt2
        self.nF = 10 if isA else 16
        self.tr2 = [vTR[2], vTR[3]] if isA else [vEX, vHW]
        self.tr2t = vTR2T if isA else [vPM, vMHC]
        self.parked = self.tr2 + self.tr2t if isA else []
        self.frag = {}
        self.SEQ = self.seq(typ)
        self.a2base = None
        self.cold = []
        self.lane = v(200); self.vx = [v(204 + g) for g in range(4)]; self.hs = [v(196), v(197)]
        self.xa = xa = [v(216 + q) for q in range(4)]; self.acc = acc = [v(220 + q) for q in range(4)]
        self.ha = ha = [v(144 + i) for i in range(5)]; self.hacc = hacc = [v(149 + i) for i in range(4)]
        self.ww = [vU, vTR[2], vTR[3]] if isA else [vH, vW16, vHX]
        self.vpl = vPL + [self.ww[0]]
        self.stamp("t0")
        if C.stamps: E.line("s_memrealtime s[0:1]")
        first = self.setup_first(typ)
        rest = self.consts(typ)
        E.emits(first)
        k = max(0, C.npre - len(first))
        while k < len(rest) and SCC in rest[k].r: k += 1
        E.emits(rest[:k]); rest = rest[k:]
        E.line("s_waitcnt lgkmcnt(0)")
        self.stamp("karg")
        def inplace(d, size, other, shift=0):
            o = []
            if other is SWS and C.wsoff:
                return [glue([salu("s_add_u32", other[0], d[2], C.wsoff << 20), salu("s_addc_u32", other[1], d[3], 0, scc_r=True)]),
                        smov(d[2], size), smov(d[3], 0x20000)]
            if other is not None and shift: o += [salu("s_sub_u32", other[0], d[2], shift), salu("s_subb_u32", other[1], d[3], 0, scc_r=True)]
            elif other is not None: o += [smov(other[0], d[2]), smov(other[1], d[3])]
            return o + [smov(d[2], size), smov(d[3], 0x20000)]
        E.emits(inplace(SX, 0x200000, SQKV if isA else None))
        if isA:
            for it in inplace(SDBG, 256, SWS): run_item(E, it)
        def xd(sl):
            o = [salu("s_add_u32", "m0", sM0B, 4096 * sl), salu("s_add_u32", sA2s, sXo, sXk)]
            o += [dma(self.vx[g], SX, sA2s, 1024 * g, tag=("x", sl), fl=C.x_fl) for g in range(4)]
            if sl < 7: o += [salu("s_add_u32", sXk, sXk, 128), salu("s_and_b32", sXk, sXk, 1023)]
            return o
        if isA:
            for ee in range(2):
                for g in range(2):
                    e(salu("s_add_u32", "m0", sS2b, TB + 2048 * ee + 1024 * g))
                    e(dma(self.hs[g], SX, sHo, 0, tag="halo", fl=C.x_fl))
                if ee == 0: e(salu("s_add_u32", sHo, sHo, 128))
            lskip = self.lab("noep")
            e(salu("s_or_b32", sSPIN, sWG, sW))
            E.line(f"s_cbranch_scc1 {lskip}")
            E.line(f"s_mov_b32 {sSPIN}, {WS_EPOCH}")
            E.line(f"buffer_load_dword {vPOLL}, off, {SWS}, {sSPIN} sc1")
            E.label(lskip)
        E.emits(xd(0)); E.emits(xd(1))
        nx = 2
        if isA:
            if C.touch_w0: e(self.touch(vTW, SQKV, sT5))
            e(scmp("s_cmp_ge_u32", sW, 2))
            e(salu("s_cselect_b32", SWH[0], SWG_[2], SWG_[0], scc_w=False, scc_r=True))
            e(salu("s_cselect_b32", SWH[1], SWG_[3], SWG_[1], scc_w=False, scc_r=True))
        else:
            E.emits([salu("s_sub_u32", SWU2[0], SWG_[2], 2944), salu("s_subb_u32", SWU2[1], SWG_[3], 0, scc_r=True),
                     salu("s_sub_u32", SWG2[0], SWG_[0], 1920), salu("s_subb_u32", SWG2[1], SWG_[1], 0, scc_r=True)])
            E.emits(inplace(SWG_, 512 * 3584, SWU, 1024))
            if C.touch_w0: e(self.touch(vTW, SWG_, sT5)); e(self.touch(vTW, SWU, sT5, 1024))
            if C.x2early: E.emits(xd(2)); nx = 3
        self.stamp("issued")
        late_srd = ([] if isA else inplace(SDBG, 256, SWS)) + inplace(SWD, 1792 * 1024, SOUT) + inplace(SWO, 512 * 1024, None)
        E.emits(rest)
        if C.stamps: E.line("v_accvgpr_write_b32 a198, s0")
        self.stamp("rest")
        if C.pads:
            E.line("s_mov_b64 exec, 0")
            for w_ in (1, 2, 3):
                E.line(f"s_cmp_eq_u32 {sW}, {w_}"); E.line(f"s_cbranch_scc1 L_pad{typ}_{w_}")
            E.line(f"s_branch L_pad{typ}_0")
            E.label(f"L_back{typ}")
            E.line("s_mov_b64 exec, -1")
            E.out.append(f";PADS_FROM {typ}")
        self.stamp("pads")
        if nx == 2 and not isA: E.emits(xd(2)); nx = 3
        if isA:
            hx = v(128, 16); pr = v(154, 2); tp = v(156, 2); pp = v(158, 8)
            E.wait_tags(vm=["halo"])
            self.epoch_publish()
            for ee in range(2):
                for b in range(2): e(ds_rd(hx.sub(4 * (2 * ee + b), 4), ha[b], 2048 * ee))
            E.emits(xd(2)); nx = 3
            E.emits(self.dots(hx, hacc))
            e(valu("v_add_f32", pr[0], hacc[0], hacc[1])); e(valu("v_add_f32", pr[1], hacc[2], hacc[3]))
            for sw in (swap16, swap32):
                e(valu("v_mov_b32", tp[0], pr[0])); e(valu("v_mov_b32", tp[1], pr[1]))
                e(sw(pr[0], tp[0])); e(sw(pr[1], tp[1]))
                e(valu("v_add_f32", pr[0], pr[0], tp[0])); e(valu("v_add_f32", pr[1], pr[1], tp[1]))
            e(ds_wr(ha[3], pr, 0, tag="hp"))
        def xdots(k):
            E.emits(self.dots(v(16 * k, 16), acc)); L.xread.add(k)
        for sl in range(9):
            early = sl >= C.dots_first
            if sl > 0 and early: xdots(sl - 1)
            if sl < 8:
                E.wait_tags(vm=[("x", sl)])
                self.stamp(f"x{sl}")
                for q in range(4): e(ds_rd(X(4 * sl + q), xa[q], 4096 * sl))
                if nx < 8: E.emits(xd(nx)); nx += 1
            if isA and sl == 0:
                E.wait_tags(lds=["hp"]); E.barrier()
                for w_ in range(4): e(ds_rd(pp.sub(2 * w_, 2), ha[2], 4096 * w_))
            if isA and sl == 1:
                e(valu("v_add_f32", pr[0], pp[0], pp[2])); e(valu("v_add_f32", pr[1], pp[1], pp[3]))
                e(valu("v_add_f32", tp[0], pp[4], pp[6])); e(valu("v_add_f32", tp[1], pp[5], pp[7]))
                e(valu("v_add_f32", pr[0], pr[0], tp[0])); e(valu("v_add_f32", pr[1], pr[1], tp[1]))
                self.finish_stats(pr[0], pr[1], pp[0], pp[1], tp[0], tp[1])
            if isA and C.hn_at <= sl < C.hn_at + 4:
                E.emits(self.norm_ops(hx.sub(4 * (sl - C.hn_at), 4), pp[0], pp[1]))
                e(ds_wr(ha[4], hx.sub(4 * (sl - C.hn_at), 4), 1024 * (sl - C.hn_at), tag="hxw"))
            if sl > 0 and not early: xdots(sl - 1)
            for j in {C.w0at: [0], C.w0at + 1: [1], 6: [2], 7: [3] if C.w3early or isA else []}.get(sl, []):
                for it in self.slab_dma(("s1", j)): run_item(E, it)
        self.stamp("xdone")
        npn = C.npre_normA if isA else C.npre_norm
        def bx():
            self.bar([("s1", 0), ("s1", 1)], -1, lds_tags=["hxw"])(E)
            self.stamp("bx")
            for m in range(C.D):
                for it in self.wreads(m): run_item(E, it)
        e(valu("v_add_f32", acc[0], acc[0], acc[1])); e(valu("v_add_f32", acc[2], acc[2], acc[3]))
        e(valu("v_mov_b32", acc[1], acc[0])); e(valu("v_mov_b32", acc[3], acc[2]))
        e(swap32(acc[0], acc[1])); e(swap32(acc[2], acc[3]))
        e(valu("v_add_f32", acc[0], acc[0], acc[1])); e(valu("v_add_f32", acc[2], acc[2], acc[3]))
        self.finish_stats(acc[0], acc[2], vRINV, vNB, acc[1], acc[3])
        for ks in range(npn - 1): E.emits(self.norm_ops(X(ks), vRINV, vNB))
        bx()
        E.emits(self.norm_ops(X(npn - 1), vRINV, vNB))
        self.stamp("s1"); self.stamp("b0")

        mains = [self.main(m) for m in range(len(self.SEQ))]
        E.gap = 0; E.fifo = Fifo(); E.fifo.p = E.pos; E.fifo.n = 4
        D = C.D
        qN = Q("norm"); qD = Q("dma"); qH = Q("halo"); qB = Q("b2"); qW = Q("raw", hard=False); qU = Q("dump", vm_age=0)
        qE = Q("epi"); qE2 = Q("epi2", hard=False, top=True); qR = Q("restore"); qFl = Q("flag", top=True)
        self.pool = pool = Pool(); self.a2slot = {}; self.rawslot = {}; self.mark = {}
        started = lambda q: (len(q.items) > 0 and q.empty())
        pool.add(a(200, 56), "AR")
        pool.add(a(192, 4), "A", lambda: started(qR))
        if isA:
            pool.add(a(80, 32), "AR")
            pool.add(a(112, 24), "AR")
            pool.add(a(160, 32), "A", lambda: self.mark.get("masks"))
            pool.add(a(48, 32), "A", lambda: started(qE2))
            pool.add(a(136, 24), "A", lambda: started(qE)); pool.add(v(128, 96), "A", lambda: started(qE))
            rawl = list(range(40, 72))
        else:
            pool.add(a(144, 16), "AR"); pool.add(a(160, 32), "A")
            pool.add(a(48, 64), "AR")
            pool.add(a(112, 32), "AR", lambda: started(qE)); pool.add(v(192, 32), "AR", lambda: started(qE))
            pool.add(v(128, 64), "A", lambda: started(qE2))
            for k in list(range(8)) + [12, 13, 14, 15]: pool.add(X(k), "E", lambda k=k: E.gap > M2 + 4 * k + 3)
            rawl = list(range(44, 72))
        rawit = {}
        if C.raw:
            for n in rawl[:C.nrawA if isA else C.nrawB]:
                rawit[n] = self.raw_load(n)
                qW.adds(rawit[n], earliest=C.raw0A if isA else C.raw0B, deadline=M3 + 16 * (n // 8) - C.D - 40)
        def place(n):
            def f(E):
                need = M3 + 16 * (n // 8) - C.D
                if n in self.rawslot:
                    ch = self.b2_chunk(n); x = self.rawslot[n]
                    qU.add(lambda E: L.alloc(("b2", n), [ch]), deadline=need - 3)
                    if not C.dbg_dump: qU.add(ds_wr(vWQ, x["r"], 1024 * ch, tag=("b2", n)), deadline=need - 3)
                    qU.add(lambda E: pool.give(E, x), deadline=need - 3)
                else:
                    for it in rawit.get(n, []): it.dead = True
                    b2_add(n, E.gap)
            return f
        qG = Q("frag")
        def b2_add(n, gap, need=None):
            need = need or M3 + 16 * (n // 8) - D
            qB.adds(self.b2_dma(n), earliest=gap, deadline=need - C.b2lead - 2 * (7 - n % 8), hard=False)
            qB.add(lambda E: None, earliest=gap, deadline=max(need - 10, gap + 2))
        def frag_plan(g, step_, groups):
            b0 = C.b2gA if isA else C.b2gB
            cover = []; tags = []; gap = step_ * g - D
            for k, pg in enumerate(groups):
                if g == b0 + k:
                    for n in pg: b2_add(n, gap + 4, gap + 2 * step_)
                if g == b0 + k + 2:
                    cover += [("b2", n) for n in pg]
                    for n in pg:
                        qG.adds(self.pre_read(n), earliest=gap, deadline=gap + step_ - 3); L.last_use[("b2", n)] = gap + step_ - 1
                if g == b0 + k + 3:
                    tags += [("fr", n) for n in pg]
                    for n in pg: b2_add(n + self.nF, gap)
            return cover, tags
        def barrier(gap, cover, name, **kw):
            mains[gap]["npre"] = 2
            mains[gap]["pre"] += [lambda E: self.stamp(name + "a"), self.bar(cover, gap - 1, **kw), lambda E: self.stamp(name)]
        for ks in range(npn, 32 if not C.abl_norm else npn + 1):
            qN.adds(self.norm_ops(X(ks), vRINV, vNB, ks * 4), earliest=max(0, nt1 * (ks - C.nahead) - 1),
                    deadline=nt1 * ks if ks < k1 else nt1 * k1 + ks - k1)
        for j in (range(4, 7) if isA else range(4 if C.w3early else 3, 5)): qD.adds(self.slab_dma(("s1", j)), earliest=0, deadline=17 if isA else 20)
        qK = Q("scal")
        qK.adds(late_srd, earliest=0, deadline=(24 if isA else 32) - D)
        sc_ = self.scalars(typ)
        for q_, it in enumerate(sc_): qK.add(it, earliest=0, deadline=int(10 + C.scal_span * q_ / len(sc_)), hard=False)
        qK.add(lambda E: None, deadline=10 + C.scal_span + 8)
        L.last_use[("T",)] = M2 + 40 if isA else -1
        tagload = vload(vTAG, None, SDBG, 0, fl="sc1")
        warm = []
        if C.touch_b2:
            tb = self.ww[0]
            warm = [[valu("v_lshlrev_b32", tb, 6, vL16), valu("v_and_b32", tb, 0x7c00, tb), valu("v_add_u32", tb, sCT, tb),
                     salu("s_lshl_b32", sRT, sRT, 2), salu("s_add_u32", sRT, sRT, sW),
                     salu("s_lshl_b32", sT5, sRT, 14), self.touch(tb, SWD, sT5)],
                    [salu("s_lshr_b32", sT5, sRT, 1), salu("s_lshl_b32", sT5, sT5, 2), salu("s_add_u32", sT5, sT5, sRT),
                     salu("s_add_u32", sT5, sT5, 12), salu("s_lshl_b32", sT5, sT5, 15), self.touch(tb, SWD, sT5)],
                    [salu("s_lshl_b32", sT5, sRT, 15), self.touch(tb, SWO, sT5)]]
        def slab(jj): return ("s1", jj) if jj < 16 else ("s2", jj - 16)
        if isA:
            for g in range(1, 9):
                gap = 24 * g - D
                cv, tg = frag_plan(g, 24, [range(0, 5), range(5, 10)])
                barrier(gap, ([("s1", 2 * g), ("s1", 2 * g + 1)] if g < 8 else [("s2", j) for j in range(4)]) + cv, f"b{g}", lds_tags=tg)
                its = []
                for j in (2 * g + 4, 2 * g + 5):
                    if 7 <= j < 16: its += self.slab_dma(("s1", j))
                for j in {6: [0, 1, 2], 7: [3, 4, 5], 8: [6, 7]}.get(g, []): its += self.slab_dma(("s2", j))
                k_ = g - (C.warm_gA if isA else C.warm_gB)
                if k_ in (0, 1, 2) and C.warm_all:
                    qD.adds(its, earliest=gap, deadline=gap + 16); its = []
                    qK.adds(self.warm_ops(isA)[k_], earliest=gap + C.warm_off, deadline=gap + C.warm_off + 14)
                if C.b2g <= g < C.b2g + 3 and warm: its += warm[g - C.b2g]
                if g == 6: its.append(tagload)
                if g == C.warm_gA + 2: qK.adds([accr(self.tr2[n_], a(aPARK + n_)) for n_ in range(2)], earliest=gap + 12, deadline=gap + 40)
                qD.adds(its, earliest=gap, deadline=gap + (14 if g == 7 else 23))
            for j in range(16):
                g0 = max(0, 12 * j - D + 1)
                b = j & 1; ch = self.chunks(("s1", j))[0] * 1024
                its = [ds_rd(aXH[b], vHX, 1024 * j)]
                for u in range(2):
                    its += [ds_tr(aW16[b][u].sub(0, 2), vW16, ch + 1024 * (1 + u)), ds_tr(aW16[b][u].sub(2, 2), vW16, ch + 1024 * (1 + u) + 512)]
                qH.adds(its, earliest=g0, deadline=12 * j + 4)
                qH.add(mfma(aHACC[0], aW16[b][0], aXH[b], 0 if j == 0 else aHACC[0], "16x16x32"), earliest=g0, deadline=12 * j + 8)
                qH.add(mfma(aHACC[1], aXH[b], aW16[b][1], 0 if j == 0 else aHACC[1], "16x16x32"), earliest=12 * j + 7, deadline=12 * j + 10)
            gap = M2 + 32 - D
            barrier(M2 + C.exbar, [], "ex", lds_tags=["exw"])
            barrier(gap, [("s2", j) for j in range(4, 8)], "mid")
            for n in range(20, 32): b2_add(n, gap)
            first_use = {0: list(range(32, 46)), 1: list(range(46, 50))}
        else:
            for g in range(1, 12):
                gap = 32 * g - D - (8 if g == 11 else 0)
                cv, tg = frag_plan(g, 32, [range(0, 8), range(8, 16)])
                barrier(gap, [slab(jj) for jj in {10: (20, 21, 22), 11: (23,)}.get(g, (2 * g, 2 * g + 1))] + cv, f"b{g}", lds_tags=tg)
                its = []
                for jj in ({8: (19,), 9: ()} if k1 == 28 else {9: ()}).get(g, (2 * g + 3, 2 * g + 4)):
                    if jj < 24: its += self.slab_dma(slab(jj))
                if g == 9:
                    for q_, jj in enumerate((20, 21, 22) if k1 == 28 else (21, 22)):
                        qD.adds(self.slab_dma(slab(jj)), earliest=gap, deadline=gap + 4 * q_, hard=False)
                        qD.add(lambda E: None, earliest=gap, deadline=gap + 6 + 5 * q_)
                k_ = g - (C.warm_gA if isA else C.warm_gB)
                if k_ in (0, 1, 2) and C.warm_all:
                    qD.adds(its, earliest=gap, deadline=gap + 16); its = []
                    qK.adds(self.warm_ops(isA)[k_], earliest=gap + C.warm_off, deadline=gap + C.warm_off + 14)
                if C.b2g <= g < C.b2g + 3 and warm: its += warm[g - C.b2g]
                if g == 6: its.append(tagload)
                for n in {10: range(32, 36), 11: range(36, 44)}.get(g, []): b2_add(n, gap)
                qD.adds(its, earliest=gap, deadline=gap + {1: 28, 9: 22, 10: 7}.get(g, 18))
            first_use = {0: list(range(44, 48)), 1: list(range(48, 56))}
        def xfree(reg): return M2 + nt2 * ((reg.lo + reg.n - 1) // 4) + nt2 - 1
        qFl.add(self.spin_check_tag(), earliest=M2 - 8, deadline=M2 - 4)
        def after(q, stage, tags):
            def arm(E):
                f = self.flag_store(stage, tags); p0 = E.pos; g0_ = E.gap
                fd = C.flagd if stage in (0, 2) else (C.flag1 if stage == 1 else C.flagl)
                f.ready = lambda E: ((E.pos - p0) * 4 + (E.gap - g0_) * 8 >= fd or (E.gap - g0_) * 33 >= fd
                                     or not any(x[2] in tags for x in E.vq))
                qFl.add(f, earliest=E.gap)
            q.add(arm)
        if not isA:
            for t in range(8):
                T = ACC1(t if t < 6 else t - 2)
                its = [accr(T[r], self.acc1(t)[r]) for r in range(16)] if t >= 6 else []
                qE.adds(its + self.h_epilogue(T, sStF, t, "h1"), earliest=nt1 * k1 + (32 - k1) * (t + 1) - 1,
                        deadline=M2 - 1 + (t if k1 > 28 else 0) if t < 4 else nt1 * 28 + 4 * t + 8, hard=(t < 4))
            after(qE, 0, ["h1"])
        else:
            self.attention(qE, xfree)
            n0 = self.exw_check[1]; nn = len(qE.items)
            for k in range(n0, nn):
                it, ear, dl, hd = qE.items[k]
                qE.items[k] = (it, ear, int(M2 + 8 + (M3 + C.att_end - M2 - 8) * (k - n0) / (nn - n0)), False)
            after(qE, 3, ["o"])
        schedule(E, mains[:M2], [qN, qK, qD, qH, qG, qB, qW, qFl, qE], lambda g: (C.cap1A if isA else C.cap1B) if g < nt1 * k1 else C.cap1t,
                 0, flush=False, vm_gap=C.vm1)
        assert qN.empty() and qH.empty()
        self.stamp("s2")

        qL = Q("a2"); qF = Q("fin", vm_age=60); qP = Q("poll", top=True)
        g0 = M3 if isA else M3 + C.gate0B
        for n_, dst in enumerate(self.parked):
            if dst.lo < 128: qR.add(accr(dst, a(aPARK + n_)), earliest=xfree(dst), deadline=min(g0, M3 - D) - 2)
        qR.add(valu("v_add_u32", vWQ, sM0B, vL16), earliest=xfree(vWQ), deadline=min(g0, M3 - D) - 2)
        tail = M2 + k0 * nt2; tl = 32 - k0
        for t in range(nt2):
            its = ([accr(E2T[r], ACC2(t)[r]) for r in range(16)] if isA else []) + self.h_epilogue(E2T if isA else ACC1(t), sSt2, t, "h2" if t < 2 else "h3")
            qE2.adds(its, earliest=tail + tl * t + tl - 1, deadline=tail + tl * t + tl + 8)
            if t == 1: after(qE2, 1 if isA else 2, ["h2"])
            if t == 3: after(qE2, 4, ["h3"])
        mains[M3]["pre"].append(lambda E: self.stamp("p2"))
        for n_ in range(72): mains[M3 + 2 * n_]["fix"].insert(0, lambda E, n_=n_: self.stamp(f"n{n_}"))
        gates = {0: g0, 32: M3 + 2 * (32 - C.la1), 40: M3 + 2 * (40 - C.la2), 56: M3 + 2 * (56 - C.la3),
                 64: M3 + 2 * (64 - (C.la4A if isA else C.la4B))}
        def chk_free(q):
            def f(E): assert q.empty(), ("A2 slot still in use", q.name, E.gap)
            f.ready = lambda E: q.empty()
            return f
        cur = 0
        for n in range(72):
            if n in gates:
                cur = gates[n]; st = step_info(n)[2]; n0 = n
                qP.add(self.poll_load(st), earliest=cur - C.polld, deadline=cur - C.polld + 2)
                qL.add(self.gate(st), earliest=cur, deadline=cur + 1)
                if n == 0 and isA: qP.items[-1] = (qP.items[-1][0], M3 + 1, M3 + 1, False)
            its = self.a2_load(n)
            qL.adds(its, earliest=cur, deadline=M3 + (2 * n if n < 72 - C.lastk else 72 - C.lastk + n) - C.a2lead, hard=False)
            need = M3 + (2 * n if n < 72 - C.lastk else 72 - C.lastk + n)
            qL.add(lambda E: None, earliest=cur, deadline=max(need - 6, M3 + 1 if isA else 0))
        if isA:
            def boundary(E):
                qs = [qFl, qE2, qE, qL, qB, qW, qU, qP]
                def flags():
                    while not qFl.empty() and (not hasattr(qFl.head()[0], "ready") or qFl.head()[0].ready(E)): step(E, qFl, qs)
                def one_vm(q):
                    while not q.empty() and q.head()[1] <= M3:
                        it = q.head()[0]
                        if hasattr(it, "ready") and not it.ready(E): return False
                        step(E, q, qs)
                        if is_vm(it) and not getattr(it, "dead", False): return True
                    return False
                left = len(qE.items) - qE.n; base = qE.n
                polled = gated = False; lastv = E.pos; nl = 0
                while not (qE2.empty() and qE.empty()):
                    a_, b_ = (qE2, qE) if not qE2.empty() else (qE, qE2)
                    h = a_.head()[0]
                    if not callable(h) and E.nops(h) > 0 and not b_.empty() and (callable(b_.head()[0]) or E.nops(b_.head()[0]) == 0): a_ = b_
                    elif not callable(h) and E.nops(h) > 0 and not qU.empty(): a_ = qU
                    step(E, a_, qs)
                    flags()
                    fr = (qE.n - base) / max(1, left)
                    if not polled and fr >= C.att_gate - 0.45: step(E, qP, qs); polled = True
                    if not gated and fr >= C.att_gate: step(E, qL, qs); gated = True
                    if E.pos - lastv >= 16:
                        if (gated and nl < 14 and one_vm(qL)): nl += 1; lastv = E.pos
                        elif one_vm(qB) or one_vm(qW): lastv = E.pos
                if not polled: step(E, qP, qs)
                if not gated: step(E, qL, qs)
                while nl < 12 and one_vm(qL): nl += 1; flags()
                E.pos += 1000; flags(); E.pos -= 1000
            mains[M3]["pre"].insert(0, boundary)
        b2q = list(range(50 if isA else 56, 72))
        prevpg = lambda n: max(k for k in range(n) if self.b2_chunk(k) == self.b2_chunk(n))
        for c in range(9):
            gap = M3 + 16 * c - D
            barrier(gap, [("b2", n) for n in range(8 * c, 8 * c + 8)] + (["xt"] if c == 7 else []), f"c{c}",
                    lds_tags=["sw", "xr"] if c == 8 else ())
            for n in first_use.get(c, []): mains[gap]["pre"].append(place(n))
            while b2q and L.last_use[("b2", prevpg(b2q[0]))] <= gap - 1: mains[gap]["pre"].append(place(b2q.pop(0)))
        assert not b2q
        RD = v(0, 16); SF = v(16, 16); XF = v(48, 16); XR = v(224, 8); tt = v(32, 4)
        vRW = vTR[0]; vRR = vTR[1]; vOW = vRINV; vOR = vNB; vOO = vTR[4]; vXD = vTR[5]; vXA = vG
        qF.add(chk_free(qE), earliest=M3 + 30); qF.add(chk_free(qE2), earliest=M3 + 30)
        its = [valu("v_lshrrev_b32", tt[0], 4, vL16), valu("v_and_b32", tt[1], 31, tt[0]),
               valu("v_lshrrev_b32", tt[2], 5, tt[0]), valu("v_lshlrev_b32", tt[2], 3, tt[2]),
               salu("s_lshr_b32", sT0, sM0B, 3), salu("s_add_u32", sT0, sT0, TB), valu("v_add_u32", vRW, sT0, vL16),
               valu("v_xor_b32", vRR, 8192, vRW),
               salu("s_and_b32", sT0, sW, 1), salu("s_lshl_b32", sT1, sT0, 12), salu("s_add_u32", sT1, sT1, TB + 16384),
               valu("v_lshlrev_b32", tt[3], 7, tt[1]), valu("v_add3_u32", vXA, tt[3], tt[2], sT1),
               valu("v_and_b32", tt[3], 7, tt[0]), valu("v_lshlrev_b32", tt[3], 4, tt[3]),
               salu("s_lshl_b32", sT1, sKH, 6), valu("v_xor_b32", tt[3], sT1, tt[3]), valu("v_add_u32", vXA, vXA, tt[3]),
               salu("s_mul_i32", sT0, sT0, 32 * 144, scc_w=False), salu("s_add_u32", sT0, sT0, sT1), salu("s_add_u32", sT0, sT0, TB),
               valu("v_mul_u32_u24", tt[1], 144, tt[1]), valu("v_add3_u32", vOW, tt[1], tt[2], sT0),
               valu("v_lshrrev_b32", tt[1], 3, tt[0]), valu("v_and_b32", tt[2], 0x70, vL16),
               valu("v_lshl_add_u32", vOO, tt[1], 10, tt[2]),
               valu("v_lshlrev_b32", tt[3], 4, tt[1]), valu("v_xor_b32", vXD, vOO, tt[3]),
               salu("s_mul_i32", sT0, sW, 16 * 144, scc_w=False), salu("s_add_u32", sT0, sT0, TB),
               valu("v_mul_u32_u24", tt[1], 144, tt[1]), valu("v_add3_u32", vOR, tt[1], tt[2], sT0),
               salu("s_lshl_b32", sXk, sW, 11), salu("s_add_u32", sXk, sXk, TB + 16384), salu("s_add_u32", sXs, sOut, 8192)]
        its += [vload(XR.sub(0, 4), vXD, SX, sOut), vload(XR.sub(4, 4), vXD, SX, sXs), valu("v_add_u32", vXD, sXk, vL16)]
        if C.pre_out: its += [self.touch(vOO, SOUT, sOut, dst=vSP[0]), self.touch(vOO, SOUT, sXs, dst=vSP[0])]
        qF.adds(its, earliest=M3 + 30, deadline=M3 + 64)
        qF.adds([ds_wr(vXD, XR.sub(4 * i, 4), 1024 * i, tag="xt") for i in range(2)], earliest=M3 + 96 - D, deadline=M3 + 112 - D - 2)
        its = []
        for a_ in range(4):
            its += [valu("v_xor_b32", tt[a_], 16 * a_, vXA), ds_rd(XR.sub(2 * a_, 2), tt[a_], 0, tag="xr")]
        qF.adds(its, earliest=M3 + 112 - D, deadline=M3 + 128 - D - 1)
        qF.adds([ds_wr(vRW, ACCS[1].sub(4 * i, 4), 1024 * i, tag="sw") for i in range(4)], earliest=M3 + 111, deadline=M3 + 128 - D)
        its = []
        for r in range(8):
            its += [valu("v_lshlrev_b32", XF[2 * r], 16, XR[r]), valu("v_and_b32", XF[2 * r + 1], sHI, XR[r])]
        qF.adds(its, earliest=M3 + 112)
        its = [ds_rd(SF.sub(4 * i, 4), vRR, 1024 * i) for i in range(4)]
        its += [valu("v_add_f32", SF[r], SF[r], ACCS[0][r]) for r in range(16)]
        CK = v(38, 2); C1 = v(40, 2)
        its += [valu("v_mov_b32", CK[0], 0xbfb8aa3b), valu("v_mov_b32", CK[1], 0xbfb8aa3b), valu("v_mov_b32", C1[0], 1.0), valu("v_mov_b32", C1[1], 1.0)]
        qF.adds(its, earliest=M3 + 128 - D)
        if C.lastk > 1:
            gl = M3 + 144 - C.lastk
            for x in range(len(qF.items)): qF.items[x] = (qF.items[x][0], qF.items[x][1], min(qF.items[x][2], gl + 1), True)
            qF.adds([ds_wr(vRW, ACCD[1].sub(4 * i, 4), 16384 + 1024 * i, tag="dw") for i in range(4)], earliest=gl, deadline=M3 + 142)
            def xch(E):
                E.wait_tags(lds=["dw"]); E.barrier(); self.stamp("sbar")
                for i in range(4): E.emit(ds_rd(RD.sub(4 * i, 4), vRR, 16384 + 1024 * i))
            mains[M3 + 143]["pre"].append(xch)
        cap2 = C.cap2A if isA else C.cap2B
        def capf(g):
            if not isA and not qE.empty(): return C.cap2h
            if g < tail + tl - 1: return cap2
            if g < M3: return C.cap2t
            if not qE2.empty(): return 40
            if g >= M3 + 144 - C.lastk: return C.capl
            return C.cap3 if qE.empty() else C.cap3x
        schedule(E, mains[M2:], [qFl, qP, qD, qG, qL, qB, qW, qU, qR, qE2, qE, qF], capf, M2, flush=False,
                 vm_gap=lambda g: C.vm1 if g < M3 else C.vm3)
        assert qL.empty() and qD.empty() and qB.empty() and qE.empty() and qE2.empty() and qFl.empty()
        self.stamp("lastm")
        while not qF.empty():
            it = qF.head()[0]; qF.n += 1; run_item(E, it)
        if C.lastk <= 1:
            for i in range(4): e(ds_wr(vRW, ACCD[1].sub(4 * i, 4), 16384 + 1024 * i, tag="dw"))
            E.wait_tags(lds=["dw"]); E.barrier()
            self.stamp("sbar")
            for i in range(4): e(ds_rd(RD.sub(4 * i, 4), vRR, 16384 + 1024 * i))
        G = ACCS[1]
        def pk(op, d, *src):
            r = set()
            for x in src: r |= ids(x)
            return I(f"{op} {d}, " + ", ".join(fmt(x) for x in src), "valu", r, ids(d))
        P2 = lambda reg, r: reg.sub(r, 2)
        for a_ in range(4):
            pp_ = (4 * a_, 4 * a_ + 2); rr = range(4 * a_, 4 * a_ + 4)
            for r in pp_: e(pk("v_pk_add_f32", P2(RD, r), P2(RD, r), P2(ACCD[0], r)))
            for r in pp_: e(pk("v_pk_mul_f32", P2(G, r), P2(RD, r), CK))
            for r in pp_: e(pk("v_pk_mul_f32", P2(RD, r), P2(RD, r), P2(SF, r)))
            for r in rr: e(valu("v_exp_f32", G[r], G[r]))
        for a_ in range(4):
            pp_ = (4 * a_, 4 * a_ + 2); rr = range(4 * a_, 4 * a_ + 4)
            for r in pp_: e(pk("v_pk_add_f32", P2(G, r), P2(G, r), C1))
            for r in rr: e(valu("v_rcp_f32", G[r], G[r]))
        for a_ in range(4):
            pp_ = (4 * a_, 4 * a_ + 2)
            for r in pp_: e(pk("v_pk_fma_f32", P2(RD, r), P2(RD, r), P2(G, r), P2(XF, r)))
            for d in range(2): e(valu("v_cvt_pk_bf16_f32", XR[2 * a_ + d], RD[4 * a_ + 2 * d], RD[4 * a_ + 2 * d + 1]))
            e(ds_wr(vOW, XR.sub(2 * a_, 2), 16 * a_))
        E.wait_all_lds(); E.barrier()
        for p in range(2): e(ds_rd(G.sub(4 * p, 4), vOR, 8 * 144 * p))
        for p in range(2): e(vstore(G.sub(4 * p, 4), vOO, SOUT, sXs if p else sOut, 0, fl=C.out_fl))
        self.stamp("end")
        if C.amp:
            l = self.lab("amp")
            E.line("s_waitcnt lgkmcnt(0)")
            if C.amp.startswith("sk"):
                E.line(f"buffer_load_dword v0, off, {SDBG}, 0 offset:4 sc1"); E.line("s_waitcnt vmcnt(0)"); E.line(f"v_readfirstlane_b32 {sT1}, v0"); E.line("s_nop 4")
                if C.amp == "skp": E.line(f"s_sub_u32 {sT0}, s{STAMP0}, {sT1}")
                else: E.line(f"s_sub_u32 {sT0}, {sT1}, s{STAMP0}")
                E.line(f"s_max_i32 {sT0}, {sT0}, 0")
            else:
                k0, k1 = [STAMP0 + 2 * int(x) for x in C.amp.split("-")]
                E.line(f"s_sub_u32 {sT0}, s{k1}, s{k0}")
            pass; E.line(f"s_lshl_b32 {sT0}, {sT0}, 2"); E.line(f"s_add_u32 {sT0}, {sT0}, s{STAMP0 + 16}")
            E.label(l)
            E.line("s_memrealtime s[84:85]"); E.line("s_waitcnt lgkmcnt(0)"); E.line(f"s_sub_u32 s84, s84, {sT0}")
            E.line("s_cmp_lt_i32 s84, 0"); E.line(f"s_cbranch_scc1 {l}")
        elif C.stamps:
            E.line("s_waitcnt lgkmcnt(0)")
            e(salu("s_lshl_b32", sT0, sWG, 2)); e(salu("s_add_u32", sT0, sT0, sW)); e(salu("s_lshl_b32", sT0, sT0, 7))
            e(salu("s_add_u32", sT0, sT0, WS_STAMP))
            for k in range(9):
                e(valu("v_mov_b32", v(0), s(STAMP0 + 2 * k))); e(vstore(v(0), None, SWS, sT0, 4 * k))
            e(accr(v(0), a(198))); e(vstore(v(0), None, SWS, sT0, 44))
            E.line("s_memrealtime s[84:85]"); E.line("s_getreg_b32 s86, hwreg(HW_REG_XCC_ID)"); E.line("s_waitcnt lgkmcnt(0)")
            e(valu("v_mov_b32", v(0), s(84))); e(vstore(v(0), None, SWS, sT0, 36))
            e(valu("v_mov_b32", v(0), s(86))); e(vstore(v(0), None, SWS, sT0, 40))
        E.line("s_endpgm")
        E.out += self.cold

    def epoch_publish(self):
        E = self.E
        l = self.lab("nopub")
        E.emit(salu("s_or_b32", sT0, sWG, sW))
        E.line(f"s_cbranch_scc1 {l}")
        E.line(f"s_mov_b32 {sT0}, 0x9e3779b1")
        E.line(f"v_mul_lo_u32 {vPOLL}, {vPOLL}, {sT0}")
        E.line(f"v_add_u32 {vPOLL}, 0x7f4a7c15, {vPOLL}")
        E.line(f"v_max_u32 {vPOLL}, 1, {vPOLL}")
        E.line(f"s_mov_b32 {sT0}, {WS_EPOCH}")
        E.line(f"buffer_store_dword {vPOLL}, off, {SWS}, {sT0} sc1")
        if C.amp.startswith("sk"):
            E.line(f"v_mov_b32 v0, s{STAMP0}"); E.line(f"buffer_store_dword v0, off, {SDBG}, 0 offset:4 sc1"); E.line("s_waitcnt vmcnt(0)")
        E.line(f"buffer_store_dword {vPOLL}, off, {SDBG}, 0 sc1")
        E.label(l)

    def attention(self, q, xfree):
        M2 = self.M2
        Q0, Q1, K0, K1, V0, V1 = [ACC1(t) for t in range(6)]
        cvt = lambda d, x, y: valu("v_cvt_pk_bf16_f32", d, x, y)
        def pack(dst, src, n=8): return [cvt(dst[i], src[2 * i], src[2 * i + 1]) for i in range(n)]
        its = pack(K0, K0) + pack(K0.sub(8, 8), K1)
        its += [ds_wr(vEX, K0.sub(4 * h, 4), 6144 + 1024 * h, tag="exw") for h in range(4)]
        its += pack(V0, V0) + pack(V0.sub(8, 8), V1)
        bar2 = M2 + C.exbar
        q.adds(its, earliest=M2 - 21, deadline=bar2 - 1)
        its = [ds_wr(vEX, V0.sub(4 + 8 * j, 4), 6144 + 4096 + 1024 * j, tag="exw") for j in range(2)]
        its += [accr(NT[i], aHACC[0][i]) for i in range(4)] + [accr(NT[4 + i], aHACC[1][i]) for i in range(4)]
        hk = v(NT[0].lo, 2); hv = v(NT[4].lo, 2)
        its += [cvt(NT[0], NT[0], NT[1]), cvt(NT[1], NT[2], NT[3]), cvt(NT[4], NT[4], NT[5]), cvt(NT[5], NT[6], NT[7])]
        its += [salu("s_lshl_b32", sT0, sW, 10), salu("s_add_u32", sT0, sT0, 256), valu("v_add_u32", NT[2], sT0, vHW),
                salu("s_lshr_b32", sT0, sW, 1), salu("s_lshl_b32", sT0, sT0, 10), salu("s_and_b32", sT1, sW, 1),
                salu("s_lshl_b32", sT1, sT1, 8), salu("s_add_u32", sT0, sT0, sT1), valu("v_add_u32", NT[3], sT0, vHW),
                ds_wr(NT[2], hk, 0, tag="exw"), ds_wr(NT[3], hv, 4096, tag="exw")]
        q.adds(its, earliest=M2 - 1, deadline=bar2 - 1)
        self.exw_check = (q, len(q.items))
        q.adds(pack(Q0, Q0) + pack(Q0.sub(8, 8), Q1), earliest=M2)
        MASK = v(208, 24)
        its = [accr(vRINV, a(196)), accr(vNB, a(197)), smov(sONE, NEG)]
        for r in range(24):
            rr = r if r < 16 else r - 8
            its += [valu("v_bfe_i32", MASK[r], vNB if r < 16 else vRINV, 8 * (rr >> 2) + (rr & 3), 1), valu("v_and_b32", MASK[r], sONE, MASK[r])]
        q.adds(its, earliest=M2)
        q.add(lambda E: self.mark.update(masks=True), earliest=M2)
        SC = K1; SP = v(0, 16); U = v(16, 8); P = v(24, 12); O = Q1
        mx, tm, mc = vRINV, vNB, vW16
        sums = [vHX, vH]; t2 = vTR[4]
        def add(i, ear=0):
            w = [x for x in i.w if x < 128]
            e_ = max([xfree(v(x)) for x in w], default=0)
            q.add(i, earliest=max(e_, ear))
        def qk(h, which):
            if which == 0: add(mfma(SC, K0.sub(4 * h, 4), Q0.sub(4 * h, 4), MASK.sub(0, 16)))
            else: add(mfma(SP, aKP[h], Q0.sub(4 * h, 4), MASK.sub(8, 16)))
        def fin(h):
            o = 8 * (h & 1); sm = sums[h & 1]
            l = [valu("v_rcp_f32", sm, sm)]
            l += [valu("v_mul_f32", O[o + r], O[o + r], sm) for r in range(8)]
            l += [cvt(O[o + r], O[o + 2 * r], O[o + 2 * r + 1]) for r in range(4)]
            l.append(self.a2_store(O.sub(o, 4), sStF, h, "o"))
            return l
        qk(0, 0)
        q.adds([ds_rd(aKP[h], vEX, 1024 * h) for h in range(4)] + [ds_rd(aVP[j], vEX, 4096 + 1024 * j) for j in range(2)], earliest=bar2)
        qk(0, 1)
        for h in range(4 if not C.abl_att else 1):
            for i in range(4): add(valu("v_max_f32", U[i], SC[2 * i], SC[2 * i + 1]))
            for i in range(4, 8): add(valu("v_max3_f32", U[i], SC[2 * i], SC[2 * i + 1], SP[2 * i]))
            if h < 3: qk(h + 1, 0)
            for i in range(4, 8): add(valu("v_max_f32", U[i], U[i], SP[2 * i + 1]))
            add(valu("v_max3_f32", mx, U[0], U[1], U[2])); add(valu("v_max3_f32", tm, U[3], U[4], U[5]))
            if h < 3: qk(h + 1, 1)
            add(valu("v_max3_f32", mx, mx, U[6], U[7])); add(valu("v_max_f32", mx, mx, tm))
            add(valu("v_mov_b32", tm, mx))
            fl = fin(h - 1) if h > 0 else []
            for x in fl[:3]: add(x)
            add(swap32(mx, tm)); add(valu("v_max_f32", mx, mx, tm))
            add(I(f"v_mul_f32 {mc}, -{mx}, {sCSC}", "valu", mx.ids() | sCSC.ids(), mc.ids()))
            for x in fl[3:]: add(x)
            for i in range(8): add(valu("v_fma_f32", U[i], U[i], sCSC, mc))
            for i in range(8): add(valu("v_exp_f32", U[i], U[i]))
            sm = sums[h & 1]; j = h >> 1
            for i in range(4):
                add(cvt(P[i], U[i], U[i])); add(valu("v_and_b32", P[i], vPM, P[i]))
            add(valu("v_add_f32", sm, U[0], U[1])); add(valu("v_add_f32", tm, U[2], U[3]))
            add(mfma(O, V0.sub(8 * j, 4), P.sub(0, 4), 0))
            for i in range(4):
                add(cvt(P[8 + i], U[4 + i], U[4 + i])); add(valu("v_and_b32", P[4 + i], vMHC, P[8 + i]))
            add(valu("v_add_f32", t2, U[4], U[5])); add(valu("v_add_f32", sm, sm, tm))
            add(mfma(O, V0.sub(8 * j + 4, 4), P.sub(4, 4), O))
            for i in range(4): add(valu("v_and_b32", P[8 + i], vMHP, P[8 + i]))
            add(valu("v_add_f32", tm, U[6], U[7])); add(valu("v_add_f32", t2, t2, tm))
            add(mfma(O, aVP[j], P.sub(8, 4), O))
            add(valu("v_add_f32", sm, sm, t2))
            add(valu("v_mov_b32", tm, sm))
            add(swap32(sm, tm)); add(valu("v_add_f32", sm, sm, tm))
        for x in fin(3): add(x)

    def build(self):
        E = self.E
        self.stamp("t00")
        E.emit(scmp("s_cmp_ge_u32", sWG, 256))
        E.line("s_cbranch_scc1 L_end")
        E.line("s_load_dwordx16 s[8:23], s[0:1], 0")
        E.line("s_load_dwordx4 s[24:27], s[0:1], 64")
        E.emit(salu("s_lshr_b32", sJ, sWG, 3))
        self.code_touch()
        E.emit(I("s_bitcmp1_b32 s6, 3", "salu", sJ.ids(), {SCC}))
        E.line("s_cbranch_scc1 L_typeB")
        snap = E.snapshot()
        self.body("A")
        E.label("L_typeB")
        E.restore(snap)
        self.body("B")
        E.label("L_end")
        E.line("s_endpgm")
        E.label("L_code_end")
        E.out.append(".p2align 12")
        head = open(os.path.join(os.path.dirname(os.path.abspath(__file__)), "head.txt")).read()
        txt = head + f"""; @launch grid=(256,1,1) block=(256,1,1) lds=163840
.amdgcn_target "amdgcn-amd-amdhsa--gfx950"
.text
.globl {NAME}
.p2align 8
.type {NAME},@function
{NAME}:
""" + E.text() + f""".section .rodata,"a"
.p2align 6
.amdhsa_kernel {NAME}
  .amdhsa_next_free_vgpr 512
  .amdhsa_next_free_sgpr 102
  .amdhsa_accum_offset 256
  .amdhsa_group_segment_fixed_size 0
  .amdhsa_kernarg_size 80
  .amdhsa_user_sgpr_count 2
  .amdhsa_user_sgpr_kernarg_segment_ptr 1
  .amdhsa_system_sgpr_workgroup_id_x 1
.end_amdhsa_kernel
"""
        return txt


def place_pads(txt):
    import subprocess, re, tempfile
    sys.path.insert(0, "cdna_kernels")
    from cdna_launch import with_harness_metadata
    lines = txt.split("\n")
    probe = []
    for n, l in enumerate(lines):
        if l.startswith("    ") and not l.strip().startswith(";") and not l.strip().startswith("."): probe.append(f"LP_{n}:")
        probe.append(re.sub(r"L_pad[AB]_\d+", "L_end", l))
    d = tempfile.mkdtemp()
    open(d + "/p.s", "w").write(with_harness_metadata("\n".join(probe), NAME, 10, launch_lists=True))
    subprocess.run(["clang", "-x", "assembler", "-target", "amdgcn-amd-amdhsa", "-mcpu=gfx950", d + "/p.s", "-o", d + "/p.co"], check=True)
    sym = subprocess.run(["llvm-objdump", "-t", d + "/p.co"], capture_output=True, text=True).stdout
    addr = {int(m.group(2)): int(m.group(1), 16) for m in re.finditer(r"([0-9a-f]{16}) .* LP_(\d+)", sym)}
    shift = 0; typ = None; pads = {"A": [], "B": []}; prev = None
    for n, l in enumerate(lines):
        if l.startswith(";PADS_FROM"): typ = l.split()[1]
        if l.startswith("L_typeB:") or l.startswith("L_end:"): typ = None
        if n in addr:
            a_ = addr[n] + shift
            if typ and prev is not None and prev // 4096 != a_ // 4096:
                pads[typ].append(n); shift += 4
            prev = a_
    out = []
    for n, l in enumerate(lines):
        for t in "AB":
            if n in pads[t]:
                k = pads[t].index(n)
                out.append(f"L_pad{t}_{k}:")
                out.append(f"    s_cbranch_execz " + (f"L_pad{t}_{k + 4}" if k + 4 < len(pads[t]) else f"L_back{t}"))
        out.append(l)
    print("pads", {t: len(pads[t]) for t in pads}, "kernel at", hex(min(addr.values())))
    assert min(len(pads[t]) for t in pads) >= 4
    return "\n".join(out)


if __name__ == "__main__":
    g = Gen()
    txt = g.build()
    if C.pads: txt = place_pads(txt)
    open(sys.argv[1], "w").write(txt)
    print("instructions:", g.E.ninst)
```

```python
import sys, os
sys.path.insert(0, os.path.dirname(os.path.abspath(__file__)))
from emit import *

NAME = "recurrent_scan__sliding_local_dilated__glu_gated_bilinear__prompt_kernel"

class Cfg:
    stamps = False
    stset = "a"
    rt = False
    D = 6
    nahead = 8; cap1A = 7.0; cap1B = 6.8; cap1t = 12.0; cap2h = 9.0; cap2A = 7.5; cap2B = 7.0; cap3 = 7.0; cap2t = 7.5; cap3x = 20.0
    npre = 120
    att_gate = 0.7; gate0B = -44; vm1 = 2.0; vm3 = 8.0; nrawA = 0; nrawB = 14; warm_gA = 1; warm_gB = 1; warm_off = 12; warm_mode = 0; scal_span = 30; b2gA = 4; b2gB = 3; raw0A = 130; raw0B = 270
    rot = True; rot_half = False
    pads = True
    la1 = 14; la2 = 14; la3 = 18; la4A = 13; la4B = 18
    polld = 34
    flagd = 600
    b2lead = 24; a2lead = 30; att_end = 30
    dbg_st = False; dbg_a2 = 0; dbg_dump = False; dbg_bar = False
    amp = ""; ampsel = -1; ampx = -1
    lg_old = 10; vmfirst = False
    abl_norm = False; abl_tr = 0; abl_tr2 = False; abl_att = False
    bd_pace = 16; bd_nl = 14; bd_min = 12
    fifo0 = 3.0; per3 = 56.0; poll2 = 0
    fs = 1024; skip3 = False; rot3 = True
    ctrot = 0; k1B = 30; flstride = 1024
    lastk = 1; capl = 7.0
    wsoff = 0; pre_out = False
    rot2 = True; flagl = 300; flag1 = 300
    raw = True; raw0 = 84
    npre_norm = 1; npre_normA = 1; hn_at = 4; dots_first = 6; exbar = 12; npoll = 3
    w3early = True
    w0at = 4; touch_w0 = 4; x2early = False
    touch_code = True
    touch_b2 = False; b2g = 4
    warm_all = True; warm_byA = False
    a2_fl = "sc1"; st_fl = "sc1"; pre_a2 = 0; x_fl = ""; w_fl = ""; b2_fl = ""; out_fl = ""
    spin_max = 1 << 16

C = Cfg()
import emit as _emit
for arg in sys.argv[2:]:
    k, val = arg.split("=")
    old = getattr(C, k)
    setattr(C, k, (val not in ("0", "False")) if isinstance(old, bool) else type(old)(val.replace("+", " ")))

Emitter.LG_OLD = C.lg_old
WS_FLAG = 0x1C00000
WS_EPOCH = 0x1D00000
WS_STAMP = 0x1E00000
WS_SIZE = 0x1F00000
FS = C.fs
FLO = [0, 128, 256, 512, 640]
TB = 131072

sWG = s(2); sW = s(3); sRB = s(4); sIDX = s(5); sJ = s(6); sXCD = s(7)
SX, SWO, SWG_, SWD, SDBG, SP5, SWU, SOUT, SWS, SP9 = [s(8 + 4 * i, 4) for i in range(10)]
SQKV = SWG2 = SP5; SWH = SWU2 = SP9
(sA2s, sB2s, sM0B, sT0, sT1, sS1, sS2, sS2b, sTAG, sFLW, sFLR, sStF, sStH, sSt2, sHI, sONE, sSPIN, sT2, sOut, sT5,
 sRT, sCT, sKH, sCSC, sXs, sM0T, sXo, sXk, sROT, sC512, sA2c0, sA2c1, sA2c2, sB2c0, sB2c1, sB2c2) = [s(48 + i) for i in range(36)]
sA2c = [sA2c0, sA2c1, sA2c2]; sB2c = [sB2c0, sB2c1, sB2c2]
sHo = sB2s
sG3 = [sB2c0, s(0), s(1), s(5)]; sG1 = [sB2c2, s(6), s(7), sC512]
sPC = s(48, 2)
STAMP0 = 84

def X(ks): return v(4 * ks, 4)
def ACC1(t): return v(128 + 16 * t, 16)
NT = [v(224 + i) for i in range(8)]
vTR = [v(232 + i) for i in range(6)]
vG = v(238); vU = v(239); vH = v(240)
vB2 = v(241); vTW = v(242)
vL16 = v(243); vRINV = v(244); vNB = v(245); vW16 = v(246); vHX = v(247)
vTAG = v(248); vPOLL = v(249); vP4 = v(250); vTB = vTAG
vEX = v(251); vHW = v(252); vPM = v(253); vMHC = v(254); vMHP = v(255)
vTR2T = [v(42), v(43)]; vTR2 = [v(44), v(45)]; vWQ = v(46)
vPL = [vPOLL, v(36), v(37), v(47)]
vA2O = vTW
vSP = [v(39), v(41)]
PARKED = vTR2T + vTR2
E2T = v(48, 16)
ACCD = [v(64, 16), v(80, 16)]; ACCS = [v(96, 16), v(112, 16)]
def WF(m): return a(4 * (m % 12), 4)
def ACC2(t): return a(48 + 16 * t, 16)
aMASK = a(112, 24); aKP = [a(136 + 4 * i, 4) for i in range(4)]; aVP = [a(152 + 4 * i, 4) for i in range(2)]
aHACC = [a(160, 4), a(164, 4)]; aXH = [a(168, 4), a(172, 4)]
aW16 = [[a(176, 4), a(180, 4)], [a(184, 4), a(188, 4)]]
aPARK = 192
aDUM0 = a(199); vDUM1 = v(37)

NEG = 0xf149f2ca


class LDSMap:
    def __init__(self):
        self.own = {c: ("x", c // 4) for c in range(32)}
        for c in range(32, 40): self.own[c] = ("T",)
        self.last_use = {}
        self.visible = set()
        self.bar_m = -1
        self.xread = set()
    def alloc(self, obj, chunks):
        for c in chunks:
            o = self.own[c]
            if o[0] == "x": assert o[1] in self.xread, (obj, c, o)
            else: assert self.last_use[o] <= self.bar_m, (obj, c, o, self.last_use[o], self.bar_m)
            self.own[c] = obj
    def check_read(self, obj, chunks):
        assert obj in self.visible, ("not visible", obj)
        for c in chunks: assert self.own[c] == obj, (obj, c, self.own[c])


SHIFT = [48, 8, 16]


def step_info(n):
    if n < 32: return 16 + 12 * (n >> 3) + (n & 7), 0, 0
    if n < 40: return n - 32, 1, 1
    if n < 56: return 112 + n - 40, 2, 3
    hi = n >= 64; k = (n - 56) & 7
    return 24 + 12 * (k >> 1) + (k & 1) + 2 * hi, 0, (4 if hi else 2)


class Gen:
    def __init__(self):
        self.E = Emitter()
        self.E.trace = bool(os.environ.get("TRACE"))
        self.nlabel = 0
        self.nstamp = 0

    def lab(self, base):
        self.nlabel += 1
        return f"L_{base}_{self.nlabel}"

    STS = {"a": ["t0", "issued", "x0", "xdone", "s1", "s2", "p2", "lastm", "end"],
           "b": ["t0", "g0a", "g0b", "p2", "g1a", "g1b", "g2a", "g2b", "end"],
           "e": ["t0", "karg", "issued", "rest", "pads", "x0", "x1", "x3", "end"],
           "f": ["t0", "x4", "x5", "x6", "x7", "xdone", "s1", "b1", "end"],
           "g": ["t0", "s1", "b1a", "b1", "b2a", "b2", "b3a", "b3", "end"],
           "h": ["t0", "b3", "b4", "b5", "b6", "b7", "b8", "s2", "end"],
           "j": ["t0", "g2b", "n48", "n55", "n56", "n60", "n64", "n71", "end"],
           "k": ["t0", "g0b", "n0", "n4", "n8", "n16", "n24", "n31", "end"],
           "l": ["t0", "g1b", "g3b", "n31", "n32", "n39", "n40", "n47", "end"],
           "m": ["t0", "n0", "n8", "n16", "n24", "n32", "n40", "n56", "end"],
           "n": ["t0", "c0a", "c0", "c1a", "c1", "c2a", "c2", "c3a", "c3"],
           "o": ["t0", "c4a", "c4", "c5a", "c5", "c6a", "c6", "c7a", "c7"],
           "p": ["t0", "g0a", "g0b", "g1a", "g1b", "g3a", "g3b", "g2a", "g2b"],
           "q": ["t0", "s2", "f0a", "f0b", "g0a", "g0b", "f2a", "f2b", "end"],
           "r": ["t0", "s1", "b1", "b2", "b3", "b4", "b5", "b6", "b7"],
           "s": ["t0", "b7", "b8", "b9", "b10", "b11", "c0", "c1", "c2"],
           "t": ["n16", "n17", "n18", "n19", "n20", "n21", "n22", "n23", "n24"],
           "u": ["n40", "n41", "n42", "n43", "n44", "n45", "n46", "n47", "n48"],
           "v": ["n60", "n61", "n62", "n63", "n64", "n65", "n66", "n67", "n68"],
           "w": ["t00", "t0", "karg", "issued", "rest", "pads", "x0", "xdone", "end"],
           "x": ["t0", "issued", "pads", "x0", "x2", "x4", "x7", "bx", "s1"],
           "y": ["t0", "x4", "x5", "x6", "x7", "xdone", "bx", "s1", "b1"],
           "z": ["t0", "p2", "f2b", "f4b", "g2a", "g2b", "g4a", "g4b", "end"],
           "0": ["t0", "end"],
           "AMP": ["t0", "-1", "-2", "-3", "-4", "-5", "-6", "-7", "end"],
           "F": ["t0", "s1", "s2", "f0b", "f1b", "f3b", "f4b", "g3b", "g4b"],
           "G": ["t0", "g0a", "g0b", "g3a", "g3b", "g2a", "g2b", "g4a", "g4b"],
           "i": ["t0", "s2", "g0a", "g0b", "p2", "c1", "g1a", "g1b", "end"],
           "d": ["t0", "p2", "g1b", "g3a", "g3b", "g2a", "g2b", "lastm", "end"],
           "c": ["t0", "p2", "c1", "c3", "c5", "c7", "lastm", "sbar", "end"]}

    def stamp(self, name):
        if C.stset.startswith("B"):
            g = int(C.stset[1:]); self.STS[C.stset] = [f"b{g}"] + [f"b{g + k}{x}" for k in range(1, 5) for x in ("a", "")]
        if C.stset.startswith("N"): self.STS[C.stset] = [f"n{int(C.stset[1:]) + k}" for k in range(9)]
        if C.stamps and name in self.STS[C.stset]:
            k = self.STS[C.stset].index(name)
            self.E.line(f"{'s_memrealtime' if C.rt else 's_memtime'} s[{STAMP0 + 2 * k}:{STAMP0 + 2 * k + 1}]")

    def setup_first(self, typ):
        o = []; e = o.append
        lane = self.lane; vx = self.vx; t0, t1, t2 = v(201), v(202), v(203)
        e(valu("v_and_b32", lane, 63, v(0)))
        e(valu("v_lshrrev_b32", t0, 6, v(0)))
        e(salu("s_and_b32", sXCD, sWG, 7))
        e(rfl(sW, t0))
        e(salu("s_and_b32", sRB, sXCD, 1)); e(salu("s_lshl_b32", sRB, sRB, 3))
        e(salu("s_and_b32", sT0, sJ, 7)); e(salu("s_add_u32", sRB, sRB, sT0))
        e(salu("s_and_b32", sIDX, sXCD, 6)); e(salu("s_lshr_b32", sT0, sJ, 4)); e(salu("s_add_u32", sIDX, sIDX, sT0))
        e(valu("v_and_b32", t0, 7, lane)); e(valu("v_lshrrev_b32", t1, 4, lane)); e(valu("v_xor_b32", t0, t0, t1))
        e(valu("v_lshlrev_b32", t0, 4, t0))
        e(valu("v_lshrrev_b32", t1, 3, lane)); e(valu("v_lshlrev_b32", t1, 10, t1))
        e(valu("v_or_b32", vx[0], t0, t1)); e(valu("v_xor_b32", t2, 64, vx[0]))
        e(valu("v_add_u32", vx[1], 7168, t2)); e(valu("v_add_u32", vx[2], 2 * 7168, vx[0])); e(valu("v_add_u32", vx[3], 3 * 7168, t2))
        e(salu("s_lshl_b32", sM0B, sW, 15))
        e(salu("s_lshl_b32", sT0, sRB, 17)); e(salu("s_add_u32", sXo, sT0, sM0B))
        e(salu("s_lshr_b32", sT1, sJ, 3)); e(salu("s_add_u32", sT1, sT1, sJ)); e(salu("s_and_b32", sROT, sT1, (1 if C.rot_half else 3) if C.rot else 0))
        if C.rot_half: e(salu("s_lshl_b32", sROT, sROT, 1))
        e(salu("s_lshl_b32", sXk, sROT, 8))
        e(smov(SWS[2], WS_SIZE)); e(smov(SWS[3], 0x20000))
        if typ == "A":
            e(smov(SQKV[2], 512 * 3072)); e(smov(SQKV[3], 0x20000))
            hs = self.hs
            e(salu("s_sub_u32", sT1, sT0, 16 * 1024))
            e(valu("v_add_u32", hs[0], sT1, vx[0])); e(salu("s_add_u32", sT1, sT1, 1024)); e(valu("v_add_u32", hs[1], sT1, vx[1]))
            e(salu("s_add_u32", sHo, sW, sROT)); e(salu("s_and_b32", sHo, sHo, 3)); e(salu("s_lshl_b32", sHo, sHo, 8))
            e(salu("s_lshr_b32", sS2b, sM0B, 3))
            e(salu("s_lshl_b32", sT2, sIDX, 1))
            e(salu("s_lshl_b32", sS1, sIDX, 7))
        else:
            e(salu("s_mul_i32", sT2, sIDX, 12, scc_w=False)); e(salu("s_add_u32", sT2, sT2, 24))
            e(salu("s_lshl_b32", sS1, sT2, 5)); e(salu("s_sub_u32", sS1, sS1, 256))
            for d, sh in ((SWU, 1024), (SWG2, 1920), (SWU2, 2944)):
                e(smov(d[2], 512 * 3584 + sh)); e(smov(d[3], 0x20000))
        st1 = 3072 if typ == "A" else 3584
        e(salu("s_mul_i32", sT0, sROT, 128 * st1, scc_w=False)); e(salu("s_add_u32", sS1, sS1, sT0))
        if C.touch_w0:
            e(valu("v_and_b32", t0, C.touch_w0 - 1, lane)); e(valu("v_mul_u32_u24", t0, st1, t0))
            if typ == "A":
                e(valu("v_lshrrev_b32", t1, 4, lane)); e(valu("v_min_u32", t1, 2, t1)); e(valu("v_lshlrev_b32", t1, 10, t1))
            else:
                e(valu("v_bfe_u32", t1, lane, 4, 1)); e(valu("v_lshlrev_b32", t1, 7, t1))
            e(valu("v_add_u32", vTW, t0, t1))
            e(salu("s_and_b32", sT0, sJ, 4)); e(salu("s_and_b32", sT1, sXCD, 1)); e(salu("s_lshl_b32", sT1, sT1, 3))
            e(salu("s_add_u32", sT0, sT0, sT1)); e(salu("s_add_u32", sT0, sT0, sW))
            e(salu("s_mul_i32", sT0, sT0, C.touch_w0 * st1, scc_w=False)); e(salu("s_add_u32", sT5, sT0, sS1))
        return o

    def touch(self, voff, srd_, soff, imm=0, dst=None, fl=""):
        i = vload(dst or aDUM0, voff, srd_, soff, imm, fl=fl); i.w = set(); return i

    def consts(self, typ):
        o = []; e = o.append
        lane = self.lane
        t = [v(208 + i) for i in range(8)]
        li, g4, r2, hh, ub = v(190), v(191), v(192), v(193), v(194)
        e(valu("v_and_b32", li, 15, lane)); e(valu("v_lshrrev_b32", g4, 4, lane)); e(valu("v_lshrrev_b32", hh, 5, lane))
        e(valu("v_and_b32", ub, 1, g4)); e(valu("v_lshrrev_b32", r2, 2, li))
        e(valu("v_lshlrev_b32", vL16, 4, lane))
        e(smov(sHI, 0xffff0000)); e(smov(sONE, 0x3f803f80)); e(smov(sC512, 0x3b000000)); e(smov(sCSC, 0x3eb8aa3b))
        xa = self.xa
        e(valu("v_and_b32", t[0], 31, lane)); e(valu("v_lshlrev_b32", t[1], 7, t[0]))
        e(valu("v_bfe_u32", t[0], lane, 1, 3)); e(valu("v_xor_b32", t[0], t[0], hh)); e(valu("v_lshlrev_b32", t[0], 4, t[0]))
        e(valu("v_add_u32", t[1], sM0B, t[1]))
        for q in range(4):
            e(valu("v_xor_b32", t[2], 32 * q, t[0])); e(valu("v_add_u32", xa[q], t[1], t[2]))
        for r_ in self.acc: e(valu("v_mov_b32", r_, 0))
        if typ == "A":
            ha = self.ha
            e(valu("v_lshlrev_b32", t[1], 7, li)); e(valu("v_lshrrev_b32", t[0], 1, li)); e(valu("v_xor_b32", t[0], t[0], g4))
            e(valu("v_lshlrev_b32", t[0], 4, t[0]))
            e(salu("s_add_u32", sT0, sS2b, TB)); e(valu("v_add_u32", t[1], sT0, t[1]))
            e(valu("v_add_u32", ha[0], t[1], t[0])); e(valu("v_xor_b32", t[0], 64, t[0])); e(valu("v_add_u32", ha[1], t[1], t[0]))
            for r_ in self.hacc: e(valu("v_mov_b32", r_, 0))
            e(valu("v_add_u32", vHX, TB + 16384, vL16))
            e(valu("v_lshlrev_b32", ha[2], 3, lane)); e(valu("v_add_u32", ha[2], TB, ha[2])); e(valu("v_add_u32", ha[3], sS2b, ha[2]))
            e(valu("v_add_u32", ha[4], sS2b, vHX))
        e(salu("s_and_b32", sT0, sW, 1)); e(salu("s_lshl_b32", sT0, sT0, 4))
        e(salu("s_lshr_b32", sKH, sW, 1)); e(salu("s_lshl_b32", sT1, sKH, 3)); e(salu("s_add_u32", sT1, sT1, sT0))
        e(valu("v_lshrrev_b32", t[0], 3, lane)); e(valu("v_and_b32", t[1], 2, t[0])); e(valu("v_lshlrev_b32", t[1], 5, t[1]))
        e(valu("v_and_b32", t[2], 7, lane)); e(valu("v_lshlrev_b32", t[2], 4, t[2])); e(valu("v_xor_b32", t[2], t[2], t[1]))
        e(valu("v_add_u32", t[3], sT1, t[0]))
        if typ == "A":
            e(valu("v_mul_u32_u24", t[4], 3072, t[3])); e(valu("v_add_u32", vH, t[4], t[2]))
            e(salu("s_lshl_b32", sT0, sT0, 1))
            e(valu("v_lshrrev_b32", t[4], 2, lane)); e(valu("v_add_u32", t[4], sT0, t[4])); e(valu("v_mul_u32_u24", t[4], 3584, t[4]))
            e(valu("v_and_b32", t[5], 3, lane)); e(valu("v_lshlrev_b32", t[5], 4, t[5]))
            e(salu("s_lshl_b32", sT1, sKH, 5)); e(valu("v_xor_b32", t[5], sT1, t[5]))
            e(valu("v_add_u32", vG, t[4], t[5]))
            e(salu("s_lshl_b32", sS2, sT2, 5))
            e(smov(SWH[2], 512 * 3584)); e(smov(SWH[3], 0x20000))
        else:
            e(valu("v_mul_u32_u24", t[4], 3584, t[3])); e(valu("v_add_u32", vG, t[4], t[2]))
            e(valu("v_xor_b32", t[5], 32, t[2])); e(valu("v_add_u32", vU, t[4], t[5]))
            e(salu("s_mul_i32", sT0, sT0, 3584, scc_w=False))
            e(salu("s_lshl_b32", sS2, sT2, 5)); e(salu("s_add_u32", sS2, sS2, sT0))
        e(salu("s_mul_i32", sT0, sROT, 128 * 3584, scc_w=False)); e(salu("s_add_u32", sS2, sS2, sT0))
        e(valu("v_and_b32", vP4, 3, lane)); e(valu("v_lshlrev_b32", vP4, 2, vP4))
        e(valu("v_lshl_add_u32", vB2, t[0], 10, t[2]))
        if C.warm_all:
            ww = self.ww
            e(valu("v_min_u32", ww[0], 13, lane)); e(valu("v_lshlrev_b32", ww[0], 7, ww[0])); e(valu("v_lshlrev_b32", ww[1], 5, vP4))
            e(valu("v_and_b32", ww[2], 15 if typ == "A" else 7, lane)); e(valu("v_mul_u32_u24", ww[2], 3584, ww[2]))
        e(valu("v_lshlrev_b32", t[0], 7, r2))
        e(valu("v_and_b32", t[1], 3, lane)); e(valu("v_lshlrev_b32", t[1], 3, t[1])); e(valu("v_add_u32", t[0], t[0], t[1]))
        e(valu("v_and_b32", t[2], 2, r2))
        e(valu("v_or_b32", t[3], t[2], ub)); e(valu("v_lshlrev_b32", t[3], 5, t[3]))
        e(valu("v_lshlrev_b32", t[4], 16, hh)); e(valu("v_add_u32", t[4], t[4], t[0]))
        if typ == "A":
            for j in range(2):
                e(valu("v_xor_b32", t[6], 64 * j, t[3])); e(valu("v_add_u32", vTR[4 + j], t[6], t[4]))
            e(valu("v_lshlrev_b32", t[6], 3, hh)); e(valu("v_add_u32", t[6], t[6], r2)); e(valu("v_lshlrev_b32", t[6], 6, t[6]))
            e(valu("v_lshlrev_b32", t[7], 16, ub)); e(valu("v_add3_u32", t[6], t[6], t[7], t[1]))
            e(valu("v_lshlrev_b32", t[7], 5, ub)); e(valu("v_add_u32", vTR[0], t[6], t[7]))
            e(valu("v_xor_b32", t[7], 32, t[7])); e(valu("v_add_u32", vTR[1], t[6], t[7]))
        else:
            e(valu("v_lshlrev_b32", t[5], 10, ub)); e(valu("v_add_u32", t[5], t[5], t[4]))
            for tt in range(4):
                e(valu("v_xor_b32", t[6], 32 * tt, t[3])); e(valu("v_add_u32", vTR[tt], t[6], t[5]))
        def park(reg, s0_, s1_):
            names = [str(x) for x in self.parked]
            if str(reg) in names: e(valu("v_add_u32", t[7], s0_, s1_)); e(accw(a(aPARK + names.index(str(reg))), t[7]))
            else: e(valu("v_add_u32", reg, s0_, s1_))
        e(valu("v_lshlrev_b32", t[4], 9, hh)); e(valu("v_add_u32", t[4], t[4], t[0]))
        e(salu("s_lshl_b32", sT0, sKH, 6)); e(valu("v_xor_b32", t[6], sT0, t[3]))
        e(valu("v_add_u32", t[5], t[6], t[4])); e(valu("v_xor_b32", t[6], 64, t[5]))
        e(salu("s_lshl_b32", sT0, sKH, 16)); e(salu("s_lshl_b32", sT1, sKH, 11)); e(salu("s_add_u32", sT1, sT1, TB))
        for j in range(2):
            park(self.tr2[j], sT0, t[5 + j]); park(self.tr2t[j], sT1, t[5 + j])
        if typ == "A":
            e(valu("v_lshlrev_b32", t[4], 16, ub)); e(valu("v_lshlrev_b32", t[5], 15, hh)); e(valu("v_add3_u32", t[4], t[4], t[5], t[0]))
            e(valu("v_xor_b32", t[6], sW, t[2])); e(valu("v_lshlrev_b32", t[6], 5, t[6])); e(valu("v_add_u32", vW16, t[4], t[6]))
            e(salu("s_mul_i32", sT0, sW, 6144, scc_w=False)); e(salu("s_add_u32", sT0, sT0, TB)); e(valu("v_add_u32", vEX, sT0, vL16))
            e(valu("v_lshlrev_b32", t[4], 5, ub)); e(valu("v_add_u32", t[4], t[4], li)); e(valu("v_lshlrev_b32", t[4], 4, t[4]))
            e(valu("v_lshlrev_b32", t[5], 3, hh)); e(smov(sT0, TB)); e(valu("v_add3_u32", vHW, t[4], t[5], sT0))
            q = t[0]; bb = v(t[2].lo, 2)
            e(valu("v_and_b32", q, 31, lane)); e(valu("v_add_u32", t[1], 18, q))
            e(valu("v_mov_b32", t[4], 0x5555)); e(valu("v_mov_b32", t[5], 0))
            e(valu("v_lshlrev_b64", bb, t[1], v(t[4].lo, 2)))
            e(salu("s_or_b32", sT1, sRB, sW)); e(salu("s_cselect_b32", sT1, -1, 0, scc_w=False, scc_r=True))
            e(valu("v_and_b32", bb[0], sT1, bb[0]))
            e(valu("v_lshlrev_b32", t[1], 2, hh))
            e(valu("v_lshrrev_b32", bb[0], t[1], bb[0])); e(valu("v_lshrrev_b32", bb[1], t[1], bb[1]))
            e(valu("v_not_b32", bb[0], bb[0])); e(valu("v_not_b32", bb[1], bb[1]))
            e(accw(a(196), bb[0])); e(accw(a(197), bb[1]))
            e(valu("v_and_b32", t[2], 1, q)); e(valu("v_lshlrev_b32", t[2], 4, t[2]))
            e(valu("v_mov_b32", t[3], 0xffff)); e(valu("v_lshlrev_b32", vPM, t[2], t[3]))
            e(valu("v_bfe_i32", t[2], q, 4, 1)); e(valu("v_and_b32", vMHC, t[2], vPM)); e(valu("v_xor_b32", vMHP, vMHC, vPM))
        return o

    def scalars(self, typ):
        o = []; e = o.append
        e(salu("s_and_b32", sRT, sJ, 3)); e(salu("s_lshr_b32", sCT, sJ, 2))
        if C.ctrot: e(salu("s_add_u32", sCT, sCT, C.ctrot)); e(salu("s_and_b32", sCT, sCT, 7))
        e(salu("s_lshl_b32", sCT, sCT, 7))
        e(salu("s_lshl_b32", sT0, sXCD, 3)); e(salu("s_lshl_b32", sT1, sRT, 1)); e(salu("s_add_u32", sT0, sT0, sT1))
        e(salu("s_and_b32", sT1, sW, 1)); e(salu("s_add_u32", sT0, sT0, sT1))
        e(salu("s_lshl_b32", sFLR, sT0, 1)); e(salu("s_add_u32", sFLR, sFLR, sKH))
        e(salu("s_mul_i32", sFLR, sFLR, C.flstride, scc_w=False)); e(salu("s_add_u32", sFLR, sFLR, WS_FLAG))
        e(salu("s_mul_i32", sTAG, sT0, 144 * FS, scc_w=False))
        e(salu("s_lshl_b32", sOut, sT0, 15)); e(salu("s_and_b32", sOut, sOut, 0xffff7fff)); e(salu("s_add_u32", sOut, sOut, sCT))
        e(salu("s_lshr_b32", sT0, sM0B, 1)); e(salu("s_add_u32", sOut, sOut, sT0))
        e(salu("s_lshl_b32", sT1, sT1, 13)); e(salu("s_add_u32", sT1, sT1, sCT))
        for c_ in range(3):
            e(salu("s_mul_i32", sT0, sKH, SHIFT[c_] * FS, scc_w=False)); e(salu("s_add_u32", sA2c[c_], sTAG, sT0))
            e(salu("s_mul_i32", sT0, sKH, SHIFT[c_] * 16384, scc_w=False)); e(salu("s_add_u32", sB2c[c_], sT0, sT1))
        e(salu("s_lshl_b32", sM0T, sW, 10)); e(salu("s_add_u32", sM0T, sM0T, TB))
        e(salu("s_lshl_b32", sT0, sRB, 2)); e(salu("s_add_u32", sT0, sT0, sW))
        e(salu("s_mul_i32", sT1, sT0, 144, scc_w=False))
        e(salu("s_add_u32", sSt2, sT1, sT2)); e(salu("s_mul_i32", sSt2, sSt2, FS, scc_w=False))
        if typ == "A":
            e(salu("s_mul_i32", sStF, sT2, FS, scc_w=False)); e(salu("s_add_u32", sStF, sStF, sSt2)); e(salu("s_add_u32", sStF, sStF, 112 * FS))
        else:
            e(salu("s_sub_u32", sStF, sSt2, 8 * FS))
        if C.skip3:
            e(valu("v_add_u32", vA2O, 640, vL16)); e(valu("v_lshrrev_b32", vA2O, 10, vA2O)); e(valu("v_lshl_add_u32", vA2O, vA2O, 7, vL16))
        else: e(valu("v_mov_b32", vA2O, vL16))
        e(salu("s_lshl_b32", sT0, sT0, 1)); e(salu("s_lshr_b32", sT1, sIDX, 2)); e(salu("s_add_u32", sT0, sT0, sT1))
        e(salu("s_mul_i32", sT0, sT0, C.flstride, scc_w=False))
        e(salu("s_and_b32", sT1, sIDX, 3)); e(salu("s_lshl_b32", sT1, sT1, 2))
        e(salu("s_add_u32", sT0, sT0, sT1)); e(salu("s_add_u32", sFLW, sT0, WS_FLAG))
        e(smov(SOUT[2], 0x200000)); e(smov(SOUT[3], 0x20000))
        if C.rot3:
            e(salu("s_lshr_b32", sT0, sB2c0, 4)); e(salu("s_sub_u32", sA2c0, sA2c0, sT0))
            e(salu("s_lshr_b32", sT0, sB2c2, 4)); e(salu("s_sub_u32", sA2c2, sA2c2, sT0))
            for g in (3, 2, 1, 0):
                e(salu("s_add_u32", sT0, sRT, g)); e(salu("s_and_b32", sT0, sT0, 3)); e(salu("s_lshl_b32", sT0, sT0, 16))
                e(salu("s_add_u32", sG1[g], sB2c2, sT0))
                e(salu("s_mul_i32", sT0, sT0, 3, scc_w=False)); e(salu("s_add_u32", sG3[g], sB2c0, sT0))
        return o

    def warm_ops(self, isA):
        ww = self.ww; nr = 16 if isA else 8
        o = [salu("s_and_b32", sT5, sW, 1 if isA else 3), salu("s_mul_i32", sT5, sT5, nr, scc_w=False),
             salu("s_lshl_b32", sXk, sRB, 5), salu("s_add_u32", sT5, sT5, sXk), salu("s_mul_i32", sT5, sT5, 3584, scc_w=False),
             salu("s_lshl_b32", sXk, sT2, 5), salu("s_add_u32", sT5, sT5, sXk)]
        o += [self.touch(ww[2], SWH, sT5)] if isA else [self.touch(ww[2], SWG_, sT5), self.touch(ww[2], SWU, sT5, 1024)]
        fl = [self.touch(ww[0], SWS, sFLR, fl="sc1")]
        if not C.warm_byA:
            o1 = [salu("s_lshl_b32", sXk, sWG, 2), salu("s_add_u32", sXk, sXk, sW), salu("s_mul_i32", sT5, sXk, 14 * 128, scc_w=False),
                  self.touch(ww[0], SWD, sT5)]
            o2 = [salu("s_lshl_b32", sT5, sXk, 9), self.touch(ww[1], SWO, sT5)]
            return [[o1, o2 + fl, o], [o1 + o2 + fl, o, []], [o + o1, o2 + fl, []], [o1 + o2 + fl + o, [], []]][C.warm_mode]
        if not isA: return [[], fl + o]
        o1 = [salu("s_lshr_b32", sXk, sWG, 7), salu("s_lshl_b32", sXk, sXk, 6), salu("s_and_b32", sT5, sWG, 63), salu("s_add_u32", sXk, sXk, sT5),
              salu("s_lshl_b32", sXk, sXk, 2), salu("s_add_u32", sXk, sXk, sW), salu("s_mul_i32", sT5, sXk, 28 * 128, scc_w=False),
              self.touch(ww[0], SWD, sT5), self.touch(ww[0], SWD, sT5, 14 * 128)]
        o2 = [salu("s_lshl_b32", sT5, sXk, 10), self.touch(ww[1], SWO, sT5), self.touch(ww[1], SWO, sT5, 512)]
        return [o1, o2 + fl + o]

    def b2_soff(self, n, dst):
        ks, cls, st = step_info(n)
        if cls == 1 or not C.rot3: return salu("s_add_u32", dst, sB2c[cls], (ks - 112 if cls == 2 else ks) * 16384)
        if cls == 2: g = (ks - 112) >> 2; return salu("s_add_u32", dst, sG1[g], (ks - 112 - 4 * g) * 16384)
        g = (ks - 16) // 12; return salu("s_add_u32", dst, sG3[g], (ks - 12 * g) * 16384)

    def code_touch(self):
        E = self.E
        if not C.touch_code: return
        t = v(201)
        E.line(f"s_getpc_b64 {sPC}")
        pcl = self.lab("pc"); E.label(pcl)
        E.emit(salu("s_and_b32", sT0, sJ, 1)); E.emit(salu("s_lshl_b32", sT0, sT0, 15))
        E.emit(valu("v_lshlrev_b32", t, 7, v(0))); E.emit(valu("v_add_u32", t, sT0, t))
        E.line(f"s_mov_b32 {sT0}, L_code_end-{pcl}-4")
        E.emit(valu("v_min_u32", t, sT0, t))
        E.emit(I(f"global_load_dword {aDUM0}, {t}, {sPC}", "vml", t.ids(), ()))

    def finish_stats(self, sm, sq, rinv, nb, t0, t1):
        e = self.E.emit
        e(valu("v_mul_f32", sm, sC512, sm))
        e(valu("v_mul_f32", t0, sm, sm))
        e(I(f"v_fma_f32 {sq}, {sq}, {sC512}, -{t0}", "valu", sq.ids() | t0.ids() | sC512.ids(), sq.ids()))
        e(valu("v_max_f32", sq, 0, sq))
        e(valu("v_cvt_pk_bf16_f32", t0, sm, sq))
        e(valu("v_and_b32", t1, sHI, t0))
        e(valu("v_add_f32", t1, 0x3727c5ac, t1))
        e(valu("v_cvt_pk_bf16_f32", t1, t1, t1)); e(valu("v_and_b32", t1, sHI, t1))
        e(valu("v_sqrt_f32", t1, t1))
        e(valu("v_cvt_pk_bf16_f32", t1, t1, t1)); e(valu("v_and_b32", t1, sHI, t1))
        e(valu("v_rcp_f32", rinv, t1))
        e(valu("v_lshlrev_b32", t0, 16, t0))
        e(I(f"v_mul_f32 {nb}, -{t0}, {rinv}", "valu", t0.ids() | rinv.ids(), nb.ids()))

    def norm_ops(self, reg, rinv, nb, k0=0):
        ops = []
        for d in range(4):
            lo = NT[(2 * (k0 + d)) % 8]; hi = NT[(2 * (k0 + d) + 1) % 8]; x = reg[d]
            ops += [valu("v_lshlrev_b32", lo, 16, x), valu("v_and_b32", hi, sHI, x),
                    valu("v_fma_f32", lo, lo, rinv, nb), valu("v_fma_f32", hi, hi, rinv, nb),
                    valu("v_cvt_pk_bf16_f32", x, lo, hi)]
        return ops

    def dots(self, reg, acc):
        ops = []
        for d in range(reg.n):
            ops.append(valu("v_dot2_f32_bf16", acc[d & 1], reg[d], sONE, acc[d & 1]))
            ops.append(valu("v_dot2_f32_bf16", acc[2 + (d & 1)], reg[d], reg[d], acc[2 + (d & 1)]))
        return ops

    def wrap(self, reg, q, span):
        return glue([scmp("s_cmp_eq_u32", sROT, 4 - q), salu("s_cselect_b32", sS2b, span, 0, scc_w=False, scc_r=True),
                     salu("s_sub_u32", reg, reg, sS2b)])

    def chunks(self, obj):
        k, j = obj
        if self.typ == "A":
            if k == "s1": return list(range(3 * (j % 7), 3 * (j % 7) + 3))
            return [6 + 2 * j, 7 + 2 * j]
        jj = j if k == "s1" else 16 + j
        return list(range(4 * (jj % 6), 4 * (jj % 6) + 4))

    def slab_dma(self, obj):
        L = self.L; k, j = obj; ch = self.chunks(obj); fl = C.w_fl
        def f(E): L.alloc(obj, ch)
        ops = [f, salu("s_add_u32", "m0", sM0B, 1024 * ch[0])]
        if k == "s1":
            st = 3072 if self.typ == "A" else 3584
            if self.typ == "A": ops += [dma(vH, SQKV, sS1, 1024 * u, obj, fl) for u in range(3)]
            else: ops += [dma(vG, SWG_, sS1, 0, obj, fl), dma(vU, SWU, sS1, 1024, obj, fl), dma(vG, SWG2, sS1, 2048, obj, fl), dma(vU, SWU2, sS1, 3072, obj, fl)]
            if j < 15: ops.append(salu("s_add_u32", sS1, sS1, 32 * st))
            if j % 4 == 3 and j < 15 and C.rot: ops.append(self.wrap(sS1, (j + 1) // 4, 512 * st))
        else:
            if self.typ == "A":
                ops += [salu("s_add_u32", sS2b, sS2, 16 * 3584 - 1024), dma(vG, SWH, sS2, 0, obj, fl), dma(vG, SWH, sS2b, 1024, obj, fl)]
            else:
                ops += [salu("s_add_u32", sS2b, sS2, 16 * 3584 - 2048), dma(vG, SWG_, sS2, 0, obj, fl), dma(vU, SWU, sS2, 1024, obj, fl),
                        dma(vG, SWG_, sS2b, 2048, obj, fl), dma(vU, SWU, sS2b, 3072, obj, fl)]
            if j < 7: ops.append(salu("s_add_u32", sS2, sS2, 64 * 3584))
            if j % 2 == 1 and j < 7 and C.rot: ops.append(self.wrap(sS2, (j + 1) // 2, 512 * 3584))
        return ops

    def b2_chunk(self, n):
        R_ = lambda lo, hi: list(range(lo, hi))
        if self.typ == "A":
            tab = R_(22, 32) + R_(22, 32) + R_(0, 12) + R_(32, 40) + R_(12, 22) + R_(22, 32) + R_(0, 12)
        else:
            tab = R_(24, 40) + R_(24, 40) + R_(0, 24) + R_(24, 32) + R_(0, 8)
        return tab[n]

    def b2_dma(self, n):
        L = self.L
        ks, cls, _ = step_info(n)
        ch = self.b2_chunk(n)
        def f(E): L.alloc(("b2", n), [ch])
        return [f, salu("s_add_u32", "m0", sM0B, 1024 * ch) if ch < 32 else salu("s_add_u32", "m0", sM0T, 4096 * (ch - 32)),
                self.b2_soff(n, sB2s),
                dma(vB2, SWO if cls == 2 else SWD, sB2s, 0, ("b2", n), C.b2_fl)]

    def bar(self, cover, m_done, lds_all=False, lds_tags=()):
        L = self.L
        def f(E):
            E.wait_tags(lds=list(lds_tags) + list(cover), vm=cover)
            if lds_all: E.wait_all_lds()
            if not (C.dbg_bar and cover and cover[0][0] == "b2"): E.barrier()
            L.visible |= set(cover); L.bar_m = m_done
        return f

    def acc2(self, t): return ACC2(t) if self.typ == "A" else ACC1(t)

    def acc1(self, t): return ACC1(t) if t < 6 else a(112 + 16 * (t - 6), 16)

    def seq(self, typ):
        out = []
        order = [2, 3, 4, 5, 0, 1] if typ == "A" else list(range(8))
        k1 = self.k1
        s1 = [(ks, t) for ks in range(k1) for t in order] + [(ks, t) for t in order for ks in range(k1, 32)]
        for ks, t in s1:
            obj = ("s1", ks // 2); base = (ks & 1) * 32768 + self.chunks(obj)[0] * 1024
            if True:
                if typ == "A":
                    out.append(dict(acc=ACC1(t), x=X(ks), sw=(t >= 4), obj=obj, addr=vTR[4 + (t & 1)],
                                    imm=base + (t >> 1) * 1024, st=512, first=(ks == 0)))
                else:
                    out.append(dict(acc=self.acc1(t), x=X(ks), sw=False, obj=obj, addr=vTR[t & 3], imm=base + (t >> 2) * 2048, st=512, first=(ks == 0)))
        nt = self.nt2
        k0 = self.k0
        s2 = [(ks, t) for ks in range(k0) for t in range(nt)] + [(ks, t) for t in range(nt) for ks in range(k0, 32)]
        for ks, t in s2:
            obj = ("s2", ks // 4); k = ks & 3
            out.append(dict(acc=self.acc2(t), x=X(ks), sw=False, obj=obj, addr=vTR[t],
                            imm=(k >> 1) * 32768 + self.chunks(obj)[0] * 1024 + (k & 1) * (1024 if typ == "A" else 2048),
                            st=256 if typ == "A" else 512, first=(ks == 0)))
        nl = 72 - C.lastk
        p2 = [(n, j) for n in range(nl) for j in ((1, 0) if n == 55 else (0, 1))] + [(n, j) for j in (1, 0) for n in range(nl, 72)]
        for n, j in p2:
            iso = step_info(n)[1] == 2
            if True:
                ch = self.b2_chunk(n)
                out.append(dict(acc=(ACCS if iso else ACCD)[j], x=n, sw=False, obj=("b2", n),
                                addr=self.tr2[j] if ch < 32 else self.tr2t[j], j=j, imm=ch * 1024 if ch < 32 else (ch - 32) * 4096,
                                st=32768 if ch < 32 else 1024, first=(n in (0, 40))))
        for m, o in enumerate(out): self.L.last_use[o["obj"]] = m
        return out

    def wreads(self, m):
        o = self.SEQ[m]; L = self.L
        if o["obj"][0] == "b2" and o["obj"][1] < self.nF: return []
        if C.abl_tr and m >= 24 and (m % C.abl_tr) and (o["obj"][0] != "b2" or C.abl_tr2): return []
        def f(E): assert o["obj"] in L.visible, ("read of invisible", m, o["obj"])
        return [f, ds_tr(WF(m).sub(0, 2), o["addr"], o["imm"]), ds_tr(WF(m).sub(2, 2), o["addr"], o["imm"] + o["st"])]

    def main(self, m):
        o = self.SEQ[m]
        if isinstance(o["x"], int):
            def mk(peek):
                if peek and o["x"] not in self.a2slot: return None
                w = self.frag[(o["x"], o["j"])]["r"] if o["x"] < self.nF else WF(m)
                return mfma(o["acc"], w, self.a2slot[o["x"]]["r"], 0 if o["first"] else o["acc"])
            mn = dict(pre=[], m=mk, fix=[])
            if o["x"] < self.nF: mn["fix"].append(lambda E: self.pool.give(E, self.frag[(o["x"], o["j"])]))
            if m == self.L.last_use[o["obj"]]: mn["fix"].append(lambda E: self.pool.give(E, self.a2slot[o["x"]]))
        else:
            A_, B_ = (o["x"], WF(m)) if o["sw"] else (WF(m), o["x"])
            mn = dict(pre=[], m=mfma(o["acc"], A_, B_, 0 if o["first"] else o["acc"]), fix=[])
        if m + C.D < len(self.SEQ): mn["fix"] += self.wreads(m + C.D)
        return mn

    def spin_check_tag(self):
        def f(E):
            ok = self.lab("tagok"); sp = self.lab("tagspin")
            E.emit(rfl(sTAG, vTAG))
            E.emit(scmp("s_cmp_eq_u32", sTAG, 0))
            E.line(f"s_cbranch_scc1 {sp}")
            E.label(ok)
            self.cold += [f"{sp}:", f"    s_mov_b32 {sSPIN}, 0", f"{sp}_l:",
                          f"    buffer_load_dword {vTAG}, off, {SDBG}, 0 sc1", f"    s_add_u32 {sSPIN}, {sSPIN}, 1",
                          "    s_waitcnt vmcnt(0)", f"    v_readfirstlane_b32 {sTAG}, {vTAG}",
                          f"    s_cmp_ge_u32 {sSPIN}, {C.spin_max}", f"    s_cbranch_scc1 {ok}",
                          f"    s_cmp_eq_u32 {sTAG}, 0", f"    s_cbranch_scc1 {sp}_l", f"    s_branch {ok}"]
        return f

    def poll_load(self, stage):
        return vload(self.vpl[stage], vP4, SWS, sFLR, FLO[stage], fl="sc1")

    def poll2_load(self, stage):
        i = vload(vSP[0], vP4, SWS, sFLR, FLO[stage], tag=("p2", stage), fl="sc1"); i.w = set()
        return i

    def gate(self, stage):
        def f(E):
            ok = self.lab("gateok"); sp = self.lab("gatespin")
            self.stamp(f"g{stage}a")
            E.emit(vcmp("v_cmp_ne_u32", "vcc", sTAG, self.vpl[stage]))
            E.line(f"s_cbranch_vccnz {sp}")
            E.label(ok)
            ld = lambda r: f"    buffer_load_dword {r}, {vP4}, {SWS}, {sFLR} offen offset:{FLO[stage]} sc1"
            regs = [self.vpl[stage], vSP[0], vSP[1]][:C.npoll]; k = len(regs)
            k2 = [n for n, x in enumerate(E.vq) if x[2] == ("p2", stage)]
            second = []
            if C.poll2 and stage in self.has2:
                n2 = sum(1 for x in E.vq[k2[0] + 1:] if x[3]) if k2 else 62
                second = [f"    s_waitcnt vmcnt({min(n2, 62)})", f"    v_cmp_ne_u32 vcc, {sTAG}, {vSP[0]}", f"    s_cbranch_vccz {ok}"]
            self.cold += [f"{sp}:"] + second + [f"    s_mov_b32 {sSPIN}, 0"] + [x for r in regs[:-1] for x in (ld(r), "    s_nop 15", "    s_nop 15")] + [f"{sp}_l:"]
            for q_ in range(k):
                self.cold += [ld(regs[(q_ + k - 1) % k]), f"    s_waitcnt vmcnt({k - 1})", f"    v_cmp_ne_u32 vcc, {sTAG}, {regs[q_]}", f"    s_cbranch_vccz {ok}"]
            self.cold += [f"    s_add_u32 {sSPIN}, {sSPIN}, 1", f"    s_cmp_ge_u32 {sSPIN}, {C.spin_max}", f"    s_cbranch_scc0 {sp}_l", f"    s_branch {ok}"]
            self.stamp(f"g{stage}b")
        return f

    def flag_store(self, stage, tags):
        def f(E):
            self.stamp(f"f{stage}a")
            E.wait_tags(vm=tags)
            self.stamp(f"f{stage}b")
            E.emit(vstore(vTAG, None, SWS, sFLW, FLO[stage], fl="sc1"))
        return f

    def a2_load(self, n):
        ks, cls, _ = step_info(n)
        o = []
        if self.a2base is None or self.a2base[0] != cls or not (0 <= (ks - self.a2base[1]) * FS < 4096):
            self.a2base = (cls, ks)
            if cls == 1 or not C.rot3: o.append(salu("s_add_u32", sA2s, sA2c[cls], ks * FS))
            else:
                assert FS == 1024
                g = (ks - 112) >> 2 if cls == 2 else (ks - 16) // 12
                o += [salu("s_lshr_b32", sA2s, (sG1 if cls == 2 else sG3)[g], 4), salu("s_add_u32", sA2s, sA2s, sA2c[cls]),
                      salu("s_add_u32", sA2s, sA2s, (ks - 4 * g if cls == 2 else ks - 12 * g) * 1024)]
        imm = (ks - self.a2base[1]) * FS
        kind = "AE" if n < 40 else "A"
        def f(E):
            x = self.a2slot[n] = self.pool.take(E, kind)
            if not (C.dbg_a2 and n >= C.dbg_a2): E.emit(vload(x["r"], vA2O, SWS, sA2s, imm, fl=C.a2_fl))
        f.vm = True; f.ready = lambda E: self.pool.find(E, kind) is not None
        return o + [f]

    def pre_read(self, n):
        out = []
        for m in (self.M3 + 2 * n, self.M3 + 2 * n + 1):
            o = self.SEQ[m]
            def f(E, o=o):
                assert o["obj"] in self.L.visible
                x = self.frag[(n, o["j"])] = self.pool.take(E, "R")
                E.emit(ds_tr(x["r"].sub(0, 2), o["addr"], o["imm"], tag=("fr", n)))
                E.emit(ds_tr(x["r"].sub(2, 2), o["addr"], o["imm"] + o["st"], tag=("fr", n)))
            f.slots = 2
            out.append(f)
        return out

    def raw_load(self, n):
        ks, cls, _ = step_info(n)
        def f(E):
            x = self.rawslot[n] = self.pool.take(E, "R")
            E.emit(vload(x["r"], vB2, SWO if cls == 2 else SWD, sXo, 0, fl=C.b2_fl))
        f.vm = True; f.ready = lambda E: self.pool.find(E, "R") is not None
        return [self.b2_soff(n, sXo), f]

    def a2_store(self, reg, sbase, t, tag):
        st = vstore(reg, vA2O, SWS, sStH if t * FS >= 4096 else sbase, 0 if t * FS >= 4096 else t * FS, tag, C.st_fl)
        if t * FS >= 4096: st.pre = salu("s_add_u32", sStH, sbase, t * FS)
        return st

    def h_epilogue(self, T, sbase, imm, tag):
        ops = [valu("v_mul_f32", T[r], T[r], T[r + 8]) for r in range(8)]
        ops += [valu("v_cvt_pk_bf16_f32", T[r], T[2 * r], T[2 * r + 1]) for r in range(4)]
        ops.append(self.a2_store(T.sub(0, 4), sbase, imm, tag))
        return ops

    def body(self, typ):
        E = self.E; e = E.emit
        self.L = L = LDSMap()
        E.m0_owner = None; E.fifo = None
        self.typ = typ
        isA = typ == "A"
        nt1, nt2 = (6, 2) if isA else (8, 4)
        self.nt2 = nt2; self.k0 = k0 = 24 if isA else 20
        self.k1 = k1 = 28 if isA else C.k1B
        M2 = self.M2 = 32 * nt1; M3 = self.M3 = M2 + 32 * nt2
        self.nF = 10 if isA else 16
        self.tr2 = [vTR[2], vTR[3]] if isA else [vEX, vHW]
        self.tr2t = vTR2T if isA else [vPM, vMHC]
        self.parked = self.tr2 + self.tr2t if isA else []
        self.frag = {}
        self.SEQ = self.seq(typ)
        self.a2base = None
        self.cold = []; self.has2 = set()
        self.lane = v(200); self.vx = [v(204 + g) for g in range(4)]; self.hs = [v(196), v(197)]
        self.xa = xa = [v(216 + q) for q in range(4)]; self.acc = acc = [v(220 + q) for q in range(4)]
        self.ha = ha = [v(144 + i) for i in range(5)]; self.hacc = hacc = [v(149 + i) for i in range(4)]
        self.ww = [vU, vTR[2], vTR[3]] if isA else [vH, vW16, vHX]
        self.vpl = vPL + [self.ww[0]]
        self.stamp("t0")
        if C.stamps: E.line("s_memrealtime s[0:1]")
        first = self.setup_first(typ)
        rest = self.consts(typ)
        E.emits(first)
        k = max(0, C.npre - len(first))
        while k < len(rest) and SCC in rest[k].r: k += 1
        E.emits(rest[:k]); rest = rest[k:]
        E.line("s_waitcnt lgkmcnt(0)")
        self.stamp("karg")
        def inplace(d, size, other, shift=0):
            o = []
            if other is SWS and C.wsoff:
                return [glue([salu("s_add_u32", other[0], d[2], C.wsoff << 20), salu("s_addc_u32", other[1], d[3], 0, scc_r=True)]),
                        smov(d[2], size), smov(d[3], 0x20000)]
            if other is not None and shift: o += [salu("s_sub_u32", other[0], d[2], shift), salu("s_subb_u32", other[1], d[3], 0, scc_r=True)]
            elif other is not None: o += [smov(other[0], d[2]), smov(other[1], d[3])]
            return o + [smov(d[2], size), smov(d[3], 0x20000)]
        E.emits(inplace(SX, 0x200000, SQKV if isA else None))
        if isA:
            for it in inplace(SDBG, 256, SWS): run_item(E, it)
        def xd(sl):
            o = [salu("s_add_u32", "m0", sM0B, 4096 * sl), salu("s_add_u32", sA2s, sXo, sXk)]
            o += [dma(self.vx[g], SX, sA2s, 1024 * g, tag=("x", sl), fl=C.x_fl) for g in range(4)]
            if sl < 7: o += [salu("s_add_u32", sXk, sXk, 128), salu("s_and_b32", sXk, sXk, 1023)]
            return o
        if isA:
            for ee in range(2):
                for g in range(2):
                    e(salu("s_add_u32", "m0", sS2b, TB + 2048 * ee + 1024 * g))
                    e(dma(self.hs[g], SX, sHo, 0, tag="halo", fl=C.x_fl))
                if ee == 0: e(salu("s_add_u32", sHo, sHo, 128))
            lskip = self.lab("noep")
            e(salu("s_or_b32", sSPIN, sWG, sW))
            E.line(f"s_cbranch_scc1 {lskip}")
            E.line(f"s_mov_b32 {sSPIN}, {WS_EPOCH}")
            E.line(f"buffer_load_dword {vPOLL}, off, {SWS}, {sSPIN} sc1")
            E.label(lskip)
        E.emits(xd(0)); E.emits(xd(1))
        nx = 2
        if isA:
            if C.touch_w0: e(self.touch(vTW, SQKV, sT5))
            e(scmp("s_cmp_ge_u32", sW, 2))
            e(salu("s_cselect_b32", SWH[0], SWG_[2], SWG_[0], scc_w=False, scc_r=True))
            e(salu("s_cselect_b32", SWH[1], SWG_[3], SWG_[1], scc_w=False, scc_r=True))
        else:
            E.emits([salu("s_sub_u32", SWU2[0], SWG_[2], 2944), salu("s_subb_u32", SWU2[1], SWG_[3], 0, scc_r=True),
                     salu("s_sub_u32", SWG2[0], SWG_[0], 1920), salu("s_subb_u32", SWG2[1], SWG_[1], 0, scc_r=True)])
            E.emits(inplace(SWG_, 512 * 3584, SWU, 1024))
            if C.touch_w0: e(self.touch(vTW, SWG_, sT5)); e(self.touch(vTW, SWU, sT5, 1024))
            if C.x2early: E.emits(xd(2)); nx = 3
        self.stamp("issued")
        late_srd = ([] if isA else inplace(SDBG, 256, SWS)) + inplace(SWD, 1792 * 1024, SOUT) + inplace(SWO, 512 * 1024, None)
        E.emits(rest)
        if C.stamps: E.line("v_accvgpr_write_b32 a198, s0")
        self.stamp("rest")
        if C.pads:
            E.line("s_mov_b64 exec, 0")
            for w_ in (1, 2, 3):
                E.line(f"s_cmp_eq_u32 {sW}, {w_}"); E.line(f"s_cbranch_scc1 L_pad{typ}_{w_}")
            E.line(f"s_branch L_pad{typ}_0")
            E.label(f"L_back{typ}")
            E.line("s_mov_b64 exec, -1")
            E.out.append(f";PADS_FROM {typ}")
        self.stamp("pads")
        if nx == 2 and not isA: E.emits(xd(2)); nx = 3
        if isA:
            hx = v(128, 16); pr = v(154, 2); tp = v(156, 2); pp = v(158, 8)
            E.wait_tags(vm=["halo"])
            self.epoch_publish()
            for ee in range(2):
                for b in range(2): e(ds_rd(hx.sub(4 * (2 * ee + b), 4), ha[b], 2048 * ee))
            E.emits(xd(2)); nx = 3
            E.emits(self.dots(hx, hacc))
            e(valu("v_add_f32", pr[0], hacc[0], hacc[1])); e(valu("v_add_f32", pr[1], hacc[2], hacc[3]))
            for sw in (swap16, swap32):
                e(valu("v_mov_b32", tp[0], pr[0])); e(valu("v_mov_b32", tp[1], pr[1]))
                e(sw(pr[0], tp[0])); e(sw(pr[1], tp[1]))
                e(valu("v_add_f32", pr[0], pr[0], tp[0])); e(valu("v_add_f32", pr[1], pr[1], tp[1]))
            e(ds_wr(ha[3], pr, 0, tag="hp"))
        def xdots(k):
            E.emits(self.dots(v(16 * k, 16), acc)); L.xread.add(k)
        for sl in range(9):
            early = sl >= C.dots_first
            if sl > 0 and early: xdots(sl - 1)
            if sl < 8:
                E.wait_tags(vm=[("x", sl)])
                self.stamp(f"x{sl}")
                for q in range(4): e(ds_rd(X(4 * sl + q), xa[q], 4096 * sl))
                if nx < 8: E.emits(xd(nx)); nx += 1
            if isA and sl == 0:
                E.wait_tags(lds=["hp"]); E.barrier()
                for w_ in range(4): e(ds_rd(pp.sub(2 * w_, 2), ha[2], 4096 * w_))
            if isA and sl == 1:
                e(valu("v_add_f32", pr[0], pp[0], pp[2])); e(valu("v_add_f32", pr[1], pp[1], pp[3]))
                e(valu("v_add_f32", tp[0], pp[4], pp[6])); e(valu("v_add_f32", tp[1], pp[5], pp[7]))
                e(valu("v_add_f32", pr[0], pr[0], tp[0])); e(valu("v_add_f32", pr[1], pr[1], tp[1]))
                self.finish_stats(pr[0], pr[1], pp[0], pp[1], tp[0], tp[1])
            if isA and C.hn_at <= sl < C.hn_at + 4:
                E.emits(self.norm_ops(hx.sub(4 * (sl - C.hn_at), 4), pp[0], pp[1]))
                e(ds_wr(ha[4], hx.sub(4 * (sl - C.hn_at), 4), 1024 * (sl - C.hn_at), tag="hxw"))
            if sl > 0 and not early: xdots(sl - 1)
            for j in {C.w0at: [0], C.w0at + 1: [1], 6: [2], 7: [3] if C.w3early or isA else []}.get(sl, []):
                for it in self.slab_dma(("s1", j)): run_item(E, it)
        self.stamp("xdone")
        npn = C.npre_normA if isA else C.npre_norm
        def bx():
            self.bar([("s1", 0), ("s1", 1)], -1, lds_tags=["hxw"])(E)
            self.stamp("bx")
            for m in range(C.D):
                for it in self.wreads(m): run_item(E, it)
        e(valu("v_add_f32", acc[0], acc[0], acc[1])); e(valu("v_add_f32", acc[2], acc[2], acc[3]))
        e(valu("v_mov_b32", acc[1], acc[0])); e(valu("v_mov_b32", acc[3], acc[2]))
        e(swap32(acc[0], acc[1])); e(swap32(acc[2], acc[3]))
        e(valu("v_add_f32", acc[0], acc[0], acc[1])); e(valu("v_add_f32", acc[2], acc[2], acc[3]))
        self.finish_stats(acc[0], acc[2], vRINV, vNB, acc[1], acc[3])
        for ks in range(npn - 1): E.emits(self.norm_ops(X(ks), vRINV, vNB))
        bx()
        E.emits(self.norm_ops(X(npn - 1), vRINV, vNB))
        self.stamp("s1"); self.stamp("b0")

        mains = [self.main(m) for m in range(len(self.SEQ))]
        E.gap = 0; E.fifo = Fifo(); E.fifo.p = E.pos; E.fifo.n = 4
        D = C.D
        qN = Q("norm"); qD = Q("dma"); qH = Q("halo"); qB = Q("b2"); qW = Q("raw", hard=False); qU = Q("dump", vm_age=0)
        qE = Q("epi"); qE2 = Q("epi2", hard=False, top=True); qR = Q("restore"); qFl = Q("flag", top=True)
        self.pool = pool = Pool(); self.a2slot = {}; self.rawslot = {}; self.mark = {}
        started = lambda q: (len(q.items) > 0 and q.empty())
        pool.add(a(200, 56), "AR")
        pool.add(a(192, 4), "A", lambda: started(qR))
        if isA:
            pool.add(a(80, 32), "AR")
            pool.add(a(112, 24), "AR")
            pool.add(a(160, 32), "A", lambda: self.mark.get("masks"))
            pool.add(a(48, 32), "A", lambda: started(qE2))
            pool.add(a(136, 24), "A", lambda: started(qE)); pool.add(v(128, 96), "A", lambda: started(qE))
            rawl = list(range(40, 72))
        else:
            pool.add(a(144, 16), "AR"); pool.add(a(160, 32), "A")
            pool.add(a(48, 64), "AR")
            pool.add(a(112, 32), "AR", lambda: started(qE)); pool.add(v(192, 32), "AR", lambda: started(qE))
            pool.add(v(128, 64), "A", lambda: started(qE2))
            for k in list(range(8)) + [12, 13, 14, 15]: pool.add(X(k), "E", lambda k=k: E.gap > M2 + 4 * k + 3)
            rawl = list(range(44, 72))
        rawit = {}
        if C.raw:
            for n in rawl[:C.nrawA if isA else C.nrawB]:
                rawit[n] = self.raw_load(n)
                qW.adds(rawit[n], earliest=C.raw0A if isA else C.raw0B, deadline=M3 + 16 * (n // 8) - C.D - 40)
        def place(n):
            def f(E):
                need = M3 + 16 * (n // 8) - C.D
                if n in self.rawslot:
                    ch = self.b2_chunk(n); x = self.rawslot[n]
                    qU.add(lambda E: L.alloc(("b2", n), [ch]), deadline=need - 3)
                    if not C.dbg_dump: qU.add(ds_wr(vWQ, x["r"], 1024 * ch, tag=("b2", n)), deadline=need - 3)
                    qU.add(lambda E: pool.give(E, x), deadline=need - 3)
                else:
                    for it in rawit.get(n, []): it.dead = True
                    b2_add(n, E.gap)
            return f
        qG = Q("frag")
        def b2_add(n, gap, need=None):
            need = need or M3 + 16 * (n // 8) - D
            qB.adds(self.b2_dma(n), earliest=gap, deadline=need - C.b2lead - 2 * (7 - n % 8), hard=False)
            qB.add(lambda E: None, earliest=gap, deadline=max(need - 10, gap + 2))
        def frag_plan(g, step_, groups):
            b0 = C.b2gA if isA else C.b2gB
            cover = []; tags = []; gap = step_ * g - D
            for k, pg in enumerate(groups):
                if g == b0 + k:
                    for n in pg: b2_add(n, gap + 4, gap + 2 * step_)
                if g == b0 + k + 2:
                    cover += [("b2", n) for n in pg]
                    for n in pg:
                        qG.adds(self.pre_read(n), earliest=gap, deadline=gap + step_ - 3); L.last_use[("b2", n)] = gap + step_ - 1
                if g == b0 + k + 3:
                    tags += [("fr", n) for n in pg]
                    for n in pg: b2_add(n + self.nF, gap)
            return cover, tags
        def barrier(gap, cover, name, **kw):
            mains[gap]["npre"] = 2
            mains[gap]["pre"] += [lambda E: self.stamp(name + "a"), self.bar(cover, gap - 1, **kw), lambda E: self.stamp(name)]
        for ks in range(npn, 32 if not C.abl_norm else npn + 1):
            qN.adds(self.norm_ops(X(ks), vRINV, vNB, ks * 4), earliest=max(0, nt1 * (ks - C.nahead) - 1),
                    deadline=nt1 * ks if ks < k1 else nt1 * k1 + ks - k1)
        for j in (range(4, 7) if isA else range(4 if C.w3early else 3, 5)): qD.adds(self.slab_dma(("s1", j)), earliest=0, deadline=17 if isA else 20)
        qK = Q("scal")
        qK.adds(late_srd, earliest=0, deadline=(24 if isA else 32) - D)
        sc_ = self.scalars(typ)
        for q_, it in enumerate(sc_): qK.add(it, earliest=0, deadline=int(10 + C.scal_span * q_ / len(sc_)), hard=False)
        qK.add(lambda E: None, deadline=10 + C.scal_span + 8)
        L.last_use[("T",)] = M2 + 40 if isA else -1
        tagload = vload(vTAG, None, SDBG, 0, fl="sc1")
        warm = []
        if C.touch_b2:
            tb = self.ww[0]
            warm = [[valu("v_lshlrev_b32", tb, 6, vL16), valu("v_and_b32", tb, 0x7c00, tb), valu("v_add_u32", tb, sCT, tb),
                     salu("s_lshl_b32", sRT, sRT, 2), salu("s_add_u32", sRT, sRT, sW),
                     salu("s_lshl_b32", sT5, sRT, 14), self.touch(tb, SWD, sT5)],
                    [salu("s_lshr_b32", sT5, sRT, 1), salu("s_lshl_b32", sT5, sT5, 2), salu("s_add_u32", sT5, sT5, sRT),
                     salu("s_add_u32", sT5, sT5, 12), salu("s_lshl_b32", sT5, sT5, 15), self.touch(tb, SWD, sT5)],
                    [salu("s_lshl_b32", sT5, sRT, 15), self.touch(tb, SWO, sT5)]]
        def slab(jj): return ("s1", jj) if jj < 16 else ("s2", jj - 16)
        if isA:
            for g in range(1, 9):
                gap = 24 * g - D
                cv, tg = frag_plan(g, 24, [range(0, 5), range(5, 10)])
                barrier(gap, ([("s1", 2 * g), ("s1", 2 * g + 1)] if g < 8 else [("s2", j) for j in range(4)]) + cv, f"b{g}", lds_tags=tg)
                its = []
                for j in (2 * g + 4, 2 * g + 5):
                    if 7 <= j < 16: its += self.slab_dma(("s1", j))
                for j in {6: [0, 1, 2], 7: [3, 4, 5], 8: [6, 7]}.get(g, []): its += self.slab_dma(("s2", j))
                k_ = g - (C.warm_gA if isA else C.warm_gB)
                if k_ in (0, 1, 2) and C.warm_all:
                    qD.adds(its, earliest=gap, deadline=gap + 16); its = []
                    qK.adds(self.warm_ops(isA)[k_], earliest=gap + C.warm_off, deadline=gap + C.warm_off + 14)
                if C.b2g <= g < C.b2g + 3 and warm: its += warm[g - C.b2g]
                if g == 6: its.append(tagload)
                if g == C.warm_gA + 2: qK.adds([accr(self.tr2[n_], a(aPARK + n_)) for n_ in range(2)], earliest=gap + 12, deadline=gap + 40)
                qD.adds(its, earliest=gap, deadline=gap + (14 if g == 7 else 23))
            for j in range(16):
                g0 = max(0, 12 * j - D + 1)
                b = j & 1; ch = self.chunks(("s1", j))[0] * 1024
                its = [ds_rd(aXH[b], vHX, 1024 * j)]
                for u in range(2):
                    its += [ds_tr(aW16[b][u].sub(0, 2), vW16, ch + 1024 * (1 + u)), ds_tr(aW16[b][u].sub(2, 2), vW16, ch + 1024 * (1 + u) + 512)]
                qH.adds(its, earliest=g0, deadline=12 * j + 4)
                qH.add(mfma(aHACC[0], aW16[b][0], aXH[b], 0 if j == 0 else aHACC[0], "16x16x32"), earliest=g0, deadline=12 * j + 8)
                qH.add(mfma(aHACC[1], aXH[b], aW16[b][1], 0 if j == 0 else aHACC[1], "16x16x32"), earliest=12 * j + 7, deadline=12 * j + 10)
            gap = M2 + 32 - D
            barrier(M2 + C.exbar, [], "ex", lds_tags=["exw"])
            barrier(gap, [("s2", j) for j in range(4, 8)], "mid")
            for n in range(20, 32): b2_add(n, gap)
            first_use = {0: list(range(32, 46)), 1: list(range(46, 50))}
        else:
            for g in range(1, 12):
                gap = 32 * g - D - (8 if g == 11 else 0)
                cv, tg = frag_plan(g, 32, [range(0, 8), range(8, 16)])
                barrier(gap, [slab(jj) for jj in {10: (20, 21, 22), 11: (23,)}.get(g, (2 * g, 2 * g + 1))] + cv, f"b{g}", lds_tags=tg)
                its = []
                for jj in ({8: (19,), 9: ()} if k1 == 28 else {9: ()}).get(g, (2 * g + 3, 2 * g + 4)):
                    if jj < 24: its += self.slab_dma(slab(jj))
                if g == 9:
                    for q_, jj in enumerate((20, 21, 22) if k1 == 28 else (21, 22)):
                        qD.adds(self.slab_dma(slab(jj)), earliest=gap, deadline=gap + 4 * q_, hard=False)
                        qD.add(lambda E: None, earliest=gap, deadline=gap + 6 + 5 * q_)
                k_ = g - (C.warm_gA if isA else C.warm_gB)
                if k_ in (0, 1, 2) and C.warm_all:
                    qD.adds(its, earliest=gap, deadline=gap + 16); its = []
                    qK.adds(self.warm_ops(isA)[k_], earliest=gap + C.warm_off, deadline=gap + C.warm_off + 14)
                if C.b2g <= g < C.b2g + 3 and warm: its += warm[g - C.b2g]
                if g == 6: its.append(tagload)
                for n in {10: range(32, 36), 11: range(36, 44)}.get(g, []): b2_add(n, gap)
                qD.adds(its, earliest=gap, deadline=gap + {1: 28, 9: 22, 10: 7}.get(g, 18))
            first_use = {0: list(range(44, 48)), 1: list(range(48, 56))}
        def xfree(reg): return M2 + nt2 * ((reg.lo + reg.n - 1) // 4) + nt2 - 1
        qFl.add(self.spin_check_tag(), earliest=M2 - 8, deadline=M2 - 4)
        def after(q, stage, tags):
            def arm(E):
                f = self.flag_store(stage, tags); p0 = E.pos; g0_ = E.gap
                fd = C.flagd if stage in (0, 2) else (C.flag1 if stage == 1 else C.flagl)
                f.ready = lambda E: ((E.pos - p0) * 4 + (E.gap - g0_) * 8 >= fd or (E.gap - g0_) * 33 >= fd
                                     or not any(x[2] in tags for x in E.vq))
                qFl.add(f, earliest=E.gap)
            q.add(arm)
        if not isA:
            for t in range(8):
                T = ACC1(t if t < 6 else t - 2)
                its = [accr(T[r], self.acc1(t)[r]) for r in range(16)] if t >= 6 else []
                qE.adds(its + self.h_epilogue(T, sStF, t, "h1"), earliest=nt1 * k1 + (32 - k1) * (t + 1) - 1,
                        deadline=M2 - 1 + (t if k1 > 28 else 0) if t < 4 else nt1 * 28 + 4 * t + 8, hard=(t < 4))
            after(qE, 0, ["h1"])
        else:
            self.attention(qE, xfree)
            n0 = self.exw_check[1]; nn = len(qE.items)
            for k in range(n0, nn):
                it, ear, dl, hd = qE.items[k]
                qE.items[k] = (it, ear, int(M2 + 8 + (M3 + C.att_end - M2 - 8) * (k - n0) / (nn - n0)), False)
            after(qE, 3, ["o"])
        schedule(E, mains[:M2], [qN, qK, qD, qH, qG, qB, qW, qFl, qE], lambda g: (C.cap1A if isA else C.cap1B) if g < nt1 * k1 else C.cap1t,
                 0, flush=False, vm_gap=C.vm1)
        assert qN.empty() and qH.empty()
        self.stamp("s2")

        qL = Q("a2"); qF = Q("fin", vm_age=60); qP = Q("poll", top=True)
        g0 = M3 if isA else M3 + C.gate0B
        for n_, dst in enumerate(self.parked):
            if dst.lo < 128: qR.add(accr(dst, a(aPARK + n_)), earliest=xfree(dst), deadline=min(g0, M3 - D) - 2)
        qR.add(valu("v_add_u32", vWQ, sM0B, vL16), earliest=xfree(vWQ), deadline=min(g0, M3 - D) - 2)
        tail = M2 + k0 * nt2; tl = 32 - k0
        for t in range(nt2):
            its = ([accr(E2T[r], ACC2(t)[r]) for r in range(16)] if isA else []) + self.h_epilogue(E2T if isA else ACC1(t), sSt2, t, "h2" if t < 2 else "h3")
            qE2.adds(its, earliest=tail + tl * t + tl - 1, deadline=tail + tl * t + tl + 8)
            if t == 1: after(qE2, 1 if isA else 2, ["h2"])
            if t == 3: after(qE2, 4, ["h3"])
        mains[M3]["pre"].append(lambda E: self.stamp("p2"))
        def fifo_reset(E): E.fifo.n = min(E.fifo.level(E), C.fifo0); E.fifo.p = E.pos; E.fifo.g = E.gap; E.fifo.PERIOD = C.per3
        for gg in (M3 + 1, M3 + 14): mains[gg]["pre"].append(fifo_reset)
        for n_ in range(72): mains[M3 + 2 * n_]["fix"].insert(0, lambda E, n_=n_: self.stamp(f"n{n_}"))
        gates = {0: g0, 32: M3 + 2 * (32 - C.la1), 40: M3 + 2 * (40 - C.la2), 56: M3 + 2 * (56 - C.la3),
                 64: M3 + 2 * (64 - (C.la4A if isA else C.la4B))}
        def chk_free(q):
            def f(E): assert q.empty(), ("A2 slot still in use", q.name, E.gap)
            f.ready = lambda E: q.empty()
            return f
        cur = 0
        for n in range(72):
            if n in gates:
                cur = gates[n]; st = step_info(n)[2]; n0 = n
                qP.add(self.poll_load(st), earliest=cur - C.polld, deadline=cur - C.polld + 2)
                if C.poll2 and not (n == 0 and isA):
                    qP.add(self.poll2_load(st), earliest=cur - C.poll2, deadline=cur - C.poll2 + 2); self.has2.add(st)
                qL.add(self.gate(st), earliest=cur, deadline=cur + 1)
                if n == 0 and isA: qP.items[-1] = (qP.items[-1][0], M3 + 1, M3 + 1, False)
            its = self.a2_load(n)
            qL.adds(its, earliest=cur, deadline=M3 + (2 * n if n < 72 - C.lastk else 72 - C.lastk + n) - C.a2lead, hard=False)
            need = M3 + (2 * n if n < 72 - C.lastk else 72 - C.lastk + n)
            qL.add(lambda E: None, earliest=cur, deadline=max(need - 6, M3 + 1 if isA else 0))
        qP.items.sort(key=lambda x: x[1] if not (isA and x[1] == M3 + 1 and not x[3]) else -1)
        if isA:
            def boundary(E):
                qs = [qFl, qE2, qE, qL, qB, qW, qU, qP]
                def flags():
                    while not qFl.empty() and (not hasattr(qFl.head()[0], "ready") or qFl.head()[0].ready(E)): step(E, qFl, qs)
                def one_vm(q):
                    while not q.empty() and q.head()[1] <= M3:
                        it = q.head()[0]
                        if hasattr(it, "ready") and not it.ready(E): return False
                        step(E, q, qs)
                        if is_vm(it) and not getattr(it, "dead", False): return True
                    return False
                left = len(qE.items) - qE.n; base = qE.n
                polled = gated = False; lastv = E.pos; nl = 0
                while not (qE2.empty() and qE.empty()):
                    a_, b_ = (qE2, qE) if not qE2.empty() else (qE, qE2)
                    h = a_.head()[0]
                    if not callable(h) and E.nops(h) > 0 and not b_.empty() and (callable(b_.head()[0]) or E.nops(b_.head()[0]) == 0): a_ = b_
                    elif not callable(h) and E.nops(h) > 0 and not qU.empty(): a_ = qU
                    step(E, a_, qs)
                    flags()
                    fr = (qE.n - base) / max(1, left)
                    if not polled and fr >= C.att_gate - 0.45: step(E, qP, qs); polled = True
                    if not gated and fr >= C.att_gate: step(E, qL, qs); gated = True
                    if E.pos - lastv >= C.bd_pace:
                        if (gated and nl < C.bd_nl and one_vm(qL)): nl += 1; lastv = E.pos
                        elif one_vm(qB) or one_vm(qW): lastv = E.pos
                if not polled: step(E, qP, qs)
                if not gated: step(E, qL, qs)
                while nl < C.bd_min and one_vm(qL): nl += 1; flags()
                E.pos += 1000; flags(); E.pos -= 1000
            mains[M3]["pre"].insert(0, boundary)
        b2q = list(range(50 if isA else 56, 72))
        prevpg = lambda n: max(k for k in range(n) if self.b2_chunk(k) == self.b2_chunk(n))
        for c in range(9):
            gap = M3 + 16 * c - D
            barrier(gap, [("b2", n) for n in range(8 * c, 8 * c + 8)] + (["xt"] if c == 7 else []), f"c{c}",
                    lds_tags=["sw", "xr"] if c == 8 else ())
            for n in first_use.get(c, []): mains[gap]["pre"].append(place(n))
            while b2q and L.last_use[("b2", prevpg(b2q[0]))] <= gap - 1: mains[gap]["pre"].append(place(b2q.pop(0)))
        assert not b2q
        RD = v(0, 16); SF = v(16, 16); XF = v(48, 16); XR = v(224, 8); tt = v(32, 4)
        vRW = vTR[0]; vRR = vTR[1]; vOW = vRINV; vOR = vNB; vOO = vTR[4]; vXD = vTR[5]; vXA = vG
        qF.add(chk_free(qE), earliest=M3 + 30); qF.add(chk_free(qE2), earliest=M3 + 30)
        its = [valu("v_lshrrev_b32", tt[0], 4, vL16), valu("v_and_b32", tt[1], 31, tt[0]),
               valu("v_lshrrev_b32", tt[2], 5, tt[0]), valu("v_lshlrev_b32", tt[2], 3, tt[2]),
               salu("s_lshr_b32", sT0, sM0B, 3), salu("s_add_u32", sT0, sT0, TB), valu("v_add_u32", vRW, sT0, vL16),
               valu("v_xor_b32", vRR, 8192, vRW),
               salu("s_and_b32", sT0, sW, 1), salu("s_lshl_b32", sT1, sT0, 12), salu("s_add_u32", sT1, sT1, TB + 16384),
               valu("v_lshlrev_b32", tt[3], 7, tt[1]), valu("v_add3_u32", vXA, tt[3], tt[2], sT1),
               valu("v_and_b32", tt[3], 7, tt[0]), valu("v_lshlrev_b32", tt[3], 4, tt[3]),
               salu("s_lshl_b32", sT1, sKH, 6), valu("v_xor_b32", tt[3], sT1, tt[3]), valu("v_add_u32", vXA, vXA, tt[3]),
               salu("s_mul_i32", sT0, sT0, 32 * 144, scc_w=False), salu("s_add_u32", sT0, sT0, sT1), salu("s_add_u32", sT0, sT0, TB),
               valu("v_mul_u32_u24", tt[1], 144, tt[1]), valu("v_add3_u32", vOW, tt[1], tt[2], sT0),
               valu("v_lshrrev_b32", tt[1], 3, tt[0]), valu("v_and_b32", tt[2], 0x70, vL16),
               valu("v_lshl_add_u32", vOO, tt[1], 10, tt[2]),
               valu("v_lshlrev_b32", tt[3], 4, tt[1]), valu("v_xor_b32", vXD, vOO, tt[3]),
               salu("s_mul_i32", sT0, sW, 16 * 144, scc_w=False), salu("s_add_u32", sT0, sT0, TB),
               valu("v_mul_u32_u24", tt[1], 144, tt[1]), valu("v_add3_u32", vOR, tt[1], tt[2], sT0),
               salu("s_lshl_b32", sXk, sW, 11), salu("s_add_u32", sXk, sXk, TB + 16384), salu("s_add_u32", sXs, sOut, 8192)]
        its += [vload(XR.sub(0, 4), vXD, SX, sOut), vload(XR.sub(4, 4), vXD, SX, sXs), valu("v_add_u32", vXD, sXk, vL16)]
        if C.pre_out: its += [self.touch(vOO, SOUT, sOut, dst=vSP[0]), self.touch(vOO, SOUT, sXs, dst=vSP[0])]
        qF.adds(its, earliest=M3 + 30, deadline=M3 + 64)
        qF.adds([ds_wr(vXD, XR.sub(4 * i, 4), 1024 * i, tag="xt") for i in range(2)], earliest=M3 + 96 - D, deadline=M3 + 112 - D - 2)
        its = []
        for a_ in range(4):
            its += [valu("v_xor_b32", tt[a_], 16 * a_, vXA), ds_rd(XR.sub(2 * a_, 2), tt[a_], 0, tag="xr")]
        qF.adds(its, earliest=M3 + 112 - D, deadline=M3 + 128 - D - 1)
        qF.adds([ds_wr(vRW, ACCS[1].sub(4 * i, 4), 1024 * i, tag="sw") for i in range(4)], earliest=M3 + 111, deadline=M3 + 128 - D)
        its = []
        for r in range(8):
            its += [valu("v_lshlrev_b32", XF[2 * r], 16, XR[r]), valu("v_and_b32", XF[2 * r + 1], sHI, XR[r])]
        qF.adds(its, earliest=M3 + 112)
        its = [ds_rd(SF.sub(4 * i, 4), vRR, 1024 * i) for i in range(4)]
        its += [valu("v_add_f32", SF[r], SF[r], ACCS[0][r]) for r in range(16)]
        CK = v(38, 2); C1 = v(40, 2)
        its += [valu("v_mov_b32", CK[0], 0xbfb8aa3b), valu("v_mov_b32", CK[1], 0xbfb8aa3b), valu("v_mov_b32", C1[0], 1.0), valu("v_mov_b32", C1[1], 1.0)]
        qF.adds(its, earliest=M3 + 128 - D)
        if C.lastk > 1:
            gl = M3 + 144 - C.lastk
            for x in range(len(qF.items)): qF.items[x] = (qF.items[x][0], qF.items[x][1], min(qF.items[x][2], gl + 1), True)
            qF.adds([ds_wr(vRW, ACCD[1].sub(4 * i, 4), 16384 + 1024 * i, tag="dw") for i in range(4)], earliest=gl, deadline=M3 + 142)
            def xch(E):
                E.wait_tags(lds=["dw"]); E.barrier(); self.stamp("sbar")
                for i in range(4): E.emit(ds_rd(RD.sub(4 * i, 4), vRR, 16384 + 1024 * i))
            mains[M3 + 143]["pre"].append(xch)
        cap2 = C.cap2A if isA else C.cap2B
        def capf(g):
            if not isA and not qE.empty(): return C.cap2h
            if g < tail + tl - 1: return cap2
            if g < M3: return C.cap2t
            if not qE2.empty(): return 40
            if g >= M3 + 144 - C.lastk: return C.capl
            return C.cap3 if qE.empty() else C.cap3x
        schedule(E, mains[M2:], [qFl, qP, qD, qG, qL, qB, qW, qU, qR, qE2, qE, qF], capf, M2, flush=False,
                 vm_gap=lambda g: C.vm1 if g < M3 else C.vm3)
        assert qL.empty() and qD.empty() and qB.empty() and qE.empty() and qE2.empty() and qFl.empty()
        self.stamp("lastm")
        while not qF.empty():
            it = qF.head()[0]; qF.n += 1; run_item(E, it)
        if C.lastk <= 1:
            for i in range(4): e(ds_wr(vRW, ACCD[1].sub(4 * i, 4), 16384 + 1024 * i, tag="dw"))
            E.wait_tags(lds=["dw"]); E.barrier()
            self.stamp("sbar")
            for i in range(4): e(ds_rd(RD.sub(4 * i, 4), vRR, 16384 + 1024 * i))
        G = ACCS[1]
        def pk(op, d, *src):
            r = set()
            for x in src: r |= ids(x)
            return I(f"{op} {d}, " + ", ".join(fmt(x) for x in src), "valu", r, ids(d))
        P2 = lambda reg, r: reg.sub(r, 2)
        for a_ in range(4):
            pp_ = (4 * a_, 4 * a_ + 2); rr = range(4 * a_, 4 * a_ + 4)
            for r in pp_: e(pk("v_pk_add_f32", P2(RD, r), P2(RD, r), P2(ACCD[0], r)))
            for r in pp_: e(pk("v_pk_mul_f32", P2(G, r), P2(RD, r), CK))
            for r in pp_: e(pk("v_pk_mul_f32", P2(RD, r), P2(RD, r), P2(SF, r)))
            for r in rr: e(valu("v_exp_f32", G[r], G[r]))
        for a_ in range(4):
            pp_ = (4 * a_, 4 * a_ + 2); rr = range(4 * a_, 4 * a_ + 4)
            for r in pp_: e(pk("v_pk_add_f32", P2(G, r), P2(G, r), C1))
            for r in rr: e(valu("v_rcp_f32", G[r], G[r]))
        for a_ in range(4):
            pp_ = (4 * a_, 4 * a_ + 2)
            for r in pp_: e(pk("v_pk_fma_f32", P2(RD, r), P2(RD, r), P2(G, r), P2(XF, r)))
            for d in range(2): e(valu("v_cvt_pk_bf16_f32", XR[2 * a_ + d], RD[4 * a_ + 2 * d], RD[4 * a_ + 2 * d + 1]))
            e(ds_wr(vOW, XR.sub(2 * a_, 2), 16 * a_))
        E.wait_all_lds(); E.barrier()
        for p in range(2): e(ds_rd(G.sub(4 * p, 4), vOR, 8 * 144 * p))
        for p in range(2): e(vstore(G.sub(4 * p, 4), vOO, SOUT, sXs if p else sOut, 0, fl=C.out_fl))
        self.stamp("end")
        if C.amp:
            l = self.lab("amp")
            E.line("s_waitcnt lgkmcnt(0)")
            if C.amp.startswith("sk"):
                E.line(f"buffer_load_dword v0, off, {SDBG}, 0 offset:4 sc1"); E.line("s_waitcnt vmcnt(0)"); E.line(f"v_readfirstlane_b32 {sT1}, v0"); E.line("s_nop 4")
                if C.amp == "skp": E.line(f"s_sub_u32 {sT0}, s{STAMP0}, {sT1}")
                else: E.line(f"s_sub_u32 {sT0}, {sT1}, s{STAMP0}")
                E.line(f"s_max_i32 {sT0}, {sT0}, 0")
            else:
                k0, k1 = [STAMP0 + 2 * int(x) for x in C.amp.split("-")]
                E.line(f"s_sub_u32 {sT0}, s{k1}, s{k0}")
            if C.ampsel >= 0:
                E.line(f"s_lshr_b32 {sT1}, {sWG}, 5"); E.line(f"s_cmp_eq_u32 {sT1}, {C.ampsel}"); E.line(f"s_cselect_b32 {sT0}, {sT0}, 0")
            if C.ampx >= 0:
                E.line(f"s_and_b32 {sT1}, {sWG}, 7"); E.line(f"s_cmp_eq_u32 {sT1}, {C.ampx}"); E.line(f"s_cselect_b32 {sT0}, {sT0}, 0")
            pass; E.line(f"s_lshl_b32 {sT0}, {sT0}, 2"); E.line(f"s_add_u32 {sT0}, {sT0}, s{STAMP0 + 16}")
            E.label(l)
            E.line("s_memrealtime s[84:85]"); E.line("s_waitcnt lgkmcnt(0)"); E.line(f"s_sub_u32 s84, s84, {sT0}")
            E.line("s_cmp_lt_i32 s84, 0"); E.line(f"s_cbranch_scc1 {l}")
        elif C.stamps:
            E.line("s_waitcnt lgkmcnt(0)")
            e(salu("s_lshl_b32", sT0, sWG, 2)); e(salu("s_add_u32", sT0, sT0, sW)); e(salu("s_lshl_b32", sT0, sT0, 7))
            e(salu("s_add_u32", sT0, sT0, WS_STAMP))
            for k in range(9):
                e(valu("v_mov_b32", v(0), s(STAMP0 + 2 * k))); e(vstore(v(0), None, SWS, sT0, 4 * k))
            e(accr(v(0), a(198))); e(vstore(v(0), None, SWS, sT0, 44))
            E.line("s_memrealtime s[84:85]"); E.line("s_getreg_b32 s86, hwreg(HW_REG_XCC_ID)"); E.line("s_waitcnt lgkmcnt(0)")
            e(valu("v_mov_b32", v(0), s(84))); e(vstore(v(0), None, SWS, sT0, 36))
            e(valu("v_mov_b32", v(0), s(86))); e(vstore(v(0), None, SWS, sT0, 40))
        E.line("s_endpgm")
        E.out += self.cold

    def epoch_publish(self):
        E = self.E
        l = self.lab("nopub")
        E.emit(salu("s_or_b32", sT0, sWG, sW))
        E.line(f"s_cbranch_scc1 {l}")
        E.line(f"s_mov_b32 {sT0}, 0x9e3779b1")
        E.line(f"v_mul_lo_u32 {vPOLL}, {vPOLL}, {sT0}")
        E.line(f"v_add_u32 {vPOLL}, 0x7f4a7c15, {vPOLL}")
        E.line(f"v_max_u32 {vPOLL}, 1, {vPOLL}")
        E.line(f"s_mov_b32 {sT0}, {WS_EPOCH}")
        E.line(f"buffer_store_dword {vPOLL}, off, {SWS}, {sT0} sc1")
        if C.amp.startswith("sk"):
            E.line(f"v_mov_b32 v0, s{STAMP0}"); E.line(f"buffer_store_dword v0, off, {SDBG}, 0 offset:4 sc1"); E.line("s_waitcnt vmcnt(0)")
        E.line(f"buffer_store_dword {vPOLL}, off, {SDBG}, 0 sc1")
        E.label(l)

    def attention(self, q, xfree):
        M2 = self.M2
        Q0, Q1, K0, K1, V0, V1 = [ACC1(t) for t in range(6)]
        cvt = lambda d, x, y: valu("v_cvt_pk_bf16_f32", d, x, y)
        def pack(dst, src, n=8): return [cvt(dst[i], src[2 * i], src[2 * i + 1]) for i in range(n)]
        its = pack(K0, K0) + pack(K0.sub(8, 8), K1)
        its += [ds_wr(vEX, K0.sub(4 * h, 4), 6144 + 1024 * h, tag="exw") for h in range(4)]
        its += pack(V0, V0) + pack(V0.sub(8, 8), V1)
        bar2 = M2 + C.exbar
        q.adds(its, earliest=M2 - 21, deadline=bar2 - 1)
        its = [ds_wr(vEX, V0.sub(4 + 8 * j, 4), 6144 + 4096 + 1024 * j, tag="exw") for j in range(2)]
        its += [accr(NT[i], aHACC[0][i]) for i in range(4)] + [accr(NT[4 + i], aHACC[1][i]) for i in range(4)]
        hk = v(NT[0].lo, 2); hv = v(NT[4].lo, 2)
        its += [cvt(NT[0], NT[0], NT[1]), cvt(NT[1], NT[2], NT[3]), cvt(NT[4], NT[4], NT[5]), cvt(NT[5], NT[6], NT[7])]
        its += [salu("s_lshl_b32", sT0, sW, 10), salu("s_add_u32", sT0, sT0, 256), valu("v_add_u32", NT[2], sT0, vHW),
                salu("s_lshr_b32", sT0, sW, 1), salu("s_lshl_b32", sT0, sT0, 10), salu("s_and_b32", sT1, sW, 1),
                salu("s_lshl_b32", sT1, sT1, 8), salu("s_add_u32", sT0, sT0, sT1), valu("v_add_u32", NT[3], sT0, vHW),
                ds_wr(NT[2], hk, 0, tag="exw"), ds_wr(NT[3], hv, 4096, tag="exw")]
        q.adds(its, earliest=M2 - 1, deadline=bar2 - 1)
        self.exw_check = (q, len(q.items))
        q.adds(pack(Q0, Q0) + pack(Q0.sub(8, 8), Q1), earliest=M2)
        MASK = v(208, 24)
        its = [accr(vRINV, a(196)), accr(vNB, a(197)), smov(sONE, NEG)]
        for r in range(24):
            rr = r if r < 16 else r - 8
            its += [valu("v_bfe_i32", MASK[r], vNB if r < 16 else vRINV, 8 * (rr >> 2) + (rr & 3), 1), valu("v_and_b32", MASK[r], sONE, MASK[r])]
        q.adds(its, earliest=M2)
        q.add(lambda E: self.mark.update(masks=True), earliest=M2)
        SC = K1; SP = v(0, 16); U = v(16, 8); P = v(24, 12); O = Q1
        mx, tm, mc = vRINV, vNB, vW16
        sums = [vHX, vH]; t2 = vTR[4]
        def add(i, ear=0):
            w = [x for x in i.w if x < 128]
            e_ = max([xfree(v(x)) for x in w], default=0)
            q.add(i, earliest=max(e_, ear))
        def qk(h, which):
            if which == 0: add(mfma(SC, K0.sub(4 * h, 4), Q0.sub(4 * h, 4), MASK.sub(0, 16)))
            else: add(mfma(SP, aKP[h], Q0.sub(4 * h, 4), MASK.sub(8, 16)))
        def fin(h):
            o = 8 * (h & 1); sm = sums[h & 1]
            l = [valu("v_rcp_f32", sm, sm)]
            l += [valu("v_mul_f32", O[o + r], O[o + r], sm) for r in range(8)]
            l += [cvt(O[o + r], O[o + 2 * r], O[o + 2 * r + 1]) for r in range(4)]
            l.append(self.a2_store(O.sub(o, 4), sStF, h, "o"))
            return l
        qk(0, 0)
        q.adds([ds_rd(aKP[h], vEX, 1024 * h) for h in range(4)] + [ds_rd(aVP[j], vEX, 4096 + 1024 * j) for j in range(2)], earliest=bar2)
        qk(0, 1)
        for h in range(4 if not C.abl_att else 1):
            for i in range(4): add(valu("v_max_f32", U[i], SC[2 * i], SC[2 * i + 1]))
            for i in range(4, 8): add(valu("v_max3_f32", U[i], SC[2 * i], SC[2 * i + 1], SP[2 * i]))
            if h < 3: qk(h + 1, 0)
            for i in range(4, 8): add(valu("v_max_f32", U[i], U[i], SP[2 * i + 1]))
            add(valu("v_max3_f32", mx, U[0], U[1], U[2])); add(valu("v_max3_f32", tm, U[3], U[4], U[5]))
            if h < 3: qk(h + 1, 1)
            add(valu("v_max3_f32", mx, mx, U[6], U[7])); add(valu("v_max_f32", mx, mx, tm))
            add(valu("v_mov_b32", tm, mx))
            fl = fin(h - 1) if h > 0 else []
            for x in fl[:3]: add(x)
            add(swap32(mx, tm)); add(valu("v_max_f32", mx, mx, tm))
            add(I(f"v_mul_f32 {mc}, -{mx}, {sCSC}", "valu", mx.ids() | sCSC.ids(), mc.ids()))
            for x in fl[3:]: add(x)
            for i in range(8): add(valu("v_fma_f32", U[i], U[i], sCSC, mc))
            for i in range(8): add(valu("v_exp_f32", U[i], U[i]))
            sm = sums[h & 1]; j = h >> 1
            for i in range(4):
                add(cvt(P[i], U[i], U[i])); add(valu("v_and_b32", P[i], vPM, P[i]))
            add(valu("v_add_f32", sm, U[0], U[1])); add(valu("v_add_f32", tm, U[2], U[3]))
            add(mfma(O, V0.sub(8 * j, 4), P.sub(0, 4), 0))
            for i in range(4):
                add(cvt(P[8 + i], U[4 + i], U[4 + i])); add(valu("v_and_b32", P[4 + i], vMHC, P[8 + i]))
            add(valu("v_add_f32", t2, U[4], U[5])); add(valu("v_add_f32", sm, sm, tm))
            add(mfma(O, V0.sub(8 * j + 4, 4), P.sub(4, 4), O))
            for i in range(4): add(valu("v_and_b32", P[8 + i], vMHP, P[8 + i]))
            add(valu("v_add_f32", tm, U[6], U[7])); add(valu("v_add_f32", t2, t2, tm))
            add(mfma(O, aVP[j], P.sub(8, 4), O))
            add(valu("v_add_f32", sm, sm, t2))
            add(valu("v_mov_b32", tm, sm))
            add(swap32(sm, tm)); add(valu("v_add_f32", sm, sm, tm))
        for x in fin(3): add(x)

    def build(self):
        E = self.E
        self.stamp("t00")
        E.emit(scmp("s_cmp_ge_u32", sWG, 256))
        E.line("s_cbranch_scc1 L_end")
        E.line("s_load_dwordx16 s[8:23], s[0:1], 0")
        E.line("s_load_dwordx4 s[24:27], s[0:1], 64")
        E.emit(salu("s_lshr_b32", sJ, sWG, 3))
        self.code_touch()
        E.emit(I("s_bitcmp1_b32 s6, 3", "salu", sJ.ids(), {SCC}))
        E.line("s_cbranch_scc1 L_typeB")
        snap = E.snapshot()
        self.body("A")
        E.label("L_typeB")
        E.restore(snap)
        self.body("B")
        E.label("L_end")
        E.line("s_endpgm")
        E.label("L_code_end")
        E.out.append(".p2align 12")
        head = open(os.path.join(os.path.dirname(os.path.abspath(__file__)), "head.txt")).read()
        txt = head + f"""; @launch grid=(256,1,1) block=(256,1,1) lds=163840
.amdgcn_target "amdgcn-amd-amdhsa--gfx950"
.text
.globl {NAME}
.p2align 8
.type {NAME},@function
{NAME}:
""" + E.text() + f""".section .rodata,"a"
.p2align 6
.amdhsa_kernel {NAME}
  .amdhsa_next_free_vgpr 512
  .amdhsa_next_free_sgpr 102
  .amdhsa_accum_offset 256
  .amdhsa_group_segment_fixed_size 0
  .amdhsa_kernarg_size 80
  .amdhsa_user_sgpr_count 2
  .amdhsa_user_sgpr_kernarg_segment_ptr 1
  .amdhsa_system_sgpr_workgroup_id_x 1
.end_amdhsa_kernel
"""
        return txt


def place_pads(txt):
    import subprocess, re, tempfile
    sys.path.insert(0, "cdna_kernels")
    from cdna_launch import with_harness_metadata
    lines = txt.split("\n")
    probe = []
    for n, l in enumerate(lines):
        if l.startswith("    ") and not l.strip().startswith(";") and not l.strip().startswith("."): probe.append(f"LP_{n}:")
        probe.append(re.sub(r"L_pad[AB]_\d+", "L_end", l))
    d = tempfile.mkdtemp()
    open(d + "/p.s", "w").write(with_harness_metadata("\n".join(probe), NAME, 10, launch_lists=True))
    subprocess.run(["clang", "-x", "assembler", "-target", "amdgcn-amd-amdhsa", "-mcpu=gfx950", d + "/p.s", "-o", d + "/p.co"], check=True)
    sym = subprocess.run(["llvm-objdump", "-t", d + "/p.co"], capture_output=True, text=True).stdout
    addr = {int(m.group(2)): int(m.group(1), 16) for m in re.finditer(r"([0-9a-f]{16}) .* LP_(\d+)", sym)}
    shift = 0; typ = None; pads = {"A": [], "B": []}; prev = None
    for n, l in enumerate(lines):
        if l.startswith(";PADS_FROM"): typ = l.split()[1]
        if l.startswith("L_typeB:") or l.startswith("L_end:"): typ = None
        if n in addr:
            a_ = addr[n] + shift
            if typ and prev is not None and prev // 4096 != a_ // 4096:
                pads[typ].append(n); shift += 4
            prev = a_
    out = []
    for n, l in enumerate(lines):
        for t in "AB":
            if n in pads[t]:
                k = pads[t].index(n)
                out.append(f"L_pad{t}_{k}:")
                out.append(f"    s_cbranch_execz " + (f"L_pad{t}_{k + 4}" if k + 4 < len(pads[t]) else f"L_back{t}"))
        out.append(l)
    print("pads", {t: len(pads[t]) for t in pads}, "kernel at", hex(min(addr.values())))
    assert min(len(pads[t]) for t in pads) >= 4
    return "\n".join(out)


if __name__ == "__main__":
    g = Gen()
    txt = g.build()
    if C.pads: txt = place_pads(txt)
    open(sys.argv[1], "w").write(txt)
    print("instructions:", g.E.ninst)
```

```python
import sys, os
sys.path.insert(0, os.path.dirname(os.path.abspath(__file__)))
from emit import *

NAME = "recurrent_scan__sliding_local_dilated__glu_gated_bilinear__prompt_kernel"

class Cfg:
    stamps = False
    stset = "a"
    rt = False
    D = 6
    nahead = 8; cap1A = 7.0; cap1B = 6.8; cap1t = 12.0; cap2h = 9.0; cap2A = 7.5; cap2B = 7.0; cap3 = 7.0; cap2t = 7.5; cap3x = 20.0
    npre = 140
    att_gate = 0.7; gate0B = -44; vm1 = 2.0; vm3 = 8.0; nrawA = 0; nrawB = 14; warm_gA = 1; warm_gB = 1; warm_off = 12; warm_mode = 0; scal_span = 30; b2gA = 4; b2gB = 3; raw0A = 130; raw0B = 270
    rot = True; rot_half = False
    pads = True
    la1 = 14; la2 = 14; la3 = 18; la4A = 13; la4B = 18
    polld = 34
    flagd = 600
    b2lead = 24; a2lead = 30; att_end = 30
    dbg_st = False; dbg_a2 = 0; dbg_dump = False; dbg_bar = False
    amp = ""; ampsel = -1; ampx = -1
    lg_old = 10; vmfirst = False
    abl_norm = False; abl_tr = 0; abl_tr2 = False; abl_att = False
    bd_pace = 16; bd_nl = 14; bd_min = 12
    fifo0 = 3.0; per3 = 56.0; poll2 = 0
    qkv_byB = True
    fs = 1024; skip3 = False; rot3 = True
    ctrot = 0; k1B = 30; flstride = 1024
    lastk = 1; capl = 7.0
    wsoff = 0; pre_out = False
    rot2 = True; flagl = 300; flag1 = 300
    raw = True; raw0 = 84
    npre_norm = 1; npre_normA = 1; hn_at = 4; dots_first = 6; exbar = 12; npoll = 3
    w3early = True
    w0at = 4; touch_w0 = 4; x2early = False
    touch_code = True
    touch_b2 = False; b2g = 4
    warm_all = True; warm_byA = False
    a2_fl = "sc1"; st_fl = "sc1"; pre_a2 = 0; x_fl = ""; w_fl = ""; b2_fl = ""; out_fl = ""
    spin_max = 1 << 16

C = Cfg()
import emit as _emit
for arg in sys.argv[2:]:
    k, val = arg.split("=")
    old = getattr(C, k)
    setattr(C, k, (val not in ("0", "False")) if isinstance(old, bool) else type(old)(val.replace("+", " ")))

Emitter.LG_OLD = C.lg_old
WS_FLAG = 0x1C00000
WS_EPOCH = 0x1D00000
WS_STAMP = 0x1E00000
WS_SIZE = 0x1F00000
FS = C.fs
FLO = [0, 128, 256, 512, 640]
TB = 131072

sWG = s(2); sW = s(3); sRB = s(4); sIDX = s(5); sJ = s(6); sXCD = s(7)
SX, SWO, SWG_, SWD, SDBG, SP5, SWU, SOUT, SWS, SP9 = [s(8 + 4 * i, 4) for i in range(10)]
SQKV = SWG2 = SP5; SWH = SWU2 = SP9
(sA2s, sB2s, sM0B, sT0, sT1, sS1, sS2, sS2b, sTAG, sFLW, sFLR, sStF, sStH, sSt2, sHI, sONE, sSPIN, sT2, sOut, sT5,
 sRT, sCT, sKH, sCSC, sXs, sM0T, sXo, sXk, sROT, sC512, sA2c0, sA2c1, sA2c2, sB2c0, sB2c1, sB2c2) = [s(48 + i) for i in range(36)]
sA2c = [sA2c0, sA2c1, sA2c2]; sB2c = [sB2c0, sB2c1, sB2c2]
sHo = sB2s
sG3 = [sB2c0, s(0), s(1), s(5)]; sG1 = [sB2c2, s(6), s(7), sC512]
sPC = s(48, 2)
STAMP0 = 84

def X(ks): return v(4 * ks, 4)
def ACC1(t): return v(128 + 16 * t, 16)
NT = [v(224 + i) for i in range(8)]
vTR = [v(232 + i) for i in range(6)]
vG = v(238); vU = v(239); vH = v(240)
vB2 = v(241); vTW = v(242)
vL16 = v(243); vRINV = v(244); vNB = v(245); vW16 = v(246); vHX = v(247)
vTAG = v(248); vPOLL = v(249); vP4 = v(250); vTB = vTAG
vEX = v(251); vHW = v(252); vPM = v(253); vMHC = v(254); vMHP = v(255)
vTR2T = [v(42), v(43)]; vTR2 = [v(44), v(45)]; vWQ = v(46)
vPL = [vPOLL, v(36), v(37), v(47)]
vA2O = vTW
vSP = [v(39), v(41)]
PARKED = vTR2T + vTR2
E2T = v(48, 16)
ACCD = [v(64, 16), v(80, 16)]; ACCS = [v(96, 16), v(112, 16)]
def WF(m): return a(4 * (m % 12), 4)
def ACC2(t): return a(48 + 16 * t, 16)
aMASK = a(112, 24); aKP = [a(136 + 4 * i, 4) for i in range(4)]; aVP = [a(152 + 4 * i, 4) for i in range(2)]
aHACC = [a(160, 4), a(164, 4)]; aXH = [a(168, 4), a(172, 4)]
aW16 = [[a(176, 4), a(180, 4)], [a(184, 4), a(188, 4)]]
aPARK = 192
aDUM0 = a(199); vDUM1 = v(37)

NEG = 0xf149f2ca


class LDSMap:
    def __init__(self):
        self.own = {c: ("x", c // 4) for c in range(32)}
        for c in range(32, 40): self.own[c] = ("T",)
        self.last_use = {}
        self.visible = set()
        self.bar_m = -1
        self.xread = set()
    def alloc(self, obj, chunks):
        for c in chunks:
            o = self.own[c]
            if o[0] == "x": assert o[1] in self.xread, (obj, c, o)
            else: assert self.last_use[o] <= self.bar_m, (obj, c, o, self.last_use[o], self.bar_m)
            self.own[c] = obj
    def check_read(self, obj, chunks):
        assert obj in self.visible, ("not visible", obj)
        for c in chunks: assert self.own[c] == obj, (obj, c, self.own[c])


SHIFT = [48, 8, 16]


def step_info(n):
    if n < 32: return 16 + 12 * (n >> 3) + (n & 7), 0, 0
    if n < 40: return n - 32, 1, 1
    if n < 56: return 112 + n - 40, 2, 3
    hi = n >= 64; k = (n - 56) & 7
    return 24 + 12 * (k >> 1) + (k & 1) + 2 * hi, 0, (4 if hi else 2)


class Gen:
    def __init__(self):
        self.E = Emitter()
        self.E.trace = bool(os.environ.get("TRACE"))
        self.nlabel = 0
        self.nstamp = 0

    def lab(self, base):
        self.nlabel += 1
        return f"L_{base}_{self.nlabel}"

    STS = {"a": ["t0", "issued", "x0", "xdone", "s1", "s2", "p2", "lastm", "end"],
           "b": ["t0", "g0a", "g0b", "p2", "g1a", "g1b", "g2a", "g2b", "end"],
           "e": ["t0", "karg", "issued", "rest", "pads", "x0", "x1", "x3", "end"],
           "f": ["t0", "x4", "x5", "x6", "x7", "xdone", "s1", "b1", "end"],
           "g": ["t0", "s1", "b1a", "b1", "b2a", "b2", "b3a", "b3", "end"],
           "h": ["t0", "b3", "b4", "b5", "b6", "b7", "b8", "s2", "end"],
           "j": ["t0", "g2b", "n48", "n55", "n56", "n60", "n64", "n71", "end"],
           "k": ["t0", "g0b", "n0", "n4", "n8", "n16", "n24", "n31", "end"],
           "l": ["t0", "g1b", "g3b", "n31", "n32", "n39", "n40", "n47", "end"],
           "m": ["t0", "n0", "n8", "n16", "n24", "n32", "n40", "n56", "end"],
           "n": ["t0", "c0a", "c0", "c1a", "c1", "c2a", "c2", "c3a", "c3"],
           "o": ["t0", "c4a", "c4", "c5a", "c5", "c6a", "c6", "c7a", "c7"],
           "p": ["t0", "g0a", "g0b", "g1a", "g1b", "g3a", "g3b", "g2a", "g2b"],
           "q": ["t0", "s2", "f0a", "f0b", "g0a", "g0b", "f2a", "f2b", "end"],
           "r": ["t0", "s1", "b1", "b2", "b3", "b4", "b5", "b6", "b7"],
           "s": ["t0", "b7", "b8", "b9", "b10", "b11", "c0", "c1", "c2"],
           "t": ["n16", "n17", "n18", "n19", "n20", "n21", "n22", "n23", "n24"],
           "u": ["n40", "n41", "n42", "n43", "n44", "n45", "n46", "n47", "n48"],
           "v": ["n60", "n61", "n62", "n63", "n64", "n65", "n66", "n67", "n68"],
           "w": ["t00", "t0", "karg", "issued", "rest", "pads", "x0", "xdone", "end"],
           "x": ["t0", "issued", "pads", "x0", "x2", "x4", "x7", "bx", "s1"],
           "y": ["t0", "x4", "x5", "x6", "x7", "xdone", "bx", "s1", "b1"],
           "z": ["t0", "p2", "f2b", "f4b", "g2a", "g2b", "g4a", "g4b", "end"],
           "0": ["t0", "end"],
           "AMP": ["t0", "-1", "-2", "-3", "-4", "-5", "-6", "-7", "end"],
           "F": ["t0", "s1", "s2", "f0b", "f1b", "f3b", "f4b", "g3b", "g4b"],
           "G": ["t0", "g0a", "g0b", "g3a", "g3b", "g2a", "g2b", "g4a", "g4b"],
           "i": ["t0", "s2", "g0a", "g0b", "p2", "c1", "g1a", "g1b", "end"],
           "d": ["t0", "p2", "g1b", "g3a", "g3b", "g2a", "g2b", "lastm", "end"],
           "c": ["t0", "p2", "c1", "c3", "c5", "c7", "lastm", "sbar", "end"]}

    def stamp(self, name):
        if C.stset.startswith("B"):
            g = int(C.stset[1:]); self.STS[C.stset] = [f"b{g}"] + [f"b{g + k}{x}" for k in range(1, 5) for x in ("a", "")]
        if C.stset.startswith("N"): self.STS[C.stset] = [f"n{int(C.stset[1:]) + k}" for k in range(9)]
        if C.stamps and name in self.STS[C.stset]:
            k = self.STS[C.stset].index(name)
            self.E.line(f"{'s_memrealtime' if C.rt else 's_memtime'} s[{STAMP0 + 2 * k}:{STAMP0 + 2 * k + 1}]")

    def setup_first(self, typ):
        o = []; e = o.append
        lane = self.lane; vx = self.vx; t0, t1, t2 = v(201), v(202), v(203)
        e(valu("v_and_b32", lane, 63, v(0)))
        e(valu("v_lshrrev_b32", t0, 6, v(0)))
        e(salu("s_and_b32", sXCD, sWG, 7))
        e(rfl(sW, t0))
        e(salu("s_and_b32", sRB, sXCD, 1)); e(salu("s_lshl_b32", sRB, sRB, 3))
        e(salu("s_and_b32", sT0, sJ, 7)); e(salu("s_add_u32", sRB, sRB, sT0))
        e(salu("s_and_b32", sIDX, sXCD, 6)); e(salu("s_lshr_b32", sT0, sJ, 4)); e(salu("s_add_u32", sIDX, sIDX, sT0))
        e(valu("v_and_b32", t0, 7, lane)); e(valu("v_lshrrev_b32", t1, 4, lane)); e(valu("v_xor_b32", t0, t0, t1))
        e(valu("v_lshlrev_b32", t0, 4, t0))
        e(valu("v_lshrrev_b32", t1, 3, lane)); e(valu("v_lshlrev_b32", t1, 10, t1))
        e(valu("v_or_b32", vx[0], t0, t1)); e(valu("v_xor_b32", t2, 64, vx[0]))
        e(valu("v_add_u32", vx[1], 7168, t2)); e(valu("v_add_u32", vx[2], 2 * 7168, vx[0])); e(valu("v_add_u32", vx[3], 3 * 7168, t2))
        e(salu("s_lshl_b32", sM0B, sW, 15))
        e(salu("s_lshl_b32", sT0, sRB, 17)); e(salu("s_add_u32", sXo, sT0, sM0B))
        e(salu("s_lshr_b32", sT1, sJ, 3)); e(salu("s_add_u32", sT1, sT1, sJ)); e(salu("s_and_b32", sROT, sT1, (1 if C.rot_half else 3) if C.rot else 0))
        if C.rot_half: e(salu("s_lshl_b32", sROT, sROT, 1))
        e(salu("s_lshl_b32", sXk, sROT, 8))
        e(smov(SWS[2], WS_SIZE)); e(smov(SWS[3], 0x20000))
        if typ == "A":
            e(smov(SQKV[2], 512 * 3072)); e(smov(SQKV[3], 0x20000))
            hs = self.hs
            e(salu("s_sub_u32", sT1, sT0, 16 * 1024))
            e(valu("v_add_u32", hs[0], sT1, vx[0])); e(salu("s_add_u32", sT1, sT1, 1024)); e(valu("v_add_u32", hs[1], sT1, vx[1]))
            e(salu("s_add_u32", sHo, sW, sROT)); e(salu("s_and_b32", sHo, sHo, 3)); e(salu("s_lshl_b32", sHo, sHo, 8))
            e(salu("s_lshr_b32", sS2b, sM0B, 3))
            e(salu("s_lshl_b32", sT2, sIDX, 1))
            e(salu("s_lshl_b32", sS1, sIDX, 7))
        else:
            e(salu("s_mul_i32", sT2, sIDX, 12, scc_w=False)); e(salu("s_add_u32", sT2, sT2, 24))
            e(salu("s_lshl_b32", sS1, sT2, 5)); e(salu("s_sub_u32", sS1, sS1, 256))
            for d, sh in ((SWU, 1024), (SWG2, 1920), (SWU2, 2944)):
                e(smov(d[2], 512 * 3584 + sh)); e(smov(d[3], 0x20000))
        st1 = 3072 if typ == "A" else 3584
        e(salu("s_mul_i32", sT0, sROT, 128 * st1, scc_w=False)); e(salu("s_add_u32", sS1, sS1, sT0))
        if C.touch_w0:
            e(valu("v_and_b32", t0, C.touch_w0 - 1, lane)); e(valu("v_mul_u32_u24", t0, st1, t0))
            if typ == "A":
                e(valu("v_lshrrev_b32", t1, 4, lane)); e(valu("v_min_u32", t1, 2, t1)); e(valu("v_lshlrev_b32", t1, 10, t1))
            else:
                e(valu("v_bfe_u32", t1, lane, 4, 1)); e(valu("v_lshlrev_b32", t1, 7, t1))
            e(valu("v_add_u32", vTW, t0, t1))
            e(salu("s_and_b32", sT0, sJ, 4)); e(salu("s_and_b32", sT1, sXCD, 1)); e(salu("s_lshl_b32", sT1, sT1, 3))
            e(salu("s_add_u32", sT0, sT0, sT1)); e(salu("s_add_u32", sT0, sT0, sW))
            e(salu("s_mul_i32", sT0, sT0, C.touch_w0 * st1, scc_w=False)); e(salu("s_add_u32", sT5, sT0, sS1))
            if typ == "B" and C.qkv_byB:
                e(valu("v_and_b32", t0, 3, lane)); e(valu("v_mul_u32_u24", t0, 3072, t0))
                e(valu("v_lshrrev_b32", t1, 4, lane)); e(valu("v_min_u32", t1, 2, t1)); e(valu("v_lshlrev_b32", t1, 10, t1))
                e(valu("v_add_u32", vMHP, t0, t1))
                e(salu("s_and_b32", sT0, sRB, 3)); e(salu("s_lshl_b32", sT0, sT0, 5)); e(salu("s_and_b32", sT1, sRB, 12))
                e(salu("s_add_u32", sT0, sT0, sT1)); e(salu("s_add_u32", sT0, sT0, sW)); e(salu("s_mul_i32", sT0, sT0, 4 * 3072, scc_w=False))
                e(salu("s_lshl_b32", sT1, sIDX, 7)); e(salu("s_add_u32", sXs, sT0, sT1))
        return o

    def touch(self, voff, srd_, soff, imm=0, dst=None, fl=""):
        i = vload(dst or aDUM0, voff, srd_, soff, imm, fl=fl); i.w = set(); return i

    def consts(self, typ):
        o = []; e = o.append
        lane = self.lane
        t = [v(208 + i) for i in range(8)]
        li, g4, r2, hh, ub = v(190), v(191), v(192), v(193), v(194)
        e(valu("v_and_b32", li, 15, lane)); e(valu("v_lshrrev_b32", g4, 4, lane)); e(valu("v_lshrrev_b32", hh, 5, lane))
        e(valu("v_and_b32", ub, 1, g4)); e(valu("v_lshrrev_b32", r2, 2, li))
        e(valu("v_lshlrev_b32", vL16, 4, lane))
        e(smov(sHI, 0xffff0000)); e(smov(sONE, 0x3f803f80)); e(smov(sC512, 0x3b000000)); e(smov(sCSC, 0x3eb8aa3b))
        xa = self.xa
        e(valu("v_and_b32", t[0], 31, lane)); e(valu("v_lshlrev_b32", t[1], 7, t[0]))
        e(valu("v_bfe_u32", t[0], lane, 1, 3)); e(valu("v_xor_b32", t[0], t[0], hh)); e(valu("v_lshlrev_b32", t[0], 4, t[0]))
        e(valu("v_add_u32", t[1], sM0B, t[1]))
        for q in range(4):
            e(valu("v_xor_b32", t[2], 32 * q, t[0])); e(valu("v_add_u32", xa[q], t[1], t[2]))
        for r_ in self.acc: e(valu("v_mov_b32", r_, 0))
        if typ == "A":
            ha = self.ha
            e(valu("v_lshlrev_b32", t[1], 7, li)); e(valu("v_lshrrev_b32", t[0], 1, li)); e(valu("v_xor_b32", t[0], t[0], g4))
            e(valu("v_lshlrev_b32", t[0], 4, t[0]))
            e(salu("s_add_u32", sT0, sS2b, TB)); e(valu("v_add_u32", t[1], sT0, t[1]))
            e(valu("v_add_u32", ha[0], t[1], t[0])); e(valu("v_xor_b32", t[0], 64, t[0])); e(valu("v_add_u32", ha[1], t[1], t[0]))
            for r_ in self.hacc: e(valu("v_mov_b32", r_, 0))
            e(valu("v_add_u32", vHX, TB + 16384, vL16))
            e(valu("v_lshlrev_b32", ha[2], 3, lane)); e(valu("v_add_u32", ha[2], TB, ha[2])); e(valu("v_add_u32", ha[3], sS2b, ha[2]))
            e(valu("v_add_u32", ha[4], sS2b, vHX))
        e(salu("s_and_b32", sT0, sW, 1)); e(salu("s_lshl_b32", sT0, sT0, 4))
        e(salu("s_lshr_b32", sKH, sW, 1)); e(salu("s_lshl_b32", sT1, sKH, 3)); e(salu("s_add_u32", sT1, sT1, sT0))
        e(valu("v_lshrrev_b32", t[0], 3, lane)); e(valu("v_and_b32", t[1], 2, t[0])); e(valu("v_lshlrev_b32", t[1], 5, t[1]))
        e(valu("v_and_b32", t[2], 7, lane)); e(valu("v_lshlrev_b32", t[2], 4, t[2])); e(valu("v_xor_b32", t[2], t[2], t[1]))
        e(valu("v_add_u32", t[3], sT1, t[0]))
        if typ == "A":
            e(valu("v_mul_u32_u24", t[4], 3072, t[3])); e(valu("v_add_u32", vH, t[4], t[2]))
            e(salu("s_lshl_b32", sT0, sT0, 1))
            e(valu("v_lshrrev_b32", t[4], 2, lane)); e(valu("v_add_u32", t[4], sT0, t[4])); e(valu("v_mul_u32_u24", t[4], 3584, t[4]))
            e(valu("v_and_b32", t[5], 3, lane)); e(valu("v_lshlrev_b32", t[5], 4, t[5]))
            e(salu("s_lshl_b32", sT1, sKH, 5)); e(valu("v_xor_b32", t[5], sT1, t[5]))
            e(valu("v_add_u32", vG, t[4], t[5]))
            e(salu("s_lshl_b32", sS2, sT2, 5))
            e(smov(SWH[2], 512 * 3584)); e(smov(SWH[3], 0x20000))
        else:
            e(valu("v_mul_u32_u24", t[4], 3584, t[3])); e(valu("v_add_u32", vG, t[4], t[2]))
            e(valu("v_xor_b32", t[5], 32, t[2])); e(valu("v_add_u32", vU, t[4], t[5]))
            e(salu("s_mul_i32", sT0, sT0, 3584, scc_w=False))
            e(salu("s_lshl_b32", sS2, sT2, 5)); e(salu("s_add_u32", sS2, sS2, sT0))
        e(salu("s_mul_i32", sT0, sROT, 128 * 3584, scc_w=False)); e(salu("s_add_u32", sS2, sS2, sT0))
        e(valu("v_and_b32", vP4, 3, lane)); e(valu("v_lshlrev_b32", vP4, 2, vP4))
        e(valu("v_lshl_add_u32", vB2, t[0], 10, t[2]))
        if C.warm_all:
            ww = self.ww
            e(valu("v_min_u32", ww[0], 13, lane)); e(valu("v_lshlrev_b32", ww[0], 7, ww[0])); e(valu("v_lshlrev_b32", ww[1], 5, vP4))
            e(valu("v_and_b32", ww[2], 15 if typ == "A" else 7, lane)); e(valu("v_mul_u32_u24", ww[2], 3584, ww[2]))
        e(valu("v_lshlrev_b32", t[0], 7, r2))
        e(valu("v_and_b32", t[1], 3, lane)); e(valu("v_lshlrev_b32", t[1], 3, t[1])); e(valu("v_add_u32", t[0], t[0], t[1]))
        e(valu("v_and_b32", t[2], 2, r2))
        e(valu("v_or_b32", t[3], t[2], ub)); e(valu("v_lshlrev_b32", t[3], 5, t[3]))
        e(valu("v_lshlrev_b32", t[4], 16, hh)); e(valu("v_add_u32", t[4], t[4], t[0]))
        if typ == "A":
            for j in range(2):
                e(valu("v_xor_b32", t[6], 64 * j, t[3])); e(valu("v_add_u32", vTR[4 + j], t[6], t[4]))
            e(valu("v_lshlrev_b32", t[6], 3, hh)); e(valu("v_add_u32", t[6], t[6], r2)); e(valu("v_lshlrev_b32", t[6], 6, t[6]))
            e(valu("v_lshlrev_b32", t[7], 16, ub)); e(valu("v_add3_u32", t[6], t[6], t[7], t[1]))
            e(valu("v_lshlrev_b32", t[7], 5, ub)); e(valu("v_add_u32", vTR[0], t[6], t[7]))
            e(valu("v_xor_b32", t[7], 32, t[7])); e(valu("v_add_u32", vTR[1], t[6], t[7]))
        else:
            e(valu("v_lshlrev_b32", t[5], 10, ub)); e(valu("v_add_u32", t[5], t[5], t[4]))
            for tt in range(4):
                e(valu("v_xor_b32", t[6], 32 * tt, t[3])); e(valu("v_add_u32", vTR[tt], t[6], t[5]))
        def park(reg, s0_, s1_):
            names = [str(x) for x in self.parked]
            if str(reg) in names: e(valu("v_add_u32", t[7], s0_, s1_)); e(accw(a(aPARK + names.index(str(reg))), t[7]))
            else: e(valu("v_add_u32", reg, s0_, s1_))
        e(valu("v_lshlrev_b32", t[4], 9, hh)); e(valu("v_add_u32", t[4], t[4], t[0]))
        e(salu("s_lshl_b32", sT0, sKH, 6)); e(valu("v_xor_b32", t[6], sT0, t[3]))
        e(valu("v_add_u32", t[5], t[6], t[4])); e(valu("v_xor_b32", t[6], 64, t[5]))
        e(salu("s_lshl_b32", sT0, sKH, 16)); e(salu("s_lshl_b32", sT1, sKH, 11)); e(salu("s_add_u32", sT1, sT1, TB))
        for j in range(2):
            park(self.tr2[j], sT0, t[5 + j]); park(self.tr2t[j], sT1, t[5 + j])
        if typ == "A":
            e(valu("v_lshlrev_b32", t[4], 16, ub)); e(valu("v_lshlrev_b32", t[5], 15, hh)); e(valu("v_add3_u32", t[4], t[4], t[5], t[0]))
            e(valu("v_xor_b32", t[6], sW, t[2])); e(valu("v_lshlrev_b32", t[6], 5, t[6])); e(valu("v_add_u32", vW16, t[4], t[6]))
            e(salu("s_mul_i32", sT0, sW, 6144, scc_w=False)); e(salu("s_add_u32", sT0, sT0, TB)); e(valu("v_add_u32", vEX, sT0, vL16))
            e(valu("v_lshlrev_b32", t[4], 5, ub)); e(valu("v_add_u32", t[4], t[4], li)); e(valu("v_lshlrev_b32", t[4], 4, t[4]))
            e(valu("v_lshlrev_b32", t[5], 3, hh)); e(smov(sT0, TB)); e(valu("v_add3_u32", vHW, t[4], t[5], sT0))
            q = t[0]; bb = v(t[2].lo, 2)
            e(valu("v_and_b32", q, 31, lane)); e(valu("v_add_u32", t[1], 18, q))
            e(valu("v_mov_b32", t[4], 0x5555)); e(valu("v_mov_b32", t[5], 0))
            e(valu("v_lshlrev_b64", bb, t[1], v(t[4].lo, 2)))
            e(salu("s_or_b32", sT1, sRB, sW)); e(salu("s_cselect_b32", sT1, -1, 0, scc_w=False, scc_r=True))
            e(valu("v_and_b32", bb[0], sT1, bb[0]))
            e(valu("v_lshlrev_b32", t[1], 2, hh))
            e(valu("v_lshrrev_b32", bb[0], t[1], bb[0])); e(valu("v_lshrrev_b32", bb[1], t[1], bb[1]))
            e(valu("v_not_b32", bb[0], bb[0])); e(valu("v_not_b32", bb[1], bb[1]))
            e(accw(a(196), bb[0])); e(accw(a(197), bb[1]))
            e(valu("v_and_b32", t[2], 1, q)); e(valu("v_lshlrev_b32", t[2], 4, t[2]))
            e(valu("v_mov_b32", t[3], 0xffff)); e(valu("v_lshlrev_b32", vPM, t[2], t[3]))
            e(valu("v_bfe_i32", t[2], q, 4, 1)); e(valu("v_and_b32", vMHC, t[2], vPM)); e(valu("v_xor_b32", vMHP, vMHC, vPM))
        return o

    def scalars(self, typ):
        o = []; e = o.append
        e(salu("s_and_b32", sRT, sJ, 3)); e(salu("s_lshr_b32", sCT, sJ, 2))
        if C.ctrot: e(salu("s_add_u32", sCT, sCT, C.ctrot)); e(salu("s_and_b32", sCT, sCT, 7))
        e(salu("s_lshl_b32", sCT, sCT, 7))
        e(salu("s_lshl_b32", sT0, sXCD, 3)); e(salu("s_lshl_b32", sT1, sRT, 1)); e(salu("s_add_u32", sT0, sT0, sT1))
        e(salu("s_and_b32", sT1, sW, 1)); e(salu("s_add_u32", sT0, sT0, sT1))
        e(salu("s_lshl_b32", sFLR, sT0, 1)); e(salu("s_add_u32", sFLR, sFLR, sKH))
        e(salu("s_mul_i32", sFLR, sFLR, C.flstride, scc_w=False)); e(salu("s_add_u32", sFLR, sFLR, WS_FLAG))
        e(salu("s_mul_i32", sTAG, sT0, 144 * FS, scc_w=False))
        e(salu("s_lshl_b32", sOut, sT0, 15)); e(salu("s_and_b32", sOut, sOut, 0xffff7fff)); e(salu("s_add_u32", sOut, sOut, sCT))
        e(salu("s_lshr_b32", sT0, sM0B, 1)); e(salu("s_add_u32", sOut, sOut, sT0))
        e(salu("s_lshl_b32", sT1, sT1, 13)); e(salu("s_add_u32", sT1, sT1, sCT))
        for c_ in range(3):
            e(salu("s_mul_i32", sT0, sKH, SHIFT[c_] * FS, scc_w=False)); e(salu("s_add_u32", sA2c[c_], sTAG, sT0))
            e(salu("s_mul_i32", sT0, sKH, SHIFT[c_] * 16384, scc_w=False)); e(salu("s_add_u32", sB2c[c_], sT0, sT1))
        e(salu("s_lshl_b32", sM0T, sW, 10)); e(salu("s_add_u32", sM0T, sM0T, TB))
        e(salu("s_lshl_b32", sT0, sRB, 2)); e(salu("s_add_u32", sT0, sT0, sW))
        e(salu("s_mul_i32", sT1, sT0, 144, scc_w=False))
        e(salu("s_add_u32", sSt2, sT1, sT2)); e(salu("s_mul_i32", sSt2, sSt2, FS, scc_w=False))
        if typ == "A":
            e(salu("s_mul_i32", sStF, sT2, FS, scc_w=False)); e(salu("s_add_u32", sStF, sStF, sSt2)); e(salu("s_add_u32", sStF, sStF, 112 * FS))
        else:
            e(salu("s_sub_u32", sStF, sSt2, 8 * FS))
        if C.skip3:
            e(valu("v_add_u32", vA2O, 640, vL16)); e(valu("v_lshrrev_b32", vA2O, 10, vA2O)); e(valu("v_lshl_add_u32", vA2O, vA2O, 7, vL16))
        else: e(valu("v_mov_b32", vA2O, vL16))
        e(salu("s_lshl_b32", sT0, sT0, 1)); e(salu("s_lshr_b32", sT1, sIDX, 2)); e(salu("s_add_u32", sT0, sT0, sT1))
        e(salu("s_mul_i32", sT0, sT0, C.flstride, scc_w=False))
        e(salu("s_and_b32", sT1, sIDX, 3)); e(salu("s_lshl_b32", sT1, sT1, 2))
        e(salu("s_add_u32", sT0, sT0, sT1)); e(salu("s_add_u32", sFLW, sT0, WS_FLAG))
        e(smov(SOUT[2], 0x200000)); e(smov(SOUT[3], 0x20000))
        if C.rot3:
            e(salu("s_lshr_b32", sT0, sB2c0, 4)); e(salu("s_sub_u32", sA2c0, sA2c0, sT0))
            e(salu("s_lshr_b32", sT0, sB2c2, 4)); e(salu("s_sub_u32", sA2c2, sA2c2, sT0))
            for g in (3, 2, 1, 0):
                e(salu("s_add_u32", sT0, sRT, g)); e(salu("s_and_b32", sT0, sT0, 3)); e(salu("s_lshl_b32", sT0, sT0, 16))
                e(salu("s_add_u32", sG1[g], sB2c2, sT0))
                e(salu("s_mul_i32", sT0, sT0, 3, scc_w=False)); e(salu("s_add_u32", sG3[g], sB2c0, sT0))
        return o

    def warm_ops(self, isA):
        ww = self.ww; nr = 16 if isA else 8
        o = [salu("s_and_b32", sT5, sW, 1 if isA else 3), salu("s_mul_i32", sT5, sT5, nr, scc_w=False),
             salu("s_lshl_b32", sXk, sRB, 5), salu("s_add_u32", sT5, sT5, sXk), salu("s_mul_i32", sT5, sT5, 3584, scc_w=False),
             salu("s_lshl_b32", sXk, sT2, 5), salu("s_add_u32", sT5, sT5, sXk)]
        o += [self.touch(ww[2], SWH, sT5)] if isA else [self.touch(ww[2], SWG_, sT5), self.touch(ww[2], SWU, sT5, 1024)]
        fl = [self.touch(ww[0], SWS, sFLR, fl="sc1")]
        if not C.warm_byA:
            o1 = [salu("s_lshl_b32", sXk, sWG, 2), salu("s_add_u32", sXk, sXk, sW), salu("s_mul_i32", sT5, sXk, 14 * 128, scc_w=False),
                  self.touch(ww[0], SWD, sT5)]
            o2 = [salu("s_lshl_b32", sT5, sXk, 9), self.touch(ww[1], SWO, sT5)]
            return [[o1, o2 + fl, o], [o1 + o2 + fl, o, []], [o + o1, o2 + fl, []], [o1 + o2 + fl + o, [], []]][C.warm_mode]
        if not isA: return [[], fl + o]
        o1 = [salu("s_lshr_b32", sXk, sWG, 7), salu("s_lshl_b32", sXk, sXk, 6), salu("s_and_b32", sT5, sWG, 63), salu("s_add_u32", sXk, sXk, sT5),
              salu("s_lshl_b32", sXk, sXk, 2), salu("s_add_u32", sXk, sXk, sW), salu("s_mul_i32", sT5, sXk, 28 * 128, scc_w=False),
              self.touch(ww[0], SWD, sT5), self.touch(ww[0], SWD, sT5, 14 * 128)]
        o2 = [salu("s_lshl_b32", sT5, sXk, 10), self.touch(ww[1], SWO, sT5), self.touch(ww[1], SWO, sT5, 512)]
        return [o1, o2 + fl + o]

    def b2_soff(self, n, dst):
        ks, cls, st = step_info(n)
        if cls == 1 or not C.rot3: return salu("s_add_u32", dst, sB2c[cls], (ks - 112 if cls == 2 else ks) * 16384)
        if cls == 2: g = (ks - 112) >> 2; return salu("s_add_u32", dst, sG1[g], (ks - 112 - 4 * g) * 16384)
        g = (ks - 16) // 12; return salu("s_add_u32", dst, sG3[g], (ks - 12 * g) * 16384)

    def code_touch(self):
        E = self.E
        if not C.touch_code: return
        t = v(201)
        E.line(f"s_getpc_b64 {sPC}")
        pcl = self.lab("pc"); E.label(pcl)
        E.emit(salu("s_and_b32", sT0, sJ, 1)); E.emit(salu("s_lshl_b32", sT0, sT0, 15))
        E.emit(valu("v_lshlrev_b32", t, 7, v(0))); E.emit(valu("v_add_u32", t, sT0, t))
        E.line(f"s_mov_b32 {sT0}, L_code_end-{pcl}-4")
        E.emit(valu("v_min_u32", t, sT0, t))
        E.emit(I(f"global_load_dword {aDUM0}, {t}, {sPC}", "vml", t.ids(), ()))

    def finish_stats(self, sm, sq, rinv, nb, t0, t1):
        e = self.E.emit
        e(valu("v_mul_f32", sm, sC512, sm))
        e(valu("v_mul_f32", t0, sm, sm))
        e(I(f"v_fma_f32 {sq}, {sq}, {sC512}, -{t0}", "valu", sq.ids() | t0.ids() | sC512.ids(), sq.ids()))
        e(valu("v_max_f32", sq, 0, sq))
        e(valu("v_cvt_pk_bf16_f32", t0, sm, sq))
        e(valu("v_and_b32", t1, sHI, t0))
        e(valu("v_add_f32", t1, 0x3727c5ac, t1))
        e(valu("v_cvt_pk_bf16_f32", t1, t1, t1)); e(valu("v_and_b32", t1, sHI, t1))
        e(valu("v_sqrt_f32", t1, t1))
        e(valu("v_cvt_pk_bf16_f32", t1, t1, t1)); e(valu("v_and_b32", t1, sHI, t1))
        e(valu("v_rcp_f32", rinv, t1))
        e(valu("v_lshlrev_b32", t0, 16, t0))
        e(I(f"v_mul_f32 {nb}, -{t0}, {rinv}", "valu", t0.ids() | rinv.ids(), nb.ids()))

    def norm_ops(self, reg, rinv, nb, k0=0):
        ops = []
        for d in range(4):
            lo = NT[(2 * (k0 + d)) % 8]; hi = NT[(2 * (k0 + d) + 1) % 8]; x = reg[d]
            ops += [valu("v_lshlrev_b32", lo, 16, x), valu("v_and_b32", hi, sHI, x),
                    valu("v_fma_f32", lo, lo, rinv, nb), valu("v_fma_f32", hi, hi, rinv, nb),
                    valu("v_cvt_pk_bf16_f32", x, lo, hi)]
        return ops

    def dots(self, reg, acc):
        ops = []
        for d in range(reg.n):
            ops.append(valu("v_dot2_f32_bf16", acc[d & 1], reg[d], sONE, acc[d & 1]))
            ops.append(valu("v_dot2_f32_bf16", acc[2 + (d & 1)], reg[d], reg[d], acc[2 + (d & 1)]))
        return ops

    def wrap(self, reg, q, span):
        return glue([scmp("s_cmp_eq_u32", sROT, 4 - q), salu("s_cselect_b32", sS2b, span, 0, scc_w=False, scc_r=True),
                     salu("s_sub_u32", reg, reg, sS2b)])

    def chunks(self, obj):
        k, j = obj
        if self.typ == "A":
            if k == "s1": return list(range(3 * (j % 7), 3 * (j % 7) + 3))
            return [6 + 2 * j, 7 + 2 * j]
        jj = j if k == "s1" else 16 + j
        return list(range(4 * (jj % 6), 4 * (jj % 6) + 4))

    def slab_dma(self, obj):
        L = self.L; k, j = obj; ch = self.chunks(obj); fl = C.w_fl
        def f(E): L.alloc(obj, ch)
        ops = [f, salu("s_add_u32", "m0", sM0B, 1024 * ch[0])]
        if k == "s1":
            st = 3072 if self.typ == "A" else 3584
            if self.typ == "A": ops += [dma(vH, SQKV, sS1, 1024 * u, obj, fl) for u in range(3)]
            else: ops += [dma(vG, SWG_, sS1, 0, obj, fl), dma(vU, SWU, sS1, 1024, obj, fl), dma(vG, SWG2, sS1, 2048, obj, fl), dma(vU, SWU2, sS1, 3072, obj, fl)]
            if j < 15: ops.append(salu("s_add_u32", sS1, sS1, 32 * st))
            if j % 4 == 3 and j < 15 and C.rot: ops.append(self.wrap(sS1, (j + 1) // 4, 512 * st))
        else:
            if self.typ == "A":
                ops += [salu("s_add_u32", sS2b, sS2, 16 * 3584 - 1024), dma(vG, SWH, sS2, 0, obj, fl), dma(vG, SWH, sS2b, 1024, obj, fl)]
            else:
                ops += [salu("s_add_u32", sS2b, sS2, 16 * 3584 - 2048), dma(vG, SWG_, sS2, 0, obj, fl), dma(vU, SWU, sS2, 1024, obj, fl),
                        dma(vG, SWG_, sS2b, 2048, obj, fl), dma(vU, SWU, sS2b, 3072, obj, fl)]
            if j < 7: ops.append(salu("s_add_u32", sS2, sS2, 64 * 3584))
            if j % 2 == 1 and j < 7 and C.rot: ops.append(self.wrap(sS2, (j + 1) // 2, 512 * 3584))
        return ops

    def b2_chunk(self, n):
        R_ = lambda lo, hi: list(range(lo, hi))
        if self.typ == "A":
            tab = R_(22, 32) + R_(22, 32) + R_(0, 12) + R_(32, 40) + R_(12, 22) + R_(22, 32) + R_(0, 12)
        else:
            tab = R_(24, 40) + R_(24, 40) + R_(0, 24) + R_(24, 32) + R_(0, 8)
        return tab[n]

    def b2_dma(self, n):
        L = self.L
        ks, cls, _ = step_info(n)
        ch = self.b2_chunk(n)
        def f(E): L.alloc(("b2", n), [ch])
        return [f, salu("s_add_u32", "m0", sM0B, 1024 * ch) if ch < 32 else salu("s_add_u32", "m0", sM0T, 4096 * (ch - 32)),
                self.b2_soff(n, sB2s),
                dma(vB2, SWO if cls == 2 else SWD, sB2s, 0, ("b2", n), C.b2_fl)]

    def bar(self, cover, m_done, lds_all=False, lds_tags=()):
        L = self.L
        def f(E):
            E.wait_tags(lds=list(lds_tags) + list(cover), vm=cover)
            if lds_all: E.wait_all_lds()
            if not (C.dbg_bar and cover and cover[0][0] == "b2"): E.barrier()
            L.visible |= set(cover); L.bar_m = m_done
        return f

    def acc2(self, t): return ACC2(t) if self.typ == "A" else ACC1(t)

    def acc1(self, t): return ACC1(t) if t < 6 else a(112 + 16 * (t - 6), 16)

    def seq(self, typ):
        out = []
        order = [2, 3, 4, 5, 0, 1] if typ == "A" else list(range(8))
        k1 = self.k1
        s1 = [(ks, t) for ks in range(k1) for t in order] + [(ks, t) for t in order for ks in range(k1, 32)]
        for ks, t in s1:
            obj = ("s1", ks // 2); base = (ks & 1) * 32768 + self.chunks(obj)[0] * 1024
            if True:
                if typ == "A":
                    out.append(dict(acc=ACC1(t), x=X(ks), sw=(t >= 4), obj=obj, addr=vTR[4 + (t & 1)],
                                    imm=base + (t >> 1) * 1024, st=512, first=(ks == 0)))
                else:
                    out.append(dict(acc=self.acc1(t), x=X(ks), sw=False, obj=obj, addr=vTR[t & 3], imm=base + (t >> 2) * 2048, st=512, first=(ks == 0)))
        nt = self.nt2
        k0 = self.k0
        s2 = [(ks, t) for ks in range(k0) for t in range(nt)] + [(ks, t) for t in range(nt) for ks in range(k0, 32)]
        for ks, t in s2:
            obj = ("s2", ks // 4); k = ks & 3
            out.append(dict(acc=self.acc2(t), x=X(ks), sw=False, obj=obj, addr=vTR[t],
                            imm=(k >> 1) * 32768 + self.chunks(obj)[0] * 1024 + (k & 1) * (1024 if typ == "A" else 2048),
                            st=256 if typ == "A" else 512, first=(ks == 0)))
        nl = 72 - C.lastk
        p2 = [(n, j) for n in range(nl) for j in ((1, 0) if n == 55 else (0, 1))] + [(n, j) for j in (1, 0) for n in range(nl, 72)]
        for n, j in p2:
            iso = step_info(n)[1] == 2
            if True:
                ch = self.b2_chunk(n)
                out.append(dict(acc=(ACCS if iso else ACCD)[j], x=n, sw=False, obj=("b2", n),
                                addr=self.tr2[j] if ch < 32 else self.tr2t[j], j=j, imm=ch * 1024 if ch < 32 else (ch - 32) * 4096,
                                st=32768 if ch < 32 else 1024, first=(n in (0, 40))))
        for m, o in enumerate(out): self.L.last_use[o["obj"]] = m
        return out

    def wreads(self, m):
        o = self.SEQ[m]; L = self.L
        if o["obj"][0] == "b2" and o["obj"][1] < self.nF: return []
        if C.abl_tr and m >= 24 and (m % C.abl_tr) and (o["obj"][0] != "b2" or C.abl_tr2): return []
        def f(E): assert o["obj"] in L.visible, ("read of invisible", m, o["obj"])
        return [f, ds_tr(WF(m).sub(0, 2), o["addr"], o["imm"]), ds_tr(WF(m).sub(2, 2), o["addr"], o["imm"] + o["st"])]

    def main(self, m):
        o = self.SEQ[m]
        if isinstance(o["x"], int):
            def mk(peek):
                if peek and o["x"] not in self.a2slot: return None
                w = self.frag[(o["x"], o["j"])]["r"] if o["x"] < self.nF else WF(m)
                return mfma(o["acc"], w, self.a2slot[o["x"]]["r"], 0 if o["first"] else o["acc"])
            mn = dict(pre=[], m=mk, fix=[])
            if o["x"] < self.nF: mn["fix"].append(lambda E: self.pool.give(E, self.frag[(o["x"], o["j"])]))
            if m == self.L.last_use[o["obj"]]: mn["fix"].append(lambda E: self.pool.give(E, self.a2slot[o["x"]]))
        else:
            A_, B_ = (o["x"], WF(m)) if o["sw"] else (WF(m), o["x"])
            mn = dict(pre=[], m=mfma(o["acc"], A_, B_, 0 if o["first"] else o["acc"]), fix=[])
        if m + C.D < len(self.SEQ): mn["fix"] += self.wreads(m + C.D)
        return mn

    def spin_check_tag(self):
        def f(E):
            ok = self.lab("tagok"); sp = self.lab("tagspin")
            E.emit(rfl(sTAG, vTAG))
            E.emit(scmp("s_cmp_eq_u32", sTAG, 0))
            E.line(f"s_cbranch_scc1 {sp}")
            E.label(ok)
            self.cold += [f"{sp}:", f"    s_mov_b32 {sSPIN}, 0", f"{sp}_l:",
                          f"    buffer_load_dword {vTAG}, off, {SDBG}, 0 sc1", f"    s_add_u32 {sSPIN}, {sSPIN}, 1",
                          "    s_waitcnt vmcnt(0)", f"    v_readfirstlane_b32 {sTAG}, {vTAG}",
                          f"    s_cmp_ge_u32 {sSPIN}, {C.spin_max}", f"    s_cbranch_scc1 {ok}",
                          f"    s_cmp_eq_u32 {sTAG}, 0", f"    s_cbranch_scc1 {sp}_l", f"    s_branch {ok}"]
        return f

    def poll_load(self, stage):
        return vload(self.vpl[stage], vP4, SWS, sFLR, FLO[stage], fl="sc1")

    def poll2_load(self, stage):
        i = vload(vSP[0], vP4, SWS, sFLR, FLO[stage], tag=("p2", stage), fl="sc1"); i.w = set()
        return i

    def gate(self, stage):
        def f(E):
            ok = self.lab("gateok"); sp = self.lab("gatespin")
            self.stamp(f"g{stage}a")
            E.emit(vcmp("v_cmp_ne_u32", "vcc", sTAG, self.vpl[stage]))
            E.line(f"s_cbranch_vccnz {sp}")
            E.label(ok)
            ld = lambda r: f"    buffer_load_dword {r}, {vP4}, {SWS}, {sFLR} offen offset:{FLO[stage]} sc1"
            regs = [self.vpl[stage], vSP[0], vSP[1]][:C.npoll]; k = len(regs)
            k2 = [n for n, x in enumerate(E.vq) if x[2] == ("p2", stage)]
            second = []
            if C.poll2 and stage in self.has2:
                n2 = sum(1 for x in E.vq[k2[0] + 1:] if x[3]) if k2 else 62
                second = [f"    s_waitcnt vmcnt({min(n2, 62)})", f"    v_cmp_ne_u32 vcc, {sTAG}, {vSP[0]}", f"    s_cbranch_vccz {ok}"]
            self.cold += [f"{sp}:"] + second + [f"    s_mov_b32 {sSPIN}, 0"] + [x for r in regs[:-1] for x in (ld(r), "    s_nop 15", "    s_nop 15")] + [f"{sp}_l:"]
            for q_ in range(k):
                self.cold += [ld(regs[(q_ + k - 1) % k]), f"    s_waitcnt vmcnt({k - 1})", f"    v_cmp_ne_u32 vcc, {sTAG}, {regs[q_]}", f"    s_cbranch_vccz {ok}"]
            self.cold += [f"    s_add_u32 {sSPIN}, {sSPIN}, 1", f"    s_cmp_ge_u32 {sSPIN}, {C.spin_max}", f"    s_cbranch_scc0 {sp}_l", f"    s_branch {ok}"]
            self.stamp(f"g{stage}b")
        return f

    def flag_store(self, stage, tags):
        def f(E):
            self.stamp(f"f{stage}a")
            E.wait_tags(vm=tags)
            self.stamp(f"f{stage}b")
            E.emit(vstore(vTAG, None, SWS, sFLW, FLO[stage], fl="sc1"))
        return f

    def a2_load(self, n):
        ks, cls, _ = step_info(n)
        o = []
        if self.a2base is None or self.a2base[0] != cls or not (0 <= (ks - self.a2base[1]) * FS < 4096):
            self.a2base = (cls, ks)
            if cls == 1 or not C.rot3: o.append(salu("s_add_u32", sA2s, sA2c[cls], ks * FS))
            else:
                assert FS == 1024
                g = (ks - 112) >> 2 if cls == 2 else (ks - 16) // 12
                o += [salu("s_lshr_b32", sA2s, (sG1 if cls == 2 else sG3)[g], 4), salu("s_add_u32", sA2s, sA2s, sA2c[cls]),
                      salu("s_add_u32", sA2s, sA2s, (ks - 4 * g if cls == 2 else ks - 12 * g) * 1024)]
        imm = (ks - self.a2base[1]) * FS
        kind = "AE" if n < 40 else "A"
        def f(E):
            x = self.a2slot[n] = self.pool.take(E, kind)
            if not (C.dbg_a2 and n >= C.dbg_a2): E.emit(vload(x["r"], vA2O, SWS, sA2s, imm, fl=C.a2_fl))
        f.vm = True; f.ready = lambda E: self.pool.find(E, kind) is not None
        return o + [f]

    def pre_read(self, n):
        out = []
        for m in (self.M3 + 2 * n, self.M3 + 2 * n + 1):
            o = self.SEQ[m]
            def f(E, o=o):
                assert o["obj"] in self.L.visible
                x = self.frag[(n, o["j"])] = self.pool.take(E, "R")
                E.emit(ds_tr(x["r"].sub(0, 2), o["addr"], o["imm"], tag=("fr", n)))
                E.emit(ds_tr(x["r"].sub(2, 2), o["addr"], o["imm"] + o["st"], tag=("fr", n)))
            f.slots = 2
            out.append(f)
        return out

    def raw_load(self, n):
        ks, cls, _ = step_info(n)
        def f(E):
            x = self.rawslot[n] = self.pool.take(E, "R")
            E.emit(vload(x["r"], vB2, SWO if cls == 2 else SWD, sXo, 0, fl=C.b2_fl))
        f.vm = True; f.ready = lambda E: self.pool.find(E, "R") is not None
        return [self.b2_soff(n, sXo), f]

    def a2_store(self, reg, sbase, t, tag):
        st = vstore(reg, vA2O, SWS, sStH if t * FS >= 4096 else sbase, 0 if t * FS >= 4096 else t * FS, tag, C.st_fl)
        if t * FS >= 4096: st.pre = salu("s_add_u32", sStH, sbase, t * FS)
        return st

    def h_epilogue(self, T, sbase, imm, tag):
        ops = [valu("v_mul_f32", T[r], T[r], T[r + 8]) for r in range(8)]
        ops += [valu("v_cvt_pk_bf16_f32", T[r], T[2 * r], T[2 * r + 1]) for r in range(4)]
        ops.append(self.a2_store(T.sub(0, 4), sbase, imm, tag))
        return ops

    def body(self, typ):
        E = self.E; e = E.emit
        self.L = L = LDSMap()
        E.m0_owner = None; E.fifo = None
        self.typ = typ
        isA = typ == "A"
        nt1, nt2 = (6, 2) if isA else (8, 4)
        self.nt2 = nt2; self.k0 = k0 = 24 if isA else 20
        self.k1 = k1 = 28 if isA else C.k1B
        M2 = self.M2 = 32 * nt1; M3 = self.M3 = M2 + 32 * nt2
        self.nF = 10 if isA else 16
        self.tr2 = [vTR[2], vTR[3]] if isA else [vEX, vHW]
        self.tr2t = vTR2T if isA else [vPM, vMHC]
        self.parked = self.tr2 + self.tr2t if isA else []
        self.frag = {}
        self.SEQ = self.seq(typ)
        self.a2base = None
        self.cold = []; self.has2 = set()
        self.lane = v(200); self.vx = [v(204 + g) for g in range(4)]; self.hs = [v(196), v(197)]
        self.xa = xa = [v(216 + q) for q in range(4)]; self.acc = acc = [v(220 + q) for q in range(4)]
        self.ha = ha = [v(144 + i) for i in range(5)]; self.hacc = hacc = [v(149 + i) for i in range(4)]
        self.ww = [vU, vTR[2], vTR[3]] if isA else [vH, vW16, vHX]
        self.vpl = vPL + [self.ww[0]]
        self.stamp("t0")
        if C.stamps: E.line("s_memrealtime s[0:1]")
        first = self.setup_first(typ)
        rest = self.consts(typ)
        E.emits(first)
        k = max(0, C.npre - len(first))
        while k < len(rest) and SCC in rest[k].r: k += 1
        E.emits(rest[:k]); rest = rest[k:]
        E.line("s_waitcnt lgkmcnt(0)")
        self.stamp("karg")
        def inplace(d, size, other, shift=0):
            o = []
            if other is SWS and C.wsoff:
                return [glue([salu("s_add_u32", other[0], d[2], C.wsoff << 20), salu("s_addc_u32", other[1], d[3], 0, scc_r=True)]),
                        smov(d[2], size), smov(d[3], 0x20000)]
            if other is not None and shift: o += [salu("s_sub_u32", other[0], d[2], shift), salu("s_subb_u32", other[1], d[3], 0, scc_r=True)]
            elif other is not None: o += [smov(other[0], d[2]), smov(other[1], d[3])]
            return o + [smov(d[2], size), smov(d[3], 0x20000)]
        E.emits(inplace(SX, 0x200000, SQKV if isA or C.qkv_byB else None))
        if isA:
            for it in inplace(SDBG, 256, SWS): run_item(E, it)
        def xd(sl):
            o = [salu("s_add_u32", "m0", sM0B, 4096 * sl), salu("s_add_u32", sA2s, sXo, sXk)]
            o += [dma(self.vx[g], SX, sA2s, 1024 * g, tag=("x", sl), fl=C.x_fl) for g in range(4)]
            if sl < 7: o += [salu("s_add_u32", sXk, sXk, 128), salu("s_and_b32", sXk, sXk, 1023)]
            return o
        if isA:
            for ee in range(2):
                for g in range(2):
                    e(salu("s_add_u32", "m0", sS2b, TB + 2048 * ee + 1024 * g))
                    e(dma(self.hs[g], SX, sHo, 0, tag="halo", fl=C.x_fl))
                if ee == 0: e(salu("s_add_u32", sHo, sHo, 128))
            lskip = self.lab("noep")
            e(salu("s_or_b32", sSPIN, sWG, sW))
            E.line(f"s_cbranch_scc1 {lskip}")
            E.line(f"s_mov_b32 {sSPIN}, {WS_EPOCH}")
            E.line(f"buffer_load_dword {vPOLL}, off, {SWS}, {sSPIN} sc1")
            E.label(lskip)
        E.emits(xd(0)); E.emits(xd(1))
        nx = 2
        if isA:
            if C.touch_w0 and not C.qkv_byB: e(self.touch(vTW, SQKV, sT5))
            e(scmp("s_cmp_ge_u32", sW, 2))
            e(salu("s_cselect_b32", SWH[0], SWG_[2], SWG_[0], scc_w=False, scc_r=True))
            e(salu("s_cselect_b32", SWH[1], SWG_[3], SWG_[1], scc_w=False, scc_r=True))
        else:
            if C.touch_w0 and C.qkv_byB: e(self.touch(vMHP, SQKV, sXs))
            E.emits([salu("s_sub_u32", SWU2[0], SWG_[2], 2944), salu("s_subb_u32", SWU2[1], SWG_[3], 0, scc_r=True),
                     salu("s_sub_u32", SWG2[0], SWG_[0], 1920), salu("s_subb_u32", SWG2[1], SWG_[1], 0, scc_r=True)])
            E.emits(inplace(SWG_, 512 * 3584, SWU, 1024))
            if C.touch_w0: e(self.touch(vTW, SWG_, sT5)); e(self.touch(vTW, SWU, sT5, 1024))
            if C.x2early: E.emits(xd(2)); nx = 3
        self.stamp("issued")
        late_srd = ([] if isA else inplace(SDBG, 256, SWS)) + inplace(SWD, 1792 * 1024, SOUT) + inplace(SWO, 512 * 1024, None)
        E.emits(rest)
        if C.stamps: E.line("v_accvgpr_write_b32 a198, s0")
        self.stamp("rest")
        if C.pads:
            E.line("s_mov_b64 exec, 0")
            for w_ in (1, 2, 3):
                E.line(f"s_cmp_eq_u32 {sW}, {w_}"); E.line(f"s_cbranch_scc1 L_pad{typ}_{w_}")
            E.line(f"s_branch L_pad{typ}_0")
            E.label(f"L_back{typ}")
            E.line("s_mov_b64 exec, -1")
            E.out.append(f";PADS_FROM {typ}")
        self.stamp("pads")
        if nx == 2 and not isA: E.emits(xd(2)); nx = 3
        if isA:
            hx = v(128, 16); pr = v(154, 2); tp = v(156, 2); pp = v(158, 8)
            E.wait_tags(vm=["halo"])
            self.epoch_publish()
            for ee in range(2):
                for b in range(2): e(ds_rd(hx.sub(4 * (2 * ee + b), 4), ha[b], 2048 * ee))
            E.emits(xd(2)); nx = 3
            E.emits(self.dots(hx, hacc))
            e(valu("v_add_f32", pr[0], hacc[0], hacc[1])); e(valu("v_add_f32", pr[1], hacc[2], hacc[3]))
            for sw in (swap16, swap32):
                e(valu("v_mov_b32", tp[0], pr[0])); e(valu("v_mov_b32", tp[1], pr[1]))
                e(sw(pr[0], tp[0])); e(sw(pr[1], tp[1]))
                e(valu("v_add_f32", pr[0], pr[0], tp[0])); e(valu("v_add_f32", pr[1], pr[1], tp[1]))
            e(ds_wr(ha[3], pr, 0, tag="hp"))
        def xdots(k):
            E.emits(self.dots(v(16 * k, 16), acc)); L.xread.add(k)
        for sl in range(9):
            early = sl >= C.dots_first
            if sl > 0 and early: xdots(sl - 1)
            if sl < 8:
                E.wait_tags(vm=[("x", sl)])
                self.stamp(f"x{sl}")
                for q in range(4): e(ds_rd(X(4 * sl + q), xa[q], 4096 * sl))
                if nx < 8: E.emits(xd(nx)); nx += 1
            if isA and sl == 0:
                E.wait_tags(lds=["hp"]); E.barrier()
                for w_ in range(4): e(ds_rd(pp.sub(2 * w_, 2), ha[2], 4096 * w_))
            if isA and sl == (1 if C.hn_at else 0):
                e(valu("v_add_f32", pr[0], pp[0], pp[2])); e(valu("v_add_f32", pr[1], pp[1], pp[3]))
                e(valu("v_add_f32", tp[0], pp[4], pp[6])); e(valu("v_add_f32", tp[1], pp[5], pp[7]))
                e(valu("v_add_f32", pr[0], pr[0], tp[0])); e(valu("v_add_f32", pr[1], pr[1], tp[1]))
                self.finish_stats(pr[0], pr[1], pp[0], pp[1], tp[0], tp[1])
            for f_ in (range(4) if (C.hn_at == 0 and sl == 0) else [sl - C.hn_at] if (C.hn_at and C.hn_at <= sl < C.hn_at + 4) else []):
                if not isA: break
                E.emits(self.norm_ops(hx.sub(4 * f_, 4), pp[0], pp[1]))
                e(ds_wr(ha[4], hx.sub(4 * f_, 4), 1024 * f_, tag="hxw"))
            if sl > 0 and not early: xdots(sl - 1)
            for j in {C.w0at: [0], C.w0at + 1: [1], 6: [2], 7: [3] if C.w3early or isA else []}.get(sl, []):
                for it in self.slab_dma(("s1", j)): run_item(E, it)
        self.stamp("xdone")
        npn = C.npre_normA if isA else C.npre_norm
        def bx():
            self.bar([("s1", 0), ("s1", 1)], -1, lds_tags=["hxw"])(E)
            self.stamp("bx")
            for m in range(C.D):
                for it in self.wreads(m): run_item(E, it)
        e(valu("v_add_f32", acc[0], acc[0], acc[1])); e(valu("v_add_f32", acc[2], acc[2], acc[3]))
        e(valu("v_mov_b32", acc[1], acc[0])); e(valu("v_mov_b32", acc[3], acc[2]))
        e(swap32(acc[0], acc[1])); e(swap32(acc[2], acc[3]))
        e(valu("v_add_f32", acc[0], acc[0], acc[1])); e(valu("v_add_f32", acc[2], acc[2], acc[3]))
        self.finish_stats(acc[0], acc[2], vRINV, vNB, acc[1], acc[3])
        for ks in range(npn - 1): E.emits(self.norm_ops(X(ks), vRINV, vNB))
        bx()
        E.emits(self.norm_ops(X(npn - 1), vRINV, vNB))
        self.stamp("s1"); self.stamp("b0")

        mains = [self.main(m) for m in range(len(self.SEQ))]
        E.gap = 0; E.fifo = Fifo(); E.fifo.p = E.pos; E.fifo.n = 4
        D = C.D
        qN = Q("norm"); qD = Q("dma"); qH = Q("halo"); qB = Q("b2"); qW = Q("raw", hard=False); qU = Q("dump", vm_age=0)
        qE = Q("epi"); qE2 = Q("epi2", hard=False, top=True); qR = Q("restore"); qFl = Q("flag", top=True)
        self.pool = pool = Pool(); self.a2slot = {}; self.rawslot = {}; self.mark = {}
        started = lambda q: (len(q.items) > 0 and q.empty())
        pool.add(a(200, 56), "AR")
        pool.add(a(192, 4), "A", lambda: started(qR))
        if isA:
            pool.add(a(80, 32), "AR")
            pool.add(a(112, 24), "AR")
            pool.add(a(160, 32), "A", lambda: self.mark.get("masks"))
            pool.add(a(48, 32), "A", lambda: started(qE2))
            pool.add(a(136, 24), "A", lambda: started(qE)); pool.add(v(128, 96), "A", lambda: started(qE))
            rawl = list(range(40, 72))
        else:
            pool.add(a(144, 16), "AR"); pool.add(a(160, 32), "A")
            pool.add(a(48, 64), "AR")
            pool.add(a(112, 32), "AR", lambda: started(qE)); pool.add(v(192, 32), "AR", lambda: started(qE))
            pool.add(v(128, 64), "A", lambda: started(qE2))
            for k in list(range(8)) + [12, 13, 14, 15]: pool.add(X(k), "E", lambda k=k: E.gap > M2 + 4 * k + 3)
            rawl = list(range(44, 72))
        rawit = {}
        if C.raw:
            for n in rawl[:C.nrawA if isA else C.nrawB]:
                rawit[n] = self.raw_load(n)
                qW.adds(rawit[n], earliest=C.raw0A if isA else C.raw0B, deadline=M3 + 16 * (n // 8) - C.D - 40)
        def place(n):
            def f(E):
                need = M3 + 16 * (n // 8) - C.D
                if n in self.rawslot:
                    ch = self.b2_chunk(n); x = self.rawslot[n]
                    qU.add(lambda E: L.alloc(("b2", n), [ch]), deadline=need - 3)
                    if not C.dbg_dump: qU.add(ds_wr(vWQ, x["r"], 1024 * ch, tag=("b2", n)), deadline=need - 3)
                    qU.add(lambda E: pool.give(E, x), deadline=need - 3)
                else:
                    for it in rawit.get(n, []): it.dead = True
                    b2_add(n, E.gap)
            return f
        qG = Q("frag")
        def b2_add(n, gap, need=None):
            need = need or M3 + 16 * (n // 8) - D
            qB.adds(self.b2_dma(n), earliest=gap, deadline=need - C.b2lead - 2 * (7 - n % 8), hard=False)
            qB.add(lambda E: None, earliest=gap, deadline=max(need - 10, gap + 2))
        def frag_plan(g, step_, groups):
            b0 = C.b2gA if isA else C.b2gB
            cover = []; tags = []; gap = step_ * g - D
            for k, pg in enumerate(groups):
                if g == b0 + k:
                    for n in pg: b2_add(n, gap + 4, gap + 2 * step_)
                if g == b0 + k + 2:
                    cover += [("b2", n) for n in pg]
                    for n in pg:
                        qG.adds(self.pre_read(n), earliest=gap, deadline=gap + step_ - 3); L.last_use[("b2", n)] = gap + step_ - 1
                if g == b0 + k + 3:
                    tags += [("fr", n) for n in pg]
                    for n in pg: b2_add(n + self.nF, gap)
            return cover, tags
        def barrier(gap, cover, name, **kw):
            mains[gap]["npre"] = 2
            mains[gap]["pre"] += [lambda E: self.stamp(name + "a"), self.bar(cover, gap - 1, **kw), lambda E: self.stamp(name)]
        for ks in range(npn, 32 if not C.abl_norm else npn + 1):
            qN.adds(self.norm_ops(X(ks), vRINV, vNB, ks * 4), earliest=max(0, nt1 * (ks - C.nahead) - 1),
                    deadline=nt1 * ks if ks < k1 else nt1 * k1 + ks - k1)
        for j in (range(4, 7) if isA else range(4 if C.w3early else 3, 5)): qD.adds(self.slab_dma(("s1", j)), earliest=0, deadline=17 if isA else 20)
        qK = Q("scal")
        qK.adds(late_srd, earliest=0, deadline=(24 if isA else 32) - D)
        sc_ = self.scalars(typ)
        for q_, it in enumerate(sc_): qK.add(it, earliest=0, deadline=int(10 + C.scal_span * q_ / len(sc_)), hard=False)
        qK.add(lambda E: None, deadline=10 + C.scal_span + 8)
        L.last_use[("T",)] = M2 + 40 if isA else -1
        tagload = vload(vTAG, None, SDBG, 0, fl="sc1")
        warm = []
        if C.touch_b2:
            tb = self.ww[0]
            warm = [[valu("v_lshlrev_b32", tb, 6, vL16), valu("v_and_b32", tb, 0x7c00, tb), valu("v_add_u32", tb, sCT, tb),
                     salu("s_lshl_b32", sRT, sRT, 2), salu("s_add_u32", sRT, sRT, sW),
                     salu("s_lshl_b32", sT5, sRT, 14), self.touch(tb, SWD, sT5)],
                    [salu("s_lshr_b32", sT5, sRT, 1), salu("s_lshl_b32", sT5, sT5, 2), salu("s_add_u32", sT5, sT5, sRT),
                     salu("s_add_u32", sT5, sT5, 12), salu("s_lshl_b32", sT5, sT5, 15), self.touch(tb, SWD, sT5)],
                    [salu("s_lshl_b32", sT5, sRT, 15), self.touch(tb, SWO, sT5)]]
        def slab(jj): return ("s1", jj) if jj < 16 else ("s2", jj - 16)
        if isA:
            for g in range(1, 9):
                gap = 24 * g - D
                cv, tg = frag_plan(g, 24, [range(0, 5), range(5, 10)])
                barrier(gap, ([("s1", 2 * g), ("s1", 2 * g + 1)] if g < 8 else [("s2", j) for j in range(4)]) + cv, f"b{g}", lds_tags=tg)
                its = []
                for j in (2 * g + 4, 2 * g + 5):
                    if 7 <= j < 16: its += self.slab_dma(("s1", j))
                for j in {6: [0, 1, 2], 7: [3, 4, 5], 8: [6, 7]}.get(g, []): its += self.slab_dma(("s2", j))
                k_ = g - (C.warm_gA if isA else C.warm_gB)
                if k_ in (0, 1, 2) and C.warm_all:
                    qD.adds(its, earliest=gap, deadline=gap + 16); its = []
                    qK.adds(self.warm_ops(isA)[k_], earliest=gap + C.warm_off, deadline=gap + C.warm_off + 14)
                if C.b2g <= g < C.b2g + 3 and warm: its += warm[g - C.b2g]
                if g == 6: its.append(tagload)
                if g == C.warm_gA + 2: qK.adds([accr(self.tr2[n_], a(aPARK + n_)) for n_ in range(2)], earliest=gap + 12, deadline=gap + 40)
                qD.adds(its, earliest=gap, deadline=gap + (14 if g == 7 else 23))
            for j in range(16):
                g0 = max(0, 12 * j - D + 1)
                b = j & 1; ch = self.chunks(("s1", j))[0] * 1024
                its = [ds_rd(aXH[b], vHX, 1024 * j)]
                for u in range(2):
                    its += [ds_tr(aW16[b][u].sub(0, 2), vW16, ch + 1024 * (1 + u)), ds_tr(aW16[b][u].sub(2, 2), vW16, ch + 1024 * (1 + u) + 512)]
                qH.adds(its, earliest=g0, deadline=12 * j + 4)
                qH.add(mfma(aHACC[0], aW16[b][0], aXH[b], 0 if j == 0 else aHACC[0], "16x16x32"), earliest=g0, deadline=12 * j + 8)
                qH.add(mfma(aHACC[1], aXH[b], aW16[b][1], 0 if j == 0 else aHACC[1], "16x16x32"), earliest=12 * j + 7, deadline=12 * j + 10)
            gap = M2 + 32 - D
            barrier(M2 + C.exbar, [], "ex", lds_tags=["exw"])
            barrier(gap, [("s2", j) for j in range(4, 8)], "mid")
            for n in range(20, 32): b2_add(n, gap)
            first_use = {0: list(range(32, 46)), 1: list(range(46, 50))}
        else:
            for g in range(1, 12):
                gap = 32 * g - D - (8 if g == 11 else 0)
                cv, tg = frag_plan(g, 32, [range(0, 8), range(8, 16)])
                barrier(gap, [slab(jj) for jj in {10: (20, 21, 22), 11: (23,)}.get(g, (2 * g, 2 * g + 1))] + cv, f"b{g}", lds_tags=tg)
                its = []
                for jj in ({8: (19,), 9: ()} if k1 == 28 else {9: ()}).get(g, (2 * g + 3, 2 * g + 4)):
                    if jj < 24: its += self.slab_dma(slab(jj))
                if g == 9:
                    for q_, jj in enumerate((20, 21, 22) if k1 == 28 else (21, 22)):
                        qD.adds(self.slab_dma(slab(jj)), earliest=gap, deadline=gap + 4 * q_, hard=False)
                        qD.add(lambda E: None, earliest=gap, deadline=gap + 6 + 5 * q_)
                k_ = g - (C.warm_gA if isA else C.warm_gB)
                if k_ in (0, 1, 2) and C.warm_all:
                    qD.adds(its, earliest=gap, deadline=gap + 16); its = []
                    qK.adds(self.warm_ops(isA)[k_], earliest=gap + C.warm_off, deadline=gap + C.warm_off + 14)
                if C.b2g <= g < C.b2g + 3 and warm: its += warm[g - C.b2g]
                if g == 6: its.append(tagload)
                for n in {10: range(32, 36), 11: range(36, 44)}.get(g, []): b2_add(n, gap)
                qD.adds(its, earliest=gap, deadline=gap + {1: 28, 9: 22, 10: 7}.get(g, 18))
            first_use = {0: list(range(44, 48)), 1: list(range(48, 56))}
        def xfree(reg): return M2 + nt2 * ((reg.lo + reg.n - 1) // 4) + nt2 - 1
        qFl.add(self.spin_check_tag(), earliest=M2 - 8, deadline=M2 - 4)
        def after(q, stage, tags):
            def arm(E):
                f = self.flag_store(stage, tags); p0 = E.pos; g0_ = E.gap
                fd = C.flagd if stage in (0, 2) else (C.flag1 if stage == 1 else C.flagl)
                f.ready = lambda E: ((E.pos - p0) * 4 + (E.gap - g0_) * 8 >= fd or (E.gap - g0_) * 33 >= fd
                                     or not any(x[2] in tags for x in E.vq))
                qFl.add(f, earliest=E.gap)
            q.add(arm)
        if not isA:
            for t in range(8):
                T = ACC1(t if t < 6 else t - 2)
                its = [accr(T[r], self.acc1(t)[r]) for r in range(16)] if t >= 6 else []
                qE.adds(its + self.h_epilogue(T, sStF, t, "h1"), earliest=nt1 * k1 + (32 - k1) * (t + 1) - 1,
                        deadline=M2 - 1 + (t if k1 > 28 else 0) if t < 4 else nt1 * 28 + 4 * t + 8, hard=(t < 4))
            after(qE, 0, ["h1"])
        else:
            self.attention(qE, xfree)
            n0 = self.exw_check[1]; nn = len(qE.items)
            for k in range(n0, nn):
                it, ear, dl, hd = qE.items[k]
                qE.items[k] = (it, ear, int(M2 + 8 + (M3 + C.att_end - M2 - 8) * (k - n0) / (nn - n0)), False)
            after(qE, 3, ["o"])
        schedule(E, mains[:M2], [qN, qK, qD, qH, qG, qB, qW, qFl, qE], lambda g: (C.cap1A if isA else C.cap1B) if g < nt1 * k1 else C.cap1t,
                 0, flush=False, vm_gap=C.vm1)
        assert qN.empty() and qH.empty()
        self.stamp("s2")

        qL = Q("a2"); qF = Q("fin", vm_age=60); qP = Q("poll", top=True)
        g0 = M3 if isA else M3 + C.gate0B
        for n_, dst in enumerate(self.parked):
            if dst.lo < 128: qR.add(accr(dst, a(aPARK + n_)), earliest=xfree(dst), deadline=min(g0, M3 - D) - 2)
        qR.add(valu("v_add_u32", vWQ, sM0B, vL16), earliest=xfree(vWQ), deadline=min(g0, M3 - D) - 2)
        tail = M2 + k0 * nt2; tl = 32 - k0
        for t in range(nt2):
            its = ([accr(E2T[r], ACC2(t)[r]) for r in range(16)] if isA else []) + self.h_epilogue(E2T if isA else ACC1(t), sSt2, t, "h2" if t < 2 else "h3")
            qE2.adds(its, earliest=tail + tl * t + tl - 1, deadline=tail + tl * t + tl + 8)
            if t == 1: after(qE2, 1 if isA else 2, ["h2"])
            if t == 3: after(qE2, 4, ["h3"])
        mains[M3]["pre"].append(lambda E: self.stamp("p2"))
        def fifo_reset(E): E.fifo.n = min(E.fifo.level(E), C.fifo0); E.fifo.p = E.pos; E.fifo.g = E.gap; E.fifo.PERIOD = C.per3
        for gg in (M3 + 1, M3 + 14): mains[gg]["pre"].append(fifo_reset)
        for n_ in range(72): mains[M3 + 2 * n_]["fix"].insert(0, lambda E, n_=n_: self.stamp(f"n{n_}"))
        gates = {0: g0, 32: M3 + 2 * (32 - C.la1), 40: M3 + 2 * (40 - C.la2), 56: M3 + 2 * (56 - C.la3),
                 64: M3 + 2 * (64 - (C.la4A if isA else C.la4B))}
        def chk_free(q):
            def f(E): assert q.empty(), ("A2 slot still in use", q.name, E.gap)
            f.ready = lambda E: q.empty()
            return f
        cur = 0
        for n in range(72):
            if n in gates:
                cur = gates[n]; st = step_info(n)[2]; n0 = n
                qP.add(self.poll_load(st), earliest=cur - C.polld, deadline=cur - C.polld + 2)
                if C.poll2 and not (n == 0 and isA):
                    qP.add(self.poll2_load(st), earliest=cur - C.poll2, deadline=cur - C.poll2 + 2); self.has2.add(st)
                qL.add(self.gate(st), earliest=cur, deadline=cur + 1)
                if n == 0 and isA: qP.items[-1] = (qP.items[-1][0], M3 + 1, M3 + 1, False)
            its = self.a2_load(n)
            qL.adds(its, earliest=cur, deadline=M3 + (2 * n if n < 72 - C.lastk else 72 - C.lastk + n) - C.a2lead, hard=False)
            need = M3 + (2 * n if n < 72 - C.lastk else 72 - C.lastk + n)
            qL.add(lambda E: None, earliest=cur, deadline=max(need - 6, M3 + 1 if isA else 0))
        qP.items.sort(key=lambda x: x[1] if not (isA and x[1] == M3 + 1 and not x[3]) else -1)
        if isA:
            def boundary(E):
                qs = [qFl, qE2, qE, qL, qB, qW, qU, qP]
                def flags():
                    while not qFl.empty() and (not hasattr(qFl.head()[0], "ready") or qFl.head()[0].ready(E)): step(E, qFl, qs)
                def one_vm(q):
                    while not q.empty() and q.head()[1] <= M3:
                        it = q.head()[0]
                        if hasattr(it, "ready") and not it.ready(E): return False
                        step(E, q, qs)
                        if is_vm(it) and not getattr(it, "dead", False): return True
                    return False
                left = len(qE.items) - qE.n; base = qE.n
                polled = gated = False; lastv = E.pos; nl = 0
                while not (qE2.empty() and qE.empty()):
                    a_, b_ = (qE2, qE) if not qE2.empty() else (qE, qE2)
                    h = a_.head()[0]
                    if not callable(h) and E.nops(h) > 0 and not b_.empty() and (callable(b_.head()[0]) or E.nops(b_.head()[0]) == 0): a_ = b_
                    elif not callable(h) and E.nops(h) > 0 and not qU.empty(): a_ = qU
                    step(E, a_, qs)
                    flags()
                    fr = (qE.n - base) / max(1, left)
                    if not polled and fr >= C.att_gate - 0.45: step(E, qP, qs); polled = True
                    if not gated and fr >= C.att_gate: step(E, qL, qs); gated = True
                    if E.pos - lastv >= C.bd_pace:
                        if (gated and nl < C.bd_nl and one_vm(qL)): nl += 1; lastv = E.pos
                        elif one_vm(qB) or one_vm(qW): lastv = E.pos
                if not polled: step(E, qP, qs)
                if not gated: step(E, qL, qs)
                while nl < C.bd_min and one_vm(qL): nl += 1; flags()
                E.pos += 1000; flags(); E.pos -= 1000
            mains[M3]["pre"].insert(0, boundary)
        b2q = list(range(50 if isA else 56, 72))
        prevpg = lambda n: max(k for k in range(n) if self.b2_chunk(k) == self.b2_chunk(n))
        for c in range(9):
            gap = M3 + 16 * c - D
            barrier(gap, [("b2", n) for n in range(8 * c, 8 * c + 8)] + (["xt"] if c == 7 else []), f"c{c}",
                    lds_tags=["sw", "xr"] if c == 8 else ())
            for n in first_use.get(c, []): mains[gap]["pre"].append(place(n))
            while b2q and L.last_use[("b2", prevpg(b2q[0]))] <= gap - 1: mains[gap]["pre"].append(place(b2q.pop(0)))
        assert not b2q
        RD = v(0, 16); SF = v(16, 16); XF = v(48, 16); XR = v(224, 8); tt = v(32, 4)
        vRW = vTR[0]; vRR = vTR[1]; vOW = vRINV; vOR = vNB; vOO = vTR[4]; vXD = vTR[5]; vXA = vG
        qF.add(chk_free(qE), earliest=M3 + 30); qF.add(chk_free(qE2), earliest=M3 + 30)
        its = [valu("v_lshrrev_b32", tt[0], 4, vL16), valu("v_and_b32", tt[1], 31, tt[0]),
               valu("v_lshrrev_b32", tt[2], 5, tt[0]), valu("v_lshlrev_b32", tt[2], 3, tt[2]),
               salu("s_lshr_b32", sT0, sM0B, 3), salu("s_add_u32", sT0, sT0, TB), valu("v_add_u32", vRW, sT0, vL16),
               valu("v_xor_b32", vRR, 8192, vRW),
               salu("s_and_b32", sT0, sW, 1), salu("s_lshl_b32", sT1, sT0, 12), salu("s_add_u32", sT1, sT1, TB + 16384),
               valu("v_lshlrev_b32", tt[3], 7, tt[1]), valu("v_add3_u32", vXA, tt[3], tt[2], sT1),
               valu("v_and_b32", tt[3], 7, tt[0]), valu("v_lshlrev_b32", tt[3], 4, tt[3]),
               salu("s_lshl_b32", sT1, sKH, 6), valu("v_xor_b32", tt[3], sT1, tt[3]), valu("v_add_u32", vXA, vXA, tt[3]),
               salu("s_mul_i32", sT0, sT0, 32 * 144, scc_w=False), salu("s_add_u32", sT0, sT0, sT1), salu("s_add_u32", sT0, sT0, TB),
               valu("v_mul_u32_u24", tt[1], 144, tt[1]), valu("v_add3_u32", vOW, tt[1], tt[2], sT0),
               valu("v_lshrrev_b32", tt[1], 3, tt[0]), valu("v_and_b32", tt[2], 0x70, vL16),
               valu("v_lshl_add_u32", vOO, tt[1], 10, tt[2]),
               valu("v_lshlrev_b32", tt[3], 4, tt[1]), valu("v_xor_b32", vXD, vOO, tt[3]),
               salu("s_mul_i32", sT0, sW, 16 * 144, scc_w=False), salu("s_add_u32", sT0, sT0, TB),
               valu("v_mul_u32_u24", tt[1], 144, tt[1]), valu("v_add3_u32", vOR, tt[1], tt[2], sT0),
               salu("s_lshl_b32", sXk, sW, 11), salu("s_add_u32", sXk, sXk, TB + 16384), salu("s_add_u32", sXs, sOut, 8192)]
        its += [vload(XR.sub(0, 4), vXD, SX, sOut), vload(XR.sub(4, 4), vXD, SX, sXs), valu("v_add_u32", vXD, sXk, vL16)]
        if C.pre_out: its += [self.touch(vOO, SOUT, sOut, dst=vSP[0]), self.touch(vOO, SOUT, sXs, dst=vSP[0])]
        qF.adds(its, earliest=M3 + 30, deadline=M3 + 64)
        qF.adds([ds_wr(vXD, XR.sub(4 * i, 4), 1024 * i, tag="xt") for i in range(2)], earliest=M3 + 96 - D, deadline=M3 + 112 - D - 2)
        its = []
        for a_ in range(4):
            its += [valu("v_xor_b32", tt[a_], 16 * a_, vXA), ds_rd(XR.sub(2 * a_, 2), tt[a_], 0, tag="xr")]
        qF.adds(its, earliest=M3 + 112 - D, deadline=M3 + 128 - D - 1)
        qF.adds([ds_wr(vRW, ACCS[1].sub(4 * i, 4), 1024 * i, tag="sw") for i in range(4)], earliest=M3 + 111, deadline=M3 + 128 - D)
        its = []
        for r in range(8):
            its += [valu("v_lshlrev_b32", XF[2 * r], 16, XR[r]), valu("v_and_b32", XF[2 * r + 1], sHI, XR[r])]
        qF.adds(its, earliest=M3 + 112)
        its = [ds_rd(SF.sub(4 * i, 4), vRR, 1024 * i) for i in range(4)]
        its += [valu("v_add_f32", SF[r], SF[r], ACCS[0][r]) for r in range(16)]
        CK = v(38, 2); C1 = v(40, 2)
        its += [valu("v_mov_b32", CK[0], 0xbfb8aa3b), valu("v_mov_b32", CK[1], 0xbfb8aa3b), valu("v_mov_b32", C1[0], 1.0), valu("v_mov_b32", C1[1], 1.0)]
        qF.adds(its, earliest=M3 + 128 - D)
        if C.lastk > 1:
            gl = M3 + 144 - C.lastk
            for x in range(len(qF.items)): qF.items[x] = (qF.items[x][0], qF.items[x][1], min(qF.items[x][2], gl + 1), True)
            qF.adds([ds_wr(vRW, ACCD[1].sub(4 * i, 4), 16384 + 1024 * i, tag="dw") for i in range(4)], earliest=gl, deadline=M3 + 142)
            def xch(E):
                E.wait_tags(lds=["dw"]); E.barrier(); self.stamp("sbar")
                for i in range(4): E.emit(ds_rd(RD.sub(4 * i, 4), vRR, 16384 + 1024 * i))
            mains[M3 + 143]["pre"].append(xch)
        cap2 = C.cap2A if isA else C.cap2B
        def capf(g):
            if not isA and not qE.empty(): return C.cap2h
            if g < tail + tl - 1: return cap2
            if g < M3: return C.cap2t
            if not qE2.empty(): return 40
            if g >= M3 + 144 - C.lastk: return C.capl
            return C.cap3 if qE.empty() else C.cap3x
        schedule(E, mains[M2:], [qFl, qP, qD, qG, qL, qB, qW, qU, qR, qE2, qE, qF], capf, M2, flush=False,
                 vm_gap=lambda g: C.vm1 if g < M3 else C.vm3)
        assert qL.empty() and qD.empty() and qB.empty() and qE.empty() and qE2.empty() and qFl.empty()
        self.stamp("lastm")
        while not qF.empty():
            it = qF.head()[0]; qF.n += 1; run_item(E, it)
        if C.lastk <= 1:
            for i in range(4): e(ds_wr(vRW, ACCD[1].sub(4 * i, 4), 16384 + 1024 * i, tag="dw"))
            E.wait_tags(lds=["dw"]); E.barrier()
            self.stamp("sbar")
            for i in range(4): e(ds_rd(RD.sub(4 * i, 4), vRR, 16384 + 1024 * i))
        G = ACCS[1]
        def pk(op, d, *src):
            r = set()
            for x in src: r |= ids(x)
            return I(f"{op} {d}, " + ", ".join(fmt(x) for x in src), "valu", r, ids(d))
        P2 = lambda reg, r: reg.sub(r, 2)
        for a_ in range(4):
            pp_ = (4 * a_, 4 * a_ + 2); rr = range(4 * a_, 4 * a_ + 4)
            for r in pp_: e(pk("v_pk_add_f32", P2(RD, r), P2(RD, r), P2(ACCD[0], r)))
            for r in pp_: e(pk("v_pk_mul_f32", P2(G, r), P2(RD, r), CK))
            for r in pp_: e(pk("v_pk_mul_f32", P2(RD, r), P2(RD, r), P2(SF, r)))
            for r in rr: e(valu("v_exp_f32", G[r], G[r]))
        for a_ in range(4):
            pp_ = (4 * a_, 4 * a_ + 2); rr = range(4 * a_, 4 * a_ + 4)
            for r in pp_: e(pk("v_pk_add_f32", P2(G, r), P2(G, r), C1))
            for r in rr: e(valu("v_rcp_f32", G[r], G[r]))
        for a_ in range(4):
            pp_ = (4 * a_, 4 * a_ + 2)
            for r in pp_: e(pk("v_pk_fma_f32", P2(RD, r), P2(RD, r), P2(G, r), P2(XF, r)))
            for d in range(2): e(valu("v_cvt_pk_bf16_f32", XR[2 * a_ + d], RD[4 * a_ + 2 * d], RD[4 * a_ + 2 * d + 1]))
            e(ds_wr(vOW, XR.sub(2 * a_, 2), 16 * a_))
        E.wait_all_lds(); E.barrier()
        for p in range(2): e(ds_rd(G.sub(4 * p, 4), vOR, 8 * 144 * p))
        for p in range(2): e(vstore(G.sub(4 * p, 4), vOO, SOUT, sXs if p else sOut, 0, fl=C.out_fl))
        self.stamp("end")
        if C.amp:
            l = self.lab("amp")
            E.line("s_waitcnt lgkmcnt(0)")
            if C.amp.startswith("sk"):
                E.line(f"buffer_load_dword v0, off, {SDBG}, 0 offset:4 sc1"); E.line("s_waitcnt vmcnt(0)"); E.line(f"v_readfirstlane_b32 {sT1}, v0"); E.line("s_nop 4")
                if C.amp == "skp": E.line(f"s_sub_u32 {sT0}, s{STAMP0}, {sT1}")
                else: E.line(f"s_sub_u32 {sT0}, {sT1}, s{STAMP0}")
                E.line(f"s_max_i32 {sT0}, {sT0}, 0")
            else:
                k0, k1 = [STAMP0 + 2 * int(x) for x in C.amp.split("-")]
                E.line(f"s_sub_u32 {sT0}, s{k1}, s{k0}")
            if C.ampsel >= 0:
                E.line(f"s_lshr_b32 {sT1}, {sWG}, 5"); E.line(f"s_cmp_eq_u32 {sT1}, {C.ampsel}"); E.line(f"s_cselect_b32 {sT0}, {sT0}, 0")
            if C.ampx >= 0:
                E.line(f"s_and_b32 {sT1}, {sWG}, 7"); E.line(f"s_cmp_eq_u32 {sT1}, {C.ampx}"); E.line(f"s_cselect_b32 {sT0}, {sT0}, 0")
            pass; E.line(f"s_lshl_b32 {sT0}, {sT0}, 2"); E.line(f"s_add_u32 {sT0}, {sT0}, s{STAMP0 + 16}")
            E.label(l)
            E.line("s_memrealtime s[84:85]"); E.line("s_waitcnt lgkmcnt(0)"); E.line(f"s_sub_u32 s84, s84, {sT0}")
            E.line("s_cmp_lt_i32 s84, 0"); E.line(f"s_cbranch_scc1 {l}")
        elif C.stamps:
            E.line("s_waitcnt lgkmcnt(0)")
            e(salu("s_lshl_b32", sT0, sWG, 2)); e(salu("s_add_u32", sT0, sT0, sW)); e(salu("s_lshl_b32", sT0, sT0, 7))
            e(salu("s_add_u32", sT0, sT0, WS_STAMP))
            for k in range(9):
                e(valu("v_mov_b32", v(0), s(STAMP0 + 2 * k))); e(vstore(v(0), None, SWS, sT0, 4 * k))
            e(accr(v(0), a(198))); e(vstore(v(0), None, SWS, sT0, 44))
            E.line("s_memrealtime s[84:85]"); E.line("s_getreg_b32 s86, hwreg(HW_REG_XCC_ID)"); E.line("s_waitcnt lgkmcnt(0)")
            e(valu("v_mov_b32", v(0), s(84))); e(vstore(v(0), None, SWS, sT0, 36))
            e(valu("v_mov_b32", v(0), s(86))); e(vstore(v(0), None, SWS, sT0, 40))
        E.line("s_endpgm")
        E.out += self.cold

    def epoch_publish(self):
        E = self.E
        l = self.lab("nopub")
        E.emit(salu("s_or_b32", sT0, sWG, sW))
        E.line(f"s_cbranch_scc1 {l}")
        E.line(f"s_mov_b32 {sT0}, 0x9e3779b1")
        E.line(f"v_mul_lo_u32 {vPOLL}, {vPOLL}, {sT0}")
        E.line(f"v_add_u32 {vPOLL}, 0x7f4a7c15, {vPOLL}")
        E.line(f"v_max_u32 {vPOLL}, 1, {vPOLL}")
        E.line(f"s_mov_b32 {sT0}, {WS_EPOCH}")
        E.line(f"buffer_store_dword {vPOLL}, off, {SWS}, {sT0} sc1")
        if C.amp.startswith("sk"):
            E.line(f"v_mov_b32 v0, s{STAMP0}"); E.line(f"buffer_store_dword v0, off, {SDBG}, 0 offset:4 sc1"); E.line("s_waitcnt vmcnt(0)")
        E.line(f"buffer_store_dword {vPOLL}, off, {SDBG}, 0 sc1")
        E.label(l)

    def attention(self, q, xfree):
        M2 = self.M2
        Q0, Q1, K0, K1, V0, V1 = [ACC1(t) for t in range(6)]
        cvt = lambda d, x, y: valu("v_cvt_pk_bf16_f32", d, x, y)
        def pack(dst, src, n=8): return [cvt(dst[i], src[2 * i], src[2 * i + 1]) for i in range(n)]
        its = pack(K0, K0) + pack(K0.sub(8, 8), K1)
        its += [ds_wr(vEX, K0.sub(4 * h, 4), 6144 + 1024 * h, tag="exw") for h in range(4)]
        its += pack(V0, V0) + pack(V0.sub(8, 8), V1)
        bar2 = M2 + C.exbar
        q.adds(its, earliest=M2 - 21, deadline=bar2 - 1)
        its = [ds_wr(vEX, V0.sub(4 + 8 * j, 4), 6144 + 4096 + 1024 * j, tag="exw") for j in range(2)]
        its += [accr(NT[i], aHACC[0][i]) for i in range(4)] + [accr(NT[4 + i], aHACC[1][i]) for i in range(4)]
        hk = v(NT[0].lo, 2); hv = v(NT[4].lo, 2)
        its += [cvt(NT[0], NT[0], NT[1]), cvt(NT[1], NT[2], NT[3]), cvt(NT[4], NT[4], NT[5]), cvt(NT[5], NT[6], NT[7])]
        its += [salu("s_lshl_b32", sT0, sW, 10), salu("s_add_u32", sT0, sT0, 256), valu("v_add_u32", NT[2], sT0, vHW),
                salu("s_lshr_b32", sT0, sW, 1), salu("s_lshl_b32", sT0, sT0, 10), salu("s_and_b32", sT1, sW, 1),
                salu("s_lshl_b32", sT1, sT1, 8), salu("s_add_u32", sT0, sT0, sT1), valu("v_add_u32", NT[3], sT0, vHW),
                ds_wr(NT[2], hk, 0, tag="exw"), ds_wr(NT[3], hv, 4096, tag="exw")]
        q.adds(its, earliest=M2 - 1, deadline=bar2 - 1)
        self.exw_check = (q, len(q.items))
        q.adds(pack(Q0, Q0) + pack(Q0.sub(8, 8), Q1), earliest=M2)
        MASK = v(208, 24)
        its = [accr(vRINV, a(196)), accr(vNB, a(197)), smov(sONE, NEG)]
        for r in range(24):
            rr = r if r < 16 else r - 8
            its += [valu("v_bfe_i32", MASK[r], vNB if r < 16 else vRINV, 8 * (rr >> 2) + (rr & 3), 1), valu("v_and_b32", MASK[r], sONE, MASK[r])]
        q.adds(its, earliest=M2)
        q.add(lambda E: self.mark.update(masks=True), earliest=M2)
        SC = K1; SP = v(0, 16); U = v(16, 8); P = v(24, 12); O = Q1
        mx, tm, mc = vRINV, vNB, vW16
        sums = [vHX, vH]; t2 = vTR[4]
        def add(i, ear=0):
            w = [x for x in i.w if x < 128]
            e_ = max([xfree(v(x)) for x in w], default=0)
            q.add(i, earliest=max(e_, ear))
        def qk(h, which):
            if which == 0: add(mfma(SC, K0.sub(4 * h, 4), Q0.sub(4 * h, 4), MASK.sub(0, 16)))
            else: add(mfma(SP, aKP[h], Q0.sub(4 * h, 4), MASK.sub(8, 16)))
        def fin(h):
            o = 8 * (h & 1); sm = sums[h & 1]
            l = [valu("v_rcp_f32", sm, sm)]
            l += [valu("v_mul_f32", O[o + r], O[o + r], sm) for r in range(8)]
            l += [cvt(O[o + r], O[o + 2 * r], O[o + 2 * r + 1]) for r in range(4)]
            l.append(self.a2_store(O.sub(o, 4), sStF, h, "o"))
            return l
        qk(0, 0)
        q.adds([ds_rd(aKP[h], vEX, 1024 * h) for h in range(4)] + [ds_rd(aVP[j], vEX, 4096 + 1024 * j) for j in range(2)], earliest=bar2)
        qk(0, 1)
        for h in range(4 if not C.abl_att else 1):
            for i in range(4): add(valu("v_max_f32", U[i], SC[2 * i], SC[2 * i + 1]))
            for i in range(4, 8): add(valu("v_max3_f32", U[i], SC[2 * i], SC[2 * i + 1], SP[2 * i]))
            if h < 3: qk(h + 1, 0)
            for i in range(4, 8): add(valu("v_max_f32", U[i], U[i], SP[2 * i + 1]))
            add(valu("v_max3_f32", mx, U[0], U[1], U[2])); add(valu("v_max3_f32", tm, U[3], U[4], U[5]))
            if h < 3: qk(h + 1, 1)
            add(valu("v_max3_f32", mx, mx, U[6], U[7])); add(valu("v_max_f32", mx, mx, tm))
            add(valu("v_mov_b32", tm, mx))
            fl = fin(h - 1) if h > 0 else []
            for x in fl[:3]: add(x)
            add(swap32(mx, tm)); add(valu("v_max_f32", mx, mx, tm))
            add(I(f"v_mul_f32 {mc}, -{mx}, {sCSC}", "valu", mx.ids() | sCSC.ids(), mc.ids()))
            for x in fl[3:]: add(x)
            for i in range(8): add(valu("v_fma_f32", U[i], U[i], sCSC, mc))
            for i in range(8): add(valu("v_exp_f32", U[i], U[i]))
            sm = sums[h & 1]; j = h >> 1
            for i in range(4):
                add(cvt(P[i], U[i], U[i])); add(valu("v_and_b32", P[i], vPM, P[i]))
            add(valu("v_add_f32", sm, U[0], U[1])); add(valu("v_add_f32", tm, U[2], U[3]))
            add(mfma(O, V0.sub(8 * j, 4), P.sub(0, 4), 0))
            for i in range(4):
                add(cvt(P[8 + i], U[4 + i], U[4 + i])); add(valu("v_and_b32", P[4 + i], vMHC, P[8 + i]))
            add(valu("v_add_f32", t2, U[4], U[5])); add(valu("v_add_f32", sm, sm, tm))
            add(mfma(O, V0.sub(8 * j + 4, 4), P.sub(4, 4), O))
            for i in range(4): add(valu("v_and_b32", P[8 + i], vMHP, P[8 + i]))
            add(valu("v_add_f32", tm, U[6], U[7])); add(valu("v_add_f32", t2, t2, tm))
            add(mfma(O, aVP[j], P.sub(8, 4), O))
            add(valu("v_add_f32", sm, sm, t2))
            add(valu("v_mov_b32", tm, sm))
            add(swap32(sm, tm)); add(valu("v_add_f32", sm, sm, tm))
        for x in fin(3): add(x)

    def build(self):
        E = self.E
        self.stamp("t00")
        E.emit(scmp("s_cmp_ge_u32", sWG, 256))
        E.line("s_cbranch_scc1 L_end")
        E.line("s_load_dwordx16 s[8:23], s[0:1], 0")
        E.line("s_load_dwordx4 s[24:27], s[0:1], 64")
        E.emit(salu("s_lshr_b32", sJ, sWG, 3))
        self.code_touch()
        E.emit(I("s_bitcmp1_b32 s6, 3", "salu", sJ.ids(), {SCC}))
        E.line("s_cbranch_scc1 L_typeB")
        snap = E.snapshot()
        self.body("A")
        E.label("L_typeB")
        E.restore(snap)
        self.body("B")
        E.label("L_end")
        E.line("s_endpgm")
        E.label("L_code_end")
        E.out.append(".p2align 12")
        head = open(os.path.join(os.path.dirname(os.path.abspath(__file__)), "head.txt")).read()
        txt = head + f"""; @launch grid=(256,1,1) block=(256,1,1) lds=163840
.amdgcn_target "amdgcn-amd-amdhsa--gfx950"
.text
.globl {NAME}
.p2align 8
.type {NAME},@function
{NAME}:
""" + E.text() + f""".section .rodata,"a"
.p2align 6
.amdhsa_kernel {NAME}
  .amdhsa_next_free_vgpr 512
  .amdhsa_next_free_sgpr 102
  .amdhsa_accum_offset 256
  .amdhsa_group_segment_fixed_size 0
  .amdhsa_kernarg_size 80
  .amdhsa_user_sgpr_count 2
  .amdhsa_user_sgpr_kernarg_segment_ptr 1
  .amdhsa_system_sgpr_workgroup_id_x 1
.end_amdhsa_kernel
"""
        return txt


def place_pads(txt):
    import subprocess, re, tempfile
    sys.path.insert(0, "cdna_kernels")
    from cdna_launch import with_harness_metadata
    lines = txt.split("\n")
    probe = []
    for n, l in enumerate(lines):
        if l.startswith("    ") and not l.strip().startswith(";") and not l.strip().startswith("."): probe.append(f"LP_{n}:")
        probe.append(re.sub(r"L_pad[AB]_\d+", "L_end", l))
    d = tempfile.mkdtemp()
    open(d + "/p.s", "w").write(with_harness_metadata("\n".join(probe), NAME, 10, launch_lists=True))
    subprocess.run(["clang", "-x", "assembler", "-target", "amdgcn-amd-amdhsa", "-mcpu=gfx950", d + "/p.s", "-o", d + "/p.co"], check=True)
    sym = subprocess.run(["llvm-objdump", "-t", d + "/p.co"], capture_output=True, text=True).stdout
    addr = {int(m.group(2)): int(m.group(1), 16) for m in re.finditer(r"([0-9a-f]{16}) .* LP_(\d+)", sym)}
    shift = 0; typ = None; pads = {"A": [], "B": []}; prev = None
    for n, l in enumerate(lines):
        if l.startswith(";PADS_FROM"): typ = l.split()[1]
        if l.startswith("L_typeB:") or l.startswith("L_end:"): typ = None
        if n in addr:
            a_ = addr[n] + shift
            if typ and prev is not None and prev // 4096 != a_ // 4096:
                pads[typ].append(n); shift += 4
            prev = a_
    out = []
    for n, l in enumerate(lines):
        for t in "AB":
            if n in pads[t]:
                k = pads[t].index(n)
                out.append(f"L_pad{t}_{k}:")
                out.append(f"    s_cbranch_execz " + (f"L_pad{t}_{k + 4}" if k + 4 < len(pads[t]) else f"L_back{t}"))
        out.append(l)
    print("pads", {t: len(pads[t]) for t in pads}, "kernel at", hex(min(addr.values())))
    assert min(len(pads[t]) for t in pads) >= 4
    return "\n".join(out)


if __name__ == "__main__":
    g = Gen()
    txt = g.build()
    if C.pads: txt = place_pads(txt)
    open(sys.argv[1], "w").write(txt)
    print("instructions:", g.E.ninst)
```

```python
import sys, os
sys.path.insert(0, os.path.dirname(os.path.abspath(__file__)))
from emit import *

NAME = "recurrent_scan__sliding_local_dilated__glu_gated_bilinear__prompt_kernel"

class Cfg:
    stamps = False
    stset = "a"
    rt = False
    D = 6
    nahead = 8; cap1A = 7.0; cap1B = 6.8; cap1t = 12.0; cap2h = 9.0; cap2A = 7.5; cap2B = 7.0; cap3 = 7.0; cap2t = 7.5; cap3x = 20.0
    npre = 140
    att_gate = 0.7; gate0B = -44; vm1 = 2.0; vm3 = 8.0; nrawA = 0; nrawB = 14; warm_gA = 1; warm_gB = 1; warm_off = 12; warm_mode = 0; scal_span = 30; b2gA = 4; b2gB = 3; raw0A = 130; raw0B = 270
    rot = True; rot_half = False
    pads = True
    la1 = 14; la2 = 14; la3 = 18; la4A = 13; la4B = 18
    polld = 34
    flagd = 600
    b2lead = 24; a2lead = 30; att_end = 30
    dbg_st = False; dbg_a2 = 0; dbg_dump = False; dbg_bar = False
    amp = ""; ampsel = -1; ampx = -1
    lg_old = 10; vmfirst = False
    abl_norm = False; abl_tr = 0; abl_tr2 = False; abl_att = False
    bd_pace = 16; bd_nl = 14; bd_min = 12
    fifo0 = 3.0; per3 = 56.0; poll2 = 0
    qkv_byB = True; scal_early = False; mask_early = False; warm_byB = False
    fs = 1024; skip3 = False; rot3 = True
    ctrot = 0; k1B = 30; flstride = 1024
    lastk = 1; capl = 7.0
    wsoff = 0; pre_out = False
    rot2 = True; flagl = 300; flag1 = 300
    raw = True; raw0 = 84
    npre_norm = 1; npre_normA = 1; hn_at = 0; dots_first = 6; exbar = 12; npoll = 3
    w3early = True
    w0at = 4; touch_w0 = 4; x2early = False
    touch_code = True
    touch_b2 = False; b2g = 4
    warm_all = True; warm_byA = False
    a2_fl = "sc1"; st_fl = "sc1"; pre_a2 = 0; x_fl = ""; w_fl = ""; b2_fl = ""; out_fl = ""
    spin_max = 1 << 16

C = Cfg()
import emit as _emit
for arg in sys.argv[2:]:
    k, val = arg.split("=")
    old = getattr(C, k)
    setattr(C, k, (val not in ("0", "False")) if isinstance(old, bool) else type(old)(val.replace("+", " ")))

Emitter.LG_OLD = C.lg_old
WS_FLAG = 0x1C00000
WS_EPOCH = 0x1D00000
WS_STAMP = 0x1E00000
WS_SIZE = 0x1F00000
FS = C.fs
FLO = [0, 128, 256, 512, 640]
TB = 131072

sWG = s(2); sW = s(3); sRB = s(4); sIDX = s(5); sJ = s(6); sXCD = s(7)
SX, SWO, SWG_, SWD, SDBG, SP5, SWU, SOUT, SWS, SP9 = [s(8 + 4 * i, 4) for i in range(10)]
SQKV = SWG2 = SP5; SWH = SWU2 = SP9
(sA2s, sB2s, sM0B, sT0, sT1, sS1, sS2, sS2b, sTAG, sFLW, sFLR, sStF, sStH, sSt2, sHI, sONE, sSPIN, sT2, sOut, sT5,
 sRT, sCT, sKH, sCSC, sXs, sM0T, sXo, sXk, sROT, sC512, sA2c0, sA2c1, sA2c2, sB2c0, sB2c1, sB2c2) = [s(48 + i) for i in range(36)]
sA2c = [sA2c0, sA2c1, sA2c2]; sB2c = [sB2c0, sB2c1, sB2c2]
sHo = sB2s
sG3 = [sB2c0, s(0), s(1), s(5)]; sG1 = [sB2c2, s(6), s(7), sCT]
sPC = s(48, 2)
STAMP0 = 84

def X(ks): return v(4 * ks, 4)
def ACC1(t): return v(128 + 16 * t, 16)
NT = [v(224 + i) for i in range(8)]
vTR = [v(232 + i) for i in range(6)]
vG = v(238); vU = v(239); vH = v(240)
vB2 = v(241); vTW = v(242)
vL16 = v(243); vRINV = v(244); vNB = v(245); vW16 = v(246); vHX = v(247)
vTAG = v(248); vPOLL = v(249); vP4 = v(250); vTB = vTAG
vEX = v(251); vHW = v(252); vPM = v(253); vMHC = v(254); vMHP = v(255)
vTR2T = [v(42), v(43)]; vTR2 = [v(44), v(45)]; vWQ = v(46)
vPL = [vPOLL, v(36), v(37), v(47)]
vA2O = vTW
vSP = [v(39), v(41)]
PARKED = vTR2T + vTR2
E2T = v(48, 16)
ACCD = [v(64, 16), v(80, 16)]; ACCS = [v(96, 16), v(112, 16)]
def WF(m): return a(4 * (m % 12), 4)
def ACC2(t): return a(48 + 16 * t, 16)
aMASK = a(112, 24); aKP = [a(136 + 4 * i, 4) for i in range(4)]; aVP = [a(152 + 4 * i, 4) for i in range(2)]
aHACC = [a(160, 4), a(164, 4)]; aXH = [a(168, 4), a(172, 4)]
aW16 = [[a(176, 4), a(180, 4)], [a(184, 4), a(188, 4)]]
aPARK = 192
aDUM0 = a(199); vDUM1 = v(37)

NEG = 0xf149f2ca


class LDSMap:
    def __init__(self):
        self.own = {c: ("x", c // 4) for c in range(32)}
        for c in range(32, 40): self.own[c] = ("T",)
        self.last_use = {}
        self.visible = set()
        self.bar_m = -1
        self.xread = set()
    def alloc(self, obj, chunks):
        for c in chunks:
            o = self.own[c]
            if o[0] == "x": assert o[1] in self.xread, (obj, c, o)
            else: assert self.last_use[o] <= self.bar_m, (obj, c, o, self.last_use[o], self.bar_m)
            self.own[c] = obj
    def check_read(self, obj, chunks):
        assert obj in self.visible, ("not visible", obj)
        for c in chunks: assert self.own[c] == obj, (obj, c, self.own[c])


SHIFT = [48, 8, 16]


def step_info(n):
    if n < 32: return 16 + 12 * (n >> 3) + (n & 7), 0, 0
    if n < 40: return n - 32, 1, 1
    if n < 56: return 112 + n - 40, 2, 3
    hi = n >= 64; k = (n - 56) & 7
    return 24 + 12 * (k >> 1) + (k & 1) + 2 * hi, 0, (4 if hi else 2)


class Gen:
    def __init__(self):
        self.E = Emitter()
        self.E.trace = bool(os.environ.get("TRACE"))
        self.nlabel = 0
        self.nstamp = 0

    def lab(self, base):
        self.nlabel += 1
        return f"L_{base}_{self.nlabel}"

    STS = {"a": ["t0", "issued", "x0", "xdone", "s1", "s2", "p2", "lastm", "end"],
           "b": ["t0", "g0a", "g0b", "p2", "g1a", "g1b", "g2a", "g2b", "end"],
           "e": ["t0", "karg", "issued", "rest", "pads", "x0", "x1", "x3", "end"],
           "f": ["t0", "x4", "x5", "x6", "x7", "xdone", "s1", "b1", "end"],
           "g": ["t0", "s1", "b1a", "b1", "b2a", "b2", "b3a", "b3", "end"],
           "h": ["t0", "b3", "b4", "b5", "b6", "b7", "b8", "s2", "end"],
           "j": ["t0", "g2b", "n48", "n55", "n56", "n60", "n64", "n71", "end"],
           "k": ["t0", "g0b", "n0", "n4", "n8", "n16", "n24", "n31", "end"],
           "l": ["t0", "g1b", "g3b", "n31", "n32", "n39", "n40", "n47", "end"],
           "m": ["t0", "n0", "n8", "n16", "n24", "n32", "n40", "n56", "end"],
           "n": ["t0", "c0a", "c0", "c1a", "c1", "c2a", "c2", "c3a", "c3"],
           "o": ["t0", "c4a", "c4", "c5a", "c5", "c6a", "c6", "c7a", "c7"],
           "p": ["t0", "g0a", "g0b", "g1a", "g1b", "g3a", "g3b", "g2a", "g2b"],
           "q": ["t0", "s2", "f0a", "f0b", "g0a", "g0b", "f2a", "f2b", "end"],
           "r": ["t0", "s1", "b1", "b2", "b3", "b4", "b5", "b6", "b7"],
           "s": ["t0", "b7", "b8", "b9", "b10", "b11", "c0", "c1", "c2"],
           "t": ["n16", "n17", "n18", "n19", "n20", "n21", "n22", "n23", "n24"],
           "u": ["n40", "n41", "n42", "n43", "n44", "n45", "n46", "n47", "n48"],
           "v": ["n60", "n61", "n62", "n63", "n64", "n65", "n66", "n67", "n68"],
           "w": ["t00", "t0", "karg", "issued", "rest", "pads", "x0", "xdone", "end"],
           "x": ["t0", "issued", "pads", "x0", "x2", "x4", "x7", "bx", "s1"],
           "y": ["t0", "x4", "x5", "x6", "x7", "xdone", "bx", "s1", "b1"],
           "z": ["t0", "p2", "f2b", "f4b", "g2a", "g2b", "g4a", "g4b", "end"],
           "0": ["t0", "end"],
           "AMP": ["t0", "-1", "-2", "-3", "-4", "-5", "-6", "-7", "end"],
           "F": ["t0", "s1", "s2", "f0b", "f1b", "f3b", "f4b", "g3b", "g4b"],
           "G": ["t0", "g0a", "g0b", "g3a", "g3b", "g2a", "g2b", "g4a", "g4b"],
           "i": ["t0", "s2", "g0a", "g0b", "p2", "c1", "g1a", "g1b", "end"],
           "d": ["t0", "p2", "g1b", "g3a", "g3b", "g2a", "g2b", "lastm", "end"],
           "c": ["t0", "p2", "c1", "c3", "c5", "c7", "lastm", "sbar", "end"]}

    def stamp(self, name):
        if C.stset.startswith("B"):
            g = int(C.stset[1:]); self.STS[C.stset] = [f"b{g}"] + [f"b{g + k}{x}" for k in range(1, 5) for x in ("a", "")]
        if C.stset.startswith("N"): self.STS[C.stset] = [f"n{int(C.stset[1:]) + k}" for k in range(9)]
        if C.stamps and name in self.STS[C.stset]:
            k = self.STS[C.stset].index(name)
            self.E.line(f"{'s_memrealtime' if C.rt else 's_memtime'} s[{STAMP0 + 2 * k}:{STAMP0 + 2 * k + 1}]")

    def setup_first(self, typ):
        o = []; e = o.append
        lane = self.lane; vx = self.vx; t0, t1, t2 = v(201), v(202), v(203)
        e(valu("v_and_b32", lane, 63, v(0)))
        e(valu("v_lshrrev_b32", t0, 6, v(0)))
        e(salu("s_and_b32", sXCD, sWG, 7))
        e(rfl(sW, t0))
        e(salu("s_and_b32", sRB, sXCD, 1)); e(salu("s_lshl_b32", sRB, sRB, 3))
        e(salu("s_and_b32", sT0, sJ, 7)); e(salu("s_add_u32", sRB, sRB, sT0))
        e(salu("s_and_b32", sIDX, sXCD, 6)); e(salu("s_lshr_b32", sT0, sJ, 4)); e(salu("s_add_u32", sIDX, sIDX, sT0))
        e(valu("v_and_b32", t0, 7, lane)); e(valu("v_lshrrev_b32", t1, 4, lane)); e(valu("v_xor_b32", t0, t0, t1))
        e(valu("v_lshlrev_b32", t0, 4, t0))
        e(valu("v_lshrrev_b32", t1, 3, lane)); e(valu("v_lshlrev_b32", t1, 10, t1))
        e(valu("v_or_b32", vx[0], t0, t1)); e(valu("v_xor_b32", t2, 64, vx[0]))
        e(valu("v_add_u32", vx[1], 7168, t2)); e(valu("v_add_u32", vx[2], 2 * 7168, vx[0])); e(valu("v_add_u32", vx[3], 3 * 7168, t2))
        e(salu("s_lshl_b32", sM0B, sW, 15))
        e(salu("s_lshl_b32", sT0, sRB, 17)); e(salu("s_add_u32", sXo, sT0, sM0B))
        e(salu("s_lshr_b32", sT1, sJ, 3)); e(salu("s_add_u32", sT1, sT1, sJ)); e(salu("s_and_b32", sROT, sT1, (1 if C.rot_half else 3) if C.rot else 0))
        if C.rot_half: e(salu("s_lshl_b32", sROT, sROT, 1))
        e(salu("s_lshl_b32", sXk, sROT, 8))
        e(smov(SWS[2], WS_SIZE)); e(smov(SWS[3], 0x20000))
        if typ == "A":
            e(smov(SQKV[2], 512 * 3072)); e(smov(SQKV[3], 0x20000))
            hs = self.hs
            e(salu("s_sub_u32", sT1, sT0, 16 * 1024))
            e(valu("v_add_u32", hs[0], sT1, vx[0])); e(salu("s_add_u32", sT1, sT1, 1024)); e(valu("v_add_u32", hs[1], sT1, vx[1]))
            e(salu("s_add_u32", sHo, sW, sROT)); e(salu("s_and_b32", sHo, sHo, 3)); e(salu("s_lshl_b32", sHo, sHo, 8))
            e(salu("s_lshr_b32", sS2b, sM0B, 3))
            e(salu("s_lshl_b32", sT2, sIDX, 1))
            e(salu("s_lshl_b32", sS1, sIDX, 7))
        else:
            e(salu("s_mul_i32", sT2, sIDX, 12, scc_w=False)); e(salu("s_add_u32", sT2, sT2, 24))
            e(salu("s_lshl_b32", sS1, sT2, 5)); e(salu("s_sub_u32", sS1, sS1, 256))
            for d, sh in ((SWU, 1024), (SWG2, 1920), (SWU2, 2944)):
                e(smov(d[2], 512 * 3584 + sh)); e(smov(d[3], 0x20000))
        st1 = 3072 if typ == "A" else 3584
        e(salu("s_mul_i32", sT0, sROT, 128 * st1, scc_w=False)); e(salu("s_add_u32", sS1, sS1, sT0))
        if C.touch_w0:
            e(valu("v_and_b32", t0, C.touch_w0 - 1, lane)); e(valu("v_mul_u32_u24", t0, st1, t0))
            if typ == "A":
                e(valu("v_lshrrev_b32", t1, 4, lane)); e(valu("v_min_u32", t1, 2, t1)); e(valu("v_lshlrev_b32", t1, 10, t1))
            else:
                e(valu("v_bfe_u32", t1, lane, 4, 1)); e(valu("v_lshlrev_b32", t1, 7, t1))
            e(valu("v_add_u32", vTW, t0, t1))
            e(salu("s_and_b32", sT0, sJ, 4)); e(salu("s_and_b32", sT1, sXCD, 1)); e(salu("s_lshl_b32", sT1, sT1, 3))
            e(salu("s_add_u32", sT0, sT0, sT1)); e(salu("s_add_u32", sT0, sT0, sW))
            e(salu("s_mul_i32", sT0, sT0, C.touch_w0 * st1, scc_w=False)); e(salu("s_add_u32", sT5, sT0, sS1))
            if typ == "B" and C.qkv_byB:
                e(valu("v_and_b32", t0, 3, lane)); e(valu("v_mul_u32_u24", t0, 3072, t0))
                e(valu("v_lshrrev_b32", t1, 4, lane)); e(valu("v_min_u32", t1, 2, t1)); e(valu("v_lshlrev_b32", t1, 10, t1))
                e(valu("v_add_u32", vMHP, t0, t1))
                e(salu("s_and_b32", sT0, sRB, 3)); e(salu("s_lshl_b32", sT0, sT0, 5)); e(salu("s_and_b32", sT1, sRB, 12))
                e(salu("s_add_u32", sT0, sT0, sT1)); e(salu("s_add_u32", sT0, sT0, sW)); e(salu("s_mul_i32", sT0, sT0, 4 * 3072, scc_w=False))
                e(salu("s_lshl_b32", sT1, sIDX, 7)); e(salu("s_add_u32", sXs, sT0, sT1))
        return o

    def touch(self, voff, srd_, soff, imm=0, dst=None, fl=""):
        i = vload(dst or aDUM0, voff, srd_, soff, imm, fl=fl); i.w = set(); return i

    def consts(self, typ):
        o = []; e = o.append
        lane = self.lane
        t = [v(208 + i) for i in range(8)]
        li, g4, r2, hh, ub = v(190), v(191), v(192), v(193), v(194)
        e(valu("v_and_b32", li, 15, lane)); e(valu("v_lshrrev_b32", g4, 4, lane)); e(valu("v_lshrrev_b32", hh, 5, lane))
        e(valu("v_and_b32", ub, 1, g4)); e(valu("v_lshrrev_b32", r2, 2, li))
        e(valu("v_lshlrev_b32", vL16, 4, lane))
        e(smov(sHI, 0xffff0000)); e(smov(sONE, 0x3f803f80)); e(smov(sC512, 0x3b000000)); e(smov(sCSC, 0x3eb8aa3b))
        xa = self.xa
        e(valu("v_and_b32", t[0], 31, lane)); e(valu("v_lshlrev_b32", t[1], 7, t[0]))
        e(valu("v_bfe_u32", t[0], lane, 1, 3)); e(valu("v_xor_b32", t[0], t[0], hh)); e(valu("v_lshlrev_b32", t[0], 4, t[0]))
        e(valu("v_add_u32", t[1], sM0B, t[1]))
        for q in range(4):
            e(valu("v_xor_b32", t[2], 32 * q, t[0])); e(valu("v_add_u32", xa[q], t[1], t[2]))
        for r_ in self.acc: e(valu("v_mov_b32", r_, 0))
        if typ == "A":
            ha = self.ha
            e(valu("v_lshlrev_b32", t[1], 7, li)); e(valu("v_lshrrev_b32", t[0], 1, li)); e(valu("v_xor_b32", t[0], t[0], g4))
            e(valu("v_lshlrev_b32", t[0], 4, t[0]))
            e(salu("s_add_u32", sT0, sS2b, TB)); e(valu("v_add_u32", t[1], sT0, t[1]))
            e(valu("v_add_u32", ha[0], t[1], t[0])); e(valu("v_xor_b32", t[0], 64, t[0])); e(valu("v_add_u32", ha[1], t[1], t[0]))
            for r_ in self.hacc: e(valu("v_mov_b32", r_, 0))
            e(valu("v_add_u32", vHX, TB + 16384, vL16))
            e(valu("v_lshlrev_b32", ha[2], 3, lane)); e(valu("v_add_u32", ha[2], TB, ha[2])); e(valu("v_add_u32", ha[3], sS2b, ha[2]))
            e(valu("v_add_u32", ha[4], sS2b, vHX))
        e(salu("s_and_b32", sT0, sW, 1)); e(salu("s_lshl_b32", sT0, sT0, 4))
        e(salu("s_lshr_b32", sKH, sW, 1)); e(salu("s_lshl_b32", sT1, sKH, 3)); e(salu("s_add_u32", sT1, sT1, sT0))
        e(valu("v_lshrrev_b32", t[0], 3, lane)); e(valu("v_and_b32", t[1], 2, t[0])); e(valu("v_lshlrev_b32", t[1], 5, t[1]))
        e(valu("v_and_b32", t[2], 7, lane)); e(valu("v_lshlrev_b32", t[2], 4, t[2])); e(valu("v_xor_b32", t[2], t[2], t[1]))
        e(valu("v_add_u32", t[3], sT1, t[0]))
        if typ == "A":
            e(valu("v_mul_u32_u24", t[4], 3072, t[3])); e(valu("v_add_u32", vH, t[4], t[2]))
            e(salu("s_lshl_b32", sT0, sT0, 1))
            e(valu("v_lshrrev_b32", t[4], 2, lane)); e(valu("v_add_u32", t[4], sT0, t[4])); e(valu("v_mul_u32_u24", t[4], 3584, t[4]))
            e(valu("v_and_b32", t[5], 3, lane)); e(valu("v_lshlrev_b32", t[5], 4, t[5]))
            e(salu("s_lshl_b32", sT1, sKH, 5)); e(valu("v_xor_b32", t[5], sT1, t[5]))
            e(valu("v_add_u32", vG, t[4], t[5]))
            e(salu("s_lshl_b32", sS2, sT2, 5))
            e(smov(SWH[2], 512 * 3584)); e(smov(SWH[3], 0x20000))
        else:
            e(valu("v_mul_u32_u24", t[4], 3584, t[3])); e(valu("v_add_u32", vG, t[4], t[2]))
            e(valu("v_xor_b32", t[5], 32, t[2])); e(valu("v_add_u32", vU, t[4], t[5]))
            e(salu("s_mul_i32", sT0, sT0, 3584, scc_w=False))
            e(salu("s_lshl_b32", sS2, sT2, 5)); e(salu("s_add_u32", sS2, sS2, sT0))
        e(salu("s_mul_i32", sT0, sROT, 128 * 3584, scc_w=False)); e(salu("s_add_u32", sS2, sS2, sT0))
        e(valu("v_and_b32", vP4, 3, lane)); e(valu("v_lshlrev_b32", vP4, 2, vP4))
        e(valu("v_lshl_add_u32", vB2, t[0], 10, t[2]))
        if C.warm_all:
            ww = self.ww
            e(valu("v_min_u32", ww[0], 13, lane)); e(valu("v_lshlrev_b32", ww[0], 7, ww[0])); e(valu("v_lshlrev_b32", ww[1], 5, vP4))
            e(valu("v_and_b32", ww[2], 15 if typ == "A" else 7, lane)); e(valu("v_mul_u32_u24", ww[2], 3584, ww[2]))
        e(valu("v_lshlrev_b32", t[0], 7, r2))
        e(valu("v_and_b32", t[1], 3, lane)); e(valu("v_lshlrev_b32", t[1], 3, t[1])); e(valu("v_add_u32", t[0], t[0], t[1]))
        e(valu("v_and_b32", t[2], 2, r2))
        e(valu("v_or_b32", t[3], t[2], ub)); e(valu("v_lshlrev_b32", t[3], 5, t[3]))
        e(valu("v_lshlrev_b32", t[4], 16, hh)); e(valu("v_add_u32", t[4], t[4], t[0]))
        if typ == "A":
            for j in range(2):
                e(valu("v_xor_b32", t[6], 64 * j, t[3])); e(valu("v_add_u32", vTR[4 + j], t[6], t[4]))
            e(valu("v_lshlrev_b32", t[6], 3, hh)); e(valu("v_add_u32", t[6], t[6], r2)); e(valu("v_lshlrev_b32", t[6], 6, t[6]))
            e(valu("v_lshlrev_b32", t[7], 16, ub)); e(valu("v_add3_u32", t[6], t[6], t[7], t[1]))
            e(valu("v_lshlrev_b32", t[7], 5, ub)); e(valu("v_add_u32", vTR[0], t[6], t[7]))
            e(valu("v_xor_b32", t[7], 32, t[7])); e(valu("v_add_u32", vTR[1], t[6], t[7]))
        else:
            e(valu("v_lshlrev_b32", t[5], 10, ub)); e(valu("v_add_u32", t[5], t[5], t[4]))
            for tt in range(4):
                e(valu("v_xor_b32", t[6], 32 * tt, t[3])); e(valu("v_add_u32", vTR[tt], t[6], t[5]))
        def park(reg, s0_, s1_):
            names = [str(x) for x in self.parked]
            if str(reg) in names: e(valu("v_add_u32", t[7], s0_, s1_)); e(accw(a(aPARK + names.index(str(reg))), t[7]))
            else: e(valu("v_add_u32", reg, s0_, s1_))
        e(valu("v_lshlrev_b32", t[4], 9, hh)); e(valu("v_add_u32", t[4], t[4], t[0]))
        e(salu("s_lshl_b32", sT0, sKH, 6)); e(valu("v_xor_b32", t[6], sT0, t[3]))
        e(valu("v_add_u32", t[5], t[6], t[4])); e(valu("v_xor_b32", t[6], 64, t[5]))
        e(salu("s_lshl_b32", sT0, sKH, 16)); e(salu("s_lshl_b32", sT1, sKH, 11)); e(salu("s_add_u32", sT1, sT1, TB))
        for j in range(2):
            park(self.tr2[j], sT0, t[5 + j]); park(self.tr2t[j], sT1, t[5 + j])
        if typ == "A":
            e(valu("v_lshlrev_b32", t[4], 16, ub)); e(valu("v_lshlrev_b32", t[5], 15, hh)); e(valu("v_add3_u32", t[4], t[4], t[5], t[0]))
            e(valu("v_xor_b32", t[6], sW, t[2])); e(valu("v_lshlrev_b32", t[6], 5, t[6])); e(valu("v_add_u32", vW16, t[4], t[6]))
            e(salu("s_mul_i32", sT0, sW, 6144, scc_w=False)); e(salu("s_add_u32", sT0, sT0, TB)); e(valu("v_add_u32", vEX, sT0, vL16))
            e(valu("v_lshlrev_b32", t[4], 5, ub)); e(valu("v_add_u32", t[4], t[4], li)); e(valu("v_lshlrev_b32", t[4], 4, t[4]))
            e(valu("v_lshlrev_b32", t[5], 3, hh)); e(smov(sT0, TB)); e(valu("v_add3_u32", vHW, t[4], t[5], sT0))
            q = t[0]; bb = v(t[2].lo, 2)
            e(valu("v_and_b32", q, 31, lane)); e(valu("v_add_u32", t[1], 18, q))
            e(valu("v_mov_b32", t[4], 0x5555)); e(valu("v_mov_b32", t[5], 0))
            e(valu("v_lshlrev_b64", bb, t[1], v(t[4].lo, 2)))
            e(salu("s_or_b32", sT1, sRB, sW)); e(salu("s_cselect_b32", sT1, -1, 0, scc_w=False, scc_r=True))
            e(valu("v_and_b32", bb[0], sT1, bb[0]))
            e(valu("v_lshlrev_b32", t[1], 2, hh))
            e(valu("v_lshrrev_b32", bb[0], t[1], bb[0])); e(valu("v_lshrrev_b32", bb[1], t[1], bb[1]))
            e(valu("v_not_b32", bb[0], bb[0])); e(valu("v_not_b32", bb[1], bb[1]))
            if C.mask_early:
                e(smov(sT0, NEG))
                for r in range(24):
                    rr = r if r < 16 else r - 8
                    tmp = t[6 + (r & 1)]
                    e(valu("v_bfe_i32", tmp, bb[1] if r < 16 else bb[0], 8 * (rr >> 2) + (rr & 3), 1))
                    e(valu("v_and_b32", tmp, sT0, tmp)); e(accw(aMASK[r], tmp))
            else: e(accw(a(196), bb[0])); e(accw(a(197), bb[1]))
            e(valu("v_and_b32", t[2], 1, q)); e(valu("v_lshlrev_b32", t[2], 4, t[2]))
            e(valu("v_mov_b32", t[3], 0xffff)); e(valu("v_lshlrev_b32", vPM, t[2], t[3]))
            e(valu("v_bfe_i32", t[2], q, 4, 1)); e(valu("v_and_b32", vMHC, t[2], vPM)); e(valu("v_xor_b32", vMHP, vMHC, vPM))
        return o

    def scalars(self, typ):
        o = []; e = o.append
        e(salu("s_and_b32", sRT, sJ, 3)); e(salu("s_lshr_b32", sCT, sJ, 2))
        if C.ctrot: e(salu("s_add_u32", sCT, sCT, C.ctrot)); e(salu("s_and_b32", sCT, sCT, 7))
        e(salu("s_lshl_b32", sCT, sCT, 7))
        e(salu("s_lshl_b32", sT0, sXCD, 3)); e(salu("s_lshl_b32", sT1, sRT, 1)); e(salu("s_add_u32", sT0, sT0, sT1))
        e(salu("s_and_b32", sT1, sW, 1)); e(salu("s_add_u32", sT0, sT0, sT1))
        e(salu("s_lshl_b32", sFLR, sT0, 1)); e(salu("s_add_u32", sFLR, sFLR, sKH))
        e(salu("s_mul_i32", sFLR, sFLR, C.flstride, scc_w=False)); e(salu("s_add_u32", sFLR, sFLR, WS_FLAG))
        e(salu("s_mul_i32", sTAG, sT0, 144 * FS, scc_w=False))
        e(salu("s_lshl_b32", sOut, sT0, 15)); e(salu("s_and_b32", sOut, sOut, 0xffff7fff)); e(salu("s_add_u32", sOut, sOut, sCT))
        e(salu("s_lshr_b32", sT0, sM0B, 1)); e(salu("s_add_u32", sOut, sOut, sT0))
        e(salu("s_lshl_b32", sT1, sT1, 13)); e(salu("s_add_u32", sT1, sT1, sCT))
        for c_ in range(3):
            e(salu("s_mul_i32", sT0, sKH, SHIFT[c_] * FS, scc_w=False)); e(salu("s_add_u32", sA2c[c_], sTAG, sT0))
            e(salu("s_mul_i32", sT0, sKH, SHIFT[c_] * 16384, scc_w=False)); e(salu("s_add_u32", sB2c[c_], sT0, sT1))
        e(salu("s_lshl_b32", sM0T, sW, 10)); e(salu("s_add_u32", sM0T, sM0T, TB))
        e(salu("s_lshl_b32", sT0, sRB, 2)); e(salu("s_add_u32", sT0, sT0, sW))
        e(salu("s_mul_i32", sT1, sT0, 144, scc_w=False))
        e(salu("s_add_u32", sSt2, sT1, sT2)); e(salu("s_mul_i32", sSt2, sSt2, FS, scc_w=False))
        if typ == "A":
            e(salu("s_mul_i32", sStF, sT2, FS, scc_w=False)); e(salu("s_add_u32", sStF, sStF, sSt2)); e(salu("s_add_u32", sStF, sStF, 112 * FS))
        else:
            e(salu("s_sub_u32", sStF, sSt2, 8 * FS))
        if C.skip3:
            e(valu("v_add_u32", vA2O, 640, vL16)); e(valu("v_lshrrev_b32", vA2O, 10, vA2O)); e(valu("v_lshl_add_u32", vA2O, vA2O, 7, vL16))
        else: e(valu("v_mov_b32", vA2O, vL16))
        e(salu("s_lshl_b32", sT0, sT0, 1)); e(salu("s_lshr_b32", sT1, sIDX, 2)); e(salu("s_add_u32", sT0, sT0, sT1))
        e(salu("s_mul_i32", sT0, sT0, C.flstride, scc_w=False))
        e(salu("s_and_b32", sT1, sIDX, 3)); e(salu("s_lshl_b32", sT1, sT1, 2))
        e(salu("s_add_u32", sT0, sT0, sT1)); e(salu("s_add_u32", sFLW, sT0, WS_FLAG))
        e(smov(SOUT[2], 0x200000)); e(smov(SOUT[3], 0x20000))
        if C.rot3:
            e(salu("s_lshr_b32", sT0, sB2c0, 4)); e(salu("s_sub_u32", sA2c0, sA2c0, sT0))
            e(salu("s_lshr_b32", sT0, sB2c2, 4)); e(salu("s_sub_u32", sA2c2, sA2c2, sT0))
            for g in (3, 2, 1, 0):
                e(salu("s_add_u32", sT0, sRT, g)); e(salu("s_and_b32", sT0, sT0, 3)); e(salu("s_lshl_b32", sT0, sT0, 16))
                e(salu("s_add_u32", sG1[g], sB2c2, sT0))
                e(salu("s_mul_i32", sT0, sT0, 3, scc_w=False)); e(salu("s_add_u32", sG3[g], sB2c0, sT0))
        return o

    def warm_ops(self, isA):
        ww = self.ww; nr = 16 if isA else 8
        o = [salu("s_and_b32", sT5, sW, 1 if isA else 3), salu("s_mul_i32", sT5, sT5, nr, scc_w=False),
             salu("s_lshl_b32", sXk, sRB, 5), salu("s_add_u32", sT5, sT5, sXk), salu("s_mul_i32", sT5, sT5, 3584, scc_w=False),
             salu("s_lshl_b32", sXk, sT2, 5), salu("s_add_u32", sT5, sT5, sXk)]
        o += [self.touch(ww[2], SWH, sT5)] if isA else [self.touch(ww[2], SWG_, sT5), self.touch(ww[2], SWU, sT5, 1024)]
        fl = [self.touch(ww[0], SWS, sFLR, fl="sc1")]
        if C.warm_byB:
            if isA: return [[], fl, o]
            o1 = [salu("s_lshr_b32", sXk, sWG, 7), salu("s_lshl_b32", sXk, sXk, 6), salu("s_and_b32", sT5, sWG, 63), salu("s_add_u32", sXk, sXk, sT5),
                  salu("s_lshl_b32", sXk, sXk, 2), salu("s_add_u32", sXk, sXk, sW), salu("s_mul_i32", sT5, sXk, 28 * 128, scc_w=False),
                  self.touch(ww[0], SWD, sT5), self.touch(ww[0], SWD, sT5, 14 * 128)]
            o2 = [salu("s_lshl_b32", sT5, sXk, 10), self.touch(ww[1], SWO, sT5), self.touch(ww[1], SWO, sT5, 512)]
            return [o1, o2 + fl, o]
        if not C.warm_byA:
            o1 = [salu("s_lshl_b32", sXk, sWG, 2), salu("s_add_u32", sXk, sXk, sW), salu("s_mul_i32", sT5, sXk, 14 * 128, scc_w=False),
                  self.touch(ww[0], SWD, sT5)]
            o2 = [salu("s_lshl_b32", sT5, sXk, 9), self.touch(ww[1], SWO, sT5)]
            return [[o1, o2 + fl, o], [o1 + o2 + fl, o, []], [o + o1, o2 + fl, []], [o1 + o2 + fl + o, [], []]][C.warm_mode]
        if not isA: return [[], fl + o]
        o1 = [salu("s_lshr_b32", sXk, sWG, 7), salu("s_lshl_b32", sXk, sXk, 6), salu("s_and_b32", sT5, sWG, 63), salu("s_add_u32", sXk, sXk, sT5),
              salu("s_lshl_b32", sXk, sXk, 2), salu("s_add_u32", sXk, sXk, sW), salu("s_mul_i32", sT5, sXk, 28 * 128, scc_w=False),
              self.touch(ww[0], SWD, sT5), self.touch(ww[0], SWD, sT5, 14 * 128)]
        o2 = [salu("s_lshl_b32", sT5, sXk, 10), self.touch(ww[1], SWO, sT5), self.touch(ww[1], SWO, sT5, 512)]
        return [o1, o2 + fl + o]

    def b2_soff(self, n, dst):
        ks, cls, st = step_info(n)
        if cls == 1 or not C.rot3: return salu("s_add_u32", dst, sB2c[cls], (ks - 112 if cls == 2 else ks) * 16384)
        if cls == 2: g = (ks - 112) >> 2; return salu("s_add_u32", dst, sG1[g], (ks - 112 - 4 * g) * 16384)
        g = (ks - 16) // 12; return salu("s_add_u32", dst, sG3[g], (ks - 12 * g) * 16384)

    def code_touch(self):
        E = self.E
        if not C.touch_code: return
        t = v(201)
        E.line(f"s_getpc_b64 {sPC}")
        pcl = self.lab("pc"); E.label(pcl)
        E.emit(salu("s_and_b32", sT0, sJ, 1)); E.emit(salu("s_lshl_b32", sT0, sT0, 15))
        E.emit(valu("v_lshlrev_b32", t, 7, v(0))); E.emit(valu("v_add_u32", t, sT0, t))
        E.line(f"s_mov_b32 {sT0}, L_code_end-{pcl}-4")
        E.emit(valu("v_min_u32", t, sT0, t))
        E.emit(I(f"global_load_dword {aDUM0}, {t}, {sPC}", "vml", t.ids(), ()))

    def finish_stats(self, sm, sq, rinv, nb, t0, t1):
        e = self.E.emit
        e(valu("v_mul_f32", sm, sC512, sm))
        e(valu("v_mul_f32", t0, sm, sm))
        e(I(f"v_fma_f32 {sq}, {sq}, {sC512}, -{t0}", "valu", sq.ids() | t0.ids() | sC512.ids(), sq.ids()))
        e(valu("v_max_f32", sq, 0, sq))
        e(valu("v_cvt_pk_bf16_f32", t0, sm, sq))
        e(valu("v_and_b32", t1, sHI, t0))
        e(valu("v_add_f32", t1, 0x3727c5ac, t1))
        e(valu("v_cvt_pk_bf16_f32", t1, t1, t1)); e(valu("v_and_b32", t1, sHI, t1))
        e(valu("v_sqrt_f32", t1, t1))
        e(valu("v_cvt_pk_bf16_f32", t1, t1, t1)); e(valu("v_and_b32", t1, sHI, t1))
        e(valu("v_rcp_f32", rinv, t1))
        e(valu("v_lshlrev_b32", t0, 16, t0))
        e(I(f"v_mul_f32 {nb}, -{t0}, {rinv}", "valu", t0.ids() | rinv.ids(), nb.ids()))

    def norm_ops(self, reg, rinv, nb, k0=0):
        ops = []
        for d in range(4):
            lo = NT[(2 * (k0 + d)) % 8]; hi = NT[(2 * (k0 + d) + 1) % 8]; x = reg[d]
            ops += [valu("v_lshlrev_b32", lo, 16, x), valu("v_and_b32", hi, sHI, x),
                    valu("v_fma_f32", lo, lo, rinv, nb), valu("v_fma_f32", hi, hi, rinv, nb),
                    valu("v_cvt_pk_bf16_f32", x, lo, hi)]
        return ops

    def dots(self, reg, acc):
        ops = []
        for d in range(reg.n):
            ops.append(valu("v_dot2_f32_bf16", acc[d & 1], reg[d], sONE, acc[d & 1]))
            ops.append(valu("v_dot2_f32_bf16", acc[2 + (d & 1)], reg[d], reg[d], acc[2 + (d & 1)]))
        return ops

    def wrap(self, reg, q, span):
        return glue([scmp("s_cmp_eq_u32", sROT, 4 - q), salu("s_cselect_b32", sS2b, span, 0, scc_w=False, scc_r=True),
                     salu("s_sub_u32", reg, reg, sS2b)])

    def chunks(self, obj):
        k, j = obj
        if self.typ == "A":
            if k == "s1": return list(range(3 * (j % 7), 3 * (j % 7) + 3))
            return [6 + 2 * j, 7 + 2 * j]
        jj = j if k == "s1" else 16 + j
        return list(range(4 * (jj % 6), 4 * (jj % 6) + 4))

    def slab_dma(self, obj):
        L = self.L; k, j = obj; ch = self.chunks(obj); fl = C.w_fl
        def f(E): L.alloc(obj, ch)
        ops = [f, salu("s_add_u32", "m0", sM0B, 1024 * ch[0])]
        if k == "s1":
            st = 3072 if self.typ == "A" else 3584
            if self.typ == "A": ops += [dma(vH, SQKV, sS1, 1024 * u, obj, fl) for u in range(3)]
            else: ops += [dma(vG, SWG_, sS1, 0, obj, fl), dma(vU, SWU, sS1, 1024, obj, fl), dma(vG, SWG2, sS1, 2048, obj, fl), dma(vU, SWU2, sS1, 3072, obj, fl)]
            if j < 15: ops.append(salu("s_add_u32", sS1, sS1, 32 * st))
            if j % 4 == 3 and j < 15 and C.rot: ops.append(self.wrap(sS1, (j + 1) // 4, 512 * st))
        else:
            if self.typ == "A":
                ops += [salu("s_add_u32", sS2b, sS2, 16 * 3584 - 1024), dma(vG, SWH, sS2, 0, obj, fl), dma(vG, SWH, sS2b, 1024, obj, fl)]
            else:
                ops += [salu("s_add_u32", sS2b, sS2, 16 * 3584 - 2048), dma(vG, SWG_, sS2, 0, obj, fl), dma(vU, SWU, sS2, 1024, obj, fl),
                        dma(vG, SWG_, sS2b, 2048, obj, fl), dma(vU, SWU, sS2b, 3072, obj, fl)]
            if j < 7: ops.append(salu("s_add_u32", sS2, sS2, 64 * 3584))
            if j % 2 == 1 and j < 7 and C.rot: ops.append(self.wrap(sS2, (j + 1) // 2, 512 * 3584))
        return ops

    def b2_chunk(self, n):
        R_ = lambda lo, hi: list(range(lo, hi))
        if self.typ == "A":
            tab = R_(22, 32) + R_(22, 32) + R_(0, 12) + R_(32, 40) + R_(12, 22) + R_(22, 32) + R_(0, 12)
        else:
            tab = R_(24, 40) + R_(24, 40) + R_(0, 24) + R_(24, 32) + R_(0, 8)
        return tab[n]

    def b2_dma(self, n):
        L = self.L
        ks, cls, _ = step_info(n)
        ch = self.b2_chunk(n)
        def f(E): L.alloc(("b2", n), [ch])
        return [f, salu("s_add_u32", "m0", sM0B, 1024 * ch) if ch < 32 else salu("s_add_u32", "m0", sM0T, 4096 * (ch - 32)),
                self.b2_soff(n, sB2s),
                dma(vB2, SWO if cls == 2 else SWD, sB2s, 0, ("b2", n), C.b2_fl)]

    def bar(self, cover, m_done, lds_all=False, lds_tags=()):
        L = self.L
        def f(E):
            E.wait_tags(lds=list(lds_tags) + list(cover), vm=cover)
            if lds_all: E.wait_all_lds()
            if not (C.dbg_bar and cover and cover[0][0] == "b2"): E.barrier()
            L.visible |= set(cover); L.bar_m = m_done
        return f

    def acc2(self, t): return ACC2(t) if self.typ == "A" else ACC1(t)

    def acc1(self, t): return ACC1(t) if t < 6 else a(112 + 16 * (t - 6), 16)

    def seq(self, typ):
        out = []
        order = [2, 3, 4, 5, 0, 1] if typ == "A" else list(range(8))
        k1 = self.k1
        s1 = [(ks, t) for ks in range(k1) for t in order] + [(ks, t) for t in order for ks in range(k1, 32)]
        for ks, t in s1:
            obj = ("s1", ks // 2); base = (ks & 1) * 32768 + self.chunks(obj)[0] * 1024
            if True:
                if typ == "A":
                    out.append(dict(acc=ACC1(t), x=X(ks), sw=(t >= 4), obj=obj, addr=vTR[4 + (t & 1)],
                                    imm=base + (t >> 1) * 1024, st=512, first=(ks == 0)))
                else:
                    out.append(dict(acc=self.acc1(t), x=X(ks), sw=False, obj=obj, addr=vTR[t & 3], imm=base + (t >> 2) * 2048, st=512, first=(ks == 0)))
        nt = self.nt2
        k0 = self.k0
        s2 = [(ks, t) for ks in range(k0) for t in range(nt)] + [(ks, t) for t in range(nt) for ks in range(k0, 32)]
        for ks, t in s2:
            obj = ("s2", ks // 4); k = ks & 3
            out.append(dict(acc=self.acc2(t), x=X(ks), sw=False, obj=obj, addr=vTR[t],
                            imm=(k >> 1) * 32768 + self.chunks(obj)[0] * 1024 + (k & 1) * (1024 if typ == "A" else 2048),
                            st=256 if typ == "A" else 512, first=(ks == 0)))
        nl = 72 - C.lastk
        p2 = [(n, j) for n in range(nl) for j in ((1, 0) if n == 55 else (0, 1))] + [(n, j) for j in (1, 0) for n in range(nl, 72)]
        for n, j in p2:
            iso = step_info(n)[1] == 2
            if True:
                ch = self.b2_chunk(n)
                out.append(dict(acc=(ACCS if iso else ACCD)[j], x=n, sw=False, obj=("b2", n),
                                addr=self.tr2[j] if ch < 32 else self.tr2t[j], j=j, imm=ch * 1024 if ch < 32 else (ch - 32) * 4096,
                                st=32768 if ch < 32 else 1024, first=(n in (0, 40))))
        for m, o in enumerate(out): self.L.last_use[o["obj"]] = m
        return out

    def wreads(self, m):
        o = self.SEQ[m]; L = self.L
        if o["obj"][0] == "b2" and o["obj"][1] < self.nF: return []
        if C.abl_tr and m >= 24 and (m % C.abl_tr) and (o["obj"][0] != "b2" or C.abl_tr2): return []
        def f(E): assert o["obj"] in L.visible, ("read of invisible", m, o["obj"])
        return [f, ds_tr(WF(m).sub(0, 2), o["addr"], o["imm"]), ds_tr(WF(m).sub(2, 2), o["addr"], o["imm"] + o["st"])]

    def main(self, m):
        o = self.SEQ[m]
        if isinstance(o["x"], int):
            def mk(peek):
                if peek and o["x"] not in self.a2slot: return None
                w = self.frag[(o["x"], o["j"])]["r"] if o["x"] < self.nF else WF(m)
                return mfma(o["acc"], w, self.a2slot[o["x"]]["r"], 0 if o["first"] else o["acc"])
            mn = dict(pre=[], m=mk, fix=[])
            if o["x"] < self.nF: mn["fix"].append(lambda E: self.pool.give(E, self.frag[(o["x"], o["j"])]))
            if m == self.L.last_use[o["obj"]]: mn["fix"].append(lambda E: self.pool.give(E, self.a2slot[o["x"]]))
        else:
            A_, B_ = (o["x"], WF(m)) if o["sw"] else (WF(m), o["x"])
            mn = dict(pre=[], m=mfma(o["acc"], A_, B_, 0 if o["first"] else o["acc"]), fix=[])
        if m + C.D < len(self.SEQ): mn["fix"] += self.wreads(m + C.D)
        return mn

    def spin_check_tag(self):
        def f(E):
            ok = self.lab("tagok"); sp = self.lab("tagspin")
            E.emit(rfl(sTAG, vTAG))
            E.emit(scmp("s_cmp_eq_u32", sTAG, 0))
            E.line(f"s_cbranch_scc1 {sp}")
            E.label(ok)
            self.cold += [f"{sp}:", f"    s_mov_b32 {sSPIN}, 0", f"{sp}_l:",
                          f"    buffer_load_dword {vTAG}, off, {SDBG}, 0 sc1", f"    s_add_u32 {sSPIN}, {sSPIN}, 1",
                          "    s_waitcnt vmcnt(0)", f"    v_readfirstlane_b32 {sTAG}, {vTAG}",
                          f"    s_cmp_ge_u32 {sSPIN}, {C.spin_max}", f"    s_cbranch_scc1 {ok}",
                          f"    s_cmp_eq_u32 {sTAG}, 0", f"    s_cbranch_scc1 {sp}_l", f"    s_branch {ok}"]
        return f

    def poll_load(self, stage):
        return vload(self.vpl[stage], vP4, SWS, sFLR, FLO[stage], fl="sc1")

    def poll2_load(self, stage):
        i = vload(vSP[0], vP4, SWS, sFLR, FLO[stage], tag=("p2", stage), fl="sc1"); i.w = set()
        return i

    def gate(self, stage):
        def f(E):
            ok = self.lab("gateok"); sp = self.lab("gatespin")
            self.stamp(f"g{stage}a")
            E.emit(vcmp("v_cmp_ne_u32", "vcc", sTAG, self.vpl[stage]))
            E.line(f"s_cbranch_vccnz {sp}")
            E.label(ok)
            ld = lambda r: f"    buffer_load_dword {r}, {vP4}, {SWS}, {sFLR} offen offset:{FLO[stage]} sc1"
            regs = [self.vpl[stage], vSP[0], vSP[1]][:C.npoll]; k = len(regs)
            k2 = [n for n, x in enumerate(E.vq) if x[2] == ("p2", stage)]
            second = []
            if C.poll2 and stage in self.has2:
                n2 = sum(1 for x in E.vq[k2[0] + 1:] if x[3]) if k2 else 62
                second = [f"    s_waitcnt vmcnt({min(n2, 62)})", f"    v_cmp_ne_u32 vcc, {sTAG}, {vSP[0]}", f"    s_cbranch_vccz {ok}"]
            self.cold += [f"{sp}:"] + second + [f"    s_mov_b32 {sSPIN}, 0"] + [x for r in regs[:-1] for x in (ld(r), "    s_nop 15", "    s_nop 15")] + [f"{sp}_l:"]
            for q_ in range(k):
                self.cold += [ld(regs[(q_ + k - 1) % k]), f"    s_waitcnt vmcnt({k - 1})", f"    v_cmp_ne_u32 vcc, {sTAG}, {regs[q_]}", f"    s_cbranch_vccz {ok}"]
            self.cold += [f"    s_add_u32 {sSPIN}, {sSPIN}, 1", f"    s_cmp_ge_u32 {sSPIN}, {C.spin_max}", f"    s_cbranch_scc0 {sp}_l", f"    s_branch {ok}"]
            self.stamp(f"g{stage}b")
        return f

    def flag_store(self, stage, tags):
        def f(E):
            self.stamp(f"f{stage}a")
            E.wait_tags(vm=tags)
            self.stamp(f"f{stage}b")
            E.emit(vstore(vTAG, None, SWS, sFLW, FLO[stage], fl="sc1"))
        return f

    def a2_load(self, n):
        ks, cls, _ = step_info(n)
        o = []
        if self.a2base is None or self.a2base[0] != cls or not (0 <= (ks - self.a2base[1]) * FS < 4096):
            self.a2base = (cls, ks)
            if cls == 1 or not C.rot3: o.append(salu("s_add_u32", sA2s, sA2c[cls], ks * FS))
            else:
                assert FS == 1024
                g = (ks - 112) >> 2 if cls == 2 else (ks - 16) // 12
                o += [salu("s_lshr_b32", sA2s, (sG1 if cls == 2 else sG3)[g], 4), salu("s_add_u32", sA2s, sA2s, sA2c[cls]),
                      salu("s_add_u32", sA2s, sA2s, (ks - 4 * g if cls == 2 else ks - 12 * g) * 1024)]
        imm = (ks - self.a2base[1]) * FS
        kind = "AE" if n < 40 else "A"
        def f(E):
            x = self.a2slot[n] = self.pool.take(E, kind)
            if not (C.dbg_a2 and n >= C.dbg_a2): E.emit(vload(x["r"], vA2O, SWS, sA2s, imm, fl=C.a2_fl))
        f.vm = True; f.ready = lambda E: self.pool.find(E, kind) is not None
        return o + [f]

    def pre_read(self, n):
        out = []
        for m in (self.M3 + 2 * n, self.M3 + 2 * n + 1):
            o = self.SEQ[m]
            def f(E, o=o):
                assert o["obj"] in self.L.visible
                x = self.frag[(n, o["j"])] = self.pool.take(E, "R")
                E.emit(ds_tr(x["r"].sub(0, 2), o["addr"], o["imm"], tag=("fr", n)))
                E.emit(ds_tr(x["r"].sub(2, 2), o["addr"], o["imm"] + o["st"], tag=("fr", n)))
            f.slots = 2
            out.append(f)
        return out

    def raw_load(self, n):
        ks, cls, _ = step_info(n)
        def f(E):
            x = self.rawslot[n] = self.pool.take(E, "R")
            E.emit(vload(x["r"], vB2, SWO if cls == 2 else SWD, sXo, 0, fl=C.b2_fl))
        f.vm = True; f.ready = lambda E: self.pool.find(E, "R") is not None
        return [self.b2_soff(n, sXo), f]

    def a2_store(self, reg, sbase, t, tag):
        st = vstore(reg, vA2O, SWS, sStH if t * FS >= 4096 else sbase, 0 if t * FS >= 4096 else t * FS, tag, C.st_fl)
        if t * FS >= 4096: st.pre = salu("s_add_u32", sStH, sbase, t * FS)
        return st

    def h_epilogue(self, T, sbase, imm, tag):
        ops = [valu("v_mul_f32", T[r], T[r], T[r + 8]) for r in range(8)]
        ops += [valu("v_cvt_pk_bf16_f32", T[r], T[2 * r], T[2 * r + 1]) for r in range(4)]
        ops.append(self.a2_store(T.sub(0, 4), sbase, imm, tag))
        return ops

    def body(self, typ):
        E = self.E; e = E.emit
        self.L = L = LDSMap()
        E.m0_owner = None; E.fifo = None
        self.typ = typ
        isA = typ == "A"
        nt1, nt2 = (6, 2) if isA else (8, 4)
        self.nt2 = nt2; self.k0 = k0 = 24 if isA else 20
        self.k1 = k1 = 28 if isA else C.k1B
        M2 = self.M2 = 32 * nt1; M3 = self.M3 = M2 + 32 * nt2
        self.nF = 10 if isA else 16
        self.tr2 = [vTR[2], vTR[3]] if isA else [vEX, vHW]
        self.tr2t = vTR2T if isA else [vPM, vMHC]
        self.parked = self.tr2 + self.tr2t if isA else []
        self.frag = {}
        self.SEQ = self.seq(typ)
        self.a2base = None
        self.cold = []; self.has2 = set()
        self.lane = v(200); self.vx = [v(204 + g) for g in range(4)]; self.hs = [v(196), v(197)]
        self.xa = xa = [v(216 + q) for q in range(4)]; self.acc = acc = [v(220 + q) for q in range(4)]
        self.ha = ha = [v(144 + i) for i in range(5)]; self.hacc = hacc = [v(149 + i) for i in range(4)]
        self.ww = [vU, vTR[2], vTR[3]] if isA else [vH, vW16, vHX]
        self.vpl = vPL + [self.ww[0]]
        self.stamp("t0")
        if C.stamps: E.line("s_memrealtime s[0:1]")
        first = self.setup_first(typ)
        rest = self.consts(typ)
        E.emits(first)
        k = max(0, C.npre - len(first))
        while k < len(rest) and SCC in rest[k].r: k += 1
        E.emits(rest[:k]); rest = rest[k:]
        E.line("s_waitcnt lgkmcnt(0)")
        self.stamp("karg")
        def inplace(d, size, other, shift=0):
            o = []
            if other is SWS and C.wsoff:
                return [glue([salu("s_add_u32", other[0], d[2], C.wsoff << 20), salu("s_addc_u32", other[1], d[3], 0, scc_r=True)]),
                        smov(d[2], size), smov(d[3], 0x20000)]
            if other is not None and shift: o += [salu("s_sub_u32", other[0], d[2], shift), salu("s_subb_u32", other[1], d[3], 0, scc_r=True)]
            elif other is not None: o += [smov(other[0], d[2]), smov(other[1], d[3])]
            return o + [smov(d[2], size), smov(d[3], 0x20000)]
        E.emits(inplace(SX, 0x200000, SQKV if isA or C.qkv_byB else None))
        if isA:
            for it in inplace(SDBG, 256, SWS): run_item(E, it)
        def xd(sl):
            o = [salu("s_add_u32", "m0", sM0B, 4096 * sl), salu("s_add_u32", sA2s, sXo, sXk)]
            o += [dma(self.vx[g], SX, sA2s, 1024 * g, tag=("x", sl), fl=C.x_fl) for g in range(4)]
            if sl < 7: o += [salu("s_add_u32", sXk, sXk, 128), salu("s_and_b32", sXk, sXk, 1023)]
            return o
        if isA:
            for ee in range(2):
                for g in range(2):
                    e(salu("s_add_u32", "m0", sS2b, TB + 2048 * ee + 1024 * g))
                    e(dma(self.hs[g], SX, sHo, 0, tag="halo", fl=C.x_fl))
                if ee == 0: e(salu("s_add_u32", sHo, sHo, 128))
            lskip = self.lab("noep")
            e(salu("s_or_b32", sSPIN, sWG, sW))
            E.line(f"s_cbranch_scc1 {lskip}")
            E.line(f"s_mov_b32 {sSPIN}, {WS_EPOCH}")
            E.line(f"buffer_load_dword {vPOLL}, off, {SWS}, {sSPIN} sc1")
            E.label(lskip)
        E.emits(xd(0)); E.emits(xd(1))
        nx = 2
        if isA:
            if C.touch_w0 and not C.qkv_byB: e(self.touch(vTW, SQKV, sT5))
            e(scmp("s_cmp_ge_u32", sW, 2))
            e(salu("s_cselect_b32", SWH[0], SWG_[2], SWG_[0], scc_w=False, scc_r=True))
            e(salu("s_cselect_b32", SWH[1], SWG_[3], SWG_[1], scc_w=False, scc_r=True))
        else:
            if C.touch_w0 and C.qkv_byB: e(self.touch(vMHP, SQKV, sXs))
            E.emits([salu("s_sub_u32", SWU2[0], SWG_[2], 2944), salu("s_subb_u32", SWU2[1], SWG_[3], 0, scc_r=True),
                     salu("s_sub_u32", SWG2[0], SWG_[0], 1920), salu("s_subb_u32", SWG2[1], SWG_[1], 0, scc_r=True)])
            E.emits(inplace(SWG_, 512 * 3584, SWU, 1024))
            if C.touch_w0: e(self.touch(vTW, SWG_, sT5)); e(self.touch(vTW, SWU, sT5, 1024))
            if C.x2early: E.emits(xd(2)); nx = 3
        self.stamp("issued")
        late_srd = ([] if isA else inplace(SDBG, 256, SWS)) + inplace(SWD, 1792 * 1024, SOUT) + inplace(SWO, 512 * 1024, None)
        E.emits(rest)
        if C.stamps: E.line("v_accvgpr_write_b32 a198, s0")
        self.stamp("rest")
        if C.pads:
            E.line("s_mov_b64 exec, 0")
            for w_ in (1, 2, 3):
                E.line(f"s_cmp_eq_u32 {sW}, {w_}"); E.line(f"s_cbranch_scc1 L_pad{typ}_{w_}")
            E.line(f"s_branch L_pad{typ}_0")
            E.label(f"L_back{typ}")
            E.line("s_mov_b64 exec, -1")
            E.out.append(f";PADS_FROM {typ}")
        self.stamp("pads")
        if nx == 2 and not isA: E.emits(xd(2)); nx = 3
        if C.scal_early:
            for it in late_srd + self.scalars(typ): run_item(E, it)
        if isA:
            hx = v(128, 16); pr = v(154, 2); tp = v(156, 2); pp = v(158, 8)
            E.wait_tags(vm=["halo"])
            self.epoch_publish()
            for ee in range(2):
                for b in range(2): e(ds_rd(hx.sub(4 * (2 * ee + b), 4), ha[b], 2048 * ee))
            E.emits(xd(2)); nx = 3
            E.emits(self.dots(hx, hacc))
            e(valu("v_add_f32", pr[0], hacc[0], hacc[1])); e(valu("v_add_f32", pr[1], hacc[2], hacc[3]))
            for sw in (swap16, swap32):
                e(valu("v_mov_b32", tp[0], pr[0])); e(valu("v_mov_b32", tp[1], pr[1]))
                e(sw(pr[0], tp[0])); e(sw(pr[1], tp[1]))
                e(valu("v_add_f32", pr[0], pr[0], tp[0])); e(valu("v_add_f32", pr[1], pr[1], tp[1]))
            e(ds_wr(ha[3], pr, 0, tag="hp"))
        def xdots(k):
            E.emits(self.dots(v(16 * k, 16), acc)); L.xread.add(k)
        for sl in range(9):
            early = sl >= C.dots_first
            if sl > 0 and early: xdots(sl - 1)
            if sl < 8:
                E.wait_tags(vm=[("x", sl)])
                self.stamp(f"x{sl}")
                for q in range(4): e(ds_rd(X(4 * sl + q), xa[q], 4096 * sl))
                if nx < 8: E.emits(xd(nx)); nx += 1
            if isA and sl == 0:
                E.wait_tags(lds=["hp"]); E.barrier()
                for w_ in range(4): e(ds_rd(pp.sub(2 * w_, 2), ha[2], 4096 * w_))
            if isA and sl == (1 if C.hn_at else 0):
                e(valu("v_add_f32", pr[0], pp[0], pp[2])); e(valu("v_add_f32", pr[1], pp[1], pp[3]))
                e(valu("v_add_f32", tp[0], pp[4], pp[6])); e(valu("v_add_f32", tp[1], pp[5], pp[7]))
                e(valu("v_add_f32", pr[0], pr[0], tp[0])); e(valu("v_add_f32", pr[1], pr[1], tp[1]))
                self.finish_stats(pr[0], pr[1], pp[0], pp[1], tp[0], tp[1])
            for f_ in (range(4) if (C.hn_at == 0 and sl == 0) else [sl - C.hn_at] if (C.hn_at and C.hn_at <= sl < C.hn_at + 4) else []):
                if not isA: break
                E.emits(self.norm_ops(hx.sub(4 * f_, 4), pp[0], pp[1]))
                e(ds_wr(ha[4], hx.sub(4 * f_, 4), 1024 * f_, tag="hxw"))
            if sl > 0 and not early: xdots(sl - 1)
            for j in {C.w0at: [0], C.w0at + 1: [1], 6: [2], 7: [3] if C.w3early or isA else []}.get(sl, []):
                for it in self.slab_dma(("s1", j)): run_item(E, it)
        self.stamp("xdone")
        npn = C.npre_normA if isA else C.npre_norm
        def bx():
            self.bar([("s1", 0), ("s1", 1)], -1, lds_tags=["hxw"])(E)
            self.stamp("bx")
            for m in range(C.D):
                for it in self.wreads(m): run_item(E, it)
        e(valu("v_add_f32", acc[0], acc[0], acc[1])); e(valu("v_add_f32", acc[2], acc[2], acc[3]))
        e(valu("v_mov_b32", acc[1], acc[0])); e(valu("v_mov_b32", acc[3], acc[2]))
        e(swap32(acc[0], acc[1])); e(swap32(acc[2], acc[3]))
        e(valu("v_add_f32", acc[0], acc[0], acc[1])); e(valu("v_add_f32", acc[2], acc[2], acc[3]))
        self.finish_stats(acc[0], acc[2], vRINV, vNB, acc[1], acc[3])
        for ks in range(npn - 1): E.emits(self.norm_ops(X(ks), vRINV, vNB))
        bx()
        E.emits(self.norm_ops(X(npn - 1), vRINV, vNB))
        self.stamp("s1"); self.stamp("b0")

        mains = [self.main(m) for m in range(len(self.SEQ))]
        E.gap = 0; E.fifo = Fifo(); E.fifo.p = E.pos; E.fifo.n = 4
        D = C.D
        qN = Q("norm"); qD = Q("dma"); qH = Q("halo"); qB = Q("b2"); qW = Q("raw", hard=False); qU = Q("dump", vm_age=0)
        qE = Q("epi"); qE2 = Q("epi2", hard=False, top=True); qR = Q("restore"); qFl = Q("flag", top=True)
        self.pool = pool = Pool(); self.a2slot = {}; self.rawslot = {}; self.mark = {}
        started = lambda q: (len(q.items) > 0 and q.empty())
        pool.add(a(200, 56), "AR")
        pool.add(a(192, 4), "A", lambda: started(qR))
        if isA:
            pool.add(a(80, 32), "AR")
            pool.add(a(112, 24), "AR", (lambda: self.mark.get("masks")) if C.mask_early else None)
            pool.add(a(160, 32), "A", lambda: self.mark.get("masks"))
            pool.add(a(48, 32), "A", lambda: started(qE2))
            pool.add(a(136, 24), "A", lambda: started(qE)); pool.add(v(128, 96), "A", lambda: started(qE))
            rawl = list(range(40, 72))
        else:
            pool.add(a(144, 16), "AR"); pool.add(a(160, 32), "A")
            pool.add(a(48, 64), "AR")
            pool.add(a(112, 32), "AR", lambda: started(qE)); pool.add(v(192, 32), "AR", lambda: started(qE))
            pool.add(v(128, 64), "A", lambda: started(qE2))
            for k in list(range(8)) + [12, 13, 14, 15]: pool.add(X(k), "E", lambda k=k: E.gap > M2 + 4 * k + 3)
            rawl = list(range(44, 72))
        rawit = {}
        if C.raw:
            for n in rawl[:C.nrawA if isA else C.nrawB]:
                rawit[n] = self.raw_load(n)
                qW.adds(rawit[n], earliest=C.raw0A if isA else C.raw0B, deadline=M3 + 16 * (n // 8) - C.D - 40)
        def place(n):
            def f(E):
                need = M3 + 16 * (n // 8) - C.D
                if n in self.rawslot:
                    ch = self.b2_chunk(n); x = self.rawslot[n]
                    qU.add(lambda E: L.alloc(("b2", n), [ch]), deadline=need - 3)
                    if not C.dbg_dump: qU.add(ds_wr(vWQ, x["r"], 1024 * ch, tag=("b2", n)), deadline=need - 3)
                    qU.add(lambda E: pool.give(E, x), deadline=need - 3)
                else:
                    for it in rawit.get(n, []): it.dead = True
                    b2_add(n, E.gap)
            return f
        qG = Q("frag")
        def b2_add(n, gap, need=None):
            need = need or M3 + 16 * (n // 8) - D
            qB.adds(self.b2_dma(n), earliest=gap, deadline=need - C.b2lead - 2 * (7 - n % 8), hard=False)
            qB.add(lambda E: None, earliest=gap, deadline=max(need - 10, gap + 2))
        def frag_plan(g, step_, groups):
            b0 = C.b2gA if isA else C.b2gB
            cover = []; tags = []; gap = step_ * g - D
            for k, pg in enumerate(groups):
                if g == b0 + k:
                    for n in pg: b2_add(n, gap + 4, gap + 2 * step_)
                if g == b0 + k + 2:
                    cover += [("b2", n) for n in pg]
                    for n in pg:
                        qG.adds(self.pre_read(n), earliest=gap, deadline=gap + step_ - 3); L.last_use[("b2", n)] = gap + step_ - 1
                if g == b0 + k + 3:
                    tags += [("fr", n) for n in pg]
                    for n in pg: b2_add(n + self.nF, gap)
            return cover, tags
        def barrier(gap, cover, name, **kw):
            mains[gap]["npre"] = 2
            mains[gap]["pre"] += [lambda E: self.stamp(name + "a"), self.bar(cover, gap - 1, **kw), lambda E: self.stamp(name)]
        for ks in range(npn, 32 if not C.abl_norm else npn + 1):
            qN.adds(self.norm_ops(X(ks), vRINV, vNB, ks * 4), earliest=max(0, nt1 * (ks - C.nahead) - 1),
                    deadline=nt1 * ks if ks < k1 else nt1 * k1 + ks - k1)
        for j in (range(4, 7) if isA else range(4 if C.w3early else 3, 5)): qD.adds(self.slab_dma(("s1", j)), earliest=0, deadline=17 if isA else 20)
        qK = Q("scal")
        qK.adds(late_srd if not C.scal_early else [], earliest=0, deadline=(24 if isA else 32) - D)
        sc_ = self.scalars(typ) if not C.scal_early else [smov(sT0, 0)]
        for q_, it in enumerate(sc_): qK.add(it, earliest=0, deadline=int(10 + C.scal_span * q_ / len(sc_)), hard=False)
        qK.add(lambda E: None, deadline=10 + C.scal_span + 8)
        L.last_use[("T",)] = M2 + 40 if isA else -1
        tagload = vload(vTAG, None, SDBG, 0, fl="sc1")
        warm = []
        if C.touch_b2:
            tb = self.ww[0]
            warm = [[valu("v_lshlrev_b32", tb, 6, vL16), valu("v_and_b32", tb, 0x7c00, tb), valu("v_add_u32", tb, sCT, tb),
                     salu("s_lshl_b32", sRT, sRT, 2), salu("s_add_u32", sRT, sRT, sW),
                     salu("s_lshl_b32", sT5, sRT, 14), self.touch(tb, SWD, sT5)],
                    [salu("s_lshr_b32", sT5, sRT, 1), salu("s_lshl_b32", sT5, sT5, 2), salu("s_add_u32", sT5, sT5, sRT),
                     salu("s_add_u32", sT5, sT5, 12), salu("s_lshl_b32", sT5, sT5, 15), self.touch(tb, SWD, sT5)],
                    [salu("s_lshl_b32", sT5, sRT, 15), self.touch(tb, SWO, sT5)]]
        def slab(jj): return ("s1", jj) if jj < 16 else ("s2", jj - 16)
        if isA:
            for g in range(1, 9):
                gap = 24 * g - D
                cv, tg = frag_plan(g, 24, [range(0, 5), range(5, 10)])
                barrier(gap, ([("s1", 2 * g), ("s1", 2 * g + 1)] if g < 8 else [("s2", j) for j in range(4)]) + cv, f"b{g}", lds_tags=tg)
                its = []
                for j in (2 * g + 4, 2 * g + 5):
                    if 7 <= j < 16: its += self.slab_dma(("s1", j))
                for j in {6: [0, 1, 2], 7: [3, 4, 5], 8: [6, 7]}.get(g, []): its += self.slab_dma(("s2", j))
                k_ = g - (C.warm_gA if isA else C.warm_gB)
                if k_ in (0, 1, 2) and C.warm_all:
                    qD.adds(its, earliest=gap, deadline=gap + 16); its = []
                    qK.adds(self.warm_ops(isA)[k_], earliest=gap + C.warm_off, deadline=gap + C.warm_off + 14)
                if C.b2g <= g < C.b2g + 3 and warm: its += warm[g - C.b2g]
                if g == 6: its.append(tagload)
                if g == C.warm_gA + 2: qK.adds([accr(self.tr2[n_], a(aPARK + n_)) for n_ in range(2)], earliest=gap + 12, deadline=gap + 40)
                qD.adds(its, earliest=gap, deadline=gap + (14 if g == 7 else 23))
            for j in range(16):
                g0 = max(0, 12 * j - D + 1)
                b = j & 1; ch = self.chunks(("s1", j))[0] * 1024
                its = [ds_rd(aXH[b], vHX, 1024 * j)]
                for u in range(2):
                    its += [ds_tr(aW16[b][u].sub(0, 2), vW16, ch + 1024 * (1 + u)), ds_tr(aW16[b][u].sub(2, 2), vW16, ch + 1024 * (1 + u) + 512)]
                qH.adds(its, earliest=g0, deadline=12 * j + 4)
                qH.add(mfma(aHACC[0], aW16[b][0], aXH[b], 0 if j == 0 else aHACC[0], "16x16x32"), earliest=g0, deadline=12 * j + 8)
                qH.add(mfma(aHACC[1], aXH[b], aW16[b][1], 0 if j == 0 else aHACC[1], "16x16x32"), earliest=12 * j + 7, deadline=12 * j + 10)
            gap = M2 + 32 - D
            barrier(M2 + C.exbar, [], "ex", lds_tags=["exw"])
            barrier(gap, [("s2", j) for j in range(4, 8)], "mid")
            for n in range(20, 32): b2_add(n, gap)
            first_use = {0: list(range(32, 46)), 1: list(range(46, 50))}
        else:
            for g in range(1, 12):
                gap = 32 * g - D - (8 if g == 11 else 0)
                cv, tg = frag_plan(g, 32, [range(0, 8), range(8, 16)])
                barrier(gap, [slab(jj) for jj in {10: (20, 21, 22), 11: (23,)}.get(g, (2 * g, 2 * g + 1))] + cv, f"b{g}", lds_tags=tg)
                its = []
                for jj in ({8: (19,), 9: ()} if k1 == 28 else {9: ()}).get(g, (2 * g + 3, 2 * g + 4)):
                    if jj < 24: its += self.slab_dma(slab(jj))
                if g == 9:
                    for q_, jj in enumerate((20, 21, 22) if k1 == 28 else (21, 22)):
                        qD.adds(self.slab_dma(slab(jj)), earliest=gap, deadline=gap + 4 * q_, hard=False)
                        qD.add(lambda E: None, earliest=gap, deadline=gap + 6 + 5 * q_)
                k_ = g - (C.warm_gA if isA else C.warm_gB)
                if k_ in (0, 1, 2) and C.warm_all:
                    qD.adds(its, earliest=gap, deadline=gap + 16); its = []
                    qK.adds(self.warm_ops(isA)[k_], earliest=gap + C.warm_off, deadline=gap + C.warm_off + 14)
                if C.b2g <= g < C.b2g + 3 and warm: its += warm[g - C.b2g]
                if g == 6: its.append(tagload)
                for n in {10: range(32, 36), 11: range(36, 44)}.get(g, []): b2_add(n, gap)
                qD.adds(its, earliest=gap, deadline=gap + {1: 28, 9: 22, 10: 7}.get(g, 18))
            first_use = {0: list(range(44, 48)), 1: list(range(48, 56))}
        def xfree(reg): return M2 + nt2 * ((reg.lo + reg.n - 1) // 4) + nt2 - 1
        qFl.add(self.spin_check_tag(), earliest=M2 - 8, deadline=M2 - 4)
        def after(q, stage, tags):
            def arm(E):
                f = self.flag_store(stage, tags); p0 = E.pos; g0_ = E.gap
                fd = C.flagd if stage in (0, 2) else (C.flag1 if stage == 1 else C.flagl)
                f.ready = lambda E: ((E.pos - p0) * 4 + (E.gap - g0_) * 8 >= fd or (E.gap - g0_) * 33 >= fd
                                     or not any(x[2] in tags for x in E.vq))
                qFl.add(f, earliest=E.gap)
            q.add(arm)
        if not isA:
            for t in range(8):
                T = ACC1(t if t < 6 else t - 2)
                its = [accr(T[r], self.acc1(t)[r]) for r in range(16)] if t >= 6 else []
                qE.adds(its + self.h_epilogue(T, sStF, t, "h1"), earliest=nt1 * k1 + (32 - k1) * (t + 1) - 1,
                        deadline=M2 - 1 + (t if k1 > 28 else 0) if t < 4 else nt1 * 28 + 4 * t + 8, hard=(t < 4))
            after(qE, 0, ["h1"])
        else:
            self.attention(qE, xfree)
            n0 = self.exw_check[1]; nn = len(qE.items)
            for k in range(n0, nn):
                it, ear, dl, hd = qE.items[k]
                qE.items[k] = (it, ear, int(M2 + 8 + (M3 + C.att_end - M2 - 8) * (k - n0) / (nn - n0)), False)
            after(qE, 3, ["o"])
        schedule(E, mains[:M2], [qN, qK, qD, qH, qG, qB, qW, qFl, qE], lambda g: (C.cap1A if isA else C.cap1B) if g < nt1 * k1 else C.cap1t,
                 0, flush=False, vm_gap=C.vm1)
        assert qN.empty() and qH.empty()
        self.stamp("s2")

        qL = Q("a2"); qF = Q("fin", vm_age=60); qP = Q("poll", top=True)
        g0 = M3 if isA else M3 + C.gate0B
        for n_, dst in enumerate(self.parked):
            if dst.lo < 128: qR.add(accr(dst, a(aPARK + n_)), earliest=xfree(dst), deadline=min(g0, M3 - D) - 2)
        qR.add(valu("v_add_u32", vWQ, sM0B, vL16), earliest=xfree(vWQ), deadline=min(g0, M3 - D) - 2)
        tail = M2 + k0 * nt2; tl = 32 - k0
        for t in range(nt2):
            its = ([accr(E2T[r], ACC2(t)[r]) for r in range(16)] if isA else []) + self.h_epilogue(E2T if isA else ACC1(t), sSt2, t, "h2" if t < 2 else "h3")
            qE2.adds(its, earliest=tail + tl * t + tl - 1, deadline=tail + tl * t + tl + 8)
            if t == 1: after(qE2, 1 if isA else 2, ["h2"])
            if t == 3: after(qE2, 4, ["h3"])
        mains[M3]["pre"].append(lambda E: self.stamp("p2"))
        def fifo_reset(E): E.fifo.n = min(E.fifo.level(E), C.fifo0); E.fifo.p = E.pos; E.fifo.g = E.gap; E.fifo.PERIOD = C.per3
        for gg in (M3 + 1, M3 + 14): mains[gg]["pre"].append(fifo_reset)
        for n_ in range(72): mains[M3 + 2 * n_]["fix"].insert(0, lambda E, n_=n_: self.stamp(f"n{n_}"))
        gates = {0: g0, 32: M3 + 2 * (32 - C.la1), 40: M3 + 2 * (40 - C.la2), 56: M3 + 2 * (56 - C.la3),
                 64: M3 + 2 * (64 - (C.la4A if isA else C.la4B))}
        def chk_free(q):
            def f(E): assert q.empty(), ("A2 slot still in use", q.name, E.gap)
            f.ready = lambda E: q.empty()
            return f
        cur = 0
        for n in range(72):
            if n in gates:
                cur = gates[n]; st = step_info(n)[2]; n0 = n
                qP.add(self.poll_load(st), earliest=cur - C.polld, deadline=cur - C.polld + 2)
                if C.poll2 and not (n == 0 and isA):
                    qP.add(self.poll2_load(st), earliest=cur - C.poll2, deadline=cur - C.poll2 + 2); self.has2.add(st)
                qL.add(self.gate(st), earliest=cur, deadline=cur + 1)
                if n == 0 and isA: qP.items[-1] = (qP.items[-1][0], M3 + 1, M3 + 1, False)
            its = self.a2_load(n)
            qL.adds(its, earliest=cur, deadline=M3 + (2 * n if n < 72 - C.lastk else 72 - C.lastk + n) - C.a2lead, hard=False)
            need = M3 + (2 * n if n < 72 - C.lastk else 72 - C.lastk + n)
            qL.add(lambda E: None, earliest=cur, deadline=max(need - 6, M3 + 1 if isA else 0))
        qP.items.sort(key=lambda x: x[1] if not (isA and x[1] == M3 + 1 and not x[3]) else -1)
        if isA:
            def boundary(E):
                qs = [qFl, qE2, qE, qL, qB, qW, qU, qP]
                def flags():
                    while not qFl.empty() and (not hasattr(qFl.head()[0], "ready") or qFl.head()[0].ready(E)): step(E, qFl, qs)
                def one_vm(q):
                    while not q.empty() and q.head()[1] <= M3:
                        it = q.head()[0]
                        if hasattr(it, "ready") and not it.ready(E): return False
                        step(E, q, qs)
                        if is_vm(it) and not getattr(it, "dead", False): return True
                    return False
                left = len(qE.items) - qE.n; base = qE.n
                polled = gated = False; lastv = E.pos; nl = 0
                while not (qE2.empty() and qE.empty()):
                    a_, b_ = (qE2, qE) if not qE2.empty() else (qE, qE2)
                    h = a_.head()[0]
                    if not callable(h) and E.nops(h) > 0 and not b_.empty() and (callable(b_.head()[0]) or E.nops(b_.head()[0]) == 0): a_ = b_
                    elif not callable(h) and E.nops(h) > 0 and not qU.empty(): a_ = qU
                    step(E, a_, qs)
                    flags()
                    fr = (qE.n - base) / max(1, left)
                    if not polled and fr >= C.att_gate - 0.45: step(E, qP, qs); polled = True
                    if not gated and fr >= C.att_gate: step(E, qL, qs); gated = True
                    if E.pos - lastv >= C.bd_pace:
                        if (gated and nl < C.bd_nl and one_vm(qL)): nl += 1; lastv = E.pos
                        elif one_vm(qB) or one_vm(qW): lastv = E.pos
                if not polled: step(E, qP, qs)
                if not gated: step(E, qL, qs)
                while nl < C.bd_min and one_vm(qL): nl += 1; flags()
                E.pos += 1000; flags(); E.pos -= 1000
            mains[M3]["pre"].insert(0, boundary)
        b2q = list(range(50 if isA else 56, 72))
        prevpg = lambda n: max(k for k in range(n) if self.b2_chunk(k) == self.b2_chunk(n))
        for c in range(9):
            gap = M3 + 16 * c - D
            barrier(gap, [("b2", n) for n in range(8 * c, 8 * c + 8)] + (["xt"] if c == 7 else []), f"c{c}",
                    lds_tags=["sw", "xr"] if c == 8 else ())
            for n in first_use.get(c, []): mains[gap]["pre"].append(place(n))
            while b2q and L.last_use[("b2", prevpg(b2q[0]))] <= gap - 1: mains[gap]["pre"].append(place(b2q.pop(0)))
        assert not b2q
        RD = v(0, 16); SF = v(16, 16); XF = v(48, 16); XR = v(224, 8); tt = v(32, 4)
        vRW = vTR[0]; vRR = vTR[1]; vOW = vRINV; vOR = vNB; vOO = vTR[4]; vXD = vTR[5]; vXA = vG
        qF.add(chk_free(qE), earliest=M3 + 30); qF.add(chk_free(qE2), earliest=M3 + 30)
        its = [valu("v_lshrrev_b32", tt[0], 4, vL16), valu("v_and_b32", tt[1], 31, tt[0]),
               valu("v_lshrrev_b32", tt[2], 5, tt[0]), valu("v_lshlrev_b32", tt[2], 3, tt[2]),
               salu("s_lshr_b32", sT0, sM0B, 3), salu("s_add_u32", sT0, sT0, TB), valu("v_add_u32", vRW, sT0, vL16),
               valu("v_xor_b32", vRR, 8192, vRW),
               salu("s_and_b32", sT0, sW, 1), salu("s_lshl_b32", sT1, sT0, 12), salu("s_add_u32", sT1, sT1, TB + 16384),
               valu("v_lshlrev_b32", tt[3], 7, tt[1]), valu("v_add3_u32", vXA, tt[3], tt[2], sT1),
               valu("v_and_b32", tt[3], 7, tt[0]), valu("v_lshlrev_b32", tt[3], 4, tt[3]),
               salu("s_lshl_b32", sT1, sKH, 6), valu("v_xor_b32", tt[3], sT1, tt[3]), valu("v_add_u32", vXA, vXA, tt[3]),
               salu("s_mul_i32", sT0, sT0, 32 * 144, scc_w=False), salu("s_add_u32", sT0, sT0, sT1), salu("s_add_u32", sT0, sT0, TB),
               valu("v_mul_u32_u24", tt[1], 144, tt[1]), valu("v_add3_u32", vOW, tt[1], tt[2], sT0),
               valu("v_lshrrev_b32", tt[1], 3, tt[0]), valu("v_and_b32", tt[2], 0x70, vL16),
               valu("v_lshl_add_u32", vOO, tt[1], 10, tt[2]),
               valu("v_lshlrev_b32", tt[3], 4, tt[1]), valu("v_xor_b32", vXD, vOO, tt[3]),
               salu("s_mul_i32", sT0, sW, 16 * 144, scc_w=False), salu("s_add_u32", sT0, sT0, TB),
               valu("v_mul_u32_u24", tt[1], 144, tt[1]), valu("v_add3_u32", vOR, tt[1], tt[2], sT0),
               salu("s_lshl_b32", sXk, sW, 11), salu("s_add_u32", sXk, sXk, TB + 16384), salu("s_add_u32", sXs, sOut, 8192)]
        its += [vload(XR.sub(0, 4), vXD, SX, sOut), vload(XR.sub(4, 4), vXD, SX, sXs), valu("v_add_u32", vXD, sXk, vL16)]
        if C.pre_out: its += [self.touch(vOO, SOUT, sOut, dst=vSP[0]), self.touch(vOO, SOUT, sXs, dst=vSP[0])]
        qF.adds(its, earliest=M3 + 30, deadline=M3 + 64)
        qF.adds([ds_wr(vXD, XR.sub(4 * i, 4), 1024 * i, tag="xt") for i in range(2)], earliest=M3 + 96 - D, deadline=M3 + 112 - D - 2)
        its = []
        for a_ in range(4):
            its += [valu("v_xor_b32", tt[a_], 16 * a_, vXA), ds_rd(XR.sub(2 * a_, 2), tt[a_], 0, tag="xr")]
        qF.adds(its, earliest=M3 + 112 - D, deadline=M3 + 128 - D - 1)
        qF.adds([ds_wr(vRW, ACCS[1].sub(4 * i, 4), 1024 * i, tag="sw") for i in range(4)], earliest=M3 + 111, deadline=M3 + 128 - D)
        its = []
        for r in range(8):
            its += [valu("v_lshlrev_b32", XF[2 * r], 16, XR[r]), valu("v_and_b32", XF[2 * r + 1], sHI, XR[r])]
        qF.adds(its, earliest=M3 + 112)
        its = [ds_rd(SF.sub(4 * i, 4), vRR, 1024 * i) for i in range(4)]
        its += [valu("v_add_f32", SF[r], SF[r], ACCS[0][r]) for r in range(16)]
        CK = v(38, 2); C1 = v(40, 2)
        its += [valu("v_mov_b32", CK[0], 0xbfb8aa3b), valu("v_mov_b32", CK[1], 0xbfb8aa3b), valu("v_mov_b32", C1[0], 1.0), valu("v_mov_b32", C1[1], 1.0)]
        qF.adds(its, earliest=M3 + 128 - D)
        if C.lastk > 1:
            gl = M3 + 144 - C.lastk
            for x in range(len(qF.items)): qF.items[x] = (qF.items[x][0], qF.items[x][1], min(qF.items[x][2], gl + 1), True)
            qF.adds([ds_wr(vRW, ACCD[1].sub(4 * i, 4), 16384 + 1024 * i, tag="dw") for i in range(4)], earliest=gl, deadline=M3 + 142)
            def xch(E):
                E.wait_tags(lds=["dw"]); E.barrier(); self.stamp("sbar")
                for i in range(4): E.emit(ds_rd(RD.sub(4 * i, 4), vRR, 16384 + 1024 * i))
            mains[M3 + 143]["pre"].append(xch)
        cap2 = C.cap2A if isA else C.cap2B
        def capf(g):
            if not isA and not qE.empty(): return C.cap2h
            if g < tail + tl - 1: return cap2
            if g < M3: return C.cap2t
            if not qE2.empty(): return 40
            if g >= M3 + 144 - C.lastk: return C.capl
            return C.cap3 if qE.empty() else C.cap3x
        schedule(E, mains[M2:], [qFl, qP, qD, qG, qL, qB, qW, qU, qR, qE2, qE, qF], capf, M2, flush=False,
                 vm_gap=lambda g: C.vm1 if g < M3 else C.vm3)
        assert qL.empty() and qD.empty() and qB.empty() and qE.empty() and qE2.empty() and qFl.empty()
        self.stamp("lastm")
        while not qF.empty():
            it = qF.head()[0]; qF.n += 1; run_item(E, it)
        if C.lastk <= 1:
            for i in range(4): e(ds_wr(vRW, ACCD[1].sub(4 * i, 4), 16384 + 1024 * i, tag="dw"))
            E.wait_tags(lds=["dw"]); E.barrier()
            self.stamp("sbar")
            for i in range(4): e(ds_rd(RD.sub(4 * i, 4), vRR, 16384 + 1024 * i))
        G = ACCS[1]
        def pk(op, d, *src):
            r = set()
            for x in src: r |= ids(x)
            return I(f"{op} {d}, " + ", ".join(fmt(x) for x in src), "valu", r, ids(d))
        P2 = lambda reg, r: reg.sub(r, 2)
        for a_ in range(4):
            pp_ = (4 * a_, 4 * a_ + 2); rr = range(4 * a_, 4 * a_ + 4)
            for r in pp_: e(pk("v_pk_add_f32", P2(RD, r), P2(RD, r), P2(ACCD[0], r)))
            for r in pp_: e(pk("v_pk_mul_f32", P2(G, r), P2(RD, r), CK))
            for r in pp_: e(pk("v_pk_mul_f32", P2(RD, r), P2(RD, r), P2(SF, r)))
            for r in rr: e(valu("v_exp_f32", G[r], G[r]))
        for a_ in range(4):
            pp_ = (4 * a_, 4 * a_ + 2); rr = range(4 * a_, 4 * a_ + 4)
            for r in pp_: e(pk("v_pk_add_f32", P2(G, r), P2(G, r), C1))
            for r in rr: e(valu("v_rcp_f32", G[r], G[r]))
        for a_ in range(4):
            pp_ = (4 * a_, 4 * a_ + 2)
            for r in pp_: e(pk("v_pk_fma_f32", P2(RD, r), P2(RD, r), P2(G, r), P2(XF, r)))
            for d in range(2): e(valu("v_cvt_pk_bf16_f32", XR[2 * a_ + d], RD[4 * a_ + 2 * d], RD[4 * a_ + 2 * d + 1]))
            e(ds_wr(vOW, XR.sub(2 * a_, 2), 16 * a_))
        E.wait_all_lds(); E.barrier()
        for p in range(2): e(ds_rd(G.sub(4 * p, 4), vOR, 8 * 144 * p))
        for p in range(2): e(vstore(G.sub(4 * p, 4), vOO, SOUT, sXs if p else sOut, 0, fl=C.out_fl))
        self.stamp("end")
        if C.amp:
            l = self.lab("amp")
            E.line("s_waitcnt lgkmcnt(0)")
            if C.amp.startswith("sk"):
                E.line(f"buffer_load_dword v0, off, {SDBG}, 0 offset:4 sc1"); E.line("s_waitcnt vmcnt(0)"); E.line(f"v_readfirstlane_b32 {sT1}, v0"); E.line("s_nop 4")
                if C.amp == "skp": E.line(f"s_sub_u32 {sT0}, s{STAMP0}, {sT1}")
                else: E.line(f"s_sub_u32 {sT0}, {sT1}, s{STAMP0}")
                E.line(f"s_max_i32 {sT0}, {sT0}, 0")
            else:
                k0, k1 = [STAMP0 + 2 * int(x) for x in C.amp.split("-")]
                E.line(f"s_sub_u32 {sT0}, s{k1}, s{k0}")
            if C.ampsel >= 0:
                E.line(f"s_lshr_b32 {sT1}, {sWG}, 5"); E.line(f"s_cmp_eq_u32 {sT1}, {C.ampsel}"); E.line(f"s_cselect_b32 {sT0}, {sT0}, 0")
            if C.ampx >= 0:
                E.line(f"s_and_b32 {sT1}, {sWG}, 7"); E.line(f"s_cmp_eq_u32 {sT1}, {C.ampx}"); E.line(f"s_cselect_b32 {sT0}, {sT0}, 0")
            pass; E.line(f"s_lshl_b32 {sT0}, {sT0}, 2"); E.line(f"s_add_u32 {sT0}, {sT0}, s{STAMP0 + 16}")
            E.label(l)
            E.line("s_memrealtime s[84:85]"); E.line("s_waitcnt lgkmcnt(0)"); E.line(f"s_sub_u32 s84, s84, {sT0}")
            E.line("s_cmp_lt_i32 s84, 0"); E.line(f"s_cbranch_scc1 {l}")
        elif C.stamps:
            E.line("s_waitcnt lgkmcnt(0)")
            e(salu("s_lshl_b32", sT0, sWG, 2)); e(salu("s_add_u32", sT0, sT0, sW)); e(salu("s_lshl_b32", sT0, sT0, 7))
            e(salu("s_add_u32", sT0, sT0, WS_STAMP))
            for k in range(9):
                e(valu("v_mov_b32", v(0), s(STAMP0 + 2 * k))); e(vstore(v(0), None, SWS, sT0, 4 * k))
            e(accr(v(0), a(198))); e(vstore(v(0), None, SWS, sT0, 44))
            E.line("s_memrealtime s[84:85]"); E.line("s_getreg_b32 s86, hwreg(HW_REG_XCC_ID)"); E.line("s_waitcnt lgkmcnt(0)")
            e(valu("v_mov_b32", v(0), s(84))); e(vstore(v(0), None, SWS, sT0, 36))
            e(valu("v_mov_b32", v(0), s(86))); e(vstore(v(0), None, SWS, sT0, 40))
        E.line("s_endpgm")
        E.out += self.cold

    def epoch_publish(self):
        E = self.E
        l = self.lab("nopub")
        E.emit(salu("s_or_b32", sT0, sWG, sW))
        E.line(f"s_cbranch_scc1 {l}")
        E.line(f"s_mov_b32 {sT0}, 0x9e3779b1")
        E.line(f"v_mul_lo_u32 {vPOLL}, {vPOLL}, {sT0}")
        E.line(f"v_add_u32 {vPOLL}, 0x7f4a7c15, {vPOLL}")
        E.line(f"v_max_u32 {vPOLL}, 1, {vPOLL}")
        E.line(f"s_mov_b32 {sT0}, {WS_EPOCH}")
        E.line(f"buffer_store_dword {vPOLL}, off, {SWS}, {sT0} sc1")
        if C.amp.startswith("sk"):
            E.line(f"v_mov_b32 v0, s{STAMP0}"); E.line(f"buffer_store_dword v0, off, {SDBG}, 0 offset:4 sc1"); E.line("s_waitcnt vmcnt(0)")
        E.line(f"buffer_store_dword {vPOLL}, off, {SDBG}, 0 sc1")
        E.label(l)

    def attention(self, q, xfree):
        M2 = self.M2
        Q0, Q1, K0, K1, V0, V1 = [ACC1(t) for t in range(6)]
        cvt = lambda d, x, y: valu("v_cvt_pk_bf16_f32", d, x, y)
        def pack(dst, src, n=8): return [cvt(dst[i], src[2 * i], src[2 * i + 1]) for i in range(n)]
        its = pack(K0, K0) + pack(K0.sub(8, 8), K1)
        its += [ds_wr(vEX, K0.sub(4 * h, 4), 6144 + 1024 * h, tag="exw") for h in range(4)]
        its += pack(V0, V0) + pack(V0.sub(8, 8), V1)
        bar2 = M2 + C.exbar
        q.adds(its, earliest=M2 - 21, deadline=bar2 - 1)
        its = [ds_wr(vEX, V0.sub(4 + 8 * j, 4), 6144 + 4096 + 1024 * j, tag="exw") for j in range(2)]
        its += [accr(NT[i], aHACC[0][i]) for i in range(4)] + [accr(NT[4 + i], aHACC[1][i]) for i in range(4)]
        hk = v(NT[0].lo, 2); hv = v(NT[4].lo, 2)
        its += [cvt(NT[0], NT[0], NT[1]), cvt(NT[1], NT[2], NT[3]), cvt(NT[4], NT[4], NT[5]), cvt(NT[5], NT[6], NT[7])]
        its += [salu("s_lshl_b32", sT0, sW, 10), salu("s_add_u32", sT0, sT0, 256), valu("v_add_u32", NT[2], sT0, vHW),
                salu("s_lshr_b32", sT0, sW, 1), salu("s_lshl_b32", sT0, sT0, 10), salu("s_and_b32", sT1, sW, 1),
                salu("s_lshl_b32", sT1, sT1, 8), salu("s_add_u32", sT0, sT0, sT1), valu("v_add_u32", NT[3], sT0, vHW),
                ds_wr(NT[2], hk, 0, tag="exw"), ds_wr(NT[3], hv, 4096, tag="exw")]
        q.adds(its, earliest=M2 - 1, deadline=bar2 - 1)
        self.exw_check = (q, len(q.items))
        q.adds(pack(Q0, Q0) + pack(Q0.sub(8, 8), Q1), earliest=M2)
        MASK = v(208, 24)
        its = [accr(vRINV, a(196)), accr(vNB, a(197)), smov(sONE, NEG)]
        for r in range(24):
            rr = r if r < 16 else r - 8
            its += [valu("v_bfe_i32", MASK[r], vNB if r < 16 else vRINV, 8 * (rr >> 2) + (rr & 3), 1), valu("v_and_b32", MASK[r], sONE, MASK[r])]
        if C.mask_early: its = [accr(MASK[r], aMASK[r]) for r in range(24)]
        q.adds(its, earliest=M2)
        q.add(lambda E: self.mark.update(masks=True), earliest=M2)
        SC = K1; SP = v(0, 16); U = v(16, 8); P = v(24, 12); O = Q1
        mx, tm, mc = vRINV, vNB, vW16
        sums = [vHX, vH]; t2 = vTR[4]
        def add(i, ear=0):
            w = [x for x in i.w if x < 128]
            e_ = max([xfree(v(x)) for x in w], default=0)
            q.add(i, earliest=max(e_, ear))
        def qk(h, which):
            if which == 0: add(mfma(SC, K0.sub(4 * h, 4), Q0.sub(4 * h, 4), MASK.sub(0, 16)))
            else: add(mfma(SP, aKP[h], Q0.sub(4 * h, 4), MASK.sub(8, 16)))
        def fin(h):
            o = 8 * (h & 1); sm = sums[h & 1]
            l = [valu("v_rcp_f32", sm, sm)]
            l += [valu("v_mul_f32", O[o + r], O[o + r], sm) for r in range(8)]
            l += [cvt(O[o + r], O[o + 2 * r], O[o + 2 * r + 1]) for r in range(4)]
            l.append(self.a2_store(O.sub(o, 4), sStF, h, "o"))
            return l
        qk(0, 0)
        q.adds([ds_rd(aKP[h], vEX, 1024 * h) for h in range(4)] + [ds_rd(aVP[j], vEX, 4096 + 1024 * j) for j in range(2)], earliest=bar2)
        qk(0, 1)
        for h in range(4 if not C.abl_att else 1):
            for i in range(4): add(valu("v_max_f32", U[i], SC[2 * i], SC[2 * i + 1]))
            for i in range(4, 8): add(valu("v_max3_f32", U[i], SC[2 * i], SC[2 * i + 1], SP[2 * i]))
            if h < 3: qk(h + 1, 0)
            for i in range(4, 8): add(valu("v_max_f32", U[i], U[i], SP[2 * i + 1]))
            add(valu("v_max3_f32", mx, U[0], U[1], U[2])); add(valu("v_max3_f32", tm, U[3], U[4], U[5]))
            if h < 3: qk(h + 1, 1)
            add(valu("v_max3_f32", mx, mx, U[6], U[7])); add(valu("v_max_f32", mx, mx, tm))
            add(valu("v_mov_b32", tm, mx))
            fl = fin(h - 1) if h > 0 else []
            for x in fl[:3]: add(x)
            add(swap32(mx, tm)); add(valu("v_max_f32", mx, mx, tm))
            add(I(f"v_mul_f32 {mc}, -{mx}, {sCSC}", "valu", mx.ids() | sCSC.ids(), mc.ids()))
            for x in fl[3:]: add(x)
            for i in range(8): add(valu("v_fma_f32", U[i], U[i], sCSC, mc))
            for i in range(8): add(valu("v_exp_f32", U[i], U[i]))
            sm = sums[h & 1]; j = h >> 1
            for i in range(4):
                add(cvt(P[i], U[i], U[i])); add(valu("v_and_b32", P[i], vPM, P[i]))
            add(valu("v_add_f32", sm, U[0], U[1])); add(valu("v_add_f32", tm, U[2], U[3]))
            add(mfma(O, V0.sub(8 * j, 4), P.sub(0, 4), 0))
            for i in range(4):
                add(cvt(P[8 + i], U[4 + i], U[4 + i])); add(valu("v_and_b32", P[4 + i], vMHC, P[8 + i]))
            add(valu("v_add_f32", t2, U[4], U[5])); add(valu("v_add_f32", sm, sm, tm))
            add(mfma(O, V0.sub(8 * j + 4, 4), P.sub(4, 4), O))
            for i in range(4): add(valu("v_and_b32", P[8 + i], vMHP, P[8 + i]))
            add(valu("v_add_f32", tm, U[6], U[7])); add(valu("v_add_f32", t2, t2, tm))
            add(mfma(O, aVP[j], P.sub(8, 4), O))
            add(valu("v_add_f32", sm, sm, t2))
            add(valu("v_mov_b32", tm, sm))
            add(swap32(sm, tm)); add(valu("v_add_f32", sm, sm, tm))
        for x in fin(3): add(x)

    def build(self):
        E = self.E
        self.stamp("t00")
        E.emit(scmp("s_cmp_ge_u32", sWG, 256))
        E.line("s_cbranch_scc1 L_end")
        E.line("s_load_dwordx16 s[8:23], s[0:1], 0")
        E.line("s_load_dwordx4 s[24:27], s[0:1], 64")
        E.emit(salu("s_lshr_b32", sJ, sWG, 3))
        self.code_touch()
        E.emit(I("s_bitcmp1_b32 s6, 3", "salu", sJ.ids(), {SCC}))
        E.line("s_cbranch_scc1 L_typeB")
        snap = E.snapshot()
        self.body("A")
        E.label("L_typeB")
        E.restore(snap)
        self.body("B")
        E.label("L_end")
        E.line("s_endpgm")
        E.label("L_code_end")
        E.out.append(".p2align 12")
        head = open(os.path.join(os.path.dirname(os.path.abspath(__file__)), "head.txt")).read()
        txt = head + f"""; @launch grid=(256,1,1) block=(256,1,1) lds=163840
.amdgcn_target "amdgcn-amd-amdhsa--gfx950"
.text
.globl {NAME}
.p2align 8
.type {NAME},@function
{NAME}:
""" + E.text() + f""".section .rodata,"a"
.p2align 6
.amdhsa_kernel {NAME}
  .amdhsa_next_free_vgpr 512
  .amdhsa_next_free_sgpr 102
  .amdhsa_accum_offset 256
  .amdhsa_group_segment_fixed_size 0
  .amdhsa_kernarg_size 80
  .amdhsa_user_sgpr_count 2
  .amdhsa_user_sgpr_kernarg_segment_ptr 1
  .amdhsa_system_sgpr_workgroup_id_x 1
.end_amdhsa_kernel
"""
        return txt


def place_pads(txt):
    import subprocess, re, tempfile
    sys.path.insert(0, "cdna_kernels")
    from cdna_launch import with_harness_metadata
    lines = txt.split("\n")
    probe = []
    for n, l in enumerate(lines):
        if l.startswith("    ") and not l.strip().startswith(";") and not l.strip().startswith("."): probe.append(f"LP_{n}:")
        probe.append(re.sub(r"L_pad[AB]_\d+", "L_end", l))
    d = tempfile.mkdtemp()
    open(d + "/p.s", "w").write(with_harness_metadata("\n".join(probe), NAME, 10, launch_lists=True))
    subprocess.run(["clang", "-x", "assembler", "-target", "amdgcn-amd-amdhsa", "-mcpu=gfx950", d + "/p.s", "-o", d + "/p.co"], check=True)
    sym = subprocess.run(["llvm-objdump", "-t", d + "/p.co"], capture_output=True, text=True).stdout
    addr = {int(m.group(2)): int(m.group(1), 16) for m in re.finditer(r"([0-9a-f]{16}) .* LP_(\d+)", sym)}
    shift = 0; typ = None; pads = {"A": [], "B": []}; prev = None
    for n, l in enumerate(lines):
        if l.startswith(";PADS_FROM"): typ = l.split()[1]
        if l.startswith("L_typeB:") or l.startswith("L_end:"): typ = None
        if n in addr:
            a_ = addr[n] + shift
            if typ and prev is not None and prev // 4096 != a_ // 4096:
                pads[typ].append(n); shift += 4
            prev = a_
    out = []
    for n, l in enumerate(lines):
        for t in "AB":
            if n in pads[t]:
                k = pads[t].index(n)
                out.append(f"L_pad{t}_{k}:")
                out.append(f"    s_cbranch_execz " + (f"L_pad{t}_{k + 4}" if k + 4 < len(pads[t]) else f"L_back{t}"))
        out.append(l)
    print("pads", {t: len(pads[t]) for t in pads}, "kernel at", hex(min(addr.values())))
    assert min(len(pads[t]) for t in pads) >= 4
    return "\n".join(out)


if __name__ == "__main__":
    g = Gen()
    txt = g.build()
    if C.pads: txt = place_pads(txt)
    open(sys.argv[1], "w").write(txt)
    print("instructions:", g.E.ninst)
```

```python
import sys, os
sys.path.insert(0, os.path.dirname(os.path.abspath(__file__)))
from emit import *

NAME = "recurrent_scan__sliding_local_dilated__glu_gated_bilinear__prompt_kernel"

class Cfg:
    stamps = False
    stset = "a"
    rt = False
    D = 6
    nahead = 8; cap1A = 7.0; cap1B = 6.8; cap1t = 12.0; cap2h = 9.0; cap2A = 7.5; cap2B = 7.0; cap3 = 7.0; cap2t = 7.5; cap3x = 20.0
    npre = 56
    att_gate = 0.7; gate0B = -44; vm1 = 2.0; vm3 = 8.0; nrawA = 0; nrawB = 14; warm_gA = 1; warm_gB = 1; warm_off = 12; warm_mode = 0; scal_span = 30; b2gA = 4; b2gB = 3; raw0A = 130; raw0B = 270
    rot = True; rot_half = False
    pads = True
    la1 = 14; la2 = 14; la3 = 18; la4A = 13; la4B = 18
    polld = 26
    flagd = 600
    b2lead = 24; a2lead = 30; att_end = 30
    dbg_jit = 0; dbg_gate = False; dbg_b2 = 0; dbg_w = False; dbg_st = False; dbg_a2 = 0; dbg_dump = False; dbg_bar = False
    amp = ""; ampsel = -1; ampx = -1
    lg_old = 10; vmfirst = False
    abl_p2 = False; abl_norm = False; abl_tr = 0; abl_tr2 = False; abl_att = False
    bd_pace = 16; bd_nl = 14; bd_min = 12
    fifo0 = 3.0; per3 = 56.0; poll2 = 0
    code_split = True; rot_ct = False; qkv_byB = True; scal_early = False; mask_early = False; warm_byB = False
    fs = 1024; skip3 = False; rot3 = True
    ctrot = 0; k1B = 30; flstride = 1024
    lastk = 8; capl = 12.0
    wsoff = 0; pre_out = False
    rot2 = True; flagl = 300; flag1 = 300
    raw = True; raw0 = 84
    npre_norm = 1; npre_normA = 1; hn_at = 0; dots_first = 6; exbar = 12; npoll = 1
    w3early = True
    w0at = 4; touch_w0 = 4; x2early = False
    touch_code = True
    touch_b2 = False; b2g = 4
    warm_all = True; warm_byA = False
    a2_fl = "sc1"; st_fl = "sc1"; pre_a2 = 0; x_fl = ""; w_fl = ""; b2_fl = ""; out_fl = ""
    spin_max = 1 << 16

C = Cfg()
import emit as _emit
for arg in sys.argv[2:]:
    k, val = arg.split("=")
    old = getattr(C, k)
    setattr(C, k, (val not in ("0", "False")) if isinstance(old, bool) else type(old)(val.replace("+", " ")))

Emitter.LG_OLD = C.lg_old
WS_FLAG = 0x1C00000
WS_EPOCH = 0x1D00000
WS_STAMP = 0x1E00000
WS_SIZE = 0x1F00000
FS = C.fs
FLO = [0, 128, 256, 512, 640]
TB = 131072

sWG = s(2); sW = s(3); sRB = s(4); sIDX = s(5); sJ = s(6); sXCD = s(7)
SX, SWO, SWG_, SWD, SDBG, SP5, SWU, SOUT, SWS, SP9 = [s(8 + 4 * i, 4) for i in range(10)]
SQKV = SWG2 = SP5; SWH = SWU2 = SP9
(sA2s, sB2s, sM0B, sT0, sT1, sS1, sS2, sS2b, sTAG, sFLW, sFLR, sStF, sStH, sSt2, sHI, sONE, sSPIN, sT2, sOut, sT5,
 sRT, sCT, sKH, sCSC, sXs, sM0T, sXo, sXk, sROT, sC512, sA2c0, sA2c1, sA2c2, sB2c0, sB2c1, sB2c2) = [s(48 + i) for i in range(36)]
sA2c = [sA2c0, sA2c1, sA2c2]; sB2c = [sB2c0, sB2c1, sB2c2]
sHo = sB2s
sG3 = [sB2c0, s(0), s(1), s(5)]; sG1 = [sB2c2, s(6), s(7), sCT]
sPC = s(48, 2)
STAMP0 = 84

def X(ks): return v(4 * ks, 4)
def ACC1(t): return v(128 + 16 * t, 16)
NT = [v(224 + i) for i in range(8)]
vTR = [v(232 + i) for i in range(6)]
vG = v(238); vU = v(239); vH = v(240)
vB2 = v(241); vTW = v(242)
vL16 = v(243); vRINV = v(244); vNB = v(245); vW16 = v(246); vHX = v(247)
vTAG = v(248); vPOLL = v(249); vP4 = v(250); vTB = vTAG
vEX = v(251); vHW = v(252); vPM = v(253); vMHC = v(254); vMHP = v(255)
vTR2T = [v(42), v(43)]; vTR2 = [v(44), v(45)]; vWQ = v(46)
vPL = [vPOLL, v(36), v(37), v(47)]
vA2O = vTW
vSP = [v(39), v(41)]
PARKED = vTR2T + vTR2
E2T = v(48, 16)
ACCD = [v(64, 16), v(80, 16)]; ACCS = [v(96, 16), v(112, 16)]
def WF(m): return a(4 * (m % 12), 4)
def ACC2(t): return a(48 + 16 * t, 16)
aMASK = a(112, 24); aKP = [a(136 + 4 * i, 4) for i in range(4)]; aVP = [a(152 + 4 * i, 4) for i in range(2)]
aHACC = [a(160, 4), a(164, 4)]; aXH = [a(168, 4), a(172, 4)]
aW16 = [[a(176, 4), a(180, 4)], [a(184, 4), a(188, 4)]]
aPARK = 192
aDUM0 = a(199); vDUM1 = v(37)

NEG = 0xf149f2ca


class LDSMap:
    def __init__(self):
        self.own = {c: ("x", c // 4) for c in range(32)}
        for c in range(32, 40): self.own[c] = ("T",)
        self.last_use = {}
        self.visible = set()
        self.bar_m = -1
        self.xread = set()
    def alloc(self, obj, chunks):
        for c in chunks:
            o = self.own[c]
            if o[0] == "x": assert o[1] in self.xread, (obj, c, o)
            else: assert self.last_use[o] <= self.bar_m, (obj, c, o, self.last_use[o], self.bar_m)
            self.own[c] = obj
    def check_read(self, obj, chunks):
        assert obj in self.visible, ("not visible", obj)
        for c in chunks: assert self.own[c] == obj, (obj, c, self.own[c])


SHIFT = [48, 8, 16]


def step_info(n):
    if n < 32: return 16 + 12 * (n >> 3) + (n & 7), 0, 0
    if n < 40: return n - 32, 1, 1
    if n < 56: return 112 + n - 40, 2, 3
    hi = n >= 64; k = (n - 56) & 7
    return 24 + 12 * (k >> 1) + (k & 1) + 2 * hi, 0, (4 if hi else 2)


class Gen:
    def __init__(self):
        self.E = Emitter()
        self.E.trace = bool(os.environ.get("TRACE"))
        self.nlabel = 0
        self.nstamp = 0

    def lab(self, base):
        self.nlabel += 1
        return f"L_{base}_{self.nlabel}"

    STS = {"a": ["t0", "issued", "x0", "xdone", "s1", "s2", "p2", "lastm", "end"],
           "b": ["t0", "g0a", "g0b", "p2", "g1a", "g1b", "g2a", "g2b", "end"],
           "e": ["t0", "karg", "issued", "rest", "pads", "x0", "x1", "x3", "end"],
           "f": ["t0", "x4", "x5", "x6", "x7", "xdone", "s1", "b1", "end"],
           "g": ["t0", "s1", "b1a", "b1", "b2a", "b2", "b3a", "b3", "end"],
           "h": ["t0", "b3", "b4", "b5", "b6", "b7", "b8", "s2", "end"],
           "j": ["t0", "g2b", "n48", "n55", "n56", "n60", "n64", "n71", "end"],
           "k": ["t0", "g0b", "n0", "n4", "n8", "n16", "n24", "n31", "end"],
           "l": ["t0", "g1b", "g3b", "n31", "n32", "n39", "n40", "n47", "end"],
           "m": ["t0", "n0", "n8", "n16", "n24", "n32", "n40", "n56", "end"],
           "n": ["t0", "c0a", "c0", "c1a", "c1", "c2a", "c2", "c3a", "c3"],
           "o": ["t0", "c4a", "c4", "c5a", "c5", "c6a", "c6", "c7a", "c7"],
           "p": ["t0", "g0a", "g0b", "g1a", "g1b", "g3a", "g3b", "g2a", "g2b"],
           "q": ["t0", "s2", "f0a", "f0b", "g0a", "g0b", "f2a", "f2b", "end"],
           "r": ["t0", "s1", "b1", "b2", "b3", "b4", "b5", "b6", "b7"],
           "s": ["t0", "b7", "b8", "b9", "b10", "b11", "c0", "c1", "c2"],
           "t": ["n16", "n17", "n18", "n19", "n20", "n21", "n22", "n23", "n24"],
           "u": ["n40", "n41", "n42", "n43", "n44", "n45", "n46", "n47", "n48"],
           "v": ["n60", "n61", "n62", "n63", "n64", "n65", "n66", "n67", "n68"],
           "w": ["t00", "t0", "karg", "issued", "rest", "pads", "x0", "xdone", "end"],
           "x": ["t0", "issued", "pads", "x0", "x2", "x4", "x7", "bx", "s1"],
           "y": ["t0", "x4", "x5", "x6", "x7", "xdone", "bx", "s1", "b1"],
           "z": ["t0", "p2", "f2b", "f4b", "g2a", "g2b", "g4a", "g4b", "end"],
           "0": ["t0", "end"],
           "AMP": ["t0", "-1", "-2", "-3", "-4", "-5", "-6", "-7", "end"],
           "F": ["t0", "s1", "s2", "f0b", "f1b", "f3b", "f4b", "g3b", "g4b"],
           "G": ["t0", "g0a", "g0b", "g3a", "g3b", "g2a", "g2b", "g4a", "g4b"],
           "i": ["t0", "s2", "g0a", "g0b", "p2", "c1", "g1a", "g1b", "end"],
           "d": ["t0", "p2", "g1b", "g3a", "g3b", "g2a", "g2b", "lastm", "end"],
           "c": ["t0", "p2", "c1", "c3", "c5", "c7", "lastm", "sbar", "end"]}

    def stamp(self, name):
        if C.stset.startswith("B"):
            g = int(C.stset[1:]); self.STS[C.stset] = [f"b{g}"] + [f"b{g + k}{x}" for k in range(1, 5) for x in ("a", "")]
        if C.stset.startswith("N"): self.STS[C.stset] = [f"n{int(C.stset[1:]) + k}" for k in range(9)]
        if C.stamps and name in self.STS[C.stset]:
            k = self.STS[C.stset].index(name)
            self.E.line(f"{'s_memrealtime' if C.rt else 's_memtime'} s[{STAMP0 + 2 * k}:{STAMP0 + 2 * k + 1}]")

    def setup_first(self, typ):
        o = []; e = o.append
        lane = self.lane; vx = self.vx; t0, t1, t2 = v(201), v(202), v(203)
        e(valu("v_and_b32", lane, 63, v(0)))
        e(valu("v_lshrrev_b32", t0, 6, v(0)))
        e(salu("s_and_b32", sXCD, sWG, 7))
        e(rfl(sW, t0))
        e(salu("s_and_b32", sRB, sXCD, 1)); e(salu("s_lshl_b32", sRB, sRB, 3))
        e(salu("s_and_b32", sT0, sJ, 7)); e(salu("s_add_u32", sRB, sRB, sT0))
        e(salu("s_and_b32", sIDX, sXCD, 6)); e(salu("s_lshr_b32", sT0, sJ, 4)); e(salu("s_add_u32", sIDX, sIDX, sT0))
        e(valu("v_and_b32", t0, 7, lane)); e(valu("v_lshrrev_b32", t1, 4, lane)); e(valu("v_xor_b32", t0, t0, t1))
        e(valu("v_lshlrev_b32", t0, 4, t0))
        e(valu("v_lshrrev_b32", t1, 3, lane)); e(valu("v_lshlrev_b32", t1, 10, t1))
        e(valu("v_or_b32", vx[0], t0, t1)); e(valu("v_xor_b32", t2, 64, vx[0]))
        e(valu("v_add_u32", vx[1], 7168, t2)); e(valu("v_add_u32", vx[2], 2 * 7168, vx[0])); e(valu("v_add_u32", vx[3], 3 * 7168, t2))
        e(salu("s_lshl_b32", sM0B, sW, 15))
        e(salu("s_lshl_b32", sT0, sRB, 17)); e(salu("s_add_u32", sXo, sT0, sM0B))
        e(salu("s_lshr_b32", sT1, sJ, 3)); e(salu("s_add_u32", sT1, sT1, sJ)); e(salu("s_and_b32", sROT, sT1, (1 if C.rot_half else 3) if C.rot else 0))
        if C.rot_half: e(salu("s_lshl_b32", sROT, sROT, 1))
        e(salu("s_lshl_b32", sXk, sROT, 8))
        e(smov(SWS[2], WS_SIZE)); e(smov(SWS[3], 0x20000))
        if typ == "A":
            e(smov(SQKV[2], 512 * 3072)); e(smov(SQKV[3], 0x20000))
            hs = self.hs
            e(salu("s_sub_u32", sT1, sT0, 16 * 1024))
            e(valu("v_add_u32", hs[0], sT1, vx[0])); e(salu("s_add_u32", sT1, sT1, 1024)); e(valu("v_add_u32", hs[1], sT1, vx[1]))
            e(salu("s_add_u32", sHo, sW, sROT)); e(salu("s_and_b32", sHo, sHo, 3)); e(salu("s_lshl_b32", sHo, sHo, 8))
            e(salu("s_lshr_b32", sS2b, sM0B, 3))
            self.ncrit = len(o)
            e(salu("s_lshl_b32", sT2, sIDX, 1))
            e(salu("s_lshl_b32", sS1, sIDX, 7))
        else:
            self.ncrit = len(o)
            e(salu("s_mul_i32", sT2, sIDX, 12, scc_w=False)); e(salu("s_add_u32", sT2, sT2, 24))
            e(salu("s_lshl_b32", sS1, sT2, 5)); e(salu("s_sub_u32", sS1, sS1, 256))
            for d, sh in ((SWU, 1024), (SWG2, 1920), (SWU2, 2944)):
                e(smov(d[2], 512 * 3584 + sh)); e(smov(d[3], 0x20000))
        st1 = 3072 if typ == "A" else 3584
        e(salu("s_mul_i32", sT0, sROT, 128 * st1, scc_w=False)); e(salu("s_add_u32", sS1, sS1, sT0))
        if C.touch_w0:
            e(valu("v_and_b32", t0, C.touch_w0 - 1, lane)); e(valu("v_mul_u32_u24", t0, st1, t0))
            if typ == "A":
                e(valu("v_lshrrev_b32", t1, 4, lane)); e(valu("v_min_u32", t1, 2, t1)); e(valu("v_lshlrev_b32", t1, 10, t1))
            else:
                e(valu("v_bfe_u32", t1, lane, 4, 1)); e(valu("v_lshlrev_b32", t1, 7, t1))
            e(valu("v_add_u32", vTW, t0, t1))
            e(salu("s_and_b32", sT0, sJ, 4)); e(salu("s_and_b32", sT1, sXCD, 1)); e(salu("s_lshl_b32", sT1, sT1, 3))
            e(salu("s_add_u32", sT0, sT0, sT1)); e(salu("s_add_u32", sT0, sT0, sW))
            e(salu("s_mul_i32", sT0, sT0, C.touch_w0 * st1, scc_w=False)); e(salu("s_add_u32", sT5, sT0, sS1))
            if typ == "B" and C.qkv_byB:
                e(valu("v_and_b32", t0, 3, lane)); e(valu("v_mul_u32_u24", t0, 3072, t0))
                e(valu("v_lshrrev_b32", t1, 4, lane)); e(valu("v_min_u32", t1, 2, t1)); e(valu("v_lshlrev_b32", t1, 10, t1))
                e(valu("v_add_u32", vMHP, t0, t1))
                e(salu("s_and_b32", sT0, sRB, 3)); e(salu("s_lshl_b32", sT0, sT0, 5)); e(salu("s_and_b32", sT1, sRB, 12))
                e(salu("s_add_u32", sT0, sT0, sT1)); e(salu("s_add_u32", sT0, sT0, sW)); e(salu("s_mul_i32", sT0, sT0, 4 * 3072, scc_w=False))
                e(salu("s_lshl_b32", sT1, sIDX, 7)); e(salu("s_add_u32", sXs, sT0, sT1))
        return o

    def touch(self, voff, srd_, soff, imm=0, dst=None, fl=""):
        i = vload(dst or aDUM0, voff, srd_, soff, imm, fl=fl); i.w = set(); return i

    def consts(self, typ):
        o = []; e = o.append
        lane = self.lane
        t = [v(208 + i) for i in range(8)]
        li, g4, r2, hh, ub = v(190), v(191), v(192), v(193), v(194)
        e(valu("v_and_b32", li, 15, lane)); e(valu("v_lshrrev_b32", g4, 4, lane)); e(valu("v_lshrrev_b32", hh, 5, lane))
        e(valu("v_and_b32", ub, 1, g4)); e(valu("v_lshrrev_b32", r2, 2, li))
        e(valu("v_lshlrev_b32", vL16, 4, lane))
        e(smov(sHI, 0xffff0000)); e(smov(sONE, 0x3f803f80)); e(smov(sC512, 0x3b000000)); e(smov(sCSC, 0x3eb8aa3b))
        xa = self.xa
        e(valu("v_and_b32", t[0], 31, lane)); e(valu("v_lshlrev_b32", t[1], 7, t[0]))
        e(valu("v_bfe_u32", t[0], lane, 1, 3)); e(valu("v_xor_b32", t[0], t[0], hh)); e(valu("v_lshlrev_b32", t[0], 4, t[0]))
        e(valu("v_add_u32", t[1], sM0B, t[1]))
        for q in range(4):
            e(valu("v_xor_b32", t[2], 32 * q, t[0])); e(valu("v_add_u32", xa[q], t[1], t[2]))
        for r_ in self.acc: e(valu("v_mov_b32", r_, 0))
        if typ == "A":
            ha = self.ha
            e(valu("v_lshlrev_b32", t[1], 7, li)); e(valu("v_lshrrev_b32", t[0], 1, li)); e(valu("v_xor_b32", t[0], t[0], g4))
            e(valu("v_lshlrev_b32", t[0], 4, t[0]))
            e(salu("s_add_u32", sT0, sS2b, TB)); e(valu("v_add_u32", t[1], sT0, t[1]))
            e(valu("v_add_u32", ha[0], t[1], t[0])); e(valu("v_xor_b32", t[0], 64, t[0])); e(valu("v_add_u32", ha[1], t[1], t[0]))
            for r_ in self.hacc: e(valu("v_mov_b32", r_, 0))
            e(valu("v_add_u32", vHX, TB + 16384, vL16))
            e(valu("v_lshlrev_b32", ha[2], 3, lane)); e(valu("v_add_u32", ha[2], TB, ha[2])); e(valu("v_add_u32", ha[3], sS2b, ha[2]))
            e(valu("v_add_u32", ha[4], sS2b, vHX))
        e(salu("s_and_b32", sT0, sW, 1)); e(salu("s_lshl_b32", sT0, sT0, 4))
        e(salu("s_lshr_b32", sKH, sW, 1)); e(salu("s_lshl_b32", sT1, sKH, 3)); e(salu("s_add_u32", sT1, sT1, sT0))
        e(valu("v_lshrrev_b32", t[0], 3, lane)); e(valu("v_and_b32", t[1], 2, t[0])); e(valu("v_lshlrev_b32", t[1], 5, t[1]))
        e(valu("v_and_b32", t[2], 7, lane)); e(valu("v_lshlrev_b32", t[2], 4, t[2])); e(valu("v_xor_b32", t[2], t[2], t[1]))
        e(valu("v_add_u32", t[3], sT1, t[0]))
        if typ == "A":
            e(valu("v_mul_u32_u24", t[4], 3072, t[3])); e(valu("v_add_u32", vH, t[4], t[2]))
            e(salu("s_lshl_b32", sT0, sT0, 1))
            e(valu("v_lshrrev_b32", t[4], 2, lane)); e(valu("v_add_u32", t[4], sT0, t[4])); e(valu("v_mul_u32_u24", t[4], 3584, t[4]))
            e(valu("v_and_b32", t[5], 3, lane)); e(valu("v_lshlrev_b32", t[5], 4, t[5]))
            e(salu("s_lshl_b32", sT1, sKH, 5)); e(valu("v_xor_b32", t[5], sT1, t[5]))
            e(valu("v_add_u32", vG, t[4], t[5]))
            e(salu("s_lshl_b32", sS2, sT2, 5))
            e(smov(SWH[2], 512 * 3584)); e(smov(SWH[3], 0x20000))
        else:
            e(valu("v_mul_u32_u24", t[4], 3584, t[3])); e(valu("v_add_u32", vG, t[4], t[2]))
            e(valu("v_xor_b32", t[5], 32, t[2])); e(valu("v_add_u32", vU, t[4], t[5]))
            e(salu("s_mul_i32", sT0, sT0, 3584, scc_w=False))
            e(salu("s_lshl_b32", sS2, sT2, 5)); e(salu("s_add_u32", sS2, sS2, sT0))
        e(salu("s_mul_i32", sT0, sROT, 128 * 3584, scc_w=False)); e(salu("s_add_u32", sS2, sS2, sT0))
        e(valu("v_and_b32", vP4, 3, lane)); e(valu("v_lshlrev_b32", vP4, 2, vP4))
        e(valu("v_lshl_add_u32", vB2, t[0], 10, t[2]))
        if C.warm_all:
            ww = self.ww
            e(valu("v_min_u32", ww[0], 13, lane)); e(valu("v_lshlrev_b32", ww[0], 7, ww[0])); e(valu("v_lshlrev_b32", ww[1], 5, vP4))
            e(valu("v_and_b32", ww[2], 15 if typ == "A" else 7, lane)); e(valu("v_mul_u32_u24", ww[2], 3584, ww[2]))
        e(valu("v_lshlrev_b32", t[0], 7, r2))
        e(valu("v_and_b32", t[1], 3, lane)); e(valu("v_lshlrev_b32", t[1], 3, t[1])); e(valu("v_add_u32", t[0], t[0], t[1]))
        e(valu("v_and_b32", t[2], 2, r2))
        e(valu("v_or_b32", t[3], t[2], ub)); e(valu("v_lshlrev_b32", t[3], 5, t[3]))
        e(valu("v_lshlrev_b32", t[4], 16, hh)); e(valu("v_add_u32", t[4], t[4], t[0]))
        if typ == "A":
            for j in range(2):
                e(valu("v_xor_b32", t[6], 64 * j, t[3])); e(valu("v_add_u32", vTR[4 + j], t[6], t[4]))
            e(valu("v_lshlrev_b32", t[6], 3, hh)); e(valu("v_add_u32", t[6], t[6], r2)); e(valu("v_lshlrev_b32", t[6], 6, t[6]))
            e(valu("v_lshlrev_b32", t[7], 16, ub)); e(valu("v_add3_u32", t[6], t[6], t[7], t[1]))
            e(valu("v_lshlrev_b32", t[7], 5, ub)); e(valu("v_add_u32", vTR[0], t[6], t[7]))
            e(valu("v_xor_b32", t[7], 32, t[7])); e(valu("v_add_u32", vTR[1], t[6], t[7]))
        else:
            e(valu("v_lshlrev_b32", t[5], 10, ub)); e(valu("v_add_u32", t[5], t[5], t[4]))
            for tt in range(4):
                e(valu("v_xor_b32", t[6], 32 * tt, t[3])); e(valu("v_add_u32", vTR[tt], t[6], t[5]))
        def park(reg, s0_, s1_):
            names = [str(x) for x in self.parked]
            if str(reg) in names: e(valu("v_add_u32", t[7], s0_, s1_)); e(accw(a(aPARK + names.index(str(reg))), t[7]))
            else: e(valu("v_add_u32", reg, s0_, s1_))
        e(valu("v_lshlrev_b32", t[4], 9, hh)); e(valu("v_add_u32", t[4], t[4], t[0]))
        e(salu("s_lshl_b32", sT0, sKH, 6)); e(valu("v_xor_b32", t[6], sT0, t[3]))
        e(valu("v_add_u32", t[5], t[6], t[4])); e(valu("v_xor_b32", t[6], 64, t[5]))
        e(salu("s_lshl_b32", sT0, sKH, 16)); e(salu("s_lshl_b32", sT1, sKH, 11)); e(salu("s_add_u32", sT1, sT1, TB))
        for j in range(2):
            park(self.tr2[j], sT0, t[5 + j]); park(self.tr2t[j], sT1, t[5 + j])
        if typ == "A":
            e(valu("v_lshlrev_b32", t[4], 16, ub)); e(valu("v_lshlrev_b32", t[5], 15, hh)); e(valu("v_add3_u32", t[4], t[4], t[5], t[0]))
            e(valu("v_xor_b32", t[6], sW, t[2])); e(valu("v_lshlrev_b32", t[6], 5, t[6])); e(valu("v_add_u32", vW16, t[4], t[6]))
            e(salu("s_mul_i32", sT0, sW, 6144, scc_w=False)); e(salu("s_add_u32", sT0, sT0, TB)); e(valu("v_add_u32", vEX, sT0, vL16))
            e(valu("v_lshlrev_b32", t[4], 5, ub)); e(valu("v_add_u32", t[4], t[4], li)); e(valu("v_lshlrev_b32", t[4], 4, t[4]))
            e(valu("v_lshlrev_b32", t[5], 3, hh)); e(smov(sT0, TB)); e(valu("v_add3_u32", vHW, t[4], t[5], sT0))
            q = t[0]; bb = v(t[2].lo, 2)
            e(valu("v_and_b32", q, 31, lane)); e(valu("v_add_u32", t[1], 18, q))
            e(valu("v_mov_b32", t[4], 0x5555)); e(valu("v_mov_b32", t[5], 0))
            e(valu("v_lshlrev_b64", bb, t[1], v(t[4].lo, 2)))
            e(salu("s_or_b32", sT1, sRB, sW)); e(salu("s_cselect_b32", sT1, -1, 0, scc_w=False, scc_r=True))
            e(valu("v_and_b32", bb[0], sT1, bb[0]))
            e(valu("v_lshlrev_b32", t[1], 2, hh))
            e(valu("v_lshrrev_b32", bb[0], t[1], bb[0])); e(valu("v_lshrrev_b32", bb[1], t[1], bb[1]))
            e(valu("v_not_b32", bb[0], bb[0])); e(valu("v_not_b32", bb[1], bb[1]))
            if C.mask_early:
                e(smov(sT0, NEG))
                for r in range(24):
                    rr = r if r < 16 else r - 8
                    tmp = t[6 + (r & 1)]
                    e(valu("v_bfe_i32", tmp, bb[1] if r < 16 else bb[0], 8 * (rr >> 2) + (rr & 3), 1))
                    e(valu("v_and_b32", tmp, sT0, tmp)); e(accw(aMASK[r], tmp))
            else: e(accw(a(196), bb[0])); e(accw(a(197), bb[1]))
            e(valu("v_and_b32", t[2], 1, q)); e(valu("v_lshlrev_b32", t[2], 4, t[2]))
            e(valu("v_mov_b32", t[3], 0xffff)); e(valu("v_lshlrev_b32", vPM, t[2], t[3]))
            e(valu("v_bfe_i32", t[2], q, 4, 1)); e(valu("v_and_b32", vMHC, t[2], vPM)); e(valu("v_xor_b32", vMHP, vMHC, vPM))
        return o

    def scalars(self, typ):
        o = []; e = o.append
        e(salu("s_and_b32", sRT, sJ, 3)); e(salu("s_lshr_b32", sCT, sJ, 2))
        if C.ctrot: e(salu("s_add_u32", sCT, sCT, C.ctrot)); e(salu("s_and_b32", sCT, sCT, 7))
        e(salu("s_lshl_b32", sCT, sCT, 7))
        e(salu("s_lshl_b32", sT0, sXCD, 3)); e(salu("s_lshl_b32", sT1, sRT, 1)); e(salu("s_add_u32", sT0, sT0, sT1))
        e(salu("s_and_b32", sT1, sW, 1)); e(salu("s_add_u32", sT0, sT0, sT1))
        e(salu("s_lshl_b32", sFLR, sT0, 1)); e(salu("s_add_u32", sFLR, sFLR, sKH))
        e(salu("s_mul_i32", sFLR, sFLR, C.flstride, scc_w=False)); e(salu("s_add_u32", sFLR, sFLR, WS_FLAG))
        e(salu("s_mul_i32", sTAG, sT0, 144 * FS, scc_w=False))
        e(salu("s_lshl_b32", sOut, sT0, 15)); e(salu("s_and_b32", sOut, sOut, 0xffff7fff)); e(salu("s_add_u32", sOut, sOut, sCT))
        e(salu("s_lshr_b32", sT0, sM0B, 1)); e(salu("s_add_u32", sOut, sOut, sT0))
        e(salu("s_lshl_b32", sT1, sT1, 13)); e(salu("s_add_u32", sT1, sT1, sCT))
        for c_ in range(3):
            e(salu("s_mul_i32", sT0, sKH, SHIFT[c_] * FS, scc_w=False)); e(salu("s_add_u32", sA2c[c_], sTAG, sT0))
            e(salu("s_mul_i32", sT0, sKH, SHIFT[c_] * 16384, scc_w=False)); e(salu("s_add_u32", sB2c[c_], sT0, sT1))
        e(salu("s_lshl_b32", sM0T, sW, 10)); e(salu("s_add_u32", sM0T, sM0T, TB))
        e(salu("s_lshl_b32", sT0, sRB, 2)); e(salu("s_add_u32", sT0, sT0, sW))
        e(salu("s_mul_i32", sT1, sT0, 144, scc_w=False))
        e(salu("s_add_u32", sSt2, sT1, sT2)); e(salu("s_mul_i32", sSt2, sSt2, FS, scc_w=False))
        if typ == "A":
            e(salu("s_mul_i32", sStF, sT2, FS, scc_w=False)); e(salu("s_add_u32", sStF, sStF, sSt2)); e(salu("s_add_u32", sStF, sStF, 112 * FS))
        else:
            e(salu("s_sub_u32", sStF, sSt2, 8 * FS))
        if C.skip3:
            e(valu("v_add_u32", vA2O, 640, vL16)); e(valu("v_lshrrev_b32", vA2O, 10, vA2O)); e(valu("v_lshl_add_u32", vA2O, vA2O, 7, vL16))
        else: e(valu("v_mov_b32", vA2O, vL16))
        e(salu("s_lshl_b32", sT0, sT0, 1)); e(salu("s_lshr_b32", sT1, sIDX, 2)); e(salu("s_add_u32", sT0, sT0, sT1))
        e(salu("s_mul_i32", sT0, sT0, C.flstride, scc_w=False))
        e(salu("s_and_b32", sT1, sIDX, 3)); e(salu("s_lshl_b32", sT1, sT1, 2))
        e(salu("s_add_u32", sT0, sT0, sT1)); e(salu("s_add_u32", sFLW, sT0, WS_FLAG))
        e(smov(SOUT[2], 0x200000)); e(smov(SOUT[3], 0x20000))
        if C.rot3:
            e(salu("s_lshr_b32", sT0, sB2c0, 4)); e(salu("s_sub_u32", sA2c0, sA2c0, sT0))
            e(salu("s_lshr_b32", sT0, sB2c2, 4)); e(salu("s_sub_u32", sA2c2, sA2c2, sT0))
            if C.rot_ct: e(salu("s_lshr_b32", sT0, sCT, 7)); e(salu("s_add_u32", sRT, sRT, sT0))
            for g in (3, 2, 1, 0):
                e(salu("s_add_u32", sT0, sRT, g)); e(salu("s_and_b32", sT0, sT0, 3)); e(salu("s_lshl_b32", sT0, sT0, 16))
                e(salu("s_add_u32", sG1[g], sB2c2, sT0))
                e(salu("s_mul_i32", sT0, sT0, 3, scc_w=False)); e(salu("s_add_u32", sG3[g], sB2c0, sT0))
        return o

    def warm_ops(self, isA):
        ww = self.ww; nr = 16 if isA else 8
        o = [salu("s_and_b32", sT5, sW, 1 if isA else 3), salu("s_mul_i32", sT5, sT5, nr, scc_w=False),
             salu("s_lshl_b32", sXk, sRB, 5), salu("s_add_u32", sT5, sT5, sXk), salu("s_mul_i32", sT5, sT5, 3584, scc_w=False),
             salu("s_lshl_b32", sXk, sT2, 5), salu("s_add_u32", sT5, sT5, sXk)]
        o += [self.touch(ww[2], SWH, sT5)] if isA else [self.touch(ww[2], SWG_, sT5), self.touch(ww[2], SWU, sT5, 1024)]
        fl = [self.touch(ww[0], SWS, sFLR, fl="sc1")]
        if C.warm_byB:
            if isA: return [[], fl, o]
            o1 = [salu("s_lshr_b32", sXk, sWG, 7), salu("s_lshl_b32", sXk, sXk, 6), salu("s_and_b32", sT5, sWG, 63), salu("s_add_u32", sXk, sXk, sT5),
                  salu("s_lshl_b32", sXk, sXk, 2), salu("s_add_u32", sXk, sXk, sW), salu("s_mul_i32", sT5, sXk, 28 * 128, scc_w=False),
                  self.touch(ww[0], SWD, sT5), self.touch(ww[0], SWD, sT5, 14 * 128)]
            o2 = [salu("s_lshl_b32", sT5, sXk, 10), self.touch(ww[1], SWO, sT5), self.touch(ww[1], SWO, sT5, 512)]
            return [o1, o2 + fl, o]
        if not C.warm_byA:
            o1 = [salu("s_lshl_b32", sXk, sWG, 2), salu("s_add_u32", sXk, sXk, sW), salu("s_mul_i32", sT5, sXk, 14 * 128, scc_w=False),
                  self.touch(ww[0], SWD, sT5)]
            o2 = [salu("s_lshl_b32", sT5, sXk, 9), self.touch(ww[1], SWO, sT5)]
            return [[o1, o2 + fl, o], [o1 + o2 + fl, o, []], [o + o1, o2 + fl, []], [o1 + o2 + fl + o, [], []]][C.warm_mode]
        if not isA: return [[], fl + o]
        o1 = [salu("s_lshr_b32", sXk, sWG, 7), salu("s_lshl_b32", sXk, sXk, 6), salu("s_and_b32", sT5, sWG, 63), salu("s_add_u32", sXk, sXk, sT5),
              salu("s_lshl_b32", sXk, sXk, 2), salu("s_add_u32", sXk, sXk, sW), salu("s_mul_i32", sT5, sXk, 28 * 128, scc_w=False),
              self.touch(ww[0], SWD, sT5), self.touch(ww[0], SWD, sT5, 14 * 128)]
        o2 = [salu("s_lshl_b32", sT5, sXk, 10), self.touch(ww[1], SWO, sT5), self.touch(ww[1], SWO, sT5, 512)]
        return [o1, o2 + fl + o]

    def b2_soff(self, n, dst):
        ks, cls, st = step_info(n)
        if cls == 1 or not C.rot3: return salu("s_add_u32", dst, sB2c[cls], (ks - 112 if cls == 2 else ks) * 16384)
        if cls == 2: g = (ks - 112) >> 2; return salu("s_add_u32", dst, sG1[g], (ks - 112 - 4 * g) * 16384)
        g = (ks - 16) // 12; return salu("s_add_u32", dst, sG3[g], (ks - 12 * g) * 16384)

    def code_touch(self):
        E = self.E
        if not C.touch_code: return
        t = v(201)
        E.line(f"s_getpc_b64 {sPC}")
        pcl = self.lab("pc"); E.label(pcl)
        if C.code_split:
            E.emit(salu("s_and_b32", sT0, sJ, 15)); E.emit(salu("s_lshl_b32", sT0, sT0, 12))
            E.emit(valu("v_lshrrev_b32", t, 3, v(0))); E.emit(valu("v_and_b32", t, 0x18, t))
            E.emit(valu("v_and_or_b32", t, v(0), 7, t)); E.emit(valu("v_lshl_add_u32", t, t, 7, sT0))
        else:
            E.emit(salu("s_and_b32", sT0, sJ, 1)); E.emit(salu("s_lshl_b32", sT0, sT0, 15))
            E.emit(valu("v_lshlrev_b32", t, 7, v(0))); E.emit(valu("v_add_u32", t, sT0, t))
        E.line(f"s_mov_b32 {sT0}, L_code_end-{pcl}-4")
        E.emit(valu("v_min_u32", t, sT0, t))
        E.emit(I(f"global_load_dword {aDUM0}, {t}, {sPC}", "vml", t.ids(), ()))

    def finish_stats(self, sm, sq, rinv, nb, t0, t1):
        e = self.E.emit
        e(valu("v_mul_f32", sm, sC512, sm))
        e(valu("v_mul_f32", t0, sm, sm))
        e(I(f"v_fma_f32 {sq}, {sq}, {sC512}, -{t0}", "valu", sq.ids() | t0.ids() | sC512.ids(), sq.ids()))
        e(valu("v_max_f32", sq, 0, sq))
        e(valu("v_cvt_pk_bf16_f32", t0, sm, sq))
        e(valu("v_and_b32", t1, sHI, t0))
        e(valu("v_add_f32", t1, 0x3727c5ac, t1))
        e(valu("v_cvt_pk_bf16_f32", t1, t1, t1)); e(valu("v_and_b32", t1, sHI, t1))
        e(valu("v_sqrt_f32", t1, t1))
        e(valu("v_cvt_pk_bf16_f32", t1, t1, t1)); e(valu("v_and_b32", t1, sHI, t1))
        e(valu("v_rcp_f32", rinv, t1))
        e(valu("v_lshlrev_b32", t0, 16, t0))
        e(I(f"v_mul_f32 {nb}, -{t0}, {rinv}", "valu", t0.ids() | rinv.ids(), nb.ids()))

    def norm_ops(self, reg, rinv, nb, k0=0):
        ops = []
        for d in range(4):
            lo = NT[(2 * (k0 + d)) % 8]; hi = NT[(2 * (k0 + d) + 1) % 8]; x = reg[d]
            ops += [valu("v_lshlrev_b32", lo, 16, x), valu("v_and_b32", hi, sHI, x),
                    valu("v_fma_f32", lo, lo, rinv, nb), valu("v_fma_f32", hi, hi, rinv, nb),
                    valu("v_cvt_pk_bf16_f32", x, lo, hi)]
        return ops

    def dots(self, reg, acc):
        ops = []
        for d in range(reg.n):
            ops.append(valu("v_dot2_f32_bf16", acc[d & 1], reg[d], sONE, acc[d & 1]))
            ops.append(valu("v_dot2_f32_bf16", acc[2 + (d & 1)], reg[d], reg[d], acc[2 + (d & 1)]))
        return ops

    def wrap(self, reg, q, span):
        return glue([scmp("s_cmp_eq_u32", sROT, 4 - q), salu("s_cselect_b32", sS2b, span, 0, scc_w=False, scc_r=True),
                     salu("s_sub_u32", reg, reg, sS2b)])

    def chunks(self, obj):
        k, j = obj
        if self.typ == "A":
            if k == "s1": return list(range(3 * (j % 7), 3 * (j % 7) + 3))
            return [6 + 2 * j, 7 + 2 * j]
        jj = j if k == "s1" else 16 + j
        return list(range(4 * (jj % 6), 4 * (jj % 6) + 4))

    def slab_dma(self, obj):
        L = self.L; k, j = obj; ch = self.chunks(obj); fl = C.w_fl
        def f(E): L.alloc(obj, ch)
        if C.dbg_w and (k == "s2" or j >= 6): return [f]
        ops = [f, salu("s_add_u32", "m0", sM0B, 1024 * ch[0])]
        if k == "s1":
            st = 3072 if self.typ == "A" else 3584
            if self.typ == "A": ops += [dma(vH, SQKV, sS1, 1024 * u, obj, fl) for u in range(3)]
            else: ops += [dma(vG, SWG_, sS1, 0, obj, fl), dma(vU, SWU, sS1, 1024, obj, fl), dma(vG, SWG2, sS1, 2048, obj, fl), dma(vU, SWU2, sS1, 3072, obj, fl)]
            if j < 15: ops.append(salu("s_add_u32", sS1, sS1, 32 * st))
            if j % 4 == 3 and j < 15 and C.rot: ops.append(self.wrap(sS1, (j + 1) // 4, 512 * st))
        else:
            if self.typ == "A":
                ops += [salu("s_add_u32", sS2b, sS2, 16 * 3584 - 1024), dma(vG, SWH, sS2, 0, obj, fl), dma(vG, SWH, sS2b, 1024, obj, fl)]
            else:
                ops += [salu("s_add_u32", sS2b, sS2, 16 * 3584 - 2048), dma(vG, SWG_, sS2, 0, obj, fl), dma(vU, SWU, sS2, 1024, obj, fl),
                        dma(vG, SWG_, sS2b, 2048, obj, fl), dma(vU, SWU, sS2b, 3072, obj, fl)]
            if j < 7: ops.append(salu("s_add_u32", sS2, sS2, 64 * 3584))
            if j % 2 == 1 and j < 7 and C.rot: ops.append(self.wrap(sS2, (j + 1) // 2, 512 * 3584))
        return ops

    def b2_chunk(self, n):
        R_ = lambda lo, hi: list(range(lo, hi))
        if self.typ == "A":
            tab = R_(22, 32) + R_(22, 32) + R_(0, 12) + R_(32, 40) + R_(12, 22) + R_(22, 32) + R_(0, 12)
        else:
            tab = R_(24, 40) + R_(24, 40) + R_(0, 24) + R_(24, 32) + R_(0, 8)
        return tab[n]

    def b2_dma(self, n):
        L = self.L
        ks, cls, _ = step_info(n)
        ch = self.b2_chunk(n)
        def f(E): L.alloc(("b2", n), [ch])
        if C.dbg_b2 and n >= C.dbg_b2: return [f]
        return [f, salu("s_add_u32", "m0", sM0B, 1024 * ch) if ch < 32 else salu("s_add_u32", "m0", sM0T, 4096 * (ch - 32)),
                self.b2_soff(n, sB2s),
                dma(vB2, SWO if cls == 2 else SWD, sB2s, 0, ("b2", n), C.b2_fl)]

    def bar(self, cover, m_done, lds_all=False, lds_tags=()):
        L = self.L
        def f(E):
            E.wait_tags(lds=list(lds_tags) + list(cover), vm=cover)
            if lds_all: E.wait_all_lds()
            if not (C.dbg_bar and cover and cover[0][0] == "b2"): E.barrier()
            L.visible |= set(cover); L.bar_m = m_done
        return f

    def acc2(self, t): return ACC2(t) if self.typ == "A" else ACC1(t)

    def acc1(self, t): return ACC1(t) if t < 6 else a(112 + 16 * (t - 6), 16)

    def seq(self, typ):
        out = []
        order = [2, 3, 4, 5, 0, 1] if typ == "A" else list(range(8))
        k1 = self.k1
        s1 = [(ks, t) for ks in range(k1) for t in order] + [(ks, t) for t in order for ks in range(k1, 32)]
        for ks, t in s1:
            obj = ("s1", ks // 2); base = (ks & 1) * 32768 + self.chunks(obj)[0] * 1024
            if True:
                if typ == "A":
                    out.append(dict(acc=ACC1(t), x=X(ks), sw=(t >= 4), obj=obj, addr=vTR[4 + (t & 1)],
                                    imm=base + (t >> 1) * 1024, st=512, first=(ks == 0)))
                else:
                    out.append(dict(acc=self.acc1(t), x=X(ks), sw=False, obj=obj, addr=vTR[t & 3], imm=base + (t >> 2) * 2048, st=512, first=(ks == 0)))
        nt = self.nt2
        k0 = self.k0
        s2 = [(ks, t) for ks in range(k0) for t in range(nt)] + [(ks, t) for t in range(nt) for ks in range(k0, 32)]
        for ks, t in s2:
            obj = ("s2", ks // 4); k = ks & 3
            out.append(dict(acc=self.acc2(t), x=X(ks), sw=False, obj=obj, addr=vTR[t],
                            imm=(k >> 1) * 32768 + self.chunks(obj)[0] * 1024 + (k & 1) * (1024 if typ == "A" else 2048),
                            st=256 if typ == "A" else 512, first=(ks == 0)))
        nl = 72 - C.lastk
        p2 = [(n, j) for n in range(nl) for j in ((1, 0) if n == 55 else (0, 1))] + [(n, j) for j in (1, 0) for n in range(nl, 72)]
        for n, j in p2:
            iso = step_info(n)[1] == 2
            if True:
                ch = self.b2_chunk(n)
                out.append(dict(acc=(ACCS if iso else ACCD)[j], x=n, sw=False, obj=("b2", n),
                                addr=self.tr2[j] if ch < 32 else self.tr2t[j], j=j, imm=ch * 1024 if ch < 32 else (ch - 32) * 4096,
                                st=32768 if ch < 32 else 1024, first=(n in (0, 40))))
        for m, o in enumerate(out): self.L.last_use[o["obj"]] = m
        return out

    def wreads(self, m):
        o = self.SEQ[m]; L = self.L
        if o["obj"][0] == "b2" and o["obj"][1] < self.nF: return []
        if C.abl_p2 and o["obj"][0] == "b2" and (m & 1): return []
        if C.abl_tr and m >= 24 and (m % C.abl_tr) and (o["obj"][0] != "b2" or C.abl_tr2): return []
        def f(E): assert o["obj"] in L.visible, ("read of invisible", m, o["obj"])
        return [f, ds_tr(WF(m).sub(0, 2), o["addr"], o["imm"]), ds_tr(WF(m).sub(2, 2), o["addr"], o["imm"] + o["st"])]

    def main(self, m):
        o = self.SEQ[m]
        if isinstance(o["x"], int):
            def mk(peek):
                if peek and o["x"] not in self.a2slot: return None
                w = self.frag[(o["x"], o["j"])]["r"] if o["x"] < self.nF else WF(m)
                return mfma(o["acc"], w, self.a2slot[o["x"]]["r"], 0 if o["first"] else o["acc"])
            mn = dict(pre=[], m=mk, fix=[])
            if o["x"] < self.nF: mn["fix"].append(lambda E: self.pool.give(E, self.frag[(o["x"], o["j"])]))
            if m == self.L.last_use[o["obj"]]: mn["fix"].append(lambda E: self.pool.give(E, self.a2slot[o["x"]]))
        else:
            A_, B_ = (o["x"], WF(m)) if o["sw"] else (WF(m), o["x"])
            mn = dict(pre=[], m=mfma(o["acc"], A_, B_, 0 if o["first"] else o["acc"]), fix=[])
        if m + C.D < len(self.SEQ): mn["fix"] += self.wreads(m + C.D)
        return mn

    def spin_check_tag(self):
        def f(E):
            ok = self.lab("tagok"); sp = self.lab("tagspin")
            E.emit(rfl(sTAG, vTAG))
            E.emit(scmp("s_cmp_eq_u32", sTAG, 0))
            E.line(f"s_cbranch_scc1 {sp}")
            E.label(ok)
            self.cold += [f"{sp}:", f"    s_mov_b32 {sSPIN}, 0", f"{sp}_l:",
                          f"    buffer_load_dword {vTAG}, off, {SDBG}, 0 sc1", f"    s_add_u32 {sSPIN}, {sSPIN}, 1",
                          "    s_waitcnt vmcnt(0)", f"    v_readfirstlane_b32 {sTAG}, {vTAG}",
                          f"    s_cmp_ge_u32 {sSPIN}, {C.spin_max}", f"    s_cbranch_scc1 {ok}",
                          f"    s_cmp_eq_u32 {sTAG}, 0", f"    s_cbranch_scc1 {sp}_l", f"    s_branch {ok}"]
        return f

    def poll_load(self, stage):
        return vload(self.vpl[stage], vP4, SWS, sFLR, FLO[stage], fl="sc1")

    def poll2_load(self, stage):
        i = vload(vSP[0], vP4, SWS, sFLR, FLO[stage], tag=("p2", stage), fl="sc1"); i.w = set()
        return i

    def gate(self, stage):
        def f(E):
            ok = self.lab("gateok"); sp = self.lab("gatespin")
            self.stamp(f"g{stage}a")
            E.emit(vcmp("v_cmp_ne_u32", "vcc", sTAG, self.vpl[stage]))
            if not C.dbg_gate: E.line(f"s_cbranch_vccnz {sp}")
            E.label(ok)
            ld = lambda r: f"    buffer_load_dword {r}, {vP4}, {SWS}, {sFLR} offen offset:{FLO[stage]} sc1"
            regs = [self.vpl[stage], vSP[0], vSP[1]][:C.npoll]; k = len(regs)
            k2 = [n for n, x in enumerate(E.vq) if x[2] == ("p2", stage)]
            second = []
            if C.poll2 and stage in self.has2:
                n2 = sum(1 for x in E.vq[k2[0] + 1:] if x[3]) if k2 else 62
                second = [f"    s_waitcnt vmcnt({min(n2, 62)})", f"    v_cmp_ne_u32 vcc, {sTAG}, {vSP[0]}", f"    s_cbranch_vccz {ok}"]
            self.cold += [f"{sp}:"] + second + [f"    s_mov_b32 {sSPIN}, 0"] + [x for r in regs[:-1] for x in (ld(r), "    s_nop 15", "    s_nop 15")] + [f"{sp}_l:"]
            for q_ in range(k):
                self.cold += [ld(regs[(q_ + k - 1) % k]), f"    s_waitcnt vmcnt({k - 1})", f"    v_cmp_ne_u32 vcc, {sTAG}, {regs[q_]}", f"    s_cbranch_vccz {ok}"]
            self.cold += [f"    s_add_u32 {sSPIN}, {sSPIN}, 1", f"    s_cmp_ge_u32 {sSPIN}, {C.spin_max}", f"    s_cbranch_scc0 {sp}_l", f"    s_branch {ok}"]
            self.stamp(f"g{stage}b")
        return f

    def flag_store(self, stage, tags):
        def f(E):
            self.stamp(f"f{stage}a")
            E.wait_tags(vm=tags)
            self.stamp(f"f{stage}b")
            E.emit(vstore(vTAG, None, SWS, sFLW, FLO[stage], fl="sc1"))
        return f

    def a2_load(self, n):
        ks, cls, _ = step_info(n)
        o = []
        if self.a2base is None or self.a2base[0] != cls or not (0 <= (ks - self.a2base[1]) * FS < 4096):
            self.a2base = (cls, ks)
            if cls == 1 or not C.rot3: o.append(salu("s_add_u32", sA2s, sA2c[cls], ks * FS))
            else:
                assert FS == 1024
                g = (ks - 112) >> 2 if cls == 2 else (ks - 16) // 12
                o += [salu("s_lshr_b32", sA2s, (sG1 if cls == 2 else sG3)[g], 4), salu("s_add_u32", sA2s, sA2s, sA2c[cls]),
                      salu("s_add_u32", sA2s, sA2s, (ks - 4 * g if cls == 2 else ks - 12 * g) * 1024)]
        imm = (ks - self.a2base[1]) * FS
        kind = "AE" if n < 40 else "A"
        def f(E):
            x = self.a2slot[n] = self.pool.take(E, kind)
            if not (C.dbg_a2 and n >= C.dbg_a2): E.emit(vload(x["r"], vA2O, SWS, sA2s, imm, fl=C.a2_fl))
        f.vm = True; f.ready = lambda E: self.pool.find(E, kind) is not None
        return o + [f]

    def pre_read(self, n):
        out = []
        for m in (self.M3 + 2 * n, self.M3 + 2 * n + 1):
            o = self.SEQ[m]
            def f(E, o=o):
                assert o["obj"] in self.L.visible
                x = self.frag[(n, o["j"])] = self.pool.take(E, "R")
                E.emit(ds_tr(x["r"].sub(0, 2), o["addr"], o["imm"], tag=("fr", n)))
                E.emit(ds_tr(x["r"].sub(2, 2), o["addr"], o["imm"] + o["st"], tag=("fr", n)))
            f.slots = 2
            out.append(f)
        return out

    def raw_load(self, n):
        ks, cls, _ = step_info(n)
        def f(E):
            x = self.rawslot[n] = self.pool.take(E, "R")
            E.emit(vload(x["r"], vB2, SWO if cls == 2 else SWD, sXo, 0, fl=C.b2_fl))
        f.vm = True; f.ready = lambda E: self.pool.find(E, "R") is not None
        return [self.b2_soff(n, sXo), f]

    def a2_store(self, reg, sbase, t, tag):
        st = vstore(reg, vA2O, SWS, sStH if t * FS >= 4096 else sbase, 0 if t * FS >= 4096 else t * FS, tag, C.st_fl)
        if t * FS >= 4096: st.pre = salu("s_add_u32", sStH, sbase, t * FS)
        return st

    def h_epilogue(self, T, sbase, imm, tag):
        ops = [valu("v_mul_f32", T[r], T[r], T[r + 8]) for r in range(8)]
        ops += [valu("v_cvt_pk_bf16_f32", T[r], T[2 * r], T[2 * r + 1]) for r in range(4)]
        ops.append(self.a2_store(T.sub(0, 4), sbase, imm, tag))
        return ops

    def body(self, typ):
        E = self.E; e = E.emit
        self.L = L = LDSMap()
        E.m0_owner = None; E.fifo = None
        self.typ = typ
        isA = typ == "A"
        nt1, nt2 = (6, 2) if isA else (8, 4)
        self.nt2 = nt2; self.k0 = k0 = 24 if isA else 20
        self.k1 = k1 = 28 if isA else C.k1B
        M2 = self.M2 = 32 * nt1; M3 = self.M3 = M2 + 32 * nt2
        self.nF = 10 if isA else 16
        self.tr2 = [vTR[2], vTR[3]] if isA else [vEX, vHW]
        self.tr2t = vTR2T if isA else [vPM, vMHC]
        self.parked = self.tr2 + self.tr2t if isA else []
        self.frag = {}
        self.SEQ = self.seq(typ)
        self.a2base = None
        self.cold = []; self.has2 = set()
        self.lane = v(200); self.vx = [v(204 + g) for g in range(4)]; self.hs = [v(196), v(197)]
        self.xa = xa = [v(216 + q) for q in range(4)]; self.acc = acc = [v(220 + q) for q in range(4)]
        self.ha = ha = [v(144 + i) for i in range(5)]; self.hacc = hacc = [v(149 + i) for i in range(4)]
        self.ww = [vU, vTR[2], vTR[3]] if isA else [vH, vW16, vHX]
        self.vpl = vPL + [self.ww[0]]
        self.stamp("t0")
        if C.stamps: E.line("s_memrealtime s[0:1]")
        first = self.setup_first(typ)
        rest = self.consts(typ)
        k1_ = max(self.ncrit, min(C.npre, len(first)))
        while k1_ < len(first) and SCC in first[k1_].r: k1_ += 1
        E.emits(first[:k1_]); first2 = first[k1_:]
        k = max(0, C.npre - len(first))
        while k < len(rest) and SCC in rest[k].r: k += 1
        E.emits(rest[:k]); rest = rest[k:]
        E.line("s_waitcnt lgkmcnt(0)")
        self.stamp("karg")
        def inplace(d, size, other, shift=0):
            o = []
            if other is SWS and C.wsoff:
                return [glue([salu("s_add_u32", other[0], d[2], C.wsoff << 20), salu("s_addc_u32", other[1], d[3], 0, scc_r=True)]),
                        smov(d[2], size), smov(d[3], 0x20000)]
            if other is not None and shift: o += [salu("s_sub_u32", other[0], d[2], shift), salu("s_subb_u32", other[1], d[3], 0, scc_r=True)]
            elif other is not None: o += [smov(other[0], d[2]), smov(other[1], d[3])]
            return o + [smov(d[2], size), smov(d[3], 0x20000)]
        E.emits(inplace(SX, 0x200000, SQKV if isA or C.qkv_byB else None))
        if isA:
            for it in inplace(SDBG, 256, SWS): run_item(E, it)
        def xd(sl):
            o = [salu("s_add_u32", "m0", sM0B, 4096 * sl), salu("s_add_u32", sA2s, sXo, sXk)]
            o += [dma(self.vx[g], SX, sA2s, 1024 * g, tag=("x", sl), fl=C.x_fl) for g in range(4)]
            if sl < 7: o += [salu("s_add_u32", sXk, sXk, 128), salu("s_and_b32", sXk, sXk, 1023)]
            return o
        if isA:
            for ee in range(2):
                for g in range(2):
                    e(salu("s_add_u32", "m0", sS2b, TB + 2048 * ee + 1024 * g))
                    e(dma(self.hs[g], SX, sHo, 0, tag="halo", fl=C.x_fl))
                if ee == 0: e(salu("s_add_u32", sHo, sHo, 128))
            lskip = self.lab("noep")
            e(salu("s_or_b32", sSPIN, sWG, sW))
            E.line(f"s_cbranch_scc1 {lskip}")
            E.line(f"s_mov_b32 {sSPIN}, {WS_EPOCH}")
            E.line(f"buffer_load_dword {vPOLL}, off, {SWS}, {sSPIN} sc1")
            E.label(lskip)
        if C.dbg_jit & 8:
            l_ = self.lab("jit"); E.line(f"s_and_b32 {sSPIN}, {sWG}, 63"); E.line(f"s_cbranch_scc1 {l_}")
            for _ in range(6): E.line("s_sleep 127")
            E.label(l_)
        E.emits(xd(0)); E.emits(xd(1))
        E.emits(first2)
        nx = 2
        if isA:
            if C.touch_w0 and not C.qkv_byB: e(self.touch(vTW, SQKV, sT5))
            e(scmp("s_cmp_ge_u32", sW, 2))
            e(salu("s_cselect_b32", SWH[0], SWG_[2], SWG_[0], scc_w=False, scc_r=True))
            e(salu("s_cselect_b32", SWH[1], SWG_[3], SWG_[1], scc_w=False, scc_r=True))
        else:
            if C.touch_w0 and C.qkv_byB: e(self.touch(vMHP, SQKV, sXs))
            E.emits([salu("s_sub_u32", SWU2[0], SWG_[2], 2944), salu("s_subb_u32", SWU2[1], SWG_[3], 0, scc_r=True),
                     salu("s_sub_u32", SWG2[0], SWG_[0], 1920), salu("s_subb_u32", SWG2[1], SWG_[1], 0, scc_r=True)])
            E.emits(inplace(SWG_, 512 * 3584, SWU, 1024))
            if C.touch_w0: e(self.touch(vTW, SWG_, sT5)); e(self.touch(vTW, SWU, sT5, 1024))
            if C.x2early: E.emits(xd(2)); nx = 3
        self.stamp("issued")
        late_srd = ([] if isA else inplace(SDBG, 256, SWS)) + inplace(SWD, 1792 * 1024, SOUT) + inplace(SWO, 512 * 1024, None)
        E.emits(rest)
        if C.stamps: E.line("v_accvgpr_write_b32 a198, s0")
        self.stamp("rest")
        if C.pads:
            E.line("s_mov_b64 exec, 0")
            for w_ in (1, 2, 3):
                E.line(f"s_cmp_eq_u32 {sW}, {w_}"); E.line(f"s_cbranch_scc1 L_pad{typ}_{w_}")
            E.line(f"s_branch L_pad{typ}_0")
            E.label(f"L_back{typ}")
            E.line("s_mov_b64 exec, -1")
            E.out.append(f";PADS_FROM {typ}")
        self.stamp("pads")
        if nx == 2 and not isA: E.emits(xd(2)); nx = 3
        if C.scal_early:
            for it in late_srd + self.scalars(typ): run_item(E, it)
        if isA:
            hx = v(128, 16); pr = v(154, 2); tp = v(156, 2); pp = v(158, 8)
            E.wait_tags(vm=["halo"])
            self.epoch_publish()
            for ee in range(2):
                for b in range(2): e(ds_rd(hx.sub(4 * (2 * ee + b), 4), ha[b], 2048 * ee))
            E.emits(xd(2)); nx = 3
            E.emits(self.dots(hx, hacc))
            e(valu("v_add_f32", pr[0], hacc[0], hacc[1])); e(valu("v_add_f32", pr[1], hacc[2], hacc[3]))
            for sw in (swap16, swap32):
                e(valu("v_mov_b32", tp[0], pr[0])); e(valu("v_mov_b32", tp[1], pr[1]))
                e(sw(pr[0], tp[0])); e(sw(pr[1], tp[1]))
                e(valu("v_add_f32", pr[0], pr[0], tp[0])); e(valu("v_add_f32", pr[1], pr[1], tp[1]))
            e(ds_wr(ha[3], pr, 0, tag="hp"))
        def xdots(k):
            E.emits(self.dots(v(16 * k, 16), acc)); L.xread.add(k)
        for sl in range(9):
            early = sl >= C.dots_first
            if sl > 0 and early: xdots(sl - 1)
            if sl < 8:
                E.wait_tags(vm=[("x", sl)])
                self.stamp(f"x{sl}")
                for q in range(4): e(ds_rd(X(4 * sl + q), xa[q], 4096 * sl))
                if nx < 8: E.emits(xd(nx)); nx += 1
            if isA and sl == 0:
                E.wait_tags(lds=["hp"]); E.barrier()
                for w_ in range(4): e(ds_rd(pp.sub(2 * w_, 2), ha[2], 4096 * w_))
            if isA and sl == (1 if C.hn_at else 0):
                e(valu("v_add_f32", pr[0], pp[0], pp[2])); e(valu("v_add_f32", pr[1], pp[1], pp[3]))
                e(valu("v_add_f32", tp[0], pp[4], pp[6])); e(valu("v_add_f32", tp[1], pp[5], pp[7]))
                e(valu("v_add_f32", pr[0], pr[0], tp[0])); e(valu("v_add_f32", pr[1], pr[1], tp[1]))
                self.finish_stats(pr[0], pr[1], pp[0], pp[1], tp[0], tp[1])
            for f_ in (range(4) if (C.hn_at == 0 and sl == 0) else [sl - C.hn_at] if (C.hn_at and C.hn_at <= sl < C.hn_at + 4) else []):
                if not isA: break
                E.emits(self.norm_ops(hx.sub(4 * f_, 4), pp[0], pp[1]))
                e(ds_wr(ha[4], hx.sub(4 * f_, 4), 1024 * f_, tag="hxw"))
            if sl > 0 and not early: xdots(sl - 1)
            for j in {C.w0at: [0], C.w0at + 1: [1], 6: [2], 7: [3] if C.w3early or isA else []}.get(sl, []):
                for it in self.slab_dma(("s1", j)): run_item(E, it)
        self.stamp("xdone")
        npn = C.npre_normA if isA else C.npre_norm
        def bx():
            self.bar([("s1", 0), ("s1", 1)], -1, lds_tags=["hxw"])(E)
            self.stamp("bx")
            for m in range(C.D):
                for it in self.wreads(m): run_item(E, it)
        e(valu("v_add_f32", acc[0], acc[0], acc[1])); e(valu("v_add_f32", acc[2], acc[2], acc[3]))
        e(valu("v_mov_b32", acc[1], acc[0])); e(valu("v_mov_b32", acc[3], acc[2]))
        e(swap32(acc[0], acc[1])); e(swap32(acc[2], acc[3]))
        e(valu("v_add_f32", acc[0], acc[0], acc[1])); e(valu("v_add_f32", acc[2], acc[2], acc[3]))
        self.finish_stats(acc[0], acc[2], vRINV, vNB, acc[1], acc[3])
        for ks in range(npn - 1): E.emits(self.norm_ops(X(ks), vRINV, vNB))
        bx()
        E.emits(self.norm_ops(X(npn - 1), vRINV, vNB))
        self.stamp("s1"); self.stamp("b0")
        def jitter(E, mask, n):
            l = self.lab("jit")
            E.line(f"s_mul_i32 {sSPIN}, {sWG}, 5"); E.line(f"s_add_u32 {sSPIN}, {sSPIN}, {sW}"); E.line(f"s_and_b32 {sSPIN}, {sSPIN}, {mask}")
            E.line(f"s_cbranch_scc1 {l}")
            for _ in range(n): E.line("s_sleep 127")
            E.label(l)
        if C.dbg_jit & 1: jitter(E, 7, 3)

        mains = [self.main(m) for m in range(len(self.SEQ))]
        E.gap = 0; E.fifo = Fifo(); E.fifo.p = E.pos; E.fifo.n = 4
        D = C.D
        qN = Q("norm"); qD = Q("dma"); qH = Q("halo"); qB = Q("b2"); qW = Q("raw", hard=False); qU = Q("dump", vm_age=0)
        qE = Q("epi"); qE2 = Q("epi2", hard=False, top=True); qR = Q("restore"); qFl = Q("flag", top=True)
        self.pool = pool = Pool(); self.a2slot = {}; self.rawslot = {}; self.mark = {}
        started = lambda q: (len(q.items) > 0 and q.empty())
        pool.add(a(200, 56), "AR")
        pool.add(a(192, 4), "A", lambda: started(qR))
        if isA:
            pool.add(a(80, 32), "AR")
            pool.add(a(112, 24), "AR", (lambda: self.mark.get("masks")) if C.mask_early else None)
            pool.add(a(160, 32), "A", lambda: self.mark.get("masks"))
            pool.add(a(48, 32), "A", lambda: started(qE2))
            pool.add(a(136, 24), "A", lambda: started(qE)); pool.add(v(128, 96), "A", lambda: started(qE))
            rawl = list(range(40, 72))
        else:
            pool.add(a(144, 16), "AR"); pool.add(a(160, 32), "A")
            pool.add(a(48, 64), "AR")
            pool.add(a(112, 32), "AR", lambda: started(qE)); pool.add(v(192, 32), "AR", lambda: started(qE))
            pool.add(v(128, 64), "A", lambda: started(qE2))
            for k in list(range(8)) + [12, 13, 14, 15]: pool.add(X(k), "E", lambda k=k: E.gap > M2 + 4 * k + 3)
            rawl = list(range(44, 72))
        rawit = {}
        if C.raw:
            for n in rawl[:C.nrawA if isA else C.nrawB]:
                rawit[n] = self.raw_load(n)
                qW.adds(rawit[n], earliest=C.raw0A if isA else C.raw0B, deadline=M3 + 16 * (n // 8) - C.D - 40)
        def place(n):
            def f(E):
                need = M3 + 16 * (n // 8) - C.D
                if n in self.rawslot:
                    ch = self.b2_chunk(n); x = self.rawslot[n]
                    qU.add(lambda E: L.alloc(("b2", n), [ch]), deadline=need - 3)
                    if not C.dbg_dump: qU.add(ds_wr(vWQ, x["r"], 1024 * ch, tag=("b2", n)), deadline=need - 3)
                    qU.add(lambda E: pool.give(E, x), deadline=need - 3)
                else:
                    for it in rawit.get(n, []): it.dead = True
                    b2_add(n, E.gap)
            return f
        qG = Q("frag")
        def b2_add(n, gap, need=None):
            need = need or M3 + 16 * (n // 8) - D
            qB.adds(self.b2_dma(n), earliest=gap, deadline=need - C.b2lead - 2 * (7 - n % 8), hard=False)
            qB.add(lambda E: None, earliest=gap, deadline=max(need - 10, gap + 2))
        def frag_plan(g, step_, groups):
            b0 = C.b2gA if isA else C.b2gB
            cover = []; tags = []; gap = step_ * g - D
            for k, pg in enumerate(groups):
                if g == b0 + k:
                    for n in pg: b2_add(n, gap + 4, gap + 2 * step_)
                if g == b0 + k + 2:
                    cover += [("b2", n) for n in pg]
                    for n in pg:
                        qG.adds(self.pre_read(n), earliest=gap, deadline=gap + step_ - 3); L.last_use[("b2", n)] = gap + step_ - 1
                if g == b0 + k + 3:
                    tags += [("fr", n) for n in pg]
                    for n in pg: b2_add(n + self.nF, gap)
            return cover, tags
        def barrier(gap, cover, name, **kw):
            mains[gap]["npre"] = 2
            mains[gap]["pre"] += [lambda E: self.stamp(name + "a"), self.bar(cover, gap - 1, **kw), lambda E: self.stamp(name)]
        for ks in range(npn, 32 if not C.abl_norm else npn + 1):
            qN.adds(self.norm_ops(X(ks), vRINV, vNB, ks * 4), earliest=max(0, nt1 * (ks - C.nahead) - 1),
                    deadline=nt1 * ks if ks < k1 else nt1 * k1 + ks - k1)
        for j in (range(4, 7) if isA else range(4 if C.w3early else 3, 5)): qD.adds(self.slab_dma(("s1", j)), earliest=0, deadline=17 if isA else 20)
        qK = Q("scal")
        qK.adds(late_srd if not C.scal_early else [], earliest=0, deadline=(24 if isA else 32) - D)
        sc_ = self.scalars(typ) if not C.scal_early else [smov(sT0, 0)]
        for q_, it in enumerate(sc_): qK.add(it, earliest=0, deadline=int(10 + C.scal_span * q_ / len(sc_)), hard=False)
        qK.add(lambda E: None, deadline=10 + C.scal_span + 8)
        L.last_use[("T",)] = M2 + 40 if isA else -1
        tagload = vload(vTAG, None, SDBG, 0, fl="sc1")
        warm = []
        if C.touch_b2:
            tb = self.ww[0]
            warm = [[valu("v_lshlrev_b32", tb, 6, vL16), valu("v_and_b32", tb, 0x7c00, tb), valu("v_add_u32", tb, sCT, tb),
                     salu("s_lshl_b32", sRT, sRT, 2), salu("s_add_u32", sRT, sRT, sW),
                     salu("s_lshl_b32", sT5, sRT, 14), self.touch(tb, SWD, sT5)],
                    [salu("s_lshr_b32", sT5, sRT, 1), salu("s_lshl_b32", sT5, sT5, 2), salu("s_add_u32", sT5, sT5, sRT),
                     salu("s_add_u32", sT5, sT5, 12), salu("s_lshl_b32", sT5, sT5, 15), self.touch(tb, SWD, sT5)],
                    [salu("s_lshl_b32", sT5, sRT, 15), self.touch(tb, SWO, sT5)]]
        def slab(jj): return ("s1", jj) if jj < 16 else ("s2", jj - 16)
        if isA:
            for g in range(1, 9):
                gap = 24 * g - D
                cv, tg = frag_plan(g, 24, [range(0, 5), range(5, 10)])
                barrier(gap, ([("s1", 2 * g), ("s1", 2 * g + 1)] if g < 8 else [("s2", j) for j in range(4)]) + cv, f"b{g}", lds_tags=tg)
                its = []
                for j in (2 * g + 4, 2 * g + 5):
                    if 7 <= j < 16: its += self.slab_dma(("s1", j))
                for j in {6: [0, 1, 2], 7: [3, 4, 5], 8: [6, 7]}.get(g, []): its += self.slab_dma(("s2", j))
                k_ = g - (C.warm_gA if isA else C.warm_gB)
                if k_ in (0, 1, 2) and C.warm_all:
                    qD.adds(its, earliest=gap, deadline=gap + 16); its = []
                    qK.adds(self.warm_ops(isA)[k_], earliest=gap + C.warm_off, deadline=gap + C.warm_off + 14)
                if C.b2g <= g < C.b2g + 3 and warm: its += warm[g - C.b2g]
                if g == 6: its.append(tagload)
                if g == C.warm_gA + 2: qK.adds([accr(self.tr2[n_], a(aPARK + n_)) for n_ in range(2)], earliest=gap + 12, deadline=gap + 40)
                qD.adds(its, earliest=gap, deadline=gap + (14 if g == 7 else 23))
            for j in range(16):
                g0 = max(0, 12 * j - D + 1)
                b = j & 1; ch = self.chunks(("s1", j))[0] * 1024
                its = [ds_rd(aXH[b], vHX, 1024 * j)]
                for u in range(2):
                    its += [ds_tr(aW16[b][u].sub(0, 2), vW16, ch + 1024 * (1 + u)), ds_tr(aW16[b][u].sub(2, 2), vW16, ch + 1024 * (1 + u) + 512)]
                qH.adds(its, earliest=g0, deadline=12 * j + 4)
                qH.add(mfma(aHACC[0], aW16[b][0], aXH[b], 0 if j == 0 else aHACC[0], "16x16x32"), earliest=g0, deadline=12 * j + 8)
                qH.add(mfma(aHACC[1], aXH[b], aW16[b][1], 0 if j == 0 else aHACC[1], "16x16x32"), earliest=12 * j + 7, deadline=12 * j + 10)
            gap = M2 + 32 - D
            barrier(M2 + C.exbar, [], "ex", lds_tags=["exw"])
            barrier(gap, [("s2", j) for j in range(4, 8)], "mid")
            for n in range(20, 32): b2_add(n, gap)
            first_use = {0: list(range(32, 46)), 1: list(range(46, 50))}
        else:
            for g in range(1, 12):
                gap = 32 * g - D - (8 if g == 11 else 0)
                cv, tg = frag_plan(g, 32, [range(0, 8), range(8, 16)])
                barrier(gap, [slab(jj) for jj in {10: (20, 21, 22), 11: (23,)}.get(g, (2 * g, 2 * g + 1))] + cv, f"b{g}", lds_tags=tg)
                its = []
                for jj in ({8: (19,), 9: ()} if k1 == 28 else {9: ()}).get(g, (2 * g + 3, 2 * g + 4)):
                    if jj < 24: its += self.slab_dma(slab(jj))
                if g == 9:
                    for q_, jj in enumerate((20, 21, 22) if k1 == 28 else (21, 22)):
                        qD.adds(self.slab_dma(slab(jj)), earliest=gap, deadline=gap + 4 * q_, hard=False)
                        qD.add(lambda E: None, earliest=gap, deadline=gap + 6 + 5 * q_)
                k_ = g - (C.warm_gA if isA else C.warm_gB)
                if k_ in (0, 1, 2) and C.warm_all:
                    qD.adds(its, earliest=gap, deadline=gap + 16); its = []
                    qK.adds(self.warm_ops(isA)[k_], earliest=gap + C.warm_off, deadline=gap + C.warm_off + 14)
                if C.b2g <= g < C.b2g + 3 and warm: its += warm[g - C.b2g]
                if g == 6: its.append(tagload)
                for n in {10: range(32, 36), 11: range(36, 44)}.get(g, []): b2_add(n, gap)
                qD.adds(its, earliest=gap, deadline=gap + {1: 28, 9: 22, 10: 7}.get(g, 18))
            first_use = {0: list(range(44, 48)), 1: list(range(48, 56))}
        def xfree(reg): return M2 + nt2 * ((reg.lo + reg.n - 1) // 4) + nt2 - 1
        qFl.add(self.spin_check_tag(), earliest=M2 - 8, deadline=M2 - 4)
        def after(q, stage, tags):
            def arm(E):
                f = self.flag_store(stage, tags); p0 = E.pos; g0_ = E.gap
                fd = C.flagd if stage in (0, 2) else (C.flag1 if stage == 1 else C.flagl)
                f.ready = lambda E: ((E.pos - p0) * 4 + (E.gap - g0_) * 8 >= fd or (E.gap - g0_) * 33 >= fd
                                     or not any(x[2] in tags for x in E.vq))
                qFl.add(f, earliest=E.gap)
            q.add(arm)
        if not isA:
            for t in range(8):
                T = ACC1(t if t < 6 else t - 2)
                its = [accr(T[r], self.acc1(t)[r]) for r in range(16)] if t >= 6 else []
                qE.adds(its + self.h_epilogue(T, sStF, t, "h1"), earliest=nt1 * k1 + (32 - k1) * (t + 1) - 1,
                        deadline=M2 - 1 + (t if k1 > 28 else 0) if t < 4 else nt1 * 28 + 4 * t + 8, hard=(t < 4))
            after(qE, 0, ["h1"])
        else:
            self.attention(qE, xfree)
            n0 = self.exw_check[1]; nn = len(qE.items)
            for k in range(n0, nn):
                it, ear, dl, hd = qE.items[k]
                qE.items[k] = (it, ear, int(M2 + 8 + (M3 + C.att_end - M2 - 8) * (k - n0) / (nn - n0)), False)
            after(qE, 3, ["o"])
        schedule(E, mains[:M2], [qN, qK, qD, qH, qG, qB, qW, qFl, qE], lambda g: (C.cap1A if isA else C.cap1B) if g < nt1 * k1 else C.cap1t,
                 0, flush=False, vm_gap=C.vm1)
        assert qN.empty() and qH.empty()
        self.stamp("s2")

        qL = Q("a2"); qF = Q("fin", vm_age=60); qP = Q("poll", top=True)
        g0 = M3 if isA else M3 + C.gate0B
        for n_, dst in enumerate(self.parked):
            if dst.lo < 128: qR.add(accr(dst, a(aPARK + n_)), earliest=xfree(dst), deadline=min(g0, M3 - D) - 2)
        qR.add(valu("v_add_u32", vWQ, sM0B, vL16), earliest=xfree(vWQ), deadline=min(g0, M3 - D) - 2)
        tail = M2 + k0 * nt2; tl = 32 - k0
        for t in range(nt2):
            its = ([accr(E2T[r], ACC2(t)[r]) for r in range(16)] if isA else []) + self.h_epilogue(E2T if isA else ACC1(t), sSt2, t, "h2" if t < 2 else "h3")
            qE2.adds(its, earliest=tail + tl * t + tl - 1, deadline=tail + tl * t + tl + 8)
            if t == 1: after(qE2, 1 if isA else 2, ["h2"])
            if t == 3: after(qE2, 4, ["h3"])
        mains[M3]["pre"].append(lambda E: self.stamp("p2"))
        if C.dbg_jit & 2: mains[M2 + 20]["pre"].append(lambda E: jitter(E, 12, 2))
        if C.dbg_jit & 4: mains[M3 - 3]["pre"].append(lambda E: jitter(E, 9, 2)); mains[M3 + 60]["pre"].append(lambda E: jitter(E, 3, 1))
        def fifo_reset(E): E.fifo.n = min(E.fifo.level(E), C.fifo0); E.fifo.p = E.pos; E.fifo.g = E.gap; E.fifo.PERIOD = C.per3
        for gg in (M3 + 1, M3 + 14): mains[gg]["pre"].append(fifo_reset)
        for n_ in range(72): mains[M3 + 2 * n_]["fix"].insert(0, lambda E, n_=n_: self.stamp(f"n{n_}"))
        gates = {0: g0, 32: M3 + 2 * (32 - C.la1), 40: M3 + 2 * (40 - C.la2), 56: M3 + 2 * (56 - C.la3),
                 64: M3 + 2 * (64 - (C.la4A if isA else C.la4B))}
        def chk_free(q):
            def f(E): assert q.empty(), ("A2 slot still in use", q.name, E.gap)
            f.ready = lambda E: q.empty()
            return f
        cur = 0
        for n in range(72):
            if n in gates:
                cur = gates[n]; st = step_info(n)[2]; n0 = n
                qP.add(self.poll_load(st), earliest=cur - C.polld, deadline=cur - C.polld + 2)
                if C.poll2 and not (n == 0 and isA):
                    qP.add(self.poll2_load(st), earliest=cur - C.poll2, deadline=cur - C.poll2 + 2); self.has2.add(st)
                qL.add(self.gate(st), earliest=cur, deadline=cur + 1)
                if n == 0 and isA: qP.items[-1] = (qP.items[-1][0], M3 + 1, M3 + 1, False)
            its = self.a2_load(n)
            qL.adds(its, earliest=cur, deadline=M3 + (2 * n if n < 72 - C.lastk else 72 - C.lastk + n) - C.a2lead, hard=False)
            need = M3 + (2 * n if n < 72 - C.lastk else 72 - C.lastk + n)
            qL.add(lambda E: None, earliest=cur, deadline=max(need - 6, M3 + 1 if isA else 0))
        qP.items.sort(key=lambda x: x[1] if not (isA and x[1] == M3 + 1 and not x[3]) else -1)
        if isA:
            def boundary(E):
                qs = [qFl, qE2, qE, qL, qB, qW, qU, qP]
                def flags():
                    while not qFl.empty() and (not hasattr(qFl.head()[0], "ready") or qFl.head()[0].ready(E)): step(E, qFl, qs)
                def one_vm(q):
                    while not q.empty() and q.head()[1] <= M3:
                        it = q.head()[0]
                        if hasattr(it, "ready") and not it.ready(E): return False
                        step(E, q, qs)
                        if is_vm(it) and not getattr(it, "dead", False): return True
                    return False
                left = len(qE.items) - qE.n; base = qE.n
                polled = gated = False; lastv = E.pos; nl = 0
                while not (qE2.empty() and qE.empty()):
                    a_, b_ = (qE2, qE) if not qE2.empty() else (qE, qE2)
                    h = a_.head()[0]
                    if not callable(h) and E.nops(h) > 0 and not b_.empty() and (callable(b_.head()[0]) or E.nops(b_.head()[0]) == 0): a_ = b_
                    elif not callable(h) and E.nops(h) > 0 and not qU.empty(): a_ = qU
                    step(E, a_, qs)
                    flags()
                    fr = (qE.n - base) / max(1, left)
                    if not polled and fr >= C.att_gate - 0.45: step(E, qP, qs); polled = True
                    if not gated and fr >= C.att_gate: step(E, qL, qs); gated = True
                    if E.pos - lastv >= C.bd_pace:
                        if (gated and nl < C.bd_nl and one_vm(qL)): nl += 1; lastv = E.pos
                        elif one_vm(qB) or one_vm(qW): lastv = E.pos
                if not polled: step(E, qP, qs)
                if not gated: step(E, qL, qs)
                while nl < C.bd_min and one_vm(qL): nl += 1; flags()
                E.pos += 1000; flags(); E.pos -= 1000
            mains[M3]["pre"].insert(0, boundary)
        b2q = list(range(50 if isA else 56, 72))
        prevpg = lambda n: max(k for k in range(n) if self.b2_chunk(k) == self.b2_chunk(n))
        for c in range(9):
            gap = M3 + 16 * c - D
            barrier(gap, [("b2", n) for n in range(8 * c, 8 * c + 8)] + (["xt"] if c == 7 else []), f"c{c}",
                    lds_tags=["sw", "xr"] if c == 8 else ())
            for n in first_use.get(c, []): mains[gap]["pre"].append(place(n))
            while b2q and L.last_use[("b2", prevpg(b2q[0]))] <= gap - 1: mains[gap]["pre"].append(place(b2q.pop(0)))
        assert not b2q
        RD = v(0, 16); SF = v(16, 16); XF = v(48, 16); XR = v(224, 8); tt = v(32, 4)
        vRW = vTR[0]; vRR = vTR[1]; vOW = vRINV; vOR = vNB; vOO = vTR[4]; vXD = vTR[5]; vXA = vG
        qF.add(chk_free(qE), earliest=M3 + 30); qF.add(chk_free(qE2), earliest=M3 + 30)
        its = [valu("v_lshrrev_b32", tt[0], 4, vL16), valu("v_and_b32", tt[1], 31, tt[0]),
               valu("v_lshrrev_b32", tt[2], 5, tt[0]), valu("v_lshlrev_b32", tt[2], 3, tt[2]),
               salu("s_lshr_b32", sT0, sM0B, 3), salu("s_add_u32", sT0, sT0, TB), valu("v_add_u32", vRW, sT0, vL16),
               valu("v_xor_b32", vRR, 8192, vRW),
               salu("s_and_b32", sT0, sW, 1), salu("s_lshl_b32", sT1, sT0, 12), salu("s_add_u32", sT1, sT1, TB + 16384),
               valu("v_lshlrev_b32", tt[3], 7, tt[1]), valu("v_add3_u32", vXA, tt[3], tt[2], sT1),
               valu("v_and_b32", tt[3], 7, tt[0]), valu("v_lshlrev_b32", tt[3], 4, tt[3]),
               salu("s_lshl_b32", sT1, sKH, 6), valu("v_xor_b32", tt[3], sT1, tt[3]), valu("v_add_u32", vXA, vXA, tt[3]),
               salu("s_mul_i32", sT0, sT0, 32 * 144, scc_w=False), salu("s_add_u32", sT0, sT0, sT1), salu("s_add_u32", sT0, sT0, TB),
               valu("v_mul_u32_u24", tt[1], 144, tt[1]), valu("v_add3_u32", vOW, tt[1], tt[2], sT0),
               valu("v_lshrrev_b32", tt[1], 3, tt[0]), valu("v_and_b32", tt[2], 0x70, vL16),
               valu("v_lshl_add_u32", vOO, tt[1], 10, tt[2]),
               valu("v_lshlrev_b32", tt[3], 4, tt[1]), valu("v_xor_b32", vXD, vOO, tt[3]),
               salu("s_mul_i32", sT0, sW, 16 * 144, scc_w=False), salu("s_add_u32", sT0, sT0, TB),
               valu("v_mul_u32_u24", tt[1], 144, tt[1]), valu("v_add3_u32", vOR, tt[1], tt[2], sT0),
               salu("s_lshl_b32", sXk, sW, 11), salu("s_add_u32", sXk, sXk, TB + 16384), salu("s_add_u32", sXs, sOut, 8192)]
        its += [vload(XR.sub(0, 4), vXD, SX, sOut), vload(XR.sub(4, 4), vXD, SX, sXs), valu("v_add_u32", vXD, sXk, vL16)]
        if C.pre_out: its += [self.touch(vOO, SOUT, sOut, dst=vSP[0]), self.touch(vOO, SOUT, sXs, dst=vSP[0])]
        qF.adds(its, earliest=M3 + 30, deadline=M3 + 64)
        qF.adds([ds_wr(vXD, XR.sub(4 * i, 4), 1024 * i, tag="xt") for i in range(2)], earliest=M3 + 96 - D, deadline=M3 + 112 - D - 2)
        its = []
        for a_ in range(4):
            its += [valu("v_xor_b32", tt[a_], 16 * a_, vXA), ds_rd(XR.sub(2 * a_, 2), tt[a_], 0, tag="xr")]
        qF.adds(its, earliest=M3 + 112 - D, deadline=M3 + 128 - D - 1)
        qF.adds([ds_wr(vRW, ACCS[1].sub(4 * i, 4), 1024 * i, tag="sw") for i in range(4)], earliest=M3 + 111, deadline=M3 + 128 - D)
        its = []
        for r in range(8):
            its += [valu("v_lshlrev_b32", XF[2 * r], 16, XR[r]), valu("v_and_b32", XF[2 * r + 1], sHI, XR[r])]
        qF.adds(its, earliest=M3 + 112)
        its = [ds_rd(SF.sub(4 * i, 4), vRR, 1024 * i) for i in range(4)]
        its += [valu("v_add_f32", SF[r], SF[r], ACCS[0][r]) for r in range(16)]
        CK = v(38, 2); C1 = v(40, 2)
        its += [valu("v_mov_b32", CK[0], 0xbfb8aa3b), valu("v_mov_b32", CK[1], 0xbfb8aa3b), valu("v_mov_b32", C1[0], 1.0), valu("v_mov_b32", C1[1], 1.0)]
        qF.adds(its, earliest=M3 + 128 - D)
        if C.lastk > 1:
            gl = M3 + 144 - C.lastk
            for x in range(len(qF.items)): qF.items[x] = (qF.items[x][0], qF.items[x][1], min(qF.items[x][2], gl + 1), True)
            qF.adds([ds_wr(vRW, ACCD[1].sub(4 * i, 4), 16384 + 1024 * i, tag="dw") for i in range(4)], earliest=gl, deadline=M3 + 142)
            def xch(E):
                E.wait_tags(lds=["dw"]); E.barrier(); self.stamp("sbar")
                for i in range(4): E.emit(ds_rd(RD.sub(4 * i, 4), vRR, 16384 + 1024 * i))
            mains[M3 + 143]["pre"].append(xch)
        cap2 = C.cap2A if isA else C.cap2B
        def capf(g):
            if not isA and not qE.empty(): return C.cap2h
            if g < tail + tl - 1: return cap2
            if g < M3: return C.cap2t
            if not qE2.empty(): return 40
            if g >= M3 + 144 - C.lastk: return C.capl
            return C.cap3 if qE.empty() else C.cap3x
        schedule(E, mains[M2:], [qFl, qP, qD, qG, qL, qB, qW, qU, qR, qE2, qE, qF], capf, M2, flush=False,
                 vm_gap=lambda g: C.vm1 if g < M3 else C.vm3)
        assert qL.empty() and qD.empty() and qB.empty() and qE.empty() and qE2.empty() and qFl.empty()
        self.stamp("lastm")
        while not qF.empty():
            it = qF.head()[0]; qF.n += 1; run_item(E, it)
        if C.lastk <= 1:
            for i in range(4): e(ds_wr(vRW, ACCD[1].sub(4 * i, 4), 16384 + 1024 * i, tag="dw"))
            E.wait_tags(lds=["dw"]); E.barrier()
            self.stamp("sbar")
            for i in range(4): e(ds_rd(RD.sub(4 * i, 4), vRR, 16384 + 1024 * i))
        G = ACCS[1]
        def pk(op, d, *src):
            r = set()
            for x in src: r |= ids(x)
            return I(f"{op} {d}, " + ", ".join(fmt(x) for x in src), "valu", r, ids(d))
        P2 = lambda reg, r: reg.sub(r, 2)
        for a_ in range(4):
            pp_ = (4 * a_, 4 * a_ + 2); rr = range(4 * a_, 4 * a_ + 4)
            for r in pp_: e(pk("v_pk_add_f32", P2(RD, r), P2(RD, r), P2(ACCD[0], r)))
            for r in pp_: e(pk("v_pk_mul_f32", P2(G, r), P2(RD, r), CK))
            for r in pp_: e(pk("v_pk_mul_f32", P2(RD, r), P2(RD, r), P2(SF, r)))
            for r in rr: e(valu("v_exp_f32", G[r], G[r]))
        for a_ in range(4):
            pp_ = (4 * a_, 4 * a_ + 2); rr = range(4 * a_, 4 * a_ + 4)
            for r in pp_: e(pk("v_pk_add_f32", P2(G, r), P2(G, r), C1))
            for r in rr: e(valu("v_rcp_f32", G[r], G[r]))
        for a_ in range(4):
            pp_ = (4 * a_, 4 * a_ + 2)
            for r in pp_: e(pk("v_pk_fma_f32", P2(RD, r), P2(RD, r), P2(G, r), P2(XF, r)))
            for d in range(2): e(valu("v_cvt_pk_bf16_f32", XR[2 * a_ + d], RD[4 * a_ + 2 * d], RD[4 * a_ + 2 * d + 1]))
            e(ds_wr(vOW, XR.sub(2 * a_, 2), 16 * a_))
        E.wait_all_lds(); E.barrier()
        for p in range(2): e(ds_rd(G.sub(4 * p, 4), vOR, 8 * 144 * p))
        for p in range(2): e(vstore(G.sub(4 * p, 4), vOO, SOUT, sXs if p else sOut, 0, fl=C.out_fl))
        self.stamp("end")
        if C.amp:
            l = self.lab("amp")
            E.line("s_waitcnt lgkmcnt(0)")
            if C.amp.startswith("sk"):
                E.line(f"buffer_load_dword v0, off, {SDBG}, 0 offset:4 sc1"); E.line("s_waitcnt vmcnt(0)"); E.line(f"v_readfirstlane_b32 {sT1}, v0"); E.line("s_nop 4")
                if C.amp == "skp": E.line(f"s_sub_u32 {sT0}, s{STAMP0}, {sT1}")
                else: E.line(f"s_sub_u32 {sT0}, {sT1}, s{STAMP0}")
                E.line(f"s_max_i32 {sT0}, {sT0}, 0")
            else:
                k0, k1 = [STAMP0 + 2 * int(x) for x in C.amp.split("-")]
                E.line(f"s_sub_u32 {sT0}, s{k1}, s{k0}")
            if C.ampsel >= 0:
                E.line(f"s_lshr_b32 {sT1}, {sWG}, 5"); E.line(f"s_cmp_eq_u32 {sT1}, {C.ampsel}"); E.line(f"s_cselect_b32 {sT0}, {sT0}, 0")
            if C.ampx >= 0:
                E.line(f"s_and_b32 {sT1}, {sWG}, 7"); E.line(f"s_cmp_eq_u32 {sT1}, {C.ampx}"); E.line(f"s_cselect_b32 {sT0}, {sT0}, 0")
            pass; E.line(f"s_lshl_b32 {sT0}, {sT0}, 2"); E.line(f"s_add_u32 {sT0}, {sT0}, s{STAMP0 + 16}")
            E.label(l)
            E.line("s_memrealtime s[84:85]"); E.line("s_waitcnt lgkmcnt(0)"); E.line(f"s_sub_u32 s84, s84, {sT0}")
            E.line("s_cmp_lt_i32 s84, 0"); E.line(f"s_cbranch_scc1 {l}")
        elif C.stamps:
            E.line("s_waitcnt lgkmcnt(0)")
            e(salu("s_lshl_b32", sT0, sWG, 2)); e(salu("s_add_u32", sT0, sT0, sW)); e(salu("s_lshl_b32", sT0, sT0, 7))
            e(salu("s_add_u32", sT0, sT0, WS_STAMP))
            for k in range(9):
                e(valu("v_mov_b32", v(0), s(STAMP0 + 2 * k))); e(vstore(v(0), None, SWS, sT0, 4 * k))
            e(accr(v(0), a(198))); e(vstore(v(0), None, SWS, sT0, 44))
            E.line("s_memrealtime s[84:85]"); E.line("s_getreg_b32 s86, hwreg(HW_REG_XCC_ID)"); E.line("s_waitcnt lgkmcnt(0)")
            e(valu("v_mov_b32", v(0), s(84))); e(vstore(v(0), None, SWS, sT0, 36))
            e(valu("v_mov_b32", v(0), s(86))); e(vstore(v(0), None, SWS, sT0, 40))
        E.line("s_endpgm")
        E.out += self.cold

    def epoch_publish(self):
        E = self.E
        l = self.lab("nopub")
        E.emit(salu("s_or_b32", sT0, sWG, sW))
        E.line(f"s_cbranch_scc1 {l}")
        E.line(f"s_mov_b32 {sT0}, 0x9e3779b1")
        E.line(f"v_mul_lo_u32 {vPOLL}, {vPOLL}, {sT0}")
        E.line(f"v_add_u32 {vPOLL}, 0x7f4a7c15, {vPOLL}")
        E.line(f"v_max_u32 {vPOLL}, 1, {vPOLL}")
        E.line(f"s_mov_b32 {sT0}, {WS_EPOCH}")
        E.line(f"buffer_store_dword {vPOLL}, off, {SWS}, {sT0} sc1")
        if C.amp.startswith("sk"):
            E.line(f"v_mov_b32 v0, s{STAMP0}"); E.line(f"buffer_store_dword v0, off, {SDBG}, 0 offset:4 sc1"); E.line("s_waitcnt vmcnt(0)")
        E.line(f"buffer_store_dword {vPOLL}, off, {SDBG}, 0 sc1")
        E.label(l)

    def attention(self, q, xfree):
        M2 = self.M2
        Q0, Q1, K0, K1, V0, V1 = [ACC1(t) for t in range(6)]
        cvt = lambda d, x, y: valu("v_cvt_pk_bf16_f32", d, x, y)
        def pack(dst, src, n=8): return [cvt(dst[i], src[2 * i], src[2 * i + 1]) for i in range(n)]
        its = pack(K0, K0) + pack(K0.sub(8, 8), K1)
        its += [ds_wr(vEX, K0.sub(4 * h, 4), 6144 + 1024 * h, tag="exw") for h in range(4)]
        its += pack(V0, V0) + pack(V0.sub(8, 8), V1)
        bar2 = M2 + C.exbar
        q.adds(its, earliest=M2 - 21, deadline=bar2 - 1)
        its = [ds_wr(vEX, V0.sub(4 + 8 * j, 4), 6144 + 4096 + 1024 * j, tag="exw") for j in range(2)]
        its += [accr(NT[i], aHACC[0][i]) for i in range(4)] + [accr(NT[4 + i], aHACC[1][i]) for i in range(4)]
        hk = v(NT[0].lo, 2); hv = v(NT[4].lo, 2)
        its += [cvt(NT[0], NT[0], NT[1]), cvt(NT[1], NT[2], NT[3]), cvt(NT[4], NT[4], NT[5]), cvt(NT[5], NT[6], NT[7])]
        its += [salu("s_lshl_b32", sT0, sW, 10), salu("s_add_u32", sT0, sT0, 256), valu("v_add_u32", NT[2], sT0, vHW),
                salu("s_lshr_b32", sT0, sW, 1), salu("s_lshl_b32", sT0, sT0, 10), salu("s_and_b32", sT1, sW, 1),
                salu("s_lshl_b32", sT1, sT1, 8), salu("s_add_u32", sT0, sT0, sT1), valu("v_add_u32", NT[3], sT0, vHW),
                ds_wr(NT[2], hk, 0, tag="exw"), ds_wr(NT[3], hv, 4096, tag="exw")]
        q.adds(its, earliest=M2 - 1, deadline=bar2 - 1)
        self.exw_check = (q, len(q.items))
        q.adds(pack(Q0, Q0) + pack(Q0.sub(8, 8), Q1), earliest=M2)
        MASK = v(208, 24)
        its = [accr(vRINV, a(196)), accr(vNB, a(197)), smov(sONE, NEG)]
        for r in range(24):
            rr = r if r < 16 else r - 8
            its += [valu("v_bfe_i32", MASK[r], vNB if r < 16 else vRINV, 8 * (rr >> 2) + (rr & 3), 1), valu("v_and_b32", MASK[r], sONE, MASK[r])]
        if C.mask_early: its = [accr(MASK[r], aMASK[r]) for r in range(24)]
        q.adds(its, earliest=M2)
        q.add(lambda E: self.mark.update(masks=True), earliest=M2)
        SC = K1; SP = v(0, 16); U = v(16, 8); P = v(24, 12); O = Q1
        mx, tm, mc = vRINV, vNB, vW16
        sums = [vHX, vH]; t2 = vTR[4]
        def add(i, ear=0):
            w = [x for x in i.w if x < 128]
            e_ = max([xfree(v(x)) for x in w], default=0)
            q.add(i, earliest=max(e_, ear))
        def qk(h, which):
            if which == 0: add(mfma(SC, K0.sub(4 * h, 4), Q0.sub(4 * h, 4), MASK.sub(0, 16)))
            else: add(mfma(SP, aKP[h], Q0.sub(4 * h, 4), MASK.sub(8, 16)))
        def fin(h):
            o = 8 * (h & 1); sm = sums[h & 1]
            l = [valu("v_rcp_f32", sm, sm)]
            l += [valu("v_mul_f32", O[o + r], O[o + r], sm) for r in range(8)]
            l += [cvt(O[o + r], O[o + 2 * r], O[o + 2 * r + 1]) for r in range(4)]
            l.append(self.a2_store(O.sub(o, 4), sStF, h, "o"))
            return l
        qk(0, 0)
        q.adds([ds_rd(aKP[h], vEX, 1024 * h) for h in range(4)] + [ds_rd(aVP[j], vEX, 4096 + 1024 * j) for j in range(2)], earliest=bar2)
        qk(0, 1)
        for h in range(4 if not C.abl_att else 1):
            for i in range(4): add(valu("v_max_f32", U[i], SC[2 * i], SC[2 * i + 1]))
            for i in range(4, 8): add(valu("v_max3_f32", U[i], SC[2 * i], SC[2 * i + 1], SP[2 * i]))
            if h < 3: qk(h + 1, 0)
            for i in range(4, 8): add(valu("v_max_f32", U[i], U[i], SP[2 * i + 1]))
            add(valu("v_max3_f32", mx, U[0], U[1], U[2])); add(valu("v_max3_f32", tm, U[3], U[4], U[5]))
            if h < 3: qk(h + 1, 1)
            add(valu("v_max3_f32", mx, mx, U[6], U[7])); add(valu("v_max_f32", mx, mx, tm))
            add(valu("v_mov_b32", tm, mx))
            fl = fin(h - 1) if h > 0 else []
            for x in fl[:3]: add(x)
            add(swap32(mx, tm)); add(valu("v_max_f32", mx, mx, tm))
            add(I(f"v_mul_f32 {mc}, -{mx}, {sCSC}", "valu", mx.ids() | sCSC.ids(), mc.ids()))
            for x in fl[3:]: add(x)
            for i in range(8): add(valu("v_fma_f32", U[i], U[i], sCSC, mc))
            for i in range(8): add(valu("v_exp_f32", U[i], U[i]))
            sm = sums[h & 1]; j = h >> 1
            for i in range(4):
                add(cvt(P[i], U[i], U[i])); add(valu("v_and_b32", P[i], vPM, P[i]))
            add(valu("v_add_f32", sm, U[0], U[1])); add(valu("v_add_f32", tm, U[2], U[3]))
            add(mfma(O, V0.sub(8 * j, 4), P.sub(0, 4), 0))
            for i in range(4):
                add(cvt(P[8 + i], U[4 + i], U[4 + i])); add(valu("v_and_b32", P[4 + i], vMHC, P[8 + i]))
            add(valu("v_add_f32", t2, U[4], U[5])); add(valu("v_add_f32", sm, sm, tm))
            add(mfma(O, V0.sub(8 * j + 4, 4), P.sub(4, 4), O))
            for i in range(4): add(valu("v_and_b32", P[8 + i], vMHP, P[8 + i]))
            add(valu("v_add_f32", tm, U[6], U[7])); add(valu("v_add_f32", t2, t2, tm))
            add(mfma(O, aVP[j], P.sub(8, 4), O))
            add(valu("v_add_f32", sm, sm, t2))
            add(valu("v_mov_b32", tm, sm))
            add(swap32(sm, tm)); add(valu("v_add_f32", sm, sm, tm))
        for x in fin(3): add(x)

    def build(self):
        E = self.E
        self.stamp("t00")
        E.emit(scmp("s_cmp_ge_u32", sWG, 256))
        E.line("s_cbranch_scc1 L_end")
        E.line("s_load_dwordx16 s[8:23], s[0:1], 0")
        E.line("s_load_dwordx4 s[24:27], s[0:1], 64")
        E.emit(salu("s_lshr_b32", sJ, sWG, 3))
        self.code_touch()
        E.emit(I("s_bitcmp1_b32 s6, 3", "salu", sJ.ids(), {SCC}))
        E.line("s_cbranch_scc1 L_typeB")
        snap = E.snapshot()
        self.body("A")
        E.label("L_typeB")
        E.restore(snap)
        self.body("B")
        E.label("L_end")
        E.line("s_endpgm")
        E.label("L_code_end")
        E.out.append(".p2align 12")
        head = open(os.path.join(os.path.dirname(os.path.abspath(__file__)), "head.txt")).read()
        txt = head + f"""; @launch grid=(256,1,1) block=(256,1,1) lds=163840
.amdgcn_target "amdgcn-amd-amdhsa--gfx950"
.text
.globl {NAME}
.p2align 8
.type {NAME},@function
{NAME}:
""" + E.text() + f""".section .rodata,"a"
.p2align 6
.amdhsa_kernel {NAME}
  .amdhsa_next_free_vgpr 512
  .amdhsa_next_free_sgpr 102
  .amdhsa_accum_offset 256
  .amdhsa_group_segment_fixed_size 0
  .amdhsa_kernarg_size 80
  .amdhsa_user_sgpr_count 2
  .amdhsa_user_sgpr_kernarg_segment_ptr 1
  .amdhsa_system_sgpr_workgroup_id_x 1
.end_amdhsa_kernel
"""
        return txt


def place_pads(txt):
    import subprocess, re, tempfile
    sys.path.insert(0, "cdna_kernels")
    from cdna_launch import with_harness_metadata
    lines = txt.split("\n")
    probe = []
    for n, l in enumerate(lines):
        if l.startswith("    ") and not l.strip().startswith(";") and not l.strip().startswith("."): probe.append(f"LP_{n}:")
        probe.append(re.sub(r"L_pad[AB]_\d+", "L_end", l))
    d = tempfile.mkdtemp()
    open(d + "/p.s", "w").write(with_harness_metadata("\n".join(probe), NAME, 10, launch_lists=True))
    subprocess.run(["clang", "-x", "assembler", "-target", "amdgcn-amd-amdhsa", "-mcpu=gfx950", d + "/p.s", "-o", d + "/p.co"], check=True)
    sym = subprocess.run(["llvm-objdump", "-t", d + "/p.co"], capture_output=True, text=True).stdout
    addr = {int(m.group(2)): int(m.group(1), 16) for m in re.finditer(r"([0-9a-f]{16}) .* LP_(\d+)", sym)}
    shift = 0; typ = None; pads = {"A": [], "B": []}; prev = None
    for n, l in enumerate(lines):
        if l.startswith(";PADS_FROM"): typ = l.split()[1]
        if l.startswith("L_typeB:") or l.startswith("L_end:"): typ = None
        if n in addr:
            a_ = addr[n] + shift
            if typ and prev is not None and prev // 4096 != a_ // 4096:
                pads[typ].append(n); shift += 4
            prev = a_
    out = []
    for n, l in enumerate(lines):
        for t in "AB":
            if n in pads[t]:
                k = pads[t].index(n)
                out.append(f"L_pad{t}_{k}:")
                out.append(f"    s_cbranch_execz " + (f"L_pad{t}_{k + 4}" if k + 4 < len(pads[t]) else f"L_back{t}"))
        out.append(l)
    print("pads", {t: len(pads[t]) for t in pads}, "kernel at", hex(min(addr.values())))
    assert min(len(pads[t]) for t in pads) >= 4
    return "\n".join(out)


if __name__ == "__main__":
    g = Gen()
    txt = g.build()
    if C.pads: txt = place_pads(txt)
    open(sys.argv[1], "w").write(txt)
    print("instructions:", g.E.ninst)
```

```python
import sys, os
sys.path.insert(0, os.path.dirname(os.path.abspath(__file__)))
from emit import *

NAME = "recurrent_scan__sliding_local_dilated__glu_gated_bilinear__prompt_kernel"

class Cfg:
    stamps = False
    stset = "a"
    rt = False
    D = 6
    nahead = 8; cap1A = 7.0; cap1B = 6.8; cap1t = 12.0; cap2h = 9.0; cap2A = 7.5; cap2B = 7.0; cap3 = 7.0; cap2t = 7.5; cap3x = 20.0
    npre = 56
    att_gate = 0.7; gate0B = -44; vm1 = 2.0; vm3 = 8.0; nrawA = 0; nrawB = 14; warm_gA = 1; warm_gB = 1; warm_off = 12; warm_mode = 0; scal_span = 30; b2gA = 4; b2gB = 3; raw0A = 130; raw0B = 270
    rot = True; rot_half = False
    pads = True
    la1 = 14; la2 = 14; la3 = 18; la4A = 13; la4B = 18
    polld = 26
    flagd = 500
    b2lead = 24; a2lead = 30; att_end = 30
    dbg_jit = 0; dbg_gate = False; dbg_b2 = 0; dbg_w = False; dbg_st = False; dbg_a2 = 0; dbg_dump = False; dbg_bar = False
    amp = ""; ampsel = -1; ampx = -1
    lg_old = 10; vmfirst = False
    abl_p2 = False; abl_norm = False; abl_tr = 0; abl_tr2 = False; abl_att = False
    bd_pace = 16; bd_nl = 14; bd_min = 12
    fifo0 = 3.0; per3 = 56.0; poll2 = 0
    pre_late = 0; pl_at = 1; warm_fl = True; tw_late = False; code_split = True; rot_ct = False; qkv_byB = True; scal_early = False; mask_early = False; warm_byB = False
    fs = 1024; skip3 = False; rot3 = True
    ctrot = 0; k1B = 30; flstride = 1024
    lastk = 8; capl = 12.0
    wsoff = 0; pre_out = False
    rot2 = True; flagl = 300; flag1 = 300
    raw = True; raw0 = 84
    npre_norm = 1; npre_normA = 1; hn_at = 0; dots_first = 6; exbar = 12; npoll = 1
    w3early = True
    w0at = 4; touch_w0 = 4; x2early = False
    touch_code = True
    touch_b2 = False; b2g = 4
    warm_all = True; warm_byA = False
    a2_fl = "sc1"; st_fl = "sc1"; pre_a2 = 0; x_fl = ""; w_fl = ""; b2_fl = ""; out_fl = ""
    spin_max = 1 << 16

C = Cfg()
import emit as _emit
for arg in sys.argv[2:]:
    k, val = arg.split("=")
    old = getattr(C, k)
    setattr(C, k, (val not in ("0", "False")) if isinstance(old, bool) else type(old)(val.replace("+", " ")))

Emitter.LG_OLD = C.lg_old
WS_FLAG = 0x1C00000
WS_EPOCH = 0x1D00000
WS_STAMP = 0x1E00000
WS_SIZE = 0x1F00000
FS = C.fs
FLO = [0, 128, 256, 512, 640]
TB = 131072

sWG = s(2); sW = s(3); sRB = s(4); sIDX = s(5); sJ = s(6); sXCD = s(7)
SX, SWO, SWG_, SWD, SDBG, SP5, SWU, SOUT, SWS, SP9 = [s(8 + 4 * i, 4) for i in range(10)]
SQKV = SWG2 = SP5; SWH = SWU2 = SP9
(sA2s, sB2s, sM0B, sT0, sT1, sS1, sS2, sS2b, sTAG, sFLW, sFLR, sStF, sStH, sSt2, sHI, sONE, sSPIN, sT2, sOut, sT5,
 sRT, sCT, sKH, sCSC, sXs, sM0T, sXo, sXk, sROT, sC512, sA2c0, sA2c1, sA2c2, sB2c0, sB2c1, sB2c2) = [s(48 + i) for i in range(36)]
sA2c = [sA2c0, sA2c1, sA2c2]; sB2c = [sB2c0, sB2c1, sB2c2]
sHo = sB2s
sG3 = [sB2c0, s(0), s(1), s(5)]; sG1 = [sB2c2, s(6), s(7), sCT]
sPC = s(48, 2)
STAMP0 = 84

def X(ks): return v(4 * ks, 4)
def ACC1(t): return v(128 + 16 * t, 16)
NT = [v(224 + i) for i in range(8)]
vTR = [v(232 + i) for i in range(6)]
vG = v(238); vU = v(239); vH = v(240)
vB2 = v(241); vTW = v(242)
vL16 = v(243); vRINV = v(244); vNB = v(245); vW16 = v(246); vHX = v(247)
vTAG = v(248); vPOLL = v(249); vP4 = v(250); vTB = vTAG
vEX = v(251); vHW = v(252); vPM = v(253); vMHC = v(254); vMHP = v(255)
vTR2T = [v(42), v(43)]; vTR2 = [v(44), v(45)]; vWQ = v(46)
vPL = [vPOLL, v(36), v(37), v(47)]
vA2O = vTW
vSP = [v(39), v(41)]
PARKED = vTR2T + vTR2
E2T = v(48, 16)
ACCD = [v(64, 16), v(80, 16)]; ACCS = [v(96, 16), v(112, 16)]
def WF(m): return a(4 * (m % 12), 4)
def ACC2(t): return a(48 + 16 * t, 16)
aMASK = a(112, 24); aKP = [a(136 + 4 * i, 4) for i in range(4)]; aVP = [a(152 + 4 * i, 4) for i in range(2)]
aHACC = [a(160, 4), a(164, 4)]; aXH = [a(168, 4), a(172, 4)]
aW16 = [[a(176, 4), a(180, 4)], [a(184, 4), a(188, 4)]]
aPARK = 192
aDUM0 = a(199); vDUM1 = v(37)

NEG = 0xf149f2ca


class LDSMap:
    def __init__(self):
        self.own = {c: ("x", c // 4) for c in range(32)}
        for c in range(32, 40): self.own[c] = ("T",)
        self.last_use = {}
        self.visible = set()
        self.bar_m = -1
        self.xread = set()
    def alloc(self, obj, chunks):
        for c in chunks:
            o = self.own[c]
            if o[0] == "x": assert o[1] in self.xread, (obj, c, o)
            else: assert self.last_use[o] <= self.bar_m, (obj, c, o, self.last_use[o], self.bar_m)
            self.own[c] = obj
    def check_read(self, obj, chunks):
        assert obj in self.visible, ("not visible", obj)
        for c in chunks: assert self.own[c] == obj, (obj, c, self.own[c])


SHIFT = [48, 8, 16]


def step_info(n):
    if n < 32: return 16 + 12 * (n >> 3) + (n & 7), 0, 0
    if n < 40: return n - 32, 1, 1
    if n < 56: return 112 + n - 40, 2, 3
    hi = n >= 64; k = (n - 56) & 7
    return 24 + 12 * (k >> 1) + (k & 1) + 2 * hi, 0, (4 if hi else 2)


class Gen:
    def __init__(self):
        self.E = Emitter()
        self.E.trace = bool(os.environ.get("TRACE"))
        self.nlabel = 0
        self.nstamp = 0

    def lab(self, base):
        self.nlabel += 1
        return f"L_{base}_{self.nlabel}"

    STS = {"a": ["t0", "issued", "x0", "xdone", "s1", "s2", "p2", "lastm", "end"],
           "b": ["t0", "g0a", "g0b", "p2", "g1a", "g1b", "g2a", "g2b", "end"],
           "e": ["t0", "karg", "issued", "rest", "pads", "x0", "x1", "x3", "end"],
           "f": ["t0", "x4", "x5", "x6", "x7", "xdone", "s1", "b1", "end"],
           "g": ["t0", "s1", "b1a", "b1", "b2a", "b2", "b3a", "b3", "end"],
           "h": ["t0", "b3", "b4", "b5", "b6", "b7", "b8", "s2", "end"],
           "j": ["t0", "g2b", "n48", "n55", "n56", "n60", "n64", "n71", "end"],
           "k": ["t0", "g0b", "n0", "n4", "n8", "n16", "n24", "n31", "end"],
           "l": ["t0", "g1b", "g3b", "n31", "n32", "n39", "n40", "n47", "end"],
           "m": ["t0", "n0", "n8", "n16", "n24", "n32", "n40", "n56", "end"],
           "n": ["t0", "c0a", "c0", "c1a", "c1", "c2a", "c2", "c3a", "c3"],
           "o": ["t0", "c4a", "c4", "c5a", "c5", "c6a", "c6", "c7a", "c7"],
           "p": ["t0", "g0a", "g0b", "g1a", "g1b", "g3a", "g3b", "g2a", "g2b"],
           "q": ["t0", "s2", "f0a", "f0b", "g0a", "g0b", "f2a", "f2b", "end"],
           "r": ["t0", "s1", "b1", "b2", "b3", "b4", "b5", "b6", "b7"],
           "s": ["t0", "b7", "b8", "b9", "b10", "b11", "c0", "c1", "c2"],
           "t": ["n16", "n17", "n18", "n19", "n20", "n21", "n22", "n23", "n24"],
           "u": ["n40", "n41", "n42", "n43", "n44", "n45", "n46", "n47", "n48"],
           "v": ["n60", "n61", "n62", "n63", "n64", "n65", "n66", "n67", "n68"],
           "w": ["t00", "t0", "karg", "issued", "rest", "pads", "x0", "xdone", "end"],
           "x": ["t0", "issued", "pads", "x0", "x2", "x4", "x7", "bx", "s1"],
           "y": ["t0", "x4", "x5", "x6", "x7", "xdone", "bx", "s1", "b1"],
           "z": ["t0", "p2", "f2b", "f4b", "g2a", "g2b", "g4a", "g4b", "end"],
           "0": ["t0", "end"],
           "AMP": ["t0", "-1", "-2", "-3", "-4", "-5", "-6", "-7", "end"],
           "F": ["t0", "s1", "s2", "f0b", "f1b", "f3b", "f4b", "g3b", "g4b"],
           "G": ["t0", "g0a", "g0b", "g3a", "g3b", "g2a", "g2b", "g4a", "g4b"],
           "i": ["t0", "s2", "g0a", "g0b", "p2", "c1", "g1a", "g1b", "end"],
           "d": ["t0", "p2", "g1b", "g3a", "g3b", "g2a", "g2b", "lastm", "end"],
           "c": ["t0", "p2", "c1", "c3", "c5", "c7", "lastm", "sbar", "end"]}

    def stamp(self, name):
        if C.stset.startswith("B"):
            g = int(C.stset[1:]); self.STS[C.stset] = [f"b{g}"] + [f"b{g + k}{x}" for k in range(1, 5) for x in ("a", "")]
        if C.stset.startswith("N"): self.STS[C.stset] = [f"n{int(C.stset[1:]) + k}" for k in range(9)]
        if C.stamps and name in self.STS[C.stset]:
            k = self.STS[C.stset].index(name)
            self.E.line(f"{'s_memrealtime' if C.rt else 's_memtime'} s[{STAMP0 + 2 * k}:{STAMP0 + 2 * k + 1}]")

    def setup_first(self, typ):
        o = []; e = o.append
        lane = self.lane; vx = self.vx; t0, t1, t2 = v(201), v(202), v(203)
        e(valu("v_and_b32", lane, 63, v(0)))
        e(valu("v_lshrrev_b32", t0, 6, v(0)))
        e(salu("s_and_b32", sXCD, sWG, 7))
        e(rfl(sW, t0))
        e(salu("s_and_b32", sRB, sXCD, 1)); e(salu("s_lshl_b32", sRB, sRB, 3))
        e(salu("s_and_b32", sT0, sJ, 7)); e(salu("s_add_u32", sRB, sRB, sT0))
        e(salu("s_and_b32", sIDX, sXCD, 6)); e(salu("s_lshr_b32", sT0, sJ, 4)); e(salu("s_add_u32", sIDX, sIDX, sT0))
        e(valu("v_and_b32", t0, 7, lane)); e(valu("v_lshrrev_b32", t1, 4, lane)); e(valu("v_xor_b32", t0, t0, t1))
        e(valu("v_lshlrev_b32", t0, 4, t0))
        e(valu("v_lshrrev_b32", t1, 3, lane)); e(valu("v_lshlrev_b32", t1, 10, t1))
        e(valu("v_or_b32", vx[0], t0, t1)); e(valu("v_xor_b32", t2, 64, vx[0]))
        e(valu("v_add_u32", vx[1], 7168, t2)); e(valu("v_add_u32", vx[2], 2 * 7168, vx[0])); e(valu("v_add_u32", vx[3], 3 * 7168, t2))
        e(salu("s_lshl_b32", sM0B, sW, 15))
        e(salu("s_lshl_b32", sT0, sRB, 17)); e(salu("s_add_u32", sXo, sT0, sM0B))
        e(salu("s_lshr_b32", sT1, sJ, 3)); e(salu("s_add_u32", sT1, sT1, sJ)); e(salu("s_and_b32", sROT, sT1, (1 if C.rot_half else 3) if C.rot else 0))
        if C.rot_half: e(salu("s_lshl_b32", sROT, sROT, 1))
        e(salu("s_lshl_b32", sXk, sROT, 8))
        e(smov(SWS[2], WS_SIZE)); e(smov(SWS[3], 0x20000))
        if typ == "A":
            e(smov(SQKV[2], 512 * 3072)); e(smov(SQKV[3], 0x20000))
            hs = self.hs
            e(salu("s_sub_u32", sT1, sT0, 16 * 1024))
            e(valu("v_add_u32", hs[0], sT1, vx[0])); e(salu("s_add_u32", sT1, sT1, 1024)); e(valu("v_add_u32", hs[1], sT1, vx[1]))
            e(salu("s_add_u32", sHo, sW, sROT)); e(salu("s_and_b32", sHo, sHo, 3)); e(salu("s_lshl_b32", sHo, sHo, 8))
            e(salu("s_lshr_b32", sS2b, sM0B, 3))
            self.ncrit = len(o)
            e(salu("s_lshl_b32", sT2, sIDX, 1))
            e(salu("s_lshl_b32", sS1, sIDX, 7))
        else:
            self.ncrit = len(o)
            e(salu("s_mul_i32", sT2, sIDX, 12, scc_w=False)); e(salu("s_add_u32", sT2, sT2, 24))
            e(salu("s_lshl_b32", sS1, sT2, 5)); e(salu("s_sub_u32", sS1, sS1, 256))
            for d, sh in ((SWU, 1024), (SWG2, 1920), (SWU2, 2944)):
                e(smov(d[2], 512 * 3584 + sh)); e(smov(d[3], 0x20000))
        st1 = 3072 if typ == "A" else 3584
        e(salu("s_mul_i32", sT0, sROT, 128 * st1, scc_w=False)); e(salu("s_add_u32", sS1, sS1, sT0))
        if C.touch_w0:
            e(valu("v_and_b32", t0, C.touch_w0 - 1, lane)); e(valu("v_mul_u32_u24", t0, st1, t0))
            if typ == "A":
                e(valu("v_lshrrev_b32", t1, 4, lane)); e(valu("v_min_u32", t1, 2, t1)); e(valu("v_lshlrev_b32", t1, 10, t1))
            else:
                e(valu("v_bfe_u32", t1, lane, 4, 1)); e(valu("v_lshlrev_b32", t1, 7, t1))
            e(valu("v_add_u32", vTW, t0, t1))
            e(salu("s_and_b32", sT0, sJ, 4)); e(salu("s_and_b32", sT1, sXCD, 1)); e(salu("s_lshl_b32", sT1, sT1, 3))
            e(salu("s_add_u32", sT0, sT0, sT1)); e(salu("s_add_u32", sT0, sT0, sW))
            e(salu("s_mul_i32", sT0, sT0, C.touch_w0 * st1, scc_w=False)); e(salu("s_add_u32", sT5, sT0, sS1))
            if typ == "B" and C.qkv_byB:
                e(valu("v_and_b32", t0, 3, lane)); e(valu("v_mul_u32_u24", t0, 3072, t0))
                e(valu("v_lshrrev_b32", t1, 4, lane)); e(valu("v_min_u32", t1, 2, t1)); e(valu("v_lshlrev_b32", t1, 10, t1))
                e(valu("v_add_u32", vMHP, t0, t1))
                e(salu("s_and_b32", sT0, sRB, 3)); e(salu("s_lshl_b32", sT0, sT0, 5)); e(salu("s_and_b32", sT1, sRB, 12))
                e(salu("s_add_u32", sT0, sT0, sT1)); e(salu("s_add_u32", sT0, sT0, sW)); e(salu("s_mul_i32", sT0, sT0, 4 * 3072, scc_w=False))
                e(salu("s_lshl_b32", sT1, sIDX, 7)); e(salu("s_add_u32", sXs, sT0, sT1))
        return o

    def touch(self, voff, srd_, soff, imm=0, dst=None, fl=""):
        i = vload(dst or aDUM0, voff, srd_, soff, imm, fl=fl); i.w = set(); return i

    def consts(self, typ):
        o = []; e = o.append
        lane = self.lane
        t = [v(208 + i) for i in range(8)]
        li, g4, r2, hh, ub = v(190), v(191), v(192), v(193), v(194)
        e(valu("v_and_b32", li, 15, lane)); e(valu("v_lshrrev_b32", g4, 4, lane)); e(valu("v_lshrrev_b32", hh, 5, lane))
        e(valu("v_and_b32", ub, 1, g4)); e(valu("v_lshrrev_b32", r2, 2, li))
        e(valu("v_lshlrev_b32", vL16, 4, lane))
        e(smov(sHI, 0xffff0000)); e(smov(sONE, 0x3f803f80)); e(smov(sC512, 0x3b000000)); e(smov(sCSC, 0x3eb8aa3b))
        xa = self.xa
        e(valu("v_and_b32", t[0], 31, lane)); e(valu("v_lshlrev_b32", t[1], 7, t[0]))
        e(valu("v_bfe_u32", t[0], lane, 1, 3)); e(valu("v_xor_b32", t[0], t[0], hh)); e(valu("v_lshlrev_b32", t[0], 4, t[0]))
        e(valu("v_add_u32", t[1], sM0B, t[1]))
        for q in range(4):
            e(valu("v_xor_b32", t[2], 32 * q, t[0])); e(valu("v_add_u32", xa[q], t[1], t[2]))
        for r_ in self.acc: e(valu("v_mov_b32", r_, 0))
        if typ == "A":
            ha = self.ha
            e(valu("v_lshlrev_b32", t[1], 7, li)); e(valu("v_lshrrev_b32", t[0], 1, li)); e(valu("v_xor_b32", t[0], t[0], g4))
            e(valu("v_lshlrev_b32", t[0], 4, t[0]))
            e(salu("s_add_u32", sT0, sS2b, TB)); e(valu("v_add_u32", t[1], sT0, t[1]))
            e(valu("v_add_u32", ha[0], t[1], t[0])); e(valu("v_xor_b32", t[0], 64, t[0])); e(valu("v_add_u32", ha[1], t[1], t[0]))
            for r_ in self.hacc: e(valu("v_mov_b32", r_, 0))
            e(valu("v_add_u32", vHX, TB + 16384, vL16))
            e(valu("v_lshlrev_b32", ha[2], 3, lane)); e(valu("v_add_u32", ha[2], TB, ha[2])); e(valu("v_add_u32", ha[3], sS2b, ha[2]))
            e(valu("v_add_u32", ha[4], sS2b, vHX))
        e(salu("s_and_b32", sT0, sW, 1)); e(salu("s_lshl_b32", sT0, sT0, 4))
        e(salu("s_lshr_b32", sKH, sW, 1)); e(salu("s_lshl_b32", sT1, sKH, 3)); e(salu("s_add_u32", sT1, sT1, sT0))
        e(valu("v_lshrrev_b32", t[0], 3, lane)); e(valu("v_and_b32", t[1], 2, t[0])); e(valu("v_lshlrev_b32", t[1], 5, t[1]))
        e(valu("v_and_b32", t[2], 7, lane)); e(valu("v_lshlrev_b32", t[2], 4, t[2])); e(valu("v_xor_b32", t[2], t[2], t[1]))
        e(valu("v_add_u32", t[3], sT1, t[0]))
        if typ == "A":
            e(valu("v_mul_u32_u24", t[4], 3072, t[3])); e(valu("v_add_u32", vH, t[4], t[2]))
            e(salu("s_lshl_b32", sT0, sT0, 1))
            e(valu("v_lshrrev_b32", t[4], 2, lane)); e(valu("v_add_u32", t[4], sT0, t[4])); e(valu("v_mul_u32_u24", t[4], 3584, t[4]))
            e(valu("v_and_b32", t[5], 3, lane)); e(valu("v_lshlrev_b32", t[5], 4, t[5]))
            e(salu("s_lshl_b32", sT1, sKH, 5)); e(valu("v_xor_b32", t[5], sT1, t[5]))
            e(valu("v_add_u32", vG, t[4], t[5]))
            e(salu("s_lshl_b32", sS2, sT2, 5))
            e(smov(SWH[2], 512 * 3584)); e(smov(SWH[3], 0x20000))
        else:
            e(valu("v_mul_u32_u24", t[4], 3584, t[3])); e(valu("v_add_u32", vG, t[4], t[2]))
            e(valu("v_xor_b32", t[5], 32, t[2])); e(valu("v_add_u32", vU, t[4], t[5]))
            e(salu("s_mul_i32", sT0, sT0, 3584, scc_w=False))
            e(salu("s_lshl_b32", sS2, sT2, 5)); e(salu("s_add_u32", sS2, sS2, sT0))
        e(salu("s_mul_i32", sT0, sROT, 128 * 3584, scc_w=False)); e(salu("s_add_u32", sS2, sS2, sT0))
        e(valu("v_and_b32", vP4, 3, lane)); e(valu("v_lshlrev_b32", vP4, 2, vP4))
        e(valu("v_lshl_add_u32", vB2, t[0], 10, t[2]))
        if C.warm_all:
            ww = self.ww
            e(valu("v_min_u32", ww[0], 13, lane)); e(valu("v_lshlrev_b32", ww[0], 7, ww[0])); e(valu("v_lshlrev_b32", ww[1], 5, vP4))
            e(valu("v_and_b32", ww[2], 15 if typ == "A" else 7, lane)); e(valu("v_mul_u32_u24", ww[2], 3584, ww[2]))
        e(valu("v_lshlrev_b32", t[0], 7, r2))
        e(valu("v_and_b32", t[1], 3, lane)); e(valu("v_lshlrev_b32", t[1], 3, t[1])); e(valu("v_add_u32", t[0], t[0], t[1]))
        e(valu("v_and_b32", t[2], 2, r2))
        e(valu("v_or_b32", t[3], t[2], ub)); e(valu("v_lshlrev_b32", t[3], 5, t[3]))
        e(valu("v_lshlrev_b32", t[4], 16, hh)); e(valu("v_add_u32", t[4], t[4], t[0]))
        if typ == "A":
            for j in range(2):
                e(valu("v_xor_b32", t[6], 64 * j, t[3])); e(valu("v_add_u32", vTR[4 + j], t[6], t[4]))
            e(valu("v_lshlrev_b32", t[6], 3, hh)); e(valu("v_add_u32", t[6], t[6], r2)); e(valu("v_lshlrev_b32", t[6], 6, t[6]))
            e(valu("v_lshlrev_b32", t[7], 16, ub)); e(valu("v_add3_u32", t[6], t[6], t[7], t[1]))
            e(valu("v_lshlrev_b32", t[7], 5, ub)); e(valu("v_add_u32", vTR[0], t[6], t[7]))
            e(valu("v_xor_b32", t[7], 32, t[7])); e(valu("v_add_u32", vTR[1], t[6], t[7]))
        else:
            e(valu("v_lshlrev_b32", t[5], 10, ub)); e(valu("v_add_u32", t[5], t[5], t[4]))
            for tt in range(4):
                e(valu("v_xor_b32", t[6], 32 * tt, t[3])); e(valu("v_add_u32", vTR[tt], t[6], t[5]))
        def park(reg, s0_, s1_):
            names = [str(x) for x in self.parked]
            if str(reg) in names: e(valu("v_add_u32", t[7], s0_, s1_)); e(accw(a(aPARK + names.index(str(reg))), t[7]))
            else: e(valu("v_add_u32", reg, s0_, s1_))
        e(valu("v_lshlrev_b32", t[4], 9, hh)); e(valu("v_add_u32", t[4], t[4], t[0]))
        e(salu("s_lshl_b32", sT0, sKH, 6)); e(valu("v_xor_b32", t[6], sT0, t[3]))
        e(valu("v_add_u32", t[5], t[6], t[4])); e(valu("v_xor_b32", t[6], 64, t[5]))
        e(salu("s_lshl_b32", sT0, sKH, 16)); e(salu("s_lshl_b32", sT1, sKH, 11)); e(salu("s_add_u32", sT1, sT1, TB))
        for j in range(2):
            park(self.tr2[j], sT0, t[5 + j]); park(self.tr2t[j], sT1, t[5 + j])
        if typ == "A":
            e(valu("v_lshlrev_b32", t[4], 16, ub)); e(valu("v_lshlrev_b32", t[5], 15, hh)); e(valu("v_add3_u32", t[4], t[4], t[5], t[0]))
            e(valu("v_xor_b32", t[6], sW, t[2])); e(valu("v_lshlrev_b32", t[6], 5, t[6])); e(valu("v_add_u32", vW16, t[4], t[6]))
            e(salu("s_mul_i32", sT0, sW, 6144, scc_w=False)); e(salu("s_add_u32", sT0, sT0, TB)); e(valu("v_add_u32", vEX, sT0, vL16))
            e(valu("v_lshlrev_b32", t[4], 5, ub)); e(valu("v_add_u32", t[4], t[4], li)); e(valu("v_lshlrev_b32", t[4], 4, t[4]))
            e(valu("v_lshlrev_b32", t[5], 3, hh)); e(smov(sT0, TB)); e(valu("v_add3_u32", vHW, t[4], t[5], sT0))
            q = t[0]; bb = v(t[2].lo, 2)
            e(valu("v_and_b32", q, 31, lane)); e(valu("v_add_u32", t[1], 18, q))
            e(valu("v_mov_b32", t[4], 0x5555)); e(valu("v_mov_b32", t[5], 0))
            e(valu("v_lshlrev_b64", bb, t[1], v(t[4].lo, 2)))
            e(salu("s_or_b32", sT1, sRB, sW)); e(salu("s_cselect_b32", sT1, -1, 0, scc_w=False, scc_r=True))
            e(valu("v_and_b32", bb[0], sT1, bb[0]))
            e(valu("v_lshlrev_b32", t[1], 2, hh))
            e(valu("v_lshrrev_b32", bb[0], t[1], bb[0])); e(valu("v_lshrrev_b32", bb[1], t[1], bb[1]))
            e(valu("v_not_b32", bb[0], bb[0])); e(valu("v_not_b32", bb[1], bb[1]))
            if C.mask_early:
                e(smov(sT0, NEG))
                for r in range(24):
                    rr = r if r < 16 else r - 8
                    tmp = t[6 + (r & 1)]
                    e(valu("v_bfe_i32", tmp, bb[1] if r < 16 else bb[0], 8 * (rr >> 2) + (rr & 3), 1))
                    e(valu("v_and_b32", tmp, sT0, tmp)); e(accw(aMASK[r], tmp))
            else: e(accw(a(196), bb[0])); e(accw(a(197), bb[1]))
            e(valu("v_and_b32", t[2], 1, q)); e(valu("v_lshlrev_b32", t[2], 4, t[2]))
            e(valu("v_mov_b32", t[3], 0xffff)); e(valu("v_lshlrev_b32", vPM, t[2], t[3]))
            e(valu("v_bfe_i32", t[2], q, 4, 1)); e(valu("v_and_b32", vMHC, t[2], vPM)); e(valu("v_xor_b32", vMHP, vMHC, vPM))
        return o

    def scalars(self, typ):
        o = []; e = o.append
        e(salu("s_and_b32", sRT, sJ, 3)); e(salu("s_lshr_b32", sCT, sJ, 2))
        if C.ctrot: e(salu("s_add_u32", sCT, sCT, C.ctrot)); e(salu("s_and_b32", sCT, sCT, 7))
        e(salu("s_lshl_b32", sCT, sCT, 7))
        e(salu("s_lshl_b32", sT0, sXCD, 3)); e(salu("s_lshl_b32", sT1, sRT, 1)); e(salu("s_add_u32", sT0, sT0, sT1))
        e(salu("s_and_b32", sT1, sW, 1)); e(salu("s_add_u32", sT0, sT0, sT1))
        e(salu("s_lshl_b32", sFLR, sT0, 1)); e(salu("s_add_u32", sFLR, sFLR, sKH))
        e(salu("s_mul_i32", sFLR, sFLR, C.flstride, scc_w=False)); e(salu("s_add_u32", sFLR, sFLR, WS_FLAG))
        e(salu("s_mul_i32", sTAG, sT0, 144 * FS, scc_w=False))
        e(salu("s_lshl_b32", sOut, sT0, 15)); e(salu("s_and_b32", sOut, sOut, 0xffff7fff)); e(salu("s_add_u32", sOut, sOut, sCT))
        e(salu("s_lshr_b32", sT0, sM0B, 1)); e(salu("s_add_u32", sOut, sOut, sT0))
        e(salu("s_lshl_b32", sT1, sT1, 13)); e(salu("s_add_u32", sT1, sT1, sCT))
        for c_ in range(3):
            e(salu("s_mul_i32", sT0, sKH, SHIFT[c_] * FS, scc_w=False)); e(salu("s_add_u32", sA2c[c_], sTAG, sT0))
            e(salu("s_mul_i32", sT0, sKH, SHIFT[c_] * 16384, scc_w=False)); e(salu("s_add_u32", sB2c[c_], sT0, sT1))
        e(salu("s_lshl_b32", sM0T, sW, 10)); e(salu("s_add_u32", sM0T, sM0T, TB))
        e(salu("s_lshl_b32", sT0, sRB, 2)); e(salu("s_add_u32", sT0, sT0, sW))
        e(salu("s_mul_i32", sT1, sT0, 144, scc_w=False))
        e(salu("s_add_u32", sSt2, sT1, sT2)); e(salu("s_mul_i32", sSt2, sSt2, FS, scc_w=False))
        if typ == "A":
            e(salu("s_mul_i32", sStF, sT2, FS, scc_w=False)); e(salu("s_add_u32", sStF, sStF, sSt2)); e(salu("s_add_u32", sStF, sStF, 112 * FS))
        else:
            e(salu("s_sub_u32", sStF, sSt2, 8 * FS))
        if C.skip3:
            e(valu("v_add_u32", vA2O, 640, vL16)); e(valu("v_lshrrev_b32", vA2O, 10, vA2O)); e(valu("v_lshl_add_u32", vA2O, vA2O, 7, vL16))
        else: e(valu("v_mov_b32", vA2O, vL16))
        e(salu("s_lshl_b32", sT0, sT0, 1)); e(salu("s_lshr_b32", sT1, sIDX, 2)); e(salu("s_add_u32", sT0, sT0, sT1))
        e(salu("s_mul_i32", sT0, sT0, C.flstride, scc_w=False))
        e(salu("s_and_b32", sT1, sIDX, 3)); e(salu("s_lshl_b32", sT1, sT1, 2))
        e(salu("s_add_u32", sT0, sT0, sT1)); e(salu("s_add_u32", sFLW, sT0, WS_FLAG))
        e(smov(SOUT[2], 0x200000)); e(smov(SOUT[3], 0x20000))
        if C.rot3:
            e(salu("s_lshr_b32", sT0, sB2c0, 4)); e(salu("s_sub_u32", sA2c0, sA2c0, sT0))
            e(salu("s_lshr_b32", sT0, sB2c2, 4)); e(salu("s_sub_u32", sA2c2, sA2c2, sT0))
            if C.rot_ct: e(salu("s_lshr_b32", sT0, sCT, 7)); e(salu("s_add_u32", sRT, sRT, sT0))
            for g in (3, 2, 1, 0):
                e(salu("s_add_u32", sT0, sRT, g)); e(salu("s_and_b32", sT0, sT0, 3)); e(salu("s_lshl_b32", sT0, sT0, 16))
                e(salu("s_add_u32", sG1[g], sB2c2, sT0))
                e(salu("s_mul_i32", sT0, sT0, 3, scc_w=False)); e(salu("s_add_u32", sG3[g], sB2c0, sT0))
        return o

    def warm_ops(self, isA):
        ww = self.ww; nr = 16 if isA else 8
        o = [salu("s_and_b32", sT5, sW, 1 if isA else 3), salu("s_mul_i32", sT5, sT5, nr, scc_w=False),
             salu("s_lshl_b32", sXk, sRB, 5), salu("s_add_u32", sT5, sT5, sXk), salu("s_mul_i32", sT5, sT5, 3584, scc_w=False),
             salu("s_lshl_b32", sXk, sT2, 5), salu("s_add_u32", sT5, sT5, sXk)]
        o += [self.touch(ww[2], SWH, sT5)] if isA else [self.touch(ww[2], SWG_, sT5), self.touch(ww[2], SWU, sT5, 1024)]
        fl = [self.touch(ww[0], SWS, sFLR, fl="sc1")] if C.warm_fl else []
        if C.warm_byB:
            if isA: return [[], fl, o]
            o1 = [salu("s_lshr_b32", sXk, sWG, 7), salu("s_lshl_b32", sXk, sXk, 6), salu("s_and_b32", sT5, sWG, 63), salu("s_add_u32", sXk, sXk, sT5),
                  salu("s_lshl_b32", sXk, sXk, 2), salu("s_add_u32", sXk, sXk, sW), salu("s_mul_i32", sT5, sXk, 28 * 128, scc_w=False),
                  self.touch(ww[0], SWD, sT5), self.touch(ww[0], SWD, sT5, 14 * 128)]
            o2 = [salu("s_lshl_b32", sT5, sXk, 10), self.touch(ww[1], SWO, sT5), self.touch(ww[1], SWO, sT5, 512)]
            return [o1, o2 + fl, o]
        if not C.warm_byA:
            o1 = [salu("s_lshl_b32", sXk, sWG, 2), salu("s_add_u32", sXk, sXk, sW), salu("s_mul_i32", sT5, sXk, 14 * 128, scc_w=False),
                  self.touch(ww[0], SWD, sT5)]
            o2 = [salu("s_lshl_b32", sT5, sXk, 9), self.touch(ww[1], SWO, sT5)]
            pl = []
            if C.pre_late:
                pl = [valu("v_lshlrev_b32", ww[1], 3, vL16)]
                if isA: pl += [valu("v_and_b32", ww[1], 0xf80, ww[1]), self.touch(ww[1], SWS, sStF)]
                else: pl += [valu("v_and_b32", ww[1], 0xf80 if C.pre_late > 1 else 0x780, ww[1]), self.touch(ww[1], SWS, sSt2, 0 if C.pre_late > 1 else 2048)]
            if C.pl_at == 1: o2 = o2 + pl
            else: o = o + pl
            return [[o1, o2 + fl, o], [o1 + o2 + fl, o, []], [o + o1, o2 + fl, []], [o1 + o2 + fl + o, [], []]][C.warm_mode]
        if not isA: return [[], fl + o]
        o1 = [salu("s_lshr_b32", sXk, sWG, 7), salu("s_lshl_b32", sXk, sXk, 6), salu("s_and_b32", sT5, sWG, 63), salu("s_add_u32", sXk, sXk, sT5),
              salu("s_lshl_b32", sXk, sXk, 2), salu("s_add_u32", sXk, sXk, sW), salu("s_mul_i32", sT5, sXk, 28 * 128, scc_w=False),
              self.touch(ww[0], SWD, sT5), self.touch(ww[0], SWD, sT5, 14 * 128)]
        o2 = [salu("s_lshl_b32", sT5, sXk, 10), self.touch(ww[1], SWO, sT5), self.touch(ww[1], SWO, sT5, 512)]
        return [o1, o2 + fl + o]

    def b2_soff(self, n, dst):
        ks, cls, st = step_info(n)
        if cls == 1 or not C.rot3: return salu("s_add_u32", dst, sB2c[cls], (ks - 112 if cls == 2 else ks) * 16384)
        if cls == 2: g = (ks - 112) >> 2; return salu("s_add_u32", dst, sG1[g], (ks - 112 - 4 * g) * 16384)
        g = (ks - 16) // 12; return salu("s_add_u32", dst, sG3[g], (ks - 12 * g) * 16384)

    def code_touch(self):
        E = self.E
        if not C.touch_code: return
        t = v(201)
        E.line(f"s_getpc_b64 {sPC}")
        pcl = self.lab("pc"); E.label(pcl)
        if C.code_split:
            E.emit(salu("s_and_b32", sT0, sJ, 15)); E.emit(salu("s_lshl_b32", sT0, sT0, 12))
            E.emit(valu("v_lshrrev_b32", t, 3, v(0))); E.emit(valu("v_and_b32", t, 0x18, t))
            E.emit(valu("v_and_or_b32", t, v(0), 7, t)); E.emit(valu("v_lshl_add_u32", t, t, 7, sT0))
        else:
            E.emit(salu("s_and_b32", sT0, sJ, 1)); E.emit(salu("s_lshl_b32", sT0, sT0, 15))
            E.emit(valu("v_lshlrev_b32", t, 7, v(0))); E.emit(valu("v_add_u32", t, sT0, t))
        E.line(f"s_mov_b32 {sT0}, L_code_end-{pcl}-4")
        E.emit(valu("v_min_u32", t, sT0, t))
        E.emit(I(f"global_load_dword {aDUM0}, {t}, {sPC}", "vml", t.ids(), ()))

    def finish_stats(self, sm, sq, rinv, nb, t0, t1):
        e = self.E.emit
        e(valu("v_mul_f32", sm, sC512, sm))
        e(valu("v_mul_f32", t0, sm, sm))
        e(I(f"v_fma_f32 {sq}, {sq}, {sC512}, -{t0}", "valu", sq.ids() | t0.ids() | sC512.ids(), sq.ids()))
        e(valu("v_max_f32", sq, 0, sq))
        e(valu("v_cvt_pk_bf16_f32", t0, sm, sq))
        e(valu("v_and_b32", t1, sHI, t0))
        e(valu("v_add_f32", t1, 0x3727c5ac, t1))
        e(valu("v_cvt_pk_bf16_f32", t1, t1, t1)); e(valu("v_and_b32", t1, sHI, t1))
        e(valu("v_sqrt_f32", t1, t1))
        e(valu("v_cvt_pk_bf16_f32", t1, t1, t1)); e(valu("v_and_b32", t1, sHI, t1))
        e(valu("v_rcp_f32", rinv, t1))
        e(valu("v_lshlrev_b32", t0, 16, t0))
        e(I(f"v_mul_f32 {nb}, -{t0}, {rinv}", "valu", t0.ids() | rinv.ids(), nb.ids()))

    def norm_ops(self, reg, rinv, nb, k0=0):
        ops = []
        for d in range(4):
            lo = NT[(2 * (k0 + d)) % 8]; hi = NT[(2 * (k0 + d) + 1) % 8]; x = reg[d]
            ops += [valu("v_lshlrev_b32", lo, 16, x), valu("v_and_b32", hi, sHI, x),
                    valu("v_fma_f32", lo, lo, rinv, nb), valu("v_fma_f32", hi, hi, rinv, nb),
                    valu("v_cvt_pk_bf16_f32", x, lo, hi)]
        return ops

    def dots(self, reg, acc):
        ops = []
        for d in range(reg.n):
            ops.append(valu("v_dot2_f32_bf16", acc[d & 1], reg[d], sONE, acc[d & 1]))
            ops.append(valu("v_dot2_f32_bf16", acc[2 + (d & 1)], reg[d], reg[d], acc[2 + (d & 1)]))
        return ops

    def wrap(self, reg, q, span):
        return glue([scmp("s_cmp_eq_u32", sROT, 4 - q), salu("s_cselect_b32", sS2b, span, 0, scc_w=False, scc_r=True),
                     salu("s_sub_u32", reg, reg, sS2b)])

    def chunks(self, obj):
        k, j = obj
        if self.typ == "A":
            if k == "s1": return list(range(3 * (j % 7), 3 * (j % 7) + 3))
            return [6 + 2 * j, 7 + 2 * j]
        jj = j if k == "s1" else 16 + j
        return list(range(4 * (jj % 6), 4 * (jj % 6) + 4))

    def slab_dma(self, obj):
        L = self.L; k, j = obj; ch = self.chunks(obj); fl = C.w_fl
        def f(E): L.alloc(obj, ch)
        if C.dbg_w and (k == "s2" or j >= 6): return [f]
        ops = [f, salu("s_add_u32", "m0", sM0B, 1024 * ch[0])]
        if k == "s1":
            st = 3072 if self.typ == "A" else 3584
            if self.typ == "A": ops += [dma(vH, SQKV, sS1, 1024 * u, obj, fl) for u in range(3)]
            else: ops += [dma(vG, SWG_, sS1, 0, obj, fl), dma(vU, SWU, sS1, 1024, obj, fl), dma(vG, SWG2, sS1, 2048, obj, fl), dma(vU, SWU2, sS1, 3072, obj, fl)]
            if j < 15: ops.append(salu("s_add_u32", sS1, sS1, 32 * st))
            if j % 4 == 3 and j < 15 and C.rot: ops.append(self.wrap(sS1, (j + 1) // 4, 512 * st))
        else:
            if self.typ == "A":
                ops += [salu("s_add_u32", sS2b, sS2, 16 * 3584 - 1024), dma(vG, SWH, sS2, 0, obj, fl), dma(vG, SWH, sS2b, 1024, obj, fl)]
            else:
                ops += [salu("s_add_u32", sS2b, sS2, 16 * 3584 - 2048), dma(vG, SWG_, sS2, 0, obj, fl), dma(vU, SWU, sS2, 1024, obj, fl),
                        dma(vG, SWG_, sS2b, 2048, obj, fl), dma(vU, SWU, sS2b, 3072, obj, fl)]
            if j < 7: ops.append(salu("s_add_u32", sS2, sS2, 64 * 3584))
            if j % 2 == 1 and j < 7 and C.rot: ops.append(self.wrap(sS2, (j + 1) // 2, 512 * 3584))
        return ops

    def b2_chunk(self, n):
        R_ = lambda lo, hi: list(range(lo, hi))
        if self.typ == "A":
            tab = R_(22, 32) + R_(22, 32) + R_(0, 12) + R_(32, 40) + R_(12, 22) + R_(22, 32) + R_(0, 12)
        else:
            tab = R_(24, 40) + R_(24, 40) + R_(0, 24) + R_(24, 32) + R_(0, 8)
        return tab[n]

    def b2_dma(self, n):
        L = self.L
        ks, cls, _ = step_info(n)
        ch = self.b2_chunk(n)
        def f(E): L.alloc(("b2", n), [ch])
        if C.dbg_b2 and n >= C.dbg_b2: return [f]
        return [f, salu("s_add_u32", "m0", sM0B, 1024 * ch) if ch < 32 else salu("s_add_u32", "m0", sM0T, 4096 * (ch - 32)),
                self.b2_soff(n, sB2s),
                dma(vB2, SWO if cls == 2 else SWD, sB2s, 0, ("b2", n), C.b2_fl)]

    def bar(self, cover, m_done, lds_all=False, lds_tags=()):
        L = self.L
        def f(E):
            E.wait_tags(lds=list(lds_tags) + list(cover), vm=cover)
            if lds_all: E.wait_all_lds()
            if not (C.dbg_bar and cover and cover[0][0] == "b2"): E.barrier()
            L.visible |= set(cover); L.bar_m = m_done
        return f

    def acc2(self, t): return ACC2(t) if self.typ == "A" else ACC1(t)

    def acc1(self, t): return ACC1(t) if t < 6 else a(112 + 16 * (t - 6), 16)

    def seq(self, typ):
        out = []
        order = [2, 3, 4, 5, 0, 1] if typ == "A" else list(range(8))
        k1 = self.k1
        s1 = [(ks, t) for ks in range(k1) for t in order] + [(ks, t) for t in order for ks in range(k1, 32)]
        for ks, t in s1:
            obj = ("s1", ks // 2); base = (ks & 1) * 32768 + self.chunks(obj)[0] * 1024
            if True:
                if typ == "A":
                    out.append(dict(acc=ACC1(t), x=X(ks), sw=(t >= 4), obj=obj, addr=vTR[4 + (t & 1)],
                                    imm=base + (t >> 1) * 1024, st=512, first=(ks == 0)))
                else:
                    out.append(dict(acc=self.acc1(t), x=X(ks), sw=False, obj=obj, addr=vTR[t & 3], imm=base + (t >> 2) * 2048, st=512, first=(ks == 0)))
        nt = self.nt2
        k0 = self.k0
        s2 = [(ks, t) for ks in range(k0) for t in range(nt)] + [(ks, t) for t in range(nt) for ks in range(k0, 32)]
        for ks, t in s2:
            obj = ("s2", ks // 4); k = ks & 3
            out.append(dict(acc=self.acc2(t), x=X(ks), sw=False, obj=obj, addr=vTR[t],
                            imm=(k >> 1) * 32768 + self.chunks(obj)[0] * 1024 + (k & 1) * (1024 if typ == "A" else 2048),
                            st=256 if typ == "A" else 512, first=(ks == 0)))
        nl = 72 - C.lastk
        p2 = [(n, j) for n in range(nl) for j in ((1, 0) if n == 55 else (0, 1))] + [(n, j) for j in (1, 0) for n in range(nl, 72)]
        for n, j in p2:
            iso = step_info(n)[1] == 2
            if True:
                ch = self.b2_chunk(n)
                out.append(dict(acc=(ACCS if iso else ACCD)[j], x=n, sw=False, obj=("b2", n),
                                addr=self.tr2[j] if ch < 32 else self.tr2t[j], j=j, imm=ch * 1024 if ch < 32 else (ch - 32) * 4096,
                                st=32768 if ch < 32 else 1024, first=(n in (0, 40))))
        for m, o in enumerate(out): self.L.last_use[o["obj"]] = m
        return out

    def wreads(self, m):
        o = self.SEQ[m]; L = self.L
        if o["obj"][0] == "b2" and o["obj"][1] < self.nF: return []
        if C.abl_p2 and o["obj"][0] == "b2" and (m & 1): return []
        if C.abl_tr and m >= 24 and (m % C.abl_tr) and (o["obj"][0] != "b2" or C.abl_tr2): return []
        def f(E): assert o["obj"] in L.visible, ("read of invisible", m, o["obj"])
        return [f, ds_tr(WF(m).sub(0, 2), o["addr"], o["imm"]), ds_tr(WF(m).sub(2, 2), o["addr"], o["imm"] + o["st"])]

    def main(self, m):
        o = self.SEQ[m]
        if isinstance(o["x"], int):
            def mk(peek):
                if peek and o["x"] not in self.a2slot: return None
                w = self.frag[(o["x"], o["j"])]["r"] if o["x"] < self.nF else WF(m)
                return mfma(o["acc"], w, self.a2slot[o["x"]]["r"], 0 if o["first"] else o["acc"])
            mn = dict(pre=[], m=mk, fix=[])
            if o["x"] < self.nF: mn["fix"].append(lambda E: self.pool.give(E, self.frag[(o["x"], o["j"])]))
            if m == self.L.last_use[o["obj"]]: mn["fix"].append(lambda E: self.pool.give(E, self.a2slot[o["x"]]))
        else:
            A_, B_ = (o["x"], WF(m)) if o["sw"] else (WF(m), o["x"])
            mn = dict(pre=[], m=mfma(o["acc"], A_, B_, 0 if o["first"] else o["acc"]), fix=[])
        if m + C.D < len(self.SEQ): mn["fix"] += self.wreads(m + C.D)
        return mn

    def spin_check_tag(self):
        def f(E):
            ok = self.lab("tagok"); sp = self.lab("tagspin")
            E.emit(rfl(sTAG, vTAG))
            E.emit(scmp("s_cmp_eq_u32", sTAG, 0))
            E.line(f"s_cbranch_scc1 {sp}")
            E.label(ok)
            self.cold += [f"{sp}:", f"    s_mov_b32 {sSPIN}, 0", f"{sp}_l:",
                          f"    buffer_load_dword {vTAG}, off, {SDBG}, 0 sc1", f"    s_add_u32 {sSPIN}, {sSPIN}, 1",
                          "    s_waitcnt vmcnt(0)", f"    v_readfirstlane_b32 {sTAG}, {vTAG}",
                          f"    s_cmp_ge_u32 {sSPIN}, {C.spin_max}", f"    s_cbranch_scc1 {ok}",
                          f"    s_cmp_eq_u32 {sTAG}, 0", f"    s_cbranch_scc1 {sp}_l", f"    s_branch {ok}"]
        return f

    def poll_load(self, stage):
        return vload(self.vpl[stage], vP4, SWS, sFLR, FLO[stage], fl="sc1")

    def poll2_load(self, stage):
        i = vload(vSP[0], vP4, SWS, sFLR, FLO[stage], tag=("p2", stage), fl="sc1"); i.w = set()
        return i

    def gate(self, stage):
        def f(E):
            ok = self.lab("gateok"); sp = self.lab("gatespin")
            self.stamp(f"g{stage}a")
            E.emit(vcmp("v_cmp_ne_u32", "vcc", sTAG, self.vpl[stage]))
            if not C.dbg_gate: E.line(f"s_cbranch_vccnz {sp}")
            E.label(ok)
            ld = lambda r: f"    buffer_load_dword {r}, {vP4}, {SWS}, {sFLR} offen offset:{FLO[stage]} sc1"
            regs = [self.vpl[stage], vSP[0], vSP[1]][:C.npoll]; k = len(regs)
            k2 = [n for n, x in enumerate(E.vq) if x[2] == ("p2", stage)]
            second = []
            if C.poll2 and stage in self.has2:
                n2 = sum(1 for x in E.vq[k2[0] + 1:] if x[3]) if k2 else 62
                second = [f"    s_waitcnt vmcnt({min(n2, 62)})", f"    v_cmp_ne_u32 vcc, {sTAG}, {vSP[0]}", f"    s_cbranch_vccz {ok}"]
            self.cold += [f"{sp}:"] + second + [f"    s_mov_b32 {sSPIN}, 0"] + [x for r in regs[:-1] for x in (ld(r), "    s_nop 15", "    s_nop 15")] + [f"{sp}_l:"]
            for q_ in range(k):
                self.cold += [ld(regs[(q_ + k - 1) % k]), f"    s_waitcnt vmcnt({k - 1})", f"    v_cmp_ne_u32 vcc, {sTAG}, {regs[q_]}", f"    s_cbranch_vccz {ok}"]
            self.cold += [f"    s_add_u32 {sSPIN}, {sSPIN}, 1", f"    s_cmp_ge_u32 {sSPIN}, {C.spin_max}", f"    s_cbranch_scc0 {sp}_l", f"    s_branch {ok}"]
            self.stamp(f"g{stage}b")
        return f

    def flag_store(self, stage, tags):
        def f(E):
            self.stamp(f"f{stage}a")
            E.wait_tags(vm=tags)
            self.stamp(f"f{stage}b")
            E.emit(vstore(vTAG, None, SWS, sFLW, FLO[stage], fl="sc1"))
        return f

    def a2_load(self, n):
        ks, cls, _ = step_info(n)
        o = []
        if self.a2base is None or self.a2base[0] != cls or not (0 <= (ks - self.a2base[1]) * FS < 4096):
            self.a2base = (cls, ks)
            if cls == 1 or not C.rot3: o.append(salu("s_add_u32", sA2s, sA2c[cls], ks * FS))
            else:
                assert FS == 1024
                g = (ks - 112) >> 2 if cls == 2 else (ks - 16) // 12
                o += [salu("s_lshr_b32", sA2s, (sG1 if cls == 2 else sG3)[g], 4), salu("s_add_u32", sA2s, sA2s, sA2c[cls]),
                      salu("s_add_u32", sA2s, sA2s, (ks - 4 * g if cls == 2 else ks - 12 * g) * 1024)]
        imm = (ks - self.a2base[1]) * FS
        kind = "AE" if n < 40 else "A"
        def f(E):
            x = self.a2slot[n] = self.pool.take(E, kind)
            if not (C.dbg_a2 and n >= C.dbg_a2): E.emit(vload(x["r"], vA2O, SWS, sA2s, imm, fl=C.a2_fl))
        f.vm = True; f.ready = lambda E: self.pool.find(E, kind) is not None
        return o + [f]

    def pre_read(self, n):
        out = []
        for m in (self.M3 + 2 * n, self.M3 + 2 * n + 1):
            o = self.SEQ[m]
            def f(E, o=o):
                assert o["obj"] in self.L.visible
                x = self.frag[(n, o["j"])] = self.pool.take(E, "R")
                E.emit(ds_tr(x["r"].sub(0, 2), o["addr"], o["imm"], tag=("fr", n)))
                E.emit(ds_tr(x["r"].sub(2, 2), o["addr"], o["imm"] + o["st"], tag=("fr", n)))
            f.slots = 2
            out.append(f)
        return out

    def raw_load(self, n):
        ks, cls, _ = step_info(n)
        def f(E):
            x = self.rawslot[n] = self.pool.take(E, "R")
            E.emit(vload(x["r"], vB2, SWO if cls == 2 else SWD, sXo, 0, fl=C.b2_fl))
        f.vm = True; f.ready = lambda E: self.pool.find(E, "R") is not None
        return [self.b2_soff(n, sXo), f]

    def a2_store(self, reg, sbase, t, tag):
        st = vstore(reg, vA2O, SWS, sStH if t * FS >= 4096 else sbase, 0 if t * FS >= 4096 else t * FS, tag, C.st_fl)
        if t * FS >= 4096: st.pre = salu("s_add_u32", sStH, sbase, t * FS)
        return st

    def h_epilogue(self, T, sbase, imm, tag):
        ops = [valu("v_mul_f32", T[r], T[r], T[r + 8]) for r in range(8)]
        ops += [valu("v_cvt_pk_bf16_f32", T[r], T[2 * r], T[2 * r + 1]) for r in range(4)]
        ops.append(self.a2_store(T.sub(0, 4), sbase, imm, tag))
        return ops

    def body(self, typ):
        E = self.E; e = E.emit
        self.L = L = LDSMap()
        E.m0_owner = None; E.fifo = None
        self.typ = typ
        isA = typ == "A"
        nt1, nt2 = (6, 2) if isA else (8, 4)
        self.nt2 = nt2; self.k0 = k0 = 24 if isA else 20
        self.k1 = k1 = 28 if isA else C.k1B
        M2 = self.M2 = 32 * nt1; M3 = self.M3 = M2 + 32 * nt2
        self.nF = 10 if isA else 16
        self.tr2 = [vTR[2], vTR[3]] if isA else [vEX, vHW]
        self.tr2t = vTR2T if isA else [vPM, vMHC]
        self.parked = self.tr2 + self.tr2t if isA else []
        self.frag = {}
        self.SEQ = self.seq(typ)
        self.a2base = None
        self.cold = []; self.has2 = set()
        self.lane = v(200); self.vx = [v(204 + g) for g in range(4)]; self.hs = [v(196), v(197)]
        self.xa = xa = [v(216 + q) for q in range(4)]; self.acc = acc = [v(220 + q) for q in range(4)]
        self.ha = ha = [v(144 + i) for i in range(5)]; self.hacc = hacc = [v(149 + i) for i in range(4)]
        self.ww = [vU, vTR[2], vTR[3]] if isA else [vH, vW16, vHX]
        self.vpl = vPL + [self.ww[0]]
        self.stamp("t0")
        if C.stamps: E.line("s_memrealtime s[0:1]")
        first = self.setup_first(typ)
        rest = self.consts(typ)
        k1_ = max(self.ncrit, min(C.npre, len(first)))
        while k1_ < len(first) and SCC in first[k1_].r: k1_ += 1
        E.emits(first[:k1_]); first2 = first[k1_:]
        k = max(0, C.npre - len(first))
        while k < len(rest) and SCC in rest[k].r: k += 1
        E.emits(rest[:k]); rest = rest[k:]
        E.line("s_waitcnt lgkmcnt(0)")
        self.stamp("karg")
        def inplace(d, size, other, shift=0):
            o = []
            if other is SWS and C.wsoff:
                return [glue([salu("s_add_u32", other[0], d[2], C.wsoff << 20), salu("s_addc_u32", other[1], d[3], 0, scc_r=True)]),
                        smov(d[2], size), smov(d[3], 0x20000)]
            if other is not None and shift: o += [salu("s_sub_u32", other[0], d[2], shift), salu("s_subb_u32", other[1], d[3], 0, scc_r=True)]
            elif other is not None: o += [smov(other[0], d[2]), smov(other[1], d[3])]
            return o + [smov(d[2], size), smov(d[3], 0x20000)]
        E.emits(inplace(SX, 0x200000, SQKV if isA or C.qkv_byB else None))
        if isA:
            for it in inplace(SDBG, 256, SWS): run_item(E, it)
        def xd(sl):
            o = [salu("s_add_u32", "m0", sM0B, 4096 * sl), salu("s_add_u32", sA2s, sXo, sXk)]
            o += [dma(self.vx[g], SX, sA2s, 1024 * g, tag=("x", sl), fl=C.x_fl) for g in range(4)]
            if sl < 7: o += [salu("s_add_u32", sXk, sXk, 128), salu("s_and_b32", sXk, sXk, 1023)]
            return o
        if isA:
            for ee in range(2):
                for g in range(2):
                    e(salu("s_add_u32", "m0", sS2b, TB + 2048 * ee + 1024 * g))
                    e(dma(self.hs[g], SX, sHo, 0, tag="halo", fl=C.x_fl))
                if ee == 0: e(salu("s_add_u32", sHo, sHo, 128))
            lskip = self.lab("noep")
            e(salu("s_or_b32", sSPIN, sWG, sW))
            E.line(f"s_cbranch_scc1 {lskip}")
            E.line(f"s_mov_b32 {sSPIN}, {WS_EPOCH}")
            E.line(f"buffer_load_dword {vPOLL}, off, {SWS}, {sSPIN} sc1")
            E.label(lskip)
        if C.dbg_jit & 8:
            l_ = self.lab("jit"); E.line(f"s_and_b32 {sSPIN}, {sWG}, 63"); E.line(f"s_cbranch_scc1 {l_}")
            for _ in range(6): E.line("s_sleep 127")
            E.label(l_)
        E.emits(xd(0)); E.emits(xd(1))
        E.emits(first2)
        nx = 2
        if isA:
            if C.touch_w0 and not C.qkv_byB: e(self.touch(vTW, SQKV, sT5))
            e(scmp("s_cmp_ge_u32", sW, 2))
            e(salu("s_cselect_b32", SWH[0], SWG_[2], SWG_[0], scc_w=False, scc_r=True))
            e(salu("s_cselect_b32", SWH[1], SWG_[3], SWG_[1], scc_w=False, scc_r=True))
        else:
            if C.tw_late: E.emits(xd(2)); nx = 3
            if C.touch_w0 and C.qkv_byB: e(self.touch(vMHP, SQKV, sXs))
            E.emits([salu("s_sub_u32", SWU2[0], SWG_[2], 2944), salu("s_subb_u32", SWU2[1], SWG_[3], 0, scc_r=True),
                     salu("s_sub_u32", SWG2[0], SWG_[0], 1920), salu("s_subb_u32", SWG2[1], SWG_[1], 0, scc_r=True)])
            E.emits(inplace(SWG_, 512 * 3584, SWU, 1024))
            if C.touch_w0 and not C.tw_late: e(self.touch(vTW, SWG_, sT5)); e(self.touch(vTW, SWU, sT5, 1024))
            if C.x2early: E.emits(xd(2)); nx = 3
        self.stamp("issued")
        late_srd = ([] if isA else inplace(SDBG, 256, SWS)) + inplace(SWD, 1792 * 1024, SOUT) + inplace(SWO, 512 * 1024, None)
        E.emits(rest)
        if C.stamps: E.line("v_accvgpr_write_b32 a198, s0")
        self.stamp("rest")
        if C.pads:
            E.line("s_mov_b64 exec, 0")
            for w_ in (1, 2, 3):
                E.line(f"s_cmp_eq_u32 {sW}, {w_}"); E.line(f"s_cbranch_scc1 L_pad{typ}_{w_}")
            E.line(f"s_branch L_pad{typ}_0")
            E.label(f"L_back{typ}")
            E.line("s_mov_b64 exec, -1")
            E.out.append(f";PADS_FROM {typ}")
        self.stamp("pads")
        if C.tw_late and not isA: e(self.touch(vTW, SWG_, sT5)); e(self.touch(vTW, SWU, sT5, 1024))
        if nx == 2 and not isA: E.emits(xd(2)); nx = 3
        if C.scal_early:
            for it in late_srd + self.scalars(typ): run_item(E, it)
        if isA:
            hx = v(128, 16); pr = v(154, 2); tp = v(156, 2); pp = v(158, 8)
            E.wait_tags(vm=["halo"])
            self.epoch_publish()
            for ee in range(2):
                for b in range(2): e(ds_rd(hx.sub(4 * (2 * ee + b), 4), ha[b], 2048 * ee))
            E.emits(xd(2)); nx = 3
            E.emits(self.dots(hx, hacc))
            e(valu("v_add_f32", pr[0], hacc[0], hacc[1])); e(valu("v_add_f32", pr[1], hacc[2], hacc[3]))
            for sw in (swap16, swap32):
                e(valu("v_mov_b32", tp[0], pr[0])); e(valu("v_mov_b32", tp[1], pr[1]))
                e(sw(pr[0], tp[0])); e(sw(pr[1], tp[1]))
                e(valu("v_add_f32", pr[0], pr[0], tp[0])); e(valu("v_add_f32", pr[1], pr[1], tp[1]))
            e(ds_wr(ha[3], pr, 0, tag="hp"))
        def xdots(k):
            E.emits(self.dots(v(16 * k, 16), acc)); L.xread.add(k)
        for sl in range(9):
            early = sl >= C.dots_first
            if sl > 0 and early: xdots(sl - 1)
            if sl < 8:
                E.wait_tags(vm=[("x", sl)])
                self.stamp(f"x{sl}")
                for q in range(4): e(ds_rd(X(4 * sl + q), xa[q], 4096 * sl))
                if nx < 8: E.emits(xd(nx)); nx += 1
            if isA and sl == 0:
                E.wait_tags(lds=["hp"]); E.barrier()
                for w_ in range(4): e(ds_rd(pp.sub(2 * w_, 2), ha[2], 4096 * w_))
            if isA and sl == (1 if C.hn_at else 0):
                e(valu("v_add_f32", pr[0], pp[0], pp[2])); e(valu("v_add_f32", pr[1], pp[1], pp[3]))
                e(valu("v_add_f32", tp[0], pp[4], pp[6])); e(valu("v_add_f32", tp[1], pp[5], pp[7]))
                e(valu("v_add_f32", pr[0], pr[0], tp[0])); e(valu("v_add_f32", pr[1], pr[1], tp[1]))
                self.finish_stats(pr[0], pr[1], pp[0], pp[1], tp[0], tp[1])
            for f_ in (range(4) if (C.hn_at == 0 and sl == 0) else [sl - C.hn_at] if (C.hn_at and C.hn_at <= sl < C.hn_at + 4) else []):
                if not isA: break
                E.emits(self.norm_ops(hx.sub(4 * f_, 4), pp[0], pp[1]))
                e(ds_wr(ha[4], hx.sub(4 * f_, 4), 1024 * f_, tag="hxw"))
            if sl > 0 and not early: xdots(sl - 1)
            for j in {C.w0at: [0], C.w0at + 1: [1], 6: [2], 7: [3] if C.w3early or isA else []}.get(sl, []):
                for it in self.slab_dma(("s1", j)): run_item(E, it)
        self.stamp("xdone")
        npn = C.npre_normA if isA else C.npre_norm
        def bx():
            self.bar([("s1", 0), ("s1", 1)], -1, lds_tags=["hxw"])(E)
            self.stamp("bx")
            for m in range(C.D):
                for it in self.wreads(m): run_item(E, it)
        e(valu("v_add_f32", acc[0], acc[0], acc[1])); e(valu("v_add_f32", acc[2], acc[2], acc[3]))
        e(valu("v_mov_b32", acc[1], acc[0])); e(valu("v_mov_b32", acc[3], acc[2]))
        e(swap32(acc[0], acc[1])); e(swap32(acc[2], acc[3]))
        e(valu("v_add_f32", acc[0], acc[0], acc[1])); e(valu("v_add_f32", acc[2], acc[2], acc[3]))
        self.finish_stats(acc[0], acc[2], vRINV, vNB, acc[1], acc[3])
        for ks in range(npn - 1): E.emits(self.norm_ops(X(ks), vRINV, vNB))
        bx()
        E.emits(self.norm_ops(X(npn - 1), vRINV, vNB))
        self.stamp("s1"); self.stamp("b0")
        def jitter(E, mask, n):
            l = self.lab("jit")
            E.line(f"s_mul_i32 {sSPIN}, {sWG}, 5"); E.line(f"s_add_u32 {sSPIN}, {sSPIN}, {sW}"); E.line(f"s_and_b32 {sSPIN}, {sSPIN}, {mask}")
            E.line(f"s_cbranch_scc1 {l}")
            for _ in range(n): E.line("s_sleep 127")
            E.label(l)
        if C.dbg_jit & 1: jitter(E, 7, 3)

        mains = [self.main(m) for m in range(len(self.SEQ))]
        E.gap = 0; E.fifo = Fifo(); E.fifo.p = E.pos; E.fifo.n = 4
        D = C.D
        qN = Q("norm"); qD = Q("dma"); qH = Q("halo"); qB = Q("b2"); qW = Q("raw", hard=False); qU = Q("dump", vm_age=0)
        qE = Q("epi"); qE2 = Q("epi2", hard=False, top=True); qR = Q("restore"); qFl = Q("flag", top=True)
        self.pool = pool = Pool(); self.a2slot = {}; self.rawslot = {}; self.mark = {}
        started = lambda q: (len(q.items) > 0 and q.empty())
        pool.add(a(200, 56), "AR")
        pool.add(a(192, 4), "A", lambda: started(qR))
        if isA:
            pool.add(a(80, 32), "AR")
            pool.add(a(112, 24), "AR", (lambda: self.mark.get("masks")) if C.mask_early else None)
            pool.add(a(160, 32), "A", lambda: self.mark.get("masks"))
            pool.add(a(48, 32), "A", lambda: started(qE2))
            pool.add(a(136, 24), "A", lambda: started(qE)); pool.add(v(128, 96), "A", lambda: started(qE))
            rawl = list(range(40, 72))
        else:
            pool.add(a(144, 16), "AR"); pool.add(a(160, 32), "A")
            pool.add(a(48, 64), "AR")
            pool.add(a(112, 32), "AR", lambda: started(qE)); pool.add(v(192, 32), "AR", lambda: started(qE))
            pool.add(v(128, 64), "A", lambda: started(qE2))
            for k in list(range(8)) + [12, 13, 14, 15]: pool.add(X(k), "E", lambda k=k: E.gap > M2 + 4 * k + 3)
            rawl = list(range(44, 72))
        rawit = {}
        if C.raw:
            for n in rawl[:C.nrawA if isA else C.nrawB]:
                rawit[n] = self.raw_load(n)
                qW.adds(rawit[n], earliest=C.raw0A if isA else C.raw0B, deadline=M3 + 16 * (n // 8) - C.D - 40)
        def place(n):
            def f(E):
                need = M3 + 16 * (n // 8) - C.D
                if n in self.rawslot:
                    ch = self.b2_chunk(n); x = self.rawslot[n]
                    qU.add(lambda E: L.alloc(("b2", n), [ch]), deadline=need - 3)
                    if not C.dbg_dump: qU.add(ds_wr(vWQ, x["r"], 1024 * ch, tag=("b2", n)), deadline=need - 3)
                    qU.add(lambda E: pool.give(E, x), deadline=need - 3)
                else:
                    for it in rawit.get(n, []): it.dead = True
                    b2_add(n, E.gap)
            return f
        qG = Q("frag")
        def b2_add(n, gap, need=None):
            need = need or M3 + 16 * (n // 8) - D
            qB.adds(self.b2_dma(n), earliest=gap, deadline=need - C.b2lead - 2 * (7 - n % 8), hard=False)
            qB.add(lambda E: None, earliest=gap, deadline=max(need - 10, gap + 2))
        def frag_plan(g, step_, groups):
            b0 = C.b2gA if isA else C.b2gB
            cover = []; tags = []; gap = step_ * g - D
            for k, pg in enumerate(groups):
                if g == b0 + k:
                    for n in pg: b2_add(n, gap + 4, gap + 2 * step_)
                if g == b0 + k + 2:
                    cover += [("b2", n) for n in pg]
                    for n in pg:
                        qG.adds(self.pre_read(n), earliest=gap, deadline=gap + step_ - 3); L.last_use[("b2", n)] = gap + step_ - 1
                if g == b0 + k + 3:
                    tags += [("fr", n) for n in pg]
                    for n in pg: b2_add(n + self.nF, gap)
            return cover, tags
        def barrier(gap, cover, name, **kw):
            mains[gap]["npre"] = 2
            mains[gap]["pre"] += [lambda E: self.stamp(name + "a"), self.bar(cover, gap - 1, **kw), lambda E: self.stamp(name)]
        for ks in range(npn, 32 if not C.abl_norm else npn + 1):
            qN.adds(self.norm_ops(X(ks), vRINV, vNB, ks * 4), earliest=max(0, nt1 * (ks - C.nahead) - 1),
                    deadline=nt1 * ks if ks < k1 else nt1 * k1 + ks - k1)
        for j in (range(4, 7) if isA else range(4 if C.w3early else 3, 5)): qD.adds(self.slab_dma(("s1", j)), earliest=0, deadline=17 if isA else 20)
        qK = Q("scal")
        qK.adds(late_srd if not C.scal_early else [], earliest=0, deadline=(24 if isA else 32) - D)
        sc_ = self.scalars(typ) if not C.scal_early else [smov(sT0, 0)]
        for q_, it in enumerate(sc_): qK.add(it, earliest=0, deadline=int(10 + C.scal_span * q_ / len(sc_)), hard=False)
        qK.add(lambda E: None, deadline=10 + C.scal_span + 8)
        L.last_use[("T",)] = M2 + 40 if isA else -1
        tagload = vload(vTAG, None, SDBG, 0, fl="sc1")
        warm = []
        if C.touch_b2:
            tb = self.ww[0]
            warm = [[valu("v_lshlrev_b32", tb, 6, vL16), valu("v_and_b32", tb, 0x7c00, tb), valu("v_add_u32", tb, sCT, tb),
                     salu("s_lshl_b32", sRT, sRT, 2), salu("s_add_u32", sRT, sRT, sW),
                     salu("s_lshl_b32", sT5, sRT, 14), self.touch(tb, SWD, sT5)],
                    [salu("s_lshr_b32", sT5, sRT, 1), salu("s_lshl_b32", sT5, sT5, 2), salu("s_add_u32", sT5, sT5, sRT),
                     salu("s_add_u32", sT5, sT5, 12), salu("s_lshl_b32", sT5, sT5, 15), self.touch(tb, SWD, sT5)],
                    [salu("s_lshl_b32", sT5, sRT, 15), self.touch(tb, SWO, sT5)]]
        def slab(jj): return ("s1", jj) if jj < 16 else ("s2", jj - 16)
        if isA:
            for g in range(1, 9):
                gap = 24 * g - D
                cv, tg = frag_plan(g, 24, [range(0, 5), range(5, 10)])
                barrier(gap, ([("s1", 2 * g), ("s1", 2 * g + 1)] if g < 8 else [("s2", j) for j in range(4)]) + cv, f"b{g}", lds_tags=tg)
                its = []
                for j in (2 * g + 4, 2 * g + 5):
                    if 7 <= j < 16: its += self.slab_dma(("s1", j))
                for j in {6: [0, 1, 2], 7: [3, 4, 5], 8: [6, 7]}.get(g, []): its += self.slab_dma(("s2", j))
                k_ = g - (C.warm_gA if isA else C.warm_gB)
                if k_ in (0, 1, 2) and C.warm_all:
                    qD.adds(its, earliest=gap, deadline=gap + 16); its = []
                    qK.adds(self.warm_ops(isA)[k_], earliest=gap + C.warm_off, deadline=gap + C.warm_off + 14)
                if C.b2g <= g < C.b2g + 3 and warm: its += warm[g - C.b2g]
                if g == 6: its.append(tagload)
                if g == C.warm_gA + 2: qK.adds([accr(self.tr2[n_], a(aPARK + n_)) for n_ in range(2)], earliest=gap + 12, deadline=gap + 40)
                qD.adds(its, earliest=gap, deadline=gap + (14 if g == 7 else 23))
            for j in range(16):
                g0 = max(0, 12 * j - D + 1)
                b = j & 1; ch = self.chunks(("s1", j))[0] * 1024
                its = [ds_rd(aXH[b], vHX, 1024 * j)]
                for u in range(2):
                    its += [ds_tr(aW16[b][u].sub(0, 2), vW16, ch + 1024 * (1 + u)), ds_tr(aW16[b][u].sub(2, 2), vW16, ch + 1024 * (1 + u) + 512)]
                qH.adds(its, earliest=g0, deadline=12 * j + 4)
                qH.add(mfma(aHACC[0], aW16[b][0], aXH[b], 0 if j == 0 else aHACC[0], "16x16x32"), earliest=g0, deadline=12 * j + 8)
                qH.add(mfma(aHACC[1], aXH[b], aW16[b][1], 0 if j == 0 else aHACC[1], "16x16x32"), earliest=12 * j + 7, deadline=12 * j + 10)
            gap = M2 + 32 - D
            barrier(M2 + C.exbar, [], "ex", lds_tags=["exw"])
            barrier(gap, [("s2", j) for j in range(4, 8)], "mid")
            for n in range(20, 32): b2_add(n, gap)
            first_use = {0: list(range(32, 46)), 1: list(range(46, 50))}
        else:
            for g in range(1, 12):
                gap = 32 * g - D - (8 if g == 11 else 0)
                cv, tg = frag_plan(g, 32, [range(0, 8), range(8, 16)])
                barrier(gap, [slab(jj) for jj in {10: (20, 21, 22), 11: (23,)}.get(g, (2 * g, 2 * g + 1))] + cv, f"b{g}", lds_tags=tg)
                its = []
                for jj in ({8: (19,), 9: ()} if k1 == 28 else {9: ()}).get(g, (2 * g + 3, 2 * g + 4)):
                    if jj < 24: its += self.slab_dma(slab(jj))
                if g == 9:
                    for q_, jj in enumerate((20, 21, 22) if k1 == 28 else (21, 22)):
                        qD.adds(self.slab_dma(slab(jj)), earliest=gap, deadline=gap + 4 * q_, hard=False)
                        qD.add(lambda E: None, earliest=gap, deadline=gap + 6 + 5 * q_)
                k_ = g - (C.warm_gA if isA else C.warm_gB)
                if k_ in (0, 1, 2) and C.warm_all:
                    qD.adds(its, earliest=gap, deadline=gap + 16); its = []
                    qK.adds(self.warm_ops(isA)[k_], earliest=gap + C.warm_off, deadline=gap + C.warm_off + 14)
                if C.b2g <= g < C.b2g + 3 and warm: its += warm[g - C.b2g]
                if g == 6: its.append(tagload)
                for n in {10: range(32, 36), 11: range(36, 44)}.get(g, []): b2_add(n, gap)
                qD.adds(its, earliest=gap, deadline=gap + {1: 28, 9: 22, 10: 7}.get(g, 18))
            first_use = {0: list(range(44, 48)), 1: list(range(48, 56))}
        def xfree(reg): return M2 + nt2 * ((reg.lo + reg.n - 1) // 4) + nt2 - 1
        qFl.add(self.spin_check_tag(), earliest=M2 - 8, deadline=M2 - 4)
        def after(q, stage, tags):
            def arm(E):
                f = self.flag_store(stage, tags); p0 = E.pos; g0_ = E.gap
                fd = C.flagd if stage in (0, 2) else (C.flag1 if stage == 1 else C.flagl)
                f.ready = lambda E: ((E.pos - p0) * 4 + (E.gap - g0_) * 8 >= fd or (E.gap - g0_) * 33 >= fd
                                     or not any(x[2] in tags for x in E.vq))
                qFl.add(f, earliest=E.gap)
            q.add(arm)
        if not isA:
            for t in range(8):
                T = ACC1(t if t < 6 else t - 2)
                its = [accr(T[r], self.acc1(t)[r]) for r in range(16)] if t >= 6 else []
                qE.adds(its + self.h_epilogue(T, sStF, t, "h1"), earliest=nt1 * k1 + (32 - k1) * (t + 1) - 1,
                        deadline=M2 - 1 + (t if k1 > 28 else 0) if t < 4 else nt1 * 28 + 4 * t + 8, hard=(t < 4))
            after(qE, 0, ["h1"])
        else:
            self.attention(qE, xfree)
            n0 = self.exw_check[1]; nn = len(qE.items)
            for k in range(n0, nn):
                it, ear, dl, hd = qE.items[k]
                qE.items[k] = (it, ear, int(M2 + 8 + (M3 + C.att_end - M2 - 8) * (k - n0) / (nn - n0)), False)
            after(qE, 3, ["o"])
        schedule(E, mains[:M2], [qN, qK, qD, qH, qG, qB, qW, qFl, qE], lambda g: (C.cap1A if isA else C.cap1B) if g < nt1 * k1 else C.cap1t,
                 0, flush=False, vm_gap=C.vm1)
        assert qN.empty() and qH.empty()
        self.stamp("s2")

        qL = Q("a2"); qF = Q("fin", vm_age=60); qP = Q("poll", top=True)
        g0 = M3 if isA else M3 + C.gate0B
        for n_, dst in enumerate(self.parked):
            if dst.lo < 128: qR.add(accr(dst, a(aPARK + n_)), earliest=xfree(dst), deadline=min(g0, M3 - D) - 2)
        qR.add(valu("v_add_u32", vWQ, sM0B, vL16), earliest=xfree(vWQ), deadline=min(g0, M3 - D) - 2)
        tail = M2 + k0 * nt2; tl = 32 - k0
        for t in range(nt2):
            its = ([accr(E2T[r], ACC2(t)[r]) for r in range(16)] if isA else []) + self.h_epilogue(E2T if isA else ACC1(t), sSt2, t, "h2" if t < 2 else "h3")
            qE2.adds(its, earliest=tail + tl * t + tl - 1, deadline=tail + tl * t + tl + 8)
            if t == 1: after(qE2, 1 if isA else 2, ["h2"])
            if t == 3: after(qE2, 4, ["h3"])
        mains[M3]["pre"].append(lambda E: self.stamp("p2"))
        if C.dbg_jit & 2: mains[M2 + 20]["pre"].append(lambda E: jitter(E, 12, 2))
        if C.dbg_jit & 4: mains[M3 - 3]["pre"].append(lambda E: jitter(E, 9, 2)); mains[M3 + 60]["pre"].append(lambda E: jitter(E, 3, 1))
        def fifo_reset(E): E.fifo.n = min(E.fifo.level(E), C.fifo0); E.fifo.p = E.pos; E.fifo.g = E.gap; E.fifo.PERIOD = C.per3
        for gg in (M3 + 1, M3 + 14): mains[gg]["pre"].append(fifo_reset)
        for n_ in range(72): mains[M3 + 2 * n_]["fix"].insert(0, lambda E, n_=n_: self.stamp(f"n{n_}"))
        gates = {0: g0, 32: M3 + 2 * (32 - C.la1), 40: M3 + 2 * (40 - C.la2), 56: M3 + 2 * (56 - C.la3),
                 64: M3 + 2 * (64 - (C.la4A if isA else C.la4B))}
        def chk_free(q):
            def f(E): assert q.empty(), ("A2 slot still in use", q.name, E.gap)
            f.ready = lambda E: q.empty()
            return f
        cur = 0
        for n in range(72):
            if n in gates:
                cur = gates[n]; st = step_info(n)[2]; n0 = n
                qP.add(self.poll_load(st), earliest=cur - C.polld, deadline=cur - C.polld + 2)
                if C.poll2 and not (n == 0 and isA):
                    qP.add(self.poll2_load(st), earliest=cur - C.poll2, deadline=cur - C.poll2 + 2); self.has2.add(st)
                qL.add(self.gate(st), earliest=cur, deadline=cur + 1)
                if n == 0 and isA: qP.items[-1] = (qP.items[-1][0], M3 + 1, M3 + 1, False)
            its = self.a2_load(n)
            qL.adds(its, earliest=cur, deadline=M3 + (2 * n if n < 72 - C.lastk else 72 - C.lastk + n) - C.a2lead, hard=False)
            need = M3 + (2 * n if n < 72 - C.lastk else 72 - C.lastk + n)
            qL.add(lambda E: None, earliest=cur, deadline=max(need - 6, M3 + 1 if isA else 0))
        qP.items.sort(key=lambda x: x[1] if not (isA and x[1] == M3 + 1 and not x[3]) else -1)
        if isA:
            def boundary(E):
                qs = [qFl, qE2, qE, qL, qB, qW, qU, qP]
                def flags():
                    while not qFl.empty() and (not hasattr(qFl.head()[0], "ready") or qFl.head()[0].ready(E)): step(E, qFl, qs)
                def one_vm(q):
                    while not q.empty() and q.head()[1] <= M3:
                        it = q.head()[0]
                        if hasattr(it, "ready") and not it.ready(E): return False
                        step(E, q, qs)
                        if is_vm(it) and not getattr(it, "dead", False): return True
                    return False
                left = len(qE.items) - qE.n; base = qE.n
                polled = gated = False; lastv = E.pos; nl = 0
                while not (qE2.empty() and qE.empty()):
                    a_, b_ = (qE2, qE) if not qE2.empty() else (qE, qE2)
                    h = a_.head()[0]
                    if not callable(h) and E.nops(h) > 0 and not b_.empty() and (callable(b_.head()[0]) or E.nops(b_.head()[0]) == 0): a_ = b_
                    elif not callable(h) and E.nops(h) > 0 and not qU.empty(): a_ = qU
                    step(E, a_, qs)
                    flags()
                    fr = (qE.n - base) / max(1, left)
                    if not polled and fr >= C.att_gate - 0.45: step(E, qP, qs); polled = True
                    if not gated and fr >= C.att_gate: step(E, qL, qs); gated = True
                    if E.pos - lastv >= C.bd_pace:
                        if (gated and nl < C.bd_nl and one_vm(qL)): nl += 1; lastv = E.pos
                        elif one_vm(qB) or one_vm(qW): lastv = E.pos
                if not polled: step(E, qP, qs)
                if not gated: step(E, qL, qs)
                while nl < C.bd_min and one_vm(qL): nl += 1; flags()
                E.pos += 1000; flags(); E.pos -= 1000
            mains[M3]["pre"].insert(0, boundary)
        b2q = list(range(50 if isA else 56, 72))
        prevpg = lambda n: max(k for k in range(n) if self.b2_chunk(k) == self.b2_chunk(n))
        for c in range(9):
            gap = M3 + 16 * c - D
            barrier(gap, [("b2", n) for n in range(8 * c, 8 * c + 8)] + (["xt"] if c == 7 else []), f"c{c}",
                    lds_tags=["sw", "xr"] if c == 8 else ())
            for n in first_use.get(c, []): mains[gap]["pre"].append(place(n))
            while b2q and L.last_use[("b2", prevpg(b2q[0]))] <= gap - 1: mains[gap]["pre"].append(place(b2q.pop(0)))
        assert not b2q
        RD = v(0, 16); SF = v(16, 16); XF = v(48, 16); XR = v(224, 8); tt = v(32, 4)
        vRW = vTR[0]; vRR = vTR[1]; vOW = vRINV; vOR = vNB; vOO = vTR[4]; vXD = vTR[5]; vXA = vG
        qF.add(chk_free(qE), earliest=M3 + 30); qF.add(chk_free(qE2), earliest=M3 + 30)
        its = [valu("v_lshrrev_b32", tt[0], 4, vL16), valu("v_and_b32", tt[1], 31, tt[0]),
               valu("v_lshrrev_b32", tt[2], 5, tt[0]), valu("v_lshlrev_b32", tt[2], 3, tt[2]),
               salu("s_lshr_b32", sT0, sM0B, 3), salu("s_add_u32", sT0, sT0, TB), valu("v_add_u32", vRW, sT0, vL16),
               valu("v_xor_b32", vRR, 8192, vRW),
               salu("s_and_b32", sT0, sW, 1), salu("s_lshl_b32", sT1, sT0, 12), salu("s_add_u32", sT1, sT1, TB + 16384),
               valu("v_lshlrev_b32", tt[3], 7, tt[1]), valu("v_add3_u32", vXA, tt[3], tt[2], sT1),
               valu("v_and_b32", tt[3], 7, tt[0]), valu("v_lshlrev_b32", tt[3], 4, tt[3]),
               salu("s_lshl_b32", sT1, sKH, 6), valu("v_xor_b32", tt[3], sT1, tt[3]), valu("v_add_u32", vXA, vXA, tt[3]),
               salu("s_mul_i32", sT0, sT0, 32 * 144, scc_w=False), salu("s_add_u32", sT0, sT0, sT1), salu("s_add_u32", sT0, sT0, TB),
               valu("v_mul_u32_u24", tt[1], 144, tt[1]), valu("v_add3_u32", vOW, tt[1], tt[2], sT0),
               valu("v_lshrrev_b32", tt[1], 3, tt[0]), valu("v_and_b32", tt[2], 0x70, vL16),
               valu("v_lshl_add_u32", vOO, tt[1], 10, tt[2]),
               valu("v_lshlrev_b32", tt[3], 4, tt[1]), valu("v_xor_b32", vXD, vOO, tt[3]),
               salu("s_mul_i32", sT0, sW, 16 * 144, scc_w=False), salu("s_add_u32", sT0, sT0, TB),
               valu("v_mul_u32_u24", tt[1], 144, tt[1]), valu("v_add3_u32", vOR, tt[1], tt[2], sT0),
               salu("s_lshl_b32", sXk, sW, 11), salu("s_add_u32", sXk, sXk, TB + 16384), salu("s_add_u32", sXs, sOut, 8192)]
        its += [vload(XR.sub(0, 4), vXD, SX, sOut), vload(XR.sub(4, 4), vXD, SX, sXs), valu("v_add_u32", vXD, sXk, vL16)]
        if C.pre_out: its += [self.touch(vOO, SOUT, sOut, dst=vSP[0]), self.touch(vOO, SOUT, sXs, dst=vSP[0])]
        qF.adds(its, earliest=M3 + 30, deadline=M3 + 64)
        qF.adds([ds_wr(vXD, XR.sub(4 * i, 4), 1024 * i, tag="xt") for i in range(2)], earliest=M3 + 96 - D, deadline=M3 + 112 - D - 2)
        its = []
        for a_ in range(4):
            its += [valu("v_xor_b32", tt[a_], 16 * a_, vXA), ds_rd(XR.sub(2 * a_, 2), tt[a_], 0, tag="xr")]
        qF.adds(its, earliest=M3 + 112 - D, deadline=M3 + 128 - D - 1)
        qF.adds([ds_wr(vRW, ACCS[1].sub(4 * i, 4), 1024 * i, tag="sw") for i in range(4)], earliest=M3 + 111, deadline=M3 + 128 - D)
        its = []
        for r in range(8):
            its += [valu("v_lshlrev_b32", XF[2 * r], 16, XR[r]), valu("v_and_b32", XF[2 * r + 1], sHI, XR[r])]
        qF.adds(its, earliest=M3 + 112)
        its = [ds_rd(SF.sub(4 * i, 4), vRR, 1024 * i) for i in range(4)]
        its += [valu("v_add_f32", SF[r], SF[r], ACCS[0][r]) for r in range(16)]
        CK = v(38, 2); C1 = v(40, 2)
        its += [valu("v_mov_b32", CK[0], 0xbfb8aa3b), valu("v_mov_b32", CK[1], 0xbfb8aa3b), valu("v_mov_b32", C1[0], 1.0), valu("v_mov_b32", C1[1], 1.0)]
        qF.adds(its, earliest=M3 + 128 - D)
        if C.lastk > 1:
            gl = M3 + 144 - C.lastk
            for x in range(len(qF.items)): qF.items[x] = (qF.items[x][0], qF.items[x][1], min(qF.items[x][2], gl + 1), True)
            qF.adds([ds_wr(vRW, ACCD[1].sub(4 * i, 4), 16384 + 1024 * i, tag="dw") for i in range(4)], earliest=gl, deadline=M3 + 142)
            def xch(E):
                E.wait_tags(lds=["dw"]); E.barrier(); self.stamp("sbar")
                for i in range(4): E.emit(ds_rd(RD.sub(4 * i, 4), vRR, 16384 + 1024 * i))
            mains[M3 + 143]["pre"].append(xch)
        cap2 = C.cap2A if isA else C.cap2B
        def capf(g):
            if not isA and not qE.empty(): return C.cap2h
            if g < tail + tl - 1: return cap2
            if g < M3: return C.cap2t
            if not qE2.empty(): return 40
            if g >= M3 + 144 - C.lastk: return C.capl
            return C.cap3 if qE.empty() else C.cap3x
        schedule(E, mains[M2:], [qFl, qP, qD, qG, qL, qB, qW, qU, qR, qE2, qE, qF], capf, M2, flush=False,
                 vm_gap=lambda g: C.vm1 if g < M3 else C.vm3)
        assert qL.empty() and qD.empty() and qB.empty() and qE.empty() and qE2.empty() and qFl.empty()
        self.stamp("lastm")
        while not qF.empty():
            it = qF.head()[0]; qF.n += 1; run_item(E, it)
        if C.lastk <= 1:
            for i in range(4): e(ds_wr(vRW, ACCD[1].sub(4 * i, 4), 16384 + 1024 * i, tag="dw"))
            E.wait_tags(lds=["dw"]); E.barrier()
            self.stamp("sbar")
            for i in range(4): e(ds_rd(RD.sub(4 * i, 4), vRR, 16384 + 1024 * i))
        G = ACCS[1]
        def pk(op, d, *src):
            r = set()
            for x in src: r |= ids(x)
            return I(f"{op} {d}, " + ", ".join(fmt(x) for x in src), "valu", r, ids(d))
        P2 = lambda reg, r: reg.sub(r, 2)
        for a_ in range(4):
            pp_ = (4 * a_, 4 * a_ + 2); rr = range(4 * a_, 4 * a_ + 4)
            for r in pp_: e(pk("v_pk_add_f32", P2(RD, r), P2(RD, r), P2(ACCD[0], r)))
            for r in pp_: e(pk("v_pk_mul_f32", P2(G, r), P2(RD, r), CK))
            for r in pp_: e(pk("v_pk_mul_f32", P2(RD, r), P2(RD, r), P2(SF, r)))
            for r in rr: e(valu("v_exp_f32", G[r], G[r]))
        for a_ in range(4):
            pp_ = (4 * a_, 4 * a_ + 2); rr = range(4 * a_, 4 * a_ + 4)
            for r in pp_: e(pk("v_pk_add_f32", P2(G, r), P2(G, r), C1))
            for r in rr: e(valu("v_rcp_f32", G[r], G[r]))
        for a_ in range(4):
            pp_ = (4 * a_, 4 * a_ + 2)
            for r in pp_: e(pk("v_pk_fma_f32", P2(RD, r), P2(RD, r), P2(G, r), P2(XF, r)))
            for d in range(2): e(valu("v_cvt_pk_bf16_f32", XR[2 * a_ + d], RD[4 * a_ + 2 * d], RD[4 * a_ + 2 * d + 1]))
            e(ds_wr(vOW, XR.sub(2 * a_, 2), 16 * a_))
        E.wait_all_lds(); E.barrier()
        for p in range(2): e(ds_rd(G.sub(4 * p, 4), vOR, 8 * 144 * p))
        for p in range(2): e(vstore(G.sub(4 * p, 4), vOO, SOUT, sXs if p else sOut, 0, fl=C.out_fl))
        self.stamp("end")
        if C.amp:
            l = self.lab("amp")
            E.line("s_waitcnt lgkmcnt(0)")
            if C.amp.startswith("sk"):
                E.line(f"buffer_load_dword v0, off, {SDBG}, 0 offset:4 sc1"); E.line("s_waitcnt vmcnt(0)"); E.line(f"v_readfirstlane_b32 {sT1}, v0"); E.line("s_nop 4")
                if C.amp == "skp": E.line(f"s_sub_u32 {sT0}, s{STAMP0}, {sT1}")
                else: E.line(f"s_sub_u32 {sT0}, {sT1}, s{STAMP0}")
                E.line(f"s_max_i32 {sT0}, {sT0}, 0")
            else:
                k0, k1 = [STAMP0 + 2 * int(x) for x in C.amp.split("-")]
                E.line(f"s_sub_u32 {sT0}, s{k1}, s{k0}")
            if C.ampsel >= 0:
                E.line(f"s_lshr_b32 {sT1}, {sWG}, 5"); E.line(f"s_cmp_eq_u32 {sT1}, {C.ampsel}"); E.line(f"s_cselect_b32 {sT0}, {sT0}, 0")
            if C.ampx >= 0:
                E.line(f"s_and_b32 {sT1}, {sWG}, 7"); E.line(f"s_cmp_eq_u32 {sT1}, {C.ampx}"); E.line(f"s_cselect_b32 {sT0}, {sT0}, 0")
            pass; E.line(f"s_lshl_b32 {sT0}, {sT0}, 2"); E.line(f"s_add_u32 {sT0}, {sT0}, s{STAMP0 + 16}")
            E.label(l)
            E.line("s_memrealtime s[84:85]"); E.line("s_waitcnt lgkmcnt(0)"); E.line(f"s_sub_u32 s84, s84, {sT0}")
            E.line("s_cmp_lt_i32 s84, 0"); E.line(f"s_cbranch_scc1 {l}")
        elif C.stamps:
            E.line("s_waitcnt lgkmcnt(0)")
            e(salu("s_lshl_b32", sT0, sWG, 2)); e(salu("s_add_u32", sT0, sT0, sW)); e(salu("s_lshl_b32", sT0, sT0, 7))
            e(salu("s_add_u32", sT0, sT0, WS_STAMP))
            for k in range(9):
                e(valu("v_mov_b32", v(0), s(STAMP0 + 2 * k))); e(vstore(v(0), None, SWS, sT0, 4 * k))
            e(accr(v(0), a(198))); e(vstore(v(0), None, SWS, sT0, 44))
            E.line("s_memrealtime s[84:85]"); E.line("s_getreg_b32 s86, hwreg(HW_REG_XCC_ID)"); E.line("s_waitcnt lgkmcnt(0)")
            e(valu("v_mov_b32", v(0), s(84))); e(vstore(v(0), None, SWS, sT0, 36))
            e(valu("v_mov_b32", v(0), s(86))); e(vstore(v(0), None, SWS, sT0, 40))
        E.line("s_endpgm")
        E.out += self.cold

    def epoch_publish(self):
        E = self.E
        l = self.lab("nopub")
        E.emit(salu("s_or_b32", sT0, sWG, sW))
        E.line(f"s_cbranch_scc1 {l}")
        E.line(f"s_mov_b32 {sT0}, 0x9e3779b1")
        E.line(f"v_mul_lo_u32 {vPOLL}, {vPOLL}, {sT0}")
        E.line(f"v_add_u32 {vPOLL}, 0x7f4a7c15, {vPOLL}")
        E.line(f"v_max_u32 {vPOLL}, 1, {vPOLL}")
        E.line(f"s_mov_b32 {sT0}, {WS_EPOCH}")
        E.line(f"buffer_store_dword {vPOLL}, off, {SWS}, {sT0} sc1")
        if C.amp.startswith("sk"):
            E.line(f"v_mov_b32 v0, s{STAMP0}"); E.line(f"buffer_store_dword v0, off, {SDBG}, 0 offset:4 sc1"); E.line("s_waitcnt vmcnt(0)")
        E.line(f"buffer_store_dword {vPOLL}, off, {SDBG}, 0 sc1")
        E.label(l)

    def attention(self, q, xfree):
        M2 = self.M2
        Q0, Q1, K0, K1, V0, V1 = [ACC1(t) for t in range(6)]
        cvt = lambda d, x, y: valu("v_cvt_pk_bf16_f32", d, x, y)
        def pack(dst, src, n=8): return [cvt(dst[i], src[2 * i], src[2 * i + 1]) for i in range(n)]
        its = pack(K0, K0) + pack(K0.sub(8, 8), K1)
        its += [ds_wr(vEX, K0.sub(4 * h, 4), 6144 + 1024 * h, tag="exw") for h in range(4)]
        its += pack(V0, V0) + pack(V0.sub(8, 8), V1)
        bar2 = M2 + C.exbar
        q.adds(its, earliest=M2 - 21, deadline=bar2 - 1)
        its = [ds_wr(vEX, V0.sub(4 + 8 * j, 4), 6144 + 4096 + 1024 * j, tag="exw") for j in range(2)]
        its += [accr(NT[i], aHACC[0][i]) for i in range(4)] + [accr(NT[4 + i], aHACC[1][i]) for i in range(4)]
        hk = v(NT[0].lo, 2); hv = v(NT[4].lo, 2)
        its += [cvt(NT[0], NT[0], NT[1]), cvt(NT[1], NT[2], NT[3]), cvt(NT[4], NT[4], NT[5]), cvt(NT[5], NT[6], NT[7])]
        its += [salu("s_lshl_b32", sT0, sW, 10), salu("s_add_u32", sT0, sT0, 256), valu("v_add_u32", NT[2], sT0, vHW),
                salu("s_lshr_b32", sT0, sW, 1), salu("s_lshl_b32", sT0, sT0, 10), salu("s_and_b32", sT1, sW, 1),
                salu("s_lshl_b32", sT1, sT1, 8), salu("s_add_u32", sT0, sT0, sT1), valu("v_add_u32", NT[3], sT0, vHW),
                ds_wr(NT[2], hk, 0, tag="exw"), ds_wr(NT[3], hv, 4096, tag="exw")]
        q.adds(its, earliest=M2 - 1, deadline=bar2 - 1)
        self.exw_check = (q, len(q.items))
        q.adds(pack(Q0, Q0) + pack(Q0.sub(8, 8), Q1), earliest=M2)
        MASK = v(208, 24)
        its = [accr(vRINV, a(196)), accr(vNB, a(197)), smov(sONE, NEG)]
        for r in range(24):
            rr = r if r < 16 else r - 8
            its += [valu("v_bfe_i32", MASK[r], vNB if r < 16 else vRINV, 8 * (rr >> 2) + (rr & 3), 1), valu("v_and_b32", MASK[r], sONE, MASK[r])]
        if C.mask_early: its = [accr(MASK[r], aMASK[r]) for r in range(24)]
        q.adds(its, earliest=M2)
        q.add(lambda E: self.mark.update(masks=True), earliest=M2)
        SC = K1; SP = v(0, 16); U = v(16, 8); P = v(24, 12); O = Q1
        mx, tm, mc = vRINV, vNB, vW16
        sums = [vHX, vH]; t2 = vTR[4]
        def add(i, ear=0):
            w = [x for x in i.w if x < 128]
            e_ = max([xfree(v(x)) for x in w], default=0)
            q.add(i, earliest=max(e_, ear))
        def qk(h, which):
            if which == 0: add(mfma(SC, K0.sub(4 * h, 4), Q0.sub(4 * h, 4), MASK.sub(0, 16)))
            else: add(mfma(SP, aKP[h], Q0.sub(4 * h, 4), MASK.sub(8, 16)))
        def fin(h):
            o = 8 * (h & 1); sm = sums[h & 1]
            l = [valu("v_rcp_f32", sm, sm)]
            l += [valu("v_mul_f32", O[o + r], O[o + r], sm) for r in range(8)]
            l += [cvt(O[o + r], O[o + 2 * r], O[o + 2 * r + 1]) for r in range(4)]
            l.append(self.a2_store(O.sub(o, 4), sStF, h, "o"))
            return l
        qk(0, 0)
        q.adds([ds_rd(aKP[h], vEX, 1024 * h) for h in range(4)] + [ds_rd(aVP[j], vEX, 4096 + 1024 * j) for j in range(2)], earliest=bar2)
        qk(0, 1)
        for h in range(4 if not C.abl_att else 1):
            for i in range(4): add(valu("v_max_f32", U[i], SC[2 * i], SC[2 * i + 1]))
            for i in range(4, 8): add(valu("v_max3_f32", U[i], SC[2 * i], SC[2 * i + 1], SP[2 * i]))
            if h < 3: qk(h + 1, 0)
            for i in range(4, 8): add(valu("v_max_f32", U[i], U[i], SP[2 * i + 1]))
            add(valu("v_max3_f32", mx, U[0], U[1], U[2])); add(valu("v_max3_f32", tm, U[3], U[4], U[5]))
            if h < 3: qk(h + 1, 1)
            add(valu("v_max3_f32", mx, mx, U[6], U[7])); add(valu("v_max_f32", mx, mx, tm))
            add(valu("v_mov_b32", tm, mx))
            fl = fin(h - 1) if h > 0 else []
            for x in fl[:3]: add(x)
            add(swap32(mx, tm)); add(valu("v_max_f32", mx, mx, tm))
            add(I(f"v_mul_f32 {mc}, -{mx}, {sCSC}", "valu", mx.ids() | sCSC.ids(), mc.ids()))
            for x in fl[3:]: add(x)
            for i in range(8): add(valu("v_fma_f32", U[i], U[i], sCSC, mc))
            for i in range(8): add(valu("v_exp_f32", U[i], U[i]))
            sm = sums[h & 1]; j = h >> 1
            for i in range(4):
                add(cvt(P[i], U[i], U[i])); add(valu("v_and_b32", P[i], vPM, P[i]))
            add(valu("v_add_f32", sm, U[0], U[1])); add(valu("v_add_f32", tm, U[2], U[3]))
            add(mfma(O, V0.sub(8 * j, 4), P.sub(0, 4), 0))
            for i in range(4):
                add(cvt(P[8 + i], U[4 + i], U[4 + i])); add(valu("v_and_b32", P[4 + i], vMHC, P[8 + i]))
            add(valu("v_add_f32", t2, U[4], U[5])); add(valu("v_add_f32", sm, sm, tm))
            add(mfma(O, V0.sub(8 * j + 4, 4), P.sub(4, 4), O))
            for i in range(4): add(valu("v_and_b32", P[8 + i], vMHP, P[8 + i]))
            add(valu("v_add_f32", tm, U[6], U[7])); add(valu("v_add_f32", t2, t2, tm))
            add(mfma(O, aVP[j], P.sub(8, 4), O))
            add(valu("v_add_f32", sm, sm, t2))
            add(valu("v_mov_b32", tm, sm))
            add(swap32(sm, tm)); add(valu("v_add_f32", sm, sm, tm))
        for x in fin(3): add(x)

    def build(self):
        E = self.E
        self.stamp("t00")
        E.emit(scmp("s_cmp_ge_u32", sWG, 256))
        E.line("s_cbranch_scc1 L_end")
        E.line("s_load_dwordx16 s[8:23], s[0:1], 0")
        E.line("s_load_dwordx4 s[24:27], s[0:1], 64")
        E.emit(salu("s_lshr_b32", sJ, sWG, 3))
        self.code_touch()
        E.emit(I("s_bitcmp1_b32 s6, 3", "salu", sJ.ids(), {SCC}))
        E.line("s_cbranch_scc1 L_typeB")
        snap = E.snapshot()
        self.body("A")
        E.label("L_typeB")
        E.restore(snap)
        self.body("B")
        E.label("L_end")
        E.line("s_endpgm")
        E.label("L_code_end")
        E.out.append(".p2align 12")
        head = open(os.path.join(os.path.dirname(os.path.abspath(__file__)), "head.txt")).read()
        txt = head + f"""; @launch grid=(256,1,1) block=(256,1,1) lds=163840
.amdgcn_target "amdgcn-amd-amdhsa--gfx950"
.text
.globl {NAME}
.p2align 8
.type {NAME},@function
{NAME}:
""" + E.text() + f""".section .rodata,"a"
.p2align 6
.amdhsa_kernel {NAME}
  .amdhsa_next_free_vgpr 512
  .amdhsa_next_free_sgpr 102
  .amdhsa_accum_offset 256
  .amdhsa_group_segment_fixed_size 0
  .amdhsa_kernarg_size 80
  .amdhsa_user_sgpr_count 2
  .amdhsa_user_sgpr_kernarg_segment_ptr 1
  .amdhsa_system_sgpr_workgroup_id_x 1
.end_amdhsa_kernel
"""
        return txt


def place_pads(txt):
    import subprocess, re, tempfile
    sys.path.insert(0, "cdna_kernels")
    from cdna_launch import with_harness_metadata
    lines = txt.split("\n")
    probe = []
    for n, l in enumerate(lines):
        if l.startswith("    ") and not l.strip().startswith(";") and not l.strip().startswith("."): probe.append(f"LP_{n}:")
        probe.append(re.sub(r"L_pad[AB]_\d+", "L_end", l))
    d = tempfile.mkdtemp()
    open(d + "/p.s", "w").write(with_harness_metadata("\n".join(probe), NAME, 10, launch_lists=True))
    subprocess.run(["clang", "-x", "assembler", "-target", "amdgcn-amd-amdhsa", "-mcpu=gfx950", d + "/p.s", "-o", d + "/p.co"], check=True)
    sym = subprocess.run(["llvm-objdump", "-t", d + "/p.co"], capture_output=True, text=True).stdout
    addr = {int(m.group(2)): int(m.group(1), 16) for m in re.finditer(r"([0-9a-f]{16}) .* LP_(\d+)", sym)}
    shift = 0; typ = None; pads = {"A": [], "B": []}; prev = None
    for n, l in enumerate(lines):
        if l.startswith(";PADS_FROM"): typ = l.split()[1]
        if l.startswith("L_typeB:") or l.startswith("L_end:"): typ = None
        if n in addr:
            a_ = addr[n] + shift
            if typ and prev is not None and prev // 4096 != a_ // 4096:
                pads[typ].append(n); shift += 4
            prev = a_
    out = []
    for n, l in enumerate(lines):
        for t in "AB":
            if n in pads[t]:
                k = pads[t].index(n)
                out.append(f"L_pad{t}_{k}:")
                out.append(f"    s_cbranch_execz " + (f"L_pad{t}_{k + 4}" if k + 4 < len(pads[t]) else f"L_back{t}"))
        out.append(l)
    print("pads", {t: len(pads[t]) for t in pads}, "kernel at", hex(min(addr.values())))
    assert min(len(pads[t]) for t in pads) >= 4
    return "\n".join(out)


if __name__ == "__main__":
    g = Gen()
    txt = g.build()
    if C.pads: txt = place_pads(txt)
    open(sys.argv[1], "w").write(txt)
    print("instructions:", g.E.ninst)
```
